```python
import torch

def _softmax(x, axis=-1):
    return torch.softmax(x, dim=axis)
def _gelu(x):
    return torch.nn.functional.gelu(x, approximate="tanh")
def _silu(x):
    return torch.nn.functional.silu(x)
def _sigmoid(x):
    return torch.sigmoid(x)
def _layernorm(x, axis=-1, eps=1e-5):
    m = x.mean(dim=axis, keepdim=True)
    v = x.var(dim=axis, keepdim=True, unbiased=False)
    return (x - m) / torch.sqrt(v + eps)
def _scatter_add(tgt, idx, src, axis=0):
    return tgt.clone().index_add_(axis, idx, src)
def _segment_sum(src, seg, n):
    out = torch.zeros((n,) + src.shape[1:], dtype=src.dtype)
    return out.index_add_(0, seg, src)
def _pad(x, pw):
    flat = tuple(v for pair in reversed(pw) for v in pair)
    return torch.nn.functional.pad(x, flat)

kernel_name = 'concat_heads__gqa_block_cached__mha_block_cached__near_ridge'

def setup_inputs():

    _w = (lambda a: (lambda t: t.to(torch.bfloat16) if t.is_floating_point() else t)(torch.as_tensor(a)))
    def _A_setup():
        B, Sq, D = 16, 64, 576
        Hq, Hkv, Sk, Dh = 32, 16, 512, 128
        assert Hq % Hkv == 0, (Hq, Hkv)
        return {
            "x": _w((lambda *s: torch.randn(*s, dtype=torch.bfloat16) * 0.8)(B, Sq, D)),
            "k_cache": _w((lambda *s: torch.randn(*s, dtype=torch.bfloat16) * 0.8)(B, Hkv, Sk, Dh)),
            "v_cache": _w((lambda *s: torch.randn(*s, dtype=torch.bfloat16) * 0.05)(B, Hkv, Sk, Dh)),
            "wq": _w((lambda *s: torch.randn(*s, dtype=torch.bfloat16) * 0.8)(D, Hq * Dh) * (D ** -0.5)),
            "wo": _w((lambda *s: torch.randn(*s, dtype=torch.bfloat16) * 0.05)(Hq * Dh, D) * ((Hq * Dh) ** -0.5)),
        }
    _A_in = _A_setup()

    def _B_setup():
        B, Sq, D = 16, 64, 576
        H, Sk, Dh = 32, 512, 128
        return {
            "x": _w((lambda *s: torch.randn(*s, dtype=torch.bfloat16) * 0.8)(B, Sq, D)),
            "k_cache": _w((lambda *s: torch.randn(*s, dtype=torch.bfloat16) * 0.8)(B, H, Sk, Dh)),
            "v_cache": _w((lambda *s: torch.randn(*s, dtype=torch.bfloat16) * 0.05)(B, H, Sk, Dh)),
            "wq": _w((lambda *s: torch.randn(*s, dtype=torch.bfloat16) * 0.8)(D, H * Dh) * (D ** -0.5)),
            "wo": _w((lambda *s: torch.randn(*s, dtype=torch.bfloat16) * 0.05)(H * Dh, D) * ((H * Dh) ** -0.5)),
        }
    _B_in = _B_setup()

    return {
        "A_x": _A_in["x"],
        "A_k_cache": _A_in["k_cache"],
        "A_v_cache": _A_in["v_cache"],
        "A_wq": _A_in["wq"],
        "A_wo": _A_in["wo"],
        "B_x": _B_in["x"],
        "B_k_cache": _B_in["k_cache"],
        "B_v_cache": _B_in["v_cache"],
        "B_wq": _B_in["wq"],
        "B_wo": _B_in["wo"],
    }

def reference(A_x, A_k_cache, A_v_cache, A_wq, A_wo, B_x, B_k_cache, B_v_cache, B_wq, B_wo):
    def _A_ref(x, k_cache, v_cache, wq, wo):
        B, Sq, D = x.shape
        Hq, Dh = 32, 128
        Hkv = k_cache.shape[1]
        rep = Hq // Hkv
        q = (lambda x, *d: x.permute(*d))((x @ wq).reshape(B, Sq, Hq, Dh), 0, 2, 1, 3)
        k = (lambda x, n, axis: torch.repeat_interleave(x, n, dim=axis))(k_cache, rep, axis=1)
        v = (lambda x, n, axis: torch.repeat_interleave(x, n, dim=axis))(v_cache, rep, axis=1)
        scores = torch.einsum("bhqd,bhkd->bhqk", q, k) * (Dh ** -0.5)
        p = _softmax(scores, axis=-1)
        o = torch.einsum("bhqk,bhkd->bhqd", p, v)
        return (lambda x, *d: x.permute(*d))(o, 0, 2, 1, 3).reshape(B, Sq, Hq * Dh) @ wo

    def _B_ref(x, k_cache, v_cache, wq, wo):
        B, Sq, D = x.shape
        H, Dh = 32, 128
        q = (lambda x, *d: x.permute(*d))((x @ wq).reshape(B, Sq, H, Dh), 0, 2, 1, 3)
        scores = torch.einsum("bhqd,bhkd->bhqk", q, k_cache) * (Dh ** -0.5)
        p = _softmax(scores, axis=-1)
        o = torch.einsum("bhqk,bhkd->bhqd", p, v_cache)
        return (lambda x, *d: x.permute(*d))(o, 0, 2, 1, 3).reshape(B, Sq, H * Dh) @ wo

    a = _A_ref(A_x, A_k_cache, A_v_cache, A_wq, A_wo)
    b = _B_ref(B_x, B_k_cache, B_v_cache, B_wq, B_wo)
    return torch.concatenate([a, b], axis=-1)
```

```python
NAME = "concat_heads__gqa_block_cached__mha_block_cached__near_ridge"
KARG = dict(A_x=0, A_k=8, A_v=16, A_wq=24, A_wo=32, B_x=40, B_k=48, B_v=56, B_wq=64, B_wo=72, out=80, dbg=88, ws=96)
SIZE = dict(A_x=16*64*576*2, A_k=16*16*512*128*2, A_v=16*16*512*128*2, A_wq=576*4096*2, A_wo=4096*576*2,
            B_x=16*64*576*2, B_k=16*32*512*128*2, B_v=16*32*512*128*2, B_wq=576*4096*2, B_wo=4096*576*2,
            out=16*64*1152*2, dbg=256, ws=268435456)
STAMP_OFF = 240 << 20

class Asm:
    def __init__(self):
        self.l = []
    def __call__(self, s):
        for line in s.split("\n"):
            t = line.strip()
            if not t: continue
            self.l.append(t if t.endswith(":") else "    " + t)
    def text(self):
        return "\n".join(self.l) + "\n"

def kernel_head(label):
    return f".globl {label}\n.p2align 8\n.type {label},@function\n{label}:\n"

def kernel_desc(label, vgpr, accum, sgpr=102):
    return f""".amdhsa_kernel {label}
  .amdhsa_next_free_vgpr {vgpr}
  .amdhsa_next_free_sgpr {sgpr}
  .amdhsa_accum_offset {accum}
  .amdhsa_group_segment_fixed_size 0
  .amdhsa_kernarg_size 104
  .amdhsa_user_sgpr_count 2
  .amdhsa_user_sgpr_kernarg_segment_ptr 1
  .amdhsa_system_sgpr_workgroup_id_x 1
.end_amdhsa_kernel
"""

def single(body, grid, block, lds, vgpr=256, accum=256, sgpr=102):
    label = NAME + "_kernel"
    return (f"; @launch grid=({grid},1,1) block=({block},1,1) lds={lds}\n"
            '.amdgcn_target "amdgcn-amd-amdhsa--gfx950"\n.text\n' + kernel_head(label) + body +
            '.section .rodata,"a"\n.p2align 6\n' + kernel_desc(label, vgpr, accum, sgpr))

def multi(kernels):
    s = ""
    for k in kernels:
        s += f"; @launch kernel={k['label']} grid=({k['grid']},1,1) block=({k['block']},1,1) lds={k['lds']}\n"
    s += '.amdgcn_target "amdgcn-amd-amdhsa--gfx950"\n.text\n'
    seen = []
    for k in kernels:
        if k['label'] in seen: continue
        seen.append(k['label'])
        s += kernel_head(k['label']) + k['body']
    s += '.section .rodata,"a"\n'
    seen = []
    for k in kernels:
        if k['label'] in seen: continue
        seen.append(k['label'])
        s += ".p2align 6\n" + kernel_desc(k['label'], k.get('vgpr', 256), k.get('accum', 256), k.get('sgpr', 102))
    return s

def srd(a, dst, src, size):
    a(f"s_mov_b32 s{dst}, s{src}\ns_and_b32 s{dst+1}, s{src+1}, 0xffff\ns_mov_b32 s{dst+2}, {size}\ns_mov_b32 s{dst+3}, 0x20000")

def stamp(a, idx, s_ws_srd, s_wg, vtmp, stmp):
    a(f"""s_memrealtime s[{stmp}:{stmp+1}]
    s_waitcnt lgkmcnt(0)
    v_mov_b32 v{vtmp}, s{stmp}
    v_mov_b32 v{vtmp+1}, s{stmp+1}
    s_lshl_b32 s{stmp+2}, s{s_wg}, 7
    s_add_u32 s{stmp+2}, s{stmp+2}, {STAMP_OFF + idx*8}
    v_mov_b32 v{vtmp+2}, 0
    s_mov_b64 exec, 1
    buffer_store_dwordx2 v[{vtmp}:{vtmp+1}], v{vtmp+2}, s[{s_ws_srd}:{s_ws_srd+3}], s{stmp+2} offen
    s_mov_b64 exec, -1""")
```

```python
import sys, struct
sys.path.insert(0, "tools")
from asmlib import *

R0, R1, R2, WR, XR = 0, 32768, 65536, 98304, 131072
LDS_BYTES = 163840
PART = 73728
QSCALE = 1.4426950408889634 / 128 ** 0.5


def fbits(x):
    return "0x%08x" % struct.unpack("<I", struct.pack("<f", x))[0]


sWG, sWAVE, sLW, sHG, sTY, sB = 2, 3, 4, 5, 6, 7
sK, sV, sX, sWQ, sWO, sWS = 8, 12, 16, 20, 24, 28
sKVOFF, sKVM0, sKVN = 32, 33, 34
sWCOL, sWCH, sWN = 35, 36, 37
sXBASE, sXCH, sXN = 38, 39, 40
sOCI, sOBASE, sROT = 41, 42, 43
sN, sM = 44, 45
sT0, sT1, sT2 = 46, 47, 48
sBUFSZ, sRINGEND, sWBUF, sOLW, sOBUF, sTHR, sKVCNT = 49, 50, 51, 52, 53, 54, 55
sTH, sFLOOR, sRPOS, sSTAGE = 56, 57, 58, 59
sRB = 60
sRET = 64
sMODE = 66
sQBUF = 67
sSTAMP = 72

vKVO, vVVO, vXVO, vOVO = 8, 12, 13, 15
vWVO, vWA, vOA0, vOA, vXA0, vXA, vQW, vST = 21, 23, 27, 30, 33, 35, 37, 38
vFA, vFB, vACC = 40, 72, 104
vKA, vVA, vL0, vL1, vT = 21, 29, 33, 34, 36
vP, vS, vNM, vQ, vKF, vVF, vO = 40, 48, 64, 80, 112, 144, 176


def vr(i, n):
    return f"v[{i}:{i+n-1}]"


class Lg:
    def __init__(self, a):
        self.a, self.q = a, []
    def issue(self, text, tag):
        if len(self.q) == 15:
            self.wait(self.q[0])
        self.a(text)
        self.q.append(tag)
    def wait(self, *tags):
        idx = max((i for i, t in enumerate(self.q) if t in tags), default=-1)
        if idx < 0:
            return
        self.a(f"s_waitcnt lgkmcnt({len(self.q) - idx - 1})")
        self.q = self.q[idx + 1:]
    def drain(self):
        self.a("s_waitcnt lgkmcnt(0)")
        self.q = []


class Gen:
    def __init__(self, stamps=False, thr=63, prefill=(-1, -1), kvflag=" nt", stflag=" sc1"):
        self.a = Asm()
        self.stamps, self.thr, self.prefill, self.kvflag, self.stflag = stamps, thr, prefill, kvflag, stflag
        self.nst = 0
        self.uid = 0

    def lab(self, s):
        self.uid += 1
        return f"L_{s}{self.uid}"

    def stamp(self, k):
        if self.stamps:
            self.a(f"s_memrealtime s[{sSTAMP+2*k}:{sSTAMP+2*k+1}]\ns_waitcnt lgkmcnt(0)")
            self.nst = max(self.nst, k + 1)

    def call(self, name):
        self.a(f"s_call_b64 s[{sRET}:{sRET+1}], {name}")

    def prologue(self):
        a = self.a
        a(f"""s_cmp_ge_u32 s2, 256
        s_cbranch_scc1 L_end""")
        self.stamp(0)
        a(f"""s_load_dwordx2 s[68:69], s[0:1], 96
        s_and_b32 s{sHG}, s2, 7
        s_lshr_b32 s{sTY}, s2, 3
        s_and_b32 s{sTY}, s{sTY}, 1
        s_lshr_b32 s{sB}, s2, 4
        s_mul_i32 s{sT0}, s{sTY}, 40
        s_add_u32 s0, s0, s{sT0}
        s_addc_u32 s1, s1, 0
        s_load_dwordx8 s[56:63], s[0:1], 0
        s_load_dwordx2 s[70:71], s[0:1], 32
        v_lshrrev_b32 v1, 6, v0
        v_and_b32 v0, 63, v0
        v_readfirstlane_b32 s{sWAVE}, v1
        v_lshrrev_b32 v2, 4, v0
        v_and_b32 v3, 15, v0
        s_and_b32 s{sLW}, s{sWAVE}, 3""")
        a(f"""v_lshrrev_b32 v4, 3, v0
        v_and_b32 v5, 7, v0""")
        for n in range(2):
            a(f"""v_add_u32 v6, {4*n}, v2
            v_xor_b32 v6, v6, v5
            v_lshlrev_b32 v6, 4, v6
            v_mul_u32_u24 v7, 1152, v4
            v_add_u32 v6, v6, v7
            v_add_u32 v{vXVO+n}, {n*(8*1152-1024)}, v6""")
        a(f"""s_sub_u32 s{sT0}, s{sB}, 9
        s_cmp_ge_u32 s{sB}, 9
        s_cselect_b32 s{sXCH}, s{sT0}, s{sB}
        s_mov_b32 s{sWCH}, s{sXCH}
        s_mul_i32 s{sXBASE}, s{sB}, 73728
        s_mul_i32 s{sT0}, s{sLW}, 18432
        s_add_u32 s{sXBASE}, s{sXBASE}, s{sT0}
        s_waitcnt lgkmcnt(0)""")
        srd(a, sX, 56, SIZE['A_x'])
        srd(a, sWQ, 62, SIZE['A_wq'])
        a(f"""s_mov_b32 s{sK}, s58
        s_and_b32 s{sK+1}, s59, 0xffff
        s_lshl_b32 s{sK+2}, {SIZE['A_k']}, s{sTY}
        s_mov_b32 s{sK+3}, 0x20000
        s_mov_b32 s{sV}, s60
        s_and_b32 s{sV+1}, s61, 0xffff
        s_mov_b32 s{sV+2}, s{sK+2}
        s_mov_b32 s{sV+3}, 0x20000""")
        srd(a, sWO, 70, SIZE['A_wo'])
        srd(a, sWS, 68, SIZE['ws'])

    def late_common(self):
        a = self.a
        a(f"""s_lshl_b32 s{sBUFSZ}, 16384, s{sTY}
        s_lshl_b32 s{sT0}, 2048, s{sTY}
        s_mul_i32 s{sKVM0}, s{sT0}, s{sLW}
        s_add_u32 s{sRINGEND}, s{sKVM0}, 98304
        s_lshl_b32 s{sT0}, s{sB}, 3
        s_add_u32 s{sT0}, s{sT0}, s{sHG}
        s_add_u32 s{sT1}, s{sTY}, 18
        s_lshl_b32 s{sKVOFF}, s{sT0}, s{sT1}
        s_lshr_b32 s{sT0}, s{sLW}, 1
        s_lshl_b32 s{sT0}, s{sT0}, 17
        s_and_b32 s{sT1}, s{sLW}, 1
        s_lshl_b32 s{sT2}, s{sT1}, 12
        s_add_u32 s{sT0}, s{sT0}, s{sT2}
        s_cmp_eq_u32 s{sTY}, 1
        s_cselect_b32 s{sT0}, s{sT0}, s{sKVM0}
        s_add_u32 s{sKVOFF}, s{sKVOFF}, s{sT0}
        s_lshl_b32 s{sT1}, s{sT1}, 3
        s_cmp_eq_u32 s{sTY}, 1
        s_cselect_b32 s{sT1}, 0, s{sT1}
        s_mov_b32 s{sKVN}, 0
        v_lshlrev_b32 v6, 8, v2
        v_add_u32 v7, s{sT1}, v2""")
        for n in range(4):
            a(f"""v_add_u32 v1, {4*n}, v7
            v_xor_b32 v1, v1, v3
            v_and_b32 v1, 15, v1
            v_lshl_add_u32 v{vKVO+n}, v1, 4, v6""")
        a(f"""v_lshlrev_b32 v1, 2, v2
        v_xor_b32 v1, v1, v3
        v_lshl_add_u32 v{vVVO}, v1, 4, v6""")
        for n in range(6):
            a(f"""v_add_u32 v1, {64*n}, v0
            v_mul_u32_u24 v6, 2731, v1
            v_lshrrev_b32 v6, 16, v6
            v_mul_u32_u24 v7, 24, v6
            v_sub_u32 v1, v1, v7
            v_and_b32 v7, 2, v6
            v_xor_b32 v1, v1, v7
            v_lshrrev_b32 v7, 1, v6
            v_and_b32 v7, 4, v7
            v_xor_b32 v1, v1, v7
            v_lshlrev_b32 v1, 4, v1
            v_mul_u32_u24 v6, 1152, v6
            v_add_u32 v1, v1, v6
            v_subrev_u32 v{vOVO+n}, {1024*(n&3)}, v1""")
        a(f"""s_lshl_b32 s{sT0}, s{sHG}, 9
        s_lshl_b32 s{sT1}, s{sLW}, 4
        s_add_u32 s{sT0}, s{sT0}, s{sT1}
        s_mul_i32 s{sOBASE}, s{sT0}, 1152
        s_and_b32 s{sROT}, s{sB}, 3
        s_mul_i32 s{sOLW}, s{sLW}, 6144
        s_cmp_eq_u32 s{sTY}, 1
        s_mov_b32 s{sRB}, {WR}
        s_mov_b32 s{sRB+1}, {R2}
        s_cselect_b32 s{sRB+2}, {R0}, {R1}
        s_cselect_b32 s{sRB+3}, {R1}, {R0}""")

    def subs(self):
        a = self.a
        f = self.kvflag
        a(f"""F_kv:
        s_mov_b32 s{sKVCNT}, 0
        s_cmp_ge_u32 s{sKVN}, 32
        s_cbranch_scc1 F_kv_ret
        s_mov_b32 m0, s{sKVM0}
        s_cmp_eq_u32 s{sTY}, 0
        s_cbranch_scc1 F_kv_a""")
        for n in range(4):
            a(f"buffer_load_dwordx4 v{vKVO+n}, s[{sK}:{sK+3}], s{sKVOFF} offen offset:{1024*n}{f} lds")
        a(f"s_add_u32 m0, s{sKVM0}, 16384\ns_mov_b32 s{sKVCNT}, 8")
        for n in range(4):
            a(f"buffer_load_dwordx4 v{vVVO}, s[{sV}:{sV+3}], s{sKVOFF} offen offset:{1024*n}{f} lds")
        a(f"""s_cmp_eq_u32 s{sKVN}, 15
        s_cselect_b32 s{sT0}, 131072, 0
        s_add_u32 s{sKVOFF}, s{sKVOFF}, s{sT0}
        s_branch F_kv_adv
        F_kv_a:""")
        def throttle():
            if self.thr < 63:
                l = self.lab("thr")
                a(f"s_cmp_eq_u32 s{sTHR}, 0\ns_cbranch_scc1 {l}\ns_waitcnt vmcnt({self.thr-1})\n{l}:")
        for n in range(2):
            throttle()
            a(f"buffer_load_dwordx4 v{vKVO+n}, s[{sK}:{sK+3}], s{sKVOFF} offen offset:{1024*n}{f} lds")
        a(f"s_add_u32 m0, s{sKVM0}, 8192\ns_mov_b32 s{sKVCNT}, 4")
        for n in range(2):
            throttle()
            a(f"buffer_load_dwordx4 v{vVVO}, s[{sV}:{sV+3}], s{sKVOFF} offen offset:{1024*n}{f} lds")
        a(f"""F_kv_adv:
        s_add_u32 s{sKVOFF}, s{sKVOFF}, 8192
        s_add_u32 s{sKVN}, s{sKVN}, 1
        s_add_u32 s{sKVM0}, s{sKVM0}, s{sBUFSZ}
        s_cmp_ge_u32 s{sKVM0}, s{sRINGEND}
        s_cselect_b32 s{sT0}, 98304, 0
        s_sub_u32 s{sKVM0}, s{sKVM0}, s{sT0}
        F_kv_ret:
        s_setpc_b64 s[{sRET}:{sRET+1}]""")
        a(f"""F_wo:
        s_add_u32 s{sT0}, s{sOCI}, s{sROT}
        s_and_b32 s{sT0}, s{sT0}, 3
        s_mul_i32 s{sT0}, s{sT0}, 73728
        s_add_u32 s{sT1}, s{sOBUF}, s{sOLW}
        s_mov_b32 m0, s{sT1}
        s_add_u32 s{sT0}, s{sT0}, s{sOBASE}""")
        for n in range(6):
            if n == 4:
                a(f"s_add_u32 m0, s{sT1}, 4096\ns_add_u32 s{sOCI}, s{sOCI}, 1")
            a(f"buffer_load_dwordx4 v{vOVO+n}, s[{sWO}:{sWO+3}], s{sT0} offen offset:{1024*(n&3)} lds")
        a(f"""s_and_b32 s{sT0}, s{sOCI}, 3
        s_cselect_b32 s{sT0}, 0, 384
        s_add_u32 s{sOBASE}, s{sOBASE}, s{sT0}
        s_cmp_eq_u32 s{sOCI}, 12
        s_cselect_b32 s{sT0}, {294912-1152}, 0
        s_add_u32 s{sOBASE}, s{sOBASE}, s{sT0}
        s_setpc_b64 s[{sRET}:{sRET+1}]""")
        a("F_x:")
        self.x_addr()
        a(f"s_mov_b32 m0, s{sT1}")
        self.x_adv()
        for n in range(2):
            a(f"buffer_load_dwordx4 v{vXVO+n}, s[{sX}:{sX+3}], s{sT0} offen offset:{1024*n} lds")
        a(f"s_setpc_b64 s[{sRET}:{sRET+1}]")

    def x_addr(self):
        self.a(f"""s_lshl_b32 s{sT0}, s{sXCH}, 7
        s_add_u32 s{sT0}, s{sT0}, s{sXBASE}
        s_and_b32 s{sT1}, s{sXN}, 3
        s_lshl_b32 s{sT1}, s{sT1}, 2
        s_add_u32 s{sT1}, s{sT1}, s{sLW}
        s_lshl_b32 s{sT1}, s{sT1}, 11
        s_add_u32 s{sT1}, s{sT1}, {XR}""")

    def x_adv(self):
        self.a(f"""s_add_u32 s{sXN}, s{sXN}, 1
        s_add_u32 s{sXCH}, s{sXCH}, 1
        s_cmp_eq_u32 s{sXCH}, 9
        s_cselect_b32 s{sXCH}, 0, s{sXCH}""")

    def kvwait(self):
        l = self.lab("kw")
        self.a(f"""s_waitcnt vmcnt(8)
        s_cmp_eq_u32 s{sKVCNT}, 8
        s_cbranch_scc1 {l}
        s_waitcnt vmcnt(4)
        s_cmp_eq_u32 s{sKVCNT}, 4
        s_cbranch_scc1 {l}
        s_waitcnt vmcnt(0)
        {l}:""")

    def w_items(self):
        items = []
        for n in range(8):
            t = ""
            if n == 0:
                t += f"s_lshl_b32 s{sT0}, s{sWCH}, 19\ns_add_u32 s{sT0}, s{sT0}, s{sWCOL}\ns_mov_b32 m0, s{sWBUF}\ns_add_u32 s{sWCH}, s{sWCH}, 1\n"
            elif n == 4:
                t += f"s_add_u32 m0, s{sWBUF}, 4096\ns_add_u32 s{sT0}, s{sT0}, {65536+3072}\n"
            else:
                t += f"s_add_u32 s{sT0}, s{sT0}, {65536-1024}\n"
            t += f"buffer_load_dwordx4 v{vWVO+(n&1)}, s[{sWQ}:{sWQ+3}], s{sT0} offen offset:{1024*(n&3)} lds\n"
            if n == 7:
                t += f"""s_cmp_eq_u32 s{sWCH}, 9
                s_cselect_b32 s{sWCH}, 0, s{sWCH}
                s_add_u32 s{sWN}, s{sWN}, 1
                s_cmp_eq_u32 s{sWN}, 9
                s_cselect_b32 s{sT1}, 512, 0
                s_add_u32 s{sWCOL}, s{sWCOL}, s{sT1}"""
            items.append(t)
        return items

    def proj_reads(self, MT, areg, pitch):
        out = []
        for ks in range(2):
            A = lambda mt: [(f"ds_read_b64_tr_b16 {vr(vFA + (ks*MT+mt)*4 + 2*j, 2)}, v{areg+mt} offset:{(32*ks+4*j)*pitch}", ("A", ks, mt, j)) for j in range(2)]
            B = lambda qt: [(f"ds_read_b128 {vr(vFB + (ks*4+qt)*4, 4)}, v{vXA+ks} offset:{2048*qt}", ("B", ks, qt))]
            l = B(0) + A(0) + B(1) + B(2) + B(3)
            for mt in range(1, MT):
                l += A(mt)
            out.append(l)
        return out

    def mf(self, MT, acc, ks, mt, qt):
        c = vr(acc + (mt*4+qt)*4, 4)
        return f"v_mfma_f32_16x16x32_bf16 {c}, {vr(vFA + (ks*MT+mt)*4, 4)}, {vr(vFB + (ks*4+qt)*4, 4)}, {c}"

    def proj_first_half(self, MT, acc, areg, pitch):
        a = self.a
        lg = Lg(a)
        r0, r1 = self.proj_reads(MT, areg, pitch)
        for t, tag in r0:
            lg.issue(t, tag)
        r1 = list(r1)
        while r1 and len(lg.q) < 15:
            lg.issue(*r1.pop(0))
        for mt in range(MT):
            for qt in range(4):
                lg.wait(("A", 0, mt, 0), ("A", 0, mt, 1), ("B", 0, qt))
                a(self.mf(MT, acc, 0, mt, qt))
                if r1 and len(lg.q) < 15:
                    lg.issue(*r1.pop(0))
        for t, tag in r1:
            lg.issue(t, tag)
        lg.drain()

    def proj_second_half(self, MT, acc, fill=()):
        fill = list(fill)
        k = 0
        for mt in range(MT):
            for qt in range(4):
                self.a(self.mf(MT, acc, 1, mt, qt))
                k += 1
                if fill and k % 2 == 0:
                    self.a(fill.pop(0))
        for t in fill:
            self.a(t)

    def pj(self):
        a = self.a
        a("L_pj:")
        a(f"""s_lshl_b32 s{sWCOL}, s{sHG}, 10
        s_lshl_b32 s{sT0}, s{sLW}, 7
        s_add_u32 s{sWCOL}, s{sWCOL}, s{sT0}
        s_mov_b32 s{sWN}, 0
        s_lshl_b32 s{sT0}, s{sLW}, 13
        s_add_u32 s{sWBUF}, s{sT0}, {R2}
        v_and_b32 v1, 1, v2
        v_lshlrev_b32 v1, 1, v1
        v_xor_b32 v1, v1, v5
        v_lshlrev_b32 v1, 4, v1
        v_lshl_add_u32 v{vWVO}, v4, 13, v1
        v_xor_b32 v{vWVO+1}, 64, v{vWVO}""")
        for t in self.w_items():
            a(t)
        a(f"s_xor_b32 s{sWBUF}, s{sWBUF}, {R2 ^ WR}")
        for t in self.w_items():
            a(t)
        a(f"s_xor_b32 s{sWBUF}, s{sWBUF}, {R2 ^ WR}")
        self.late_common()
        npre = "2, 4"
        a(f"""s_cmp_eq_u32 s{sTY}, 1
        s_cselect_b32 s{sKVN}, {npre}
        s_lshl_b32 s{sT0}, s{sKVN}, 13
        s_add_u32 s{sKVOFF}, s{sKVOFF}, s{sT0}
        s_add_u32 s{sKVM0}, s{sKVM0}, {R2}
        s_mov_b32 s{sXN}, 12
        s_add_u32 s{sXCH}, s{sXCH}, 3
        s_sub_u32 s{sT0}, s{sXCH}, 9
        s_cmp_ge_u32 s{sXCH}, 9
        s_cselect_b32 s{sXCH}, s{sT0}, s{sXCH}
        s_mov_b32 s{sOCI}, 0
        s_mov_b32 s{sOBUF}, {WR}
        s_mov_b32 s{sTHR}, 1""")
        a(f"""v_lshrrev_b32 v1, 2, v3
        v_lshl_add_u32 v6, v2, 3, v1
        v_lshrrev_b32 v1, 1, v1
        v_and_b32 v7, 1, v2
        v_lshl_or_b32 v1, v7, 1, v1
        v_and_b32 v7, 3, v0
        v_lshlrev_b32 v7, 3, v7
        v_lshl_add_u32 v{vST}, v6, 7, v7
        v_lshl_add_u32 v{vST}, v1, 5, v{vST}
        v_add_u32 v{vWA}, s{sWBUF}, v{vST}""")
        for mt in range(1, 4):
            a(f"v_xor_b32 v{vWA+mt}, {32*mt}, v{vWA}")
        a(f"""v_mul_u32_u24 v6, 384, v6
        v_add_u32 v6, v6, v7
        s_mul_i32 s{sT0}, s{sLW}, 3""")
        for nt in range(3):
            a(f"""s_add_u32 s{sT1}, s{sT0}, {nt}
            v_xor_b32 v7, s{sT1}, v1
            v_lshl_add_u32 v{vOA0+nt}, v7, 5, v6
            v_add_u32 v{vOA+nt}, {WR}, v{vOA0+nt}""")
        a(f"""v_lshrrev_b32 v1, 1, v3
        v_xor_b32 v6, v1, v2
        v_lshlrev_b32 v6, 4, v6
        v_lshl_add_u32 v6, v3, 7, v6
        v_add_u32 v{vXA0}, {XR}, v6
        v_xor_b32 v{vXA0+1}, 64, v{vXA0}
        v_mov_b32 v{vXA}, v{vXA0}
        v_mov_b32 v{vXA+1}, v{vXA0+1}
        v_lshrrev_b32 v6, 1, v2
        v_xor_b32 v6, v6, v1
        v_lshlrev_b32 v6, 4, v6
        v_lshl_add_u32 v6, v3, 7, v6
        v_and_b32 v7, 1, v2
        v_lshl_add_u32 v6, v7, 3, v6
        v_add_u32 v{vQW}, s{sWBUF}, v6""")
        for i in range(64):
            a(f"v_mov_b32 v{vACC+i}, 0")
        a(f"s_mov_b32 s{sN}, 0\ns_waitcnt vmcnt(8)")
        a("L_q:\ns_barrier")
        self.proj_first_half(4, vACC, vWA, 128)
        a(f"s_cmp_ge_u32 s{sN}, 8\ns_cbranch_scc1 L_q_now")
        self.proj_second_half(4, vACC, self.w_items())
        a(f"s_xor_b32 s{sWBUF}, s{sWBUF}, {R2 ^ WR}")
        for mt in range(4):
            a(f"v_xor_b32 v{vWA+mt}, {R2 ^ WR}, v{vWA+mt}")
        a("s_waitcnt vmcnt(8)\ns_branch L_q_next")
        a(f"""L_q_now:
        s_cmp_eq_u32 s{sN}, 8
        s_cbranch_scc1 L_q_noy
        s_barrier
        L_q_noy:""")
        self.proj_second_half(4, vACC)
        a(f"""s_cmp_eq_u32 s{sN}, 8
        s_cbranch_scc1 L_q_fin
        s_cmp_eq_u32 s{sN}, 17
        s_cbranch_scc1 L_q_fin""")
        for t in self.w_items():
            a(t)
        a(f"s_cmp_ge_u32 s{sN}, 15\ns_cbranch_scc1 L_q_kv")
        self.call("F_x")
        a("L_q_kv:")
        self.call("F_kv")
        self.kvwait()
        a("s_branch L_q_next")
        a(f"L_q_fin:\ns_mov_b32 s{sT2}, {fbits(QSCALE)}\ns_nop 4")
        for mt in range(4):
            a(f"v_xor_b32 v1, {32*mt}, v{vQW}")
            for qt in range(4):
                c = vACC + (mt*4+qt)*4
                for r in range(4):
                    a(f"v_mul_f32 v{c+r}, s{sT2}, v{c+r}")
                a(f"""v_cvt_pk_bf16_f32 v{c}, v{c}, v{c+1}
                v_cvt_pk_bf16_f32 v{c+1}, v{c+2}, v{c+3}
                ds_write_b64 v1, {vr(c,2)} offset:{2048*qt}""")
        a(f"""s_waitcnt lgkmcnt(0)
        s_cmp_eq_u32 s{sN}, 17
        s_cbranch_scc1 L_q_done""")
        for i in range(64):
            a(f"v_mov_b32 v{vACC+i}, 0")
        a(f"s_xor_b32 s{sWBUF}, s{sWBUF}, {R2 ^ WR}\nv_xor_b32 v{vQW}, {R2 ^ WR}, v{vQW}")
        for mt in range(4):
            a(f"v_xor_b32 v{vWA+mt}, {R2 ^ WR}, v{vWA+mt}")
        a("s_waitcnt vmcnt(0)")
        self.stamp(1)
        a(f"""L_q_next:
        s_add_u32 s{sN}, s{sN}, 1
        s_and_b32 s{sT0}, s{sN}, 3
        s_lshl_b32 s{sT0}, s{sT0}, 13
        v_add_u32 v{vXA}, s{sT0}, v{vXA0}
        v_add_u32 v{vXA+1}, s{sT0}, v{vXA0+1}
        s_branch L_q
        L_q_done:""")
        self.call("F_kv")
        for i in range(144):
            a(f"v_mov_b32 v{vACC+i}, 0")
        self.kvwait()
        self.stamp(2)
        a(f"""s_mov_b32 s{sN}, 8
        L_kvl:
        s_barrier
        s_barrier
        s_cmp_lg_u32 s{sN}, 1
        s_cbranch_scc1 L_kvl_a""")
        self.call("F_wo")
        a("L_kvl_a:")
        self.call("F_kv")
        self.kvwait()
        a(f"""s_sub_u32 s{sN}, s{sN}, 1
        s_cmp_lg_u32 s{sN}, 0
        s_cbranch_scc1 L_kvl
        s_mov_b32 s{sMODE}, 0""")
        self.stamp(3)
        a("L_o:")
        for G in range(3):
            acc = vACC + 48 * G
            a(f"""s_mov_b32 s{sN}, 0
            L_o{G}:
            s_add_u32 s{sT0}, s{sN}, s{sROT}
            s_and_b32 s{sT0}, s{sT0}, 3
            s_lshl_b32 s{sT0}, s{sT0}, 13
            v_add_u32 v{vXA}, s{sT0}, v{vXA0}
            v_add_u32 v{vXA+1}, s{sT0}, v{vXA0+1}
            s_barrier""")
            self.proj_first_half(3, acc, vOA, 384)
            a(f"s_cmp_eq_u32 s{sMODE}, 1\ns_cbranch_scc1 L_o{G}_last\ns_barrier")
            self.proj_second_half(3, acc)
            self.call("F_wo")
            self.call("F_kv")
            self.kvwait()
            a(f"s_branch L_o{G}_next\nL_o{G}_last:")
            rot = [f"s_mov_b32 s{sT0}, s{sRB}\ns_mov_b32 s{sRB}, s{sRB+1}", f"s_mov_b32 s{sRB+1}, s{sRB+2}\ns_mov_b32 s{sRB+2}, s{sRB+3}",
                   f"s_mov_b32 s{sRB+3}, s{sT0}"] + [f"v_add_u32 v{vOA+nt}, s{sRB}, v{vOA0+nt}" for nt in range(3)]
            self.proj_second_half(3, acc, rot)
            if G == 0:
                a(f"""s_cmp_ge_u32 s{sN}, 2
                s_cbranch_scc1 L_o0_next
                s_waitcnt vmcnt(6)
                s_cmp_eq_u32 s{sN}, 0
                s_cbranch_scc1 L_o0_next
                s_waitcnt vmcnt(0)""")
            a(f"""L_o{G}_next:
            s_add_u32 s{sN}, s{sN}, 1
            s_cmp_lt_u32 s{sN}, 4
            s_cbranch_scc1 L_o{G}
            s_cmp_eq_u32 s{sMODE}, 0
            s_cbranch_scc1 L_o{G}_skip
            s_nop 4""")
            for qd in range(6):
                c = acc + 8*qd
                for i in range(4):
                    a(f"v_cvt_pk_bf16_f32 v{c+i}, v{c+2*i}, v{c+2*i+1}")
                a(f"buffer_store_dwordx4 {vr(c,4)}, v{vST}, s[{sWS}:{sWS+3}], s{sM} offen offset:{1024*(qd&3)}{self.stflag}")
                if qd == 3:
                    a(f"s_add_u32 s{sM}, s{sM}, 4096")
            a(f"s_add_u32 s{sM}, s{sM}, {24576-4096}")
            if G < 2:
                self.stamp(6 + G)
            a(f"L_o{G}_skip:")
        a(f"s_cmp_eq_u32 s{sMODE}, 1\ns_cbranch_scc1 L_pj_end")
        self.stamp(4)
        a("s_barrier\ns_barrier")
        self.call("F_kv")
        self.kvwait()
        a(f"s_barrier\ns_barrier\ns_mov_b32 s{sOBUF}, s{sRB+1}")
        self.call("F_wo")
        a(f"s_waitcnt vmcnt(6)\ns_barrier\ns_barrier\ns_mov_b32 s{sOBUF}, s{sRB+2}")
        self.call("F_wo")
        a(f"""s_lshl_b32 s{sT0}, s{sTY}, 4
        s_add_u32 s{sT0}, s{sT0}, s{sB}
        s_lshl_b32 s{sT0}, s{sT0}, 3
        s_add_u32 s{sT0}, s{sT0}, s{sHG}
        s_mul_i32 s{sM}, s{sT0}, {PART}
        s_add_u32 s{sM}, s{sM}, s{sOLW}
        v_lshlrev_b32 v{vST}, 4, v0
        s_mov_b32 s{sMODE}, 1
        s_waitcnt vmcnt(12)""")
        self.stamp(5)
        a("s_branch L_o\nL_pj_end:")
        if self.stamps:
            self.stamp(8)
            a("s_waitcnt vmcnt(0)")
            self.stamp(9)
            a(f"""s_cmp_lg_u32 s{sLW}, 0
            s_cbranch_scc1 L_end
            s_lshl_b32 s{sT0}, s2, 7
            s_add_u32 s{sT0}, s{sT0}, {STAMP_OFF}
            v_mov_b32 v3, 0
            s_mov_b64 exec, 1""")
            for j in range(self.nst):
                a(f"v_mov_b32 v4, s{sSTAMP+2*j}\nv_mov_b32 v5, s{sSTAMP+2*j+1}\nbuffer_store_dwordx2 v[4:5], v3, s[{sWS}:{sWS+3}], s{sT0} offen offset:{8*j}")
        a("s_endpgm")

    def at(self):
        a = self.a
        a(f"s_mov_b32 s{sXN}, 0")
        for n in range(4):
            self.call("F_x")
        for n in range(4, 9):
            a(f"s_lshl_b32 s{sT0}, s{sXCH}, 7\ns_add_u32 s{sT0}, s{sT0}, s{sXBASE}")
            self.x_adv()
            for i in range(2):
                a(f"buffer_load_dwordx4 {vr(vO + (n-4)*8 + 4*i, 4)}, v{vXVO+i}, s[{sX}:{sX+3}], s{sT0} offen offset:{1024*i}")
        self.late_common()
        a(f"s_mov_b32 s{sTHR}, 0\ns_mov_b32 s{sOCI}, 15\ns_add_u32 s{sOBASE}, s{sOBASE}, 294912")
        issued = ["x"] * 18

        def prefill():
            l = self.lab("pf")
            self.call("F_kv")
            a(f"s_cmp_eq_u32 s{sTY}, 1\ns_cbranch_scc1 {l}")
            self.call("F_kv")
            a(f"{l}:")
            issued.extend(["kv"] * 8)
        for p in self.prefill:
            if p < 0:
                prefill()
        a(f"""s_lshr_b32 s{sT0}, s{sLW}, 1
        s_mul_i32 s{sT0}, s{sT0}, s{sTY}
        s_lshl_b32 s{sT0}, s{sT0}, 13
        v_and_b32 v1, 31, v0
        v_lshrrev_b32 v6, 5, v0
        v_xor_b32 v7, v6, v3
        v_lshlrev_b32 v7, 4, v7
        v_lshl_add_u32 v7, v1, 8, v7
        v_add_u32 v{vKA}, s{sT0}, v7""")
        for s in range(1, 8):
            a(f"v_xor_b32 v{vKA+s}, {32*s}, v{vKA}")
        a(f"""s_lshr_b32 s{sT1}, s{sBUFSZ}, 1
        s_add_u32 s{sT0}, s{sT0}, s{sT1}
        v_lshrrev_b32 v1, 2, v3
        v_lshl_add_u32 v7, v6, 2, v1
        v_lshlrev_b32 v7, 8, v7
        v_lshl_add_u32 v7, v1, 6, v7
        v_and_b32 v1, 1, v2
        v_lshl_add_u32 v7, v1, 5, v7
        v_and_b32 v1, 3, v0
        v_lshl_add_u32 v7, v1, 3, v7
        v_add_u32 v{vVA}, s{sT0}, v7""")
        for dt in range(1, 4):
            a(f"v_xor_b32 v{vVA+dt}, {64*dt}, v{vVA}")
        a(f"""s_lshl_b32 s{sT0}, s{sLW}, 11
        s_add_u32 s{sT0}, s{sT0}, {XR}
        v_lshl_add_u32 v{vT}, v0, 4, s{sT0}
        s_mov_b32 s{sRPOS}, 0
        s_mov_b32 s{sSTAGE}, 0
        s_mov_b32 s{sQBUF}, {R2}""")
        after = lambda k: len(issued) - k
        for n in range(9):
            if n <= 3:
                a(f"s_waitcnt vmcnt({after(2*n+2)})")
            a("s_barrier")
            if 1 <= n <= 5:
                a(f"s_waitcnt vmcnt({after(2*(n+3)+2)})")
                for i in range(2):
                    a(f"ds_write_b128 v{vT}, {vr(vO + (n-1)*8 + 4*i, 4)} offset:{((n+3)&3)*8192 + 1024*i}")
            if n >= 6:
                self.call("F_x")
                issued.extend(["x"] * 2)
            if n in self.prefill:
                for _ in range(self.prefill.count(n)):
                    prefill()
            a("s_waitcnt lgkmcnt(0)")
        first_kv = issued.index("kv") + 8
        x9 = [i for i, k in enumerate(issued) if k == "x"][19] + 1
        assert issued.count("kv") == 16
        a(f"s_waitcnt vmcnt({after(max(first_kv, x9))})")
        a("L_stage:")
        for i in range(64):
            a(f"v_mov_b32 v{vO+i}, 0")
        for i in range(16):
            a(f"v_mov_b32 v{vNM+i}, 0")
        a(f"""v_mov_b32 v{vL0}, 0
        v_mov_b32 v{vL1}, 0
        s_mov_b32 s{sTH}, 0xff7fffff
        s_mov_b32 s{sFLOOR}, 0xff7fffff
        s_lshr_b32 s{sT0}, s{sLW}, 1
        s_lshl_b32 s{sT0}, s{sT0}, 14
        s_and_b32 s{sT1}, s{sLW}, 1
        s_lshl_b32 s{sT1}, s{sT1}, 12
        s_add_u32 s{sT0}, s{sT0}, s{sT1}
        s_add_u32 s{sT0}, s{sT0}, s{sQBUF}
        v_and_b32 v1, 31, v0
        v_bfe_u32 v6, v0, 1, 3
        v_lshrrev_b32 v7, 5, v0
        v_xor_b32 v6, v6, v7
        v_lshlrev_b32 v6, 4, v6
        v_lshl_add_u32 v6, v1, 7, v6
        v_add_u32 v{vT}, s{sT0}, v6""")
        for s in range(1, 4):
            a(f"v_xor_b32 v{vT+s}, {32*s}, v{vT}")
        a(f"s_mov_b32 s{sN}, 0\nL_tile:\ns_barrier\ns_cmp_lg_u32 s{sN}, 0\ns_cbranch_scc1 L_tile_k")
        for s in range(8):
            a(f"ds_read_b128 {vr(vQ+4*s, 4)}, v{vT+(s&3)} offset:{8192*(s>>2)}")
        a("s_waitcnt lgkmcnt(0)\nL_tile_k:")
        lg = Lg(a)
        for s in range(8):
            lg.issue(f"ds_read_b128 {vr(vKF+4*s, 4)}, v{vKA+s}", ("K", s))
        vreads = [(f"ds_read_b64_tr_b16 {vr(vVF + (u*4+dt)*4 + 2*j, 2)}, v{vVA+dt} offset:{(16*u+8*j)*256}", ("V", u, dt, j))
                  for u in range(2) for dt in range(4) for j in range(2)]
        for s in range(8):
            lg.wait(("K", s))
            c = vr(vNM, 16) if s == 0 else vr(vS, 16)
            a(f"v_mfma_f32_32x32x16_bf16 {vr(vS,16)}, {vr(vKF+4*s,4)}, {vr(vQ+4*s,4)}, {c}")
            for _ in range(2):
                if len(lg.q) < 15:
                    lg.issue(*vreads.pop(0))
        a("s_barrier")
        for t, tag in vreads:
            lg.issue(t, tag)
        a(f"""s_add_u32 s{sRPOS}, s{sRPOS}, s{sBUFSZ}
        s_cmp_ge_u32 s{sRPOS}, 98304
        s_cselect_b32 s{sT0}, 98304, 0
        s_sub_u32 s{sRPOS}, s{sRPOS}, s{sT0}
        s_sub_u32 s{sT0}, s{sBUFSZ}, s{sT0}""")
        for i in range(12):
            a(f"v_add_u32 v{vKA+i}, s{sT0}, v{vKA+i}")
        t0, t1 = vT, vT + 1
        a(f"v_max3_f32 v{t0}, v{vS}, v{vS+1}, v{vS+2}\nv_max3_f32 v{t1}, v{vS+3}, v{vS+4}, v{vS+5}")
        for i in range(6, 14, 4):
            a(f"v_max3_f32 v{t0}, v{t0}, v{vS+i}, v{vS+i+1}\nv_max3_f32 v{t1}, v{t1}, v{vS+i+2}, v{vS+i+3}")
        a(f"""v_max3_f32 v{t0}, v{t0}, v{vS+14}, v{vS+15}
        v_max_f32 v{t0}, v{t0}, v{t1}
        v_cmp_lt_f32 vcc, s{sTH}, v{t0}
        s_cbranch_vccnz L_rescale
        L_tile_exp:""")

        def expo(u):
            o = vS + 8*u
            l = [f"v_exp_f32 v{o+i}, v{o+i}" for i in range(8)]
            fin = []
            for i in range(4):
                fin += [f"v_add_f32 v{vL0}, v{vL0}, v{o+2*i}", f"v_add_f32 v{vL1}, v{vL1}, v{o+2*i+1}",
                        f"v_cvt_pk_bf16_f32 v{vP+4*u+i}, v{o+2*i}, v{o+2*i+1}"]
            return l, fin
        pv = lambda u, dt: f"v_mfma_f32_32x32x16_bf16 {vr(vO+16*dt,16)}, {vr(vVF+(u*4+dt)*4,4)}, {vr(vP+4*u,4)}, {vr(vO+16*dt,16)}"
        e0, f0 = expo(0)
        e1, f1 = expo(1)
        for t in e0: a(t)
        for t in [x for x in f0 if "cvt" in x]: a(t)
        rest = [x for x in f0 if "cvt" not in x]
        a(rest.pop(0)); a(rest.pop(0))
        seq = e1[:4] + rest[:2] + e1[4:] + rest[2:] + [x for x in f1 if "cvt" in x]
        per = [5, 5, 4, 4]
        for dt in range(4):
            lg.wait(("V", 0, dt, 0), ("V", 0, dt, 1))
            a(pv(0, dt))
            for _ in range(per[dt]):
                a(seq.pop(0))
        assert not seq
        adds = [x for x in f1 if "cvt" not in x]
        a(adds.pop(0)); a(adds.pop(0))
        for dt in range(4):
            lg.wait(("V", 1, dt, 0), ("V", 1, dt, 1))
            a(pv(1, dt))
            for _ in range(2):
                if adds: a(adds.pop(0))
        a(f"""s_waitcnt vmcnt(0)
        s_add_u32 s{sN}, s{sN}, 1
        s_cmp_lt_u32 s{sN}, 16
        s_cbranch_scc1 L_tile""")
        a(f"""v_add_f32 v{vL0}, v{vL0}, v{vL1}
        s_lshr_b32 s{sT0}, s{sLW}, 1
        s_lshl_b32 s{sT0}, s{sT0}, 14
        v_mov_b32 v{vL1}, v{vL0}
        s_and_b32 s{sT1}, s{sLW}, 1
        s_lshl_b32 s{sT1}, s{sT1}, 12
        v_permlane32_swap_b32 v{vL0}, v{vL1}
        s_add_u32 s{sT0}, s{sT0}, s{sT1}
        s_add_u32 s{sT0}, s{sT0}, {XR}
        v_add_f32 v{vL0}, v{vL0}, v{vL1}
        v_and_b32 v1, 31, v0
        v_rcp_f32 v{vL0}, v{vL0}
        v_bfe_u32 v6, v0, 1, 3
        v_lshlrev_b32 v6, 4, v6
        v_lshl_add_u32 v6, v1, 7, v6
        v_lshrrev_b32 v7, 5, v0
        v_lshl_add_u32 v6, v7, 3, v6
        v_add_u32 v6, s{sT0}, v6
        v_mov_b32 v{vT+2}, v{vL0}""")
        for dt in range(4):
            for i in range(4):
                c = vO + 16*dt + 4*i
                a(f"""v_pk_mul_f32 {vr(c,2)}, {vr(c,2)}, {vr(vT+2,2)} op_sel_hi:[1,0]
                v_pk_mul_f32 {vr(c+2,2)}, {vr(c+2,2)}, {vr(vT+2,2)} op_sel_hi:[1,0]
                v_xor_b32 v1, {16*(4*(dt&1)+i)}, v6
                v_cvt_pk_bf16_f32 v{c}, v{c}, v{c+1}
                v_cvt_pk_bf16_f32 v{c+1}, v{c+2}, v{c+3}
                ds_write_b64 v1, {vr(c,2)} offset:{8192*(dt>>1)}""")
        a(f"""s_waitcnt lgkmcnt(0)
        s_mov_b32 s{sQBUF}, {WR}
        s_add_u32 s{sSTAGE}, s{sSTAGE}, 1
        s_cmp_lt_u32 s{sSTAGE}, 2
        s_cbranch_scc1 L_stage""")
        order = [3, 0, 1, 2]
        for tau in range(12):
            a("s_barrier")
            if tau + 3 <= 11:
                a(f"s_mov_b32 s{sOBUF}, s{sRB+order[tau&3]}")
                self.call("F_wo")
            if tau >= 2 and tau <= 10:
                a(f"s_waitcnt vmcnt({6*min(2, 10-tau)})")
        a("s_endpgm")
        d, al = vT, vT + 2
        a(f"""L_rescale:
        v_mov_b32 v{t1}, v{t0}
        s_nop 1
        v_permlane32_swap_b32 v{t0}, v{t1}
        v_max3_f32 v{d}, v{t0}, v{t1}, s{sFLOOR}
        v_max_f32 v{al}, 0, v{d}
        v_exp_f32 v{al}, -v{al}
        s_mov_b32 s{sTH}, 0x41000000
        s_mov_b32 s{sFLOOR}, 0""")
        for i in range(16):
            a(f"v_sub_f32 v{vS+i}, v{vS+i}, v{d}\nv_sub_f32 v{vNM+i}, v{vNM+i}, v{d}")
        a(f"v_mul_f32 v{vL0}, v{vL0}, v{al}\nv_mul_f32 v{vL1}, v{vL1}, v{al}")
        for i in range(0, 64, 2):
            a(f"v_pk_mul_f32 {vr(vO+i,2)}, {vr(vO+i,2)}, {vr(al,2)} op_sel_hi:[1,0]")
        a("s_branch L_tile_exp")

    def main(self):
        a = self.a
        self.prologue()
        a(f"s_cmp_ge_u32 s{sWAVE}, 4\ns_cbranch_scc1 L_pj")
        self.at()
        self.pj()
        self.subs()
        a("L_end:\ns_endpgm")
        return a.text()


def reduce_kernel():
    a = Asm()
    a(f"""s_cmp_ge_u32 s2, 576
    s_cbranch_scc1 R_end
    s_load_dwordx2 s[4:5], s[0:1], 96
    s_load_dwordx2 s[6:7], s[0:1], 80
    s_mul_i32 s16, s2, 3641
    s_lshr_b32 s16, s16, 16
    s_mul_i32 s17, s16, 18
    s_sub_u32 s17, s2, s17
    v_lshrrev_b32 v1, 6, v0
    v_and_b32 v2, 63, v0
    v_readfirstlane_b32 s18, v1
    s_lshl_b32 s17, s17, 2
    s_add_u32 s17, s17, s18
    s_mul_i32 s19, s16, {8*PART}
    s_lshl_b32 s20, s17, 10
    s_add_u32 s19, s19, s20
    v_lshlrev_b32 v3, 4, v2
    s_waitcnt lgkmcnt(0)""")
    srd(a, 8, 4, SIZE['ws']); srd(a, 12, 6, SIZE['out'])
    for h in range(8):
        a(f"buffer_load_dwordx4 {vr(8+4*h,4)}, v3, s[8:11], s19 offen\ns_add_u32 s19, s19, {PART}")
    a(f"""s_mul_i32 s20, s17, 43
    s_lshr_b32 s20, s20, 8
    s_mul_i32 s21, s20, 6
    s_sub_u32 s21, s17, s21
    s_mul_i32 s20, s20, 96
    s_lshr_b32 s22, s21, 1
    s_lshl_b32 s22, s22, 5
    s_add_u32 s20, s20, s22
    s_and_b32 s21, s21, 1
    s_mul_i32 s21, s21, {32*2304}
    s_add_u32 s20, s20, s21
    s_lshr_b32 s21, s16, 4
    s_mul_i32 s21, s21, 1152
    s_add_u32 s20, s20, s21
    s_and_b32 s21, s16, 15
    s_mul_i32 s21, s21, {64*2304}
    s_add_u32 s20, s20, s21
    s_add_u32 s21, s20, {16*2304}
    v_and_b32 v4, 15, v2
    v_mul_u32_u24 v4, 2304, v4
    v_lshrrev_b32 v5, 4, v2
    v_lshl_add_u32 v4, v5, 3, v4""")
    for h in range(8):
        a(f"s_waitcnt vmcnt({7-h})")
        for i in range(4):
            r = 8 + 4*h + i
            if h == 0:
                a(f"v_lshlrev_b32 v{40+2*i}, 16, v{r}\nv_and_b32 v{41+2*i}, 0xffff0000, v{r}")
            else:
                a(f"""v_lshlrev_b32 v6, 16, v{r}
                v_and_b32 v7, 0xffff0000, v{r}
                v_add_f32 v{40+2*i}, v{40+2*i}, v6
                v_add_f32 v{41+2*i}, v{41+2*i}, v7""")
    for i in range(4):
        a(f"v_cvt_pk_bf16_f32 v{8+i}, v{40+2*i}, v{41+2*i}")
    a("""buffer_store_dwordx2 v[8:9], v4, s[12:15], s20 offen
    buffer_store_dwordx2 v[10:11], v4, s[12:15], s21 offen
    R_end:
    s_endpgm""")
    return a.text()


def build(**kw):
    g = Gen(**kw)
    return multi([
        dict(label="attn_main_kernel", body=g.main(), grid=256, block=512, lds=LDS_BYTES, vgpr=256, accum=256, sgpr=102),
        dict(label="attn_reduce_kernel", body=reduce_kernel(), grid=576, block=256, lds=0, vgpr=48, accum=48, sgpr=32),
    ])


if __name__ == "__main__":
    import argparse
    ap = argparse.ArgumentParser()
    ap.add_argument("out")
    ap.add_argument("--stamps", action="store_true")
    ap.add_argument("--thr", type=int, default=63)
    ap.add_argument("--prefill", default="-1,-1")
    x = ap.parse_args()
    open(x.out, "w").write(build(stamps=x.stamps, thr=x.thr, prefill=tuple(int(v) for v in x.prefill.split(","))))
```

```python
import sys, struct
sys.path.insert(0, "tools")
from asmlib import *

R0, R1, R2, WR, XR = 0, 32768, 65536, 98304, 131072
LDS_BYTES = 163840
PART = 73728
QSCALE = 1.4426950408889634 / 128 ** 0.5


def fbits(x):
    return "0x%08x" % struct.unpack("<I", struct.pack("<f", x))[0]


sWG, sWAVE, sLW, sHG, sTY, sB = 2, 3, 4, 5, 6, 7
sK, sV, sX, sWQ, sWO, sWS = 8, 12, 16, 20, 24, 28
sKVOFF, sKVM0, sKVN = 32, 33, 34
sWCOL, sWCH, sWN = 35, 36, 37
sXBASE, sXCH, sXN = 38, 39, 40
sOCI, sOBASE, sROT = 41, 42, 43
sN, sM = 44, 45
sT0, sT1, sT2 = 46, 47, 48
sBUFSZ, sRINGEND, sWBUF, sOLW, sOBUF, sTHR, sKVCNT = 49, 50, 51, 52, 53, 54, 55
sTH, sFLOOR, sRPOS, sSTAGE = 56, 57, 58, 59
sRB = 60
sRET = 64
sMODE = 66
sQBUF = 67
sSLOT = 68
PROBE_OFF = 241 << 20
sSTAMP = 72

vKVO, vVVO, vXVO, vOVO = 8, 12, 13, 15
vWVO, vWA, vOA0, vOA, vXA0, vXA, vQW, vST = 21, 23, 27, 30, 33, 35, 37, 38
vFA, vFB, vACC = 40, 72, 104
vKA, vVA, vL0, vL1, vT = 21, 29, 33, 34, 36
vP, vS, vNM, vQ, vKF, vVF, vO = 40, 48, 64, 80, 112, 144, 176


def vr(i, n):
    return f"v[{i}:{i+n-1}]"


class Lg:
    def __init__(self, a):
        self.a, self.q = a, []
    def issue(self, text, tag):
        if len(self.q) == 15:
            self.wait(self.q[0])
        self.a(text)
        self.q.append(tag)
    def wait(self, *tags):
        idx = max((i for i, t in enumerate(self.q) if t in tags), default=-1)
        if idx < 0:
            return
        self.a(f"s_waitcnt lgkmcnt({len(self.q) - idx - 1})")
        self.q = self.q[idx + 1:]
    def drain(self):
        self.a("s_waitcnt lgkmcnt(0)")
        self.q = []


class Gen:
    def __init__(self, stamps=False, thr=63, prefill=(-1, -1), kvflag=" nt", stflag=" sc1", probes=False):
        self.a = Asm()
        self.stamps, self.thr, self.prefill, self.kvflag, self.stflag = stamps, thr, prefill, kvflag, stflag
        self.nst = 0
        self.probes = probes
        self.uid = 0

    def lab(self, s):
        self.uid += 1
        return f"L_{s}{self.uid}"

    def stamp(self, k):
        if self.stamps:
            self.a(f"s_memrealtime s[{sSTAMP+2*k}:{sSTAMP+2*k+1}]\ns_waitcnt lgkmcnt(0)")
            self.nst = max(self.nst, k + 1)

    def probe(self, k, first=False):
        if self.probes:
            if first:
                self.a(f"s_add_u32 s{sSLOT}, s{sSLOT}, 1")
            self.a(f"s_memtime s[70:71]\ns_waitcnt lgkmcnt(0)\ns_mov_b32 m0, s{sSLOT}\nv_writelane_b32 v{248+k}, s70, m0")

    def early(self, lane):
        if self.probes:
            self.a(f"s_memtime s[70:71]\ns_waitcnt lgkmcnt(0)\nv_writelane_b32 v255, s70, {lane}")

    def probe_dump(self):
        if self.probes:
            l = self.lab("pd")
            self.a(f"""s_cmp_lg_u32 s{sLW}, 0
            s_cbranch_scc1 {l}
            s_lshl_b32 s{sT0}, s2, 1
            s_lshr_b32 s{sT1}, s{sWAVE}, 2
            s_add_u32 s{sT0}, s{sT0}, s{sT1}
            s_lshl_b32 s{sT0}, s{sT0}, 11
            s_add_u32 s{sT0}, s{sT0}, {PROBE_OFF}
            v_lshlrev_b32 v1, 2, v0""")
            for k in range(8):
                self.a(f"buffer_store_dword v{248+k}, v1, s[{sWS}:{sWS+3}], s{sT0} offen offset:{256*k}")
            self.a(f"{l}:")

    def call(self, name):
        self.a(f"s_call_b64 s[{sRET}:{sRET+1}], {name}")

    def prologue(self):
        a = self.a
        a(f"""s_cmp_ge_u32 s2, 256
        s_cbranch_scc1 L_end""")
        self.stamp(0)
        if self.probes:
            a("s_memtime s[72:73]")
        a(f"""s_load_dwordx2 s[68:69], s[0:1], 96
        s_and_b32 s{sHG}, s2, 7
        s_lshr_b32 s{sTY}, s2, 3
        s_and_b32 s{sTY}, s{sTY}, 1
        s_lshr_b32 s{sB}, s2, 4
        s_mul_i32 s{sT0}, s{sTY}, 40
        s_add_u32 s0, s0, s{sT0}
        s_addc_u32 s1, s1, 0
        s_load_dwordx8 s[56:63], s[0:1], 0
        s_load_dwordx2 s[70:71], s[0:1], 32
        v_lshrrev_b32 v1, 6, v0
        v_and_b32 v0, 63, v0
        v_readfirstlane_b32 s{sWAVE}, v1
        v_lshrrev_b32 v2, 4, v0
        v_and_b32 v3, 15, v0
        s_and_b32 s{sLW}, s{sWAVE}, 3""")
        a(f"""v_lshrrev_b32 v4, 3, v0
        v_and_b32 v5, 7, v0""")
        for n in range(2):
            a(f"""v_add_u32 v6, {4*n}, v2
            v_xor_b32 v6, v6, v5
            v_lshlrev_b32 v6, 4, v6
            v_mul_u32_u24 v7, 1152, v4
            v_add_u32 v6, v6, v7
            v_add_u32 v{vXVO+n}, {n*(8*1152-1024)}, v6""")
        a(f"""s_sub_u32 s{sT0}, s{sB}, 9
        s_cmp_ge_u32 s{sB}, 9
        s_cselect_b32 s{sXCH}, s{sT0}, s{sB}
        s_mov_b32 s{sWCH}, s{sXCH}
        s_mul_i32 s{sXBASE}, s{sB}, 73728
        s_mul_i32 s{sT0}, s{sLW}, 18432
        s_add_u32 s{sXBASE}, s{sXBASE}, s{sT0}
        s_waitcnt lgkmcnt(0)""")
        srd(a, sX, 56, SIZE['A_x'])
        srd(a, sWQ, 62, SIZE['A_wq'])
        a(f"""s_mov_b32 s{sK}, s58
        s_and_b32 s{sK+1}, s59, 0xffff
        s_lshl_b32 s{sK+2}, {SIZE['A_k']}, s{sTY}
        s_mov_b32 s{sK+3}, 0x20000
        s_mov_b32 s{sV}, s60
        s_and_b32 s{sV+1}, s61, 0xffff
        s_mov_b32 s{sV+2}, s{sK+2}
        s_mov_b32 s{sV+3}, 0x20000""")
        srd(a, sWO, 70, SIZE['A_wo'])
        srd(a, sWS, 68, SIZE['ws'])
        if self.probes:
            a(f"s_mov_b32 s{sSLOT}, -1")
            for k in range(8):
                a(f"v_mov_b32 v{248+k}, 0")
            a("v_writelane_b32 v255, s72, 0")
            self.early(1)

    def late_common(self):
        a = self.a
        a(f"""s_lshl_b32 s{sBUFSZ}, 16384, s{sTY}
        s_lshl_b32 s{sT0}, 2048, s{sTY}
        s_mul_i32 s{sKVM0}, s{sT0}, s{sLW}
        s_add_u32 s{sRINGEND}, s{sKVM0}, 98304
        s_lshl_b32 s{sT0}, s{sB}, 3
        s_add_u32 s{sT0}, s{sT0}, s{sHG}
        s_add_u32 s{sT1}, s{sTY}, 18
        s_lshl_b32 s{sKVOFF}, s{sT0}, s{sT1}
        s_lshr_b32 s{sT0}, s{sLW}, 1
        s_lshl_b32 s{sT0}, s{sT0}, 17
        s_and_b32 s{sT1}, s{sLW}, 1
        s_lshl_b32 s{sT2}, s{sT1}, 12
        s_add_u32 s{sT0}, s{sT0}, s{sT2}
        s_cmp_eq_u32 s{sTY}, 1
        s_cselect_b32 s{sT0}, s{sT0}, s{sKVM0}
        s_add_u32 s{sKVOFF}, s{sKVOFF}, s{sT0}
        s_lshl_b32 s{sT1}, s{sT1}, 3
        s_cmp_eq_u32 s{sTY}, 1
        s_cselect_b32 s{sT1}, 0, s{sT1}
        s_mov_b32 s{sKVN}, 0
        v_lshlrev_b32 v6, 8, v2
        v_add_u32 v7, s{sT1}, v2""")
        for n in range(4):
            a(f"""v_add_u32 v1, {4*n}, v7
            v_xor_b32 v1, v1, v3
            v_and_b32 v1, 15, v1
            v_lshl_add_u32 v{vKVO+n}, v1, 4, v6""")
        a(f"""v_lshlrev_b32 v1, 2, v2
        v_xor_b32 v1, v1, v3
        v_lshl_add_u32 v{vVVO}, v1, 4, v6""")
        for n in range(6):
            a(f"""v_add_u32 v1, {64*n}, v0
            v_mul_u32_u24 v6, 2731, v1
            v_lshrrev_b32 v6, 16, v6
            v_mul_u32_u24 v7, 24, v6
            v_sub_u32 v1, v1, v7
            v_and_b32 v7, 2, v6
            v_xor_b32 v1, v1, v7
            v_lshrrev_b32 v7, 1, v6
            v_and_b32 v7, 4, v7
            v_xor_b32 v1, v1, v7
            v_lshlrev_b32 v1, 4, v1
            v_mul_u32_u24 v6, 1152, v6
            v_add_u32 v1, v1, v6
            v_subrev_u32 v{vOVO+n}, {1024*(n&3)}, v1""")
        a(f"""s_lshl_b32 s{sT0}, s{sHG}, 9
        s_lshl_b32 s{sT1}, s{sLW}, 4
        s_add_u32 s{sT0}, s{sT0}, s{sT1}
        s_mul_i32 s{sOBASE}, s{sT0}, 1152
        s_and_b32 s{sROT}, s{sB}, 3
        s_mul_i32 s{sOLW}, s{sLW}, 6144
        s_cmp_eq_u32 s{sTY}, 1
        s_mov_b32 s{sRB}, {WR}
        s_mov_b32 s{sRB+1}, {R2}
        s_cselect_b32 s{sRB+2}, {R0}, {R1}
        s_cselect_b32 s{sRB+3}, {R1}, {R0}""")

    def subs(self):
        a = self.a
        f = self.kvflag
        a(f"""F_kv:
        s_mov_b32 s{sKVCNT}, 0
        s_cmp_ge_u32 s{sKVN}, 32
        s_cbranch_scc1 F_kv_ret
        s_mov_b32 m0, s{sKVM0}
        s_cmp_eq_u32 s{sTY}, 0
        s_cbranch_scc1 F_kv_a""")
        for n in range(4):
            a(f"buffer_load_dwordx4 v{vKVO+n}, s[{sK}:{sK+3}], s{sKVOFF} offen offset:{1024*n}{f} lds")
        a(f"s_add_u32 m0, s{sKVM0}, 16384\ns_mov_b32 s{sKVCNT}, 8")
        for n in range(4):
            a(f"buffer_load_dwordx4 v{vVVO}, s[{sV}:{sV+3}], s{sKVOFF} offen offset:{1024*n}{f} lds")
        a(f"""s_cmp_eq_u32 s{sKVN}, 15
        s_cselect_b32 s{sT0}, 131072, 0
        s_add_u32 s{sKVOFF}, s{sKVOFF}, s{sT0}
        s_branch F_kv_adv
        F_kv_a:""")
        def throttle():
            if self.thr < 63:
                l = self.lab("thr")
                a(f"s_cmp_eq_u32 s{sTHR}, 0\ns_cbranch_scc1 {l}\ns_waitcnt vmcnt({self.thr-1})\n{l}:")
        for n in range(2):
            throttle()
            a(f"buffer_load_dwordx4 v{vKVO+n}, s[{sK}:{sK+3}], s{sKVOFF} offen offset:{1024*n}{f} lds")
        a(f"s_add_u32 m0, s{sKVM0}, 8192\ns_mov_b32 s{sKVCNT}, 4")
        for n in range(2):
            throttle()
            a(f"buffer_load_dwordx4 v{vVVO}, s[{sV}:{sV+3}], s{sKVOFF} offen offset:{1024*n}{f} lds")
        a(f"""F_kv_adv:
        s_add_u32 s{sKVOFF}, s{sKVOFF}, 8192
        s_add_u32 s{sKVN}, s{sKVN}, 1
        s_add_u32 s{sKVM0}, s{sKVM0}, s{sBUFSZ}
        s_cmp_ge_u32 s{sKVM0}, s{sRINGEND}
        s_cselect_b32 s{sT0}, 98304, 0
        s_sub_u32 s{sKVM0}, s{sKVM0}, s{sT0}
        F_kv_ret:
        s_setpc_b64 s[{sRET}:{sRET+1}]""")
        a(f"""F_wo:
        s_add_u32 s{sT0}, s{sOCI}, s{sROT}
        s_and_b32 s{sT0}, s{sT0}, 3
        s_mul_i32 s{sT0}, s{sT0}, 73728
        s_add_u32 s{sT1}, s{sOBUF}, s{sOLW}
        s_mov_b32 m0, s{sT1}
        s_add_u32 s{sT0}, s{sT0}, s{sOBASE}""")
        for n in range(6):
            if n == 4:
                a(f"s_add_u32 m0, s{sT1}, 4096\ns_add_u32 s{sOCI}, s{sOCI}, 1")
            a(f"buffer_load_dwordx4 v{vOVO+n}, s[{sWO}:{sWO+3}], s{sT0} offen offset:{1024*(n&3)} lds")
        a(f"""s_and_b32 s{sT0}, s{sOCI}, 3
        s_cselect_b32 s{sT0}, 0, 384
        s_add_u32 s{sOBASE}, s{sOBASE}, s{sT0}
        s_cmp_eq_u32 s{sOCI}, 12
        s_cselect_b32 s{sT0}, {294912-1152}, 0
        s_add_u32 s{sOBASE}, s{sOBASE}, s{sT0}
        s_setpc_b64 s[{sRET}:{sRET+1}]""")
        a("F_x:")
        self.x_addr()
        a(f"s_mov_b32 m0, s{sT1}")
        self.x_adv()
        for n in range(2):
            a(f"buffer_load_dwordx4 v{vXVO+n}, s[{sX}:{sX+3}], s{sT0} offen offset:{1024*n} lds")
        a(f"s_setpc_b64 s[{sRET}:{sRET+1}]")

    def x_addr(self):
        self.a(f"""s_lshl_b32 s{sT0}, s{sXCH}, 7
        s_add_u32 s{sT0}, s{sT0}, s{sXBASE}
        s_and_b32 s{sT1}, s{sXN}, 3
        s_lshl_b32 s{sT1}, s{sT1}, 2
        s_add_u32 s{sT1}, s{sT1}, s{sLW}
        s_lshl_b32 s{sT1}, s{sT1}, 11
        s_add_u32 s{sT1}, s{sT1}, {XR}""")

    def x_adv(self):
        self.a(f"""s_add_u32 s{sXN}, s{sXN}, 1
        s_add_u32 s{sXCH}, s{sXCH}, 1
        s_cmp_eq_u32 s{sXCH}, 9
        s_cselect_b32 s{sXCH}, 0, s{sXCH}""")

    def kvwait(self):
        l = self.lab("kw")
        self.a(f"""s_waitcnt vmcnt(8)
        s_cmp_eq_u32 s{sKVCNT}, 8
        s_cbranch_scc1 {l}
        s_waitcnt vmcnt(4)
        s_cmp_eq_u32 s{sKVCNT}, 4
        s_cbranch_scc1 {l}
        s_waitcnt vmcnt(0)
        {l}:""")

    def w_items(self):
        items = []
        for n in range(8):
            t = ""
            if n == 0:
                t += f"s_lshl_b32 s{sT0}, s{sWCH}, 19\ns_add_u32 s{sT0}, s{sT0}, s{sWCOL}\ns_mov_b32 m0, s{sWBUF}\ns_add_u32 s{sWCH}, s{sWCH}, 1\n"
            elif n == 4:
                t += f"s_add_u32 m0, s{sWBUF}, 4096\ns_add_u32 s{sT0}, s{sT0}, {65536+3072}\n"
            else:
                t += f"s_add_u32 s{sT0}, s{sT0}, {65536-1024}\n"
            t += f"buffer_load_dwordx4 v{vWVO+(n&1)}, s[{sWQ}:{sWQ+3}], s{sT0} offen offset:{1024*(n&3)} lds\n"
            if n == 7:
                t += f"""s_cmp_eq_u32 s{sWCH}, 9
                s_cselect_b32 s{sWCH}, 0, s{sWCH}
                s_add_u32 s{sWN}, s{sWN}, 1
                s_cmp_eq_u32 s{sWN}, 9
                s_cselect_b32 s{sT1}, 512, 0
                s_add_u32 s{sWCOL}, s{sWCOL}, s{sT1}"""
            items.append(t)
        return items

    def proj_reads(self, MT, areg, pitch):
        out = []
        for ks in range(2):
            A = lambda mt: [(f"ds_read_b64_tr_b16 {vr(vFA + (ks*MT+mt)*4 + 2*j, 2)}, v{areg+mt} offset:{(32*ks+4*j)*pitch}", ("A", ks, mt, j)) for j in range(2)]
            B = lambda qt: [(f"ds_read_b128 {vr(vFB + (ks*4+qt)*4, 4)}, v{vXA+ks} offset:{2048*qt}", ("B", ks, qt))]
            l = B(0) + A(0) + B(1) + B(2) + B(3)
            for mt in range(1, MT):
                l += A(mt)
            out.append(l)
        return out

    def mf(self, MT, acc, ks, mt, qt):
        c = vr(acc + (mt*4+qt)*4, 4)
        return f"v_mfma_f32_16x16x32_bf16 {c}, {vr(vFA + (ks*MT+mt)*4, 4)}, {vr(vFB + (ks*4+qt)*4, 4)}, {c}"

    def proj_slot(self, MT, acc, prev, areg, pitch, hold):
        a = self.a
        lg = Lg(a)
        r0, r1 = self.proj_reads(MT, areg, pitch)
        r0, r1 = list(r0), list(r1)
        order = [(mt, qt) for mt in range(MT) for qt in range(4)]
        for _ in range(4):
            lg.issue(*r0.pop(0))
        for mt, qt in order:
            a(self.mf(MT, prev, 1, mt, qt))
            if r0:
                lg.issue(*r0.pop(0))
        assert not r0
        n = len(order) - hold
        for k, (mt, qt) in enumerate(order[:n]):
            lg.wait(("A", 0, mt, 0), ("A", 0, mt, 1), ("B", 0, qt))
            a(self.mf(MT, acc, 0, mt, qt))
            for _ in range(2):
                if r1:
                    lg.issue(*r1.pop(0))
        assert not r1
        lg.drain()
        return [self.mf(MT, acc, 0, mt, qt) for mt, qt in order[n:]]

    def flush(self, MT, acc):
        for mt in range(MT):
            for qt in range(4):
                self.a(self.mf(MT, acc, 1, mt, qt))

    def zero_set1(self, MT):
        for i in range(4 * MT):
            self.a(f"v_mov_b32 v{vFA + 4*MT + i}, 0")
        for i in range(16):
            self.a(f"v_mov_b32 v{vFB + 16 + i}, 0")

    def weave(self, x, y):
        x, y = list(x), list(y)
        while x or y:
            if x: self.a(x.pop(0))
            if y: self.a(y.pop(0))

    def pj(self):
        a = self.a
        a("L_pj:")
        a(f"""s_lshl_b32 s{sWCOL}, s{sHG}, 10
        s_lshl_b32 s{sT0}, s{sLW}, 7
        s_add_u32 s{sWCOL}, s{sWCOL}, s{sT0}
        s_mov_b32 s{sWN}, 0
        s_lshl_b32 s{sT0}, s{sLW}, 13
        s_add_u32 s{sWBUF}, s{sT0}, {R2}
        v_and_b32 v1, 1, v2
        v_lshlrev_b32 v1, 1, v1
        v_xor_b32 v1, v1, v5
        v_lshlrev_b32 v1, 4, v1
        v_lshl_add_u32 v{vWVO}, v4, 13, v1
        v_xor_b32 v{vWVO+1}, 64, v{vWVO}""")
        for t in self.w_items():
            a(t)
        a(f"s_xor_b32 s{sWBUF}, s{sWBUF}, {R2 ^ WR}")
        for t in self.w_items():
            a(t)
        a(f"s_xor_b32 s{sWBUF}, s{sWBUF}, {R2 ^ WR}")
        self.early(2)
        self.late_common()
        self.early(3)
        a(f"""s_mov_b32 s{sXN}, 12
        s_add_u32 s{sXCH}, s{sXCH}, 3
        s_sub_u32 s{sT0}, s{sXCH}, 9
        s_cmp_ge_u32 s{sXCH}, 9
        s_cselect_b32 s{sXCH}, s{sT0}, s{sXCH}
        s_mov_b32 s{sOCI}, 0
        s_mov_b32 s{sOBUF}, {WR}""")
        a(f"""v_lshrrev_b32 v1, 2, v3
        v_lshl_add_u32 v6, v2, 3, v1
        v_lshrrev_b32 v1, 1, v1
        v_and_b32 v7, 1, v2
        v_lshl_or_b32 v1, v7, 1, v1
        v_and_b32 v7, 3, v0
        v_lshlrev_b32 v7, 3, v7
        v_lshl_add_u32 v{vST}, v6, 7, v7
        v_lshl_add_u32 v{vST}, v1, 5, v{vST}
        v_add_u32 v{vWA}, s{sWBUF}, v{vST}""")
        for mt in range(1, 4):
            a(f"v_xor_b32 v{vWA+mt}, {32*mt}, v{vWA}")
        a(f"""v_mul_u32_u24 v6, 384, v6
        v_add_u32 v6, v6, v7
        s_mul_i32 s{sT0}, s{sLW}, 3""")
        for nt in range(3):
            a(f"""s_add_u32 s{sT1}, s{sT0}, {nt}
            v_xor_b32 v7, s{sT1}, v1
            v_lshl_add_u32 v{vOA0+nt}, v7, 5, v6
            v_add_u32 v{vOA+nt}, {WR}, v{vOA0+nt}""")
        a(f"""v_lshrrev_b32 v1, 1, v3
        v_xor_b32 v6, v1, v2
        v_lshlrev_b32 v6, 4, v6
        v_lshl_add_u32 v6, v3, 7, v6
        v_add_u32 v{vXA0}, {XR}, v6
        v_xor_b32 v{vXA0+1}, 64, v{vXA0}
        v_mov_b32 v{vXA}, v{vXA0}
        v_mov_b32 v{vXA+1}, v{vXA0+1}
        v_lshrrev_b32 v6, 1, v2
        v_xor_b32 v6, v6, v1
        v_lshlrev_b32 v6, 4, v6
        v_lshl_add_u32 v6, v3, 7, v6
        v_and_b32 v7, 1, v2
        v_lshl_add_u32 v6, v7, 3, v6
        v_add_u32 v{vQW}, s{sWBUF}, v6""")
        for i in range(64):
            a(f"v_mov_b32 v{vACC+i}, 0")
        self.zero_set1(4)
        self.early(4)
        a(f"s_mov_b32 s{sN}, 0\ns_waitcnt vmcnt(8)")
        self.early(5)
        toggle = [f"s_xor_b32 s{sWBUF}, s{sWBUF}, {R2 ^ WR}"] + [f"v_xor_b32 v{vWA+mt}, {R2 ^ WR}, v{vWA+mt}" for mt in range(4)]
        a("L_q:\ns_barrier")
        self.probe(0, True)
        held = self.proj_slot(4, vACC, vACC, vWA, 128, 8)
        self.probe(1)
        a(f"""s_cmp_lt_u32 s{sN}, 9
        s_cbranch_scc1 L_q_noy
        s_barrier
        L_q_noy:""")
        self.probe(2)
        a(f"""s_cmp_eq_u32 s{sN}, 8
        s_cbranch_scc1 L_q_fin
        s_cmp_eq_u32 s{sN}, 17
        s_cbranch_scc1 L_q_fin""")
        self.weave(held, self.w_items())
        self.probe(4)
        a(f"s_cmp_ge_u32 s{sN}, 9\ns_cbranch_scc1 L_q_s1")
        for t in toggle:
            a(t)
        a(f"""s_waitcnt vmcnt(8)
        s_branch L_q_next
        L_q_s1:
        s_cmp_ge_u32 s{sN}, 15
        s_cbranch_scc1 L_q_w0""")
        self.call("F_x")
        a("s_branch L_q_w0")
        a("L_q_fin:")
        for t in held:
            a(t)
        self.flush(4, vACC)
        a(f"s_mov_b32 s{sT2}, {fbits(QSCALE)}")
        self.zero_set1(4)
        for mt in range(4):
            a(f"v_xor_b32 v1, {32*mt}, v{vQW}")
            for qt in range(4):
                c = vACC + (mt*4+qt)*4
                for r in range(4):
                    a(f"v_mul_f32 v{c+r}, s{sT2}, v{c+r}")
                a(f"""v_cvt_pk_bf16_f32 v{c}, v{c}, v{c+1}
                v_cvt_pk_bf16_f32 v{c+1}, v{c+2}, v{c+3}
                ds_write_b64 v1, {vr(c,2)} offset:{2048*qt}""")
        a(f"""s_waitcnt lgkmcnt(0)
        s_cmp_eq_u32 s{sN}, 17
        s_cbranch_scc1 L_q_done""")
        for i in range(64):
            a(f"v_mov_b32 v{vACC+i}, 0")
        a(f"v_xor_b32 v{vQW}, {R2 ^ WR}, v{vQW}")
        for t in toggle:
            a(t)
        self.stamp(1)
        a("L_q_w0:\ns_waitcnt vmcnt(0)\nL_q_next:")
        self.probe(5)
        a(f"""s_add_u32 s{sN}, s{sN}, 1
        s_and_b32 s{sT0}, s{sN}, 3
        s_lshl_b32 s{sT0}, s{sT0}, 13
        v_add_u32 v{vXA}, s{sT0}, v{vXA0}
        v_add_u32 v{vXA+1}, s{sT0}, v{vXA0+1}
        s_branch L_q
        L_q_done:""")
        self.stamp(2)
        a("s_barrier\ns_barrier")
        for i in range(144):
            a(f"v_mov_b32 v{vACC+i}, 0")
        self.zero_set1(3)
        a(f"""s_mov_b32 s{sN}, 7
        L_kvl:
        s_barrier
        s_barrier
        s_sub_u32 s{sN}, s{sN}, 1
        s_cmp_lg_u32 s{sN}, 0
        s_cbranch_scc1 L_kvl""")
        self.call("F_wo")
        a(f"s_mov_b32 s{sMODE}, 0\ns_waitcnt vmcnt(0)")
        if self.probes:
            a(f"s_add_u32 s{sSLOT}, s{sSLOT}, 8")
        self.stamp(3)

        def store_group(G):
            acc = vACC + 48 * G
            for qd in range(6):
                c = acc + 8*qd
                for i in range(4):
                    a(f"v_cvt_pk_bf16_f32 v{c+i}, v{c+2*i}, v{c+2*i+1}")
                a(f"buffer_store_dwordx4 {vr(c,4)}, v{vST}, s[{sWS}:{sWS+3}], s{sM} offen offset:{1024*(qd&3)}{self.stflag}")
                if qd == 3:
                    a(f"s_add_u32 s{sM}, s{sM}, 4096")
            a(f"s_add_u32 s{sM}, s{sM}, {24576-4096}")
        a("L_o:")
        for c in range(12):
            acc, prev = vACC + 48 * (c >> 2), vACC + 48 * (((c - 1) % 12) >> 2)
            a(f"""s_add_u32 s{sT0}, s{sROT}, {c & 3}
            s_and_b32 s{sT0}, s{sT0}, 3
            s_lshl_b32 s{sT0}, s{sT0}, 13
            v_add_u32 v{vXA}, s{sT0}, v{vXA0}
            v_add_u32 v{vXA+1}, s{sT0}, v{vXA0+1}
            s_barrier""")
            self.probe(0, True)
            held = self.proj_slot(3, acc, prev, vOA, 384, 6)
            rot = [f"s_cmp_eq_u32 s{sMODE}, 1\ns_cselect_b32 s{sT0}, s{sRB + ((c+1)&3)}, s{sRB}"] + [f"v_add_u32 v{vOA+nt}, s{sT0}, v{vOA0+nt}" for nt in range(3)]
            self.weave(held, rot)
            self.probe(1)
            a(f"s_cbranch_scc1 L_o{c}_last\ns_barrier")
            self.probe(2)
            self.call("F_wo")
            self.probe(4)
            a(f"s_waitcnt vmcnt(0)")
            self.probe(5)
            extra = c in (0, 1, 4, 8, 11)
            if extra:
                a(f"s_branch L_o{c}_next")
            a(f"L_o{c}_last:")
            if c < 2:
                a(f"s_waitcnt vmcnt({6 - 6*c})")
            if c in (4, 8):
                store_group((c >> 2) - 1)
                self.stamp(6 + (c >> 3))
            if c == 11:
                self.flush(3, acc)
                a("s_nop 7")
                store_group(2)
                a("s_branch L_pj_end")
            a(f"L_o{c}_next:")
        self.stamp(4)
        if self.probes:
            a(f"s_add_u32 s{sSLOT}, s{sSLOT}, 3")
        a("s_barrier\ns_barrier")
        a(f"s_barrier\ns_barrier\ns_mov_b32 s{sOBUF}, s{sRB+1}")
        self.call("F_wo")
        a(f"s_barrier\ns_barrier\ns_mov_b32 s{sOBUF}, s{sRB+2}")
        self.call("F_wo")
        a(f"""s_lshl_b32 s{sT0}, s{sTY}, 4
        s_add_u32 s{sT0}, s{sT0}, s{sB}
        s_lshl_b32 s{sT0}, s{sT0}, 3
        s_add_u32 s{sT0}, s{sT0}, s{sHG}
        s_mul_i32 s{sM}, s{sT0}, {PART}
        s_add_u32 s{sM}, s{sM}, s{sOLW}
        v_lshlrev_b32 v{vST}, 4, v0
        s_mov_b32 s{sMODE}, 1""")
        self.stamp(5)
        a("s_branch L_o\nL_pj_end:")
        self.probe_dump()
        if self.stamps:
            self.stamp(8)
            a("s_waitcnt vmcnt(0)")
            self.stamp(9)
            a(f"""s_cmp_lg_u32 s{sLW}, 0
            s_cbranch_scc1 L_end
            s_lshl_b32 s{sT0}, s2, 7
            s_add_u32 s{sT0}, s{sT0}, {STAMP_OFF}
            v_mov_b32 v3, 0
            s_mov_b64 exec, 1""")
            for j in range(self.nst):
                a(f"v_mov_b32 v4, s{sSTAMP+2*j}\nv_mov_b32 v5, s{sSTAMP+2*j+1}\nbuffer_store_dwordx2 v[4:5], v3, s[{sWS}:{sWS+3}], s{sT0} offen offset:{8*j}")
        a("s_endpgm")

    def at(self):
        a = self.a
        a(f"s_mov_b32 s{sXN}, 0")
        for n in range(4):
            self.call("F_x")
        for n in range(4, 9):
            a(f"s_lshl_b32 s{sT0}, s{sXCH}, 7\ns_add_u32 s{sT0}, s{sT0}, s{sXBASE}")
            self.x_adv()
            for i in range(2):
                a(f"buffer_load_dwordx4 {vr(vO + (n-4)*8 + 4*i, 4)}, v{vXVO+i}, s[{sX}:{sX+3}], s{sT0} offen offset:{1024*i}")
        self.early(2)
        self.late_common()
        self.early(3)
        a(f"s_mov_b32 s{sTHR}, 0\ns_mov_b32 s{sOCI}, 15\ns_add_u32 s{sOBASE}, s{sOBASE}, 294912")
        issued = ["x"] * 18

        def prefill():
            l = self.lab("pf")
            self.call("F_kv")
            a(f"s_cmp_eq_u32 s{sTY}, 1\ns_cbranch_scc1 {l}")
            self.call("F_kv")
            a(f"{l}:")
            issued.extend(["kv"] * 8)
        for p in self.prefill:
            if p < 0:
                prefill()
        a(f"""s_lshr_b32 s{sT0}, s{sLW}, 1
        s_mul_i32 s{sT0}, s{sT0}, s{sTY}
        s_lshl_b32 s{sT0}, s{sT0}, 13
        v_and_b32 v1, 31, v0
        v_lshrrev_b32 v6, 5, v0
        v_xor_b32 v7, v6, v3
        v_lshlrev_b32 v7, 4, v7
        v_lshl_add_u32 v7, v1, 8, v7
        v_add_u32 v{vKA}, s{sT0}, v7""")
        for s in range(1, 8):
            a(f"v_xor_b32 v{vKA+s}, {32*s}, v{vKA}")
        a(f"""s_lshr_b32 s{sT1}, s{sBUFSZ}, 1
        s_add_u32 s{sT0}, s{sT0}, s{sT1}
        v_lshrrev_b32 v1, 2, v3
        v_lshl_add_u32 v7, v6, 2, v1
        v_lshlrev_b32 v7, 8, v7
        v_lshl_add_u32 v7, v1, 6, v7
        v_and_b32 v1, 1, v2
        v_lshl_add_u32 v7, v1, 5, v7
        v_and_b32 v1, 3, v0
        v_lshl_add_u32 v7, v1, 3, v7
        v_add_u32 v{vVA}, s{sT0}, v7""")
        for dt in range(1, 4):
            a(f"v_xor_b32 v{vVA+dt}, {64*dt}, v{vVA}")
        a(f"""s_lshl_b32 s{sT0}, s{sLW}, 11
        s_add_u32 s{sT0}, s{sT0}, {XR}
        v_lshl_add_u32 v{vT}, v0, 4, s{sT0}
        s_mov_b32 s{sRPOS}, 0
        s_mov_b32 s{sSTAGE}, 0
        s_mov_b32 s{sQBUF}, {R2}""")
        after = lambda k: len(issued) - k
        self.early(4)
        for n in range(9):
            if n <= 3:
                a(f"s_waitcnt vmcnt({after(2*n+2)})")
            if n == 0:
                self.early(5)
            a("s_barrier")
            self.probe(0, True)
            if 1 <= n <= 5:
                a(f"s_waitcnt vmcnt({after(2*(n+3)+2)})")
                for i in range(2):
                    a(f"ds_write_b128 v{vT}, {vr(vO + (n-1)*8 + 4*i, 4)} offset:{((n+3)&3)*8192 + 1024*i}")
            if n >= 6:
                self.call("F_x")
                issued.extend(["x"] * 2)
            if n in self.prefill:
                for _ in range(self.prefill.count(n)):
                    prefill()
            a("s_waitcnt lgkmcnt(0)")
        first_kv = issued.index("kv") + 8
        x9 = [i for i, k in enumerate(issued) if k == "x"][19] + 1
        assert issued.count("kv") == 16
        a(f"s_waitcnt vmcnt({after(max(first_kv, x9))})")
        a(f"s_mov_b32 s{sTHR}, 1\nL_stage:")
        for i in range(64):
            a(f"v_mov_b32 v{vO+i}, 0")
        for i in range(16):
            a(f"v_mov_b32 v{vNM+i}, 0")
        a(f"""v_mov_b32 v{vL0}, 0
        v_mov_b32 v{vL1}, 0
        s_mov_b32 s{sTH}, 0xff7fffff
        s_mov_b32 s{sFLOOR}, 0xff7fffff
        s_lshr_b32 s{sT0}, s{sLW}, 1
        s_lshl_b32 s{sT0}, s{sT0}, 14
        s_and_b32 s{sT1}, s{sLW}, 1
        s_lshl_b32 s{sT1}, s{sT1}, 12
        s_add_u32 s{sT0}, s{sT0}, s{sT1}
        s_add_u32 s{sT0}, s{sT0}, s{sQBUF}
        v_and_b32 v1, 31, v0
        v_bfe_u32 v6, v0, 1, 3
        v_lshrrev_b32 v7, 5, v0
        v_xor_b32 v6, v6, v7
        v_lshlrev_b32 v6, 4, v6
        v_lshl_add_u32 v6, v1, 7, v6
        v_add_u32 v{vT}, s{sT0}, v6""")
        for s in range(1, 4):
            a(f"v_xor_b32 v{vT+s}, {32*s}, v{vT}")
        a(f"s_mov_b32 s{sN}, 0\nL_tile:\ns_barrier")
        self.probe(0, True)
        a(f"s_cmp_lg_u32 s{sN}, 0\ns_cbranch_scc1 L_tile_k")
        for s in range(8):
            a(f"ds_read_b128 {vr(vQ+4*s, 4)}, v{vT+(s&3)} offset:{8192*(s>>2)}")
        a("s_waitcnt lgkmcnt(0)\nL_tile_k:")
        lg = Lg(a)
        for s in range(8):
            lg.issue(f"ds_read_b128 {vr(vKF+4*s, 4)}, v{vKA+s}", ("K", s))
        vreads = [(f"ds_read_b64_tr_b16 {vr(vVF + (u*4+dt)*4 + 2*j, 2)}, v{vVA+dt} offset:{(16*u+8*j)*256}", ("V", u, dt, j))
                  for u in range(2) for dt in range(4) for j in range(2)]
        for s in range(8):
            lg.wait(("K", s))
            c = vr(vNM, 16) if s == 0 else vr(vS, 16)
            a(f"v_mfma_f32_32x32x16_bf16 {vr(vS,16)}, {vr(vKF+4*s,4)}, {vr(vQ+4*s,4)}, {c}")
            for _ in range(2):
                if len(lg.q) < 15:
                    lg.issue(*vreads.pop(0))
        if self.probes:
            lg.drain()
        self.probe(1)
        a("s_barrier")
        self.probe(2)
        for t, tag in vreads:
            lg.issue(t, tag)
        a(f"""s_add_u32 s{sRPOS}, s{sRPOS}, s{sBUFSZ}
        s_cmp_ge_u32 s{sRPOS}, 98304
        s_cselect_b32 s{sT0}, 98304, 0
        s_sub_u32 s{sRPOS}, s{sRPOS}, s{sT0}
        s_sub_u32 s{sT0}, s{sBUFSZ}, s{sT0}""")
        for i in range(12):
            a(f"v_add_u32 v{vKA+i}, s{sT0}, v{vKA+i}")
        t0, t1 = vT, vT + 1
        a(f"v_max3_f32 v{t0}, v{vS}, v{vS+1}, v{vS+2}\nv_max3_f32 v{t1}, v{vS+3}, v{vS+4}, v{vS+5}")
        for i in range(6, 14, 4):
            a(f"v_max3_f32 v{t0}, v{t0}, v{vS+i}, v{vS+i+1}\nv_max3_f32 v{t1}, v{t1}, v{vS+i+2}, v{vS+i+3}")
        a(f"""v_max3_f32 v{t0}, v{t0}, v{vS+14}, v{vS+15}
        v_max_f32 v{t0}, v{t0}, v{t1}
        v_cmp_lt_f32 vcc, s{sTH}, v{t0}
        s_cbranch_vccnz L_rescale
        L_tile_exp:""")

        def expo(u):
            o = vS + 8*u
            l = [f"v_exp_f32 v{o+i}, v{o+i}" for i in range(8)]
            fin = []
            for i in range(4):
                fin += [f"v_add_f32 v{vL0}, v{vL0}, v{o+2*i}", f"v_add_f32 v{vL1}, v{vL1}, v{o+2*i+1}",
                        f"v_cvt_pk_bf16_f32 v{vP+4*u+i}, v{o+2*i}, v{o+2*i+1}"]
            return l, fin
        pv = lambda u, dt: f"v_mfma_f32_32x32x16_bf16 {vr(vO+16*dt,16)}, {vr(vVF+(u*4+dt)*4,4)}, {vr(vP+4*u,4)}, {vr(vO+16*dt,16)}"
        if self.probes:
            lg.drain()
        self.probe(6)
        e0, f0 = expo(0)
        e1, f1 = expo(1)
        for t in e0: a(t)
        for t in [x for x in f0 if "cvt" in x]: a(t)
        rest = [x for x in f0 if "cvt" not in x]
        a(rest.pop(0)); a(rest.pop(0))
        seq = e1[:4] + rest[:2] + e1[4:] + rest[2:] + [x for x in f1 if "cvt" in x]
        per = [5, 5, 4, 4]
        for dt in range(4):
            lg.wait(("V", 0, dt, 0), ("V", 0, dt, 1))
            a(pv(0, dt))
            for _ in range(per[dt]):
                a(seq.pop(0))
        assert not seq
        adds = [x for x in f1 if "cvt" not in x]
        a(adds.pop(0)); a(adds.pop(0))
        for dt in range(4):
            lg.wait(("V", 1, dt, 0), ("V", 1, dt, 1))
            a(pv(1, dt))
            for _ in range(2):
                if adds: a(adds.pop(0))
        self.probe(3)
        self.call("F_kv")
        self.probe(4)
        self.kvwait()
        self.probe(5)
        a(f"""s_add_u32 s{sN}, s{sN}, 1
        s_cmp_lt_u32 s{sN}, 16
        s_cbranch_scc1 L_tile""")
        a(f"""v_add_f32 v{vL0}, v{vL0}, v{vL1}
        s_lshr_b32 s{sT0}, s{sLW}, 1
        s_lshl_b32 s{sT0}, s{sT0}, 14
        v_mov_b32 v{vL1}, v{vL0}
        s_and_b32 s{sT1}, s{sLW}, 1
        s_lshl_b32 s{sT1}, s{sT1}, 12
        v_permlane32_swap_b32 v{vL0}, v{vL1}
        s_add_u32 s{sT0}, s{sT0}, s{sT1}
        s_add_u32 s{sT0}, s{sT0}, {XR}
        v_add_f32 v{vL0}, v{vL0}, v{vL1}
        v_and_b32 v1, 31, v0
        v_rcp_f32 v{vL0}, v{vL0}
        v_bfe_u32 v6, v0, 1, 3
        v_lshlrev_b32 v6, 4, v6
        v_lshl_add_u32 v6, v1, 7, v6
        v_lshrrev_b32 v7, 5, v0
        v_lshl_add_u32 v6, v7, 3, v6
        v_add_u32 v6, s{sT0}, v6
        v_mov_b32 v{vT+2}, v{vL0}""")
        for dt in range(4):
            for i in range(4):
                c = vO + 16*dt + 4*i
                a(f"""v_pk_mul_f32 {vr(c,2)}, {vr(c,2)}, {vr(vT+2,2)} op_sel_hi:[1,0]
                v_pk_mul_f32 {vr(c+2,2)}, {vr(c+2,2)}, {vr(vT+2,2)} op_sel_hi:[1,0]
                v_xor_b32 v1, {16*(4*(dt&1)+i)}, v6
                v_cvt_pk_bf16_f32 v{c}, v{c}, v{c+1}
                v_cvt_pk_bf16_f32 v{c+1}, v{c+2}, v{c+3}
                ds_write_b64 v1, {vr(c,2)} offset:{8192*(dt>>1)}""")
        a(f"""s_waitcnt lgkmcnt(0)
        s_mov_b32 s{sQBUF}, {WR}
        s_add_u32 s{sSTAGE}, s{sSTAGE}, 1
        s_cmp_lt_u32 s{sSTAGE}, 2
        s_cbranch_scc1 L_stage""")
        order = [3, 0, 1, 2]
        for tau in range(12):
            a("s_barrier")
            self.probe(0, True)
            if tau + 3 <= 11:
                a(f"s_mov_b32 s{sOBUF}, s{sRB+order[tau&3]}")
                self.call("F_wo")
            if tau >= 2 and tau <= 10:
                self.probe(4)
                a(f"s_waitcnt vmcnt({6*min(2, 10-tau)})")
                self.probe(5)
        self.probe_dump()
        a("s_endpgm")
        d, al = vT, vT + 2
        a(f"""L_rescale:
        v_mov_b32 v{t1}, v{t0}
        s_nop 1
        v_permlane32_swap_b32 v{t0}, v{t1}
        v_max3_f32 v{d}, v{t0}, v{t1}, s{sFLOOR}
        v_max_f32 v{al}, 0, v{d}
        v_exp_f32 v{al}, -v{al}
        s_mov_b32 s{sTH}, 0x41000000
        s_mov_b32 s{sFLOOR}, 0""")
        for i in range(16):
            a(f"v_sub_f32 v{vS+i}, v{vS+i}, v{d}\nv_sub_f32 v{vNM+i}, v{vNM+i}, v{d}")
        a(f"v_mul_f32 v{vL0}, v{vL0}, v{al}\nv_mul_f32 v{vL1}, v{vL1}, v{al}")
        for i in range(0, 64, 2):
            a(f"v_pk_mul_f32 {vr(vO+i,2)}, {vr(vO+i,2)}, {vr(al,2)} op_sel_hi:[1,0]")
        a("s_branch L_tile_exp")

    def main(self):
        a = self.a
        self.prologue()
        a(f"s_cmp_ge_u32 s{sWAVE}, 4\ns_cbranch_scc1 L_pj")
        self.at()
        self.pj()
        self.subs()
        a("L_end:\ns_endpgm")
        return a.text()


def reduce_kernel():
    a = Asm()
    a(f"""s_cmp_ge_u32 s2, 576
    s_cbranch_scc1 R_end
    s_load_dwordx2 s[4:5], s[0:1], 96
    s_load_dwordx2 s[6:7], s[0:1], 80
    s_mul_i32 s16, s2, 3641
    s_lshr_b32 s16, s16, 16
    s_mul_i32 s17, s16, 18
    s_sub_u32 s17, s2, s17
    v_lshrrev_b32 v1, 6, v0
    v_and_b32 v2, 63, v0
    v_readfirstlane_b32 s18, v1
    s_lshl_b32 s17, s17, 2
    s_add_u32 s17, s17, s18
    s_mul_i32 s19, s16, {8*PART}
    s_lshl_b32 s20, s17, 10
    s_add_u32 s19, s19, s20
    v_lshlrev_b32 v3, 4, v2
    s_waitcnt lgkmcnt(0)""")
    srd(a, 8, 4, SIZE['ws']); srd(a, 12, 6, SIZE['out'])
    for h in range(8):
        a(f"buffer_load_dwordx4 {vr(8+4*h,4)}, v3, s[8:11], s19 offen\ns_add_u32 s19, s19, {PART}")
    a(f"""s_mul_i32 s20, s17, 43
    s_lshr_b32 s20, s20, 8
    s_mul_i32 s21, s20, 6
    s_sub_u32 s21, s17, s21
    s_mul_i32 s20, s20, 96
    s_lshr_b32 s22, s21, 1
    s_lshl_b32 s22, s22, 5
    s_add_u32 s20, s20, s22
    s_and_b32 s21, s21, 1
    s_mul_i32 s21, s21, {32*2304}
    s_add_u32 s20, s20, s21
    s_lshr_b32 s21, s16, 4
    s_mul_i32 s21, s21, 1152
    s_add_u32 s20, s20, s21
    s_and_b32 s21, s16, 15
    s_mul_i32 s21, s21, {64*2304}
    s_add_u32 s20, s20, s21
    s_add_u32 s21, s20, {16*2304}
    v_and_b32 v4, 15, v2
    v_mul_u32_u24 v4, 2304, v4
    v_lshrrev_b32 v5, 4, v2
    v_lshl_add_u32 v4, v5, 3, v4""")
    for h in range(8):
        a(f"s_waitcnt vmcnt({7-h})")
        for i in range(4):
            r = 8 + 4*h + i
            if h == 0:
                a(f"v_lshlrev_b32 v{40+2*i}, 16, v{r}\nv_and_b32 v{41+2*i}, 0xffff0000, v{r}")
            else:
                a(f"""v_lshlrev_b32 v6, 16, v{r}
                v_and_b32 v7, 0xffff0000, v{r}
                v_add_f32 v{40+2*i}, v{40+2*i}, v6
                v_add_f32 v{41+2*i}, v{41+2*i}, v7""")
    for i in range(4):
        a(f"v_cvt_pk_bf16_f32 v{8+i}, v{40+2*i}, v{41+2*i}")
    a("""buffer_store_dwordx2 v[8:9], v4, s[12:15], s20 offen
    buffer_store_dwordx2 v[10:11], v4, s[12:15], s21 offen
    R_end:
    s_endpgm""")
    return a.text()


def build(extra=0, **kw):
    g = Gen(**kw)
    return multi([
        dict(label="attn_main_kernel", body=g.main(), grid=256, block=512, lds=LDS_BYTES, vgpr=256, accum=256, sgpr=102),
        dict(label="attn_reduce_kernel", body=reduce_kernel(), grid=576, block=256, lds=0, vgpr=48, accum=48, sgpr=32),
    ] + [dict(label="noop_kernel", body="    s_endpgm\n", grid=256, block=64, lds=0, vgpr=8, accum=8, sgpr=16)] * extra)


if __name__ == "__main__":
    import argparse
    ap = argparse.ArgumentParser()
    ap.add_argument("out")
    ap.add_argument("--stamps", action="store_true")
    ap.add_argument("--probes", action="store_true")
    ap.add_argument("--extra", type=int, default=0, help="calibration only: trailing empty launches")
    ap.add_argument("--kvflag", default=" nt")
    ap.add_argument("--thr", type=int, default=63)
    ap.add_argument("--prefill", default="-1,-1")
    x = ap.parse_args()
    open(x.out, "w").write(build(extra=x.extra, kvflag=x.kvflag, stamps=x.stamps, probes=x.probes, thr=x.thr, prefill=tuple(int(v) for v in x.prefill.split(","))))
```

```python
import sys, struct
sys.path.insert(0, "tools")
from asmlib import *

KERNEL = NAME + "_kernel"
R0, R1, R2, WR, XR = 0, 32768, 65536, 98304, 131072
SYNC = WR + 24576
LDS_BYTES = 163840
PART = 73728
FLAG_OFF = 32 << 20
PROBE_OFF = 241 << 20
QSCALE = 1.4426950408889634 / 128 ** 0.5
SPIN = 1 << 16


def fbits(x):
    return "0x%08x" % struct.unpack("<I", struct.pack("<f", x))[0]


sWAVE, sLW, sHG, sTY, sB = 3, 4, 5, 6, 7
sK, sV, sX, sWQ, sWO, sWS = 8, 12, 16, 20, 24, 28
sKVOFF, sKVM0, sKVN = 32, 33, 34
sWCOL, sWCH, sWN = 35, 36, 37
sXBASE, sXCH, sXN = 38, 39, 40
sOCI, sOBASE, sROT = 41, 42, 43
sN, sM = 44, 45
sT0, sT1, sT2 = 46, 47, 48
sBUFSZ, sRINGEND, sWBUF, sOLW, sOBUF, sTHR, sKVCNT = 49, 50, 51, 52, 53, 54, 55
sTH, sFLOOR, sRPOS, sSTAGE = 56, 57, 58, 59
sRB = 60
sRET = 64
sFIRST, sQBUF, sSLOT = 66, 67, 68
sC8K = 67
sWB = 69
sBV, sPT = 72, 76
sOUTP, sDBGP = 80, 82
sTN, sLAST, sPADDR, sTBASE = 84, 85, 86, 87
sFADDR, sSPIN, sPROG = 88, 89, 90

vKVO, vVVO, vXVO, vOVO, vWVO = 8, 12, 13, 15, 21
vWA, vWA0, vQW = 23, 27, 28
vOA0, vOA, vST = 23, 26, 29
vXA0, vXA, vZ, vL7 = 30, 32, 34, 35
vFA, vFB, vACC = 36, 72, 104
vPR, vDUM = 4, 5
vKA, vVA, vL0, vL1, vT = 23, 31, 35, 36, 40
vP, vS, vNM, vQ, vKF, vVF, vO, vH = 44, 52, 68, 84, 116, 148, 180, 244


def vr(i, n):
    return f"v[{i}:{i+n-1}]"


def sr(i, n=4):
    return f"s[{i}:{i+n-1}]"


class Lg:
    def __init__(self, a):
        self.a, self.q = a, []
    def issue(self, text, tag):
        if len(self.q) == 15:
            self.wait(self.q[0])
        self.a(text)
        self.q.append(tag)
    def wait(self, *tags):
        idx = max((i for i, t in enumerate(self.q) if t in tags), default=-1)
        if idx < 0:
            return
        self.a(f"s_waitcnt lgkmcnt({len(self.q) - idx - 1})")
        self.q = self.q[idx + 1:]
    def drain(self):
        self.a("s_waitcnt lgkmcnt(0)")
        self.q = []


DEFAULTS = dict(stamps=0, probes=0, vmprobe=2, thr=63, prefill=8, store0=9, store1=10, ipf=1, touch=1, xtouch=1,
                prio=10, gate=0, thrmask=0xffffffff, help=0, lead0=3, lead1=6, kvnt=1, pace=99)


class Gen:
    def __init__(self, **kw):
        self.a = Asm()
        self.o = dict(DEFAULTS)
        assert set(kw) <= set(DEFAULTS), kw
        self.o.update(kw)
        for k, v in self.o.items():
            setattr(self, k, v)
        self.kvflag = " nt" if self.kvnt else ""
        self.follow = self.help or self.pace < 99
        self.NA = 4 + bool(self.help) + bool(self.follow)
        self.uid = 0

    def lab(self, s):
        self.uid += 1
        return f"L_{s}{self.uid}"

    def stamp(self, k):
        if self.stamps:
            self.a(f"s_memrealtime s[98:99]\ns_waitcnt lgkmcnt(0)\nv_writelane_b32 v255, s98, {k}")

    def stamp_dump(self, role):
        if self.stamps:
            l = self.lab("sd")
            self.a(f"""s_cmp_lg_u32 s{sLW}, 0
            s_cbranch_scc1 {l}
            s_lshl_b32 s{sT0}, s2, 8
            s_add_u32 s{sT0}, s{sT0}, {STAMP_OFF + 128*role}
            v_lshlrev_b32 v1, 2, v0
            s_mov_b64 exec, 0xffffffff
            buffer_store_dword v255, v1, {sr(sWS)}, s{sT0} offen
            s_mov_b64 exec, -1
            {l}:""")

    def probe(self, k, first=False):
        if self.probes:
            if first:
                self.a(f"s_add_u32 s{sSLOT}, s{sSLOT}, 1")
            self.a(f"s_memtime s[98:99]\ns_getreg_b32 s100, hwreg(HW_REG_IB_STS)\ns_waitcnt lgkmcnt(0)\ns_mov_b32 m0, s{sSLOT}\nv_writelane_b32 v{248+k}, s98, m0")
            if k == self.vmprobe:
                self.a("v_writelane_b32 v251, s100, m0")

    def early(self, lane):
        if self.probes:
            self.a(f"s_memtime s[98:99]\ns_waitcnt lgkmcnt(0)\nv_writelane_b32 v255, s98, {lane}")

    def probe_dump(self):
        if self.probes:
            l = self.lab("pd")
            self.a(f"""s_cmp_lg_u32 s{sLW}, 0
            s_cbranch_scc1 {l}
            s_lshl_b32 s{sT0}, s2, 1
            s_lshr_b32 s{sT1}, s{sWAVE}, 2
            s_add_u32 s{sT0}, s{sT0}, s{sT1}
            s_lshl_b32 s{sT0}, s{sT0}, 11
            s_add_u32 s{sT0}, s{sT0}, {PROBE_OFF}
            v_lshlrev_b32 v1, 2, v0""")
            for k in range(8):
                self.a(f"buffer_store_dword v{248+k}, v1, {sr(sWS)}, s{sT0} offen offset:{256*k}")
            self.a(f"{l}:")

    def prio_set(self, role):
        for ty in (0, 1):
            if self.prio >> (2*ty + role) & 1:
                l = self.lab("pr")
                self.a(f"s_cmp_lg_u32 s{sTY}, {ty}\ns_cbranch_scc1 {l}\ns_setprio 1\n{l}:")

    def call(self, name):
        self.a(f"s_call_b64 {sr(sRET, 2)}, {name}")

    def ret(self):
        self.a(f"s_setpc_b64 {sr(sRET, 2)}")

    def spread(self, base, fill, start=0):
        n, m = len(base) - start, len(fill)
        j = 0
        for k, t in enumerate(base):
            while k >= start and j < m and j * n <= (k - start) * m:
                self.a(fill[j]); j += 1
            if callable(t): t()
            else: self.a(t)
        for t in fill[j:]:
            self.a(t)

    def other_srd(self, dst, karg_off, size):
        self.a(f"""s_load_dwordx2 {sr(dst, 2)}, s[0:1], {karg_off}
        s_waitcnt lgkmcnt(0)
        s_and_b32 s{dst+1}, s{dst+1}, 0xffff
        s_mov_b32 s{dst+2}, {size}
        s_mov_b32 s{dst+3}, 0x20000""")

    def spin(self, load, vdst, done):
        l, e = self.lab("sp"), self.lab("se")
        self.a(f"""s_mov_b32 s{sSPIN}, {SPIN}
        {l}:
        {load}
        s_waitcnt vmcnt(0) lgkmcnt(0)
        {done}
        s_cbranch_scc1 {e}
        s_sleep 1
        s_sub_u32 s{sSPIN}, s{sSPIN}, 1
        s_cmp_lg_u32 s{sSPIN}, 0
        s_cbranch_scc1 {l}
        {e}:""")

    def wait_init(self, vz, vd):
        srd(self.a, sPT, sDBGP, 256)
        self.a(f"s_lshl_b32 s{sT2}, s{sB}, 2")
        self.spin(f"buffer_load_dword v{vd}, v{vz}, {sr(sPT)}, s{sT2} offen sc1", vd,
                  f"v_readfirstlane_b32 s{sT1}, v{vd}\ns_cmp_ge_u32 s{sT1}, 16")

    def prologue(self):
        a = self.a
        a("s_cmp_ge_u32 s2, 256\ns_cbranch_scc1 L_end")
        if self.probes or self.stamps:
            a("s_memtime s[96:97]" if self.probes else "s_memrealtime s[96:97]")
        a(f"""s_load_dwordx2 s[68:69], s[0:1], 96
        s_load_dwordx4 {sr(sOUTP)}, s[0:1], 80
        s_and_b32 s{sHG}, s2, 7
        s_lshr_b32 s{sTY}, s2, 3
        s_and_b32 s{sTY}, s{sTY}, 1
        s_lshr_b32 s{sB}, s2, 4
        s_mul_i32 s{sT0}, s{sTY}, 40
        s_add_u32 s0, s0, s{sT0}
        s_addc_u32 s1, s1, 0
        s_load_dwordx8 s[56:63], s[0:1], 0
        s_load_dwordx2 s[70:71], s[0:1], 32""")
        if self.ipf:
            a(f"""s_getpc_b64 {sr(sT0, 2)}
            L_pc:
            s_sub_u32 s{sT0}, s{sT0}, L_pc-{KERNEL}
            s_subb_u32 s{sT0+1}, s{sT0+1}, 0
            s_and_b32 s{sT2}, s2, 0xf8
            v_lshrrev_b32 v1, 6, v0
            v_add_lshl_u32 v6, v1, s{sT2}, 7
            v_min_u32 v6, L_end-{KERNEL}, v6
            v_mov_b32 v7, s{sT0+1}
            v_add_co_u32 v6, vcc, s{sT0}, v6
            s_nop 1
            v_addc_co_u32 v7, vcc, 0, v7, vcc
            global_load_dword v{vFA+32}, v[6:7], off""")
        a(f"""v_lshrrev_b32 v1, 6, v0
        v_and_b32 v0, 63, v0
        v_readfirstlane_b32 s{sWAVE}, v1
        v_lshrrev_b32 v2, 4, v0
        v_and_b32 v3, 15, v0
        s_and_b32 s{sLW}, s{sWAVE}, 3
        v_lshrrev_b32 v4, 3, v0
        v_and_b32 v5, 7, v0
        v_mul_u32_u24 v7, 1152, v4""")
        for n in range(2):
            a(f"""v_add_u32 v6, {4*n}, v2
            v_xor_b32 v6, v6, v5
            v_lshl_add_u32 v6, v6, 4, v7
            v_add_u32 v{vXVO+n}, {n*(8*1152-1024)}, v6""")
        a(f"""v_and_b32 v1, 1, v2
        v_lshlrev_b32 v1, 1, v1
        v_xor_b32 v1, v1, v5
        v_lshlrev_b32 v1, 4, v1
        v_lshl_add_u32 v{vWVO}, v4, 13, v1
        v_xor_b32 v{vWVO+1}, 64, v{vWVO}
        s_lshl_b32 s{sWCOL}, s{sHG}, 10
        s_lshl_b32 s{sT0}, s{sLW}, 7
        s_add_u32 s{sWCOL}, s{sWCOL}, s{sT0}
        s_mov_b32 s{sWN}, 0
        s_sub_u32 s{sT0}, s{sB}, 9
        s_cmp_ge_u32 s{sB}, 9
        s_cselect_b32 s{sXCH}, s{sT0}, s{sB}
        s_mov_b32 s{sWCH}, s{sXCH}
        s_mul_i32 s{sXBASE}, s{sB}, 73728
        s_mul_i32 s{sT0}, s{sLW}, 18432
        s_add_u32 s{sXBASE}, s{sXBASE}, s{sT0}
        s_lshl_b32 s{sT0}, s{sB}, 3
        s_add_u32 s{sT0}, s{sT0}, s{sHG}
        s_lshl_b32 s{sPADDR}, s{sT0}, 7
        s_add_u32 s{sPADDR}, s{sPADDR}, {FLAG_OFF + 4096}
        s_lshl_b32 s{sFADDR}, s{sB}, 7
        s_add_u32 s{sFADDR}, s{sFADDR}, {FLAG_OFF}
        s_waitcnt lgkmcnt(0)""")
        srd(a, sX, 56, SIZE['A_x'])
        srd(a, sWQ, 62, SIZE['A_wq'])
        a(f"""s_mov_b32 s{sK}, s58
        s_and_b32 s{sK+1}, s59, 0xffff
        s_lshl_b32 s{sK+2}, {SIZE['A_k']}, s{sTY}
        s_mov_b32 s{sK+3}, 0x20000
        s_mov_b32 s{sV}, s60
        s_and_b32 s{sV+1}, s61, 0xffff
        s_mov_b32 s{sV+2}, s{sK+2}
        s_mov_b32 s{sV+3}, 0x20000""")
        srd(a, sWO, 70, SIZE['A_wo'])
        srd(a, sWS, 68, SIZE['ws'])
        srd(a, sBV, 60, 0)
        if self.probes or self.stamps:
            a(f"s_mov_b32 s{sSLOT}, -1")
            for k in range(8):
                a(f"v_mov_b32 v{248+k}, 0")
            a("v_writelane_b32 v255, s96, 0")
            self.early(1)

    def late_common(self):
        a = self.a
        a(f"""s_lshl_b32 s{sBUFSZ}, 16384, s{sTY}
        s_lshl_b32 s{sT0}, 2048, s{sTY}
        s_mul_i32 s{sKVM0}, s{sT0}, s{sLW}
        s_add_u32 s{sRINGEND}, s{sKVM0}, 98304
        s_lshl_b32 s{sT0}, s{sB}, 3
        s_add_u32 s{sT0}, s{sT0}, s{sHG}
        s_lshl_b32 s{sTBASE}, s{sT0}, 19
        s_add_u32 s{sT1}, s{sTY}, 18
        s_lshl_b32 s{sKVOFF}, s{sT0}, s{sT1}
        s_lshr_b32 s{sT0}, s{sLW}, 1
        s_lshl_b32 s{sT0}, s{sT0}, 17
        s_and_b32 s{sT1}, s{sLW}, 1
        s_lshl_b32 s{sT2}, s{sT1}, 12
        s_add_u32 s{sT0}, s{sT0}, s{sT2}
        s_add_u32 s{sTBASE}, s{sTBASE}, s{sT0}
        s_cmp_eq_u32 s{sTY}, 1
        s_cselect_b32 s{sT0}, s{sT0}, s{sKVM0}
        s_add_u32 s{sKVOFF}, s{sKVOFF}, s{sT0}
        s_lshl_b32 s{sT1}, s{sT1}, 3
        s_cmp_eq_u32 s{sTY}, 1
        s_cselect_b32 s{sT1}, 0, s{sT1}
        s_mov_b32 s{sKVN}, 0
        v_lshlrev_b32 v6, 8, v2
        v_add_u32 v7, s{sT1}, v2""")
        for n in range(4):
            a(f"""v_add_u32 v1, {4*n}, v7
            v_xor_b32 v1, v1, v3
            v_and_b32 v1, 15, v1
            v_lshl_add_u32 v{vKVO+n}, v1, 4, v6""")
        a(f"""v_lshlrev_b32 v1, 2, v2
        v_xor_b32 v1, v1, v3
        v_lshl_add_u32 v{vVVO}, v1, 4, v6""")

    def late_wo(self):
        a = self.a
        for n in range(6):
            a(f"""v_add_u32 v1, {64*n}, v0
            v_mul_u32_u24 v6, 2731, v1
            v_lshrrev_b32 v6, 16, v6
            v_mul_u32_u24 v7, 24, v6
            v_sub_u32 v1, v1, v7
            v_and_b32 v7, 6, v6
            v_xor_b32 v1, v1, v7
            v_lshlrev_b32 v1, 4, v1
            v_mul_u32_u24 v6, 1152, v6
            v_add_u32 v1, v1, v6
            v_subrev_u32 v{vOVO+n}, {1024*(n&3)}, v1""")
        a(f"""s_lshl_b32 s{sT0}, s{sHG}, 9
        s_lshl_b32 s{sT1}, s{sLW}, 4
        s_add_u32 s{sT0}, s{sT0}, s{sT1}
        s_mul_i32 s{sOBASE}, s{sT0}, 1152
        s_and_b32 s{sROT}, s{sB}, 3
        s_mul_i32 s{sOLW}, s{sLW}, 6144
        s_cmp_eq_u32 s{sTY}, 1
        s_mov_b32 s{sRB}, {WR}
        s_mov_b32 s{sRB+1}, {R2}
        s_cselect_b32 s{sRB+2}, {R0}, {R1}
        s_cselect_b32 s{sRB+3}, {R1}, {R0}""")

    def x_adv(self):
        self.a(f"""s_add_u32 s{sXN}, s{sXN}, 1
        s_add_u32 s{sXCH}, s{sXCH}, 1
        s_cmp_eq_u32 s{sXCH}, 9
        s_cselect_b32 s{sXCH}, 0, s{sXCH}""")

    def kv_items_b(self):
        f = self.kvflag
        items = []
        for n in range(8):
            t = ""
            if n == 0:
                t += f"s_mov_b32 m0, s{sKVM0}\ns_cmp_eq_u32 s{sKVN}, 15\n"
            if n == 4:
                t += f"s_add_u32 m0, s{sKVM0}, 16384\ns_add_u32 s{sKVM0}, s{sKVM0}, 32768\n"
            if n < 4:
                t += f"buffer_load_dwordx4 v{vKVO+n}, {sr(sK)}, s{sKVOFF} offen offset:{1024*n}{f} lds\n"
            else:
                t += f"buffer_load_dwordx4 v{vVVO}, {sr(sV)}, s{sKVOFF} offen offset:{1024*(n-4)}{f} lds\n"
            if n == 0:
                t += f"s_cselect_b32 s{sKVCNT}, 131072, 0\ns_add_u32 s{sKVCNT}, s{sKVCNT}, 8192\ns_add_u32 s{sKVN}, s{sKVN}, 1\n"
            if n == 7:
                t += f"""s_add_u32 s{sKVOFF}, s{sKVOFF}, s{sKVCNT}
                s_cmp_ge_u32 s{sKVM0}, s{sRINGEND}
                s_cselect_b32 s{sKVCNT}, 98304, 0
                s_sub_u32 s{sKVM0}, s{sKVM0}, s{sKVCNT}"""
            items.append(t)
        return items

    def wo_items(self):
        items = []
        for n in range(6):
            t = ""
            if n == 0:
                t += f"""s_add_u32 s{sT0}, s{sOCI}, s{sROT}
                s_and_b32 s{sT0}, s{sT0}, 3
                s_mul_i32 s{sT0}, s{sT0}, 73728
                s_add_u32 s{sT1}, s{sOBUF}, s{sOLW}
                s_mov_b32 m0, s{sT1}
                s_add_u32 s{sT0}, s{sT0}, s{sOBASE}\n"""
            if n == 4:
                t += f"s_add_u32 m0, s{sT1}, 4096\ns_add_u32 s{sOCI}, s{sOCI}, 1\n"
            t += f"buffer_load_dwordx4 v{vOVO+n}, {sr(sWO)}, s{sT0} offen offset:{1024*(n&3)} lds\n"
            if n == 5:
                t += f"""s_and_b32 s{sT0}, s{sOCI}, 3
                s_cselect_b32 s{sT0}, 0, 384
                s_add_u32 s{sOBASE}, s{sOBASE}, s{sT0}
                s_cmp_eq_u32 s{sOCI}, 12
                s_cselect_b32 s{sT0}, {294912-1152}, 0
                s_add_u32 s{sOBASE}, s{sOBASE}, s{sT0}"""
            items.append(t)
        return items

    def w_items(self):
        items = []
        for n in range(8):
            if n == 0:
                t = f"s_lshl_b32 s{sT0}, s{sWCH}, 19\ns_add_u32 s{sT0}, s{sT0}, s{sWCOL}\ns_mov_b32 m0, s{sWBUF}\ns_add_u32 s{sWCH}, s{sWCH}, 1\n"
            elif n == 4:
                t = f"s_add_u32 m0, s{sWBUF}, 4096\ns_add_u32 s{sT0}, s{sT0}, {65536+3072}\n"
            else:
                t = f"s_add_u32 s{sT0}, s{sT0}, {65536-1024}\n"
            t += f"buffer_load_dwordx4 v{vWVO+(n&1)}, {sr(sWQ)}, s{sT0} offen offset:{1024*(n&3)} lds\n"
            if n == 7:
                t += f"""s_cmp_eq_u32 s{sWCH}, 9
                s_cselect_b32 s{sWCH}, 0, s{sWCH}
                s_add_u32 s{sWN}, s{sWN}, 1
                s_cmp_eq_u32 s{sWN}, 9
                s_cselect_b32 s{sT1}, 512, 0
                s_add_u32 s{sWCOL}, s{sWCOL}, s{sT1}"""
            items.append(t)
        return items

    def subs(self):
        a = self.a
        f = self.kvflag
        a(f"""F_x:
        s_lshl_b32 s{sT0}, s{sXCH}, 7
        s_add_u32 s{sT0}, s{sT0}, s{sXBASE}
        s_and_b32 s{sT1}, s{sXN}, 3
        s_lshl_b32 s{sT1}, s{sT1}, 2
        s_add_u32 s{sT1}, s{sT1}, s{sLW}
        s_lshl_b32 s{sT1}, s{sT1}, 11
        s_add_u32 m0, s{sT1}, {XR}""")
        self.x_adv()
        for n in range(2):
            a(f"buffer_load_dwordx4 v{vXVO+n}, {sr(sX)}, s{sT0} offen offset:{1024*n} lds")
        self.ret()
        a("F_w:")
        for t in self.w_items():
            a(t)
        self.ret()
        a(f"""F_kv:
        s_cmp_eq_u32 s{sTY}, 0
        s_cbranch_scc1 F_kv_a""")
        for t in self.kv_items_b():
            a(t)
        a(f"s_mov_b32 s{sKVCNT}, 8")
        self.ret()
        a(f"""F_kv_a:
        s_mov_b32 s{sKVCNT}, 0
        s_cmp_ge_u32 s{sKVN}, 32
        s_cbranch_scc1 F_kv_ret""")
        if self.follow:
            a(f"""s_cmp_eq_u32 s{sTHR}, 0
            s_cbranch_scc1 F_kv_go
            s_waitcnt vmcnt(0)
            v_readfirstlane_b32 s{sPROG}, v{vPR}""")
            if self.pace < 99:
                check = f"s_add_u32 s{sT1}, s{sPROG}, {self.pace}\ns_cmp_ge_u32 s{sT1}, s{sKVN}"
                a(check + "\ns_cbranch_scc1 F_kv_go")
                self.spin(f"buffer_load_dword v{vPR}, v{vZ}, {sr(sWS)}, s{sPADDR} offen sc1", vPR,
                          f"v_readfirstlane_b32 s{sPROG}, v{vPR}\n" + check)
            a("F_kv_go:")
        a(f"""s_mov_b32 m0, s{sKVM0}
        s_mov_b32 s{sKVCNT}, 4""")
        if self.thr < 63:
            a(f"s_lshr_b32 s{sT1}, {self.thrmask}, s{sKVN}\ns_and_b32 s{sT1}, s{sT1}, s{sTHR}")
        for n in range(4):
            if self.thr < 63:
                l = self.lab("thr")
                a(f"s_cmp_eq_u32 s{sT1}, 0\ns_cbranch_scc1 {l}\ns_waitcnt vmcnt({self.thr-1})\n{l}:")
            if n == 2:
                a(f"s_add_u32 m0, s{sKVM0}, 8192\ns_add_u32 s{sKVN}, s{sKVN}, 1")
            if n < 2:
                a(f"buffer_load_dwordx4 v{vKVO+n}, {sr(sK)}, s{sKVOFF} offen offset:{1024*n}{f} lds")
            else:
                a(f"buffer_load_dwordx4 v{vVVO}, {sr(sV)}, s{sKVOFF} offen offset:{1024*(n-2)}{f} lds")
        a(f"""s_add_u32 s{sKVOFF}, s{sKVOFF}, 8192
        s_add_u32 s{sKVM0}, s{sKVM0}, 16384
        s_cmp_ge_u32 s{sKVM0}, s{sRINGEND}
        s_cselect_b32 s{sT0}, 98304, 0
        s_sub_u32 s{sKVM0}, s{sKVM0}, s{sT0}""")
        if self.follow:
            a(f"s_cmp_eq_u32 s{sTHR}, 0\ns_cbranch_scc1 F_kv_ret")
        if self.help:
            a(f"""s_add_u32 s{sT1}, s{sPROG}, {self.lead0}
            s_max_u32 s{sTN}, s{sTN}, s{sT1}
            s_add_u32 s{sT1}, s{sPROG}, {self.lead1}
            s_min_u32 s{sT1}, s{sT1}, 31
            s_cmp_le_u32 s{sTN}, s{sT1}
            s_cselect_b32 s{sLAST}, s{sTN}, s{sLAST}
            s_addc_u32 s{sTN}, s{sTN}, 0
            s_and_b32 s{sT0}, s{sLAST}, 15
            s_lshl_b32 s{sT0}, s{sT0}, 13
            s_lshr_b32 s{sT1}, s{sLAST}, 4
            s_lshl_b32 s{sT1}, s{sT1}, 18
            s_add_u32 s{sT0}, s{sT0}, s{sT1}
            s_add_u32 s{sT0}, s{sT0}, s{sTBASE}
            s_mov_b64 exec, {(1 << self.help) - 1}
            buffer_load_dword v{vDUM}, v{vL7}, {sr(sBV)}, s{sT0} offen offset:{4096 - 128*self.help}
            s_mov_b64 exec, -1""")
        if self.follow:
            a(f"buffer_load_dword v{vPR}, v{vZ}, {sr(sWS)}, s{sPADDR} offen sc1")
        a("F_kv_ret:")
        self.ret()
        a("F_wo:")
        for t in self.wo_items():
            a(t)
        self.ret()

    def kvwait(self):
        l = self.lab("kw")
        self.a(f"""s_waitcnt vmcnt(8)
        s_cmp_eq_u32 s{sKVCNT}, 8
        s_cbranch_scc1 {l}
        s_waitcnt vmcnt({self.NA})
        s_cmp_eq_u32 s{sKVCNT}, 4
        s_cbranch_scc1 {l}
        s_waitcnt vmcnt(0)
        {l}:""")

    def pretouch(self, what, dst):
        if not self.touch:
            return
        a = self.a
        l = self.lab("pt")
        a(f"s_cmp_eq_u32 s{sTY}, 1\ns_cbranch_scc1 {l}")
        self.other_srd(sPT, 72 if what == "wo" else 64, SIZE['B_wo'])
        a(f"s_lshl_b32 s{sT0}, s{sB}, 2\ns_add_u32 s{sT0}, s{sT0}, s{sLW}")
        own = sWO if what == "wo" else sWQ
        if what == "wo":
            a(f"""s_mul_i32 s{sT0}, s{sT0}, 9216
            s_mul_i32 s{sT1}, s{sHG}, 589824
            s_add_u32 s{sT0}, s{sT0}, s{sT1}
            buffer_load_dword v{dst}, v{vL7}, {sr(sPT)}, s{sT0} offen
            buffer_load_dword v{dst+1}, v{vL7}, {sr(own)}, s{sT0} offen
            s_mov_b64 exec, 255
            s_add_u32 s{sT0}, s{sT0}, 8192
            buffer_load_dword v{dst+2}, v{vL7}, {sr(sPT)}, s{sT0} offen
            buffer_load_dword v{dst+3}, v{vL7}, {sr(own)}, s{sT0} offen""")
        else:
            a(f"""s_mul_i32 s{sT0}, s{sT0}, {9*8192}
            s_lshl_b32 s{sT1}, s{sHG}, 10
            s_add_u32 s{sT0}, s{sT0}, s{sT1}
            v_lshrrev_b32 v1, 2, v0
            v_and_b32 v6, 3, v0
            v_lshlrev_b32 v6, 7, v6
            v_lshl_add_u32 v1, v1, 13, v6
            s_mov_b32 exec_hi, 15
            buffer_load_dword v{dst}, v1, {sr(sPT)}, s{sT0} offen offset:512
            buffer_load_dword v{dst+1}, v1, {sr(own)}, s{sT0} offen offset:512""")
        a(f"s_mov_b64 exec, -1\n{l}:")

    def rdA(self, reg, areg, mt, off0, off1, tag):
        return [(f"ds_read_b64_tr_b16 {vr(reg + 2*j, 2)}, v{areg+mt} offset:{o}", tag + (j,)) for j, o in enumerate((off0, off1))]

    def rdB(self, ks, qt):
        return (f"ds_read_b128 {vr(vFB + (ks*4+qt)*4, 4)}, v{vXA+ks} offset:{2048*qt}", ("B", ks, qt))

    def mfma(self, acc, mt, qt, areg, ks):
        c = vr(acc + (mt*4+qt)*4, 4)
        return f"v_mfma_f32_16x16x32_bf16 {c}, {vr(areg, 4)}, {vr(vFB + (ks*4+qt)*4, 4)}, {c}"

    def qA(self, ks, mt):
        return vFA + (ks*4 + mt)*4

    def q_rdA(self, ks, mt):
        return self.rdA(self.qA(ks, mt), vWA, mt, 32*ks*128, (32*ks+4)*128, ("A", ks, mt))

    def q_finalize(self, acc, pending):
        a = self.a
        a(f"s_mov_b32 s{sT2}, {fbits(QSCALE)}")
        mul, cvt, put = [], [], []
        for mt in range(4):
            for qt in range(4):
                c = acc + (mt*4+qt)*4
                mul.append("\n".join(f"v_mul_f32 v{c+r}, s{sT2}, v{c+r}" for r in range(4)))
                cvt.append(f"v_cvt_pk_bf16_f32 v{c}, v{c}, v{c+1}\nv_cvt_pk_bf16_f32 v{c+1}, v{c+2}, v{c+3}")
                put.append((f"v_xor_b32 v1, {32*mt}, v{vQW}\n" if qt == 0 else "") + f"ds_write_b64 v1, {vr(c,2)} offset:{2048*qt}")
        work = ["\n".join(([put[k-2]] if 2 <= k < 18 else []) + ([cvt[k-1]] if 1 <= k < 17 else []) + ([mul[k]] if k < 16 else [])) for k in range(18)]
        lead = len(pending) - 16 + 5
        for k, t in enumerate(pending):
            a(t)
            if k + 1 == lead:
                a("s_nop 3")
            if k + 1 >= lead:
                a(work.pop(0))
        for t in work:
            a(t)
        a("s_waitcnt lgkmcnt(0)")

    ORDER4 = [(mt, qt) for mt in range(4) for qt in range(4)]
    ORDER3 = [(mt, qt) for mt in range(3) for qt in range(4)]
    NEXTX = [f"s_add_u32 s{sN}, s{sN}, 1\ns_and_b32 s{sT0}, s{sN}, 3\ns_lshl_b32 s{sT0}, s{sT0}, 13",
             f"v_add_u32 v{vXA}, s{sT0}, v{vXA0}", f"v_add_u32 v{vXA+1}, s{sT0}, v{vXA0+1}"]

    def pj_first(self):
        a = self.a
        ACC0 = vACC
        a("L_pj:")
        self.prio_set(1)
        a(f"""v_mov_b32 v{vZ}, 0
        v_lshlrev_b32 v{vL7}, 7, v0
        s_cmp_lg_u32 s{sLW}, 0
        s_cbranch_scc1 L_pj_a
        s_lshl_b32 s{sT0}, s{sTY}, 11
        s_lshl_b32 s{sT1}, s{sHG}, 2
        s_add_u32 s{sT0}, s{sT0}, s{sT1}
        s_add_u32 s{sT0}, s{sT0}, s{sFADDR}
        s_cmp_eq_u32 s{sTY}, 1
        s_cselect_b32 s{sT1}, s{sPADDR}, s{sT0}
        s_mov_b64 exec, 1
        buffer_store_dword v{vZ}, v{vZ}, {sr(sWS)}, s{sT0} offen sc1
        buffer_store_dword v{vZ}, v{vZ}, {sr(sWS)}, s{sT1} offen sc1
        s_mov_b64 exec, -1
        L_pj_a:""")
        self.early(6)
        for i in list(range(vKVO, vXVO)) + list(range(vOVO, vWVO)):
            a(f"v_mov_b32 v{i}, 0")
        a(f"""s_lshl_b32 s{sT2}, s{sLW}, 13
        s_mov_b32 s{sWB}, {R1}
        s_mov_b32 s{sWB+1}, {R2}
        s_mov_b32 s{sWB+2}, {WR}
        v_lshrrev_b32 v1, 2, v3
        v_lshl_add_u32 v6, v2, 3, v1
        v_lshrrev_b32 v1, 1, v1
        v_and_b32 v7, 1, v2
        v_lshl_or_b32 v1, v7, 1, v1
        v_and_b32 v7, 3, v0
        v_lshlrev_b32 v7, 3, v7
        v_lshl_add_u32 v6, v6, 7, v7
        v_lshl_add_u32 v6, v1, 5, v6
        v_add_u32 v{vWA0}, s{sT2}, v6
        v_add_u32 v{vWA}, {WR}, v{vWA0}""")
        for mt in range(1, 4):
            a(f"v_xor_b32 v{vWA+mt}, {32*mt}, v{vWA}")
        a(f"""v_lshrrev_b32 v1, 1, v3
        v_xor_b32 v6, v1, v2
        v_lshlrev_b32 v6, 4, v6
        v_lshl_add_u32 v6, v3, 7, v6
        v_add_u32 v{vXA0}, {XR}, v6
        v_xor_b32 v{vXA0+1}, 64, v{vXA0}
        v_mov_b32 v{vXA}, v{vXA0}
        v_mov_b32 v{vXA+1}, v{vXA0+1}
        v_lshrrev_b32 v6, 1, v2
        v_xor_b32 v6, v6, v1
        v_lshlrev_b32 v6, 4, v6
        v_lshl_add_u32 v6, v3, 7, v6
        v_and_b32 v7, 1, v2
        v_lshl_add_u32 v6, v7, 3, v6
        v_add_u32 v6, s{sT2}, v6
        v_add_u32 v{vQW}, {R2}, v6""")
        for i in range(64):
            a(f"v_mov_b32 v{ACC0+i}, 0")
        for i in range(16):
            a(f"v_mov_b32 v{vFA+16+i}, 0\nv_mov_b32 v{vFB+16+i}, 0")
        self.early(4)
        srd(a, sPT, sDBGP, 256)
        a(f"""v_mov_b32 v1, 1
        s_lshl_b32 s{sT0}, s{sB}, 2
        s_mov_b32 s{sN}, 0
        s_waitcnt vmcnt(0)
        s_cmp_lg_u32 s{sLW}, 0
        s_cbranch_scc1 L_q0
        s_mov_b64 exec, 1
        buffer_atomic_add v1, v{vZ}, {sr(sPT)}, s{sT0} offen sc1
        s_mov_b64 exec, -1""")
        nextbuf = [f"v_add_u32 v{vWA}, s{sWB}, v{vWA0}\ns_mov_b32 s{sT0}, s{sWB}", f"v_xor_b32 v{vWA+1}, 32, v{vWA}\ns_mov_b32 s{sWB}, s{sWB+1}",
                   f"v_xor_b32 v{vWA+2}, 64, v{vWA}\ns_mov_b32 s{sWB+1}, s{sWB+2}", f"v_xor_b32 v{vWA+3}, 96, v{vWA}\ns_mov_b32 s{sWB+2}, s{sT0}"]
        a("L_q0:\ns_barrier")
        self.probe(0, True)
        lg = Lg(a)
        rd = lambda ks: [self.rdB(ks, 0)] + self.q_rdA(ks, 0) + [self.rdB(ks, q) for q in (1, 2, 3)] + sum((self.q_rdA(ks, m) for m in (1, 2, 3)), [])
        r0, r1 = rd(0), rd(1)
        for _ in range(2):
            lg.issue(*r0.pop(0))
        for mt, qt in self.ORDER4:
            a(self.mfma(ACC0, mt, qt, self.qA(1, mt), 1))
            if r0:
                lg.issue(*r0.pop(0))
        tail = nextbuf + self.NEXTX
        for k, (mt, qt) in enumerate(self.ORDER4):
            lg.wait(("A", 0, mt, 0), ("A", 0, mt, 1), ("B", 0, qt))
            a(self.mfma(ACC0, mt, qt, self.qA(0, mt), 0))
            for _ in range(2):
                if r1:
                    lg.issue(*r1.pop(0))
            if k >= 8 and tail:
                a(tail.pop(0))
            if k == 14:
                lg.drain()
                a(f"s_cmp_eq_u32 s{sN}, 1")
        self.probe(1)
        a(f"s_cbranch_scc1 L_q0_setup\ns_cmp_lt_u32 s{sN}, 9\ns_cbranch_scc1 L_q0")
        self.early(10)
        self.q_finalize(ACC0, [self.mfma(ACC0, mt, qt, self.qA(1, mt), 1) for mt, qt in self.ORDER4])
        self.early(12)
        a(f"v_xor_b32 v{vQW}, {R2 ^ WR}, v{vQW}")
        self.stamp(1)
        a("s_branch L_pj_rest")

    def pj_setup(self):
        a = self.a
        a("L_q0_setup:")
        self.late_common()
        self.late_wo()
        a(f"""s_cmp_eq_u32 s{sTY}, 1
        s_cselect_b32 s{sKVN}, 2, 4
        s_lshl_b32 s{sT0}, s{sKVN}, 13
        s_add_u32 s{sKVOFF}, s{sKVOFF}, s{sT0}
        s_add_u32 s{sKVM0}, s{sKVM0}, {R2}
        s_mov_b32 s{sTHR}, 1
        s_add_u32 s{sWCOL}, s{sWCOL}, 512
        s_mov_b32 s{sWN}, 10
        s_add_u32 s{sWCH}, s{sWCH}, 1
        s_cmp_eq_u32 s{sWCH}, 9
        s_cselect_b32 s{sWCH}, 0, s{sWCH}
        s_lshl_b32 s{sT2}, s{sLW}, 13
        s_add_u32 s{sWBUF}, s{sT2}, {WR}
        s_mov_b32 s{sXN}, 12
        s_add_u32 s{sXCH}, s{sXCH}, 3
        s_sub_u32 s{sT0}, s{sXCH}, 9
        s_cmp_ge_u32 s{sXCH}, 9
        s_cselect_b32 s{sXCH}, s{sT0}, s{sXCH}
        s_mov_b32 s{sOCI}, 0
        s_mov_b32 s{sOBUF}, {WR}
        s_mov_b32 s{sTN}, 0
        s_mov_b32 s{sLAST}, 2
        v_mov_b32 v{vPR}, 0""")
        for i in range(64):
            a(f"v_mov_b32 v{vACC+64+i}, 0")
        self.pretouch("wq", vFA + 33)
        a("s_branch L_q0")

    def stream_slot(self, ty, rdA, MT, acc, aset, loads, after):
        e = self.a
        e("s_barrier")
        self.probe(0, True)
        lg = Lg(e)
        for t, tag in rdA:
            lg.issue(t, tag)
        lg.drain()
        self.probe(1)
        e("s_barrier")
        self.probe(2)
        for ks in (0, 1):
            for q in range(4):
                lg.issue(*self.rdB(ks, q))
        if loads is None:
            return
        def mk(ks, mt, qt):
            def f():
                lg.wait(("B", ks, qt))
                e(self.mfma(acc, mt, qt, aset(ks, mt), ks))
            return f
        mm = [mk(ks, mt, qt) for ks in (0, 1) for mt in range(MT) for qt in range(4)]
        self.spread(mm, loads + (self.kv_items_b() if ty else []))
        self.probe(6)
        if not ty:
            self.call("F_kv")
        for t in after:
            e(t)

    def store_items(self, G):
        acc = vACC + 48 * G
        items = []
        for qd in range(6):
            c = acc + 8*qd
            t = "\n".join(f"v_cvt_pk_bf16_f32 v{c+i}, v{c+2*i}, v{c+2*i+1}" for i in range(4))
            t += f"\nbuffer_store_dwordx4 {vr(c,4)}, v{vST}, {sr(sWS)}, s{sM} offen offset:{1024*(qd&3)} sc1"
            if qd in (3, 5):
                t += f"\ns_add_u32 s{sM}, s{sM}, {4096 if qd == 3 else 24576-4096}"
            items.append(t)
        return items

    def pj_rest(self):
        a = self.a
        ACC1 = vACC + 64
        qrd = sum((self.q_rdA(ks, m) for ks in (0, 1) for m in range(4)), [])
        a(f"L_pj_rest:\ns_cmp_eq_u32 s{sTY}, 1\ns_cbranch_scc1 L_q1_1")
        if self.help:
            self.other_srd(sBV, 56, SIZE['B_v'])
        if self.follow:
            self.wait_init(vZ, vDUM)
        for ty in (0, 1):
            nk = 8 if ty else self.NA
            a(f"L_q1_{ty}:")
            self.stream_slot(ty, qrd, 4, ACC1, self.qA, self.w_items(), self.NEXTX)
            a(f"s_cmp_ge_u32 s{sN}, 16\ns_cbranch_scc1 L_q1_nox{ty}")
            self.call("F_x")
            self.probe(4)
            a(f"s_waitcnt vmcnt({nk + 2})")
            self.probe(5)
            a(f"s_branch L_q1_{ty}\nL_q1_nox{ty}:")
            self.probe(4)
            a(f"s_waitcnt vmcnt({nk})")
            self.probe(5)
            a(f"s_cmp_lt_u32 s{sN}, 17\ns_cbranch_scc1 L_q1_{ty}")
            if not ty:
                a("s_branch L_q1_last")
        a("L_q1_last:")
        self.stream_slot(0, qrd, 4, ACC1, self.qA, None, None)
        self.call("F_kv")
        a("s_waitcnt lgkmcnt(0)")
        self.q_finalize(ACC1, [self.mfma(ACC1, mt, qt, self.qA(ks, mt), ks) for ks in (0, 1) for mt, qt in self.ORDER4])
        self.kvwait()
        self.stamp(2)
        a("s_barrier")
        self.probe(0, True)
        a("s_barrier")
        self.pretouch("wo", vFA)
        self.call("F_kv")
        for i in range(144):
            a(f"v_mov_b32 v{vACC+i}, 0")
        a(f"""v_lshrrev_b32 v1, 2, v3
        v_and_b32 v7, 1, v2
        v_lshl_add_u32 v1, v7, 2, v1
        v_lshrrev_b32 v7, 1, v2
        v_lshl_add_u32 v6, v7, 4, v1
        v_lshrrev_b32 v1, 1, v1
        v_and_b32 v7, 3, v0
        v_lshlrev_b32 v7, 3, v7
        v_mul_u32_u24 v6, 384, v6
        v_add_u32 v6, v6, v7
        s_mul_i32 s{sT0}, s{sLW}, 3""")
        for nt in range(3):
            a(f"""s_add_u32 s{sT1}, s{sT0}, {nt}
            v_xor_b32 v7, s{sT1}, v1
            v_lshl_add_u32 v{vOA0+nt}, v7, 5, v6
            v_add_u32 v{vOA+nt}, {WR}, v{vOA0+nt}""")
        a(f"""s_lshl_b32 s{sT0}, s{sTY}, 4
        s_add_u32 s{sT0}, s{sT0}, s{sB}
        s_lshl_b32 s{sT0}, s{sT0}, 3
        s_add_u32 s{sT0}, s{sT0}, s{sHG}
        s_mul_i32 s{sM}, s{sT0}, {PART}
        s_add_u32 s{sM}, s{sM}, s{sOLW}
        v_lshlrev_b32 v{vST}, 4, v0""")
        if self.touch:
            a(f"s_cmp_eq_u32 s{sTY}, 0\ns_cbranch_scc1 L_kv18")
        self.kvwait()
        a(f"L_kv18:\ns_mov_b32 s{sN}, 6\nL_kvl:\ns_barrier")
        self.probe(0, True)
        a("s_barrier")
        self.probe(2)
        self.call("F_kv")
        self.probe(4)
        self.kvwait()
        self.probe(5)
        a(f"""s_sub_u32 s{sN}, s{sN}, 1
        s_cmp_lg_u32 s{sN}, 0
        s_cbranch_scc1 L_kvl
        s_barrier""")
        self.probe(0, True)
        a("s_barrier")
        self.call("F_wo")
        self.call("F_kv")
        self.kvwait()
        self.stamp(3)
        oA = lambda c, ks, mt: vFA + 4*mt + (0 if ks == 0 else 12 + 12*(c & 1))
        o_rdA = lambda c, ks, mt: self.rdA(oA(c, ks, mt), vOA, mt, 32*ks*384, (32*ks+8)*384, ("A", ks, mt))
        xa_step = [f"s_add_u32 s{sN}, s{sN}, 1\ns_add_u32 s{sT0}, s{sROT}, s{sN}\ns_and_b32 s{sT0}, s{sT0}, 3\ns_lshl_b32 s{sT0}, s{sT0}, 13",
                   f"v_add_u32 v{vXA}, s{sT0}, v{vXA0}", f"v_add_u32 v{vXA+1}, s{sT0}, v{vXA0+1}"]
        a(f"s_mov_b32 s{sN}, -1")
        for t in xa_step:
            a(t)
        ord_ = sum((o_rdA(0, ks, m) for ks in (0, 1) for m in range(3)), [])
        a(f"s_cmp_eq_u32 s{sTY}, 1\ns_cbranch_scc1 L_o2_1_0")
        for ty in (0, 1):
            for G in range(3):
                a(f"L_o2_{ty}_{G}:")
                self.stream_slot(ty, ord_, 3, vACC + 48*G, lambda ks, mt: oA(0, ks, mt), self.wo_items(), xa_step)
                self.probe(4)
                if ty:
                    a("s_waitcnt vmcnt(8)")
                else:
                    self.kvwait()
                self.probe(5)
                a(f"s_and_b32 s{sT0}, s{sN}, 3\ns_cbranch_scc1 L_o2_{ty}_{G}")
            if not ty:
                a("s_branch L_o2_done")
        a("L_o2_done:")
        self.stamp(4)
        if self.probes:
            a(f"s_add_u32 s{sSLOT}, s{sSLOT}, 3")
        a("s_barrier\ns_barrier")
        self.call("F_kv")
        a(f"""v_lshl_add_u32 v1, v0, 2, s{sRB}
        v_cmp_gt_u32 vcc, 4, v0
        s_and_saveexec_b64 {sr(sT0, 2)}, vcc
        s_cmp_lg_u32 s{sLW}, 0
        s_cbranch_scc1 L_nz
        ds_write_b32 v1, v{vZ} offset:{SYNC - WR}
        L_nz:
        s_mov_b64 exec, -1
        s_waitcnt lgkmcnt(0)""")
        self.kvwait()
        a(f"s_barrier\ns_barrier\ns_mov_b32 s{sOBUF}, s{sRB+1}")
        self.call("F_wo")
        a(f"s_waitcnt vmcnt(6)\ns_barrier\ns_barrier\ns_mov_b32 s{sOBUF}, s{sRB+2}")
        self.call("F_wo")
        self.stamp(5)
        for c in range(12):
            acc, prev = vACC + 48 * (c >> 2), vACC + 48 * ((c - 1) >> 2)
            a("s_barrier")
            self.probe(0, True)
            lg = Lg(a)
            r0 = [self.rdB(0, 0)] + o_rdA(c, 0, 0) + [self.rdB(0, q) for q in (1, 2, 3)] + o_rdA(c, 0, 1) + o_rdA(c, 0, 2) + sum((o_rdA(c, 1, m) for m in range(3)), [])
            st = sum((self.store_items(g) for g, at in enumerate((self.store0, self.store1)) if at == c), [])
            for _ in range(4 if c else 16):
                lg.issue(*r0.pop(0))
            for k, (mt, qt) in enumerate(self.ORDER3 if c else []):
                a(self.mfma(prev, mt, qt, oA(c - 1, 1, mt), 1))
                lg.issue(*r0.pop(0))
                if st and k % 4 == 3:
                    a(st.pop(0))
            self.probe(1)
            if self.probes:
                lg.q = []
            r1 = [self.rdB(1, q) for q in range(4)]
            fill = ["\n".join(f"v_add_u32 v{vOA+nt}, s{sRB + ((c+1)&3)}, v{vOA0+nt}" for nt in range(3))] + xa_step
            for k, (mt, qt) in enumerate(self.ORDER3):
                lg.wait(("A", 0, mt, 0), ("A", 0, mt, 1), ("B", 0, qt))
                a(self.mfma(acc, mt, qt, oA(c, 0, mt), 0))
                if r1:
                    lg.issue(*r1.pop(0))
                elif fill:
                    a(fill.pop(0))
                if st and k % 4 == 3:
                    a(st.pop(0))
                if k == 10:
                    lg.drain()
            for t in st:
                a(t)
            if c < 2:
                a(f"s_waitcnt vmcnt({6 - 6*c})")
            if c in (4, 8):
                self.stamp(6 + (c >> 3))
        st = self.store_items(2)
        for k, (mt, qt) in enumerate(self.ORDER3):
            a(self.mfma(vACC + 96, mt, qt, oA(11, 1, mt), 1))
            if k in (9, 11):
                a(st.pop(0))
        for t in st:
            a(t)
        self.stamp(8)
        a(f"""v_mov_b32 v1, {SYNC}
        v_mov_b32 v6, 1
        s_lshl_b32 s{sT0}, s{sTY}, 11
        s_lshl_b32 s{sT1}, s{sHG}, 2
        s_add_u32 s{sT0}, s{sT0}, s{sT1}
        s_add_u32 s{sT0}, s{sT0}, s{sFADDR}
        s_mov_b64 exec, 1
        s_waitcnt vmcnt(0)
        ds_add_rtn_u32 v7, v1, v6
        s_waitcnt lgkmcnt(0)
        v_readfirstlane_b32 s{sT1}, v7
        s_cmp_lg_u32 s{sT1}, 3
        s_cbranch_scc1 L_nf
        buffer_store_dword v6, v{vZ}, {sr(sWS)}, s{sT0} offen sc1
        L_nf:
        s_mov_b64 exec, -1""")
        self.stamp(9)
        self.probe_dump()
        self.stamp_dump(1)
        a("s_branch L_reduce")

    def at_first(self):
        a = self.a
        a("L_at:")
        self.prio_set(0)
        issued = []
        WBUFS = (WR, R1, R2)

        def ldx(n):
            if n <= 3 or n >= 9:
                self.call("F_x")
            else:
                a(f"s_lshl_b32 s{sT0}, s{sXCH}, 7\ns_add_u32 s{sT0}, s{sT0}, s{sXBASE}")
                self.x_adv()
                for i in range(2):
                    a(f"buffer_load_dwordx4 {vr(vO + (n-4)*8 + 4*i, 4)}, v{vXVO+i}, {sr(sX)}, s{sT0} offen offset:{1024*i}")
            issued.extend([("x", n)] * 2)

        def ldw(n):
            a(f"s_lshl_b32 s{sWBUF}, s{sLW}, 13\ns_add_u32 s{sWBUF}, s{sWBUF}, {WBUFS[n % 3]}")
            self.call("F_w")
            issued.extend([("w", n)] * 8)

        def prefill(k):
            l = self.lab("pf")
            self.call("F_kv")
            a(f"s_cmp_eq_u32 s{sTY}, 1\ns_cbranch_scc1 {l}")
            self.call("F_kv")
            a(f"{l}:")
            issued.extend([("kv", k)] * 8)

        def wait(*tags):
            k = max(i for i, t in enumerate(issued) if t in tags) + 1
            a(f"s_waitcnt vmcnt({min(63, len(issued) - k)})")
        if self.xtouch:
            l = self.lab("xt")
            a(f"s_cmp_eq_u32 s{sTY}, 1\ns_cbranch_scc1 {l}")
            self.other_srd(sPT, 40, SIZE['B_x'])
            a(f"""v_lshlrev_b32 v1, 7, v0
            s_add_u32 s{sT0}, s{sXBASE}, 8192
            s_add_u32 s{sT1}, s{sXBASE}, 16384
            buffer_load_dword v{vP}, v1, {sr(sPT)}, s{sXBASE} offen
            buffer_load_dword v{vP+1}, v1, {sr(sPT)}, s{sT0} offen
            s_mov_b64 exec, 0xffff
            buffer_load_dword v{vP+2}, v1, {sr(sPT)}, s{sT1} offen
            s_mov_b64 exec, -1
            {l}:""")
        a(f"s_mov_b32 s{sXN}, 0")
        ldx(0); ldw(0)
        self.early(2)
        self.late_common()
        a(f"""s_mov_b32 s{sTHR}, 0
        s_lshl_b32 s{sT0}, s{sLW}, 11
        s_add_u32 s{sT0}, s{sT0}, {XR}
        v_lshl_add_u32 v{vT}, v0, 4, s{sT0}""")
        self.early(4)
        ldx(1); ldw(1)
        wait(("x", 0), ("w", 0))
        self.early(5)
        for n in range(9):
            a("s_barrier")
            self.probe(0, True)
            if 1 <= n <= 5:
                wait(("x", n + 3))
                for i in range(2):
                    a(f"ds_write_b128 v{vT}, {vr(vO + (n-1)*8 + 4*i, 4)} offset:{((n+3)&3)*8192 + 1024*i}")
            if n == 0:
                for k in range(2, 9):
                    ldx(k)
            if n == self.prefill == 7:
                prefill(0)
            if n + 2 <= 9:
                ldw(n + 2)
            if n == self.prefill != 7:
                prefill(0)
            if n == 8:
                prefill(1)
            if n >= 6:
                ldx(n + 3)
            self.probe(4)
            if n == 2:
                self.at_setup()
            wait(*([("w", n + 1), ("x", n + 1)] + ([("kv", 0)] if n == 8 else [])))
            a("s_waitcnt lgkmcnt(0)")
            self.probe(5)
        a("s_branch L_stage")

    def at_setup(self):
        a = self.a
        a(f"""s_lshr_b32 s{sT0}, s{sLW}, 1
        s_mul_i32 s{sT0}, s{sT0}, s{sTY}
        s_lshl_b32 s{sT0}, s{sT0}, 13
        v_and_b32 v1, 31, v0
        v_lshrrev_b32 v6, 5, v0
        v_xor_b32 v7, v6, v3
        v_lshlrev_b32 v7, 4, v7
        v_lshl_add_u32 v7, v1, 8, v7
        v_add_u32 v{vKA}, s{sT0}, v7""")
        for s in range(1, 8):
            a(f"v_xor_b32 v{vKA+s}, {32*s}, v{vKA}")
        a(f"""s_lshr_b32 s{sT1}, s{sBUFSZ}, 1
        s_add_u32 s{sT0}, s{sT0}, s{sT1}
        v_lshrrev_b32 v1, 2, v3
        v_lshl_add_u32 v7, v6, 2, v1
        v_lshlrev_b32 v7, 8, v7
        v_lshl_add_u32 v7, v1, 6, v7
        v_and_b32 v1, 1, v2
        v_lshl_add_u32 v7, v1, 5, v7
        v_and_b32 v1, 3, v0
        v_lshl_add_u32 v7, v1, 3, v7
        v_add_u32 v{vVA}, s{sT0}, v7""")
        for dt in range(1, 4):
            a(f"v_xor_b32 v{vVA+dt}, {64*dt}, v{vVA}")
        a(f"""s_mov_b32 s{sRPOS}, 0
        s_mov_b32 s{sSTAGE}, 0
        s_mov_b32 s{sQBUF}, {R2 - XR}
        s_mov_b32 s{sM}, 3
        s_lshr_b32 s{sT0}, s{sLW}, 1
        s_lshl_b32 s{sT0}, s{sT0}, 14
        s_and_b32 s{sT1}, s{sLW}, 1
        s_lshl_b32 s{sT1}, s{sT1}, 12
        s_add_u32 s{sT0}, s{sT0}, s{sT1}
        s_add_u32 s{sT0}, s{sT0}, {XR}
        v_and_b32 v1, 31, v0
        v_bfe_u32 v6, v0, 1, 3
        v_lshrrev_b32 v7, 5, v0
        v_xor_b32 v6, v6, v7
        v_lshlrev_b32 v6, 4, v6
        v_lshl_add_u32 v6, v1, 7, v6
        v_add_u32 v{vH}, s{sT0}, v6""")
        for i in range(1, 4):
            a(f"v_xor_b32 v{vH+i}, {32*i}, v{vH}")
        for i in list(range(vO + 40, vO + 64)) + list(range(vNM + 1, vNM + 16)) + [vL0, vL1, 4] + list(range(vOVO, vOVO + 6)):
            a(f"v_mov_b32 v{i}, 0")

    def at_rest(self):
        a = self.a
        publish = self.follow or self.gate
        a(f"""L_stage:
        s_mov_b32 s{sTH}, 0xff7fffff
        s_mov_b32 s{sFLOOR}, 0xff7fffff
        s_mov_b32 s{sFIRST}, 0
        s_cmp_lg_u32 s{sSTAGE}, 0
        s_cbranch_scc1 L_stage_a
        v_mov_b32 v{vNM}, 0
        L_stage_a:""")
        for i in range(4):
            a(f"v_add_u32 v{vT+i}, s{sQBUF}, v{vH+i}")
        a(f"s_mov_b32 s{sN}, 0\nL_tile:\ns_barrier")
        self.probe(0, True)
        a(f"s_cmp_lg_u32 s{sN}, 0\ns_cbranch_scc1 L_tile_k")
        for s in range(8):
            a(f"ds_read_b128 {vr(vQ+4*s, 4)}, v{vT+(s&3)} offset:{8192*(s>>2)}")
        a("s_waitcnt lgkmcnt(0)\nL_tile_k:")
        lg = Lg(a)
        for s in range(8):
            lg.issue(f"ds_read_b128 {vr(vKF+4*s, 4)}, v{vKA+s}", ("K", s))
        a("s_barrier")
        vreads = [(f"ds_read_b64_tr_b16 {vr(vVF + (u*4+dt)*4 + 2*j, 2)}, v{vVA+dt} offset:{(16*u+8*j)*256}", ("V", u, dt, j))
                  for u in range(2) for dt in range(4) for j in range(2)]
        for s in range(8):
            lg.wait(("K", s))
            c = vr(vNM, 16) if s == 0 else vr(vS, 16)
            a(f"v_mfma_f32_32x32x16_bf16 {vr(vS,16)}, {vr(vKF+4*s,4)}, {vr(vQ+4*s,4)}, {c}")
            for _ in range(2):
                if len(lg.q) < 15:
                    lg.issue(*vreads.pop(0))
        for t, tag in vreads:
            lg.issue(t, tag)
        a(f"""s_add_u32 s{sRPOS}, s{sRPOS}, s{sBUFSZ}
        s_cmp_ge_u32 s{sRPOS}, 98304
        s_cselect_b32 s{sT0}, 98304, 0
        s_sub_u32 s{sRPOS}, s{sRPOS}, s{sT0}
        s_sub_u32 s{sT0}, s{sBUFSZ}, s{sT0}""")
        adv = [f"v_add_u32 v{vKA+i}, s{sT0}, v{vKA+i}" for i in range(12)]
        for t in adv[:7]:
            a(t)
        adv = adv[7:]
        t0, t1 = vT, vT + 1
        a(f"v_max3_f32 v{t0}, v{vS}, v{vS+1}, v{vS+2}\nv_max3_f32 v{t1}, v{vS+3}, v{vS+4}, v{vS+5}")
        for i in range(6, 14, 4):
            a(f"v_max3_f32 v{t0}, v{t0}, v{vS+i}, v{vS+i+1}\nv_max3_f32 v{t1}, v{t1}, v{vS+i+2}, v{vS+i+3}")
        a(f"""v_max3_f32 v{t0}, v{t0}, v{vS+14}, v{vS+15}
        v_max_f32 v{t0}, v{t0}, v{t1}
        v_cmp_lt_f32 vcc, s{sTH}, v{t0}
        s_cbranch_vccnz L_rescale
        L_tile_exp:""")
        ex = lambda u: [f"v_exp_f32 v{vS+8*u+i}, v{vS+8*u+i}" for i in range(8)]
        cv = lambda u: [f"v_cvt_pk_bf16_f32 v{vP+4*u+i}, v{vS+8*u+2*i}, v{vS+8*u+2*i+1}" for i in range(4)]
        ad = lambda u: [f"v_add_f32 v{vL0+(i&1)}, v{vL0+(i&1)}, v{vS+8*u+i}" for i in range(8)]
        pv = lambda u, dt: f"v_mfma_f32_32x32x16_bf16 {vr(vO+16*dt,16)}, {vr(vVF+(u*4+dt)*4,4)}, {vr(vP+4*u,4)}, {vr(vO+16*dt,16)}"
        e0, c0, a0 = ex(0), cv(0), ad(0)
        for t in e0[:3] + [e0[3], c0[0], e0[4], e0[5], c0[1], e0[6], e0[7], c0[2], a0[0], c0[3], a0[1], a0[2]]:
            a(t)
        e1, c1, a1 = ex(1), cv(1), ad(1)
        gaps = [e1[0:3], e1[3:6], e1[6:8] + c1[0:2], [c1[2], c1[3]] + a0[3:6]]
        for dt in range(4):
            lg.wait(("V", 0, dt, 0), ("V", 0, dt, 1))
            a(pv(0, dt))
            for t in gaps[dt]:
                a(t)
        rest = a0[6:] + a1 + adv
        for dt in range(4):
            lg.wait(("V", 1, dt, 0), ("V", 1, dt, 1))
            a(pv(1, dt))
            for _ in range(5):
                if rest: a(rest.pop(0))
        assert not rest
        self.probe(6)
        a("s_waitcnt vmcnt(0)")
        if publish:
            a(f"""s_cmp_gt_u32 s{sTY}, s{sLW}
            s_cbranch_scc0 L_tile_np
            v_mov_b32 v5, s{sM}
            s_mov_b64 exec, 1
            buffer_store_dword v5, v4, {sr(sWS)}, s{sPADDR} offen sc1
            s_mov_b64 exec, -1
            s_add_u32 s{sM}, s{sM}, 1
            L_tile_np:""")
        a(f"""s_add_u32 s{sN}, s{sN}, 1
        s_cmp_lt_u32 s{sN}, 16
        s_cbranch_scc1 L_tile""")
        a(f"""v_add_f32 v{vT+2}, v{vL0}, v{vL1}
        s_mov_b32 s{sQBUF}, {WR - XR}
        v_mov_b32 v{vT+3}, v{vT+2}
        s_add_u32 s{sSTAGE}, s{sSTAGE}, 1
        s_nop 0
        v_permlane32_swap_b32 v{vT+2}, v{vT+3}
        v_add_f32 v{vT+2}, v{vT+2}, v{vT+3}
        v_rcp_f32 v{vT+2}, v{vT+2}
        s_nop 0""")
        mul, put = [], []
        for dt in range(4):
            for ip in range(2):
                c = vO + 16*dt + 8*ip
                mul.append("\n".join(f"v_mul_f32 v{c+i}, v{c+i}, v{vT+2}" for i in range(8)))
                put.append("\n".join(f"v_cvt_pk_bf16_f32 v{c+i}, v{c+2*i}, v{c+2*i+1}" for i in range(4)) +
                           f"\nds_write_b128 v{vH + 2*(dt&1) + ip}, {vr(c,4)} offset:{8192*(dt>>1)}")
        for k in range(9):
            if k < 8: a(mul[k])
            if k: a(put[k-1])
        a(f"""s_cmp_lt_u32 s{sSTAGE}, 2
        s_cbranch_scc0 L_feed0""")
        self.late_wo()
        a(f"""s_mov_b32 s{sOCI}, 15
        s_add_u32 s{sOBASE}, s{sOBASE}, 294912
        s_waitcnt lgkmcnt(0)
        s_branch L_stage""")
        a(f"""L_feed0:
        s_mov_b32 s{sN}, 0
        s_waitcnt lgkmcnt(0)
        L_feed:
        s_add_u32 s{sT0}, s{sOCI}, s{sROT}
        s_and_b32 s{sT0}, s{sT0}, 3
        s_mul_i32 s{sT0}, s{sT0}, 73728
        s_add_u32 s{sT0}, s{sT0}, s{sOBASE}
        s_add_u32 s{sT1}, s{sRB+3}, s{sOLW}
        s_mov_b32 m0, s{sT1}
        s_barrier""")
        self.probe(0, True)
        if self.probes:
            a(f"s_mov_b32 m0, s{sT1}\ns_nop 0")
        for n in range(6):
            if n == 4:
                a(f"s_add_u32 m0, s{sT1}, 4096\ns_add_u32 s{sOCI}, s{sOCI}, 1")
            a(f"buffer_load_dwordx4 v{vOVO+n}, {sr(sWO)}, s{sT0} offen offset:{1024*(n&3)} lds")
        a(f"""s_and_b32 s{sT0}, s{sOCI}, 3
        s_cselect_b32 s{sT0}, 0, 384
        s_add_u32 s{sOBASE}, s{sOBASE}, s{sT0}
        s_mov_b32 s{sT0}, s{sRB+3}
        s_mov_b32 s{sRB+3}, s{sRB}
        s_mov_b32 s{sRB}, s{sRB+1}
        s_mov_b32 s{sRB+1}, s{sRB+2}
        s_mov_b32 s{sRB+2}, s{sT0}
        s_add_u32 s{sN}, s{sN}, 1""")
        self.probe(4)
        a(f"""s_waitcnt vmcnt(12)
        s_cmp_lt_u32 s{sN}, 9
        s_cbranch_scc1 L_feed""")
        if self.gate:
            a(f"s_or_b32 s{sT0}, s{sTY}, s{sLW}\ns_cbranch_scc1 L_gate")
            self.wait_init(4, 5)
            self.spin(f"buffer_load_dword v5, v4, {sr(sWS)}, s{sPADDR} offen sc1", 5,
                      f"v_readfirstlane_b32 s{sT1}, v5\ns_cmp_ge_u32 s{sT1}, {self.gate}")
            a("L_gate:")
        a("""s_barrier
        s_waitcnt vmcnt(6)
        s_barrier
        s_waitcnt vmcnt(0)
        s_barrier""")
        self.probe_dump()

    def reduce(self):
        a = self.a
        vL, vO0, vD, vSum = 6, 7, 40, 104
        a("L_reduce:")
        self.stamp(10)
        srd(a, sX, sOUTP, SIZE['out'])
        a(f"""s_lshl_b32 s{sN}, s{sTY}, 3
        s_add_u32 s{sN}, s{sN}, s{sHG}
        s_lshl_b32 s{sT0}, s{sWAVE}, 4
        s_add_u32 s{sN}, s{sN}, s{sT0}
        s_mul_i32 s{sN}, s{sN}, 36
        s_mul_i32 s{sM}, s{sB}, {8*PART}
        s_mul_i32 s{sOBASE}, s{sB}, {64*2304}
        v_mov_b32 v4, 0
        v_add_u32 v1, s{sN}, v0
        v_lshlrev_b32 v{vL}, 4, v1
        v_lshrrev_b32 v8, 6, v1
        v_mul_u32_u24 v9, 43, v8
        v_lshrrev_b32 v9, 8, v9
        v_mul_u32_u24 v10, 6, v9
        v_sub_u32 v10, v8, v10
        v_mul_u32_u24 v9, 96, v9
        v_lshrrev_b32 v11, 1, v10
        v_lshl_add_u32 v9, v11, 5, v9
        v_and_b32 v10, 1, v10
        v_lshlrev_b32 v10, 5, v10
        v_and_b32 v11, 15, v1
        v_add_u32 v10, v10, v11
        v_mul_u32_u24 v10, 2304, v10
        v_bfe_u32 v11, v1, 4, 2
        v_lshl_add_u32 v9, v11, 3, v9
        v_add_u32 v{vO0}, v9, v10
        v_and_b32 v8, 7, v0
        v_bfe_u32 v9, v0, 3, 1
        v_lshlrev_b32 v9, 11, v9
        v_lshl_add_u32 v8, v8, 2, v9
        v_mov_b32 v9, {SYNC + 4}
        s_mov_b32 s{sSTAGE}, 0
        s_mov_b32 s{sSPIN}, {SPIN}
        s_cmp_lg_u32 s{sWAVE}, 0
        s_cbranch_scc1 L_red""")
        self.wait_init(4, 5)
        a(f"""s_mov_b32 s{sSPIN}, {SPIN}
        L_red:
        s_cmp_lg_u32 s{sWAVE}, 0
        s_cbranch_scc1 L_red_lds
        buffer_load_dword v5, v8, {sr(sWS)}, s{sFADDR} offen sc1
        s_waitcnt vmcnt(0)
        v_cmp_ne_u32 vcc, 1, v5
        s_and_b32 s{sT0}, vcc_lo, 0xff
        s_cselect_b32 s{sT2}, 0, 1
        s_and_b32 s{sT0}, vcc_lo, 0xff00
        s_cselect_b32 s{sT0}, 0, 2
        s_or_b32 s{sT2}, s{sT2}, s{sT0}
        v_mov_b32 v10, s{sT2}
        ds_write_b32 v9, v10
        s_branch L_red_chk
        L_red_lds:
        ds_read_b32 v5, v9
        s_waitcnt lgkmcnt(0)
        v_readfirstlane_b32 s{sT2}, v5
        L_red_chk:
        s_sub_u32 s{sSPIN}, s{sSPIN}, 1
        s_cselect_b32 s{sT2}, 3, s{sT2}
        s_andn2_b32 s{sT2}, s{sT2}, s{sSTAGE}
        s_cbranch_scc1 L_red_go
        s_sleep 1
        s_branch L_red
        L_red_go:
        s_or_b32 s{sSTAGE}, s{sSTAGE}, s{sT2}
        s_mov_b32 exec_hi, 15""")
        for o in range(2):
            a(f"s_bitcmp1_b32 s{sT2}, {o}\ns_cbranch_scc0 L_red_l{o}\ns_add_u32 s{sT0}, s{sM}, {o*16*8*PART}")
            for h in range(8):
                a(f"buffer_load_dwordx4 {vr(vD+32*o+4*h,4)}, v{vL}, {sr(sWS)}, s{sT0} offen sc1\ns_add_u32 s{sT0}, s{sT0}, {PART}")
            a(f"L_red_l{o}:")
        for o in range(2):
            a(f"s_bitcmp1_b32 s{sT2}, {o}\ns_cbranch_scc0 L_red_s{o}")
            if o == 0:
                a(f"s_waitcnt vmcnt(8)\ns_cmp_eq_u32 s{sT2}, 3\ns_cbranch_scc1 L_red_w\ns_waitcnt vmcnt(0)\nL_red_w:")
            else:
                a(f"s_waitcnt vmcnt(2)\ns_cmp_eq_u32 s{sT2}, 3\ns_cbranch_scc1 L_red_x\ns_waitcnt vmcnt(0)\nL_red_x:")
            for h in range(8):
                for i in range(4):
                    r = vD + 32*o + 4*h + i
                    if h == 0:
                        a(f"v_lshlrev_b32 v{vSum+2*i}, 16, v{r}\nv_and_b32 v{vSum+2*i+1}, 0xffff0000, v{r}")
                    else:
                        a(f"""v_lshlrev_b32 v11, 16, v{r}
                        v_and_b32 v12, 0xffff0000, v{r}
                        v_add_f32 v{vSum+2*i}, v{vSum+2*i}, v11
                        v_add_f32 v{vSum+2*i+1}, v{vSum+2*i+1}, v12""")
            for i in range(4):
                a(f"v_cvt_pk_bf16_f32 v{vSum+8+4*o+i}, v{vSum+2*i}, v{vSum+2*i+1}")
            a(f"""s_add_u32 s{sT0}, s{sOBASE}, {16*2304}
            buffer_store_dwordx2 {vr(vSum+8+4*o,2)}, v{vO0}, {sr(sX)}, s{sOBASE} offen offset:{1152*o}
            buffer_store_dwordx2 {vr(vSum+10+4*o,2)}, v{vO0}, {sr(sX)}, s{sT0} offen offset:{1152*o}""")
            if o == 0:
                self.stamp(11)
            a(f"L_red_s{o}:")
        a(f"""s_mov_b64 exec, -1
        s_cmp_lg_u32 s{sSTAGE}, 3
        s_cbranch_scc1 L_red""")
        if self.stamps:
            a(f"s_waitcnt vmcnt(0)\ns_cmp_lg_u32 s{sWAVE}, 0\ns_cbranch_scc1 L_end")
            self.stamp(12)
            self.stamp_dump(0)
        a("s_endpgm")

    def at_rare(self):
        a = self.a
        t0, t1, d, al = vT, vT + 1, vT, vT + 2
        a(f"""L_rescale:
        v_mov_b32 v{t1}, v{t0}
        s_nop 1
        v_permlane32_swap_b32 v{t0}, v{t1}
        v_max3_f32 v{d}, v{t0}, v{t1}, s{sFLOOR}
        v_max_f32 v{al}, 0, v{d}
        v_exp_f32 v{al}, -v{al}
        s_mov_b32 s{sTH}, 0x41000000
        s_mov_b32 s{sFLOOR}, 0
        v_mul_f32 v{al}, s{sFIRST}, v{al}
        s_mov_b32 s{sFIRST}, 1.0""")
        for i in range(16):
            a(f"v_sub_f32 v{vS+i}, v{vS+i}, v{d}\nv_sub_f32 v{vNM+i}, v{vNM+i}, v{d}")
        a(f"v_mul_f32 v{vL0}, v{vL0}, v{al}\nv_mul_f32 v{vL1}, v{vL1}, v{al}")
        for i in range(0, 64, 2):
            a(f"v_pk_mul_f32 {vr(vO+i,2)}, {vr(vO+i,2)}, {vr(al,2)} op_sel_hi:[1,0]")
        a("s_branch L_tile_exp")

    def main(self):
        a = self.a
        self.prologue()
        a(f"s_cmp_ge_u32 s{sWAVE}, 4\ns_cbranch_scc1 L_pj\ns_branch L_at")
        self.subs()
        self.at_first()
        self.pj_first()
        self.pj_setup()
        self.at_rest()
        self.reduce()
        self.at_rare()
        self.pj_rest()
        a("L_end:\ns_endpgm")
        return a.text()


HEADER = open("cdna_kernels/" + NAME + ".s.ref").read().split("; Override launch geometry")[0]


def build(**kw):
    return HEADER + single(Gen(**kw).main(), 256, 512, LDS_BYTES, vgpr=256, accum=256, sgpr=102)


if __name__ == "__main__":
    kw = {}
    for x in sys.argv[2:]:
        k, v = x.split("=")
        kw[k] = int(v, 0)
    open(sys.argv[1], "w").write(build(**kw))
```

```python
import sys, struct
sys.path.insert(0, "tools")
from asmlib import *

KERNEL = NAME + "_kernel"
R0, R1, R2, WR, XR = 0, 32768, 65536, 98304, 131072
SYNC = WR + 24576
LDS_BYTES = 163840
PART = 73728
FLAG_OFF = 32 << 20
PROBE_OFF = 241 << 20
QSCALE = 1.4426950408889634 / 128 ** 0.5
SPIN = 1 << 16


def fbits(x):
    return "0x%08x" % struct.unpack("<I", struct.pack("<f", x))[0]


sWAVE, sLW, sHG, sTY, sB = 3, 4, 5, 6, 7
sK, sV, sX, sWQ, sWO, sWS = 8, 12, 16, 20, 24, 28
sKVOFF, sKVM0, sKVN = 32, 33, 34
sWCOL, sWCH, sWN = 35, 36, 37
sXBASE, sXCH, sXN = 38, 39, 40
sOCI, sOBASE, sROT = 41, 42, 43
sN, sM = 44, 45
sT0, sT1, sT2 = 46, 47, 48
sBUFSZ, sRINGEND, sWBUF, sOLW, sOBUF, sTHR, sKVCNT = 49, 50, 51, 52, 53, 54, 55
sTH, sFLOOR, sRPOS, sSTAGE = 56, 57, 58, 59
sRB = 60
sRET = 64
sFIRST, sQBUF, sSLOT = 66, 67, 68
sC8K = 67
sWB = 69
sBV, sPT = 72, 76
sOUTP, sDBGP = 80, 82
sTN, sLAST, sPADDR, sTBASE = 84, 85, 86, 87
sFADDR, sSPIN, sPROG = 88, 89, 90

vKVO, vVVO, vXVO, vOVO, vWVO = 8, 12, 13, 15, 21
vWA, vWA0, vQW = 23, 27, 28
vOA0, vOA, vST = 23, 26, 29
vXA0, vXA, vZ, vL7 = 30, 32, 34, 35
vFA, vFB, vACC = 36, 72, 104
vPR, vDUM = 4, 5
vKA, vVA, vL0, vL1, vT = 23, 31, 35, 36, 40
vP, vS, vNM, vQ, vKF, vVF, vO, vH = 44, 52, 68, 84, 116, 148, 180, 244


def vr(i, n):
    return f"v[{i}:{i+n-1}]"


def sr(i, n=4):
    return f"s[{i}:{i+n-1}]"


class Lg:
    def __init__(self, a):
        self.a, self.q = a, []
    def issue(self, text, tag):
        if len(self.q) == 15:
            self.wait(self.q[0])
        self.a(text)
        self.q.append(tag)
    def wait(self, *tags):
        idx = max((i for i, t in enumerate(self.q) if t in tags), default=-1)
        if idx < 0:
            return
        self.a(f"s_waitcnt lgkmcnt({len(self.q) - idx - 1})")
        self.q = self.q[idx + 1:]
    def drain(self):
        self.a("s_waitcnt lgkmcnt(0)")
        self.q = []


DEFAULTS = dict(stamps=0, probes=0, vmprobe=2, thr=63, prefill=8, store0=9, store1=10, ipf=1, touch=1, xtouch=1,
                prio=10, gate=0, thrmask=0xffffffff, help=0, lead0=3, lead1=6, kvnt=1, pace=99, dbgst=0)


class Gen:
    def __init__(self, **kw):
        self.a = Asm()
        self.o = dict(DEFAULTS)
        assert set(kw) <= set(DEFAULTS), kw
        self.o.update(kw)
        for k, v in self.o.items():
            setattr(self, k, v)
        self.kvflag = " nt" if self.kvnt else ""
        self.follow = self.help or self.pace < 99
        self.NA = 4 + bool(self.help) + bool(self.follow)
        self.uid = 0

    def lab(self, s):
        self.uid += 1
        return f"L_{s}{self.uid}"

    def stamp(self, k):
        if self.stamps:
            self.a(f"s_memrealtime s[98:99]\ns_waitcnt lgkmcnt(0)\nv_writelane_b32 v255, s98, {k}")

    def stamp_dump(self, role):
        if self.stamps:
            l = self.lab("sd")
            self.a(f"""s_cmp_lg_u32 s{sLW}, 0
            s_cbranch_scc1 {l}
            s_lshl_b32 s{sT0}, s2, 8
            s_add_u32 s{sT0}, s{sT0}, {STAMP_OFF + 128*role}
            v_lshlrev_b32 v1, 2, v0
            s_mov_b64 exec, 0xffffffff
            buffer_store_dword v255, v1, {sr(sWS)}, s{sT0} offen
            s_mov_b64 exec, -1""")
            if self.dbgst:
                srd(self.a, sPT, sDBGP, 256)
                self.a(f"""s_cmp_lg_u32 s{sTY}, {self.dbgst - 1}
                s_cbranch_scc1 {l}
                v_not_b32 v11, v255
                v_cmp_eq_u32 vcc, 0, v0
                s_nop 1
                v_cndmask_b32 v11, v255, v11, vcc
                s_mov_b64 exec, {0x3ff if role else 0x1c00}
                buffer_atomic_umax v11, v1, {sr(sPT)}, 0 offen sc1
                s_mov_b64 exec, -1""")
            self.a(f"{l}:")

    def probe(self, k, first=False):
        if self.probes:
            if first:
                self.a(f"s_add_u32 s{sSLOT}, s{sSLOT}, 1")
            self.a(f"s_memtime s[98:99]\ns_getreg_b32 s100, hwreg(HW_REG_IB_STS)\ns_waitcnt lgkmcnt(0)\ns_mov_b32 m0, s{sSLOT}\nv_writelane_b32 v{248+k}, s98, m0")
            if k == self.vmprobe:
                self.a("v_writelane_b32 v251, s100, m0")

    def early(self, lane):
        if self.probes:
            self.a(f"s_memtime s[98:99]\ns_waitcnt lgkmcnt(0)\nv_writelane_b32 v255, s98, {lane}")

    def probe_dump(self):
        if self.probes:
            l = self.lab("pd")
            self.a(f"""s_cmp_lg_u32 s{sLW}, 0
            s_cbranch_scc1 {l}
            s_lshl_b32 s{sT0}, s2, 1
            s_lshr_b32 s{sT1}, s{sWAVE}, 2
            s_add_u32 s{sT0}, s{sT0}, s{sT1}
            s_lshl_b32 s{sT0}, s{sT0}, 11
            s_add_u32 s{sT0}, s{sT0}, {PROBE_OFF}
            v_lshlrev_b32 v1, 2, v0""")
            for k in range(8):
                self.a(f"buffer_store_dword v{248+k}, v1, {sr(sWS)}, s{sT0} offen offset:{256*k}")
            self.a(f"{l}:")

    def prio_set(self, role):
        for ty in (0, 1):
            if self.prio >> (2*ty + role) & 1:
                l = self.lab("pr")
                self.a(f"s_cmp_lg_u32 s{sTY}, {ty}\ns_cbranch_scc1 {l}\ns_setprio 1\n{l}:")

    def call(self, name):
        self.a(f"s_call_b64 {sr(sRET, 2)}, {name}")

    def ret(self):
        self.a(f"s_setpc_b64 {sr(sRET, 2)}")

    def spread(self, base, fill, start=0):
        n, m = len(base) - start, len(fill)
        j = 0
        for k, t in enumerate(base):
            while k >= start and j < m and j * n <= (k - start) * m:
                self.a(fill[j]); j += 1
            if callable(t): t()
            else: self.a(t)
        for t in fill[j:]:
            self.a(t)

    def other_srd(self, dst, karg_off, size):
        self.a(f"""s_load_dwordx2 {sr(dst, 2)}, s[0:1], {karg_off}
        s_waitcnt lgkmcnt(0)
        s_and_b32 s{dst+1}, s{dst+1}, 0xffff
        s_mov_b32 s{dst+2}, {size}
        s_mov_b32 s{dst+3}, 0x20000""")

    def spin(self, load, vdst, done):
        l, e = self.lab("sp"), self.lab("se")
        self.a(f"""s_mov_b32 s{sSPIN}, {SPIN}
        {l}:
        {load}
        s_waitcnt vmcnt(0) lgkmcnt(0)
        {done}
        s_cbranch_scc1 {e}
        s_sleep 1
        s_sub_u32 s{sSPIN}, s{sSPIN}, 1
        s_cmp_lg_u32 s{sSPIN}, 0
        s_cbranch_scc1 {l}
        {e}:""")

    def wait_init(self, vz, vd):
        srd(self.a, sPT, sDBGP, 256)
        self.a(f"s_lshl_b32 s{sT2}, s{sB}, 2")
        self.spin(f"buffer_load_dword v{vd}, v{vz}, {sr(sPT)}, s{sT2} offen offset:{128*bool(self.dbgst)} sc1", vd,
                  f"v_readfirstlane_b32 s{sT1}, v{vd}\ns_cmp_ge_u32 s{sT1}, 16")

    def prologue(self):
        a = self.a
        a("s_cmp_ge_u32 s2, 256\ns_cbranch_scc1 L_end")
        if self.probes or self.stamps:
            a("s_memtime s[96:97]" if self.probes else "s_memrealtime s[96:97]")
        a(f"""s_load_dwordx2 s[68:69], s[0:1], 96
        s_load_dwordx4 {sr(sOUTP)}, s[0:1], 80
        s_and_b32 s{sHG}, s2, 7
        s_lshr_b32 s{sTY}, s2, 3
        s_and_b32 s{sTY}, s{sTY}, 1
        s_lshr_b32 s{sB}, s2, 4
        s_mul_i32 s{sT0}, s{sTY}, 40
        s_add_u32 s0, s0, s{sT0}
        s_addc_u32 s1, s1, 0
        s_load_dwordx8 s[56:63], s[0:1], 0
        s_load_dwordx2 s[70:71], s[0:1], 32""")
        if self.ipf:
            a(f"""s_getpc_b64 {sr(sT0, 2)}
            L_pc:
            s_sub_u32 s{sT0}, s{sT0}, L_pc-{KERNEL}
            s_subb_u32 s{sT0+1}, s{sT0+1}, 0
            s_and_b32 s{sT2}, s2, 0xf8
            v_lshrrev_b32 v1, 6, v0
            v_add_lshl_u32 v6, v1, s{sT2}, 7
            v_min_u32 v6, L_end-{KERNEL}, v6
            v_mov_b32 v7, s{sT0+1}
            v_add_co_u32 v6, vcc, s{sT0}, v6
            s_nop 1
            v_addc_co_u32 v7, vcc, 0, v7, vcc
            global_load_dword v{vFA+32}, v[6:7], off""")
        a(f"""v_lshrrev_b32 v1, 6, v0
        v_and_b32 v0, 63, v0
        v_readfirstlane_b32 s{sWAVE}, v1
        v_lshrrev_b32 v2, 4, v0
        v_and_b32 v3, 15, v0
        s_and_b32 s{sLW}, s{sWAVE}, 3
        v_lshrrev_b32 v4, 3, v0
        v_and_b32 v5, 7, v0
        v_mul_u32_u24 v7, 1152, v4""")
        for n in range(2):
            a(f"""v_add_u32 v6, {4*n}, v2
            v_xor_b32 v6, v6, v5
            v_lshl_add_u32 v6, v6, 4, v7
            v_add_u32 v{vXVO+n}, {n*(8*1152-1024)}, v6""")
        a(f"""v_and_b32 v1, 1, v2
        v_lshlrev_b32 v1, 1, v1
        v_xor_b32 v1, v1, v5
        v_lshlrev_b32 v1, 4, v1
        v_lshl_add_u32 v{vWVO}, v4, 13, v1
        v_xor_b32 v{vWVO+1}, 64, v{vWVO}
        s_lshl_b32 s{sWCOL}, s{sHG}, 10
        s_lshl_b32 s{sT0}, s{sLW}, 7
        s_add_u32 s{sWCOL}, s{sWCOL}, s{sT0}
        s_mov_b32 s{sWN}, 0
        s_sub_u32 s{sT0}, s{sB}, 9
        s_cmp_ge_u32 s{sB}, 9
        s_cselect_b32 s{sXCH}, s{sT0}, s{sB}
        s_mov_b32 s{sWCH}, s{sXCH}
        s_mul_i32 s{sXBASE}, s{sB}, 73728
        s_mul_i32 s{sT0}, s{sLW}, 18432
        s_add_u32 s{sXBASE}, s{sXBASE}, s{sT0}
        s_lshl_b32 s{sT0}, s{sB}, 3
        s_add_u32 s{sT0}, s{sT0}, s{sHG}
        s_lshl_b32 s{sPADDR}, s{sT0}, 7
        s_add_u32 s{sPADDR}, s{sPADDR}, {FLAG_OFF + 4096}
        s_lshl_b32 s{sFADDR}, s{sB}, 7
        s_add_u32 s{sFADDR}, s{sFADDR}, {FLAG_OFF}
        s_waitcnt lgkmcnt(0)""")
        srd(a, sX, 56, SIZE['A_x'])
        srd(a, sWQ, 62, SIZE['A_wq'])
        a(f"""s_mov_b32 s{sK}, s58
        s_and_b32 s{sK+1}, s59, 0xffff
        s_lshl_b32 s{sK+2}, {SIZE['A_k']}, s{sTY}
        s_mov_b32 s{sK+3}, 0x20000
        s_mov_b32 s{sV}, s60
        s_and_b32 s{sV+1}, s61, 0xffff
        s_mov_b32 s{sV+2}, s{sK+2}
        s_mov_b32 s{sV+3}, 0x20000""")
        srd(a, sWO, 70, SIZE['A_wo'])
        srd(a, sWS, 68, SIZE['ws'])
        srd(a, sBV, 60, 0)
        if self.probes or self.stamps:
            a(f"s_mov_b32 s{sSLOT}, -1")
            for k in range(8):
                a(f"v_mov_b32 v{248+k}, 0")
            a("v_writelane_b32 v255, s96, 0")
            self.early(1)

    def late_common(self):
        a = self.a
        a(f"""s_lshl_b32 s{sBUFSZ}, 16384, s{sTY}
        s_lshl_b32 s{sT0}, 2048, s{sTY}
        s_mul_i32 s{sKVM0}, s{sT0}, s{sLW}
        s_add_u32 s{sRINGEND}, s{sKVM0}, 98304
        s_lshl_b32 s{sT0}, s{sB}, 3
        s_add_u32 s{sT0}, s{sT0}, s{sHG}
        s_lshl_b32 s{sTBASE}, s{sT0}, 19
        s_add_u32 s{sT1}, s{sTY}, 18
        s_lshl_b32 s{sKVOFF}, s{sT0}, s{sT1}
        s_lshr_b32 s{sT0}, s{sLW}, 1
        s_lshl_b32 s{sT0}, s{sT0}, 17
        s_and_b32 s{sT1}, s{sLW}, 1
        s_lshl_b32 s{sT2}, s{sT1}, 12
        s_add_u32 s{sT0}, s{sT0}, s{sT2}
        s_add_u32 s{sTBASE}, s{sTBASE}, s{sT0}
        s_cmp_eq_u32 s{sTY}, 1
        s_cselect_b32 s{sT0}, s{sT0}, s{sKVM0}
        s_add_u32 s{sKVOFF}, s{sKVOFF}, s{sT0}
        s_lshl_b32 s{sT1}, s{sT1}, 3
        s_cmp_eq_u32 s{sTY}, 1
        s_cselect_b32 s{sT1}, 0, s{sT1}
        s_mov_b32 s{sKVN}, 0
        v_lshlrev_b32 v6, 8, v2
        v_add_u32 v7, s{sT1}, v2""")
        for n in range(4):
            a(f"""v_add_u32 v1, {4*n}, v7
            v_xor_b32 v1, v1, v3
            v_and_b32 v1, 15, v1
            v_lshl_add_u32 v{vKVO+n}, v1, 4, v6""")
        a(f"""v_lshlrev_b32 v1, 2, v2
        v_xor_b32 v1, v1, v3
        v_lshl_add_u32 v{vVVO}, v1, 4, v6""")

    def late_wo(self):
        a = self.a
        for n in range(6):
            a(f"""v_add_u32 v1, {64*n}, v0
            v_mul_u32_u24 v6, 2731, v1
            v_lshrrev_b32 v6, 16, v6
            v_mul_u32_u24 v7, 24, v6
            v_sub_u32 v1, v1, v7
            v_and_b32 v7, 6, v6
            v_xor_b32 v1, v1, v7
            v_lshlrev_b32 v1, 4, v1
            v_mul_u32_u24 v6, 1152, v6
            v_add_u32 v1, v1, v6
            v_subrev_u32 v{vOVO+n}, {1024*(n&3)}, v1""")
        a(f"""s_lshl_b32 s{sT0}, s{sHG}, 9
        s_lshl_b32 s{sT1}, s{sLW}, 4
        s_add_u32 s{sT0}, s{sT0}, s{sT1}
        s_mul_i32 s{sOBASE}, s{sT0}, 1152
        s_and_b32 s{sROT}, s{sB}, 3
        s_mul_i32 s{sOLW}, s{sLW}, 6144
        s_cmp_eq_u32 s{sTY}, 1
        s_mov_b32 s{sRB}, {WR}
        s_mov_b32 s{sRB+1}, {R2}
        s_cselect_b32 s{sRB+2}, {R0}, {R1}
        s_cselect_b32 s{sRB+3}, {R1}, {R0}""")

    def x_adv(self):
        self.a(f"""s_add_u32 s{sXN}, s{sXN}, 1
        s_add_u32 s{sXCH}, s{sXCH}, 1
        s_cmp_eq_u32 s{sXCH}, 9
        s_cselect_b32 s{sXCH}, 0, s{sXCH}""")

    def kv_items_b(self):
        f = self.kvflag
        items = []
        for n in range(8):
            t = ""
            if n == 0:
                t += f"s_mov_b32 m0, s{sKVM0}\ns_cmp_eq_u32 s{sKVN}, 15\n"
            if n == 4:
                t += f"s_add_u32 m0, s{sKVM0}, 16384\ns_add_u32 s{sKVM0}, s{sKVM0}, 32768\n"
            if n < 4:
                t += f"buffer_load_dwordx4 v{vKVO+n}, {sr(sK)}, s{sKVOFF} offen offset:{1024*n}{f} lds\n"
            else:
                t += f"buffer_load_dwordx4 v{vVVO}, {sr(sV)}, s{sKVOFF} offen offset:{1024*(n-4)}{f} lds\n"
            if n == 0:
                t += f"s_cselect_b32 s{sKVCNT}, 131072, 0\ns_add_u32 s{sKVCNT}, s{sKVCNT}, 8192\ns_add_u32 s{sKVN}, s{sKVN}, 1\n"
            if n == 7:
                t += f"""s_add_u32 s{sKVOFF}, s{sKVOFF}, s{sKVCNT}
                s_cmp_ge_u32 s{sKVM0}, s{sRINGEND}
                s_cselect_b32 s{sKVCNT}, 98304, 0
                s_sub_u32 s{sKVM0}, s{sKVM0}, s{sKVCNT}"""
            items.append(t)
        return items

    def wo_items(self):
        items = []
        for n in range(6):
            t = ""
            if n == 0:
                t += f"""s_add_u32 s{sT0}, s{sOCI}, s{sROT}
                s_and_b32 s{sT0}, s{sT0}, 3
                s_mul_i32 s{sT0}, s{sT0}, 73728
                s_add_u32 s{sT1}, s{sOBUF}, s{sOLW}
                s_mov_b32 m0, s{sT1}
                s_add_u32 s{sT0}, s{sT0}, s{sOBASE}\n"""
            if n == 4:
                t += f"s_add_u32 m0, s{sT1}, 4096\ns_add_u32 s{sOCI}, s{sOCI}, 1\n"
            t += f"buffer_load_dwordx4 v{vOVO+n}, {sr(sWO)}, s{sT0} offen offset:{1024*(n&3)} lds\n"
            if n == 5:
                t += f"""s_and_b32 s{sT0}, s{sOCI}, 3
                s_cselect_b32 s{sT0}, 0, 384
                s_add_u32 s{sOBASE}, s{sOBASE}, s{sT0}
                s_cmp_eq_u32 s{sOCI}, 12
                s_cselect_b32 s{sT0}, {294912-1152}, 0
                s_add_u32 s{sOBASE}, s{sOBASE}, s{sT0}"""
            items.append(t)
        return items

    def w_items(self):
        items = []
        for n in range(8):
            if n == 0:
                t = f"s_lshl_b32 s{sT0}, s{sWCH}, 19\ns_add_u32 s{sT0}, s{sT0}, s{sWCOL}\ns_mov_b32 m0, s{sWBUF}\ns_add_u32 s{sWCH}, s{sWCH}, 1\n"
            elif n == 4:
                t = f"s_add_u32 m0, s{sWBUF}, 4096\ns_add_u32 s{sT0}, s{sT0}, {65536+3072}\n"
            else:
                t = f"s_add_u32 s{sT0}, s{sT0}, {65536-1024}\n"
            t += f"buffer_load_dwordx4 v{vWVO+(n&1)}, {sr(sWQ)}, s{sT0} offen offset:{1024*(n&3)} lds\n"
            if n == 7:
                t += f"""s_cmp_eq_u32 s{sWCH}, 9
                s_cselect_b32 s{sWCH}, 0, s{sWCH}
                s_add_u32 s{sWN}, s{sWN}, 1
                s_cmp_eq_u32 s{sWN}, 9
                s_cselect_b32 s{sT1}, 512, 0
                s_add_u32 s{sWCOL}, s{sWCOL}, s{sT1}"""
            items.append(t)
        return items

    def subs(self):
        a = self.a
        f = self.kvflag
        a(f"""F_x:
        s_lshl_b32 s{sT0}, s{sXCH}, 7
        s_add_u32 s{sT0}, s{sT0}, s{sXBASE}
        s_and_b32 s{sT1}, s{sXN}, 3
        s_lshl_b32 s{sT1}, s{sT1}, 2
        s_add_u32 s{sT1}, s{sT1}, s{sLW}
        s_lshl_b32 s{sT1}, s{sT1}, 11
        s_add_u32 m0, s{sT1}, {XR}""")
        self.x_adv()
        for n in range(2):
            a(f"buffer_load_dwordx4 v{vXVO+n}, {sr(sX)}, s{sT0} offen offset:{1024*n} lds")
        self.ret()
        a("F_w:")
        for t in self.w_items():
            a(t)
        self.ret()
        a(f"""F_kv:
        s_cmp_eq_u32 s{sTY}, 0
        s_cbranch_scc1 F_kv_a""")
        for t in self.kv_items_b():
            a(t)
        a(f"s_mov_b32 s{sKVCNT}, 8")
        self.ret()
        a(f"""F_kv_a:
        s_mov_b32 s{sKVCNT}, 0
        s_cmp_ge_u32 s{sKVN}, 32
        s_cbranch_scc1 F_kv_ret""")
        if self.follow:
            a(f"""s_cmp_eq_u32 s{sTHR}, 0
            s_cbranch_scc1 F_kv_go
            s_waitcnt vmcnt(0)
            v_readfirstlane_b32 s{sPROG}, v{vPR}""")
            if self.pace < 99:
                check = f"s_add_u32 s{sT1}, s{sPROG}, {self.pace}\ns_cmp_ge_u32 s{sT1}, s{sKVN}"
                a(check + "\ns_cbranch_scc1 F_kv_go")
                self.spin(f"buffer_load_dword v{vPR}, v{vZ}, {sr(sWS)}, s{sPADDR} offen sc1", vPR,
                          f"v_readfirstlane_b32 s{sPROG}, v{vPR}\n" + check)
            a("F_kv_go:")
        a(f"""s_mov_b32 m0, s{sKVM0}
        s_mov_b32 s{sKVCNT}, 4""")
        if self.thr < 63:
            a(f"s_lshr_b32 s{sT1}, {self.thrmask}, s{sKVN}\ns_and_b32 s{sT1}, s{sT1}, s{sTHR}")
        for n in range(4):
            if self.thr < 63:
                l = self.lab("thr")
                a(f"s_cmp_eq_u32 s{sT1}, 0\ns_cbranch_scc1 {l}\ns_waitcnt vmcnt({self.thr-1})\n{l}:")
            if n == 2:
                a(f"s_add_u32 m0, s{sKVM0}, 8192\ns_add_u32 s{sKVN}, s{sKVN}, 1")
            if n < 2:
                a(f"buffer_load_dwordx4 v{vKVO+n}, {sr(sK)}, s{sKVOFF} offen offset:{1024*n}{f} lds")
            else:
                a(f"buffer_load_dwordx4 v{vVVO}, {sr(sV)}, s{sKVOFF} offen offset:{1024*(n-2)}{f} lds")
        a(f"""s_add_u32 s{sKVOFF}, s{sKVOFF}, 8192
        s_add_u32 s{sKVM0}, s{sKVM0}, 16384
        s_cmp_ge_u32 s{sKVM0}, s{sRINGEND}
        s_cselect_b32 s{sT0}, 98304, 0
        s_sub_u32 s{sKVM0}, s{sKVM0}, s{sT0}""")
        if self.follow:
            a(f"s_cmp_eq_u32 s{sTHR}, 0\ns_cbranch_scc1 F_kv_ret")
        if self.help:
            a(f"""s_add_u32 s{sT1}, s{sPROG}, {self.lead0}
            s_max_u32 s{sTN}, s{sTN}, s{sT1}
            s_add_u32 s{sT1}, s{sPROG}, {self.lead1}
            s_min_u32 s{sT1}, s{sT1}, 31
            s_cmp_le_u32 s{sTN}, s{sT1}
            s_cselect_b32 s{sLAST}, s{sTN}, s{sLAST}
            s_addc_u32 s{sTN}, s{sTN}, 0
            s_and_b32 s{sT0}, s{sLAST}, 15
            s_lshl_b32 s{sT0}, s{sT0}, 13
            s_lshr_b32 s{sT1}, s{sLAST}, 4
            s_lshl_b32 s{sT1}, s{sT1}, 18
            s_add_u32 s{sT0}, s{sT0}, s{sT1}
            s_add_u32 s{sT0}, s{sT0}, s{sTBASE}
            s_mov_b64 exec, {(1 << self.help) - 1}
            buffer_load_dword v{vDUM}, v{vL7}, {sr(sBV)}, s{sT0} offen offset:{4096 - 128*self.help}
            s_mov_b64 exec, -1""")
        if self.follow:
            a(f"buffer_load_dword v{vPR}, v{vZ}, {sr(sWS)}, s{sPADDR} offen sc1")
        a("F_kv_ret:")
        self.ret()
        a("F_wo:")
        for t in self.wo_items():
            a(t)
        self.ret()

    def kvwait(self):
        l = self.lab("kw")
        self.a(f"""s_waitcnt vmcnt(8)
        s_cmp_eq_u32 s{sKVCNT}, 8
        s_cbranch_scc1 {l}
        s_waitcnt vmcnt({self.NA})
        s_cmp_eq_u32 s{sKVCNT}, 4
        s_cbranch_scc1 {l}
        s_waitcnt vmcnt(0)
        {l}:""")

    def pretouch(self, what, dst):
        if not self.touch:
            return
        a = self.a
        l = self.lab("pt")
        a(f"s_cmp_eq_u32 s{sTY}, 1\ns_cbranch_scc1 {l}")
        self.other_srd(sPT, 72 if what == "wo" else 64, SIZE['B_wo'])
        a(f"s_lshl_b32 s{sT0}, s{sB}, 2\ns_add_u32 s{sT0}, s{sT0}, s{sLW}")
        own = sWO if what == "wo" else sWQ
        if what == "wo":
            a(f"""s_mul_i32 s{sT0}, s{sT0}, 9216
            s_mul_i32 s{sT1}, s{sHG}, 589824
            s_add_u32 s{sT0}, s{sT0}, s{sT1}
            buffer_load_dword v{dst}, v{vL7}, {sr(sPT)}, s{sT0} offen
            buffer_load_dword v{dst+1}, v{vL7}, {sr(own)}, s{sT0} offen
            s_mov_b64 exec, 255
            s_add_u32 s{sT0}, s{sT0}, 8192
            buffer_load_dword v{dst+2}, v{vL7}, {sr(sPT)}, s{sT0} offen
            buffer_load_dword v{dst+3}, v{vL7}, {sr(own)}, s{sT0} offen""")
        else:
            a(f"""s_mul_i32 s{sT0}, s{sT0}, {9*8192}
            s_lshl_b32 s{sT1}, s{sHG}, 10
            s_add_u32 s{sT0}, s{sT0}, s{sT1}
            v_lshrrev_b32 v1, 2, v0
            v_and_b32 v6, 3, v0
            v_lshlrev_b32 v6, 7, v6
            v_lshl_add_u32 v1, v1, 13, v6
            s_mov_b32 exec_hi, 15
            buffer_load_dword v{dst}, v1, {sr(sPT)}, s{sT0} offen offset:512
            buffer_load_dword v{dst+1}, v1, {sr(own)}, s{sT0} offen offset:512""")
        a(f"s_mov_b64 exec, -1\n{l}:")

    def rdA(self, reg, areg, mt, off0, off1, tag):
        return [(f"ds_read_b64_tr_b16 {vr(reg + 2*j, 2)}, v{areg+mt} offset:{o}", tag + (j,)) for j, o in enumerate((off0, off1))]

    def rdB(self, ks, qt):
        return (f"ds_read_b128 {vr(vFB + (ks*4+qt)*4, 4)}, v{vXA+ks} offset:{2048*qt}", ("B", ks, qt))

    def mfma(self, acc, mt, qt, areg, ks):
        c = vr(acc + (mt*4+qt)*4, 4)
        return f"v_mfma_f32_16x16x32_bf16 {c}, {vr(areg, 4)}, {vr(vFB + (ks*4+qt)*4, 4)}, {c}"

    def qA(self, ks, mt):
        return vFA + (ks*4 + mt)*4

    def q_rdA(self, ks, mt):
        return self.rdA(self.qA(ks, mt), vWA, mt, 32*ks*128, (32*ks+4)*128, ("A", ks, mt))

    def q_finalize(self, acc, pending):
        a = self.a
        a(f"s_mov_b32 s{sT2}, {fbits(QSCALE)}")
        mul, cvt, put = [], [], []
        for mt in range(4):
            for qt in range(4):
                c = acc + (mt*4+qt)*4
                mul.append("\n".join(f"v_mul_f32 v{c+r}, s{sT2}, v{c+r}" for r in range(4)))
                cvt.append(f"v_cvt_pk_bf16_f32 v{c}, v{c}, v{c+1}\nv_cvt_pk_bf16_f32 v{c+1}, v{c+2}, v{c+3}")
                put.append((f"v_xor_b32 v1, {32*mt}, v{vQW}\n" if qt == 0 else "") + f"ds_write_b64 v1, {vr(c,2)} offset:{2048*qt}")
        work = ["\n".join(([put[k-2]] if 2 <= k < 18 else []) + ([cvt[k-1]] if 1 <= k < 17 else []) + ([mul[k]] if k < 16 else [])) for k in range(18)]
        lead = len(pending) - 16 + 5
        for k, t in enumerate(pending):
            a(t)
            if k + 1 == lead:
                a("s_nop 3")
            if k + 1 >= lead:
                a(work.pop(0))
        for t in work:
            a(t)
        a("s_waitcnt lgkmcnt(0)")

    ORDER4 = [(mt, qt) for mt in range(4) for qt in range(4)]
    ORDER3 = [(mt, qt) for mt in range(3) for qt in range(4)]
    NEXTX = [f"s_add_u32 s{sN}, s{sN}, 1\ns_and_b32 s{sT0}, s{sN}, 3\ns_lshl_b32 s{sT0}, s{sT0}, 13",
             f"v_add_u32 v{vXA}, s{sT0}, v{vXA0}", f"v_add_u32 v{vXA+1}, s{sT0}, v{vXA0+1}"]

    def pj_first(self):
        a = self.a
        ACC0 = vACC
        a("L_pj:")
        self.prio_set(1)
        a(f"""v_mov_b32 v{vZ}, 0
        v_lshlrev_b32 v{vL7}, 7, v0
        s_cmp_lg_u32 s{sLW}, 0
        s_cbranch_scc1 L_pj_a
        s_lshl_b32 s{sT0}, s{sTY}, 11
        s_lshl_b32 s{sT1}, s{sHG}, 2
        s_add_u32 s{sT0}, s{sT0}, s{sT1}
        s_add_u32 s{sT0}, s{sT0}, s{sFADDR}
        s_cmp_eq_u32 s{sTY}, 1
        s_cselect_b32 s{sT1}, s{sPADDR}, s{sT0}
        s_mov_b64 exec, 1
        buffer_store_dword v{vZ}, v{vZ}, {sr(sWS)}, s{sT0} offen sc1
        buffer_store_dword v{vZ}, v{vZ}, {sr(sWS)}, s{sT1} offen sc1
        s_mov_b64 exec, -1
        L_pj_a:""")
        self.early(6)
        for i in list(range(vKVO, vXVO)) + list(range(vOVO, vWVO)):
            a(f"v_mov_b32 v{i}, 0")
        a(f"""s_lshl_b32 s{sT2}, s{sLW}, 13
        s_mov_b32 s{sWB}, {R1}
        s_mov_b32 s{sWB+1}, {R2}
        s_mov_b32 s{sWB+2}, {WR}
        v_lshrrev_b32 v1, 2, v3
        v_lshl_add_u32 v6, v2, 3, v1
        v_lshrrev_b32 v1, 1, v1
        v_and_b32 v7, 1, v2
        v_lshl_or_b32 v1, v7, 1, v1
        v_and_b32 v7, 3, v0
        v_lshlrev_b32 v7, 3, v7
        v_lshl_add_u32 v6, v6, 7, v7
        v_lshl_add_u32 v6, v1, 5, v6
        v_add_u32 v{vWA0}, s{sT2}, v6
        v_add_u32 v{vWA}, {WR}, v{vWA0}""")
        for mt in range(1, 4):
            a(f"v_xor_b32 v{vWA+mt}, {32*mt}, v{vWA}")
        a(f"""v_lshrrev_b32 v1, 1, v3
        v_xor_b32 v6, v1, v2
        v_lshlrev_b32 v6, 4, v6
        v_lshl_add_u32 v6, v3, 7, v6
        v_add_u32 v{vXA0}, {XR}, v6
        v_xor_b32 v{vXA0+1}, 64, v{vXA0}
        v_mov_b32 v{vXA}, v{vXA0}
        v_mov_b32 v{vXA+1}, v{vXA0+1}
        v_lshrrev_b32 v6, 1, v2
        v_xor_b32 v6, v6, v1
        v_lshlrev_b32 v6, 4, v6
        v_lshl_add_u32 v6, v3, 7, v6
        v_and_b32 v7, 1, v2
        v_lshl_add_u32 v6, v7, 3, v6
        v_add_u32 v6, s{sT2}, v6
        v_add_u32 v{vQW}, {R2}, v6""")
        for i in range(64):
            a(f"v_mov_b32 v{ACC0+i}, 0")
        for i in range(16):
            a(f"v_mov_b32 v{vFA+16+i}, 0\nv_mov_b32 v{vFB+16+i}, 0")
        self.early(4)
        srd(a, sPT, sDBGP, 256)
        a(f"""v_mov_b32 v1, 1
        s_lshl_b32 s{sT0}, s{sB}, 2
        s_mov_b32 s{sN}, 0
        s_waitcnt vmcnt(0)
        s_cmp_lg_u32 s{sLW}, 0
        s_cbranch_scc1 L_q0
        s_mov_b64 exec, 1
        buffer_atomic_add v1, v{vZ}, {sr(sPT)}, s{sT0} offen offset:{128*bool(self.dbgst)} sc1
        s_mov_b64 exec, -1""")
        nextbuf = [f"v_add_u32 v{vWA}, s{sWB}, v{vWA0}\ns_mov_b32 s{sT0}, s{sWB}", f"v_xor_b32 v{vWA+1}, 32, v{vWA}\ns_mov_b32 s{sWB}, s{sWB+1}",
                   f"v_xor_b32 v{vWA+2}, 64, v{vWA}\ns_mov_b32 s{sWB+1}, s{sWB+2}", f"v_xor_b32 v{vWA+3}, 96, v{vWA}\ns_mov_b32 s{sWB+2}, s{sT0}"]
        a("L_q0:\ns_barrier")
        self.probe(0, True)
        lg = Lg(a)
        rd = lambda ks: [self.rdB(ks, 0)] + self.q_rdA(ks, 0) + [self.rdB(ks, q) for q in (1, 2, 3)] + sum((self.q_rdA(ks, m) for m in (1, 2, 3)), [])
        r0, r1 = rd(0), rd(1)
        for _ in range(2):
            lg.issue(*r0.pop(0))
        for mt, qt in self.ORDER4:
            a(self.mfma(ACC0, mt, qt, self.qA(1, mt), 1))
            if r0:
                lg.issue(*r0.pop(0))
        tail = nextbuf + self.NEXTX
        for k, (mt, qt) in enumerate(self.ORDER4):
            lg.wait(("A", 0, mt, 0), ("A", 0, mt, 1), ("B", 0, qt))
            a(self.mfma(ACC0, mt, qt, self.qA(0, mt), 0))
            for _ in range(2):
                if r1:
                    lg.issue(*r1.pop(0))
            if k >= 8 and tail:
                a(tail.pop(0))
            if k == 14:
                lg.drain()
                a(f"s_cmp_eq_u32 s{sN}, 1")
        self.probe(1)
        a(f"s_cbranch_scc1 L_q0_setup\ns_cmp_lt_u32 s{sN}, 9\ns_cbranch_scc1 L_q0")
        self.early(10)
        self.q_finalize(ACC0, [self.mfma(ACC0, mt, qt, self.qA(1, mt), 1) for mt, qt in self.ORDER4])
        self.early(12)
        a(f"v_xor_b32 v{vQW}, {R2 ^ WR}, v{vQW}")
        self.stamp(1)
        a("s_branch L_pj_rest")

    def pj_setup(self):
        a = self.a
        a("L_q0_setup:")
        self.late_common()
        self.late_wo()
        a(f"""s_cmp_eq_u32 s{sTY}, 1
        s_cselect_b32 s{sKVN}, 2, 4
        s_lshl_b32 s{sT0}, s{sKVN}, 13
        s_add_u32 s{sKVOFF}, s{sKVOFF}, s{sT0}
        s_add_u32 s{sKVM0}, s{sKVM0}, {R2}
        s_mov_b32 s{sTHR}, 1
        s_add_u32 s{sWCOL}, s{sWCOL}, 512
        s_mov_b32 s{sWN}, 10
        s_add_u32 s{sWCH}, s{sWCH}, 1
        s_cmp_eq_u32 s{sWCH}, 9
        s_cselect_b32 s{sWCH}, 0, s{sWCH}
        s_lshl_b32 s{sT2}, s{sLW}, 13
        s_add_u32 s{sWBUF}, s{sT2}, {WR}
        s_mov_b32 s{sXN}, 12
        s_add_u32 s{sXCH}, s{sXCH}, 3
        s_sub_u32 s{sT0}, s{sXCH}, 9
        s_cmp_ge_u32 s{sXCH}, 9
        s_cselect_b32 s{sXCH}, s{sT0}, s{sXCH}
        s_mov_b32 s{sOCI}, 0
        s_mov_b32 s{sOBUF}, {WR}
        s_mov_b32 s{sTN}, 0
        s_mov_b32 s{sLAST}, 2
        v_mov_b32 v{vPR}, 0""")
        for i in range(64):
            a(f"v_mov_b32 v{vACC+64+i}, 0")
        self.pretouch("wq", vFA + 33)
        a("s_branch L_q0")

    def stream_slot(self, ty, rdA, MT, acc, aset, loads, after):
        e = self.a
        e("s_barrier")
        self.probe(0, True)
        lg = Lg(e)
        for t, tag in rdA:
            lg.issue(t, tag)
        lg.drain()
        self.probe(1)
        e("s_barrier")
        self.probe(2)
        for ks in (0, 1):
            for q in range(4):
                lg.issue(*self.rdB(ks, q))
        if loads is None:
            return
        def mk(ks, mt, qt):
            def f():
                lg.wait(("B", ks, qt))
                e(self.mfma(acc, mt, qt, aset(ks, mt), ks))
            return f
        mm = [mk(ks, mt, qt) for ks in (0, 1) for mt in range(MT) for qt in range(4)]
        self.spread(mm, loads + (self.kv_items_b() if ty else []))
        self.probe(6)
        if not ty:
            self.call("F_kv")
        for t in after:
            e(t)

    def store_items(self, G):
        acc = vACC + 48 * G
        items = []
        for qd in range(6):
            c = acc + 8*qd
            t = "\n".join(f"v_cvt_pk_bf16_f32 v{c+i}, v{c+2*i}, v{c+2*i+1}" for i in range(4))
            t += f"\nbuffer_store_dwordx4 {vr(c,4)}, v{vST}, {sr(sWS)}, s{sM} offen offset:{1024*(qd&3)} sc1"
            if qd in (3, 5):
                t += f"\ns_add_u32 s{sM}, s{sM}, {4096 if qd == 3 else 24576-4096}"
            items.append(t)
        return items

    def pj_rest(self):
        a = self.a
        ACC1 = vACC + 64
        qrd = sum((self.q_rdA(ks, m) for ks in (0, 1) for m in range(4)), [])
        a(f"L_pj_rest:\ns_cmp_eq_u32 s{sTY}, 1\ns_cbranch_scc1 L_q1_1")
        if self.help:
            self.other_srd(sBV, 56, SIZE['B_v'])
        if self.follow:
            self.wait_init(vZ, vDUM)
        for ty in (0, 1):
            nk = 8 if ty else self.NA
            a(f"L_q1_{ty}:")
            self.stream_slot(ty, qrd, 4, ACC1, self.qA, self.w_items(), self.NEXTX)
            a(f"s_cmp_ge_u32 s{sN}, 16\ns_cbranch_scc1 L_q1_nox{ty}")
            self.call("F_x")
            self.probe(4)
            a(f"s_waitcnt vmcnt({nk + 2})")
            self.probe(5)
            a(f"s_branch L_q1_{ty}\nL_q1_nox{ty}:")
            self.probe(4)
            a(f"s_waitcnt vmcnt({nk})")
            self.probe(5)
            a(f"s_cmp_lt_u32 s{sN}, 17\ns_cbranch_scc1 L_q1_{ty}")
            if not ty:
                a("s_branch L_q1_last")
        a("L_q1_last:")
        self.stream_slot(0, qrd, 4, ACC1, self.qA, None, None)
        self.call("F_kv")
        a("s_waitcnt lgkmcnt(0)")
        self.q_finalize(ACC1, [self.mfma(ACC1, mt, qt, self.qA(ks, mt), ks) for ks in (0, 1) for mt, qt in self.ORDER4])
        self.kvwait()
        self.stamp(2)
        a("s_barrier")
        self.probe(0, True)
        a("s_barrier")
        self.pretouch("wo", vFA)
        self.call("F_kv")
        for i in range(144):
            a(f"v_mov_b32 v{vACC+i}, 0")
        a(f"""v_lshrrev_b32 v1, 2, v3
        v_and_b32 v7, 1, v2
        v_lshl_add_u32 v1, v7, 2, v1
        v_lshrrev_b32 v7, 1, v2
        v_lshl_add_u32 v6, v7, 4, v1
        v_lshrrev_b32 v1, 1, v1
        v_and_b32 v7, 3, v0
        v_lshlrev_b32 v7, 3, v7
        v_mul_u32_u24 v6, 384, v6
        v_add_u32 v6, v6, v7
        s_mul_i32 s{sT0}, s{sLW}, 3""")
        for nt in range(3):
            a(f"""s_add_u32 s{sT1}, s{sT0}, {nt}
            v_xor_b32 v7, s{sT1}, v1
            v_lshl_add_u32 v{vOA0+nt}, v7, 5, v6
            v_add_u32 v{vOA+nt}, {WR}, v{vOA0+nt}""")
        a(f"""s_lshl_b32 s{sT0}, s{sTY}, 4
        s_add_u32 s{sT0}, s{sT0}, s{sB}
        s_lshl_b32 s{sT0}, s{sT0}, 3
        s_add_u32 s{sT0}, s{sT0}, s{sHG}
        s_mul_i32 s{sM}, s{sT0}, {PART}
        s_add_u32 s{sM}, s{sM}, s{sOLW}
        v_lshlrev_b32 v{vST}, 4, v0""")
        if self.touch:
            a(f"s_cmp_eq_u32 s{sTY}, 0\ns_cbranch_scc1 L_kv18")
        self.kvwait()
        a(f"L_kv18:\ns_mov_b32 s{sN}, 6\nL_kvl:\ns_barrier")
        self.probe(0, True)
        a("s_barrier")
        self.probe(2)
        self.call("F_kv")
        self.probe(4)
        self.kvwait()
        self.probe(5)
        a(f"""s_sub_u32 s{sN}, s{sN}, 1
        s_cmp_lg_u32 s{sN}, 0
        s_cbranch_scc1 L_kvl
        s_barrier""")
        self.probe(0, True)
        a("s_barrier")
        self.call("F_wo")
        self.call("F_kv")
        self.kvwait()
        self.stamp(3)
        oA = lambda c, ks, mt: vFA + 4*mt + (0 if ks == 0 else 12 + 12*(c & 1))
        o_rdA = lambda c, ks, mt: self.rdA(oA(c, ks, mt), vOA, mt, 32*ks*384, (32*ks+8)*384, ("A", ks, mt))
        xa_step = [f"s_add_u32 s{sN}, s{sN}, 1\ns_add_u32 s{sT0}, s{sROT}, s{sN}\ns_and_b32 s{sT0}, s{sT0}, 3\ns_lshl_b32 s{sT0}, s{sT0}, 13",
                   f"v_add_u32 v{vXA}, s{sT0}, v{vXA0}", f"v_add_u32 v{vXA+1}, s{sT0}, v{vXA0+1}"]
        a(f"s_mov_b32 s{sN}, -1")
        for t in xa_step:
            a(t)
        ord_ = sum((o_rdA(0, ks, m) for ks in (0, 1) for m in range(3)), [])
        a(f"s_cmp_eq_u32 s{sTY}, 1\ns_cbranch_scc1 L_o2_1_0")
        for ty in (0, 1):
            for G in range(3):
                a(f"L_o2_{ty}_{G}:")
                self.stream_slot(ty, ord_, 3, vACC + 48*G, lambda ks, mt: oA(0, ks, mt), self.wo_items(), xa_step)
                self.probe(4)
                if ty:
                    a("s_waitcnt vmcnt(8)")
                else:
                    self.kvwait()
                self.probe(5)
                a(f"s_and_b32 s{sT0}, s{sN}, 3\ns_cbranch_scc1 L_o2_{ty}_{G}")
            if not ty:
                a("s_branch L_o2_done")
        a("L_o2_done:")
        self.stamp(4)
        if self.probes:
            a(f"s_add_u32 s{sSLOT}, s{sSLOT}, 3")
        a("s_barrier\ns_barrier")
        self.call("F_kv")
        a(f"""v_lshl_add_u32 v1, v0, 2, s{sRB}
        v_cmp_gt_u32 vcc, 4, v0
        s_and_saveexec_b64 {sr(sT0, 2)}, vcc
        s_cmp_lg_u32 s{sLW}, 0
        s_cbranch_scc1 L_nz
        ds_write_b32 v1, v{vZ} offset:{SYNC - WR}
        L_nz:
        s_mov_b64 exec, -1
        s_waitcnt lgkmcnt(0)""")
        self.kvwait()
        a(f"s_barrier\ns_barrier\ns_mov_b32 s{sOBUF}, s{sRB+1}")
        self.call("F_wo")
        a(f"s_waitcnt vmcnt(6)\ns_barrier\ns_barrier\ns_mov_b32 s{sOBUF}, s{sRB+2}")
        self.call("F_wo")
        self.stamp(5)
        for c in range(12):
            acc, prev = vACC + 48 * (c >> 2), vACC + 48 * ((c - 1) >> 2)
            a("s_barrier")
            self.probe(0, True)
            lg = Lg(a)
            r0 = [self.rdB(0, 0)] + o_rdA(c, 0, 0) + [self.rdB(0, q) for q in (1, 2, 3)] + o_rdA(c, 0, 1) + o_rdA(c, 0, 2) + sum((o_rdA(c, 1, m) for m in range(3)), [])
            st = sum((self.store_items(g) for g, at in enumerate((self.store0, self.store1)) if at == c), [])
            for _ in range(4 if c else 16):
                lg.issue(*r0.pop(0))
            for k, (mt, qt) in enumerate(self.ORDER3 if c else []):
                a(self.mfma(prev, mt, qt, oA(c - 1, 1, mt), 1))
                lg.issue(*r0.pop(0))
                if st and k % 4 == 3:
                    a(st.pop(0))
            self.probe(1)
            if self.probes:
                lg.q = []
            r1 = [self.rdB(1, q) for q in range(4)]
            fill = ["\n".join(f"v_add_u32 v{vOA+nt}, s{sRB + ((c+1)&3)}, v{vOA0+nt}" for nt in range(3))] + xa_step
            for k, (mt, qt) in enumerate(self.ORDER3):
                lg.wait(("A", 0, mt, 0), ("A", 0, mt, 1), ("B", 0, qt))
                a(self.mfma(acc, mt, qt, oA(c, 0, mt), 0))
                if r1:
                    lg.issue(*r1.pop(0))
                elif fill:
                    a(fill.pop(0))
                if st and k % 4 == 3:
                    a(st.pop(0))
                if k == 10:
                    lg.drain()
            for t in st:
                a(t)
            if c < 2:
                a(f"s_waitcnt vmcnt({6 - 6*c})")
            if c in (4, 8):
                self.stamp(6 + (c >> 3))
        st = self.store_items(2)
        for k, (mt, qt) in enumerate(self.ORDER3):
            a(self.mfma(vACC + 96, mt, qt, oA(11, 1, mt), 1))
            if k in (9, 11):
                a(st.pop(0))
        for t in st:
            a(t)
        self.stamp(8)
        a(f"""v_mov_b32 v1, {SYNC}
        v_mov_b32 v6, 1
        s_lshl_b32 s{sT0}, s{sTY}, 11
        s_lshl_b32 s{sT1}, s{sHG}, 2
        s_add_u32 s{sT0}, s{sT0}, s{sT1}
        s_add_u32 s{sT0}, s{sT0}, s{sFADDR}
        s_mov_b64 exec, 1
        s_waitcnt vmcnt(0)
        ds_add_rtn_u32 v7, v1, v6
        s_waitcnt lgkmcnt(0)
        v_readfirstlane_b32 s{sT1}, v7
        s_cmp_lg_u32 s{sT1}, 3
        s_cbranch_scc1 L_nf
        buffer_store_dword v6, v{vZ}, {sr(sWS)}, s{sT0} offen sc1
        L_nf:
        s_mov_b64 exec, -1""")
        self.stamp(9)
        self.probe_dump()
        self.stamp_dump(1)
        a("s_branch L_reduce")

    def at_first(self):
        a = self.a
        a("L_at:")
        self.prio_set(0)
        issued = []
        WBUFS = (WR, R1, R2)

        def ldx(n):
            if n <= 3 or n >= 9:
                self.call("F_x")
            else:
                a(f"s_lshl_b32 s{sT0}, s{sXCH}, 7\ns_add_u32 s{sT0}, s{sT0}, s{sXBASE}")
                self.x_adv()
                for i in range(2):
                    a(f"buffer_load_dwordx4 {vr(vO + (n-4)*8 + 4*i, 4)}, v{vXVO+i}, {sr(sX)}, s{sT0} offen offset:{1024*i}")
            issued.extend([("x", n)] * 2)

        def ldw(n):
            a(f"s_lshl_b32 s{sWBUF}, s{sLW}, 13\ns_add_u32 s{sWBUF}, s{sWBUF}, {WBUFS[n % 3]}")
            self.call("F_w")
            issued.extend([("w", n)] * 8)

        def prefill(k):
            l = self.lab("pf")
            self.call("F_kv")
            a(f"s_cmp_eq_u32 s{sTY}, 1\ns_cbranch_scc1 {l}")
            self.call("F_kv")
            a(f"{l}:")
            issued.extend([("kv", k)] * 8)

        def wait(*tags):
            k = max(i for i, t in enumerate(issued) if t in tags) + 1
            a(f"s_waitcnt vmcnt({min(63, len(issued) - k)})")
        if self.xtouch:
            l = self.lab("xt")
            a(f"s_cmp_eq_u32 s{sTY}, 1\ns_cbranch_scc1 {l}")
            self.other_srd(sPT, 40, SIZE['B_x'])
            a(f"""v_lshlrev_b32 v1, 7, v0
            s_add_u32 s{sT0}, s{sXBASE}, 8192
            s_add_u32 s{sT1}, s{sXBASE}, 16384
            buffer_load_dword v{vP}, v1, {sr(sPT)}, s{sXBASE} offen
            buffer_load_dword v{vP+1}, v1, {sr(sPT)}, s{sT0} offen
            s_mov_b64 exec, 0xffff
            buffer_load_dword v{vP+2}, v1, {sr(sPT)}, s{sT1} offen
            s_mov_b64 exec, -1
            {l}:""")
        a(f"s_mov_b32 s{sXN}, 0")
        ldx(0); ldw(0)
        self.early(2)
        self.late_common()
        a(f"""s_mov_b32 s{sTHR}, 0
        s_lshl_b32 s{sT0}, s{sLW}, 11
        s_add_u32 s{sT0}, s{sT0}, {XR}
        v_lshl_add_u32 v{vT}, v0, 4, s{sT0}""")
        self.early(4)
        ldx(1); ldw(1)
        wait(("x", 0), ("w", 0))
        self.early(5)
        for n in range(9):
            a("s_barrier")
            self.probe(0, True)
            if 1 <= n <= 5:
                wait(("x", n + 3))
                for i in range(2):
                    a(f"ds_write_b128 v{vT}, {vr(vO + (n-1)*8 + 4*i, 4)} offset:{((n+3)&3)*8192 + 1024*i}")
            if n == 0:
                for k in range(2, 9):
                    ldx(k)
            if n == self.prefill == 7:
                prefill(0)
            if n + 2 <= 9:
                ldw(n + 2)
            if n == self.prefill != 7:
                prefill(0)
            if n == 8:
                prefill(1)
            if n >= 6:
                ldx(n + 3)
            self.probe(4)
            if n == 2:
                self.at_setup()
            wait(*([("w", n + 1), ("x", n + 1)] + ([("kv", 0)] if n == 8 else [])))
            a("s_waitcnt lgkmcnt(0)")
            self.probe(5)
        a("s_branch L_stage")

    def at_setup(self):
        a = self.a
        a(f"""s_lshr_b32 s{sT0}, s{sLW}, 1
        s_mul_i32 s{sT0}, s{sT0}, s{sTY}
        s_lshl_b32 s{sT0}, s{sT0}, 13
        v_and_b32 v1, 31, v0
        v_lshrrev_b32 v6, 5, v0
        v_xor_b32 v7, v6, v3
        v_lshlrev_b32 v7, 4, v7
        v_lshl_add_u32 v7, v1, 8, v7
        v_add_u32 v{vKA}, s{sT0}, v7""")
        for s in range(1, 8):
            a(f"v_xor_b32 v{vKA+s}, {32*s}, v{vKA}")
        a(f"""s_lshr_b32 s{sT1}, s{sBUFSZ}, 1
        s_add_u32 s{sT0}, s{sT0}, s{sT1}
        v_lshrrev_b32 v1, 2, v3
        v_lshl_add_u32 v7, v6, 2, v1
        v_lshlrev_b32 v7, 8, v7
        v_lshl_add_u32 v7, v1, 6, v7
        v_and_b32 v1, 1, v2
        v_lshl_add_u32 v7, v1, 5, v7
        v_and_b32 v1, 3, v0
        v_lshl_add_u32 v7, v1, 3, v7
        v_add_u32 v{vVA}, s{sT0}, v7""")
        for dt in range(1, 4):
            a(f"v_xor_b32 v{vVA+dt}, {64*dt}, v{vVA}")
        a(f"""s_mov_b32 s{sRPOS}, 0
        s_mov_b32 s{sSTAGE}, 0
        s_mov_b32 s{sQBUF}, {R2 - XR}
        s_mov_b32 s{sM}, 3
        s_lshr_b32 s{sT0}, s{sLW}, 1
        s_lshl_b32 s{sT0}, s{sT0}, 14
        s_and_b32 s{sT1}, s{sLW}, 1
        s_lshl_b32 s{sT1}, s{sT1}, 12
        s_add_u32 s{sT0}, s{sT0}, s{sT1}
        s_add_u32 s{sT0}, s{sT0}, {XR}
        v_and_b32 v1, 31, v0
        v_bfe_u32 v6, v0, 1, 3
        v_lshrrev_b32 v7, 5, v0
        v_xor_b32 v6, v6, v7
        v_lshlrev_b32 v6, 4, v6
        v_lshl_add_u32 v6, v1, 7, v6
        v_add_u32 v{vH}, s{sT0}, v6""")
        for i in range(1, 4):
            a(f"v_xor_b32 v{vH+i}, {32*i}, v{vH}")
        for i in list(range(vO + 40, vO + 64)) + list(range(vNM + 1, vNM + 16)) + [vL0, vL1, 4] + list(range(vOVO, vOVO + 6)):
            a(f"v_mov_b32 v{i}, 0")

    def at_rest(self):
        a = self.a
        publish = self.follow or self.gate
        a(f"""L_stage:
        s_mov_b32 s{sTH}, 0xff7fffff
        s_mov_b32 s{sFLOOR}, 0xff7fffff
        s_mov_b32 s{sFIRST}, 0
        s_cmp_lg_u32 s{sSTAGE}, 0
        s_cbranch_scc1 L_stage_a
        v_mov_b32 v{vNM}, 0
        L_stage_a:""")
        for i in range(4):
            a(f"v_add_u32 v{vT+i}, s{sQBUF}, v{vH+i}")
        a(f"s_mov_b32 s{sN}, 0\nL_tile:\ns_barrier")
        self.probe(0, True)
        a(f"s_cmp_lg_u32 s{sN}, 0\ns_cbranch_scc1 L_tile_k")
        for s in range(8):
            a(f"ds_read_b128 {vr(vQ+4*s, 4)}, v{vT+(s&3)} offset:{8192*(s>>2)}")
        a("s_waitcnt lgkmcnt(0)\nL_tile_k:")
        lg = Lg(a)
        for s in range(8):
            lg.issue(f"ds_read_b128 {vr(vKF+4*s, 4)}, v{vKA+s}", ("K", s))
        a("s_barrier")
        vreads = [(f"ds_read_b64_tr_b16 {vr(vVF + (u*4+dt)*4 + 2*j, 2)}, v{vVA+dt} offset:{(16*u+8*j)*256}", ("V", u, dt, j))
                  for u in range(2) for dt in range(4) for j in range(2)]
        for s in range(8):
            lg.wait(("K", s))
            c = vr(vNM, 16) if s == 0 else vr(vS, 16)
            a(f"v_mfma_f32_32x32x16_bf16 {vr(vS,16)}, {vr(vKF+4*s,4)}, {vr(vQ+4*s,4)}, {c}")
            for _ in range(2):
                if len(lg.q) < 15:
                    lg.issue(*vreads.pop(0))
        for t, tag in vreads:
            lg.issue(t, tag)
        a(f"""s_add_u32 s{sRPOS}, s{sRPOS}, s{sBUFSZ}
        s_cmp_ge_u32 s{sRPOS}, 98304
        s_cselect_b32 s{sT0}, 98304, 0
        s_sub_u32 s{sRPOS}, s{sRPOS}, s{sT0}
        s_sub_u32 s{sT0}, s{sBUFSZ}, s{sT0}""")
        adv = [f"v_add_u32 v{vKA+i}, s{sT0}, v{vKA+i}" for i in range(12)]
        for t in adv[:7]:
            a(t)
        adv = adv[7:]
        t0, t1 = vT, vT + 1
        a(f"v_max3_f32 v{t0}, v{vS}, v{vS+1}, v{vS+2}\nv_max3_f32 v{t1}, v{vS+3}, v{vS+4}, v{vS+5}")
        for i in range(6, 14, 4):
            a(f"v_max3_f32 v{t0}, v{t0}, v{vS+i}, v{vS+i+1}\nv_max3_f32 v{t1}, v{t1}, v{vS+i+2}, v{vS+i+3}")
        a(f"""v_max3_f32 v{t0}, v{t0}, v{vS+14}, v{vS+15}
        v_max_f32 v{t0}, v{t0}, v{t1}
        v_cmp_lt_f32 vcc, s{sTH}, v{t0}
        s_cbranch_vccnz L_rescale
        L_tile_exp:""")
        ex = lambda u: [f"v_exp_f32 v{vS+8*u+i}, v{vS+8*u+i}" for i in range(8)]
        cv = lambda u: [f"v_cvt_pk_bf16_f32 v{vP+4*u+i}, v{vS+8*u+2*i}, v{vS+8*u+2*i+1}" for i in range(4)]
        ad = lambda u: [f"v_add_f32 v{vL0+(i&1)}, v{vL0+(i&1)}, v{vS+8*u+i}" for i in range(8)]
        pv = lambda u, dt: f"v_mfma_f32_32x32x16_bf16 {vr(vO+16*dt,16)}, {vr(vVF+(u*4+dt)*4,4)}, {vr(vP+4*u,4)}, {vr(vO+16*dt,16)}"
        e0, c0, a0 = ex(0), cv(0), ad(0)
        for t in e0[:3] + [e0[3], c0[0], e0[4], e0[5], c0[1], e0[6], e0[7], c0[2], a0[0], c0[3], a0[1], a0[2]]:
            a(t)
        e1, c1, a1 = ex(1), cv(1), ad(1)
        gaps = [e1[0:3], e1[3:6], e1[6:8] + c1[0:2], [c1[2], c1[3]] + a0[3:6]]
        for dt in range(4):
            lg.wait(("V", 0, dt, 0), ("V", 0, dt, 1))
            a(pv(0, dt))
            for t in gaps[dt]:
                a(t)
        rest = a0[6:] + a1 + adv
        for dt in range(4):
            lg.wait(("V", 1, dt, 0), ("V", 1, dt, 1))
            a(pv(1, dt))
            for _ in range(5):
                if rest: a(rest.pop(0))
        assert not rest
        self.probe(6)
        a("s_waitcnt vmcnt(0)")
        if publish:
            a(f"""s_cmp_gt_u32 s{sTY}, s{sLW}
            s_cbranch_scc0 L_tile_np
            v_mov_b32 v5, s{sM}
            s_mov_b64 exec, 1
            buffer_store_dword v5, v4, {sr(sWS)}, s{sPADDR} offen sc1
            s_mov_b64 exec, -1
            s_add_u32 s{sM}, s{sM}, 1
            L_tile_np:""")
        a(f"""s_add_u32 s{sN}, s{sN}, 1
        s_cmp_lt_u32 s{sN}, 16
        s_cbranch_scc1 L_tile""")
        a(f"""v_add_f32 v{vT+2}, v{vL0}, v{vL1}
        s_mov_b32 s{sQBUF}, {WR - XR}
        v_mov_b32 v{vT+3}, v{vT+2}
        s_add_u32 s{sSTAGE}, s{sSTAGE}, 1
        s_nop 0
        v_permlane32_swap_b32 v{vT+2}, v{vT+3}
        v_add_f32 v{vT+2}, v{vT+2}, v{vT+3}
        v_rcp_f32 v{vT+2}, v{vT+2}
        s_nop 0""")
        mul, put = [], []
        for dt in range(4):
            for ip in range(2):
                c = vO + 16*dt + 8*ip
                mul.append("\n".join(f"v_mul_f32 v{c+i}, v{c+i}, v{vT+2}" for i in range(8)))
                put.append("\n".join(f"v_cvt_pk_bf16_f32 v{c+i}, v{c+2*i}, v{c+2*i+1}" for i in range(4)) +
                           f"\nds_write_b128 v{vH + 2*(dt&1) + ip}, {vr(c,4)} offset:{8192*(dt>>1)}")
        for k in range(9):
            if k < 8: a(mul[k])
            if k: a(put[k-1])
        a(f"""s_cmp_lt_u32 s{sSTAGE}, 2
        s_cbranch_scc0 L_feed0""")
        self.late_wo()
        a(f"""s_mov_b32 s{sOCI}, 15
        s_add_u32 s{sOBASE}, s{sOBASE}, 294912
        s_waitcnt lgkmcnt(0)
        s_branch L_stage""")
        a(f"""L_feed0:
        s_mov_b32 s{sN}, 0
        s_waitcnt lgkmcnt(0)
        L_feed:
        s_add_u32 s{sT0}, s{sOCI}, s{sROT}
        s_and_b32 s{sT0}, s{sT0}, 3
        s_mul_i32 s{sT0}, s{sT0}, 73728
        s_add_u32 s{sT0}, s{sT0}, s{sOBASE}
        s_add_u32 s{sT1}, s{sRB+3}, s{sOLW}
        s_mov_b32 m0, s{sT1}
        s_barrier""")
        self.probe(0, True)
        if self.probes:
            a(f"s_mov_b32 m0, s{sT1}\ns_nop 0")
        for n in range(6):
            if n == 4:
                a(f"s_add_u32 m0, s{sT1}, 4096\ns_add_u32 s{sOCI}, s{sOCI}, 1")
            a(f"buffer_load_dwordx4 v{vOVO+n}, {sr(sWO)}, s{sT0} offen offset:{1024*(n&3)} lds")
        a(f"""s_and_b32 s{sT0}, s{sOCI}, 3
        s_cselect_b32 s{sT0}, 0, 384
        s_add_u32 s{sOBASE}, s{sOBASE}, s{sT0}
        s_mov_b32 s{sT0}, s{sRB+3}
        s_mov_b32 s{sRB+3}, s{sRB}
        s_mov_b32 s{sRB}, s{sRB+1}
        s_mov_b32 s{sRB+1}, s{sRB+2}
        s_mov_b32 s{sRB+2}, s{sT0}
        s_add_u32 s{sN}, s{sN}, 1""")
        self.probe(4)
        a(f"""s_waitcnt vmcnt(12)
        s_cmp_lt_u32 s{sN}, 9
        s_cbranch_scc1 L_feed""")
        if self.gate:
            a(f"s_or_b32 s{sT0}, s{sTY}, s{sLW}\ns_cbranch_scc1 L_gate")
            self.wait_init(4, 5)
            self.spin(f"buffer_load_dword v5, v4, {sr(sWS)}, s{sPADDR} offen sc1", 5,
                      f"v_readfirstlane_b32 s{sT1}, v5\ns_cmp_ge_u32 s{sT1}, {self.gate}")
            a("L_gate:")
        a("""s_barrier
        s_waitcnt vmcnt(6)
        s_barrier
        s_waitcnt vmcnt(0)
        s_barrier""")
        self.probe_dump()

    def reduce(self):
        a = self.a
        vL, vO0, vD, vSum = 6, 7, 40, 104
        a("L_reduce:")
        self.stamp(10)
        srd(a, sX, sOUTP, SIZE['out'])
        a(f"""s_lshl_b32 s{sN}, s{sTY}, 3
        s_add_u32 s{sN}, s{sN}, s{sHG}
        s_lshl_b32 s{sT0}, s{sWAVE}, 4
        s_add_u32 s{sN}, s{sN}, s{sT0}
        s_mul_i32 s{sN}, s{sN}, 36
        s_mul_i32 s{sM}, s{sB}, {8*PART}
        s_mul_i32 s{sOBASE}, s{sB}, {64*2304}
        v_mov_b32 v4, 0
        v_add_u32 v1, s{sN}, v0
        v_lshlrev_b32 v{vL}, 4, v1
        v_lshrrev_b32 v8, 6, v1
        v_mul_u32_u24 v9, 43, v8
        v_lshrrev_b32 v9, 8, v9
        v_mul_u32_u24 v10, 6, v9
        v_sub_u32 v10, v8, v10
        v_mul_u32_u24 v9, 96, v9
        v_lshrrev_b32 v11, 1, v10
        v_lshl_add_u32 v9, v11, 5, v9
        v_and_b32 v10, 1, v10
        v_lshlrev_b32 v10, 5, v10
        v_and_b32 v11, 15, v1
        v_add_u32 v10, v10, v11
        v_mul_u32_u24 v10, 2304, v10
        v_bfe_u32 v11, v1, 4, 2
        v_lshl_add_u32 v9, v11, 3, v9
        v_add_u32 v{vO0}, v9, v10
        v_and_b32 v8, 7, v0
        v_bfe_u32 v9, v0, 3, 1
        v_lshlrev_b32 v9, 11, v9
        v_lshl_add_u32 v8, v8, 2, v9
        v_mov_b32 v9, {SYNC + 4}
        s_mov_b32 s{sSTAGE}, 0
        s_mov_b32 s{sSPIN}, {SPIN}
        s_cmp_lg_u32 s{sWAVE}, 0
        s_cbranch_scc1 L_red""")
        self.wait_init(4, 5)
        a(f"""s_mov_b32 s{sSPIN}, {SPIN}
        L_red:
        s_cmp_lg_u32 s{sWAVE}, 0
        s_cbranch_scc1 L_red_lds
        buffer_load_dword v5, v8, {sr(sWS)}, s{sFADDR} offen sc1
        s_waitcnt vmcnt(0)
        v_cmp_ne_u32 vcc, 1, v5
        s_and_b32 s{sT0}, vcc_lo, 0xff
        s_cselect_b32 s{sT2}, 0, 1
        s_and_b32 s{sT0}, vcc_lo, 0xff00
        s_cselect_b32 s{sT0}, 0, 2
        s_or_b32 s{sT2}, s{sT2}, s{sT0}
        v_mov_b32 v10, s{sT2}
        ds_write_b32 v9, v10
        s_branch L_red_chk
        L_red_lds:
        ds_read_b32 v5, v9
        s_waitcnt lgkmcnt(0)
        v_readfirstlane_b32 s{sT2}, v5
        L_red_chk:
        s_sub_u32 s{sSPIN}, s{sSPIN}, 1
        s_cselect_b32 s{sT2}, 3, s{sT2}
        s_andn2_b32 s{sT2}, s{sT2}, s{sSTAGE}
        s_cbranch_scc1 L_red_go
        s_sleep 1
        s_branch L_red
        L_red_go:
        s_or_b32 s{sSTAGE}, s{sSTAGE}, s{sT2}
        s_mov_b32 exec_hi, 15""")
        for o in range(2):
            a(f"s_bitcmp1_b32 s{sT2}, {o}\ns_cbranch_scc0 L_red_l{o}\ns_add_u32 s{sT0}, s{sM}, {o*16*8*PART}")
            for h in range(8):
                a(f"buffer_load_dwordx4 {vr(vD+32*o+4*h,4)}, v{vL}, {sr(sWS)}, s{sT0} offen sc1\ns_add_u32 s{sT0}, s{sT0}, {PART}")
            a(f"L_red_l{o}:")
        for o in range(2):
            a(f"s_bitcmp1_b32 s{sT2}, {o}\ns_cbranch_scc0 L_red_s{o}")
            if o == 0:
                a(f"s_waitcnt vmcnt(8)\ns_cmp_eq_u32 s{sT2}, 3\ns_cbranch_scc1 L_red_w\ns_waitcnt vmcnt(0)\nL_red_w:")
            else:
                a(f"s_waitcnt vmcnt(2)\ns_cmp_eq_u32 s{sT2}, 3\ns_cbranch_scc1 L_red_x\ns_waitcnt vmcnt(0)\nL_red_x:")
            for h in range(8):
                for i in range(4):
                    r = vD + 32*o + 4*h + i
                    if h == 0:
                        a(f"v_lshlrev_b32 v{vSum+2*i}, 16, v{r}\nv_and_b32 v{vSum+2*i+1}, 0xffff0000, v{r}")
                    else:
                        a(f"""v_lshlrev_b32 v11, 16, v{r}
                        v_and_b32 v12, 0xffff0000, v{r}
                        v_add_f32 v{vSum+2*i}, v{vSum+2*i}, v11
                        v_add_f32 v{vSum+2*i+1}, v{vSum+2*i+1}, v12""")
            for i in range(4):
                a(f"v_cvt_pk_bf16_f32 v{vSum+8+4*o+i}, v{vSum+2*i}, v{vSum+2*i+1}")
            a(f"""s_add_u32 s{sT0}, s{sOBASE}, {16*2304}
            buffer_store_dwordx2 {vr(vSum+8+4*o,2)}, v{vO0}, {sr(sX)}, s{sOBASE} offen offset:{1152*o}
            buffer_store_dwordx2 {vr(vSum+10+4*o,2)}, v{vO0}, {sr(sX)}, s{sT0} offen offset:{1152*o}""")
            if o == 0:
                self.stamp(11)
            a(f"L_red_s{o}:")
        a(f"""s_mov_b64 exec, -1
        s_cmp_lg_u32 s{sSTAGE}, 3
        s_cbranch_scc1 L_red""")
        if self.stamps:
            a(f"s_waitcnt vmcnt(0)\ns_cmp_lg_u32 s{sWAVE}, 0\ns_cbranch_scc1 L_end")
            self.stamp(12)
            self.stamp_dump(0)
        a("s_endpgm")

    def at_rare(self):
        a = self.a
        t0, t1, d, al = vT, vT + 1, vT, vT + 2
        a(f"""L_rescale:
        v_mov_b32 v{t1}, v{t0}
        s_nop 1
        v_permlane32_swap_b32 v{t0}, v{t1}
        v_max3_f32 v{d}, v{t0}, v{t1}, s{sFLOOR}
        v_max_f32 v{al}, 0, v{d}
        v_exp_f32 v{al}, -v{al}
        s_mov_b32 s{sTH}, 0x41000000
        s_mov_b32 s{sFLOOR}, 0
        v_mul_f32 v{al}, s{sFIRST}, v{al}
        s_mov_b32 s{sFIRST}, 1.0""")
        for i in range(16):
            a(f"v_sub_f32 v{vS+i}, v{vS+i}, v{d}\nv_sub_f32 v{vNM+i}, v{vNM+i}, v{d}")
        a(f"v_mul_f32 v{vL0}, v{vL0}, v{al}\nv_mul_f32 v{vL1}, v{vL1}, v{al}")
        for i in range(0, 64, 2):
            a(f"v_pk_mul_f32 {vr(vO+i,2)}, {vr(vO+i,2)}, {vr(al,2)} op_sel_hi:[1,0]")
        a("s_branch L_tile_exp")

    def main(self):
        a = self.a
        self.prologue()
        a(f"s_cmp_ge_u32 s{sWAVE}, 4\ns_cbranch_scc1 L_pj\ns_branch L_at")
        self.subs()
        self.at_first()
        self.pj_first()
        self.pj_setup()
        self.at_rest()
        self.reduce()
        self.at_rare()
        self.pj_rest()
        a("L_end:\ns_endpgm")
        return a.text()


HEADER = open("cdna_kernels/" + NAME + ".s.ref").read().split("; Override launch geometry")[0]


def build(**kw):
    return HEADER + single(Gen(**kw).main(), 256, 512, LDS_BYTES, vgpr=256, accum=256, sgpr=102)


if __name__ == "__main__":
    kw = {}
    for x in sys.argv[2:]:
        k, v = x.split("=")
        kw[k] = int(v, 0)
    open(sys.argv[1], "w").write(build(**kw))
```

```python
import sys, struct
sys.path.insert(0, "tools")
from asmlib import *

KERNEL = NAME + "_kernel"
R0, R1, R2, WR, XR = 0, 32768, 65536, 98304, 131072
SYNC = WR + 24576
LDS_BYTES = 163840
PART = 73728
FLAG_OFF = 32 << 20
PROBE_OFF = 241 << 20
QSCALE = 1.4426950408889634 / 128 ** 0.5
SPIN = 1 << 16


def fbits(x):
    return "0x%08x" % struct.unpack("<I", struct.pack("<f", x))[0]


sWAVE, sLW, sHG, sTY, sB = 3, 4, 5, 6, 7
sK, sV, sX, sWQ, sWO, sWS = 8, 12, 16, 20, 24, 28
sKVOFF, sKVM0, sKVN = 32, 33, 34
sWCOL, sWCH, sWN = 35, 36, 37
sXBASE, sXCH, sXN = 38, 39, 40
sOCI, sOBASE, sROT = 41, 42, 43
sN, sM = 44, 45
sT0, sT1, sT2 = 46, 47, 48
sBUFSZ, sRINGEND, sWBUF, sOLW, sOBUF, sTHR, sKVCNT = 49, 50, 51, 52, 53, 54, 55
sTH, sFLOOR, sRPOS, sSTAGE = 56, 57, 58, 59
sRB = 60
sRET = 64
sFIRST, sQBUF, sSLOT = 66, 67, 68
sC8K = 67
sWB = 69
sBV, sPT = 72, 76
sOUTP, sDBGP = 80, 82
sTN, sLAST, sPADDR, sTBASE = 84, 85, 86, 87
sFADDR, sSPIN, sPROG = 88, 89, 90

vKVO, vVVO, vXVO, vOVO, vWVO = 8, 12, 13, 15, 21
vWA, vWA0, vQW = 23, 27, 28
vOA0, vOA, vST = 23, 26, 29
vXA0, vXA, vZ, vL7 = 30, 32, 34, 35
vFA, vFB, vACC = 36, 72, 104
vPR, vDUM = 4, 5
vKA, vVA, vL0, vL1, vT = 23, 31, 35, 36, 40
vP, vS, vNM, vQ, vKF, vVF, vO, vH = 44, 52, 68, 84, 116, 148, 180, 244


def vr(i, n):
    return f"v[{i}:{i+n-1}]"


def sr(i, n=4):
    return f"s[{i}:{i+n-1}]"


class Lg:
    def __init__(self, a):
        self.a, self.q = a, []
    def issue(self, text, tag):
        if len(self.q) == 15:
            self.wait(self.q[0])
        self.a(text)
        self.q.append(tag)
    def wait(self, *tags):
        idx = max((i for i, t in enumerate(self.q) if t in tags), default=-1)
        if idx < 0:
            return
        self.a(f"s_waitcnt lgkmcnt({len(self.q) - idx - 1})")
        self.q = self.q[idx + 1:]
    def drain(self):
        self.a("s_waitcnt lgkmcnt(0)")
        self.q = []


DEFAULTS = dict(stamps=0, probes=0, vmprobe=2, thr=63, prefill=8, store0=9, store1=10, ipf=1, touch=3, xtouch=1,
                prio=7, gate=0, thrmask=0xffffffff, help=0, lead0=3, lead1=6, kvnt=1, pace=99, dbgst=0, ahead=-1, from_=0, bthr=63, polls=1, nap=4, sdw=0, alate=0, wqat=1, diag=0, hrot=0, early_n=0, ahead0=0)


class Gen:
    def __init__(self, **kw):
        self.a = Asm()
        self.o = dict(DEFAULTS)
        assert set(kw) <= set(DEFAULTS), kw
        self.o.update(kw)
        for k, v in self.o.items():
            setattr(self, k, v)
        self.kvflag = " nt" if self.kvnt else ""
        self.follow = (self.help and self.ahead < 0) or self.pace < 99
        self.NA = 4 + bool(self.help) + bool(self.follow)
        self.uid = 0
        assert not (self.help and self.ahead < 0 and self.touch)

    def lab(self, s):
        self.uid += 1
        return f"L_{s}{self.uid}"

    def stamp(self, k):
        if self.stamps:
            self.a(f"s_memrealtime s[98:99]\ns_memtime s[100:101]\ns_waitcnt lgkmcnt(0)\nv_writelane_b32 v255, s98, {k}\nv_writelane_b32 v255, s100, {16+k}")

    def stamp_dump(self, role):
        if self.stamps:
            l = self.lab("sd")
            self.a(f"""s_cmp_lg_u32 s{sWAVE}, {4*role + self.sdw}
            s_cbranch_scc1 {l}
            s_lshl_b32 s{sT0}, s2, 8
            s_add_u32 s{sT0}, s{sT0}, {STAMP_OFF + 128*role}
            v_lshlrev_b32 v1, 2, v0
            s_mov_b64 exec, 0xffffffff
            buffer_store_dword v255, v1, {sr(sWS)}, s{sT0} offen
            s_mov_b64 exec, -1""")
            if self.dbgst:
                srd(self.a, sPT, sDBGP, 256)
                self.a(f"""s_cmp_lg_u32 s{sTY}, {self.dbgst - 1}
                s_cbranch_scc1 {l}
                v_not_b32 v11, v255
                v_cmp_eq_u32 vcc, 0, v0
                s_nop 1
                v_cndmask_b32 v11, v255, v11, vcc
                s_mov_b64 exec, {0x3ff if role else 0x1c00}
                buffer_atomic_umax v11, v1, {sr(sPT)}, 0 offen sc1
                s_mov_b64 exec, -1""")
            self.a(f"{l}:")

    def probe(self, k, first=False):
        if self.probes:
            if first:
                self.a(f"s_add_u32 s{sSLOT}, s{sSLOT}, 1")
            self.a(f"s_memtime s[98:99]\ns_getreg_b32 s100, hwreg(HW_REG_IB_STS)\ns_waitcnt lgkmcnt(0)\ns_mov_b32 m0, s{sSLOT}\nv_writelane_b32 v{248+k}, s98, m0")
            if k == self.vmprobe:
                self.a("v_writelane_b32 v251, s100, m0")

    def early(self, lane):
        if self.probes:
            self.a(f"s_memtime s[98:99]\ns_waitcnt lgkmcnt(0)\nv_writelane_b32 v255, s98, {lane}")

    def probe_dump(self):
        if self.probes:
            l = self.lab("pd")
            self.a(f"""s_cmp_lg_u32 s{sLW}, 0
            s_cbranch_scc1 {l}
            s_lshl_b32 s{sT0}, s2, 1
            s_lshr_b32 s{sT1}, s{sWAVE}, 2
            s_add_u32 s{sT0}, s{sT0}, s{sT1}
            s_lshl_b32 s{sT0}, s{sT0}, 11
            s_add_u32 s{sT0}, s{sT0}, {PROBE_OFF}
            v_lshlrev_b32 v1, 2, v0""")
            for k in range(8):
                self.a(f"buffer_store_dword v{248+k}, v1, {sr(sWS)}, s{sT0} offen offset:{256*k}")
            self.a(f"{l}:")

    def prio_set(self, bit, off=None):
        if self.prio >> bit & 1:
            self.a("s_setprio 1")
        elif off is not None and self.prio >> off & 1:
            self.a("s_setprio 0")

    def call(self, name):
        self.a(f"s_call_b64 {sr(sRET, 2)}, {name}")

    def ret(self):
        self.a(f"s_setpc_b64 {sr(sRET, 2)}")

    def spread(self, base, fill, start=0):
        n, m = len(base) - start, len(fill)
        j = 0
        for k, t in enumerate(base):
            while k >= start and j < m and j * n <= (k - start) * m:
                self.a(fill[j]); j += 1
            if callable(t): t()
            else: self.a(t)
        for t in fill[j:]:
            self.a(t)

    def other_srd(self, dst, karg_off, size):
        self.a(f"""s_load_dwordx2 {sr(dst, 2)}, s[0:1], {karg_off}
        s_waitcnt lgkmcnt(0)
        s_and_b32 s{dst+1}, s{dst+1}, 0xffff
        s_mov_b32 s{dst+2}, {size}
        s_mov_b32 s{dst+3}, 0x20000""")

    def spin(self, load, vdst, done):
        l, e = self.lab("sp"), self.lab("se")
        self.a(f"""s_mov_b32 s{sSPIN}, {SPIN}
        {l}:
        {load}
        s_waitcnt vmcnt(0) lgkmcnt(0)
        {done}
        s_cbranch_scc1 {e}
        s_sleep 1
        s_sub_u32 s{sSPIN}, s{sSPIN}, 1
        s_cmp_lg_u32 s{sSPIN}, 0
        s_cbranch_scc1 {l}
        {e}:""")

    def wait_init(self, vz, vd):
        srd(self.a, sPT, sDBGP, 256)
        self.a(f"s_lshl_b32 s{sT2}, s{sB}, 2")
        self.spin(f"buffer_load_dword v{vd}, v{vz}, {sr(sPT)}, s{sT2} offen offset:{128*bool(self.dbgst)} sc1", vd,
                  f"v_readfirstlane_b32 s{sT1}, v{vd}\ns_cmp_ge_u32 s{sT1}, 16")

    def prologue(self):
        a = self.a
        a("s_cmp_ge_u32 s2, 256\ns_cbranch_scc1 L_end")
        if self.probes or self.stamps:
            a("s_memtime s[96:97]" if self.probes else "s_memrealtime s[96:97]")
        a(f"""s_load_dwordx2 s[68:69], s[0:1], 96
        s_load_dwordx4 {sr(sOUTP)}, s[0:1], 80
        s_and_b32 s{sHG}, s2, 7
        s_lshr_b32 s{sTY}, s2, 3
        s_and_b32 s{sTY}, s{sTY}, 1
        s_lshr_b32 s{sB}, s2, 4
        s_mul_i32 s{sT0}, s{sTY}, 40
        s_add_u32 s0, s0, s{sT0}
        s_addc_u32 s1, s1, 0
        s_load_dwordx8 s[56:63], s[0:1], 0
        s_load_dwordx2 s[70:71], s[0:1], 32""")
        if self.ipf:
            a(f"""s_getpc_b64 {sr(sT0, 2)}
            L_pc:
            s_sub_u32 s{sT0}, s{sT0}, L_pc-{KERNEL}
            s_subb_u32 s{sT0+1}, s{sT0+1}, 0
            s_and_b32 s{sT2}, s2, 0xf8
            v_lshrrev_b32 v1, 6, v0
            v_add_lshl_u32 v6, v1, s{sT2}, 7
            v_min_u32 v6, L_end-{KERNEL}, v6
            v_mov_b32 v7, s{sT0+1}
            v_add_co_u32 v6, vcc, s{sT0}, v6
            s_nop 1
            v_addc_co_u32 v7, vcc, 0, v7, vcc
            global_load_dword v{vFA+32}, v[6:7], off""")
        a(f"""v_lshrrev_b32 v1, 6, v0
        v_and_b32 v0, 63, v0
        v_readfirstlane_b32 s{sWAVE}, v1
        v_lshrrev_b32 v2, 4, v0
        v_and_b32 v3, 15, v0
        s_and_b32 s{sLW}, s{sWAVE}, 3
        v_lshrrev_b32 v4, 3, v0
        v_and_b32 v5, 7, v0
        v_mul_u32_u24 v7, 1152, v4""")
        for n in range(2):
            a(f"""v_add_u32 v6, {4*n}, v2
            v_xor_b32 v6, v6, v5
            v_lshl_add_u32 v6, v6, 4, v7
            v_add_u32 v{vXVO+n}, {n*(8*1152-1024)}, v6""")
        a(f"""v_and_b32 v1, 1, v2
        v_lshlrev_b32 v1, 1, v1
        v_xor_b32 v1, v1, v5
        v_lshlrev_b32 v1, 4, v1
        v_lshl_add_u32 v{vWVO}, v4, 13, v1
        v_xor_b32 v{vWVO+1}, 64, v{vWVO}
        s_lshl_b32 s{sWCOL}, s{sHG}, 10
        s_lshl_b32 s{sT0}, s{sLW}, 7
        s_add_u32 s{sWCOL}, s{sWCOL}, s{sT0}
        s_mov_b32 s{sWN}, 0
        s_mul_i32 s{sT0}, s{sHG}, {self.hrot}
        s_add_u32 s{sT0}, s{sT0}, s{sB}
        s_mul_i32 s{sT1}, s{sT0}, 57
        s_lshr_b32 s{sT1}, s{sT1}, 9
        s_mul_i32 s{sT1}, s{sT1}, 9
        s_sub_u32 s{sXCH}, s{sT0}, s{sT1}
        s_mov_b32 s{sWCH}, s{sXCH}
        s_mul_i32 s{sXBASE}, s{sB}, 73728
        s_mul_i32 s{sT0}, s{sLW}, 18432
        s_add_u32 s{sXBASE}, s{sXBASE}, s{sT0}
        s_lshl_b32 s{sT0}, s{sB}, 3
        s_add_u32 s{sT0}, s{sT0}, s{sHG}
        s_lshl_b32 s{sPADDR}, s{sT0}, 7
        s_add_u32 s{sPADDR}, s{sPADDR}, {FLAG_OFF + 4096}
        s_lshl_b32 s{sFADDR}, s{sB}, 7
        s_add_u32 s{sFADDR}, s{sFADDR}, {FLAG_OFF}
        s_waitcnt lgkmcnt(0)""")
        srd(a, sX, 56, SIZE['A_x'])
        srd(a, sWQ, 62, SIZE['A_wq'])
        a(f"""s_mov_b32 s{sK}, s58
        s_and_b32 s{sK+1}, s59, 0xffff
        s_lshl_b32 s{sK+2}, {SIZE['A_k']}, s{sTY}
        s_mov_b32 s{sK+3}, 0x20000
        s_mov_b32 s{sV}, s60
        s_and_b32 s{sV+1}, s61, 0xffff
        s_mov_b32 s{sV+2}, s{sK+2}
        s_mov_b32 s{sV+3}, 0x20000""")
        srd(a, sWO, 70, SIZE['A_wo'])
        srd(a, sWS, 68, SIZE['ws'])
        srd(a, sBV, 60, 0)
        if self.probes or self.stamps:
            a(f"s_mov_b32 s{sSLOT}, -1")
            for k in range(8):
                a(f"v_mov_b32 v{248+k}, 0")
            a("v_writelane_b32 v255, s96, 0")
            self.early(1)

    def late_common(self):
        a = self.a
        a(f"""s_lshl_b32 s{sBUFSZ}, 16384, s{sTY}
        s_lshl_b32 s{sT0}, 2048, s{sTY}
        s_mul_i32 s{sKVM0}, s{sT0}, s{sLW}
        s_add_u32 s{sRINGEND}, s{sKVM0}, 98304
        s_lshl_b32 s{sT0}, s{sB}, 3
        s_add_u32 s{sT0}, s{sT0}, s{sHG}
        s_lshl_b32 s{sTBASE}, s{sT0}, 19
        s_add_u32 s{sT1}, s{sTY}, 18
        s_lshl_b32 s{sKVOFF}, s{sT0}, s{sT1}
        s_lshr_b32 s{sT0}, s{sLW}, 1
        s_lshl_b32 s{sT0}, s{sT0}, 17
        s_and_b32 s{sT1}, s{sLW}, 1
        s_lshl_b32 s{sT2}, s{sT1}, 12
        s_add_u32 s{sT0}, s{sT0}, s{sT2}
        s_add_u32 s{sTBASE}, s{sTBASE}, s{sT0}
        s_cmp_eq_u32 s{sTY}, 1
        s_cselect_b32 s{sT0}, s{sT0}, s{sKVM0}
        s_add_u32 s{sKVOFF}, s{sKVOFF}, s{sT0}
        s_lshl_b32 s{sT1}, s{sT1}, 3
        s_cmp_eq_u32 s{sTY}, 1
        s_cselect_b32 s{sT1}, 0, s{sT1}
        s_mov_b32 s{sKVN}, 0
        v_lshlrev_b32 v6, 8, v2
        v_add_u32 v7, s{sT1}, v2""")
        for n in range(4):
            a(f"""v_add_u32 v1, {4*n}, v7
            v_xor_b32 v1, v1, v3
            v_and_b32 v1, 15, v1
            v_lshl_add_u32 v{vKVO+n}, v1, 4, v6""")
        a(f"""v_lshlrev_b32 v1, 2, v2
        v_xor_b32 v1, v1, v3
        v_lshl_add_u32 v{vVVO}, v1, 4, v6""")

    def late_wo(self):
        a = self.a
        for n in range(6):
            a(f"""v_add_u32 v1, {64*n}, v0
            v_mul_u32_u24 v6, 2731, v1
            v_lshrrev_b32 v6, 16, v6
            v_mul_u32_u24 v7, 24, v6
            v_sub_u32 v1, v1, v7
            v_and_b32 v7, 6, v6
            v_xor_b32 v1, v1, v7
            v_lshlrev_b32 v1, 4, v1
            v_mul_u32_u24 v6, 1152, v6
            v_add_u32 v1, v1, v6
            v_subrev_u32 v{vOVO+n}, {1024*(n&3)}, v1""")
        a(f"""s_lshl_b32 s{sT0}, s{sHG}, 9
        s_lshl_b32 s{sT1}, s{sLW}, 4
        s_add_u32 s{sT0}, s{sT0}, s{sT1}
        s_mul_i32 s{sOBASE}, s{sT0}, 1152
        s_and_b32 s{sROT}, s{sB}, 3
        s_mul_i32 s{sOLW}, s{sLW}, 6144
        s_cmp_eq_u32 s{sTY}, 1
        s_mov_b32 s{sRB}, {WR}
        s_mov_b32 s{sRB+1}, {R2}
        s_cselect_b32 s{sRB+2}, {R0}, {R1}
        s_cselect_b32 s{sRB+3}, {R1}, {R0}""")

    def x_adv(self):
        self.a(f"""s_add_u32 s{sXN}, s{sXN}, 1
        s_add_u32 s{sXCH}, s{sXCH}, 1
        s_cmp_eq_u32 s{sXCH}, 9
        s_cselect_b32 s{sXCH}, 0, s{sXCH}""")

    def kv_items_b(self):
        f = self.kvflag
        items = []
        for n in range(8):
            t = ""
            if n == 0:
                t += f"s_mov_b32 m0, s{sKVM0}\ns_cmp_eq_u32 s{sKVN}, 15\n"
            if n == 4:
                t += f"s_add_u32 m0, s{sKVM0}, 16384\ns_add_u32 s{sKVM0}, s{sKVM0}, 32768\n"
            if self.bthr < 63:
                t += f"s_waitcnt vmcnt({self.bthr - 1})\n"
            if n < 4:
                t += f"buffer_load_dwordx4 v{vKVO+n}, {sr(sK)}, s{sKVOFF} offen offset:{1024*n}{f} lds\n"
            else:
                t += f"buffer_load_dwordx4 v{vVVO}, {sr(sV)}, s{sKVOFF} offen offset:{1024*(n-4)}{f} lds\n"
            if n == 0:
                t += f"s_cselect_b32 s{sKVCNT}, 131072, 0\ns_add_u32 s{sKVCNT}, s{sKVCNT}, 8192\ns_add_u32 s{sKVN}, s{sKVN}, 1\n"
            if n == 7:
                t += f"""s_add_u32 s{sKVOFF}, s{sKVOFF}, s{sKVCNT}
                s_cmp_ge_u32 s{sKVM0}, s{sRINGEND}
                s_cselect_b32 s{sKVCNT}, 98304, 0
                s_sub_u32 s{sKVM0}, s{sKVM0}, s{sKVCNT}"""
            items.append(t)
        return items

    def wo_items(self):
        items = []
        for n in range(6):
            t = ""
            if n == 0:
                t += f"""s_add_u32 s{sT0}, s{sOCI}, s{sROT}
                s_and_b32 s{sT0}, s{sT0}, 3
                s_mul_i32 s{sT0}, s{sT0}, 73728
                s_add_u32 s{sT1}, s{sOBUF}, s{sOLW}
                s_mov_b32 m0, s{sT1}
                s_add_u32 s{sT0}, s{sT0}, s{sOBASE}\n"""
            if n == 4:
                t += f"s_add_u32 m0, s{sT1}, 4096\ns_add_u32 s{sOCI}, s{sOCI}, 1\n"
            t += f"buffer_load_dwordx4 v{vOVO+n}, {sr(sWO)}, s{sT0} offen offset:{1024*(n&3)} lds\n"
            if n == 5:
                t += f"""s_and_b32 s{sT0}, s{sOCI}, 3
                s_cselect_b32 s{sT0}, 0, 384
                s_add_u32 s{sOBASE}, s{sOBASE}, s{sT0}
                s_cmp_eq_u32 s{sOCI}, 12
                s_cselect_b32 s{sT0}, {294912-1152}, 0
                s_add_u32 s{sOBASE}, s{sOBASE}, s{sT0}"""
            items.append(t)
        return items

    def w_items(self):
        items = []
        for n in range(8):
            if n == 0:
                t = f"s_lshl_b32 s{sT0}, s{sWCH}, 19\ns_add_u32 s{sT0}, s{sT0}, s{sWCOL}\ns_mov_b32 m0, s{sWBUF}\ns_add_u32 s{sWCH}, s{sWCH}, 1\n"
            elif n == 4:
                t = f"s_add_u32 m0, s{sWBUF}, 4096\ns_add_u32 s{sT0}, s{sT0}, {65536+3072}\n"
            else:
                t = f"s_add_u32 s{sT0}, s{sT0}, {65536-1024}\n"
            t += f"buffer_load_dwordx4 v{vWVO+(n&1)}, {sr(sWQ)}, s{sT0} offen offset:{1024*(n&3)} lds\n"
            if n == 7:
                t += f"""s_cmp_eq_u32 s{sWCH}, 9
                s_cselect_b32 s{sWCH}, 0, s{sWCH}
                s_add_u32 s{sWN}, s{sWN}, 1
                s_cmp_eq_u32 s{sWN}, 9
                s_cselect_b32 s{sT1}, 512, 0
                s_add_u32 s{sWCOL}, s{sWCOL}, s{sT1}"""
            items.append(t)
        return items

    def subs(self):
        a = self.a
        f = self.kvflag
        a(f"""F_x:
        s_lshl_b32 s{sT0}, s{sXCH}, 7
        s_add_u32 s{sT0}, s{sT0}, s{sXBASE}
        s_and_b32 s{sT1}, s{sXN}, 3
        s_lshl_b32 s{sT1}, s{sT1}, 2
        s_add_u32 s{sT1}, s{sT1}, s{sLW}
        s_lshl_b32 s{sT1}, s{sT1}, 11
        s_add_u32 m0, s{sT1}, {XR}""")
        self.x_adv()
        for n in range(2):
            a(f"buffer_load_dwordx4 v{vXVO+n}, {sr(sX)}, s{sT0} offen offset:{1024*n} lds")
        self.ret()
        a("F_w:")
        for t in self.w_items():
            a(t)
        self.ret()
        a(f"""F_kv:
        s_cmp_eq_u32 s{sTY}, 0
        s_cbranch_scc1 F_kv_a""")
        for t in self.kv_items_b():
            a(t)
        a(f"s_mov_b32 s{sKVCNT}, 8")
        self.ret()
        a(f"""F_kv_a:
        s_mov_b32 s{sKVCNT}, 0
        s_cmp_ge_u32 s{sKVN}, 32
        s_cbranch_scc1 F_kv_ret""")
        if self.follow:
            a(f"""s_cmp_eq_u32 s{sTHR}, 0
            s_cbranch_scc1 F_kv_go
            s_waitcnt vmcnt(0)
            v_readfirstlane_b32 s{sPROG}, v{vPR}""")
            if self.pace < 99:
                check = f"s_add_u32 s{sT1}, s{sPROG}, {self.pace}\ns_cmp_ge_u32 s{sT1}, s{sKVN}"
                a(check + "\ns_cbranch_scc1 F_kv_go")
                self.spin(f"buffer_load_dword v{vPR}, v{vZ}, {sr(sWS)}, s{sPADDR} offen sc1", vPR,
                          f"v_readfirstlane_b32 s{sPROG}, v{vPR}\n" + check)
            a("F_kv_go:")
        a(f"""s_mov_b32 m0, s{sKVM0}
        s_mov_b32 s{sKVCNT}, 4""")
        if self.thr < 63:
            a(f"s_lshr_b32 s{sT1}, {self.thrmask}, s{sKVN}\ns_and_b32 s{sT1}, s{sT1}, s{sTHR}")
        for n in range(4):
            if self.thr < 63:
                l = self.lab("thr")
                a(f"s_cmp_eq_u32 s{sT1}, 0\ns_cbranch_scc1 {l}\ns_waitcnt vmcnt({self.thr-1})\n{l}:")
            if n == 2:
                a(f"s_add_u32 m0, s{sKVM0}, 8192\ns_add_u32 s{sKVN}, s{sKVN}, 1")
            if n < 2:
                a(f"buffer_load_dwordx4 v{vKVO+n}, {sr(sK)}, s{sKVOFF} offen offset:{1024*n}{f} lds")
            else:
                a(f"buffer_load_dwordx4 v{vVVO}, {sr(sV)}, s{sKVOFF} offen offset:{1024*(n-2)}{f} lds")
        a(f"""s_add_u32 s{sKVOFF}, s{sKVOFF}, 8192
        s_add_u32 s{sKVM0}, s{sKVM0}, 16384
        s_cmp_ge_u32 s{sKVM0}, s{sRINGEND}
        s_cselect_b32 s{sT0}, 98304, 0
        s_sub_u32 s{sKVM0}, s{sKVM0}, s{sT0}""")
        if self.follow or self.help:
            a(f"s_cmp_eq_u32 s{sTHR}, 0\ns_cbranch_scc1 F_kv_ret")
        if self.help:
            if self.ahead < 0:
                a(f"""s_add_u32 s{sT1}, s{sPROG}, {self.lead0}
                s_max_u32 s{sTN}, s{sTN}, s{sT1}
                s_add_u32 s{sT1}, s{sPROG}, {self.lead1}
                s_min_u32 s{sT1}, s{sT1}, 31
                s_cmp_le_u32 s{sTN}, s{sT1}
                s_cselect_b32 s{sLAST}, s{sTN}, s{sLAST}
                s_addc_u32 s{sTN}, s{sTN}, 0""")
            else:
                a(f"""s_cmp_lt_u32 s{sKVN}, {self.early_n}
                s_cselect_b32 s{sLAST}, {self.ahead0}, {self.ahead}
                s_add_u32 s{sLAST}, s{sKVN}, s{sLAST}
                s_min_u32 s{sLAST}, s{sLAST}, 31
                s_max_u32 s{sLAST}, s{sLAST}, {self.from_}""")
            a(f"""s_and_b32 s{sT0}, s{sLAST}, 15
            s_lshl_b32 s{sT0}, s{sT0}, 13
            s_lshr_b32 s{sT1}, s{sLAST}, 4
            s_lshl_b32 s{sT1}, s{sT1}, 18
            s_add_u32 s{sT0}, s{sT0}, s{sT1}
            s_add_u32 s{sT0}, s{sT0}, s{sTBASE}
            s_mov_b64 exec, {(1 << self.help) - 1}
            buffer_load_dword v{vDUM}, v{vL7}, {sr(sBV)}, s{sT0} offen offset:{4096 - 128*self.help}
            s_mov_b64 exec, -1""")
        if self.follow:
            a(f"buffer_load_dword v{vPR}, v{vZ}, {sr(sWS)}, s{sPADDR} offen sc1")
        a("F_kv_ret:")
        self.ret()
        a("F_wo:")
        for t in self.wo_items():
            a(t)
        self.ret()

    def kvwait(self):
        l = self.lab("kw")
        self.a(f"""s_waitcnt vmcnt(8)
        s_cmp_eq_u32 s{sKVCNT}, 8
        s_cbranch_scc1 {l}
        s_waitcnt vmcnt({self.NA})
        s_cmp_eq_u32 s{sKVCNT}, 4
        s_cbranch_scc1 {l}
        s_waitcnt vmcnt(0)
        {l}:""")

    def pretouch_wq(self, dst):
        if not self.touch:
            return
        a = self.a
        l = self.lab("pt")
        a(f"s_cmp_eq_u32 s{sTY}, 1\ns_cbranch_scc1 {l}")
        self.other_srd(sPT, 64, SIZE['B_wq'])
        a(f"""s_lshl_b32 s{sT0}, s{sB}, 2
        s_add_u32 s{sT0}, s{sT0}, s{sLW}
        s_mul_i32 s{sT0}, s{sT0}, {9*8192}
        s_lshl_b32 s{sT1}, s{sHG}, 10
        s_add_u32 s{sT0}, s{sT0}, s{sT1}
        v_lshrrev_b32 v1, 2, v0
        v_and_b32 v6, 3, v0
        v_lshlrev_b32 v6, 7, v6
        v_lshl_add_u32 v1, v1, 13, v6
        s_mov_b32 exec_hi, 15
        buffer_load_dword v{dst}, v1, {sr(sPT)}, s{sT0} offen offset:512""")
        if self.touch & 2:
            a(f"buffer_load_dword v{dst+1}, v1, {sr(sWQ)}, s{sT0} offen offset:512")
        a(f"s_mov_b64 exec, -1\n{l}:")

    def pretouch_wo(self, first):
        if not self.touch:
            return
        a = self.a
        l = self.lab("pt")
        a(f"s_cmp_eq_u32 s{sTY}, 1\ns_cbranch_scc1 {l}")
        if first:
            self.other_srd(sPT, 72, SIZE['B_wo'])
            a(f"""s_lshl_b32 s{sT0}, s{sB}, 2
            s_add_u32 s{sT0}, s{sT0}, s{sLW}
            s_mul_i32 s{sT0}, s{sT0}, 9216
            s_mul_i32 s{sTN}, s{sHG}, 589824
            s_add_u32 s{sTN}, s{sTN}, s{sT0}""")
        else:
            a(f"s_mov_b64 exec, 0xfff\nbuffer_load_dword v{vFA}, v{vL7}, {sr(sPT)}, s{sTN} offen")
            if self.touch & 2:
                a(f"buffer_load_dword v{vFA+1}, v{vL7}, {sr(sWO)}, s{sTN} offen")
            a(f"s_mov_b64 exec, -1\ns_add_u32 s{sTN}, s{sTN}, 1536")
        a(f"{l}:")

    def rdA(self, reg, areg, mt, off0, off1, tag):
        return [(f"ds_read_b64_tr_b16 {vr(reg + 2*j, 2)}, v{areg+mt} offset:{o}", tag + (j,)) for j, o in enumerate((off0, off1))]

    def rdB(self, ks, qt):
        return (f"ds_read_b128 {vr(vFB + (ks*4+qt)*4, 4)}, v{vXA+ks} offset:{2048*qt}", ("B", ks, qt))

    def mfma(self, acc, mt, qt, areg, ks):
        c = vr(acc + (mt*4+qt)*4, 4)
        return f"v_mfma_f32_16x16x32_bf16 {c}, {vr(areg, 4)}, {vr(vFB + (ks*4+qt)*4, 4)}, {c}"

    def qA(self, ks, mt):
        return vFA + (ks*4 + mt)*4

    def q_rdA(self, ks, mt):
        return self.rdA(self.qA(ks, mt), vWA, mt, 32*ks*128, (32*ks+4)*128, ("A", ks, mt))

    def q_finalize(self, acc, pending):
        a = self.a
        a(f"s_mov_b32 s{sT2}, {fbits(QSCALE)}")
        mul, cvt, put = [], [], []
        for mt in range(4):
            for qt in range(4):
                c = acc + (mt*4+qt)*4
                mul.append("\n".join(f"v_mul_f32 v{c+r}, s{sT2}, v{c+r}" for r in range(4)))
                cvt.append(f"v_cvt_pk_bf16_f32 v{c}, v{c}, v{c+1}\nv_cvt_pk_bf16_f32 v{c+1}, v{c+2}, v{c+3}")
                put.append((f"v_xor_b32 v1, {32*mt}, v{vQW}\n" if qt == 0 else "") + f"ds_write_b64 v1, {vr(c,2)} offset:{2048*qt}")
        work = ["\n".join(([put[k-2]] if 2 <= k < 18 else []) + ([cvt[k-1]] if 1 <= k < 17 else []) + ([mul[k]] if k < 16 else [])) for k in range(18)]
        lead = len(pending) - 16 + 5
        for k, t in enumerate(pending):
            a(t)
            if k + 1 == lead:
                a("s_nop 3")
            if k + 1 >= lead:
                a(work.pop(0))
        for t in work:
            a(t)
        a("s_waitcnt lgkmcnt(0)")

    ORDER4 = [(mt, qt) for mt in range(4) for qt in range(4)]
    ORDER3 = [(mt, qt) for mt in range(3) for qt in range(4)]
    NEXTX = [f"s_add_u32 s{sN}, s{sN}, 1\ns_and_b32 s{sT0}, s{sN}, 3\ns_lshl_b32 s{sT0}, s{sT0}, 13",
             f"v_add_u32 v{vXA}, s{sT0}, v{vXA0}", f"v_add_u32 v{vXA+1}, s{sT0}, v{vXA0+1}"]

    def pj_first(self):
        a = self.a
        ACC0 = vACC
        a("L_pj:")
        a(f"""v_mov_b32 v{vZ}, 0
        v_lshlrev_b32 v{vL7}, 7, v0
        s_cmp_lg_u32 s{sLW}, 0
        s_cbranch_scc1 L_pj_a
        s_lshl_b32 s{sT0}, s{sTY}, 11
        s_lshl_b32 s{sT1}, s{sHG}, 2
        s_add_u32 s{sT0}, s{sT0}, s{sT1}
        s_add_u32 s{sT0}, s{sT0}, s{sFADDR}
        s_cmp_eq_u32 s{sTY}, 1
        s_cselect_b32 s{sT1}, s{sPADDR}, s{sT0}
        s_mov_b64 exec, 1
        buffer_store_dword v{vZ}, v{vZ}, {sr(sWS)}, s{sT0} offen sc1
        buffer_store_dword v{vZ}, v{vZ}, {sr(sWS)}, s{sT1} offen sc1
        s_mov_b64 exec, -1
        L_pj_a:""")
        self.early(6)
        for i in list(range(vKVO, vXVO)) + list(range(vOVO, vWVO)):
            a(f"v_mov_b32 v{i}, 0")
        a(f"""s_lshl_b32 s{sT2}, s{sLW}, 13
        s_mov_b32 s{sWB}, {R1}
        s_mov_b32 s{sWB+1}, {R2}
        s_mov_b32 s{sWB+2}, {WR}
        v_lshrrev_b32 v1, 2, v3
        v_lshl_add_u32 v6, v2, 3, v1
        v_lshrrev_b32 v1, 1, v1
        v_and_b32 v7, 1, v2
        v_lshl_or_b32 v1, v7, 1, v1
        v_and_b32 v7, 3, v0
        v_lshlrev_b32 v7, 3, v7
        v_lshl_add_u32 v6, v6, 7, v7
        v_lshl_add_u32 v6, v1, 5, v6
        v_add_u32 v{vWA0}, s{sT2}, v6
        v_add_u32 v{vWA}, {WR}, v{vWA0}""")
        for mt in range(1, 4):
            a(f"v_xor_b32 v{vWA+mt}, {32*mt}, v{vWA}")
        a(f"""v_lshrrev_b32 v1, 1, v3
        v_xor_b32 v6, v1, v2
        v_lshlrev_b32 v6, 4, v6
        v_lshl_add_u32 v6, v3, 7, v6
        v_add_u32 v{vXA0}, {XR}, v6
        v_xor_b32 v{vXA0+1}, 64, v{vXA0}
        v_mov_b32 v{vXA}, v{vXA0}
        v_mov_b32 v{vXA+1}, v{vXA0+1}
        v_lshrrev_b32 v6, 1, v2
        v_xor_b32 v6, v6, v1
        v_lshlrev_b32 v6, 4, v6
        v_lshl_add_u32 v6, v3, 7, v6
        v_and_b32 v7, 1, v2
        v_lshl_add_u32 v6, v7, 3, v6
        v_add_u32 v6, s{sT2}, v6
        v_add_u32 v{vQW}, {R2}, v6""")
        for i in range(64):
            a(f"v_mov_b32 v{ACC0+i}, 0")
        for i in range(16):
            a(f"v_mov_b32 v{vFA+16+i}, 0\nv_mov_b32 v{vFB+16+i}, 0")
        self.early(4)
        srd(a, sPT, sDBGP, 256)
        a(f"""v_mov_b32 v1, 1
        s_lshl_b32 s{sT0}, s{sB}, 2
        s_mov_b32 s{sN}, 0
        s_waitcnt vmcnt(0)
        s_cmp_lg_u32 s{sLW}, 0
        s_cbranch_scc1 L_q0
        s_mov_b64 exec, 1
        buffer_atomic_add v1, v{vZ}, {sr(sPT)}, s{sT0} offen offset:{128*bool(self.dbgst)} sc1
        s_mov_b64 exec, -1""")
        nextbuf = [f"v_add_u32 v{vWA}, s{sWB}, v{vWA0}\ns_mov_b32 s{sT0}, s{sWB}", f"v_xor_b32 v{vWA+1}, 32, v{vWA}\ns_mov_b32 s{sWB}, s{sWB+1}",
                   f"v_xor_b32 v{vWA+2}, 64, v{vWA}\ns_mov_b32 s{sWB+1}, s{sWB+2}", f"v_xor_b32 v{vWA+3}, 96, v{vWA}\ns_mov_b32 s{sWB+2}, s{sT0}"]
        a("L_q0:\ns_barrier")
        self.probe(0, True)
        lg = Lg(a)
        rd = lambda ks: [self.rdB(ks, 0)] + self.q_rdA(ks, 0) + [self.rdB(ks, q) for q in (1, 2, 3)] + sum((self.q_rdA(ks, m) for m in (1, 2, 3)), [])
        r0 = rd(0)
        plan = {k: [] for k in range(-1, 32)}
        for i, x in enumerate(r0):
            plan[i // 2 - 1].append(x)
        for pos, m in ((6, 0), (8, 1), (12, 2), (16, 3)):
            for j, x in enumerate(self.q_rdA(1, m)):
                plan[pos + j].append(x)
        for q in range(4):
            plan[18 + q].append(self.rdB(1, q))
        tail = nextbuf + self.NEXTX
        for x in plan[-1]:
            lg.issue(*x)
        for k in range(32):
            mt, qt = self.ORDER4[k & 15]
            if k == 16:
                lg.wait(*[tag for _, tag in r0])
            a(self.mfma(ACC0, mt, qt, self.qA(1 - (k >> 4), mt), 1 - (k >> 4)))
            for x in plan[k]:
                lg.issue(*x)
            if k >= 22 and tail:
                a(tail.pop(0))
            if k == 30:
                lg.drain()
                a(f"s_cmp_eq_u32 s{sN}, 1")
        self.probe(1)
        a("s_cbranch_scc1 L_q0_setup")
        if self.wqat > 1:
            a(f"s_cmp_eq_u32 s{sN}, {self.wqat}\ns_cbranch_scc1 L_q0_touch")
        a(f"s_cmp_lt_u32 s{sN}, 9\ns_cbranch_scc1 L_q0")
        self.early(10)
        self.q_finalize(ACC0, [self.mfma(ACC0, mt, qt, self.qA(1, mt), 1) for mt, qt in self.ORDER4])
        self.early(12)
        a(f"v_xor_b32 v{vQW}, {R2 ^ WR}, v{vQW}")
        self.stamp(1)
        a("s_branch L_pj_rest")

    def pj_setup(self):
        a = self.a
        a("L_q0_setup:")
        self.late_common()
        self.late_wo()
        a(f"""s_cmp_eq_u32 s{sTY}, 1
        s_cselect_b32 s{sKVN}, 2, 4
        s_lshl_b32 s{sT0}, s{sKVN}, 13
        s_add_u32 s{sKVOFF}, s{sKVOFF}, s{sT0}
        s_add_u32 s{sKVM0}, s{sKVM0}, {R2}
        s_mov_b32 s{sTHR}, 1
        s_add_u32 s{sWCOL}, s{sWCOL}, 512
        s_mov_b32 s{sWN}, 10
        s_add_u32 s{sWCH}, s{sWCH}, 1
        s_cmp_eq_u32 s{sWCH}, 9
        s_cselect_b32 s{sWCH}, 0, s{sWCH}
        s_lshl_b32 s{sT2}, s{sLW}, 13
        s_add_u32 s{sWBUF}, s{sT2}, {WR}
        s_mov_b32 s{sXN}, 12
        s_add_u32 s{sXCH}, s{sXCH}, 3
        s_sub_u32 s{sT0}, s{sXCH}, 9
        s_cmp_ge_u32 s{sXCH}, 9
        s_cselect_b32 s{sXCH}, s{sT0}, s{sXCH}
        s_mov_b32 s{sOCI}, 0
        s_mov_b32 s{sOBUF}, {WR}
        s_mov_b32 s{sTN}, 0
        s_mov_b32 s{sLAST}, 2
        v_mov_b32 v{vPR}, 0""")
        for i in range(64):
            a(f"v_mov_b32 v{vACC+64+i}, 0")
        if self.wqat > 1:
            a("s_branch L_q0\nL_q0_touch:")
        self.pretouch_wq(vFA + 33)
        a("s_branch L_q0")

    def stream_slot(self, ty, rdA, MT, acc, aset, loads, after):
        e = self.a
        e("s_barrier")
        self.probe(0, True)
        lg = Lg(e)
        for t, tag in rdA:
            lg.issue(t, tag)
        lg.drain()
        self.probe(1)
        e("s_barrier")
        self.probe(2)
        for ks in (0, 1):
            for q in range(4):
                lg.issue(*self.rdB(ks, q))
        if loads is None:
            return
        def mk(ks, mt, qt):
            def f():
                lg.wait(("B", ks, qt))
                e(self.mfma(acc, mt, qt, aset(ks, mt), ks))
            return f
        mm = [mk(ks, mt, qt) for ks in (0, 1) for mt in range(MT) for qt in range(4)]
        self.spread(mm, loads + (self.kv_items_b() if ty else []))
        self.probe(6)
        if not ty:
            self.call("F_kv")
        for t in after:
            e(t)

    def store_items(self, G):
        acc = vACC + 48 * G
        items = []
        for qd in range(6):
            c = acc + 8*qd
            t = "\n".join(f"v_cvt_pk_bf16_f32 v{c+i}, v{c+2*i}, v{c+2*i+1}" for i in range(4))
            t += f"\nbuffer_store_dwordx4 {vr(c,4)}, v{vST}, {sr(sWS)}, s{sM} offen offset:{1024*(qd&3)} sc1"
            if qd in (3, 5):
                t += f"\ns_add_u32 s{sM}, s{sM}, {4096 if qd == 3 else 24576-4096}"
            items.append(t)
        return items

    def pj_rest(self):
        a = self.a
        ACC1 = vACC + 64
        qrd = sum((self.q_rdA(ks, m) for ks in (0, 1) for m in range(4)), [])
        a("L_pj_rest:")
        self.prio_set(1)
        a(f"s_cmp_eq_u32 s{sTY}, 1\ns_cbranch_scc1 L_q1_1")
        if self.help:
            self.other_srd(sBV, 56, SIZE['B_v'])
        if self.follow:
            self.wait_init(vZ, vDUM)
        for ty in (0, 1):
            nk = 8 if ty else self.NA
            a(f"L_q1_{ty}:")
            self.stream_slot(ty, qrd, 4, ACC1, self.qA, self.w_items(), self.NEXTX)
            a(f"s_cmp_ge_u32 s{sN}, 16\ns_cbranch_scc1 L_q1_nox{ty}")
            self.call("F_x")
            self.probe(4)
            a(f"s_waitcnt vmcnt({nk + 2})")
            self.probe(5)
            a(f"s_branch L_q1_{ty}\nL_q1_nox{ty}:")
            self.probe(4)
            a(f"s_waitcnt vmcnt({nk})")
            self.probe(5)
            a(f"s_cmp_lt_u32 s{sN}, 17\ns_cbranch_scc1 L_q1_{ty}")
            if not ty:
                a("s_branch L_q1_last")
        a("L_q1_last:")
        self.stream_slot(0, qrd, 4, ACC1, self.qA, None, None)
        self.call("F_kv")
        a("s_waitcnt lgkmcnt(0)")
        self.q_finalize(ACC1, [self.mfma(ACC1, mt, qt, self.qA(ks, mt), ks) for ks in (0, 1) for mt, qt in self.ORDER4])
        self.kvwait()
        self.stamp(2)
        a("s_barrier")
        self.probe(0, True)
        a("s_barrier")
        self.pretouch_wo(True)
        self.call("F_kv")
        for i in range(144):
            a(f"v_mov_b32 v{vACC+i}, 0")
        a(f"""v_lshrrev_b32 v1, 2, v3
        v_and_b32 v7, 1, v2
        v_lshl_add_u32 v1, v7, 2, v1
        v_lshrrev_b32 v7, 1, v2
        v_lshl_add_u32 v6, v7, 4, v1
        v_lshrrev_b32 v1, 1, v1
        v_and_b32 v7, 3, v0
        v_lshlrev_b32 v7, 3, v7
        v_mul_u32_u24 v6, 384, v6
        v_add_u32 v6, v6, v7
        s_mul_i32 s{sT0}, s{sLW}, 3""")
        for nt in range(3):
            a(f"""s_add_u32 s{sT1}, s{sT0}, {nt}
            v_xor_b32 v7, s{sT1}, v1
            v_lshl_add_u32 v{vOA0+nt}, v7, 5, v6
            v_add_u32 v{vOA+nt}, {WR}, v{vOA0+nt}""")
        a(f"""s_lshl_b32 s{sT0}, s{sTY}, 4
        s_add_u32 s{sT0}, s{sT0}, s{sB}
        s_lshl_b32 s{sT0}, s{sT0}, 3
        s_add_u32 s{sT0}, s{sT0}, s{sHG}
        s_mul_i32 s{sM}, s{sT0}, {PART}
        s_add_u32 s{sM}, s{sM}, s{sOLW}
        v_lshlrev_b32 v{vST}, 4, v0""")
        self.kvwait()
        a(f"s_mov_b32 s{sN}, 6\nL_kvl:\ns_barrier")
        self.probe(0, True)
        a("s_barrier")
        self.probe(2)
        self.pretouch_wo(False)
        self.call("F_kv")
        self.probe(4)
        self.kvwait()
        self.probe(5)
        a(f"""s_sub_u32 s{sN}, s{sN}, 1
        s_cmp_lg_u32 s{sN}, 0
        s_cbranch_scc1 L_kvl
        s_barrier""")
        self.probe(0, True)
        a("s_barrier")
        self.call("F_wo")
        self.call("F_kv")
        self.kvwait()
        self.stamp(3)
        oA = lambda c, ks, mt: vFA + 4*mt + (0 if ks == 0 else 12 + 12*(c & 1))
        o_rdA = lambda c, ks, mt: self.rdA(oA(c, ks, mt), vOA, mt, 32*ks*384, (32*ks+8)*384, ("A", ks, mt))
        xa_step = [f"s_add_u32 s{sN}, s{sN}, 1\ns_add_u32 s{sT0}, s{sROT}, s{sN}\ns_and_b32 s{sT0}, s{sT0}, 3\ns_lshl_b32 s{sT0}, s{sT0}, 13",
                   f"v_add_u32 v{vXA}, s{sT0}, v{vXA0}", f"v_add_u32 v{vXA+1}, s{sT0}, v{vXA0+1}"]
        a(f"s_mov_b32 s{sN}, -1")
        for t in xa_step:
            a(t)
        ord_ = sum((o_rdA(0, ks, m) for ks in (0, 1) for m in range(3)), [])
        a(f"s_cmp_eq_u32 s{sTY}, 1\ns_cbranch_scc1 L_o2_1_0")
        for ty in (0, 1):
            for G in range(3):
                a(f"L_o2_{ty}_{G}:")
                self.stream_slot(ty, ord_, 3, vACC + 48*G, lambda ks, mt: oA(0, ks, mt), self.wo_items(), xa_step)
                self.probe(4)
                if ty:
                    a("s_waitcnt vmcnt(8)")
                else:
                    self.kvwait()
                self.probe(5)
                a(f"s_and_b32 s{sT0}, s{sN}, 3\ns_cbranch_scc1 L_o2_{ty}_{G}")
            if not ty:
                a("s_branch L_o2_done")
        a("L_o2_done:")
        self.stamp(4)
        if self.probes:
            a(f"s_add_u32 s{sSLOT}, s{sSLOT}, 3")
        a("s_barrier\ns_barrier")
        self.call("F_kv")
        a(f"""v_lshl_add_u32 v1, v0, 2, s{sRB}
        v_cmp_gt_u32 vcc, 6, v0
        s_and_saveexec_b64 {sr(sT0, 2)}, vcc
        s_cmp_lg_u32 s{sLW}, 0
        s_cbranch_scc1 L_nz
        ds_write_b32 v1, v{vZ} offset:{SYNC - WR}
        L_nz:
        s_mov_b64 exec, -1
        s_waitcnt lgkmcnt(0)""")
        self.kvwait()
        a(f"s_barrier\ns_barrier\ns_mov_b32 s{sOBUF}, s{sRB+1}")
        self.call("F_wo")
        a(f"s_waitcnt vmcnt(6)\ns_barrier\ns_barrier\ns_mov_b32 s{sOBUF}, s{sRB+2}")
        self.call("F_wo")
        self.wait_init(vZ, vDUM)
        if self.prio & 4:
            a("s_setprio 0")
        self.stamp(5)
        for c in range(12):
            acc, prev = vACC + 48 * (c >> 2), vACC + 48 * ((c - 1) >> 2)
            a("s_barrier")
            self.probe(0, True)
            lg = Lg(a)
            r0 = [self.rdB(0, 0)] + o_rdA(c, 0, 0) + [self.rdB(0, q) for q in (1, 2, 3)] + o_rdA(c, 0, 1) + o_rdA(c, 0, 2) + sum((o_rdA(c, 1, m) for m in range(3)), [])
            st = sum((self.store_items(g) for g, at in enumerate((self.store0, self.store1)) if at == c), [])
            r0, ra1 = r0[:10], r0[10:]
            plan = {k: [] for k in range(-1, 24)}
            for i, x in enumerate(r0):
                plan[i // 2 - 1 if c else -1].append(x)
            for i, x in enumerate(ra1):
                plan[4 + i if c else 12 + i // 2].append(x)
            for q in range(4):
                plan[(12 if c else 15) + q].append(self.rdB(1, q))
            fill = [f"v_add_u32 v{vOA+nt}, s{sRB + ((c+1)&3)}, v{vOA0+nt}" for nt in range(3)] + xa_step
            for x in plan[-1]:
                lg.issue(*x)
            for k in range(0 if c else 12, 24):
                mt, qt = self.ORDER3[k % 12]
                if k == 12 and c:
                    lg.wait(*[tag for _, tag in r0])
                elif not c:
                    lg.wait(("A", 0, mt, 0), ("A", 0, mt, 1), ("B", 0, qt))
                a(self.mfma(prev, mt, qt, oA(c - 1, 1, mt), 1) if k < 12 else self.mfma(acc, mt, qt, oA(c, 0, mt), 0))
                for x in plan[k]:
                    lg.issue(*x)
                if k >= (16 if c else 19) and fill:
                    a(fill.pop(0))
                    if not c and fill:
                        a(fill.pop(0))
                if st and k % 4 == 3:
                    a(st.pop(0))
                if k == 22:
                    lg.drain()
            assert not fill
            for t in st:
                a(t)
            if c < 2:
                a(f"s_waitcnt vmcnt({6 - 6*c})")
            if c in (4, 8):
                self.stamp(6 + (c >> 3))
        st = self.store_items(2)
        for k, (mt, qt) in enumerate(self.ORDER3):
            a(self.mfma(vACC + 96, mt, qt, oA(11, 1, mt), 1))
            if k in (9, 11):
                a(st.pop(0))
        for t in st:
            a(t)
        self.stamp(8)
        a(f"""v_mov_b32 v1, {SYNC}
        v_mov_b32 v6, 1
        s_lshl_b32 s{sT0}, s{sTY}, 11
        s_lshl_b32 s{sT1}, s{sHG}, 2
        s_add_u32 s{sT0}, s{sT0}, s{sT1}
        s_add_u32 s{sT0}, s{sT0}, s{sFADDR}
        s_mov_b64 exec, 1""")
        for k in range(1):
            a(f"""s_waitcnt vmcnt(0)
            ds_add_rtn_u32 v7, v1, v6 offset:{4*k}
            s_waitcnt lgkmcnt(0)
            v_readfirstlane_b32 s{sT1}, v7
            s_cmp_lg_u32 s{sT1}, 3
            s_cbranch_scc1 L_nf{k}
            buffer_store_dword v6, v{vZ}, {sr(sWS)}, s{sT0} offen offset:{32*k} sc1
            L_nf{k}:""")
            if k == 0:
                self.stamp(13)
        a("s_mov_b64 exec, -1")
        self.stamp(9)
        self.probe_dump()
        a("s_branch L_reduce")

    def at_first(self):
        a = self.a
        a("L_at:")
        self.prio_set(0)
        if self.alate:
            for i in list(range(vKVO, vXVO)) + list(range(vOVO, vWVO)) + [4]:
                a(f"v_mov_b32 v{i}, 0")
        issued = []
        WBUFS = (WR, R1, R2)

        def ldx(n):
            if n <= 3 or n >= 9:
                self.call("F_x")
            else:
                a(f"s_lshl_b32 s{sT0}, s{sXCH}, 7\ns_add_u32 s{sT0}, s{sT0}, s{sXBASE}")
                self.x_adv()
                for i in range(2):
                    a(f"buffer_load_dwordx4 {vr(vO + (n-4)*8 + 4*i, 4)}, v{vXVO+i}, {sr(sX)}, s{sT0} offen offset:{1024*i}")
            issued.extend([("x", n)] * 2)

        def ldw(n):
            a(f"s_lshl_b32 s{sWBUF}, s{sLW}, 13\ns_add_u32 s{sWBUF}, s{sWBUF}, {WBUFS[n % 3]}")
            self.call("F_w")
            issued.extend([("w", n)] * 8)

        def prefill(k):
            l = self.lab("pf")
            self.call("F_kv")
            a(f"s_cmp_eq_u32 s{sTY}, 1\ns_cbranch_scc1 {l}")
            self.call("F_kv")
            a(f"{l}:")
            issued.extend([("kv", k)] * 8)

        def wait(*tags):
            k = max(i for i, t in enumerate(issued) if t in tags) + 1
            a(f"s_waitcnt vmcnt({min(63, len(issued) - k)})")
        if self.alate:
            a(f"s_cmp_eq_u32 s{sTY}, 1\ns_cbranch_scc1 L_at_b")
            self.call("F_atset")
            a("L_at_b:")
        if self.xtouch:
            l = self.lab("xt")
            a(f"s_cmp_eq_u32 s{sTY}, 1\ns_cbranch_scc1 {l}")
            self.other_srd(sPT, 40, SIZE['B_x'])
            a(f"""v_lshlrev_b32 v1, 7, v0
            s_add_u32 s{sT0}, s{sXBASE}, 8192
            s_add_u32 s{sT1}, s{sXBASE}, 16384
            buffer_load_dword v{vP}, v1, {sr(sPT)}, s{sXBASE} offen
            buffer_load_dword v{vP+1}, v1, {sr(sPT)}, s{sT0} offen
            s_mov_b64 exec, 0xffff
            buffer_load_dword v{vP+2}, v1, {sr(sPT)}, s{sT1} offen
            s_mov_b64 exec, -1""")
            if self.xtouch > 1:
                a(f"s_waitcnt vmcnt({self.xtouch - 2})")
            a(f"{l}:")
        if self.diag:
            a(f"s_cmp_eq_u32 s{sTY}, 1\ns_cbranch_scc1 L_dg")
            for _ in range(self.diag):
                a("s_sleep 32")
            a("L_dg:")
        a(f"s_mov_b32 s{sXN}, 0")
        ldx(0); ldw(0)
        self.early(2)
        if self.alate:
            a(f"s_cmp_eq_u32 s{sTY}, 0\ns_cbranch_scc1 L_at_a")
        self.call("F_atset")
        a("L_at_a:")
        self.early(4)
        ldx(1); ldw(1)
        wait(("x", 0), ("w", 0))
        self.early(5)
        for n in range(9):
            a("s_barrier")
            self.probe(0, True)
            if 1 <= n <= 5:
                wait(("x", n + 3))
                for i in range(2):
                    a(f"ds_write_b128 v{vT}, {vr(vO + (n-1)*8 + 4*i, 4)} offset:{((n+3)&3)*8192 + 1024*i}")
            if n == 0:
                for k in range(2, 9):
                    ldx(k)
            if n == self.prefill == 7:
                prefill(0)
            if n + 2 <= 9:
                ldw(n + 2)
            if n == self.prefill != 7 or n + 10 == self.prefill:
                prefill(0)
            if n == 8:
                prefill(1)
            if n >= 6:
                ldx(n + 3)
            self.probe(4)
            wait(*([("w", n + 1), ("x", n + 1)] + ([("kv", 0)] if n == 8 else [])))
            a("s_waitcnt lgkmcnt(0)")
            self.probe(5)
        if self.prio & 1:
            a("s_setprio 0")
        a("s_branch L_stage\nF_atset:")
        self.late_common()
        a(f"""s_mov_b32 s{sTHR}, 0
        s_lshl_b32 s{sT0}, s{sLW}, 11
        s_add_u32 s{sT0}, s{sT0}, {XR}
        v_lshl_add_u32 v{vT}, v0, 4, s{sT0}""")
        self.at_setup()
        self.ret()

    def at_setup(self):
        a = self.a
        a(f"""s_lshr_b32 s{sT0}, s{sLW}, 1
        s_mul_i32 s{sT0}, s{sT0}, s{sTY}
        s_lshl_b32 s{sT0}, s{sT0}, 13
        v_and_b32 v1, 31, v0
        v_lshrrev_b32 v6, 5, v0
        v_xor_b32 v7, v6, v3
        v_lshlrev_b32 v7, 4, v7
        v_lshl_add_u32 v7, v1, 8, v7
        v_add_u32 v{vKA}, s{sT0}, v7""")
        for s in range(1, 8):
            a(f"v_xor_b32 v{vKA+s}, {32*s}, v{vKA}")
        a(f"""s_lshr_b32 s{sT1}, s{sBUFSZ}, 1
        s_add_u32 s{sT0}, s{sT0}, s{sT1}
        v_lshrrev_b32 v1, 2, v3
        v_lshl_add_u32 v7, v6, 2, v1
        v_lshlrev_b32 v7, 8, v7
        v_lshl_add_u32 v7, v1, 6, v7
        v_and_b32 v1, 1, v2
        v_lshl_add_u32 v7, v1, 5, v7
        v_and_b32 v1, 3, v0
        v_lshl_add_u32 v7, v1, 3, v7
        v_add_u32 v{vVA}, s{sT0}, v7""")
        for dt in range(1, 4):
            a(f"v_xor_b32 v{vVA+dt}, {64*dt}, v{vVA}")
        a(f"""s_mov_b32 s{sRPOS}, 0
        s_mov_b32 s{sSTAGE}, 0
        s_mov_b32 s{sQBUF}, {R2 - XR}
        s_mov_b32 s{sM}, 3
        s_lshr_b32 s{sT0}, s{sLW}, 1
        s_lshl_b32 s{sT0}, s{sT0}, 14
        s_and_b32 s{sT1}, s{sLW}, 1
        s_lshl_b32 s{sT1}, s{sT1}, 12
        s_add_u32 s{sT0}, s{sT0}, s{sT1}
        s_add_u32 s{sT0}, s{sT0}, {XR}
        v_and_b32 v1, 31, v0
        v_bfe_u32 v6, v0, 1, 3
        v_lshrrev_b32 v7, 5, v0
        v_xor_b32 v6, v6, v7
        v_lshlrev_b32 v6, 4, v6
        v_lshl_add_u32 v6, v1, 7, v6
        v_add_u32 v{vH}, s{sT0}, v6""")
        for i in range(1, 4):
            a(f"v_xor_b32 v{vH+i}, {32*i}, v{vH}")
        for i in list(range(vO + 40, vO + 64)) + list(range(vNM + 1, vNM + 16)) + [vL0, vL1, 4] + list(range(vOVO, vOVO + 6)):
            a(f"v_mov_b32 v{i}, 0")

    def at_rest(self):
        a = self.a
        publish = self.follow or self.gate
        a(f"""L_stage:
        s_mov_b32 s{sTH}, 0xff7fffff
        s_mov_b32 s{sFLOOR}, 0xff7fffff
        s_mov_b32 s{sFIRST}, 0
        s_cmp_lg_u32 s{sSTAGE}, 0
        s_cbranch_scc1 L_stage_a
        v_mov_b32 v{vNM}, 0
        L_stage_a:""")
        for i in range(4):
            a(f"v_add_u32 v{vT+i}, s{sQBUF}, v{vH+i}")
        a(f"s_mov_b32 s{sN}, 0\nL_tile:\ns_barrier")
        self.probe(0, True)
        a(f"s_cmp_lg_u32 s{sN}, 0\ns_cbranch_scc1 L_tile_k")
        for s in range(8):
            a(f"ds_read_b128 {vr(vQ+4*s, 4)}, v{vT+(s&3)} offset:{8192*(s>>2)}")
        a("s_waitcnt lgkmcnt(0)\nL_tile_k:")
        lg = Lg(a)
        for s in range(8):
            lg.issue(f"ds_read_b128 {vr(vKF+4*s, 4)}, v{vKA+s}", ("K", s))
        a("s_barrier")
        vreads = [(f"ds_read_b64_tr_b16 {vr(vVF + (u*4+dt)*4 + 2*j, 2)}, v{vVA+dt} offset:{(16*u+8*j)*256}", ("V", u, dt, j))
                  for u in range(2) for dt in range(4) for j in range(2)]
        for s in range(8):
            lg.wait(("K", s))
            c = vr(vNM, 16) if s == 0 else vr(vS, 16)
            a(f"v_mfma_f32_32x32x16_bf16 {vr(vS,16)}, {vr(vKF+4*s,4)}, {vr(vQ+4*s,4)}, {c}")
            for _ in range(2):
                if len(lg.q) < 15:
                    lg.issue(*vreads.pop(0))
        for t, tag in vreads:
            lg.issue(t, tag)
        a(f"""s_add_u32 s{sRPOS}, s{sRPOS}, s{sBUFSZ}
        s_cmp_ge_u32 s{sRPOS}, 98304
        s_cselect_b32 s{sT0}, 98304, 0
        s_sub_u32 s{sRPOS}, s{sRPOS}, s{sT0}
        s_sub_u32 s{sT0}, s{sBUFSZ}, s{sT0}""")
        adv = [f"v_add_u32 v{vKA+i}, s{sT0}, v{vKA+i}" for i in range(12)]
        for t in adv[:7]:
            a(t)
        adv = adv[7:]
        t0, t1 = vT, vT + 1
        a(f"v_max3_f32 v{t0}, v{vS}, v{vS+1}, v{vS+2}\nv_max3_f32 v{t1}, v{vS+3}, v{vS+4}, v{vS+5}")
        for i in range(6, 14, 4):
            a(f"v_max3_f32 v{t0}, v{t0}, v{vS+i}, v{vS+i+1}\nv_max3_f32 v{t1}, v{t1}, v{vS+i+2}, v{vS+i+3}")
        a(f"""v_max3_f32 v{t0}, v{t0}, v{vS+14}, v{vS+15}
        v_max_f32 v{t0}, v{t0}, v{t1}
        v_cmp_lt_f32 vcc, s{sTH}, v{t0}
        s_cbranch_vccnz L_rescale
        L_tile_exp:""")
        ex = lambda u: [f"v_exp_f32 v{vS+8*u+i}, v{vS+8*u+i}" for i in range(8)]
        cv = lambda u: [f"v_cvt_pk_bf16_f32 v{vP+4*u+i}, v{vS+8*u+2*i}, v{vS+8*u+2*i+1}" for i in range(4)]
        ad = lambda u: [f"v_add_f32 v{vL0+(i&1)}, v{vL0+(i&1)}, v{vS+8*u+i}" for i in range(8)]
        pv = lambda u, dt: f"v_mfma_f32_32x32x16_bf16 {vr(vO+16*dt,16)}, {vr(vVF+(u*4+dt)*4,4)}, {vr(vP+4*u,4)}, {vr(vO+16*dt,16)}"
        e0, c0, a0 = ex(0), cv(0), ad(0)
        for t in e0[:3] + [e0[3], c0[0], e0[4], e0[5], c0[1], e0[6], e0[7], c0[2], a0[0], c0[3], a0[1], a0[2]]:
            a(t)
        e1, c1, a1 = ex(1), cv(1), ad(1)
        gaps = [e1[0:3], e1[3:6], e1[6:8] + c1[0:2], [c1[2], c1[3]] + a0[3:6]]
        for dt in range(4):
            lg.wait(("V", 0, dt, 0), ("V", 0, dt, 1))
            a(pv(0, dt))
            for t in gaps[dt]:
                a(t)
        rest = a0[6:] + a1 + adv
        for dt in range(4):
            lg.wait(("V", 1, dt, 0), ("V", 1, dt, 1))
            a(pv(1, dt))
            for _ in range(5):
                if rest: a(rest.pop(0))
        assert not rest
        self.probe(6)
        a(f"s_or_b32 s{sT0}, s{sSTAGE}, s{sN}\ns_cbranch_scc1 L_tile_nw\ns_waitcnt vmcnt(0)\nL_tile_nw:")
        if publish:
            a(f"""s_cmp_gt_u32 s{sTY}, s{sLW}
            s_cbranch_scc0 L_tile_np""")
            if not self.follow:
                a(f"s_add_u32 s{sM}, s{sM}, 1\ns_cmp_eq_u32 s{sM}, {self.gate + 1}\ns_cbranch_scc0 L_tile_np\ns_sub_u32 s{sM}, s{sM}, 1")
            a(f"""v_mov_b32 v5, s{sM}
            s_mov_b64 exec, 1
            buffer_store_dword v5, v4, {sr(sWS)}, s{sPADDR} offen sc1
            s_mov_b64 exec, -1
            s_add_u32 s{sM}, s{sM}, 1
            L_tile_np:""")
        a(f"""s_add_u32 s{sN}, s{sN}, 1
        s_cmp_lt_u32 s{sN}, 16
        s_cbranch_scc1 L_tile""")
        a(f"""v_add_f32 v{vT+2}, v{vL0}, v{vL1}
        s_mov_b32 s{sQBUF}, {WR - XR}
        v_mov_b32 v{vT+3}, v{vT+2}
        s_add_u32 s{sSTAGE}, s{sSTAGE}, 1
        s_nop 0
        v_permlane32_swap_b32 v{vT+2}, v{vT+3}
        v_add_f32 v{vT+2}, v{vT+2}, v{vT+3}
        v_rcp_f32 v{vT+2}, v{vT+2}
        s_nop 0""")
        mul, put = [], []
        for dt in range(4):
            for ip in range(2):
                c = vO + 16*dt + 8*ip
                mul.append("\n".join(f"v_mul_f32 v{c+i}, v{c+i}, v{vT+2}" for i in range(8)))
                put.append("\n".join(f"v_cvt_pk_bf16_f32 v{c+i}, v{c+2*i}, v{c+2*i+1}" for i in range(4)) +
                           f"\nds_write_b128 v{vH + 2*(dt&1) + ip}, {vr(c,4)} offset:{8192*(dt>>1)}")
        for k in range(9):
            if k < 8: a(mul[k])
            if k: a(put[k-1])
        a(f"""s_cmp_lt_u32 s{sSTAGE}, 2
        s_cbranch_scc0 L_feed0""")
        self.late_wo()
        a(f"""s_mov_b32 s{sOCI}, 15
        s_add_u32 s{sOBASE}, s{sOBASE}, 294912
        s_waitcnt lgkmcnt(0)
        s_branch L_stage""")
        a("L_feed0:")
        self.prio_set(2)
        a(f"""s_mov_b32 s{sN}, 0
        s_waitcnt lgkmcnt(0)
        L_feed:
        s_add_u32 s{sT0}, s{sOCI}, s{sROT}
        s_and_b32 s{sT0}, s{sT0}, 3
        s_mul_i32 s{sT0}, s{sT0}, 73728
        s_add_u32 s{sT0}, s{sT0}, s{sOBASE}
        s_add_u32 s{sT1}, s{sRB+3}, s{sOLW}
        s_mov_b32 m0, s{sT1}
        s_barrier""")
        self.probe(0, True)
        if self.probes:
            a(f"s_mov_b32 m0, s{sT1}\ns_nop 0")
        for n in range(6):
            if n == 4:
                a(f"s_add_u32 m0, s{sT1}, 4096\ns_add_u32 s{sOCI}, s{sOCI}, 1")
            a(f"buffer_load_dwordx4 v{vOVO+n}, {sr(sWO)}, s{sT0} offen offset:{1024*(n&3)} lds")
        a(f"""s_and_b32 s{sT0}, s{sOCI}, 3
        s_cselect_b32 s{sT0}, 0, 384
        s_add_u32 s{sOBASE}, s{sOBASE}, s{sT0}
        s_mov_b32 s{sT0}, s{sRB+3}
        s_mov_b32 s{sRB+3}, s{sRB}
        s_mov_b32 s{sRB}, s{sRB+1}
        s_mov_b32 s{sRB+1}, s{sRB+2}
        s_mov_b32 s{sRB+2}, s{sT0}
        s_add_u32 s{sN}, s{sN}, 1""")
        self.probe(4)
        a(f"""s_waitcnt vmcnt(12)
        s_cmp_lt_u32 s{sN}, 9
        s_cbranch_scc1 L_feed""")
        if self.gate:
            a(f"s_or_b32 s{sT0}, s{sTY}, s{sLW}\ns_cbranch_scc1 L_gate")
            self.wait_init(4, 5)
            self.spin(f"buffer_load_dword v5, v4, {sr(sWS)}, s{sPADDR} offen sc1", 5,
                      f"v_readfirstlane_b32 s{sT1}, v5\ns_cmp_ge_u32 s{sT1}, {self.gate}")
            a("L_gate:")
        a("""s_barrier
        s_waitcnt vmcnt(6)
        s_barrier
        s_waitcnt vmcnt(0)
        s_barrier""")
        self.probe_dump()

    def reduce(self):
        a = self.a
        vL, vO0, vD, vSum = 6, 14, 40, 104
        a("L_reduce:")
        self.stamp(10)
        srd(a, sX, sOUTP, SIZE['out'])
        a(f"""s_setprio 0
        s_lshl_b32 s{sN}, s{sTY}, 3
        s_add_u32 s{sN}, s{sN}, s{sHG}
        s_lshl_b32 s{sT0}, s{sLW}, 4
        s_add_u32 s{sN}, s{sN}, s{sT0}
        s_mul_i32 s{sN}, s{sN}, 36
        s_lshr_b32 s{sSTAGE}, s{sWAVE}, 2
        s_lshl_b32 s{sT0}, s{sSTAGE}, 4
        s_add_u32 s{sT0}, s{sT0}, s{sB}
        s_mul_i32 s{sM}, s{sT0}, {8*PART}
        s_mul_i32 s{sOBASE}, s{sB}, {64*2304}
        s_mul_i32 s{sT0}, s{sSTAGE}, 1152
        s_add_u32 s{sOBASE}, s{sOBASE}, s{sT0}
        s_lshl_b32 s{sT0}, s{sSTAGE}, 11
        s_add_u32 s{sFADDR}, s{sFADDR}, s{sT0}
        s_lshl_b32 s{sT1}, s{sSTAGE}, 2
        s_add_u32 s{sT1}, s{sT1}, {SYNC + 8}
        v_mov_b32 v4, 0
        v_mov_b32 v9, s{sT1}
        v_mov_b32 v10, 1
        v_and_b32 v8, 7, v0
        v_lshlrev_b32 v8, 2, v8""")
        for k in range(2):
            a(f"""v_add_u32 v1, s{sN}, v0
            v_lshlrev_b32 v{vL+k}, 4, v1
            v_lshrrev_b32 v11, 6, v1
            v_mul_u32_u24 v12, 43, v11
            v_lshrrev_b32 v12, 8, v12
            v_mul_u32_u24 v13, 6, v12
            v_sub_u32 v13, v11, v13
            v_mul_u32_u24 v12, 96, v12
            v_lshrrev_b32 v11, 1, v13
            v_lshl_add_u32 v12, v11, 5, v12
            v_and_b32 v13, 1, v13
            v_lshlrev_b32 v13, 5, v13
            v_and_b32 v11, 15, v1
            v_add_u32 v13, v13, v11
            v_mul_u32_u24 v13, 2304, v13
            v_bfe_u32 v11, v1, 4, 2
            v_lshl_add_u32 v12, v11, 3, v12
            v_add_u32 v{vO0+k}, v12, v13
            s_add_u32 s{sN}, s{sN}, 2304""")
        a(f"s_cmp_lg_u32 s{sLW}, 0\ns_cbranch_scc1 L_red_lds\ns_cmp_eq_u32 s{sSTAGE}, 1\ns_cbranch_scc1 L_red_init")
        self.wait_init(4, 5)
        a("L_red_init:")
        NP = self.polls
        ld = lambda k: f"buffer_load_dword v{16+k}, v8, {sr(sWS)}, s{sFADDR} offen sc1"
        for k in range(NP - 1):
            a(ld(k) + f"\ns_sleep {self.nap}")
        a(f"s_mov_b32 s{sSPIN}, {SPIN}\nL_red_poll:")
        for k in range(NP):
            a(f"""{ld((k + NP - 1) % NP)}
            s_waitcnt vmcnt({NP - 1})
            v_cmp_ne_u32 vcc, 1, v{16+k}
            s_cbranch_vccz L_red_seen
            s_sleep {self.nap}""")
        a(f"""s_sub_u32 s{sSPIN}, s{sSPIN}, 1
        s_cbranch_scc0 L_red_poll
        L_red_seen:
        ds_write_b32 v9, v10
        s_branch L_red_go
        L_red_lds:""")
        self.spin("ds_read_b32 v5, v9", 5, f"v_readfirstlane_b32 s{sT1}, v5\ns_cmp_eq_u32 s{sT1}, 1")
        a(f"L_red_go:\ns_mov_b32 exec_hi, 15")
        self.stamp(14)
        for k in range(2):
            a(f"s_mov_b32 s{sT0}, s{sM}")
            for h in range(8):
                a(f"buffer_load_dwordx4 {vr(vD+32*k+4*h,4)}, v{vL+k}, {sr(sWS)}, s{sT0} offen sc1\ns_add_u32 s{sT0}, s{sT0}, {PART}")
        a(f"s_waitcnt vmcnt(8)\ns_add_u32 s{sT0}, s{sOBASE}, {16*2304}")
        for k in range(2):
            if k:
                a("s_waitcnt vmcnt(2)")
            for h in range(8):
                for i in range(4):
                    r = vD + 32*k + 4*h + i
                    if h == 0:
                        a(f"v_lshlrev_b32 v{vSum+2*i}, 16, v{r}\nv_and_b32 v{vSum+2*i+1}, 0xffff0000, v{r}")
                    else:
                        a(f"""v_lshlrev_b32 v11, 16, v{r}
                        v_and_b32 v12, 0xffff0000, v{r}
                        v_add_f32 v{vSum+2*i}, v{vSum+2*i}, v11
                        v_add_f32 v{vSum+2*i+1}, v{vSum+2*i+1}, v12""")
            for i in range(4):
                a(f"v_cvt_pk_bf16_f32 v{vSum+8+4*k+i}, v{vSum+2*i}, v{vSum+2*i+1}")
            a(f"""buffer_store_dwordx2 {vr(vSum+8+4*k,2)}, v{vO0+k}, {sr(sX)}, s{sOBASE} offen
            buffer_store_dwordx2 {vr(vSum+10+4*k,2)}, v{vO0+k}, {sr(sX)}, s{sT0} offen""")
        a("L_red_end:")
        if self.stamps:
            a("s_mov_b64 exec, -1\ns_waitcnt vmcnt(0)")
            self.stamp(12)
            self.stamp_dump(0)
            self.stamp_dump(1)
        a("s_endpgm")

    def at_rare(self):
        a = self.a
        t0, t1, d, al = vT, vT + 1, vT, vT + 2
        a(f"""L_rescale:
        v_mov_b32 v{t1}, v{t0}
        s_nop 1
        v_permlane32_swap_b32 v{t0}, v{t1}
        v_max3_f32 v{d}, v{t0}, v{t1}, s{sFLOOR}
        v_max_f32 v{al}, 0, v{d}
        v_exp_f32 v{al}, -v{al}
        s_mov_b32 s{sTH}, 0x41000000
        s_mov_b32 s{sFLOOR}, 0
        v_mul_f32 v{al}, s{sFIRST}, v{al}
        s_mov_b32 s{sFIRST}, 1.0""")
        for i in range(16):
            a(f"v_sub_f32 v{vS+i}, v{vS+i}, v{d}\nv_sub_f32 v{vNM+i}, v{vNM+i}, v{d}")
        a(f"v_mul_f32 v{vL0}, v{vL0}, v{al}\nv_mul_f32 v{vL1}, v{vL1}, v{al}")
        for i in range(0, 64, 2):
            a(f"v_pk_mul_f32 {vr(vO+i,2)}, {vr(vO+i,2)}, {vr(al,2)} op_sel_hi:[1,0]")
        a("s_branch L_tile_exp")

    def main(self):
        a = self.a
        self.prologue()
        a(f"s_cmp_ge_u32 s{sWAVE}, 4\ns_cbranch_scc1 L_pj\ns_branch L_at")
        self.subs()
        self.at_first()
        self.pj_first()
        self.pj_setup()
        self.at_rest()
        self.reduce()
        self.at_rare()
        self.pj_rest()
        a("L_end:\ns_endpgm")
        return a.text()


HEADER = open("cdna_kernels/" + NAME + ".s.ref").read().split("; Override launch geometry")[0]


def build(**kw):
    return HEADER + single(Gen(**kw).main(), 256, 512, LDS_BYTES, vgpr=256, accum=256, sgpr=102)


if __name__ == "__main__":
    kw = {}
    for x in sys.argv[2:]:
        k, v = x.split("=")
        kw[k] = int(v, 0)
    open(sys.argv[1], "w").write(build(**kw))
```

```python
import sys, struct
sys.path.insert(0, "tools")
from asmlib import *

KERNEL = NAME + "_kernel"
R0, R1, R2, WR, XR = 0, 32768, 65536, 98304, 131072
SYNC = WR + 24576
LDS_BYTES = 163840
PART = 73728
FLAG_OFF = 32 << 20
PROBE_OFF = 241 << 20
QSCALE = 1.4426950408889634 / 128 ** 0.5
SPIN = 1 << 16


def fbits(x):
    return "0x%08x" % struct.unpack("<I", struct.pack("<f", x))[0]


sWAVE, sLW, sHG, sTY, sB = 3, 4, 5, 6, 7
sK, sV, sX, sWQ, sWO, sWS = 8, 12, 16, 20, 24, 28
sKVOFF, sKVM0, sKVN = 32, 33, 34
sWCOL, sWCH, sWN = 35, 36, 37
sXBASE, sXCH, sXN = 38, 39, 40
sOCI, sOBASE, sROT = 41, 42, 43
sN, sM = 44, 45
sT0, sT1, sT2 = 46, 47, 48
sBUFSZ, sRINGEND, sWBUF, sOLW, sOBUF, sTHR, sKVCNT = 49, 50, 51, 52, 53, 54, 55
sTH, sFLOOR, sRPOS, sSTAGE = 56, 57, 58, 59
sRB = 60
sRET = 64
sFIRST, sQBUF, sSLOT = 66, 67, 68
sC8K = 67
sWB = 69
sBV, sPT = 72, 76
sOUTP, sDBGP = 80, 82
sTN, sLAST, sPADDR, sTBASE = 84, 85, 86, 87
sFADDR, sSPIN, sPROG = 88, 89, 90

vKVO, vVVO, vXVO, vOVO, vWVO = 8, 12, 13, 15, 21
vWA, vWA0, vQW = 23, 27, 28
vOA0, vOA, vST = 23, 26, 29
vXA0, vXA, vZ, vL7 = 30, 32, 34, 35
vFA, vFB, vACC = 36, 72, 104
vPR, vDUM = 4, 5
vKA, vVA, vL0, vL1, vT = 23, 31, 35, 36, 40
vP, vS, vNM, vQ, vKF, vVF, vO, vH = 44, 52, 68, 84, 116, 148, 180, 244


def vr(i, n):
    return f"v[{i}:{i+n-1}]"


def sr(i, n=4):
    return f"s[{i}:{i+n-1}]"


class Lg:
    def __init__(self, a):
        self.a, self.q = a, []
    def issue(self, text, tag):
        if len(self.q) == 15:
            self.wait(self.q[0])
        self.a(text)
        self.q.append(tag)
    def wait(self, *tags):
        idx = max((i for i, t in enumerate(self.q) if t in tags), default=-1)
        if idx < 0:
            return
        self.a(f"s_waitcnt lgkmcnt({len(self.q) - idx - 1})")
        self.q = self.q[idx + 1:]
    def drain(self):
        self.a("s_waitcnt lgkmcnt(0)")
        self.q = []


DEFAULTS = dict(stamps=0, probes=0, vmprobe=2, thr=63, prefill=8, store0=9, store1=10, ipf=1, touch=3, xtouch=1,
                prio=7, gate=0, thrmask=0xffffffff, help=0, lead0=3, lead1=6, kvnt=1, pace=99, dbgst=0, ahead=-1, from_=0, bthr=63, polls=1, nap=4, sdw=0, alate=0, wqat=1, diag=0, hrot=0, early_n=0, ahead0=0, hold=0, hi=0, hj=0, hwg=8)


class Gen:
    def __init__(self, **kw):
        self.a = Asm()
        self.o = dict(DEFAULTS)
        assert set(kw) <= set(DEFAULTS), kw
        self.o.update(kw)
        for k, v in self.o.items():
            setattr(self, k, v)
        self.kvflag = " nt" if self.kvnt else ""
        self.follow = (self.help and self.ahead < 0) or self.pace < 99
        self.NA = 4 + bool(self.help) + bool(self.follow)
        self.uid = 0
        assert not (self.help and self.ahead < 0 and self.touch)

    def lab(self, s):
        self.uid += 1
        return f"L_{s}{self.uid}"

    def stamp(self, k):
        if self.stamps:
            self.a(f"s_memrealtime s[98:99]\ns_memtime s[100:101]\ns_waitcnt lgkmcnt(0)\nv_writelane_b32 v255, s98, {k}\nv_writelane_b32 v255, s100, {16+k}")

    def stamp_dump(self, role):
        if self.stamps:
            l = self.lab("sd")
            self.a(f"""s_cmp_lg_u32 s{sWAVE}, {4*role + self.sdw}
            s_cbranch_scc1 {l}
            s_lshl_b32 s{sT0}, s2, 8
            s_add_u32 s{sT0}, s{sT0}, {STAMP_OFF + 128*role}
            v_lshlrev_b32 v1, 2, v0
            s_mov_b64 exec, 0xffffffff
            buffer_store_dword v255, v1, {sr(sWS)}, s{sT0} offen
            s_mov_b64 exec, -1""")
            if self.dbgst:
                srd(self.a, sPT, sDBGP, 256)
                self.a(f"""s_cmp_lg_u32 s{sTY}, {self.dbgst - 1}
                s_cbranch_scc1 {l}
                v_not_b32 v11, v255
                v_cmp_eq_u32 vcc, 0, v0
                s_nop 1
                v_cndmask_b32 v11, v255, v11, vcc
                s_mov_b64 exec, {0x3ff if role else 0x1c00}
                buffer_atomic_umax v11, v1, {sr(sPT)}, 0 offen sc1
                s_mov_b64 exec, -1""")
            self.a(f"{l}:")

    def probe(self, k, first=False):
        if self.probes:
            if first:
                self.a(f"s_add_u32 s{sSLOT}, s{sSLOT}, 1")
            self.a(f"s_memtime s[98:99]\ns_getreg_b32 s100, hwreg(HW_REG_IB_STS)\ns_waitcnt lgkmcnt(0)\ns_mov_b32 m0, s{sSLOT}\nv_writelane_b32 v{248+k}, s98, m0")
            if k == self.vmprobe:
                self.a("v_writelane_b32 v251, s100, m0")

    def early(self, lane):
        if self.probes:
            self.a(f"s_memtime s[98:99]\ns_waitcnt lgkmcnt(0)\nv_writelane_b32 v255, s98, {lane}")

    def probe_dump(self):
        if self.probes:
            l = self.lab("pd")
            self.a(f"""s_cmp_lg_u32 s{sLW}, 0
            s_cbranch_scc1 {l}
            s_lshl_b32 s{sT0}, s2, 1
            s_lshr_b32 s{sT1}, s{sWAVE}, 2
            s_add_u32 s{sT0}, s{sT0}, s{sT1}
            s_lshl_b32 s{sT0}, s{sT0}, 11
            s_add_u32 s{sT0}, s{sT0}, {PROBE_OFF}
            v_lshlrev_b32 v1, 2, v0""")
            for k in range(8):
                self.a(f"buffer_store_dword v{248+k}, v1, {sr(sWS)}, s{sT0} offen offset:{256*k}")
            self.a(f"{l}:")

    def prio_set(self, bit, off=None):
        if self.prio >> bit & 1:
            self.a("s_setprio 1")
        elif off is not None and self.prio >> off & 1:
            self.a("s_setprio 0")

    def call(self, name):
        self.a(f"s_call_b64 {sr(sRET, 2)}, {name}")

    def ret(self):
        self.a(f"s_setpc_b64 {sr(sRET, 2)}")

    def spread(self, base, fill, start=0):
        n, m = len(base) - start, len(fill)
        j = 0
        for k, t in enumerate(base):
            while k >= start and j < m and j * n <= (k - start) * m:
                self.a(fill[j]); j += 1
            if callable(t): t()
            else: self.a(t)
        for t in fill[j:]:
            self.a(t)

    def other_srd(self, dst, karg_off, size):
        self.a(f"""s_load_dwordx2 {sr(dst, 2)}, s[0:1], {karg_off}
        s_waitcnt lgkmcnt(0)
        s_and_b32 s{dst+1}, s{dst+1}, 0xffff
        s_mov_b32 s{dst+2}, {size}
        s_mov_b32 s{dst+3}, 0x20000""")

    def spin(self, load, vdst, done):
        l, e = self.lab("sp"), self.lab("se")
        self.a(f"""s_mov_b32 s{sSPIN}, {SPIN}
        {l}:
        {load}
        s_waitcnt vmcnt(0) lgkmcnt(0)
        {done}
        s_cbranch_scc1 {e}
        s_sleep 1
        s_sub_u32 s{sSPIN}, s{sSPIN}, 1
        s_cmp_lg_u32 s{sSPIN}, 0
        s_cbranch_scc1 {l}
        {e}:""")

    def wait_init(self, vz, vd):
        srd(self.a, sPT, sDBGP, 256)
        self.a(f"s_lshl_b32 s{sT2}, s{sB}, 2")
        self.spin(f"buffer_load_dword v{vd}, v{vz}, {sr(sPT)}, s{sT2} offen offset:{128*bool(self.dbgst)} sc1", vd,
                  f"v_readfirstlane_b32 s{sT1}, v{vd}\ns_cmp_ge_u32 s{sT1}, 16")

    def prologue(self):
        a = self.a
        a("s_cmp_ge_u32 s2, 256\ns_cbranch_scc1 L_end")
        if self.probes or self.stamps:
            a("s_memtime s[96:97]" if self.probes else "s_memrealtime s[96:97]")
        a(f"""s_load_dwordx2 s[68:69], s[0:1], 96
        s_load_dwordx4 {sr(sOUTP)}, s[0:1], 80
        s_and_b32 s{sHG}, s2, 7
        s_lshr_b32 s{sTY}, s2, 3
        s_and_b32 s{sTY}, s{sTY}, 1
        s_lshr_b32 s{sB}, s2, 4
        s_mul_i32 s{sT0}, s{sTY}, 40
        s_add_u32 s0, s0, s{sT0}
        s_addc_u32 s1, s1, 0
        s_load_dwordx8 s[56:63], s[0:1], 0
        s_load_dwordx2 s[70:71], s[0:1], 32""")
        if self.ipf:
            a(f"""s_getpc_b64 {sr(sT0, 2)}
            L_pc:
            s_sub_u32 s{sT0}, s{sT0}, L_pc-{KERNEL}
            s_subb_u32 s{sT0+1}, s{sT0+1}, 0
            s_and_b32 s{sT2}, s2, 0xf8
            v_lshrrev_b32 v1, 6, v0
            v_add_lshl_u32 v6, v1, s{sT2}, 7
            v_min_u32 v6, L_end-{KERNEL}, v6
            v_mov_b32 v7, s{sT0+1}
            v_add_co_u32 v6, vcc, s{sT0}, v6
            s_nop 1
            v_addc_co_u32 v7, vcc, 0, v7, vcc
            global_load_dword v{vFA+32}, v[6:7], off""")
        a(f"""v_lshrrev_b32 v1, 6, v0
        v_and_b32 v0, 63, v0
        v_readfirstlane_b32 s{sWAVE}, v1
        v_lshrrev_b32 v2, 4, v0
        v_and_b32 v3, 15, v0
        s_and_b32 s{sLW}, s{sWAVE}, 3
        v_lshrrev_b32 v4, 3, v0
        v_and_b32 v5, 7, v0
        v_mul_u32_u24 v7, 1152, v4""")
        for n in range(2):
            a(f"""v_add_u32 v6, {4*n}, v2
            v_xor_b32 v6, v6, v5
            v_lshl_add_u32 v6, v6, 4, v7
            v_add_u32 v{vXVO+n}, {n*(8*1152-1024)}, v6""")
        a(f"""v_and_b32 v1, 1, v2
        v_lshlrev_b32 v1, 1, v1
        v_xor_b32 v1, v1, v5
        v_lshlrev_b32 v1, 4, v1
        v_lshl_add_u32 v{vWVO}, v4, 13, v1
        v_xor_b32 v{vWVO+1}, 64, v{vWVO}
        s_lshl_b32 s{sWCOL}, s{sHG}, 10
        s_lshl_b32 s{sT0}, s{sLW}, 7
        s_add_u32 s{sWCOL}, s{sWCOL}, s{sT0}
        s_mov_b32 s{sWN}, 0
        s_mul_i32 s{sT0}, s{sHG}, {self.hrot}
        s_add_u32 s{sT0}, s{sT0}, s{sB}
        s_mul_i32 s{sT1}, s{sT0}, 57
        s_lshr_b32 s{sT1}, s{sT1}, 9
        s_mul_i32 s{sT1}, s{sT1}, 9
        s_sub_u32 s{sXCH}, s{sT0}, s{sT1}
        s_mov_b32 s{sWCH}, s{sXCH}
        s_mul_i32 s{sXBASE}, s{sB}, 73728
        s_mul_i32 s{sT0}, s{sLW}, 18432
        s_add_u32 s{sXBASE}, s{sXBASE}, s{sT0}
        s_lshl_b32 s{sT0}, s{sB}, 3
        s_add_u32 s{sT0}, s{sT0}, s{sHG}
        s_lshl_b32 s{sPADDR}, s{sT0}, 7
        s_add_u32 s{sPADDR}, s{sPADDR}, {FLAG_OFF + 4096}
        s_lshl_b32 s{sFADDR}, s{sB}, 7
        s_add_u32 s{sFADDR}, s{sFADDR}, {FLAG_OFF}
        s_waitcnt lgkmcnt(0)""")
        srd(a, sX, 56, SIZE['A_x'])
        srd(a, sWQ, 62, SIZE['A_wq'])
        a(f"""s_mov_b32 s{sK}, s58
        s_and_b32 s{sK+1}, s59, 0xffff
        s_lshl_b32 s{sK+2}, {SIZE['A_k']}, s{sTY}
        s_mov_b32 s{sK+3}, 0x20000
        s_mov_b32 s{sV}, s60
        s_and_b32 s{sV+1}, s61, 0xffff
        s_mov_b32 s{sV+2}, s{sK+2}
        s_mov_b32 s{sV+3}, 0x20000""")
        srd(a, sWO, 70, SIZE['A_wo'])
        srd(a, sWS, 68, SIZE['ws'])
        srd(a, sBV, 60, 0)
        if self.probes or self.stamps:
            a(f"s_mov_b32 s{sSLOT}, -1")
            for k in range(8):
                a(f"v_mov_b32 v{248+k}, 0")
            a("v_writelane_b32 v255, s96, 0")
            self.early(1)

    def late_common(self):
        a = self.a
        a(f"""s_lshl_b32 s{sBUFSZ}, 16384, s{sTY}
        s_lshl_b32 s{sT0}, 2048, s{sTY}
        s_mul_i32 s{sKVM0}, s{sT0}, s{sLW}
        s_add_u32 s{sRINGEND}, s{sKVM0}, 98304
        s_lshl_b32 s{sT0}, s{sB}, 3
        s_add_u32 s{sT0}, s{sT0}, s{sHG}
        s_lshl_b32 s{sTBASE}, s{sT0}, 19
        s_add_u32 s{sT1}, s{sTY}, 18
        s_lshl_b32 s{sKVOFF}, s{sT0}, s{sT1}
        s_lshr_b32 s{sT0}, s{sLW}, 1
        s_lshl_b32 s{sT0}, s{sT0}, 17
        s_and_b32 s{sT1}, s{sLW}, 1
        s_lshl_b32 s{sT2}, s{sT1}, 12
        s_add_u32 s{sT0}, s{sT0}, s{sT2}
        s_add_u32 s{sTBASE}, s{sTBASE}, s{sT0}
        s_cmp_eq_u32 s{sTY}, 1
        s_cselect_b32 s{sT0}, s{sT0}, s{sKVM0}
        s_add_u32 s{sKVOFF}, s{sKVOFF}, s{sT0}
        s_lshl_b32 s{sT1}, s{sT1}, 3
        s_cmp_eq_u32 s{sTY}, 1
        s_cselect_b32 s{sT1}, 0, s{sT1}
        s_mov_b32 s{sKVN}, 0
        v_lshlrev_b32 v6, 8, v2
        v_add_u32 v7, s{sT1}, v2""")
        for n in range(4):
            a(f"""v_add_u32 v1, {4*n}, v7
            v_xor_b32 v1, v1, v3
            v_and_b32 v1, 15, v1
            v_lshl_add_u32 v{vKVO+n}, v1, 4, v6""")
        a(f"""v_lshlrev_b32 v1, 2, v2
        v_xor_b32 v1, v1, v3
        v_lshl_add_u32 v{vVVO}, v1, 4, v6""")

    def late_wo(self):
        a = self.a
        for n in range(6):
            a(f"""v_add_u32 v1, {64*n}, v0
            v_mul_u32_u24 v6, 2731, v1
            v_lshrrev_b32 v6, 16, v6
            v_mul_u32_u24 v7, 24, v6
            v_sub_u32 v1, v1, v7
            v_and_b32 v7, 6, v6
            v_xor_b32 v1, v1, v7
            v_lshlrev_b32 v1, 4, v1
            v_mul_u32_u24 v6, 1152, v6
            v_add_u32 v1, v1, v6
            v_subrev_u32 v{vOVO+n}, {1024*(n&3)}, v1""")
        a(f"""s_lshl_b32 s{sT0}, s{sHG}, 9
        s_lshl_b32 s{sT1}, s{sLW}, 4
        s_add_u32 s{sT0}, s{sT0}, s{sT1}
        s_mul_i32 s{sOBASE}, s{sT0}, 1152
        s_and_b32 s{sROT}, s{sB}, 3
        s_mul_i32 s{sOLW}, s{sLW}, 6144
        s_cmp_eq_u32 s{sTY}, 1
        s_mov_b32 s{sRB}, {WR}
        s_mov_b32 s{sRB+1}, {R2}
        s_cselect_b32 s{sRB+2}, {R0}, {R1}
        s_cselect_b32 s{sRB+3}, {R1}, {R0}""")

    def x_adv(self):
        self.a(f"""s_add_u32 s{sXN}, s{sXN}, 1
        s_add_u32 s{sXCH}, s{sXCH}, 1
        s_cmp_eq_u32 s{sXCH}, 9
        s_cselect_b32 s{sXCH}, 0, s{sXCH}""")

    def kv_items_b(self):
        f = self.kvflag
        items = []
        for n in range(8):
            t = ""
            if n == 0:
                t += f"s_mov_b32 m0, s{sKVM0}\ns_cmp_eq_u32 s{sKVN}, 15\n"
            if n == 4:
                t += f"s_add_u32 m0, s{sKVM0}, 16384\ns_add_u32 s{sKVM0}, s{sKVM0}, 32768\n"
            if self.bthr < 63:
                t += f"s_waitcnt vmcnt({self.bthr - 1})\n"
            if n < 4:
                t += f"buffer_load_dwordx4 v{vKVO+n}, {sr(sK)}, s{sKVOFF} offen offset:{1024*n}{f} lds\n"
            else:
                t += f"buffer_load_dwordx4 v{vVVO}, {sr(sV)}, s{sKVOFF} offen offset:{1024*(n-4)}{f} lds\n"
            if n == 0:
                t += f"s_cselect_b32 s{sKVCNT}, 131072, 0\ns_add_u32 s{sKVCNT}, s{sKVCNT}, 8192\ns_add_u32 s{sKVN}, s{sKVN}, 1\n"
            if n == 7:
                t += f"""s_add_u32 s{sKVOFF}, s{sKVOFF}, s{sKVCNT}
                s_cmp_ge_u32 s{sKVM0}, s{sRINGEND}
                s_cselect_b32 s{sKVCNT}, 98304, 0
                s_sub_u32 s{sKVM0}, s{sKVM0}, s{sKVCNT}"""
            items.append(t)
        return items

    def wo_items(self):
        items = []
        for n in range(6):
            t = ""
            if n == 0:
                t += f"""s_add_u32 s{sT0}, s{sOCI}, s{sROT}
                s_and_b32 s{sT0}, s{sT0}, 3
                s_mul_i32 s{sT0}, s{sT0}, 73728
                s_add_u32 s{sT1}, s{sOBUF}, s{sOLW}
                s_mov_b32 m0, s{sT1}
                s_add_u32 s{sT0}, s{sT0}, s{sOBASE}\n"""
            if n == 4:
                t += f"s_add_u32 m0, s{sT1}, 4096\ns_add_u32 s{sOCI}, s{sOCI}, 1\n"
            t += f"buffer_load_dwordx4 v{vOVO+n}, {sr(sWO)}, s{sT0} offen offset:{1024*(n&3)} lds\n"
            if n == 5:
                t += f"""s_and_b32 s{sT0}, s{sOCI}, 3
                s_cselect_b32 s{sT0}, 0, 384
                s_add_u32 s{sOBASE}, s{sOBASE}, s{sT0}
                s_cmp_eq_u32 s{sOCI}, 12
                s_cselect_b32 s{sT0}, {294912-1152}, 0
                s_add_u32 s{sOBASE}, s{sOBASE}, s{sT0}"""
            items.append(t)
        return items

    def w_items(self):
        items = []
        for n in range(8):
            if n == 0:
                t = f"s_lshl_b32 s{sT0}, s{sWCH}, 19\ns_add_u32 s{sT0}, s{sT0}, s{sWCOL}\ns_mov_b32 m0, s{sWBUF}\ns_add_u32 s{sWCH}, s{sWCH}, 1\n"
            elif n == 4:
                t = f"s_add_u32 m0, s{sWBUF}, 4096\ns_add_u32 s{sT0}, s{sT0}, {65536+3072}\n"
            else:
                t = f"s_add_u32 s{sT0}, s{sT0}, {65536-1024}\n"
            t += f"buffer_load_dwordx4 v{vWVO+(n&1)}, {sr(sWQ)}, s{sT0} offen offset:{1024*(n&3)} lds\n"
            if n == 7:
                t += f"""s_cmp_eq_u32 s{sWCH}, 9
                s_cselect_b32 s{sWCH}, 0, s{sWCH}
                s_add_u32 s{sWN}, s{sWN}, 1
                s_cmp_eq_u32 s{sWN}, 9
                s_cselect_b32 s{sT1}, 512, 0
                s_add_u32 s{sWCOL}, s{sWCOL}, s{sT1}"""
            items.append(t)
        return items

    def subs(self):
        a = self.a
        f = self.kvflag
        a(f"""F_x:
        s_lshl_b32 s{sT0}, s{sXCH}, 7
        s_add_u32 s{sT0}, s{sT0}, s{sXBASE}
        s_and_b32 s{sT1}, s{sXN}, 3
        s_lshl_b32 s{sT1}, s{sT1}, 2
        s_add_u32 s{sT1}, s{sT1}, s{sLW}
        s_lshl_b32 s{sT1}, s{sT1}, 11
        s_add_u32 m0, s{sT1}, {XR}""")
        self.x_adv()
        for n in range(2):
            a(f"buffer_load_dwordx4 v{vXVO+n}, {sr(sX)}, s{sT0} offen offset:{1024*n} lds")
        self.ret()
        a("F_w:")
        for t in self.w_items():
            a(t)
        self.ret()
        a(f"""F_kv:
        s_cmp_eq_u32 s{sTY}, 0
        s_cbranch_scc1 F_kv_a""")
        for t in self.kv_items_b():
            a(t)
        a(f"s_mov_b32 s{sKVCNT}, 8")
        self.ret()
        a(f"""F_kv_a:
        s_mov_b32 s{sKVCNT}, 0
        s_cmp_ge_u32 s{sKVN}, 32
        s_cbranch_scc1 F_kv_ret""")
        if self.follow:
            a(f"""s_cmp_eq_u32 s{sTHR}, 0
            s_cbranch_scc1 F_kv_go
            s_waitcnt vmcnt(0)
            v_readfirstlane_b32 s{sPROG}, v{vPR}""")
            if self.pace < 99:
                check = f"s_add_u32 s{sT1}, s{sPROG}, {self.pace}\ns_cmp_ge_u32 s{sT1}, s{sKVN}"
                a(check + "\ns_cbranch_scc1 F_kv_go")
                self.spin(f"buffer_load_dword v{vPR}, v{vZ}, {sr(sWS)}, s{sPADDR} offen sc1", vPR,
                          f"v_readfirstlane_b32 s{sPROG}, v{vPR}\n" + check)
            a("F_kv_go:")
        a(f"""s_mov_b32 m0, s{sKVM0}
        s_mov_b32 s{sKVCNT}, 4""")
        if self.thr < 63:
            a(f"s_lshr_b32 s{sT1}, {self.thrmask}, s{sKVN}\ns_and_b32 s{sT1}, s{sT1}, s{sTHR}")
        for n in range(4):
            if self.thr < 63:
                l = self.lab("thr")
                a(f"s_cmp_eq_u32 s{sT1}, 0\ns_cbranch_scc1 {l}\ns_waitcnt vmcnt({self.thr-1})\n{l}:")
            if n == 2:
                a(f"s_add_u32 m0, s{sKVM0}, 8192\ns_add_u32 s{sKVN}, s{sKVN}, 1")
            if n < 2:
                a(f"buffer_load_dwordx4 v{vKVO+n}, {sr(sK)}, s{sKVOFF} offen offset:{1024*n}{f} lds")
            else:
                a(f"buffer_load_dwordx4 v{vVVO}, {sr(sV)}, s{sKVOFF} offen offset:{1024*(n-2)}{f} lds")
        a(f"""s_add_u32 s{sKVOFF}, s{sKVOFF}, 8192
        s_add_u32 s{sKVM0}, s{sKVM0}, 16384
        s_cmp_ge_u32 s{sKVM0}, s{sRINGEND}
        s_cselect_b32 s{sT0}, 98304, 0
        s_sub_u32 s{sKVM0}, s{sKVM0}, s{sT0}""")
        if self.follow or self.help:
            a(f"s_cmp_eq_u32 s{sTHR}, 0\ns_cbranch_scc1 F_kv_ret")
        if self.help:
            if self.ahead < 0:
                a(f"""s_add_u32 s{sT1}, s{sPROG}, {self.lead0}
                s_max_u32 s{sTN}, s{sTN}, s{sT1}
                s_add_u32 s{sT1}, s{sPROG}, {self.lead1}
                s_min_u32 s{sT1}, s{sT1}, 31
                s_cmp_le_u32 s{sTN}, s{sT1}
                s_cselect_b32 s{sLAST}, s{sTN}, s{sLAST}
                s_addc_u32 s{sTN}, s{sTN}, 0""")
            else:
                a(f"""s_cmp_lt_u32 s{sKVN}, {self.early_n}
                s_cselect_b32 s{sLAST}, {self.ahead0}, {self.ahead}
                s_add_u32 s{sLAST}, s{sKVN}, s{sLAST}
                s_min_u32 s{sLAST}, s{sLAST}, 31
                s_max_u32 s{sLAST}, s{sLAST}, {self.from_}""")
            a(f"""s_and_b32 s{sT0}, s{sLAST}, 15
            s_lshl_b32 s{sT0}, s{sT0}, 13
            s_lshr_b32 s{sT1}, s{sLAST}, 4
            s_lshl_b32 s{sT1}, s{sT1}, 18
            s_add_u32 s{sT0}, s{sT0}, s{sT1}
            s_add_u32 s{sT0}, s{sT0}, s{sTBASE}
            s_mov_b64 exec, {(1 << self.help) - 1}
            buffer_load_dword v{vDUM}, v{vL7}, {sr(sBV)}, s{sT0} offen offset:{4096 - 128*self.help}
            s_mov_b64 exec, -1""")
        if self.follow:
            a(f"buffer_load_dword v{vPR}, v{vZ}, {sr(sWS)}, s{sPADDR} offen sc1")
        a("F_kv_ret:")
        self.ret()
        a("F_wo:")
        for t in self.wo_items():
            a(t)
        self.ret()

    def kvwait(self):
        l = self.lab("kw")
        self.a(f"""s_waitcnt vmcnt(8)
        s_cmp_eq_u32 s{sKVCNT}, 8
        s_cbranch_scc1 {l}
        s_waitcnt vmcnt({self.NA})
        s_cmp_eq_u32 s{sKVCNT}, 4
        s_cbranch_scc1 {l}
        s_waitcnt vmcnt(0)
        {l}:""")

    def pretouch_wq(self, dst):
        if not self.touch:
            return
        a = self.a
        l = self.lab("pt")
        a(f"s_cmp_eq_u32 s{sTY}, 1\ns_cbranch_scc1 {l}")
        self.other_srd(sPT, 64, SIZE['B_wq'])
        a(f"""s_lshl_b32 s{sT0}, s{sB}, 2
        s_add_u32 s{sT0}, s{sT0}, s{sLW}
        s_mul_i32 s{sT0}, s{sT0}, {9*8192}
        s_lshl_b32 s{sT1}, s{sHG}, 10
        s_add_u32 s{sT0}, s{sT0}, s{sT1}
        v_lshrrev_b32 v1, 2, v0
        v_and_b32 v6, 3, v0
        v_lshlrev_b32 v6, 7, v6
        v_lshl_add_u32 v1, v1, 13, v6
        s_mov_b32 exec_hi, 15
        buffer_load_dword v{dst}, v1, {sr(sPT)}, s{sT0} offen offset:512""")
        if self.touch & 2:
            a(f"buffer_load_dword v{dst+1}, v1, {sr(sWQ)}, s{sT0} offen offset:512")
        a(f"s_mov_b64 exec, -1\n{l}:")

    def pretouch_wo(self, first):
        if not self.touch:
            return
        a = self.a
        l = self.lab("pt")
        a(f"s_cmp_eq_u32 s{sTY}, 1\ns_cbranch_scc1 {l}")
        if first:
            self.other_srd(sPT, 72, SIZE['B_wo'])
            a(f"""s_lshl_b32 s{sT0}, s{sB}, 2
            s_add_u32 s{sT0}, s{sT0}, s{sLW}
            s_mul_i32 s{sT0}, s{sT0}, 9216
            s_mul_i32 s{sTN}, s{sHG}, 589824
            s_add_u32 s{sTN}, s{sTN}, s{sT0}""")
        else:
            a(f"s_mov_b64 exec, 0xfff\nbuffer_load_dword v{vFA}, v{vL7}, {sr(sPT)}, s{sTN} offen")
            if self.touch & 2:
                a(f"buffer_load_dword v{vFA+1}, v{vL7}, {sr(sWO)}, s{sTN} offen")
            a(f"s_mov_b64 exec, -1\ns_add_u32 s{sTN}, s{sTN}, 1536")
        a(f"{l}:")

    def rdA(self, reg, areg, mt, off0, off1, tag):
        return [(f"ds_read_b64_tr_b16 {vr(reg + 2*j, 2)}, v{areg+mt} offset:{o}", tag + (j,)) for j, o in enumerate((off0, off1))]

    def rdB(self, ks, qt):
        return (f"ds_read_b128 {vr(vFB + (ks*4+qt)*4, 4)}, v{vXA+ks} offset:{2048*qt}", ("B", ks, qt))

    def mfma(self, acc, mt, qt, areg, ks):
        c = vr(acc + (mt*4+qt)*4, 4)
        return f"v_mfma_f32_16x16x32_bf16 {c}, {vr(areg, 4)}, {vr(vFB + (ks*4+qt)*4, 4)}, {c}"

    def qA(self, ks, mt):
        return vFA + (ks*4 + mt)*4

    def q_rdA(self, ks, mt):
        return self.rdA(self.qA(ks, mt), vWA, mt, 32*ks*128, (32*ks+4)*128, ("A", ks, mt))

    def q_finalize(self, acc, pending):
        a = self.a
        a(f"s_mov_b32 s{sT2}, {fbits(QSCALE)}")
        mul, cvt, put = [], [], []
        for mt in range(4):
            for qt in range(4):
                c = acc + (mt*4+qt)*4
                mul.append("\n".join(f"v_mul_f32 v{c+r}, s{sT2}, v{c+r}" for r in range(4)))
                cvt.append(f"v_cvt_pk_bf16_f32 v{c}, v{c}, v{c+1}\nv_cvt_pk_bf16_f32 v{c+1}, v{c+2}, v{c+3}")
                put.append((f"v_xor_b32 v1, {32*mt}, v{vQW}\n" if qt == 0 else "") + f"ds_write_b64 v1, {vr(c,2)} offset:{2048*qt}")
        work = ["\n".join(([put[k-2]] if 2 <= k < 18 else []) + ([cvt[k-1]] if 1 <= k < 17 else []) + ([mul[k]] if k < 16 else [])) for k in range(18)]
        lead = len(pending) - 16 + 5
        for k, t in enumerate(pending):
            a(t)
            if k + 1 == lead:
                a("s_nop 3")
            if k + 1 >= lead:
                a(work.pop(0))
        for t in work:
            a(t)
        a("s_waitcnt lgkmcnt(0)")

    ORDER4 = [(mt, qt) for mt in range(4) for qt in range(4)]
    ORDER3 = [(mt, qt) for mt in range(3) for qt in range(4)]
    NEXTX = [f"s_add_u32 s{sN}, s{sN}, 1\ns_and_b32 s{sT0}, s{sN}, 3\ns_lshl_b32 s{sT0}, s{sT0}, 13",
             f"v_add_u32 v{vXA}, s{sT0}, v{vXA0}", f"v_add_u32 v{vXA+1}, s{sT0}, v{vXA0+1}"]

    def pj_first(self):
        a = self.a
        ACC0 = vACC
        a("L_pj:")
        a(f"""v_mov_b32 v{vZ}, 0
        v_lshlrev_b32 v{vL7}, 7, v0
        s_cmp_lg_u32 s{sLW}, 0
        s_cbranch_scc1 L_pj_a
        s_lshl_b32 s{sT0}, s{sTY}, 11
        s_lshl_b32 s{sT1}, s{sHG}, 2
        s_add_u32 s{sT0}, s{sT0}, s{sT1}
        s_add_u32 s{sT0}, s{sT0}, s{sFADDR}
        s_cmp_eq_u32 s{sTY}, 1
        s_cselect_b32 s{sT1}, s{sPADDR}, s{sT0}
        s_mov_b64 exec, 1
        buffer_store_dword v{vZ}, v{vZ}, {sr(sWS)}, s{sT0} offen sc1
        buffer_store_dword v{vZ}, v{vZ}, {sr(sWS)}, s{sT1} offen sc1
        s_mov_b64 exec, -1
        L_pj_a:""")
        self.early(6)
        for i in list(range(vKVO, vXVO)) + list(range(vOVO, vWVO)):
            a(f"v_mov_b32 v{i}, 0")
        a(f"""s_lshl_b32 s{sT2}, s{sLW}, 13
        s_mov_b32 s{sWB}, {R1}
        s_mov_b32 s{sWB+1}, {R2}
        s_mov_b32 s{sWB+2}, {WR}
        v_lshrrev_b32 v1, 2, v3
        v_lshl_add_u32 v6, v2, 3, v1
        v_lshrrev_b32 v1, 1, v1
        v_and_b32 v7, 1, v2
        v_lshl_or_b32 v1, v7, 1, v1
        v_and_b32 v7, 3, v0
        v_lshlrev_b32 v7, 3, v7
        v_lshl_add_u32 v6, v6, 7, v7
        v_lshl_add_u32 v6, v1, 5, v6
        v_add_u32 v{vWA0}, s{sT2}, v6
        v_add_u32 v{vWA}, {WR}, v{vWA0}""")
        for mt in range(1, 4):
            a(f"v_xor_b32 v{vWA+mt}, {32*mt}, v{vWA}")
        a(f"""v_lshrrev_b32 v1, 1, v3
        v_xor_b32 v6, v1, v2
        v_lshlrev_b32 v6, 4, v6
        v_lshl_add_u32 v6, v3, 7, v6
        v_add_u32 v{vXA0}, {XR}, v6
        v_xor_b32 v{vXA0+1}, 64, v{vXA0}
        v_mov_b32 v{vXA}, v{vXA0}
        v_mov_b32 v{vXA+1}, v{vXA0+1}
        v_lshrrev_b32 v6, 1, v2
        v_xor_b32 v6, v6, v1
        v_lshlrev_b32 v6, 4, v6
        v_lshl_add_u32 v6, v3, 7, v6
        v_and_b32 v7, 1, v2
        v_lshl_add_u32 v6, v7, 3, v6
        v_add_u32 v6, s{sT2}, v6
        v_add_u32 v{vQW}, {R2}, v6""")
        for i in range(64):
            a(f"v_mov_b32 v{ACC0+i}, 0")
        for i in range(16):
            a(f"v_mov_b32 v{vFA+16+i}, 0\nv_mov_b32 v{vFB+16+i}, 0")
        self.early(4)
        srd(a, sPT, sDBGP, 256)
        a(f"""v_mov_b32 v1, 1
        s_lshl_b32 s{sT0}, s{sB}, 2
        s_mov_b32 s{sN}, 0
        s_waitcnt vmcnt(0)
        s_cmp_lg_u32 s{sLW}, 0
        s_cbranch_scc1 L_q0
        s_mov_b64 exec, 1
        buffer_atomic_add v1, v{vZ}, {sr(sPT)}, s{sT0} offen offset:{128*bool(self.dbgst)} sc1
        s_mov_b64 exec, -1""")
        nextbuf = [f"v_add_u32 v{vWA}, s{sWB}, v{vWA0}\ns_mov_b32 s{sT0}, s{sWB}", f"v_xor_b32 v{vWA+1}, 32, v{vWA}\ns_mov_b32 s{sWB}, s{sWB+1}",
                   f"v_xor_b32 v{vWA+2}, 64, v{vWA}\ns_mov_b32 s{sWB+1}, s{sWB+2}", f"v_xor_b32 v{vWA+3}, 96, v{vWA}\ns_mov_b32 s{sWB+2}, s{sT0}"]
        a("L_q0:\ns_barrier")
        self.probe(0, True)
        lg = Lg(a)
        rd = lambda ks: [self.rdB(ks, 0)] + self.q_rdA(ks, 0) + [self.rdB(ks, q) for q in (1, 2, 3)] + sum((self.q_rdA(ks, m) for m in (1, 2, 3)), [])
        r0 = rd(0)
        plan = {k: [] for k in range(-1, 32)}
        for i, x in enumerate(r0):
            plan[i // 2 - 1].append(x)
        for pos, m in ((6, 0), (8, 1), (12, 2), (16, 3)):
            for j, x in enumerate(self.q_rdA(1, m)):
                plan[pos + j].append(x)
        for q in range(4):
            plan[18 + q].append(self.rdB(1, q))
        tail = nextbuf + self.NEXTX
        for x in plan[-1]:
            lg.issue(*x)
        for k in range(32):
            mt, qt = self.ORDER4[k & 15]
            if k == 16:
                lg.wait(*[tag for _, tag in r0])
            a(self.mfma(ACC0, mt, qt, self.qA(1 - (k >> 4), mt), 1 - (k >> 4)))
            for x in plan[k]:
                lg.issue(*x)
            if k >= 22 and tail:
                a(tail.pop(0))
            if k == 30:
                lg.drain()
                a(f"s_cmp_eq_u32 s{sN}, 1")
        self.probe(1)
        a("s_cbranch_scc1 L_q0_setup")
        if self.wqat > 1:
            a(f"s_cmp_eq_u32 s{sN}, {self.wqat}\ns_cbranch_scc1 L_q0_touch")
        a(f"s_cmp_lt_u32 s{sN}, 9\ns_cbranch_scc1 L_q0")
        self.early(10)
        self.q_finalize(ACC0, [self.mfma(ACC0, mt, qt, self.qA(1, mt), 1) for mt, qt in self.ORDER4])
        self.early(12)
        a(f"v_xor_b32 v{vQW}, {R2 ^ WR}, v{vQW}")
        self.stamp(1)
        a("s_branch L_pj_rest")

    def pj_setup(self):
        a = self.a
        a("L_q0_setup:")
        self.late_common()
        self.late_wo()
        a(f"""s_cmp_eq_u32 s{sTY}, 1
        s_cselect_b32 s{sKVN}, 2, 4
        s_lshl_b32 s{sT0}, s{sKVN}, 13
        s_add_u32 s{sKVOFF}, s{sKVOFF}, s{sT0}
        s_add_u32 s{sKVM0}, s{sKVM0}, {R2}
        s_mov_b32 s{sTHR}, 1
        s_add_u32 s{sWCOL}, s{sWCOL}, 512
        s_mov_b32 s{sWN}, 10
        s_add_u32 s{sWCH}, s{sWCH}, 1
        s_cmp_eq_u32 s{sWCH}, 9
        s_cselect_b32 s{sWCH}, 0, s{sWCH}
        s_lshl_b32 s{sT2}, s{sLW}, 13
        s_add_u32 s{sWBUF}, s{sT2}, {WR}
        s_mov_b32 s{sXN}, 12
        s_add_u32 s{sXCH}, s{sXCH}, 3
        s_sub_u32 s{sT0}, s{sXCH}, 9
        s_cmp_ge_u32 s{sXCH}, 9
        s_cselect_b32 s{sXCH}, s{sT0}, s{sXCH}
        s_mov_b32 s{sOCI}, 0
        s_mov_b32 s{sOBUF}, {WR}
        s_mov_b32 s{sTN}, 0
        s_mov_b32 s{sLAST}, 2
        v_mov_b32 v{vPR}, 0""")
        for i in range(64):
            a(f"v_mov_b32 v{vACC+64+i}, 0")
        if self.wqat > 1:
            a("s_branch L_q0\nL_q0_touch:")
        self.pretouch_wq(vFA + 33)
        a("s_branch L_q0")

    def stream_slot(self, ty, rdA, MT, acc, aset, loads, after):
        e = self.a
        e("s_barrier")
        self.probe(0, True)
        lg = Lg(e)
        for t, tag in rdA:
            lg.issue(t, tag)
        lg.drain()
        self.probe(1)
        e("s_barrier")
        self.probe(2)
        for ks in (0, 1):
            for q in range(4):
                lg.issue(*self.rdB(ks, q))
        if loads is None:
            return
        def mk(ks, mt, qt):
            def f():
                lg.wait(("B", ks, qt))
                e(self.mfma(acc, mt, qt, aset(ks, mt), ks))
            return f
        mm = [mk(ks, mt, qt) for ks in (0, 1) for mt in range(MT) for qt in range(4)]
        self.spread(mm, loads + (self.kv_items_b() if ty else []))
        self.probe(6)
        if not ty:
            self.call("F_kv")
        for t in after:
            e(t)

    def store_items(self, G):
        acc = vACC + 48 * G
        items = []
        for qd in range(6):
            c = acc + 8*qd
            t = "\n".join(f"v_cvt_pk_bf16_f32 v{c+i}, v{c+2*i}, v{c+2*i+1}" for i in range(4))
            t += f"\nbuffer_store_dwordx4 {vr(c,4)}, v{vST}, {sr(sWS)}, s{sM} offen offset:{1024*(qd&3)} sc1"
            if qd in (3, 5):
                t += f"\ns_add_u32 s{sM}, s{sM}, {4096 if qd == 3 else 24576-4096}"
            items.append(t)
        return items

    def pj_rest(self):
        a = self.a
        ACC1 = vACC + 64
        qrd = sum((self.q_rdA(ks, m) for ks in (0, 1) for m in range(4)), [])
        a("L_pj_rest:")
        self.prio_set(1)
        a(f"s_cmp_eq_u32 s{sTY}, 1\ns_cbranch_scc1 L_q1_1")
        if self.help:
            self.other_srd(sBV, 56, SIZE['B_v'])
        if self.follow:
            self.wait_init(vZ, vDUM)
        for ty in (0, 1):
            nk = 8 if ty else self.NA
            a(f"L_q1_{ty}:")
            self.stream_slot(ty, qrd, 4, ACC1, self.qA, self.w_items(), self.NEXTX)
            a(f"s_cmp_ge_u32 s{sN}, 16\ns_cbranch_scc1 L_q1_nox{ty}")
            self.call("F_x")
            self.probe(4)
            a(f"s_waitcnt vmcnt({nk + 2})")
            self.probe(5)
            a(f"s_branch L_q1_{ty}\nL_q1_nox{ty}:")
            self.probe(4)
            a(f"s_waitcnt vmcnt({nk})")
            self.probe(5)
            a(f"s_cmp_lt_u32 s{sN}, 17\ns_cbranch_scc1 L_q1_{ty}")
            if not ty:
                a("s_branch L_q1_last")
        a("L_q1_last:")
        self.stream_slot(0, qrd, 4, ACC1, self.qA, None, None)
        self.call("F_kv")
        a("s_waitcnt lgkmcnt(0)")
        self.q_finalize(ACC1, [self.mfma(ACC1, mt, qt, self.qA(ks, mt), ks) for ks in (0, 1) for mt, qt in self.ORDER4])
        self.kvwait()
        self.stamp(2)
        a("s_barrier")
        self.probe(0, True)
        a("s_barrier")
        self.pretouch_wo(True)
        self.call("F_kv")
        for i in range(144):
            a(f"v_mov_b32 v{vACC+i}, 0")
        a(f"""v_lshrrev_b32 v1, 2, v3
        v_and_b32 v7, 1, v2
        v_lshl_add_u32 v1, v7, 2, v1
        v_lshrrev_b32 v7, 1, v2
        v_lshl_add_u32 v6, v7, 4, v1
        v_lshrrev_b32 v1, 1, v1
        v_and_b32 v7, 3, v0
        v_lshlrev_b32 v7, 3, v7
        v_mul_u32_u24 v6, 384, v6
        v_add_u32 v6, v6, v7
        s_mul_i32 s{sT0}, s{sLW}, 3""")
        for nt in range(3):
            a(f"""s_add_u32 s{sT1}, s{sT0}, {nt}
            v_xor_b32 v7, s{sT1}, v1
            v_lshl_add_u32 v{vOA0+nt}, v7, 5, v6
            v_add_u32 v{vOA+nt}, {WR}, v{vOA0+nt}""")
        a(f"""s_lshl_b32 s{sT0}, s{sTY}, 4
        s_add_u32 s{sT0}, s{sT0}, s{sB}
        s_lshl_b32 s{sT0}, s{sT0}, 3
        s_add_u32 s{sT0}, s{sT0}, s{sHG}
        s_mul_i32 s{sM}, s{sT0}, {PART}
        s_add_u32 s{sM}, s{sM}, s{sOLW}
        v_lshlrev_b32 v{vST}, 4, v0""")
        self.kvwait()
        a(f"s_mov_b32 s{sN}, 6\nL_kvl:\ns_barrier")
        self.probe(0, True)
        a("s_barrier")
        self.probe(2)
        self.pretouch_wo(False)
        self.call("F_kv")
        self.probe(4)
        self.kvwait()
        self.probe(5)
        a(f"""s_sub_u32 s{sN}, s{sN}, 1
        s_cmp_lg_u32 s{sN}, 0
        s_cbranch_scc1 L_kvl
        s_barrier""")
        self.probe(0, True)
        a("s_barrier")
        self.call("F_wo")
        self.call("F_kv")
        self.kvwait()
        self.stamp(3)
        oA = lambda c, ks, mt: vFA + 4*mt + (0 if ks == 0 else 12 + 12*(c & 1))
        o_rdA = lambda c, ks, mt: self.rdA(oA(c, ks, mt), vOA, mt, 32*ks*384, (32*ks+8)*384, ("A", ks, mt))
        xa_step = [f"s_add_u32 s{sN}, s{sN}, 1\ns_add_u32 s{sT0}, s{sROT}, s{sN}\ns_and_b32 s{sT0}, s{sT0}, 3\ns_lshl_b32 s{sT0}, s{sT0}, 13",
                   f"v_add_u32 v{vXA}, s{sT0}, v{vXA0}", f"v_add_u32 v{vXA+1}, s{sT0}, v{vXA0+1}"]
        a(f"s_mov_b32 s{sN}, -1")
        for t in xa_step:
            a(t)
        ord_ = sum((o_rdA(0, ks, m) for ks in (0, 1) for m in range(3)), [])
        a(f"s_cmp_eq_u32 s{sTY}, 1\ns_cbranch_scc1 L_o2_1_0")
        for ty in (0, 1):
            for G in range(3):
                a(f"L_o2_{ty}_{G}:")
                self.stream_slot(ty, ord_, 3, vACC + 48*G, lambda ks, mt: oA(0, ks, mt), self.wo_items(), xa_step)
                self.probe(4)
                if ty:
                    a("s_waitcnt vmcnt(8)")
                else:
                    self.kvwait()
                self.probe(5)
                a(f"s_and_b32 s{sT0}, s{sN}, 3\ns_cbranch_scc1 L_o2_{ty}_{G}")
            if not ty:
                a("s_branch L_o2_done")
        a("L_o2_done:")
        self.stamp(4)
        if self.probes:
            a(f"s_add_u32 s{sSLOT}, s{sSLOT}, 3")
        a("s_barrier\ns_barrier")
        self.call("F_kv")
        a(f"""v_lshl_add_u32 v1, v0, 2, s{sRB}
        v_cmp_gt_u32 vcc, 6, v0
        s_and_saveexec_b64 {sr(sT0, 2)}, vcc
        s_cmp_lg_u32 s{sLW}, 0
        s_cbranch_scc1 L_nz
        ds_write_b32 v1, v{vZ} offset:{SYNC - WR}
        L_nz:
        s_mov_b64 exec, -1
        s_waitcnt lgkmcnt(0)""")
        self.kvwait()
        a(f"s_barrier\ns_barrier\ns_mov_b32 s{sOBUF}, s{sRB+1}")
        self.call("F_wo")
        a(f"s_waitcnt vmcnt(6)\ns_barrier\ns_barrier\ns_mov_b32 s{sOBUF}, s{sRB+2}")
        self.call("F_wo")
        self.wait_init(vZ, vDUM)
        if self.prio & 4:
            a("s_setprio 0")
        self.stamp(5)
        for c in range(12):
            acc, prev = vACC + 48 * (c >> 2), vACC + 48 * ((c - 1) >> 2)
            a("s_barrier")
            self.probe(0, True)
            lg = Lg(a)
            r0 = [self.rdB(0, 0)] + o_rdA(c, 0, 0) + [self.rdB(0, q) for q in (1, 2, 3)] + o_rdA(c, 0, 1) + o_rdA(c, 0, 2) + sum((o_rdA(c, 1, m) for m in range(3)), [])
            st = sum((self.store_items(g) for g, at in enumerate((self.store0, self.store1)) if at == c), [])
            r0, ra1 = r0[:10], r0[10:]
            plan = {k: [] for k in range(-1, 24)}
            for i, x in enumerate(r0):
                plan[i // 2 - 1 if c else -1].append(x)
            for i, x in enumerate(ra1):
                plan[4 + i if c else 12 + i // 2].append(x)
            for q in range(4):
                plan[(12 if c else 15) + q].append(self.rdB(1, q))
            fill = [f"v_add_u32 v{vOA+nt}, s{sRB + ((c+1)&3)}, v{vOA0+nt}" for nt in range(3)] + xa_step
            for x in plan[-1]:
                lg.issue(*x)
            for k in range(0 if c else 12, 24):
                mt, qt = self.ORDER3[k % 12]
                if k == 12 and c:
                    lg.wait(*[tag for _, tag in r0])
                elif not c:
                    lg.wait(("A", 0, mt, 0), ("A", 0, mt, 1), ("B", 0, qt))
                a(self.mfma(prev, mt, qt, oA(c - 1, 1, mt), 1) if k < 12 else self.mfma(acc, mt, qt, oA(c, 0, mt), 0))
                for x in plan[k]:
                    lg.issue(*x)
                if k >= (16 if c else 19) and fill:
                    a(fill.pop(0))
                    if not c and fill:
                        a(fill.pop(0))
                if st and k % 4 == 3:
                    a(st.pop(0))
                if k == 22:
                    lg.drain()
            assert not fill
            for t in st:
                a(t)
            if c < 2:
                a(f"s_waitcnt vmcnt({6 - 6*c})")
            if c in (4, 8):
                self.stamp(6 + (c >> 3))
        st = self.store_items(2)
        for k, (mt, qt) in enumerate(self.ORDER3):
            a(self.mfma(vACC + 96, mt, qt, oA(11, 1, mt), 1))
            if k in (9, 11):
                a(st.pop(0))
        for t in st:
            a(t)
        self.stamp(8)
        a(f"""v_mov_b32 v1, {SYNC}
        v_mov_b32 v6, 1
        s_lshl_b32 s{sT0}, s{sTY}, 11
        s_lshl_b32 s{sT1}, s{sHG}, 2
        s_add_u32 s{sT0}, s{sT0}, s{sT1}
        s_add_u32 s{sT0}, s{sT0}, s{sFADDR}
        s_mov_b64 exec, 1""")
        for k in range(1):
            a(f"""s_waitcnt vmcnt(0)
            ds_add_rtn_u32 v7, v1, v6 offset:{4*k}
            s_waitcnt lgkmcnt(0)
            v_readfirstlane_b32 s{sT1}, v7
            s_cmp_lg_u32 s{sT1}, 3
            s_cbranch_scc1 L_nf{k}
            buffer_store_dword v6, v{vZ}, {sr(sWS)}, s{sT0} offen offset:{32*k} sc1
            L_nf{k}:""")
            if k == 0:
                self.stamp(13)
        a("s_mov_b64 exec, -1")
        self.stamp(9)
        self.probe_dump()
        a("s_branch L_reduce")

    def at_first(self):
        a = self.a
        a("L_at:")
        self.prio_set(0)
        if self.alate:
            for i in list(range(vKVO, vXVO)) + list(range(vOVO, vWVO)) + [4]:
                a(f"v_mov_b32 v{i}, 0")
        issued = []
        WBUFS = (WR, R1, R2)

        def ldx(n):
            if n <= 3 or n >= 9:
                self.call("F_x")
            else:
                a(f"s_lshl_b32 s{sT0}, s{sXCH}, 7\ns_add_u32 s{sT0}, s{sT0}, s{sXBASE}")
                self.x_adv()
                for i in range(2):
                    a(f"buffer_load_dwordx4 {vr(vO + (n-4)*8 + 4*i, 4)}, v{vXVO+i}, {sr(sX)}, s{sT0} offen offset:{1024*i}")
            issued.extend([("x", n)] * 2)

        def ldw(n):
            a(f"s_lshl_b32 s{sWBUF}, s{sLW}, 13\ns_add_u32 s{sWBUF}, s{sWBUF}, {WBUFS[n % 3]}")
            self.call("F_w")
            issued.extend([("w", n)] * 8)

        def prefill(k):
            l = self.lab("pf")
            self.call("F_kv")
            a(f"s_cmp_eq_u32 s{sTY}, 1\ns_cbranch_scc1 {l}")
            self.call("F_kv")
            a(f"{l}:")
            issued.extend([("kv", k)] * 8)

        def wait(*tags):
            k = max(i for i, t in enumerate(issued) if t in tags) + 1
            a(f"s_waitcnt vmcnt({min(63, len(issued) - k)})")
        if self.alate:
            a(f"s_cmp_eq_u32 s{sTY}, 1\ns_cbranch_scc1 L_at_b")
            self.call("F_atset")
            a("L_at_b:")
        if self.xtouch:
            l = self.lab("xt")
            a(f"s_cmp_eq_u32 s{sTY}, 1\ns_cbranch_scc1 {l}")
            self.other_srd(sPT, 40, SIZE['B_x'])
            a(f"""v_lshlrev_b32 v1, 7, v0
            s_add_u32 s{sT0}, s{sXBASE}, 8192
            s_add_u32 s{sT1}, s{sXBASE}, 16384
            buffer_load_dword v{vP}, v1, {sr(sPT)}, s{sXBASE} offen
            buffer_load_dword v{vP+1}, v1, {sr(sPT)}, s{sT0} offen
            s_mov_b64 exec, 0xffff
            buffer_load_dword v{vP+2}, v1, {sr(sPT)}, s{sT1} offen
            s_mov_b64 exec, -1""")
            if self.xtouch > 1:
                a(f"s_waitcnt vmcnt({self.xtouch - 2})")
            a(f"{l}:")
        if self.diag:
            a(f"s_cmp_eq_u32 s{sTY}, 1\ns_cbranch_scc1 L_dg")
            for _ in range(self.diag):
                a("s_sleep 32")
            a("L_dg:")
        a(f"s_mov_b32 s{sXN}, 0")
        ldx(0); ldw(0)
        self.early(2)
        if self.alate:
            a(f"s_cmp_eq_u32 s{sTY}, 0\ns_cbranch_scc1 L_at_a")
        self.call("F_atset")
        a("L_at_a:")
        self.early(4)
        ldx(1); ldw(1)
        wait(("x", 0), ("w", 0))
        self.early(5)
        for n in range(9):
            a("s_barrier")
            self.probe(0, True)
            if 1 <= n <= 5:
                wait(("x", n + 3))
                for i in range(2):
                    a(f"ds_write_b128 v{vT}, {vr(vO + (n-1)*8 + 4*i, 4)} offset:{((n+3)&3)*8192 + 1024*i}")
            if n == 0:
                for k in range(2, 9):
                    ldx(k)
            if n == self.prefill == 7:
                prefill(0)
            if n + 2 <= 9:
                ldw(n + 2)
            if n == self.prefill != 7 or n + 10 == self.prefill:
                prefill(0)
            if n == 8:
                prefill(1)
            if n >= 6:
                ldx(n + 3)
            self.probe(4)
            wait(*([("w", n + 1), ("x", n + 1)] + ([("kv", 0)] if n == 8 else [])))
            a("s_waitcnt lgkmcnt(0)")
            self.probe(5)
        if self.prio & 1:
            a("s_setprio 0")
        a("s_branch L_stage\nF_atset:")
        self.late_common()
        a(f"""s_mov_b32 s{sTHR}, 0
        s_lshl_b32 s{sT0}, s{sLW}, 11
        s_add_u32 s{sT0}, s{sT0}, {XR}
        v_lshl_add_u32 v{vT}, v0, 4, s{sT0}""")
        self.at_setup()
        self.ret()

    def at_setup(self):
        a = self.a
        a(f"""s_lshr_b32 s{sT0}, s{sLW}, 1
        s_mul_i32 s{sT0}, s{sT0}, s{sTY}
        s_lshl_b32 s{sT0}, s{sT0}, 13
        v_and_b32 v1, 31, v0
        v_lshrrev_b32 v6, 5, v0
        v_xor_b32 v7, v6, v3
        v_lshlrev_b32 v7, 4, v7
        v_lshl_add_u32 v7, v1, 8, v7
        v_add_u32 v{vKA}, s{sT0}, v7""")
        for s in range(1, 8):
            a(f"v_xor_b32 v{vKA+s}, {32*s}, v{vKA}")
        a(f"""s_lshr_b32 s{sT1}, s{sBUFSZ}, 1
        s_add_u32 s{sT0}, s{sT0}, s{sT1}
        v_lshrrev_b32 v1, 2, v3
        v_lshl_add_u32 v7, v6, 2, v1
        v_lshlrev_b32 v7, 8, v7
        v_lshl_add_u32 v7, v1, 6, v7
        v_and_b32 v1, 1, v2
        v_lshl_add_u32 v7, v1, 5, v7
        v_and_b32 v1, 3, v0
        v_lshl_add_u32 v7, v1, 3, v7
        v_add_u32 v{vVA}, s{sT0}, v7""")
        for dt in range(1, 4):
            a(f"v_xor_b32 v{vVA+dt}, {64*dt}, v{vVA}")
        a(f"""s_mov_b32 s{sRPOS}, 0
        s_mov_b32 s{sSTAGE}, 0
        s_mov_b32 s{sQBUF}, {R2 - XR}
        s_mov_b32 s{sM}, 3
        s_lshr_b32 s{sT0}, s{sLW}, 1
        s_lshl_b32 s{sT0}, s{sT0}, 14
        s_and_b32 s{sT1}, s{sLW}, 1
        s_lshl_b32 s{sT1}, s{sT1}, 12
        s_add_u32 s{sT0}, s{sT0}, s{sT1}
        s_add_u32 s{sT0}, s{sT0}, {XR}
        v_and_b32 v1, 31, v0
        v_bfe_u32 v6, v0, 1, 3
        v_lshrrev_b32 v7, 5, v0
        v_xor_b32 v6, v6, v7
        v_lshlrev_b32 v6, 4, v6
        v_lshl_add_u32 v6, v1, 7, v6
        v_add_u32 v{vH}, s{sT0}, v6""")
        for i in range(1, 4):
            a(f"v_xor_b32 v{vH+i}, {32*i}, v{vH}")
        for i in list(range(vO + 40, vO + 64)) + list(range(vNM + 1, vNM + 16)) + [vL0, vL1, 4] + list(range(vOVO, vOVO + 6)):
            a(f"v_mov_b32 v{i}, 0")

    def at_rest(self):
        a = self.a
        publish = self.follow or self.gate
        a(f"""L_stage:
        s_mov_b32 s{sTH}, 0xff7fffff
        s_mov_b32 s{sFLOOR}, 0xff7fffff
        s_mov_b32 s{sFIRST}, 0
        s_cmp_lg_u32 s{sSTAGE}, 0
        s_cbranch_scc1 L_stage_a
        v_mov_b32 v{vNM}, 0
        L_stage_a:""")
        for i in range(4):
            a(f"v_add_u32 v{vT+i}, s{sQBUF}, v{vH+i}")
        a(f"s_mov_b32 s{sN}, 0\nL_tile:\ns_barrier")
        self.probe(0, True)
        a(f"s_cmp_lg_u32 s{sN}, 0\ns_cbranch_scc1 L_tile_k")
        for s in range(8):
            a(f"ds_read_b128 {vr(vQ+4*s, 4)}, v{vT+(s&3)} offset:{8192*(s>>2)}")
        a("s_waitcnt lgkmcnt(0)\nL_tile_k:")
        lg = Lg(a)
        for s in range(8):
            lg.issue(f"ds_read_b128 {vr(vKF+4*s, 4)}, v{vKA+s}", ("K", s))
        a("s_barrier")
        vreads = [(f"ds_read_b64_tr_b16 {vr(vVF + (u*4+dt)*4 + 2*j, 2)}, v{vVA+dt} offset:{(16*u+8*j)*256}", ("V", u, dt, j))
                  for u in range(2) for dt in range(4) for j in range(2)]
        for s in range(8):
            lg.wait(("K", s))
            c = vr(vNM, 16) if s == 0 else vr(vS, 16)
            a(f"v_mfma_f32_32x32x16_bf16 {vr(vS,16)}, {vr(vKF+4*s,4)}, {vr(vQ+4*s,4)}, {c}")
            for _ in range(2):
                if len(lg.q) < 15:
                    lg.issue(*vreads.pop(0))
        for t, tag in vreads:
            lg.issue(t, tag)
        a(f"""s_add_u32 s{sRPOS}, s{sRPOS}, s{sBUFSZ}
        s_cmp_ge_u32 s{sRPOS}, 98304
        s_cselect_b32 s{sT0}, 98304, 0
        s_sub_u32 s{sRPOS}, s{sRPOS}, s{sT0}
        s_sub_u32 s{sT0}, s{sBUFSZ}, s{sT0}""")
        adv = [f"v_add_u32 v{vKA+i}, s{sT0}, v{vKA+i}" for i in range(12)]
        for t in adv[:7]:
            a(t)
        adv = adv[7:]
        t0, t1 = vT, vT + 1
        a(f"v_max3_f32 v{t0}, v{vS}, v{vS+1}, v{vS+2}\nv_max3_f32 v{t1}, v{vS+3}, v{vS+4}, v{vS+5}")
        for i in range(6, 14, 4):
            a(f"v_max3_f32 v{t0}, v{t0}, v{vS+i}, v{vS+i+1}\nv_max3_f32 v{t1}, v{t1}, v{vS+i+2}, v{vS+i+3}")
        a(f"""v_max3_f32 v{t0}, v{t0}, v{vS+14}, v{vS+15}
        v_max_f32 v{t0}, v{t0}, v{t1}
        v_cmp_lt_f32 vcc, s{sTH}, v{t0}
        s_cbranch_vccnz L_rescale
        L_tile_exp:""")
        ex = lambda u: [f"v_exp_f32 v{vS+8*u+i}, v{vS+8*u+i}" for i in range(8)]
        cv = lambda u: [f"v_cvt_pk_bf16_f32 v{vP+4*u+i}, v{vS+8*u+2*i}, v{vS+8*u+2*i+1}" for i in range(4)]
        ad = lambda u: [f"v_add_f32 v{vL0+(i&1)}, v{vL0+(i&1)}, v{vS+8*u+i}" for i in range(8)]
        pv = lambda u, dt: f"v_mfma_f32_32x32x16_bf16 {vr(vO+16*dt,16)}, {vr(vVF+(u*4+dt)*4,4)}, {vr(vP+4*u,4)}, {vr(vO+16*dt,16)}"
        e0, c0, a0 = ex(0), cv(0), ad(0)
        for t in e0[:3] + [e0[3], c0[0], e0[4], e0[5], c0[1], e0[6], e0[7], c0[2], a0[0], c0[3], a0[1], a0[2]]:
            a(t)
        e1, c1, a1 = ex(1), cv(1), ad(1)
        gaps = [e1[0:3], e1[3:6], e1[6:8] + c1[0:2], [c1[2], c1[3]] + a0[3:6]]
        for dt in range(4):
            lg.wait(("V", 0, dt, 0), ("V", 0, dt, 1))
            a(pv(0, dt))
            for t in gaps[dt]:
                a(t)
        rest = a0[6:] + a1 + adv
        for dt in range(4):
            lg.wait(("V", 1, dt, 0), ("V", 1, dt, 1))
            a(pv(1, dt))
            for _ in range(5):
                if rest: a(rest.pop(0))
        assert not rest
        self.probe(6)
        a(f"s_or_b32 s{sT0}, s{sSTAGE}, s{sN}\ns_cbranch_scc1 L_tile_nw\ns_waitcnt vmcnt(0)\nL_tile_nw:")
        if publish:
            a(f"""s_cmp_gt_u32 s{sTY}, s{sLW}
            s_cbranch_scc0 L_tile_np""")
            if not self.follow:
                a(f"s_add_u32 s{sM}, s{sM}, 1\ns_cmp_eq_u32 s{sM}, {self.gate + 1}\ns_cbranch_scc0 L_tile_np\ns_sub_u32 s{sM}, s{sM}, 1")
            a(f"""v_mov_b32 v5, s{sM}
            s_mov_b64 exec, 1
            buffer_store_dword v5, v4, {sr(sWS)}, s{sPADDR} offen sc1
            s_mov_b64 exec, -1
            s_add_u32 s{sM}, s{sM}, 1
            L_tile_np:""")
        a(f"""s_add_u32 s{sN}, s{sN}, 1
        s_cmp_lt_u32 s{sN}, 16
        s_cbranch_scc1 L_tile""")
        a(f"""v_add_f32 v{vT+2}, v{vL0}, v{vL1}
        s_mov_b32 s{sQBUF}, {WR - XR}
        v_mov_b32 v{vT+3}, v{vT+2}
        s_add_u32 s{sSTAGE}, s{sSTAGE}, 1
        s_nop 0
        v_permlane32_swap_b32 v{vT+2}, v{vT+3}
        v_add_f32 v{vT+2}, v{vT+2}, v{vT+3}
        v_rcp_f32 v{vT+2}, v{vT+2}
        s_nop 0""")
        mul, put = [], []
        for dt in range(4):
            for ip in range(2):
                c = vO + 16*dt + 8*ip
                mul.append("\n".join(f"v_mul_f32 v{c+i}, v{c+i}, v{vT+2}" for i in range(8)))
                put.append("\n".join(f"v_cvt_pk_bf16_f32 v{c+i}, v{c+2*i}, v{c+2*i+1}" for i in range(4)) +
                           f"\nds_write_b128 v{vH + 2*(dt&1) + ip}, {vr(c,4)} offset:{8192*(dt>>1)}")
        for k in range(9):
            if k < 8: a(mul[k])
            if k: a(put[k-1])
        a(f"""s_cmp_lt_u32 s{sSTAGE}, 2
        s_cbranch_scc0 L_feed0""")
        self.late_wo()
        a(f"""s_mov_b32 s{sOCI}, 15
        s_add_u32 s{sOBASE}, s{sOBASE}, 294912
        s_waitcnt lgkmcnt(0)
        s_branch L_stage""")
        a("L_feed0:")
        self.prio_set(2)
        a(f"""s_mov_b32 s{sN}, 0
        s_waitcnt lgkmcnt(0)
        L_feed:
        s_add_u32 s{sT0}, s{sOCI}, s{sROT}
        s_and_b32 s{sT0}, s{sT0}, 3
        s_mul_i32 s{sT0}, s{sT0}, 73728
        s_add_u32 s{sT0}, s{sT0}, s{sOBASE}
        s_add_u32 s{sT1}, s{sRB+3}, s{sOLW}
        s_mov_b32 m0, s{sT1}
        s_barrier""")
        self.probe(0, True)
        if self.probes:
            a(f"s_mov_b32 m0, s{sT1}\ns_nop 0")
        for n in range(6):
            if n == 4:
                a(f"s_add_u32 m0, s{sT1}, 4096\ns_add_u32 s{sOCI}, s{sOCI}, 1")
            a(f"buffer_load_dwordx4 v{vOVO+n}, {sr(sWO)}, s{sT0} offen offset:{1024*(n&3)} lds")
        a(f"""s_and_b32 s{sT0}, s{sOCI}, 3
        s_cselect_b32 s{sT0}, 0, 384
        s_add_u32 s{sOBASE}, s{sOBASE}, s{sT0}
        s_mov_b32 s{sT0}, s{sRB+3}
        s_mov_b32 s{sRB+3}, s{sRB}
        s_mov_b32 s{sRB}, s{sRB+1}
        s_mov_b32 s{sRB+1}, s{sRB+2}
        s_mov_b32 s{sRB+2}, s{sT0}
        s_add_u32 s{sN}, s{sN}, 1""")
        self.probe(4)
        a(f"""s_waitcnt vmcnt(12)
        s_cmp_lt_u32 s{sN}, 9
        s_cbranch_scc1 L_feed""")
        if self.gate:
            a(f"s_or_b32 s{sT0}, s{sTY}, s{sLW}\ns_cbranch_scc1 L_gate")
            self.wait_init(4, 5)
            self.spin(f"buffer_load_dword v5, v4, {sr(sWS)}, s{sPADDR} offen sc1", 5,
                      f"v_readfirstlane_b32 s{sT1}, v5\ns_cmp_ge_u32 s{sT1}, {self.gate}")
            a("L_gate:")
        a("""s_barrier
        s_waitcnt vmcnt(6)
        s_barrier
        s_waitcnt vmcnt(0)
        s_barrier""")
        self.probe_dump()

    def reduce(self):
        a = self.a
        vL, vO0, vD, vSum = 6, 14, 40, 104
        a("L_reduce:")
        self.stamp(10)
        srd(a, sX, sOUTP, SIZE['out'])
        a(f"""s_setprio 0
        s_lshl_b32 s{sN}, s{sTY}, 3
        s_add_u32 s{sN}, s{sN}, s{sHG}
        s_lshl_b32 s{sT0}, s{sLW}, 4
        s_add_u32 s{sN}, s{sN}, s{sT0}
        s_mul_i32 s{sN}, s{sN}, 36
        s_lshr_b32 s{sSTAGE}, s{sWAVE}, 2
        s_lshl_b32 s{sT0}, s{sSTAGE}, 4
        s_add_u32 s{sT0}, s{sT0}, s{sB}
        s_mul_i32 s{sM}, s{sT0}, {8*PART}
        s_mul_i32 s{sOBASE}, s{sB}, {64*2304}
        s_mul_i32 s{sT0}, s{sSTAGE}, 1152
        s_add_u32 s{sOBASE}, s{sOBASE}, s{sT0}
        s_lshl_b32 s{sT0}, s{sSTAGE}, 11
        s_add_u32 s{sFADDR}, s{sFADDR}, s{sT0}
        s_lshl_b32 s{sT1}, s{sSTAGE}, 2
        s_add_u32 s{sT1}, s{sT1}, {SYNC + 8}
        v_mov_b32 v4, 0
        v_mov_b32 v9, s{sT1}
        v_mov_b32 v10, 1
        v_and_b32 v8, 7, v0
        v_lshlrev_b32 v8, 2, v8""")
        for k in range(2):
            a(f"""v_add_u32 v1, s{sN}, v0
            v_lshlrev_b32 v{vL+k}, 4, v1
            v_lshrrev_b32 v11, 6, v1
            v_mul_u32_u24 v12, 43, v11
            v_lshrrev_b32 v12, 8, v12
            v_mul_u32_u24 v13, 6, v12
            v_sub_u32 v13, v11, v13
            v_mul_u32_u24 v12, 96, v12
            v_lshrrev_b32 v11, 1, v13
            v_lshl_add_u32 v12, v11, 5, v12
            v_and_b32 v13, 1, v13
            v_lshlrev_b32 v13, 5, v13
            v_and_b32 v11, 15, v1
            v_add_u32 v13, v13, v11
            v_mul_u32_u24 v13, 2304, v13
            v_bfe_u32 v11, v1, 4, 2
            v_lshl_add_u32 v12, v11, 3, v12
            v_add_u32 v{vO0+k}, v12, v13
            s_add_u32 s{sN}, s{sN}, 2304""")
        a(f"s_cmp_lg_u32 s{sLW}, 0\ns_cbranch_scc1 L_red_lds\ns_cmp_eq_u32 s{sSTAGE}, 1\ns_cbranch_scc1 L_red_init")
        self.wait_init(4, 5)
        a("L_red_init:")
        NP = self.polls
        ld = lambda k: f"buffer_load_dword v{16+k}, v8, {sr(sWS)}, s{sFADDR} offen sc1"
        for k in range(NP - 1):
            a(ld(k) + f"\ns_sleep {self.nap}")
        a(f"s_mov_b32 s{sSPIN}, {SPIN}\nL_red_poll:")
        for k in range(NP):
            a(f"""{ld((k + NP - 1) % NP)}
            s_waitcnt vmcnt({NP - 1})
            v_cmp_ne_u32 vcc, 1, v{16+k}
            s_cbranch_vccz L_red_seen
            s_sleep {self.nap}""")
        a(f"""s_sub_u32 s{sSPIN}, s{sSPIN}, 1
        s_cbranch_scc0 L_red_poll
        L_red_seen:
        ds_write_b32 v9, v10
        s_branch L_red_go
        L_red_lds:""")
        self.spin("ds_read_b32 v5, v9", 5, f"v_readfirstlane_b32 s{sT1}, v5\ns_cmp_eq_u32 s{sT1}, 1")
        a(f"L_red_go:\ns_mov_b32 exec_hi, 15")
        self.stamp(14)
        for k in range(2):
            a(f"s_mov_b32 s{sT0}, s{sM}")
            for h in range(8):
                a(f"buffer_load_dwordx4 {vr(vD+32*k+4*h,4)}, v{vL+k}, {sr(sWS)}, s{sT0} offen sc1\ns_add_u32 s{sT0}, s{sT0}, {PART}")
        a(f"s_waitcnt vmcnt(8)\ns_add_u32 s{sT0}, s{sOBASE}, {16*2304}")
        for k in range(2):
            if k:
                a("s_waitcnt vmcnt(2)")
            for h in range(8):
                for i in range(4):
                    r = vD + 32*k + 4*h + i
                    if h == 0:
                        a(f"v_lshlrev_b32 v{vSum+2*i}, 16, v{r}\nv_and_b32 v{vSum+2*i+1}, 0xffff0000, v{r}")
                    else:
                        a(f"""v_lshlrev_b32 v11, 16, v{r}
                        v_and_b32 v12, 0xffff0000, v{r}
                        v_add_f32 v{vSum+2*i}, v{vSum+2*i}, v11
                        v_add_f32 v{vSum+2*i+1}, v{vSum+2*i+1}, v12""")
            for i in range(4):
                a(f"v_cvt_pk_bf16_f32 v{vSum+8+4*k+i}, v{vSum+2*i}, v{vSum+2*i+1}")
            a(f"""buffer_store_dwordx2 {vr(vSum+8+4*k,2)}, v{vO0+k}, {sr(sX)}, s{sOBASE} offen
            buffer_store_dwordx2 {vr(vSum+10+4*k,2)}, v{vO0+k}, {sr(sX)}, s{sT0} offen""")
        a("L_red_end:")
        if self.stamps:
            a("s_mov_b64 exec, -1\ns_waitcnt vmcnt(0)")
            self.stamp(12)
            self.stamp_dump(0)
            self.stamp_dump(1)
            if self.hold:
                a(f"""s_cmp_lg_u32 s2, {self.hwg}
                s_cbranch_scc1 L_end
                s_cmp_lg_u32 s{sWAVE}, 4
                s_cbranch_scc1 L_end
                v_readlane_b32 s{sT0}, v255, 0
                v_readlane_b32 s{sT1}, v255, {self.hi}
                v_readlane_b32 s{sT2}, v255, {self.hj}
                s_sub_u32 s{sT2}, s{sT2}, s{sT1}
                s_add_u32 s{sT2}, s{sT2}, {self.hold*100}
                s_mov_b32 s{sSPIN}, {SPIN}
                L_hold:
                s_memrealtime s[98:99]
                s_waitcnt lgkmcnt(0)
                s_sub_u32 s98, s98, s{sT0}
                s_cmp_ge_u32 s98, s{sT2}
                s_cbranch_scc1 L_end
                s_sub_u32 s{sSPIN}, s{sSPIN}, 1
                s_cbranch_scc0 L_hold""")
        a("s_endpgm")

    def at_rare(self):
        a = self.a
        t0, t1, d, al = vT, vT + 1, vT, vT + 2
        a(f"""L_rescale:
        v_mov_b32 v{t1}, v{t0}
        s_nop 1
        v_permlane32_swap_b32 v{t0}, v{t1}
        v_max3_f32 v{d}, v{t0}, v{t1}, s{sFLOOR}
        v_max_f32 v{al}, 0, v{d}
        v_exp_f32 v{al}, -v{al}
        s_mov_b32 s{sTH}, 0x41000000
        s_mov_b32 s{sFLOOR}, 0
        v_mul_f32 v{al}, s{sFIRST}, v{al}
        s_mov_b32 s{sFIRST}, 1.0""")
        for i in range(16):
            a(f"v_sub_f32 v{vS+i}, v{vS+i}, v{d}\nv_sub_f32 v{vNM+i}, v{vNM+i}, v{d}")
        a(f"v_mul_f32 v{vL0}, v{vL0}, v{al}\nv_mul_f32 v{vL1}, v{vL1}, v{al}")
        for i in range(0, 64, 2):
            a(f"v_pk_mul_f32 {vr(vO+i,2)}, {vr(vO+i,2)}, {vr(al,2)} op_sel_hi:[1,0]")
        a("s_branch L_tile_exp")

    def main(self):
        a = self.a
        self.prologue()
        a(f"s_cmp_ge_u32 s{sWAVE}, 4\ns_cbranch_scc1 L_pj\ns_branch L_at")
        self.subs()
        self.at_first()
        self.pj_first()
        self.pj_setup()
        self.at_rest()
        self.reduce()
        self.at_rare()
        self.pj_rest()
        a("L_end:\ns_endpgm")
        return a.text()


HEADER = open("cdna_kernels/" + NAME + ".s.ref").read().split("; Override launch geometry")[0]


def build(**kw):
    return HEADER + single(Gen(**kw).main(), 256, 512, LDS_BYTES, vgpr=256, accum=256, sgpr=102)


if __name__ == "__main__":
    kw = {}
    for x in sys.argv[2:]:
        k, v = x.split("=")
        kw[k] = int(v, 0)
    open(sys.argv[1], "w").write(build(**kw))
```

```python
import sys, struct
sys.path.insert(0, "tools")
from asmlib import *

KERNEL = NAME + "_kernel"
R0, R1, R2, WR, XR = 0, 32768, 65536, 98304, 131072
SYNC = WR + 24576
LDS_BYTES = 163840
PART = 73728
FLAG_OFF = 32 << 20
PROBE_OFF = 241 << 20
QSCALE = 1.4426950408889634 / 128 ** 0.5
SPIN = 1 << 16


def fbits(x):
    return "0x%08x" % struct.unpack("<I", struct.pack("<f", x))[0]


sWAVE, sLW, sHG, sTY, sB = 3, 4, 5, 6, 7
sK, sV, sX, sWQ, sWO, sWS = 8, 12, 16, 20, 24, 28
sKVOFF, sKVM0, sKVN = 32, 33, 34
sWCOL, sWCH, sWN = 35, 36, 37
sXBASE, sXCH, sXN = 38, 39, 40
sOCI, sOBASE, sROT = 41, 42, 43
sN, sM = 44, 45
sT0, sT1, sT2 = 46, 47, 48
sBUFSZ, sRINGEND, sWBUF, sOLW, sOBUF, sTHR, sKVCNT = 49, 50, 51, 52, 53, 54, 55
sTH, sFLOOR, sRPOS, sSTAGE = 56, 57, 58, 59
sRB = 60
sRET = 64
sFIRST, sQBUF, sSLOT = 66, 67, 68
sC8K = 67
sWB = 69
sBV, sPT = 72, 76
sOUTP, sDBGP = 80, 82
sTN, sLAST, sPADDR, sTBASE = 84, 85, 86, 87
sFADDR, sSPIN, sPROG = 88, 89, 90

vKVO, vVVO, vXVO, vOVO, vWVO = 8, 12, 13, 15, 21
vWA, vWA0, vQW = 23, 27, 28
vOA0, vOA, vST = 23, 26, 29
vXA0, vXA, vZ, vL7 = 30, 32, 34, 35
vFA, vFB, vACC = 36, 72, 104
vPR, vDUM = 4, 5
vKA, vVA, vL0, vL1, vT = 23, 31, 35, 36, 40
vP, vS, vNM, vQ, vKF, vVF, vO, vH = 44, 52, 68, 84, 116, 148, 180, 244


def vr(i, n):
    return f"v[{i}:{i+n-1}]"


def sr(i, n=4):
    return f"s[{i}:{i+n-1}]"


class Lg:
    def __init__(self, a):
        self.a, self.q = a, []
    def issue(self, text, tag):
        if len(self.q) == 15:
            self.wait(self.q[0])
        self.a(text)
        self.q.append(tag)
    def wait(self, *tags):
        idx = max((i for i, t in enumerate(self.q) if t in tags), default=-1)
        if idx < 0:
            return
        self.a(f"s_waitcnt lgkmcnt({len(self.q) - idx - 1})")
        self.q = self.q[idx + 1:]
    def drain(self):
        self.a("s_waitcnt lgkmcnt(0)")
        self.q = []


DEFAULTS = dict(stamps=0, probes=0, vmprobe=2, thr=63, prefill=8, store0=9, store1=10, ipf=1, touch=3, xtouch=1,
                prio=7, gate=0, thrmask=0xffffffff, help=0, lead0=3, lead1=6, kvnt=1, pace=99, dbgst=0, ahead=-1, from_=0, bthr=63, polls=1, nap=4, sdw=1, alate=0, wqat=1, diag=0, hrot=0, early_n=0, ahead0=0, hold=0, hi=0, hj=0, hwg=8, xplan=3, xfrom=1, aidle=0, adist=4, outf=0)


class Gen:
    def __init__(self, **kw):
        self.a = Asm()
        self.o = dict(DEFAULTS)
        assert set(kw) <= set(DEFAULTS), kw
        self.o.update(kw)
        for k, v in self.o.items():
            setattr(self, k, v)
        self.kvflag = " nt" if self.kvnt else ""
        self.follow = (self.help and self.ahead < 0) or self.pace < 99
        self.NA = 4 + bool(self.help) + bool(self.follow)
        self.uid = 0
        assert not (self.help and self.ahead < 0 and self.touch)

    def lab(self, s):
        self.uid += 1
        return f"L_{s}{self.uid}"

    def stamp(self, k):
        if self.stamps:
            self.a(f"s_memrealtime s[98:99]\ns_memtime s[100:101]\ns_waitcnt lgkmcnt(0)\nv_writelane_b32 v255, s98, {k}\nv_writelane_b32 v255, s100, {16+k}")

    def stamp_dump(self, role):
        if self.stamps:
            l = self.lab("sd")
            self.a(f"""s_cmp_lg_u32 s{sWAVE}, {4*role + self.sdw}
            s_cbranch_scc1 {l}
            s_lshl_b32 s{sT0}, s2, 8
            s_add_u32 s{sT0}, s{sT0}, {STAMP_OFF + 128*role}
            v_lshlrev_b32 v1, 2, v0
            s_mov_b64 exec, 0xffffffff
            buffer_store_dword v255, v1, {sr(sWS)}, s{sT0} offen
            s_mov_b64 exec, -1""")
            if self.dbgst:
                srd(self.a, sPT, sDBGP, 256)
                self.a(f"""s_cmp_lg_u32 s{sTY}, {self.dbgst - 1}
                s_cbranch_scc1 {l}
                v_not_b32 v11, v255
                v_cmp_eq_u32 vcc, 0, v0
                s_nop 1
                v_cndmask_b32 v11, v255, v11, vcc
                s_mov_b64 exec, {0x3ff if role else 0x1c00}
                buffer_atomic_umax v11, v1, {sr(sPT)}, 0 offen sc1
                s_mov_b64 exec, -1""")
            self.a(f"{l}:")

    def probe(self, k, first=False):
        if self.probes:
            if first:
                self.a(f"s_add_u32 s{sSLOT}, s{sSLOT}, 1")
            self.a(f"s_memtime s[98:99]\ns_getreg_b32 s100, hwreg(HW_REG_IB_STS)\ns_waitcnt lgkmcnt(0)\ns_mov_b32 m0, s{sSLOT}\nv_writelane_b32 v{248+k}, s98, m0")
            if k == self.vmprobe:
                self.a("v_writelane_b32 v251, s100, m0")

    def early(self, lane):
        if self.probes:
            self.a(f"s_memtime s[98:99]\ns_waitcnt lgkmcnt(0)\nv_writelane_b32 v255, s98, {lane}")

    def probe_dump(self):
        if self.probes:
            l = self.lab("pd")
            self.a(f"""s_cmp_lg_u32 s{sLW}, 0
            s_cbranch_scc1 {l}
            s_lshl_b32 s{sT0}, s2, 1
            s_lshr_b32 s{sT1}, s{sWAVE}, 2
            s_add_u32 s{sT0}, s{sT0}, s{sT1}
            s_lshl_b32 s{sT0}, s{sT0}, 11
            s_add_u32 s{sT0}, s{sT0}, {PROBE_OFF}
            v_lshlrev_b32 v1, 2, v0""")
            for k in range(8):
                self.a(f"buffer_store_dword v{248+k}, v1, {sr(sWS)}, s{sT0} offen offset:{256*k}")
            self.a(f"{l}:")

    def prio_set(self, bit, off=None):
        if self.prio >> bit & 1:
            self.a("s_setprio 1")
        elif off is not None and self.prio >> off & 1:
            self.a("s_setprio 0")

    def call(self, name):
        self.a(f"s_call_b64 {sr(sRET, 2)}, {name}")

    def ret(self):
        self.a(f"s_setpc_b64 {sr(sRET, 2)}")

    def spread(self, base, fill, start=0):
        n, m = len(base) - start, len(fill)
        j = 0
        for k, t in enumerate(base):
            while k >= start and j < m and j * n <= (k - start) * m:
                self.a(fill[j]); j += 1
            if callable(t): t()
            else: self.a(t)
        for t in fill[j:]:
            self.a(t)

    def other_srd(self, dst, karg_off, size):
        self.a(f"""s_load_dwordx2 {sr(dst, 2)}, s[0:1], {karg_off}
        s_waitcnt lgkmcnt(0)
        s_and_b32 s{dst+1}, s{dst+1}, 0xffff
        s_mov_b32 s{dst+2}, {size}
        s_mov_b32 s{dst+3}, 0x20000""")

    def spin(self, load, vdst, done):
        l, e = self.lab("sp"), self.lab("se")
        self.a(f"""s_mov_b32 s{sSPIN}, {SPIN}
        {l}:
        {load}
        s_waitcnt vmcnt(0) lgkmcnt(0)
        {done}
        s_cbranch_scc1 {e}
        s_sleep 1
        s_sub_u32 s{sSPIN}, s{sSPIN}, 1
        s_cmp_lg_u32 s{sSPIN}, 0
        s_cbranch_scc1 {l}
        {e}:""")

    def wait_init(self, vz, vd):
        srd(self.a, sPT, sDBGP, 256)
        self.a(f"s_lshl_b32 s{sT2}, s{sB}, 2")
        self.spin(f"buffer_load_dword v{vd}, v{vz}, {sr(sPT)}, s{sT2} offen offset:{128*bool(self.dbgst)} sc1", vd,
                  f"v_readfirstlane_b32 s{sT1}, v{vd}\ns_cmp_ge_u32 s{sT1}, 16")

    def prologue(self):
        a = self.a
        a("s_cmp_ge_u32 s2, 256\ns_cbranch_scc1 L_end")
        if self.probes or self.stamps:
            a("s_memtime s[96:97]" if self.probes else "s_memrealtime s[96:97]")
        a(f"""s_load_dwordx2 s[68:69], s[0:1], 96
        s_load_dwordx4 {sr(sOUTP)}, s[0:1], 80
        s_and_b32 s{sHG}, s2, 7
        s_lshr_b32 s{sTY}, s2, 3
        s_and_b32 s{sTY}, s{sTY}, 1
        s_lshr_b32 s{sB}, s2, 4
        s_mul_i32 s{sT0}, s{sTY}, 40
        s_add_u32 s0, s0, s{sT0}
        s_addc_u32 s1, s1, 0
        s_load_dwordx8 s[56:63], s[0:1], 0
        s_load_dwordx2 s[70:71], s[0:1], 32""")
        if self.ipf:
            a(f"""s_getpc_b64 {sr(sT0, 2)}
            L_pc:
            s_sub_u32 s{sT0}, s{sT0}, L_pc-{KERNEL}
            s_subb_u32 s{sT0+1}, s{sT0+1}, 0
            s_and_b32 s{sT2}, s2, 0xf8
            v_lshrrev_b32 v1, 6, v0
            v_add_lshl_u32 v6, v1, s{sT2}, 7
            v_min_u32 v6, L_end-{KERNEL}, v6
            v_mov_b32 v7, s{sT0+1}
            v_add_co_u32 v6, vcc, s{sT0}, v6
            s_nop 1
            v_addc_co_u32 v7, vcc, 0, v7, vcc
            global_load_dword v{vFA+32}, v[6:7], off""")
        a(f"""v_lshrrev_b32 v1, 6, v0
        v_and_b32 v0, 63, v0
        v_readfirstlane_b32 s{sWAVE}, v1
        v_lshrrev_b32 v2, 4, v0
        v_and_b32 v3, 15, v0
        s_and_b32 s{sLW}, s{sWAVE}, 3
        v_lshrrev_b32 v4, 3, v0
        v_and_b32 v5, 7, v0
        v_mul_u32_u24 v7, 1152, v4""")
        for n in range(2):
            a(f"""v_add_u32 v6, {4*n}, v2
            v_xor_b32 v6, v6, v5
            v_lshl_add_u32 v6, v6, 4, v7
            v_add_u32 v{vXVO+n}, {n*(8*1152-1024)}, v6""")
        a(f"""v_and_b32 v1, 1, v2
        v_lshlrev_b32 v1, 1, v1
        v_xor_b32 v1, v1, v5
        v_lshlrev_b32 v1, 4, v1
        v_lshl_add_u32 v{vWVO}, v4, 13, v1
        v_xor_b32 v{vWVO+1}, 64, v{vWVO}
        s_lshl_b32 s{sWCOL}, s{sHG}, 10
        s_lshl_b32 s{sT0}, s{sLW}, 7
        s_add_u32 s{sWCOL}, s{sWCOL}, s{sT0}
        s_mov_b32 s{sWN}, 0
        s_mul_i32 s{sT0}, s{sHG}, {self.hrot}
        s_add_u32 s{sT0}, s{sT0}, s{sB}
        s_mul_i32 s{sT1}, s{sT0}, 57
        s_lshr_b32 s{sT1}, s{sT1}, 9
        s_mul_i32 s{sT1}, s{sT1}, 9
        s_sub_u32 s{sXCH}, s{sT0}, s{sT1}
        s_mov_b32 s{sWCH}, s{sXCH}
        s_mul_i32 s{sXBASE}, s{sB}, 73728
        s_mul_i32 s{sT0}, s{sLW}, 18432
        s_add_u32 s{sXBASE}, s{sXBASE}, s{sT0}
        s_lshl_b32 s{sT0}, s{sB}, 3
        s_add_u32 s{sT0}, s{sT0}, s{sHG}
        s_lshl_b32 s{sPADDR}, s{sT0}, 7
        s_add_u32 s{sPADDR}, s{sPADDR}, {FLAG_OFF + 4096}
        s_lshl_b32 s{sFADDR}, s{sB}, 7
        s_add_u32 s{sFADDR}, s{sFADDR}, {FLAG_OFF}
        s_waitcnt lgkmcnt(0)""")
        srd(a, sX, 56, SIZE['A_x'])
        srd(a, sWQ, 62, SIZE['A_wq'])
        a(f"""s_mov_b32 s{sK}, s58
        s_and_b32 s{sK+1}, s59, 0xffff
        s_lshl_b32 s{sK+2}, {SIZE['A_k']}, s{sTY}
        s_mov_b32 s{sK+3}, 0x20000
        s_mov_b32 s{sV}, s60
        s_and_b32 s{sV+1}, s61, 0xffff
        s_mov_b32 s{sV+2}, s{sK+2}
        s_mov_b32 s{sV+3}, 0x20000""")
        srd(a, sWO, 70, SIZE['A_wo'])
        srd(a, sWS, 68, SIZE['ws'])
        srd(a, sBV, 60, 0)
        if self.probes or self.stamps:
            a(f"s_mov_b32 s{sSLOT}, -1")
            for k in range(8):
                a(f"v_mov_b32 v{248+k}, 0")
            a("v_writelane_b32 v255, s96, 0")
            self.early(1)

    def late_common(self):
        a = self.a
        a(f"""s_lshl_b32 s{sBUFSZ}, 16384, s{sTY}
        s_lshl_b32 s{sT0}, 2048, s{sTY}
        s_mul_i32 s{sKVM0}, s{sT0}, s{sLW}
        s_add_u32 s{sRINGEND}, s{sKVM0}, 98304
        s_lshl_b32 s{sT0}, s{sB}, 3
        s_add_u32 s{sT0}, s{sT0}, s{sHG}
        s_lshl_b32 s{sTBASE}, s{sT0}, 19
        s_add_u32 s{sT1}, s{sTY}, 18
        s_lshl_b32 s{sKVOFF}, s{sT0}, s{sT1}
        s_lshr_b32 s{sT0}, s{sLW}, 1
        s_lshl_b32 s{sT0}, s{sT0}, 17
        s_and_b32 s{sT1}, s{sLW}, 1
        s_lshl_b32 s{sT2}, s{sT1}, 12
        s_add_u32 s{sT0}, s{sT0}, s{sT2}
        s_add_u32 s{sTBASE}, s{sTBASE}, s{sT0}
        s_cmp_eq_u32 s{sTY}, 1
        s_cselect_b32 s{sT0}, s{sT0}, s{sKVM0}
        s_add_u32 s{sKVOFF}, s{sKVOFF}, s{sT0}
        s_lshl_b32 s{sT1}, s{sT1}, 3
        s_cmp_eq_u32 s{sTY}, 1
        s_cselect_b32 s{sT1}, 0, s{sT1}
        s_mov_b32 s{sKVN}, 0
        v_lshlrev_b32 v6, 8, v2
        v_add_u32 v7, s{sT1}, v2""")
        for n in range(4):
            a(f"""v_add_u32 v1, {4*n}, v7
            v_xor_b32 v1, v1, v3
            v_and_b32 v1, 15, v1
            v_lshl_add_u32 v{vKVO+n}, v1, 4, v6""")
        a(f"""v_lshlrev_b32 v1, 2, v2
        v_xor_b32 v1, v1, v3
        v_lshl_add_u32 v{vVVO}, v1, 4, v6""")

    def late_wo(self):
        a = self.a
        for n in range(6):
            a(f"""v_add_u32 v1, {64*n}, v0
            v_mul_u32_u24 v6, 2731, v1
            v_lshrrev_b32 v6, 16, v6
            v_mul_u32_u24 v7, 24, v6
            v_sub_u32 v1, v1, v7
            v_and_b32 v7, 6, v6
            v_xor_b32 v1, v1, v7
            v_lshlrev_b32 v1, 4, v1
            v_mul_u32_u24 v6, 1152, v6
            v_add_u32 v1, v1, v6
            v_subrev_u32 v{vOVO+n}, {1024*(n&3)}, v1""")
        a(f"""s_lshl_b32 s{sT0}, s{sHG}, 9
        s_lshl_b32 s{sT1}, s{sLW}, 4
        s_add_u32 s{sT0}, s{sT0}, s{sT1}
        s_mul_i32 s{sOBASE}, s{sT0}, 1152
        s_and_b32 s{sROT}, s{sB}, 3
        s_mul_i32 s{sOLW}, s{sLW}, 6144
        s_cmp_eq_u32 s{sTY}, 1
        s_mov_b32 s{sRB}, {WR}
        s_mov_b32 s{sRB+1}, {R2}
        s_cselect_b32 s{sRB+2}, {R0}, {R1}
        s_cselect_b32 s{sRB+3}, {R1}, {R0}""")

    def x_adv(self):
        self.a(f"""s_add_u32 s{sXN}, s{sXN}, 1
        s_add_u32 s{sXCH}, s{sXCH}, 1
        s_cmp_eq_u32 s{sXCH}, 9
        s_cselect_b32 s{sXCH}, 0, s{sXCH}""")

    def kv_items_b(self):
        f = self.kvflag
        items = []
        for n in range(8):
            t = ""
            if n == 0:
                t += f"s_mov_b32 m0, s{sKVM0}\ns_cmp_eq_u32 s{sKVN}, 15\n"
            if n == 4:
                t += f"s_add_u32 m0, s{sKVM0}, 16384\ns_add_u32 s{sKVM0}, s{sKVM0}, 32768\n"
            if self.bthr < 63:
                t += f"s_waitcnt vmcnt({self.bthr - 1})\n"
            if n < 4:
                t += f"buffer_load_dwordx4 v{vKVO+n}, {sr(sK)}, s{sKVOFF} offen offset:{1024*n}{f} lds\n"
            else:
                t += f"buffer_load_dwordx4 v{vVVO}, {sr(sV)}, s{sKVOFF} offen offset:{1024*(n-4)}{f} lds\n"
            if n == 0:
                t += f"s_cselect_b32 s{sKVCNT}, 131072, 0\ns_add_u32 s{sKVCNT}, s{sKVCNT}, 8192\ns_add_u32 s{sKVN}, s{sKVN}, 1\n"
            if n == 7:
                t += f"""s_add_u32 s{sKVOFF}, s{sKVOFF}, s{sKVCNT}
                s_cmp_ge_u32 s{sKVM0}, s{sRINGEND}
                s_cselect_b32 s{sKVCNT}, 98304, 0
                s_sub_u32 s{sKVM0}, s{sKVM0}, s{sKVCNT}"""
            items.append(t)
        return items

    def wo_items(self):
        items = []
        for n in range(6):
            t = ""
            if n == 0:
                t += f"""s_add_u32 s{sT0}, s{sOCI}, s{sROT}
                s_and_b32 s{sT0}, s{sT0}, 3
                s_mul_i32 s{sT0}, s{sT0}, 73728
                s_add_u32 s{sT1}, s{sOBUF}, s{sOLW}
                s_mov_b32 m0, s{sT1}
                s_add_u32 s{sT0}, s{sT0}, s{sOBASE}\n"""
            if n == 4:
                t += f"s_add_u32 m0, s{sT1}, 4096\ns_add_u32 s{sOCI}, s{sOCI}, 1\n"
            t += f"buffer_load_dwordx4 v{vOVO+n}, {sr(sWO)}, s{sT0} offen offset:{1024*(n&3)} lds\n"
            if n == 5:
                t += f"""s_and_b32 s{sT0}, s{sOCI}, 3
                s_cselect_b32 s{sT0}, 0, 384
                s_add_u32 s{sOBASE}, s{sOBASE}, s{sT0}
                s_cmp_eq_u32 s{sOCI}, 12
                s_cselect_b32 s{sT0}, {294912-1152}, 0
                s_add_u32 s{sOBASE}, s{sOBASE}, s{sT0}"""
            items.append(t)
        return items

    def w_items(self):
        items = []
        for n in range(8):
            if n == 0:
                t = f"s_lshl_b32 s{sT0}, s{sWCH}, 19\ns_add_u32 s{sT0}, s{sT0}, s{sWCOL}\ns_mov_b32 m0, s{sWBUF}\ns_add_u32 s{sWCH}, s{sWCH}, 1\n"
            elif n == 4:
                t = f"s_add_u32 m0, s{sWBUF}, 4096\ns_add_u32 s{sT0}, s{sT0}, {65536+3072}\n"
            else:
                t = f"s_add_u32 s{sT0}, s{sT0}, {65536-1024}\n"
            t += f"buffer_load_dwordx4 v{vWVO+(n&1)}, {sr(sWQ)}, s{sT0} offen offset:{1024*(n&3)} lds\n"
            if n == 7:
                t += f"""s_cmp_eq_u32 s{sWCH}, 9
                s_cselect_b32 s{sWCH}, 0, s{sWCH}
                s_add_u32 s{sWN}, s{sWN}, 1
                s_cmp_eq_u32 s{sWN}, 9
                s_cselect_b32 s{sT1}, 512, 0
                s_add_u32 s{sWCOL}, s{sWCOL}, s{sT1}"""
            items.append(t)
        return items

    def subs(self):
        a = self.a
        f = self.kvflag
        a(f"""F_x:
        s_lshl_b32 s{sT0}, s{sXCH}, 7
        s_add_u32 s{sT0}, s{sT0}, s{sXBASE}
        s_and_b32 s{sT1}, s{sXN}, 3
        s_lshl_b32 s{sT1}, s{sT1}, 2
        s_add_u32 s{sT1}, s{sT1}, s{sLW}
        s_lshl_b32 s{sT1}, s{sT1}, 11
        s_add_u32 m0, s{sT1}, {XR}""")
        self.x_adv()
        for n in range(2):
            a(f"buffer_load_dwordx4 v{vXVO+n}, {sr(sX)}, s{sT0} offen offset:{1024*n} lds")
        self.ret()
        a("F_w:")
        for t in self.w_items():
            a(t)
        self.ret()
        a(f"""F_kv:
        s_cmp_eq_u32 s{sTY}, 0
        s_cbranch_scc1 F_kv_a""")
        for t in self.kv_items_b():
            a(t)
        a(f"s_mov_b32 s{sKVCNT}, 8")
        self.ret()
        a(f"""F_kv_a:
        s_mov_b32 s{sKVCNT}, 0
        s_cmp_ge_u32 s{sKVN}, 32
        s_cbranch_scc1 F_kv_ret""")
        if self.follow:
            a(f"""s_cmp_eq_u32 s{sTHR}, 0
            s_cbranch_scc1 F_kv_go
            s_waitcnt vmcnt(0)
            v_readfirstlane_b32 s{sPROG}, v{vPR}""")
            if self.pace < 99:
                check = f"s_add_u32 s{sT1}, s{sPROG}, {self.pace}\ns_cmp_ge_u32 s{sT1}, s{sKVN}"
                a(check + "\ns_cbranch_scc1 F_kv_go")
                self.spin(f"buffer_load_dword v{vPR}, v{vZ}, {sr(sWS)}, s{sPADDR} offen sc1", vPR,
                          f"v_readfirstlane_b32 s{sPROG}, v{vPR}\n" + check)
            a("F_kv_go:")
        a(f"""s_mov_b32 m0, s{sKVM0}
        s_mov_b32 s{sKVCNT}, 4""")
        if self.thr < 63:
            a(f"s_lshr_b32 s{sT1}, {self.thrmask}, s{sKVN}\ns_and_b32 s{sT1}, s{sT1}, s{sTHR}")
        for n in range(4):
            if self.thr < 63:
                l = self.lab("thr")
                a(f"s_cmp_eq_u32 s{sT1}, 0\ns_cbranch_scc1 {l}\ns_waitcnt vmcnt({self.thr-1})\n{l}:")
            if n == 2:
                a(f"s_add_u32 m0, s{sKVM0}, 8192\ns_add_u32 s{sKVN}, s{sKVN}, 1")
            if n < 2:
                a(f"buffer_load_dwordx4 v{vKVO+n}, {sr(sK)}, s{sKVOFF} offen offset:{1024*n}{f} lds")
            else:
                a(f"buffer_load_dwordx4 v{vVVO}, {sr(sV)}, s{sKVOFF} offen offset:{1024*(n-2)}{f} lds")
        a(f"""s_add_u32 s{sKVOFF}, s{sKVOFF}, 8192
        s_add_u32 s{sKVM0}, s{sKVM0}, 16384
        s_cmp_ge_u32 s{sKVM0}, s{sRINGEND}
        s_cselect_b32 s{sT0}, 98304, 0
        s_sub_u32 s{sKVM0}, s{sKVM0}, s{sT0}""")
        if self.follow or self.help:
            a(f"s_cmp_eq_u32 s{sTHR}, 0\ns_cbranch_scc1 F_kv_ret")
        if self.help:
            if self.ahead < 0:
                a(f"""s_add_u32 s{sT1}, s{sPROG}, {self.lead0}
                s_max_u32 s{sTN}, s{sTN}, s{sT1}
                s_add_u32 s{sT1}, s{sPROG}, {self.lead1}
                s_min_u32 s{sT1}, s{sT1}, 31
                s_cmp_le_u32 s{sTN}, s{sT1}
                s_cselect_b32 s{sLAST}, s{sTN}, s{sLAST}
                s_addc_u32 s{sTN}, s{sTN}, 0""")
            else:
                a(f"""s_cmp_lt_u32 s{sKVN}, {self.early_n}
                s_cselect_b32 s{sLAST}, {self.ahead0}, {self.ahead}
                s_add_u32 s{sLAST}, s{sKVN}, s{sLAST}
                s_min_u32 s{sLAST}, s{sLAST}, 31
                s_max_u32 s{sLAST}, s{sLAST}, {self.from_}""")
            a(f"""s_and_b32 s{sT0}, s{sLAST}, 15
            s_lshl_b32 s{sT0}, s{sT0}, 13
            s_lshr_b32 s{sT1}, s{sLAST}, 4
            s_lshl_b32 s{sT1}, s{sT1}, 18
            s_add_u32 s{sT0}, s{sT0}, s{sT1}
            s_add_u32 s{sT0}, s{sT0}, s{sTBASE}
            s_mov_b64 exec, {(1 << self.help) - 1}
            buffer_load_dword v{vDUM}, v{vL7}, {sr(sBV)}, s{sT0} offen offset:{4096 - 128*self.help}
            s_mov_b64 exec, -1""")
        if self.follow:
            a(f"buffer_load_dword v{vPR}, v{vZ}, {sr(sWS)}, s{sPADDR} offen sc1")
        a("F_kv_ret:")
        self.ret()
        a("F_wo:")
        for t in self.wo_items():
            a(t)
        self.ret()

    def kvwait(self):
        l = self.lab("kw")
        self.a(f"""s_waitcnt vmcnt(8)
        s_cmp_eq_u32 s{sKVCNT}, 8
        s_cbranch_scc1 {l}
        s_waitcnt vmcnt({self.NA})
        s_cmp_eq_u32 s{sKVCNT}, 4
        s_cbranch_scc1 {l}
        s_waitcnt vmcnt(0)
        {l}:""")

    def pretouch_wq(self, dst):
        if not self.touch:
            return
        a = self.a
        l = self.lab("pt")
        a(f"s_cmp_eq_u32 s{sTY}, 1\ns_cbranch_scc1 {l}")
        self.other_srd(sPT, 64, SIZE['B_wq'])
        a(f"""s_lshl_b32 s{sT0}, s{sB}, 2
        s_add_u32 s{sT0}, s{sT0}, s{sLW}
        s_mul_i32 s{sT0}, s{sT0}, {9*8192}
        s_lshl_b32 s{sT1}, s{sHG}, 10
        s_add_u32 s{sT0}, s{sT0}, s{sT1}
        v_lshrrev_b32 v1, 2, v0
        v_and_b32 v6, 3, v0
        v_lshlrev_b32 v6, 7, v6
        v_lshl_add_u32 v1, v1, 13, v6
        s_mov_b32 exec_hi, 15
        buffer_load_dword v{dst}, v1, {sr(sPT)}, s{sT0} offen offset:512""")
        if self.touch & 2:
            a(f"buffer_load_dword v{dst+1}, v1, {sr(sWQ)}, s{sT0} offen offset:512")
        a(f"s_mov_b64 exec, -1\n{l}:")

    def pretouch_wo(self, first):
        if not self.touch:
            return
        a = self.a
        l = self.lab("pt")
        a(f"s_cmp_eq_u32 s{sTY}, 1\ns_cbranch_scc1 {l}")
        if first:
            self.other_srd(sPT, 72, SIZE['B_wo'])
            a(f"""s_lshl_b32 s{sT0}, s{sB}, 2
            s_add_u32 s{sT0}, s{sT0}, s{sLW}
            s_mul_i32 s{sT0}, s{sT0}, 9216
            s_mul_i32 s{sTN}, s{sHG}, 589824
            s_add_u32 s{sTN}, s{sTN}, s{sT0}""")
        else:
            a(f"s_mov_b64 exec, 0xfff\nbuffer_load_dword v{vFA+32}, v{vL7}, {sr(sPT)}, s{sTN} offen")
            if self.touch & 2:
                a(f"buffer_load_dword v{vFA+33}, v{vL7}, {sr(sWO)}, s{sTN} offen")
            a(f"s_mov_b64 exec, -1\ns_add_u32 s{sTN}, s{sTN}, 1536")
        a(f"{l}:")

    def rdA(self, reg, areg, mt, off0, off1, tag):
        return [(f"ds_read_b64_tr_b16 {vr(reg + 2*j, 2)}, v{areg+mt} offset:{o}", tag + (j,)) for j, o in enumerate((off0, off1))]

    def rdB(self, ks, qt):
        return (f"ds_read_b128 {vr(vFB + (ks*4+qt)*4, 4)}, v{vXA+ks} offset:{2048*qt}", ("B", ks, qt))

    def mfma(self, acc, mt, qt, areg, ks):
        c = vr(acc + (mt*4+qt)*4, 4)
        return f"v_mfma_f32_16x16x32_bf16 {c}, {vr(areg, 4)}, {vr(vFB + (ks*4+qt)*4, 4)}, {c}"

    def qA(self, ks, mt):
        return vFA + (ks*4 + mt)*4

    def q_rdA(self, ks, mt):
        return self.rdA(self.qA(ks, mt), vWA, mt, 32*ks*128, (32*ks+4)*128, ("A", ks, mt))

    def q_finalize(self, acc, pending):
        a = self.a
        a(f"s_mov_b32 s{sT2}, {fbits(QSCALE)}")
        mul, cvt, put = [], [], []
        for mt in range(4):
            for qt in range(4):
                c = acc + (mt*4+qt)*4
                mul.append("\n".join(f"v_mul_f32 v{c+r}, s{sT2}, v{c+r}" for r in range(4)))
                cvt.append(f"v_cvt_pk_bf16_f32 v{c}, v{c}, v{c+1}\nv_cvt_pk_bf16_f32 v{c+1}, v{c+2}, v{c+3}")
                put.append((f"v_xor_b32 v1, {32*mt}, v{vQW}\n" if qt == 0 else "") + f"ds_write_b64 v1, {vr(c,2)} offset:{2048*qt}")
        work = ["\n".join(([put[k-2]] if 2 <= k < 18 else []) + ([cvt[k-1]] if 1 <= k < 17 else []) + ([mul[k]] if k < 16 else [])) for k in range(18)]
        lead = len(pending) - 16 + 5
        for k, t in enumerate(pending):
            a(t)
            if k + 1 == lead:
                a("s_nop 3")
            if k + 1 >= lead:
                a(work.pop(0))
        for t in work:
            a(t)
        a("s_waitcnt lgkmcnt(0)")

    ORDER4 = [(mt, qt) for mt in range(4) for qt in range(4)]
    ORDER3 = [(mt, qt) for mt in range(3) for qt in range(4)]
    NEXTX = [f"s_add_u32 s{sN}, s{sN}, 1\ns_and_b32 s{sT0}, s{sN}, 3\ns_lshl_b32 s{sT0}, s{sT0}, 13",
             f"v_add_u32 v{vXA}, s{sT0}, v{vXA0}", f"v_add_u32 v{vXA+1}, s{sT0}, v{vXA0+1}"]

    def pj_first(self):
        a = self.a
        ACC0 = vACC
        a("L_pj:")
        a(f"""v_mov_b32 v{vZ}, 0
        v_lshlrev_b32 v{vL7}, 7, v0
        s_cmp_lg_u32 s{sLW}, 0
        s_cbranch_scc1 L_pj_a
        s_lshl_b32 s{sT0}, s{sTY}, 11
        s_lshl_b32 s{sT1}, s{sHG}, 2
        s_add_u32 s{sT0}, s{sT0}, s{sT1}
        s_add_u32 s{sT0}, s{sT0}, s{sFADDR}
        s_cmp_eq_u32 s{sTY}, 1
        s_cselect_b32 s{sT1}, s{sPADDR}, s{sT0}
        s_mov_b64 exec, 1
        buffer_store_dword v{vZ}, v{vZ}, {sr(sWS)}, s{sT0} offen sc1
        buffer_store_dword v{vZ}, v{vZ}, {sr(sWS)}, s{sT1} offen sc1
        s_mov_b64 exec, -1
        L_pj_a:""")
        self.early(6)
        for i in list(range(vKVO, vXVO)) + list(range(vOVO, vWVO)):
            a(f"v_mov_b32 v{i}, 0")
        a(f"""s_lshl_b32 s{sT2}, s{sLW}, 13
        s_mov_b32 s{sWB}, {R1}
        s_mov_b32 s{sWB+1}, {R2}
        s_mov_b32 s{sWB+2}, {WR}
        v_lshrrev_b32 v1, 2, v3
        v_lshl_add_u32 v6, v2, 3, v1
        v_lshrrev_b32 v1, 1, v1
        v_and_b32 v7, 1, v2
        v_lshl_or_b32 v1, v7, 1, v1
        v_and_b32 v7, 3, v0
        v_lshlrev_b32 v7, 3, v7
        v_lshl_add_u32 v6, v6, 7, v7
        v_lshl_add_u32 v6, v1, 5, v6
        v_add_u32 v{vWA0}, s{sT2}, v6
        v_add_u32 v{vWA}, {WR}, v{vWA0}""")
        for mt in range(1, 4):
            a(f"v_xor_b32 v{vWA+mt}, {32*mt}, v{vWA}")
        a(f"""v_lshrrev_b32 v1, 1, v3
        v_xor_b32 v6, v1, v2
        v_lshlrev_b32 v6, 4, v6
        v_lshl_add_u32 v6, v3, 7, v6
        v_add_u32 v{vXA0}, {XR}, v6
        v_xor_b32 v{vXA0+1}, 64, v{vXA0}
        v_mov_b32 v{vXA}, v{vXA0}
        v_mov_b32 v{vXA+1}, v{vXA0+1}
        v_lshrrev_b32 v6, 1, v2
        v_xor_b32 v6, v6, v1
        v_lshlrev_b32 v6, 4, v6
        v_lshl_add_u32 v6, v3, 7, v6
        v_and_b32 v7, 1, v2
        v_lshl_add_u32 v6, v7, 3, v6
        v_add_u32 v6, s{sT2}, v6
        v_add_u32 v{vQW}, {R2}, v6""")
        for i in range(64):
            a(f"v_mov_b32 v{ACC0+i}, 0")
        for i in range(16):
            a(f"v_mov_b32 v{vFA+16+i}, 0\nv_mov_b32 v{vFB+16+i}, 0")
        self.early(4)
        srd(a, sPT, sDBGP, 256)
        a(f"""v_mov_b32 v1, 1
        s_lshl_b32 s{sT0}, s{sB}, 2
        s_mov_b32 s{sN}, 0
        s_waitcnt vmcnt(0)
        s_cmp_lg_u32 s{sLW}, 0
        s_cbranch_scc1 L_q0
        s_mov_b64 exec, 1
        buffer_atomic_add v1, v{vZ}, {sr(sPT)}, s{sT0} offen offset:{128*bool(self.dbgst)} sc1
        s_mov_b64 exec, -1""")
        nextbuf = [f"v_add_u32 v{vWA}, s{sWB}, v{vWA0}\ns_mov_b32 s{sT0}, s{sWB}", f"v_xor_b32 v{vWA+1}, 32, v{vWA}\ns_mov_b32 s{sWB}, s{sWB+1}",
                   f"v_xor_b32 v{vWA+2}, 64, v{vWA}\ns_mov_b32 s{sWB+1}, s{sWB+2}", f"v_xor_b32 v{vWA+3}, 96, v{vWA}\ns_mov_b32 s{sWB+2}, s{sT0}"]
        a("L_q0:\ns_barrier")
        self.probe(0, True)
        lg = Lg(a)
        rd = lambda ks: [self.rdB(ks, 0)] + self.q_rdA(ks, 0) + [self.rdB(ks, q) for q in (1, 2, 3)] + sum((self.q_rdA(ks, m) for m in (1, 2, 3)), [])
        r0 = rd(0)
        plan = {k: [] for k in range(-1, 32)}
        for i, x in enumerate(r0):
            plan[i // 2 - 1].append(x)
        for pos, m in ((6, 0), (8, 1), (12, 2), (16, 3)):
            for j, x in enumerate(self.q_rdA(1, m)):
                plan[pos + j].append(x)
        for q in range(4):
            plan[18 + q].append(self.rdB(1, q))
        tail = nextbuf + self.NEXTX
        for x in plan[-1]:
            lg.issue(*x)
        for k in range(32):
            mt, qt = self.ORDER4[k & 15]
            if k == 16:
                lg.wait(*[tag for _, tag in r0])
            a(self.mfma(ACC0, mt, qt, self.qA(1 - (k >> 4), mt), 1 - (k >> 4)))
            for x in plan[k]:
                lg.issue(*x)
            if k >= 22 and tail:
                a(tail.pop(0))
            if k == 30:
                lg.drain()
                a(f"s_cmp_eq_u32 s{sN}, 1")
        self.probe(1)
        a("s_cbranch_scc1 L_q0_setup")
        if self.wqat > 1:
            a(f"s_cmp_eq_u32 s{sN}, {self.wqat}\ns_cbranch_scc1 L_q0_touch")
        a(f"s_cmp_lt_u32 s{sN}, 9\ns_cbranch_scc1 L_q0")
        self.early(10)
        self.q_finalize(ACC0, [self.mfma(ACC0, mt, qt, self.qA(1, mt), 1) for mt, qt in self.ORDER4])
        self.early(12)
        a(f"v_xor_b32 v{vQW}, {R2 ^ WR}, v{vQW}")
        self.stamp(1)
        a("s_branch L_pj_rest")

    def pj_setup(self):
        a = self.a
        a("L_q0_setup:")
        self.late_common()
        self.late_wo()
        a(f"""s_cmp_eq_u32 s{sTY}, 1
        s_cselect_b32 s{sKVN}, 2, {self.adist}
        s_lshl_b32 s{sT0}, s{sKVN}, 13
        s_add_u32 s{sKVOFF}, s{sKVOFF}, s{sT0}
        s_mul_i32 s{sT0}, s{sKVN}, s{sBUFSZ}
        s_add_u32 s{sKVM0}, s{sKVM0}, s{sT0}
        s_mov_b32 s{sTHR}, 1
        s_add_u32 s{sWCOL}, s{sWCOL}, 512
        s_mov_b32 s{sWN}, 10
        s_add_u32 s{sWCH}, s{sWCH}, 1
        s_cmp_eq_u32 s{sWCH}, 9
        s_cselect_b32 s{sWCH}, 0, s{sWCH}
        s_lshl_b32 s{sT2}, s{sLW}, 13
        s_add_u32 s{sWBUF}, s{sT2}, {WR}
        s_mov_b32 s{sXN}, 12
        s_add_u32 s{sXCH}, s{sXCH}, 3
        s_sub_u32 s{sT0}, s{sXCH}, 9
        s_cmp_ge_u32 s{sXCH}, 9
        s_cselect_b32 s{sXCH}, s{sT0}, s{sXCH}
        s_mov_b32 s{sOCI}, 0
        s_mov_b32 s{sOBUF}, {WR}
        s_mov_b32 s{sTN}, 0
        s_mov_b32 s{sLAST}, 2
        v_mov_b32 v{vPR}, 0""")
        for i in range(64):
            a(f"v_mov_b32 v{vACC+64+i}, 0")
        if self.wqat > 1:
            a("s_branch L_q0\nL_q0_touch:")
        self.pretouch_wq(vFA + 34)
        a("s_branch L_q0")

    def stream_slot(self, ty, rdA, MT, acc, aset, loads, after):
        e = self.a
        e("s_barrier")
        self.probe(0, True)
        lg = Lg(e)
        for t, tag in rdA:
            lg.issue(t, tag)
        lg.drain()
        self.probe(1)
        e("s_barrier")
        self.probe(2)
        for ks in (0, 1):
            for q in range(4):
                lg.issue(*self.rdB(ks, q))
        if loads is None:
            return
        def mk(ks, mt, qt):
            def f():
                lg.wait(("B", ks, qt))
                e(self.mfma(acc, mt, qt, aset(ks, mt), ks))
            return f
        mm = [mk(ks, mt, qt) for ks in (0, 1) for mt in range(MT) for qt in range(4)]
        self.spread(mm, loads + (self.kv_items_b() if ty else []))
        self.probe(6)
        if not ty:
            if getattr(self, "extra", None):
                l = self.lab("tx")
                e(f"s_cmp_ge_u32 s{sN}, 15\ns_cbranch_scc1 {l}")
                self.pretouch_wo(False)
                e(f"{l}:")
                self.extra = None
            self.call("F_kv")
        for t in after:
            e(t)

    def store_items(self, G):
        acc = vACC + 48 * G
        items = []
        for qd in range(6):
            c = acc + 8*qd
            t = "\n".join(f"v_cvt_pk_bf16_f32 v{c+i}, v{c+2*i}, v{c+2*i+1}" for i in range(4))
            t += f"\nbuffer_store_dwordx4 {vr(c,4)}, v{vST}, {sr(sWS)}, s{sM} offen offset:{1024*(qd&3)} sc1"
            if qd in (3, 5):
                t += f"\ns_add_u32 s{sM}, s{sM}, {4096 if qd == 3 else 24576-4096}"
            items.append(t)
        return items

    def pj_rest(self):
        a = self.a
        ACC1 = vACC + 64
        qrd = sum((self.q_rdA(ks, m) for ks in (0, 1) for m in range(4)), [])
        a("L_pj_rest:")
        self.prio_set(1)
        a(f"s_cmp_eq_u32 s{sTY}, 1\ns_cbranch_scc1 L_q1_1")
        if self.help:
            self.other_srd(sBV, 56, SIZE['B_v'])
        if self.follow:
            self.wait_init(vZ, vDUM)
        if self.aidle:
            self.pretouch_wo(True)
            a(f"s_mov_b32 s{sM}, 6\nL_idle_a:\ns_barrier")
            self.probe(0, True)
            a("s_barrier")
            if self.aidle == 1:
                self.pretouch_wo(False)
            self.call("F_kv")
            self.kvwait()
            a(f"s_sub_u32 s{sM}, s{sM}, 1\ns_cmp_lg_u32 s{sM}, 0\ns_cbranch_scc1 L_idle_a")
        for ty in (0, 1):
            nk = 8 if ty else self.NA
            a(f"L_q1_{ty}:")
            if self.aidle == 2 and not ty:
                self.extra = "touch"
            self.stream_slot(ty, qrd, 4, ACC1, self.qA, self.w_items(), self.NEXTX)
            a(f"s_cmp_ge_u32 s{sN}, 16\ns_cbranch_scc1 L_q1_nox{ty}")
            self.call("F_x")
            self.probe(4)
            a(f"s_waitcnt vmcnt({nk + 2})")
            self.probe(5)
            a(f"s_branch L_q1_{ty}\nL_q1_nox{ty}:")
            self.probe(4)
            a(f"s_waitcnt vmcnt({nk})")
            self.probe(5)
            a(f"s_cmp_lt_u32 s{sN}, 17\ns_cbranch_scc1 L_q1_{ty}")
            if not ty:
                a("s_branch L_q1_last")
        a("L_q1_last:")
        self.stream_slot(0, qrd, 4, ACC1, self.qA, None, None)
        self.call("F_kv")
        a("s_waitcnt lgkmcnt(0)")
        self.q_finalize(ACC1, [self.mfma(ACC1, mt, qt, self.qA(ks, mt), ks) for ks in (0, 1) for mt, qt in self.ORDER4])
        self.kvwait()
        self.stamp(2)
        a("s_barrier")
        self.probe(0, True)
        a("s_barrier")
        if not self.aidle:
            self.pretouch_wo(True)
        self.call("F_kv")
        for i in range(144):
            a(f"v_mov_b32 v{vACC+i}, 0")
        a(f"""v_lshrrev_b32 v1, 2, v3
        v_and_b32 v7, 1, v2
        v_lshl_add_u32 v1, v7, 2, v1
        v_lshrrev_b32 v7, 1, v2
        v_lshl_add_u32 v6, v7, 4, v1
        v_lshrrev_b32 v1, 1, v1
        v_and_b32 v7, 3, v0
        v_lshlrev_b32 v7, 3, v7
        v_mul_u32_u24 v6, 384, v6
        v_add_u32 v6, v6, v7
        s_mul_i32 s{sT0}, s{sLW}, 3""")
        for nt in range(3):
            a(f"""s_add_u32 s{sT1}, s{sT0}, {nt}
            v_xor_b32 v7, s{sT1}, v1
            v_lshl_add_u32 v{vOA0+nt}, v7, 5, v6
            v_add_u32 v{vOA+nt}, {WR}, v{vOA0+nt}""")
        a(f"""s_lshl_b32 s{sT0}, s{sTY}, 4
        s_add_u32 s{sT0}, s{sT0}, s{sB}
        s_lshl_b32 s{sT0}, s{sT0}, 3
        s_add_u32 s{sT0}, s{sT0}, s{sHG}
        s_mul_i32 s{sM}, s{sT0}, {PART}
        s_add_u32 s{sM}, s{sM}, s{sOLW}
        v_lshlrev_b32 v{vST}, 4, v0""")
        self.kvwait()
        if self.aidle:
            a(f"s_cmp_eq_u32 s{sTY}, 0\ns_cbranch_scc1 L_kvl_done")
        a(f"s_mov_b32 s{sN}, 6\nL_kvl:\ns_barrier")
        self.probe(0, True)
        a("s_barrier")
        self.probe(2)
        if not self.aidle:
            self.pretouch_wo(False)
        self.call("F_kv")
        self.probe(4)
        self.kvwait()
        self.probe(5)
        a(f"""s_sub_u32 s{sN}, s{sN}, 1
        s_cmp_lg_u32 s{sN}, 0
        s_cbranch_scc1 L_kvl
        L_kvl_done:
        s_barrier""")
        self.probe(0, True)
        a("s_barrier")
        self.call("F_wo")
        self.call("F_kv")
        self.kvwait()
        self.stamp(3)
        oA = lambda c, ks, mt: vFA + 4*mt + (0 if ks == 0 else 12 + 12*(c & 1))
        o_rdA = lambda c, ks, mt: self.rdA(oA(c, ks, mt), vOA, mt, 32*ks*384, (32*ks+8)*384, ("A", ks, mt))
        xa_step = [f"s_add_u32 s{sN}, s{sN}, 1\ns_add_u32 s{sT0}, s{sROT}, s{sN}\ns_and_b32 s{sT0}, s{sT0}, 3\ns_lshl_b32 s{sT0}, s{sT0}, 13",
                   f"v_add_u32 v{vXA}, s{sT0}, v{vXA0}", f"v_add_u32 v{vXA+1}, s{sT0}, v{vXA0+1}"]
        a(f"s_mov_b32 s{sN}, -1")
        for t in xa_step:
            a(t)
        ord_ = sum((o_rdA(0, ks, m) for ks in (0, 1) for m in range(3)), [])
        a(f"s_cmp_eq_u32 s{sTY}, 1\ns_cbranch_scc1 L_o2_1_0")
        for ty in (0, 1):
            for G in range(3):
                a(f"L_o2_{ty}_{G}:")
                self.stream_slot(ty, ord_, 3, vACC + 48*G, lambda ks, mt: oA(0, ks, mt), self.wo_items(), xa_step)
                self.probe(4)
                if ty:
                    a("s_waitcnt vmcnt(8)")
                else:
                    self.kvwait()
                self.probe(5)
                a(f"s_and_b32 s{sT0}, s{sN}, 3\ns_cbranch_scc1 L_o2_{ty}_{G}")
            if not ty:
                a("s_branch L_o2_done")
        a("L_o2_done:")
        self.stamp(4)
        if self.probes:
            a(f"s_add_u32 s{sSLOT}, s{sSLOT}, 3")
        a("s_barrier\ns_barrier")
        self.call("F_kv")
        a(f"""v_lshl_add_u32 v1, v0, 2, s{sRB}
        v_cmp_gt_u32 vcc, 6, v0
        s_and_saveexec_b64 {sr(sT0, 2)}, vcc
        s_cmp_lg_u32 s{sLW}, 0
        s_cbranch_scc1 L_nz
        ds_write_b32 v1, v{vZ} offset:{SYNC - WR}
        L_nz:
        s_mov_b64 exec, -1
        s_waitcnt lgkmcnt(0)""")
        self.kvwait()
        a(f"s_barrier\ns_barrier\ns_mov_b32 s{sOBUF}, s{sRB+1}")
        self.call("F_wo")
        a(f"s_waitcnt vmcnt(6)\ns_barrier\ns_barrier\ns_mov_b32 s{sOBUF}, s{sRB+2}")
        self.call("F_wo")
        self.wait_init(vZ, vDUM)
        if self.prio & 4:
            a("s_setprio 0")
        self.stamp(5)
        for c in range(12):
            acc, prev = vACC + 48 * (c >> 2), vACC + 48 * ((c - 1) >> 2)
            a("s_barrier")
            self.probe(0, True)
            lg = Lg(a)
            r0 = [self.rdB(0, 0)] + o_rdA(c, 0, 0) + [self.rdB(0, q) for q in (1, 2, 3)] + o_rdA(c, 0, 1) + o_rdA(c, 0, 2) + sum((o_rdA(c, 1, m) for m in range(3)), [])
            st = sum((self.store_items(g) for g, at in enumerate((self.store0, self.store1)) if at == c), [])
            r0, ra1 = r0[:10], r0[10:]
            plan = {k: [] for k in range(-1, 24)}
            for i, x in enumerate(r0):
                plan[i // 2 - 1 if c else -1].append(x)
            for i, x in enumerate(ra1):
                plan[4 + i if c else 12 + i // 2].append(x)
            for q in range(4):
                plan[(12 if c else 15) + q].append(self.rdB(1, q))
            fill = [f"v_add_u32 v{vOA+nt}, s{sRB + ((c+1)&3)}, v{vOA0+nt}" for nt in range(3)] + xa_step
            for x in plan[-1]:
                lg.issue(*x)
            for k in range(0 if c else 12, 24):
                mt, qt = self.ORDER3[k % 12]
                if k == 12 and c:
                    lg.wait(*[tag for _, tag in r0])
                elif not c:
                    lg.wait(("A", 0, mt, 0), ("A", 0, mt, 1), ("B", 0, qt))
                a(self.mfma(prev, mt, qt, oA(c - 1, 1, mt), 1) if k < 12 else self.mfma(acc, mt, qt, oA(c, 0, mt), 0))
                for x in plan[k]:
                    lg.issue(*x)
                if k >= (16 if c else 19) and fill:
                    a(fill.pop(0))
                    if not c and fill:
                        a(fill.pop(0))
                if st and k % 4 == 3:
                    a(st.pop(0))
                if k == 22:
                    lg.drain()
            assert not fill
            for t in st:
                a(t)
            if c < 2:
                a(f"s_waitcnt vmcnt({6 - 6*c})")
            if c in (4, 8):
                self.stamp(6 + (c >> 3))
        st = self.store_items(2)
        for k, (mt, qt) in enumerate(self.ORDER3):
            a(self.mfma(vACC + 96, mt, qt, oA(11, 1, mt), 1))
            if k in (9, 11):
                a(st.pop(0))
        for t in st:
            a(t)
        self.stamp(8)
        a(f"""v_mov_b32 v1, {SYNC}
        v_mov_b32 v6, 1
        s_lshl_b32 s{sT0}, s{sTY}, 11
        s_lshl_b32 s{sT1}, s{sHG}, 2
        s_add_u32 s{sT0}, s{sT0}, s{sT1}
        s_add_u32 s{sT0}, s{sT0}, s{sFADDR}
        s_mov_b64 exec, 1""")
        for k in range(1):
            a(f"""s_waitcnt vmcnt(0)
            ds_add_rtn_u32 v7, v1, v6 offset:{4*k}
            s_waitcnt lgkmcnt(0)
            v_readfirstlane_b32 s{sT1}, v7
            s_cmp_lg_u32 s{sT1}, 3
            s_cbranch_scc1 L_nf{k}
            buffer_store_dword v6, v{vZ}, {sr(sWS)}, s{sT0} offen offset:{32*k} sc1
            L_nf{k}:""")
            if k == 0:
                self.stamp(13)
        a("s_mov_b64 exec, -1")
        self.stamp(9)
        self.probe_dump()
        a("s_branch L_reduce")

    def at_first(self):
        a = self.a
        a("L_at:")
        self.prio_set(0)

        issued = []
        WBUFS = (WR, R1, R2)

        def ldx(n, direct):
            if n <= 3 or n >= 9 or direct:
                self.call("F_x")
            else:
                a(f"s_lshl_b32 s{sT0}, s{sXCH}, 7\ns_add_u32 s{sT0}, s{sT0}, s{sXBASE}")
                self.x_adv()
                for i in range(2):
                    a(f"buffer_load_dwordx4 {vr(vO + (n-4)*8 + 4*i, 4)}, v{vXVO+i}, {sr(sX)}, s{sT0} offen offset:{1024*i}")
            issued.extend([("x", n)] * 2)

        def ldw(n):
            a(f"s_lshl_b32 s{sWBUF}, s{sLW}, 13\ns_add_u32 s{sWBUF}, s{sWBUF}, {WBUFS[n % 3]}")
            self.call("F_w")
            issued.extend([("w", n)] * 8)

        def prefill(k, ty):
            for _ in range(2 - ty):
                self.call("F_kv")
            issued.extend([("kv", k)] * 8)

        def wait(*tags):
            k = max(i for i, t in enumerate(issued) if t in tags) + 1
            a(f"s_waitcnt vmcnt({min(63, len(issued) - k)})")
        def first_stage(ty):
            del issued[:]
            direct = ty == 1 and self.xplan
            ldx(0, direct); ldw(0)
            self.early(2)
            self.call("F_atset")
            self.early(4)
            ldx(1, direct); ldw(1)
            wait(("x", 0), ("w", 0))
            self.early(5)
            for n in range(9):
                a("s_barrier")
                self.probe(0, True)
                if 1 <= n <= 5 and not direct:
                    wait(("x", n + 3))
                    for i in range(2):
                        a(f"ds_write_b128 v{vT}, {vr(vO + (n-1)*8 + 4*i, 4)} offset:{((n+3)&3)*8192 + 1024*i}")
                if n == 0:
                    for k in range(2, 4 if direct else 9):
                        ldx(k, direct)
                elif direct and n <= 5:
                    ldx(n + 3, direct)
                if n + 2 <= 9:
                    ldw(n + 2)
                if n == 8:
                    prefill(0, ty)
                    if ty or self.adist == 4:
                        prefill(1, ty)
                if n >= 6:
                    ldx(n + 3, direct)
                self.probe(4)
                wait(*([("w", n + 1), ("x", n + 1)] + ([("kv", 0)] if n == 8 else [])))
                a("s_waitcnt lgkmcnt(0)")
                self.probe(5)
        a(f"s_mov_b32 s{sXN}, 0\ns_cmp_eq_u32 s{sTY}, 0\ns_cbranch_scc1 L_at_a")
        first_stage(1)
        a("s_branch L_at_done\nL_at_a:")
        if self.xplan & 2:
            self.other_srd(sPT, 64, SIZE['B_wq'])
            a(f"""s_lshl_b32 s{sT0}, s{sB}, 2
            s_add_u32 s{sT0}, s{sT0}, s{sLW}
            s_mul_i32 s{sT0}, s{sT0}, {9*8192}
            s_lshl_b32 s{sT1}, s{sHG}, 10
            s_add_u32 s{sT0}, s{sT0}, s{sT1}
            v_lshrrev_b32 v1, 2, v0
            v_and_b32 v6, 3, v0
            v_lshlrev_b32 v6, 7, v6
            v_lshl_add_u32 v1, v1, 13, v6
            s_mov_b32 exec_hi, 15
            buffer_load_dword v{vP+3}, v1, {sr(sPT)}, s{sT0} offen""")
            if self.xplan & 4:
                a(f"buffer_load_dword v{vP+2}, v1, {sr(sWQ)}, s{sT0} offen")
            a("s_mov_b64 exec, -1")
        if self.xtouch:
            self.other_srd(sPT, 40, SIZE['B_x'])
            a(f"v_mul_u32_u24 v1, 1152, v0\ns_mul_i32 s{sT2}, s{sB}, 73728")
            for j in range(2):
                a(f"""s_add_u32 s{sT0}, s{sXCH}, s{sLW}
                s_add_u32 s{sT0}, s{sT0}, {self.xfrom + 4*j}
                s_mul_i32 s{sT1}, s{sT0}, 57
                s_lshr_b32 s{sT1}, s{sT1}, 9
                s_mul_i32 s{sT1}, s{sT1}, 9
                s_sub_u32 s{sT0}, s{sT0}, s{sT1}
                s_lshl_b32 s{sT0}, s{sT0}, 7
                s_add_u32 s{sT0}, s{sT0}, s{sT2}
                buffer_load_dword v{vP+j}, v1, {sr(sPT)}, s{sT0} offen""")
        first_stage(0)
        a("L_at_done:")
        if self.prio & 1:
            a("s_setprio 0")
        a("s_branch L_stage\nF_atset:")
        self.late_common()
        a(f"""s_mov_b32 s{sTHR}, 0
        s_lshl_b32 s{sT0}, s{sLW}, 11
        s_add_u32 s{sT0}, s{sT0}, {XR}
        v_lshl_add_u32 v{vT}, v0, 4, s{sT0}""")
        self.at_setup()
        if self.xplan:
            a(f"s_cmp_eq_u32 s{sTY}, 0\ns_cbranch_scc1 F_atset_ret")
            for i in range(vO, vO + 40):
                a(f"v_mov_b32 v{i}, 0")
            a("F_atset_ret:")
        self.ret()

    def at_setup(self):
        a = self.a
        a(f"""s_lshr_b32 s{sT0}, s{sLW}, 1
        s_mul_i32 s{sT0}, s{sT0}, s{sTY}
        s_lshl_b32 s{sT0}, s{sT0}, 13
        v_and_b32 v1, 31, v0
        v_lshrrev_b32 v6, 5, v0
        v_xor_b32 v7, v6, v3
        v_lshlrev_b32 v7, 4, v7
        v_lshl_add_u32 v7, v1, 8, v7
        v_add_u32 v{vKA}, s{sT0}, v7""")
        for s in range(1, 8):
            a(f"v_xor_b32 v{vKA+s}, {32*s}, v{vKA}")
        a(f"""s_lshr_b32 s{sT1}, s{sBUFSZ}, 1
        s_add_u32 s{sT0}, s{sT0}, s{sT1}
        v_lshrrev_b32 v1, 2, v3
        v_lshl_add_u32 v7, v6, 2, v1
        v_lshlrev_b32 v7, 8, v7
        v_lshl_add_u32 v7, v1, 6, v7
        v_and_b32 v1, 1, v2
        v_lshl_add_u32 v7, v1, 5, v7
        v_and_b32 v1, 3, v0
        v_lshl_add_u32 v7, v1, 3, v7
        v_add_u32 v{vVA}, s{sT0}, v7""")
        for dt in range(1, 4):
            a(f"v_xor_b32 v{vVA+dt}, {64*dt}, v{vVA}")
        a(f"""s_mov_b32 s{sRPOS}, 0
        s_mov_b32 s{sSTAGE}, 0
        s_mov_b32 s{sQBUF}, {R2 - XR}
        s_mov_b32 s{sM}, 3
        s_lshr_b32 s{sT0}, s{sLW}, 1
        s_lshl_b32 s{sT0}, s{sT0}, 14
        s_and_b32 s{sT1}, s{sLW}, 1
        s_lshl_b32 s{sT1}, s{sT1}, 12
        s_add_u32 s{sT0}, s{sT0}, s{sT1}
        s_add_u32 s{sT0}, s{sT0}, {XR}
        v_and_b32 v1, 31, v0
        v_bfe_u32 v6, v0, 1, 3
        v_lshrrev_b32 v7, 5, v0
        v_xor_b32 v6, v6, v7
        v_lshlrev_b32 v6, 4, v6
        v_lshl_add_u32 v6, v1, 7, v6
        v_add_u32 v{vH}, s{sT0}, v6""")
        for i in range(1, 4):
            a(f"v_xor_b32 v{vH+i}, {32*i}, v{vH}")
        for i in list(range(vO + 40, vO + 64)) +  list(range(vNM + 1, vNM + 16)) + [vL0, vL1, 4] + list(range(vOVO, vOVO + 6)):
            a(f"v_mov_b32 v{i}, 0")

    def at_rest(self):
        a = self.a
        publish = self.follow or self.gate
        a(f"""L_stage:
        s_mov_b32 s{sTH}, 0xff7fffff
        s_mov_b32 s{sFLOOR}, 0xff7fffff
        s_mov_b32 s{sFIRST}, 0
        s_cmp_lg_u32 s{sSTAGE}, 0
        s_cbranch_scc1 L_stage_a
        v_mov_b32 v{vNM}, 0
        L_stage_a:""")
        for i in range(4):
            a(f"v_add_u32 v{vT+i}, s{sQBUF}, v{vH+i}")
        a(f"s_mov_b32 s{sN}, 0\nL_tile:\ns_barrier")
        self.probe(0, True)
        a(f"s_cmp_lg_u32 s{sN}, 0\ns_cbranch_scc1 L_tile_k")
        for s in range(8):
            a(f"ds_read_b128 {vr(vQ+4*s, 4)}, v{vT+(s&3)} offset:{8192*(s>>2)}")
        a("s_waitcnt lgkmcnt(0)\nL_tile_k:")
        lg = Lg(a)
        for s in range(8):
            lg.issue(f"ds_read_b128 {vr(vKF+4*s, 4)}, v{vKA+s}", ("K", s))
        a("s_barrier")
        vreads = [(f"ds_read_b64_tr_b16 {vr(vVF + (u*4+dt)*4 + 2*j, 2)}, v{vVA+dt} offset:{(16*u+8*j)*256}", ("V", u, dt, j))
                  for u in range(2) for dt in range(4) for j in range(2)]
        for s in range(8):
            lg.wait(("K", s))
            c = vr(vNM, 16) if s == 0 else vr(vS, 16)
            a(f"v_mfma_f32_32x32x16_bf16 {vr(vS,16)}, {vr(vKF+4*s,4)}, {vr(vQ+4*s,4)}, {c}")
            for _ in range(2):
                if len(lg.q) < 15:
                    lg.issue(*vreads.pop(0))
        for t, tag in vreads:
            lg.issue(t, tag)
        a(f"""s_add_u32 s{sRPOS}, s{sRPOS}, s{sBUFSZ}
        s_cmp_ge_u32 s{sRPOS}, 98304
        s_cselect_b32 s{sT0}, 98304, 0
        s_sub_u32 s{sRPOS}, s{sRPOS}, s{sT0}
        s_sub_u32 s{sT0}, s{sBUFSZ}, s{sT0}""")
        adv = [f"v_add_u32 v{vKA+i}, s{sT0}, v{vKA+i}" for i in range(12)]
        for t in adv[:7]:
            a(t)
        adv = adv[7:]
        t0, t1 = vT, vT + 1
        a(f"v_max3_f32 v{t0}, v{vS}, v{vS+1}, v{vS+2}\nv_max3_f32 v{t1}, v{vS+3}, v{vS+4}, v{vS+5}")
        for i in range(6, 14, 4):
            a(f"v_max3_f32 v{t0}, v{t0}, v{vS+i}, v{vS+i+1}\nv_max3_f32 v{t1}, v{t1}, v{vS+i+2}, v{vS+i+3}")
        a(f"""v_max3_f32 v{t0}, v{t0}, v{vS+14}, v{vS+15}
        v_max_f32 v{t0}, v{t0}, v{t1}
        v_cmp_lt_f32 vcc, s{sTH}, v{t0}
        s_cbranch_vccnz L_rescale
        L_tile_exp:""")
        ex = lambda u: [f"v_exp_f32 v{vS+8*u+i}, v{vS+8*u+i}" for i in range(8)]
        cv = lambda u: [f"v_cvt_pk_bf16_f32 v{vP+4*u+i}, v{vS+8*u+2*i}, v{vS+8*u+2*i+1}" for i in range(4)]
        ad = lambda u: [f"v_add_f32 v{vL0+(i&1)}, v{vL0+(i&1)}, v{vS+8*u+i}" for i in range(8)]
        pv = lambda u, dt: f"v_mfma_f32_32x32x16_bf16 {vr(vO+16*dt,16)}, {vr(vVF+(u*4+dt)*4,4)}, {vr(vP+4*u,4)}, {vr(vO+16*dt,16)}"
        e0, c0, a0 = ex(0), cv(0), ad(0)
        for t in e0[:3] + [e0[3], c0[0], e0[4], e0[5], c0[1], e0[6], e0[7], c0[2], a0[0], c0[3], a0[1], a0[2]]:
            a(t)
        e1, c1, a1 = ex(1), cv(1), ad(1)
        gaps = [e1[0:3], e1[3:6], e1[6:8] + c1[0:2], [c1[2], c1[3]] + a0[3:6]]
        for dt in range(4):
            lg.wait(("V", 0, dt, 0), ("V", 0, dt, 1))
            a(pv(0, dt))
            for t in gaps[dt]:
                a(t)
        rest = a0[6:] + a1 + adv
        for dt in range(4):
            lg.wait(("V", 1, dt, 0), ("V", 1, dt, 1))
            a(pv(1, dt))
            for _ in range(5):
                if rest: a(rest.pop(0))
        assert not rest
        self.probe(6)
        a(f"s_or_b32 s{sT0}, s{sSTAGE}, s{sN}\ns_cbranch_scc1 L_tile_nw\ns_waitcnt vmcnt(0)\nL_tile_nw:")
        if publish:
            a(f"""s_cmp_gt_u32 s{sTY}, s{sLW}
            s_cbranch_scc0 L_tile_np""")
            if not self.follow:
                a(f"s_add_u32 s{sM}, s{sM}, 1\ns_cmp_eq_u32 s{sM}, {self.gate + 1}\ns_cbranch_scc0 L_tile_np\ns_sub_u32 s{sM}, s{sM}, 1")
            a(f"""v_mov_b32 v5, s{sM}
            s_mov_b64 exec, 1
            buffer_store_dword v5, v4, {sr(sWS)}, s{sPADDR} offen sc1
            s_mov_b64 exec, -1
            s_add_u32 s{sM}, s{sM}, 1
            L_tile_np:""")
        a(f"""s_add_u32 s{sN}, s{sN}, 1
        s_cmp_lt_u32 s{sN}, 16
        s_cbranch_scc1 L_tile""")
        a(f"""v_add_f32 v{vT+2}, v{vL0}, v{vL1}
        s_mov_b32 s{sQBUF}, {WR - XR}
        v_mov_b32 v{vT+3}, v{vT+2}
        s_add_u32 s{sSTAGE}, s{sSTAGE}, 1
        s_nop 0
        v_permlane32_swap_b32 v{vT+2}, v{vT+3}
        v_add_f32 v{vT+2}, v{vT+2}, v{vT+3}
        v_rcp_f32 v{vT+2}, v{vT+2}
        s_nop 0""")
        mul, put = [], []
        for dt in range(4):
            for ip in range(2):
                c = vO + 16*dt + 8*ip
                mul.append("\n".join(f"v_mul_f32 v{c+i}, v{c+i}, v{vT+2}" for i in range(8)))
                put.append("\n".join(f"v_cvt_pk_bf16_f32 v{c+i}, v{c+2*i}, v{c+2*i+1}" for i in range(4)) +
                           f"\nds_write_b128 v{vH + 2*(dt&1) + ip}, {vr(c,4)} offset:{8192*(dt>>1)}")
        for k in range(9):
            if k < 8: a(mul[k])
            if k: a(put[k-1])
        a(f"""s_cmp_lt_u32 s{sSTAGE}, 2
        s_cbranch_scc0 L_feed0""")
        self.late_wo()
        a(f"""s_mov_b32 s{sOCI}, 15
        s_add_u32 s{sOBASE}, s{sOBASE}, 294912
        s_waitcnt lgkmcnt(0)
        s_branch L_stage""")
        a("L_feed0:")
        self.prio_set(2)
        a(f"""s_mov_b32 s{sN}, 0
        s_waitcnt lgkmcnt(0)
        L_feed:
        s_add_u32 s{sT0}, s{sOCI}, s{sROT}
        s_and_b32 s{sT0}, s{sT0}, 3
        s_mul_i32 s{sT0}, s{sT0}, 73728
        s_add_u32 s{sT0}, s{sT0}, s{sOBASE}
        s_add_u32 s{sT1}, s{sRB+3}, s{sOLW}
        s_mov_b32 m0, s{sT1}
        s_barrier""")
        self.probe(0, True)
        if self.probes:
            a(f"s_mov_b32 m0, s{sT1}\ns_nop 0")
        for n in range(6):
            if n == 4:
                a(f"s_add_u32 m0, s{sT1}, 4096\ns_add_u32 s{sOCI}, s{sOCI}, 1")
            a(f"buffer_load_dwordx4 v{vOVO+n}, {sr(sWO)}, s{sT0} offen offset:{1024*(n&3)} lds")
        a(f"""s_and_b32 s{sT0}, s{sOCI}, 3
        s_cselect_b32 s{sT0}, 0, 384
        s_add_u32 s{sOBASE}, s{sOBASE}, s{sT0}
        s_mov_b32 s{sT0}, s{sRB+3}
        s_mov_b32 s{sRB+3}, s{sRB}
        s_mov_b32 s{sRB}, s{sRB+1}
        s_mov_b32 s{sRB+1}, s{sRB+2}
        s_mov_b32 s{sRB+2}, s{sT0}
        s_add_u32 s{sN}, s{sN}, 1""")
        self.probe(4)
        a(f"""s_waitcnt vmcnt(12)
        s_cmp_lt_u32 s{sN}, 9
        s_cbranch_scc1 L_feed""")
        if self.gate:
            a(f"s_or_b32 s{sT0}, s{sTY}, s{sLW}\ns_cbranch_scc1 L_gate")
            self.wait_init(4, 5)
            self.spin(f"buffer_load_dword v5, v4, {sr(sWS)}, s{sPADDR} offen sc1", 5,
                      f"v_readfirstlane_b32 s{sT1}, v5\ns_cmp_ge_u32 s{sT1}, {self.gate}")
            a("L_gate:")
        a("""s_barrier
        s_waitcnt vmcnt(6)
        s_barrier
        s_waitcnt vmcnt(0)
        s_barrier""")
        self.probe_dump()

    def reduce(self):
        a = self.a
        vL, vO0, vD, vSum = 6, 14, 40, 104
        of = ("", " sc1", " nt", " sc0 sc1")[self.outf]
        a("L_reduce:")
        self.stamp(10)
        a(f"""s_setprio 0
        s_lshr_b32 s{sSTAGE}, s{sWAVE}, 2
        s_lshl_b32 s{sT1}, s{sSTAGE}, 2
        s_add_u32 s{sT1}, s{sT1}, {SYNC + 8}
        v_mov_b32 v9, s{sT1}
        s_mov_b32 s{sSPIN}, {SPIN}
        s_cmp_lg_u32 s{sLW}, 0
        s_cbranch_scc1 L_red_work
        s_lshl_b32 s{sT0}, s{sSTAGE}, 11
        s_add_u32 s{sFADDR}, s{sFADDR}, s{sT0}
        v_mov_b32 v4, 0
        v_and_b32 v8, 7, v0
        v_lshlrev_b32 v8, 2, v8
        s_cmp_eq_u32 s{sSTAGE}, 1
        s_cbranch_scc1 L_red_poll""")
        self.wait_init(4, 5)
        a(f"""s_mov_b32 s{sSPIN}, {SPIN}
        L_red_poll:
        buffer_load_dword v5, v8, {sr(sWS)}, s{sFADDR} offen sc1
        s_waitcnt vmcnt(0)
        v_cmp_eq_u32 vcc, 1, v5
        s_and_b32 s{sT2}, vcc_lo, 0xff
        s_sub_u32 s{sSPIN}, s{sSPIN}, 1
        s_cselect_b32 s{sT2}, 0xff, s{sT2}
        v_mov_b32 v10, s{sT2}
        ds_write_b32 v9, v10
        s_cmp_eq_u32 s{sT2}, 0xff
        s_cbranch_scc1 L_red_end
        s_sleep {self.nap}
        s_branch L_red_poll
        L_red_work:""")
        srd(a, sX, sOUTP, SIZE['out'])
        a(f"""s_lshl_b32 s{sN}, s{sTY}, 3
        s_add_u32 s{sN}, s{sN}, s{sHG}
        s_sub_u32 s{sT0}, s{sLW}, 1
        s_lshl_b32 s{sT0}, s{sT0}, 4
        s_add_u32 s{sN}, s{sN}, s{sT0}
        s_mul_i32 s{sN}, s{sN}, 48
        s_lshl_b32 s{sT0}, s{sSTAGE}, 4
        s_add_u32 s{sT0}, s{sT0}, s{sB}
        s_mul_i32 s{sM}, s{sT0}, {8*PART}
        s_mul_i32 s{sOBASE}, s{sB}, {64*2304}
        s_mul_i32 s{sT0}, s{sSTAGE}, 1152
        s_add_u32 s{sOBASE}, s{sOBASE}, s{sT0}""")
        for k in range(2):
            a(f"""v_add_u32 v1, s{sN}, v0
            v_lshlrev_b32 v{vL+k}, 4, v1
            v_lshrrev_b32 v11, 6, v1
            v_mul_u32_u24 v12, 43, v11
            v_lshrrev_b32 v12, 8, v12
            v_mul_u32_u24 v13, 6, v12
            v_sub_u32 v13, v11, v13
            v_mul_u32_u24 v12, 96, v12
            v_lshrrev_b32 v11, 1, v13
            v_lshl_add_u32 v12, v11, 5, v12
            v_and_b32 v13, 1, v13
            v_lshlrev_b32 v13, 5, v13
            v_and_b32 v11, 15, v1
            v_add_u32 v13, v13, v11
            v_mul_u32_u24 v13, 2304, v13
            v_bfe_u32 v11, v1, 4, 2
            v_lshl_add_u32 v12, v11, 3, v12
            v_add_u32 v{vO0+k}, v12, v13
            s_add_u32 s{sN}, s{sN}, 2304""")
        a(f"""s_mov_b32 exec_hi, 0xffff
        s_mov_b32 s{sN}, 0
        L_red_look:
        ds_read_b32 v5, v9
        s_waitcnt lgkmcnt(0)
        v_readfirstlane_b32 s{sT2}, v5
        s_sub_u32 s{sSPIN}, s{sSPIN}, 1
        s_cselect_b32 s{sT2}, 0xff, s{sT2}
        s_andn2_b32 s{sT2}, s{sT2}, s{sN}
        s_cbranch_scc1 L_red_new
        s_sleep 1
        s_branch L_red_look
        L_red_new:
        s_or_b32 s{sN}, s{sN}, s{sT2}""")
        for h in range(8):
            a(f"""s_bitcmp1_b32 s{sT2}, {h}
            s_cbranch_scc0 L_red_h{h}
            s_add_u32 s{sT0}, s{sM}, {h*PART}
            buffer_load_dwordx4 {vr(vD+4*h,4)}, v{vL}, {sr(sWS)}, s{sT0} offen sc1
            buffer_load_dwordx4 {vr(vD+32+4*h,4)}, v{vL+1}, {sr(sWS)}, s{sT0} offen sc1
            L_red_h{h}:""")
        a(f"s_cmp_lg_u32 s{sN}, 0xff\ns_cbranch_scc1 L_red_look")
        self.stamp(14)
        a(f"s_add_u32 s{sT0}, s{sOBASE}, {16*2304}\ns_waitcnt vmcnt(0)")
        for k in range(2):
            for h in range(8):
                for i in range(4):
                    r = vD + 32*k + 4*h + i
                    if h == 0:
                        a(f"v_lshlrev_b32 v{vSum+2*i}, 16, v{r}\nv_and_b32 v{vSum+2*i+1}, 0xffff0000, v{r}")
                    else:
                        a(f"""v_lshlrev_b32 v11, 16, v{r}
                        v_and_b32 v12, 0xffff0000, v{r}
                        v_add_f32 v{vSum+2*i}, v{vSum+2*i}, v11
                        v_add_f32 v{vSum+2*i+1}, v{vSum+2*i+1}, v12""")
            for i in range(4):
                a(f"v_cvt_pk_bf16_f32 v{vSum+8+4*k+i}, v{vSum+2*i}, v{vSum+2*i+1}")
            a(f"""buffer_store_dwordx2 {vr(vSum+8+4*k,2)}, v{vO0+k}, {sr(sX)}, s{sOBASE} offen{of}
            buffer_store_dwordx2 {vr(vSum+10+4*k,2)}, v{vO0+k}, {sr(sX)}, s{sT0} offen{of}""")
        a("L_red_end:")
        if self.stamps:
            a("s_mov_b64 exec, -1\ns_waitcnt vmcnt(0)")
            self.stamp(12)
            self.stamp_dump(0)
            self.stamp_dump(1)
            if self.hold:
                a(f"""s_cmp_lg_u32 s2, {self.hwg}
                s_cbranch_scc1 L_end
                s_cmp_lg_u32 s{sWAVE}, 4
                s_cbranch_scc1 L_end
                v_readlane_b32 s{sT0}, v255, 0
                v_readlane_b32 s{sT1}, v255, {self.hi}
                v_readlane_b32 s{sT2}, v255, {self.hj}
                s_sub_u32 s{sT2}, s{sT2}, s{sT1}
                s_add_u32 s{sT2}, s{sT2}, {self.hold*100}
                s_mov_b32 s{sSPIN}, {SPIN}
                L_hold:
                s_memrealtime s[98:99]
                s_waitcnt lgkmcnt(0)
                s_sub_u32 s98, s98, s{sT0}
                s_cmp_ge_u32 s98, s{sT2}
                s_cbranch_scc1 L_end
                s_sub_u32 s{sSPIN}, s{sSPIN}, 1
                s_cbranch_scc0 L_hold""")
        a("s_endpgm")

    def at_rare(self):
        a = self.a
        t0, t1, d, al = vT, vT + 1, vT, vT + 2
        a(f"""L_rescale:
        v_mov_b32 v{t1}, v{t0}
        s_nop 1
        v_permlane32_swap_b32 v{t0}, v{t1}
        v_max3_f32 v{d}, v{t0}, v{t1}, s{sFLOOR}
        v_max_f32 v{al}, 0, v{d}
        v_exp_f32 v{al}, -v{al}
        s_mov_b32 s{sTH}, 0x41000000
        s_mov_b32 s{sFLOOR}, 0
        v_mul_f32 v{al}, s{sFIRST}, v{al}
        s_mov_b32 s{sFIRST}, 1.0""")
        for i in range(16):
            a(f"v_sub_f32 v{vS+i}, v{vS+i}, v{d}\nv_sub_f32 v{vNM+i}, v{vNM+i}, v{d}")
        a(f"v_mul_f32 v{vL0}, v{vL0}, v{al}\nv_mul_f32 v{vL1}, v{vL1}, v{al}")
        for i in range(0, 64, 2):
            a(f"v_pk_mul_f32 {vr(vO+i,2)}, {vr(vO+i,2)}, {vr(al,2)} op_sel_hi:[1,0]")
        a("s_branch L_tile_exp")

    def main(self):
        a = self.a
        self.prologue()
        a(f"s_cmp_ge_u32 s{sWAVE}, 4\ns_cbranch_scc1 L_pj\ns_branch L_at")
        self.subs()
        self.at_first()
        self.pj_first()
        self.pj_setup()
        self.at_rest()
        self.reduce()
        self.at_rare()
        self.pj_rest()
        a("L_end:\ns_endpgm")
        return a.text()


HEADER = open("cdna_kernels/" + NAME + ".s.ref").read().split("; Override launch geometry")[0]


def build(**kw):
    return HEADER + single(Gen(**kw).main(), 256, 512, LDS_BYTES, vgpr=256, accum=256, sgpr=102)


if __name__ == "__main__":
    kw = {}
    for x in sys.argv[2:]:
        k, v = x.split("=")
        kw[k] = int(v, 0)
    open(sys.argv[1], "w").write(build(**kw))
```

```python
import sys, struct
sys.path.insert(0, "tools")
from asmlib import *

KERNEL = NAME + "_kernel"
R0, R1, R2, WR, XR = 0, 32768, 65536, 98304, 131072
SYNC = WR + 24576
LDS_BYTES = 163840
PART = 73728
FLAG_OFF = 32 << 20
PROBE_OFF = 241 << 20
QSCALE = 1.4426950408889634 / 128 ** 0.5
SPIN = 1 << 16


def fbits(x):
    return "0x%08x" % struct.unpack("<I", struct.pack("<f", x))[0]


sWAVE, sLW, sHG, sTY, sB = 3, 4, 5, 6, 7
sK, sV, sX, sWQ, sWO, sWS = 8, 12, 16, 20, 24, 28
sKVOFF, sKVM0, sKVN = 32, 33, 34
sWCOL, sWCH, sWN = 35, 36, 37
sXBASE, sXCH, sXN = 38, 39, 40
sOCI, sOBASE, sROT = 41, 42, 43
sN, sM = 44, 45
sT0, sT1, sT2 = 46, 47, 48
sBUFSZ, sRINGEND, sWBUF, sOLW, sOBUF, sTHR, sKVCNT = 49, 50, 51, 52, 53, 54, 55
sTH, sFLOOR, sRPOS, sSTAGE = 56, 57, 58, 59
sRB = 60
sRET = 64
sFIRST, sQBUF, sSLOT = 66, 67, 68
sC8K = 67
sWB = 69
sBV, sPT = 72, 76
sOUTP, sDBGP = 80, 82
sTN, sLAST, sPADDR, sTBASE = 84, 85, 86, 87
sFADDR, sSPIN, sPROG, sOG = 88, 89, 90, 91

vKVO, vVVO, vXVO, vOVO, vWVO = 8, 12, 14, 16, 22
vWA, vWA0, vQW = 24, 28, 29
vOA0, vOA, vST = 24, 27, 30
vXA0, vXA, vZ = 31, 33, 35
vFA, vFB, vACC = 36, 72, 104
vPR, vDUM = 4, 5
vKA, vVA, vH, vT, vL0 = 24, 28, 38, 40, 76
vP, vS, vNM, vQ, vKF, vVF, vO = 44, 52, 68, 84, 116, 148, 180


def vr(i, n):
    return f"v[{i}:{i+n-1}]"


def sr(i, n=4):
    return f"s[{i}:{i+n-1}]"


class Lg:
    def __init__(self, a):
        self.a, self.q = a, []
    def issue(self, text, tag):
        if len(self.q) == 15:
            self.wait(self.q[0])
        self.a(text)
        self.q.append(tag)
    def wait(self, *tags):
        idx = max((i for i, t in enumerate(self.q) if t in tags), default=-1)
        if idx < 0:
            return
        self.a(f"s_waitcnt lgkmcnt({len(self.q) - idx - 1})")
        self.q = self.q[idx + 1:]
    def drain(self):
        self.a("s_waitcnt lgkmcnt(0)")
        self.q = []


DEFAULTS = dict(stamps=0, probes=0, vmprobe=2, thr=5, prefill=8, store0=4, store1=8, ipf=1, touch=5, xtouch=1,
                prio=7, gate=0, thrmask=0xffffffff, help=0, lead0=3, lead1=6, kvnt=1, pace=99, dbgst=0, ahead=-1, from_=0, bthr=63, polls=1, nap=2, sdw=1, alate=0, wqat=4, diag=0, hrot=0, early_n=0, ahead0=0, hold=0, hi=0, hj=0, hwg=8, xplan=3, xfrom=1, aidle=0, adist=4, outf=0, stp=3, gmajor=0, stp0=12, pkl=1)


class Gen:
    def __init__(self, **kw):
        self.a = Asm()
        self.o = dict(DEFAULTS)
        assert set(kw) <= set(DEFAULTS), kw
        self.o.update(kw)
        for k, v in self.o.items():
            setattr(self, k, v)
        self.kvflag = " nt" if self.kvnt else ""
        self.follow = (self.help and self.ahead < 0) or self.pace < 99
        self.NA = 4 + bool(self.help) + bool(self.follow)
        self.uid = 0
        assert not (self.help and self.ahead < 0 and self.touch)

    def lab(self, s):
        self.uid += 1
        return f"L_{s}{self.uid}"

    def stamp(self, k):
        if self.stamps:
            self.a(f"s_memrealtime s[98:99]\ns_memtime s[100:101]\ns_waitcnt lgkmcnt(0)\nv_writelane_b32 v255, s98, {k}\nv_writelane_b32 v255, s100, {16+k}")

    def stamp_dump(self, role):
        if self.stamps:
            l = self.lab("sd")
            self.a(f"""s_cmp_lg_u32 s{sWAVE}, {4*role + self.sdw}
            s_cbranch_scc1 {l}
            s_lshl_b32 s{sT0}, s2, 8
            s_add_u32 s{sT0}, s{sT0}, {STAMP_OFF + 128*role}
            v_lshlrev_b32 v1, 2, v0
            s_mov_b64 exec, 0xffffffff
            buffer_store_dword v255, v1, {sr(sWS)}, s{sT0} offen
            s_mov_b64 exec, -1""")
            if self.dbgst:
                srd(self.a, sPT, sDBGP, 256)
                self.a(f"""s_cmp_lg_u32 s{sTY}, {self.dbgst - 1}
                s_cbranch_scc1 {l}
                v_not_b32 v11, v255
                v_cmp_eq_u32 vcc, 0, v0
                s_nop 1
                v_cndmask_b32 v11, v255, v11, vcc
                s_mov_b64 exec, {0x3ff if role else 0x1c00}
                buffer_atomic_umax v11, v1, {sr(sPT)}, 0 offen sc1
                s_mov_b64 exec, -1""")
            self.a(f"{l}:")

    def probe(self, k, first=False):
        if self.probes:
            if first:
                self.a(f"s_add_u32 s{sSLOT}, s{sSLOT}, 1")
            self.a(f"s_memtime s[98:99]\ns_getreg_b32 s100, hwreg(HW_REG_IB_STS)\ns_waitcnt lgkmcnt(0)\ns_mov_b32 m0, s{sSLOT}\nv_writelane_b32 v{248+k}, s98, m0")
            if k == self.vmprobe:
                self.a("v_writelane_b32 v251, s100, m0")

    def early(self, lane):
        if self.probes:
            self.a(f"s_memtime s[98:99]\ns_waitcnt lgkmcnt(0)\nv_writelane_b32 v255, s98, {lane}")

    def probe_dump(self):
        if self.probes:
            l = self.lab("pd")
            self.a(f"""s_cmp_lg_u32 s{sLW}, 0
            s_cbranch_scc1 {l}
            s_lshl_b32 s{sT0}, s2, 1
            s_lshr_b32 s{sT1}, s{sWAVE}, 2
            s_add_u32 s{sT0}, s{sT0}, s{sT1}
            s_lshl_b32 s{sT0}, s{sT0}, 11
            s_add_u32 s{sT0}, s{sT0}, {PROBE_OFF}
            v_lshlrev_b32 v1, 2, v0""")
            for k in range(8):
                self.a(f"buffer_store_dword v{248+k}, v1, {sr(sWS)}, s{sT0} offen offset:{256*k}")
            self.a(f"{l}:")

    def prio_set(self, bit, off=None):
        if self.prio >> bit & 1:
            self.a("s_setprio 1")
        elif off is not None and self.prio >> off & 1:
            self.a("s_setprio 0")

    def call(self, name):
        self.a(f"s_call_b64 {sr(sRET, 2)}, {name}")

    def ret(self):
        self.a(f"s_setpc_b64 {sr(sRET, 2)}")

    def spread(self, base, fill, start=0):
        n, m = len(base) - start, len(fill)
        j = 0
        for k, t in enumerate(base):
            while k >= start and j < m and j * n <= (k - start) * m:
                self.a(fill[j]); j += 1
            if callable(t): t()
            else: self.a(t)
        for t in fill[j:]:
            self.a(t)

    def other_srd(self, dst, karg_off, size):
        self.a(f"""s_load_dwordx2 {sr(dst, 2)}, s[0:1], {karg_off}
        s_waitcnt lgkmcnt(0)
        s_and_b32 s{dst+1}, s{dst+1}, 0xffff
        s_mov_b32 s{dst+2}, {size}
        s_mov_b32 s{dst+3}, 0x20000""")

    def spin(self, load, vdst, done):
        l, e = self.lab("sp"), self.lab("se")
        self.a(f"""s_mov_b32 s{sSPIN}, {SPIN}
        {l}:
        {load}
        s_waitcnt vmcnt(0) lgkmcnt(0)
        {done}
        s_cbranch_scc1 {e}
        s_sleep 1
        s_sub_u32 s{sSPIN}, s{sSPIN}, 1
        s_cmp_lg_u32 s{sSPIN}, 0
        s_cbranch_scc1 {l}
        {e}:""")

    def wait_init(self, vz, vd):
        srd(self.a, sPT, sDBGP, 256)
        self.a(f"s_lshl_b32 s{sT2}, s{sB}, 2")
        self.spin(f"buffer_load_dword v{vd}, v{vz}, {sr(sPT)}, s{sT2} offen offset:{128*bool(self.dbgst)} sc1", vd,
                  f"v_readfirstlane_b32 s{sT1}, v{vd}\ns_cmp_ge_u32 s{sT1}, 16")

    def prologue(self):
        a = self.a
        a("s_cmp_ge_u32 s2, 256\ns_cbranch_scc1 L_end")
        if self.probes or self.stamps:
            a("s_memtime s[96:97]" if self.probes else "s_memrealtime s[96:97]")
        a(f"""s_load_dwordx2 s[68:69], s[0:1], 96
        s_load_dwordx4 {sr(sOUTP)}, s[0:1], 80
        s_and_b32 s{sHG}, s2, 7
        s_lshr_b32 s{sTY}, s2, 3
        s_and_b32 s{sTY}, s{sTY}, 1
        s_lshr_b32 s{sB}, s2, 4
        s_mul_i32 s{sT0}, s{sTY}, 40
        s_add_u32 s0, s0, s{sT0}
        s_addc_u32 s1, s1, 0
        s_load_dwordx8 s[56:63], s[0:1], 0
        s_load_dwordx2 s[70:71], s[0:1], 32""")
        if self.ipf:
            a(f"""s_getpc_b64 {sr(sT0, 2)}
            L_pc:
            s_sub_u32 s{sT0}, s{sT0}, L_pc-{KERNEL}
            s_subb_u32 s{sT0+1}, s{sT0+1}, 0
            s_and_b32 s{sT2}, s2, 0xf8
            v_lshrrev_b32 v1, 6, v0
            v_add_lshl_u32 v6, v1, s{sT2}, 7
            v_min_u32 v6, L_end-{KERNEL}, v6
            v_mov_b32 v7, s{sT0+1}
            v_add_co_u32 v6, vcc, s{sT0}, v6
            s_nop 1
            v_addc_co_u32 v7, vcc, 0, v7, vcc
            global_load_dword v{vFA+32}, v[6:7], off""")
        a(f"""v_lshrrev_b32 v1, 6, v0
        v_and_b32 v0, 63, v0
        v_readfirstlane_b32 s{sWAVE}, v1
        v_lshrrev_b32 v2, 4, v0
        v_and_b32 v3, 15, v0
        s_and_b32 s{sLW}, s{sWAVE}, 3
        v_lshrrev_b32 v4, 3, v0
        v_and_b32 v5, 7, v0
        v_mul_u32_u24 v7, 1152, v4""")
        for n in range(2):
            a(f"""v_add_u32 v6, {4*n}, v2
            v_xor_b32 v6, v6, v5
            v_lshl_add_u32 v6, v6, 4, v7
            v_add_u32 v{vXVO+n}, {n*(8*1152-1024)}, v6""")
        a(f"""v_and_b32 v1, 1, v2
        v_lshlrev_b32 v1, 1, v1
        v_xor_b32 v1, v1, v5
        v_lshlrev_b32 v1, 4, v1
        v_lshl_add_u32 v{vWVO}, v4, 13, v1
        v_xor_b32 v{vWVO+1}, 64, v{vWVO}
        s_lshl_b32 s{sWCOL}, s{sHG}, 10
        s_lshl_b32 s{sT0}, s{sLW}, 7
        s_add_u32 s{sWCOL}, s{sWCOL}, s{sT0}
        s_mov_b32 s{sWN}, 0
        s_mul_i32 s{sT0}, s{sHG}, {self.hrot}
        s_add_u32 s{sT0}, s{sT0}, s{sB}
        s_mul_i32 s{sT1}, s{sT0}, 57
        s_lshr_b32 s{sT1}, s{sT1}, 9
        s_mul_i32 s{sT1}, s{sT1}, 9
        s_sub_u32 s{sXCH}, s{sT0}, s{sT1}
        s_mov_b32 s{sWCH}, s{sXCH}
        s_mul_i32 s{sXBASE}, s{sB}, 73728
        s_mul_i32 s{sT0}, s{sLW}, 18432
        s_add_u32 s{sXBASE}, s{sXBASE}, s{sT0}
        s_lshl_b32 s{sT0}, s{sB}, 3
        s_add_u32 s{sT0}, s{sT0}, s{sHG}
        s_lshl_b32 s{sPADDR}, s{sT0}, 7
        s_add_u32 s{sPADDR}, s{sPADDR}, {FLAG_OFF + 4096}
        s_lshl_b32 s{sFADDR}, s{sB}, 7
        s_add_u32 s{sFADDR}, s{sFADDR}, {FLAG_OFF}
        s_waitcnt lgkmcnt(0)""")
        srd(a, sX, 56, SIZE['A_x'])
        srd(a, sWQ, 62, SIZE['A_wq'])
        if self.probes or self.stamps:
            self.late_srds()
        if self.probes or self.stamps:
            a(f"s_mov_b32 s{sSLOT}, -1")
            for k in range(8):
                a(f"v_mov_b32 v{248+k}, 0")
            a("v_writelane_b32 v255, s96, 0")
            self.early(1)

    def late_srds(self):
        a = self.a
        a(f"""s_mov_b32 s{sK}, s58
        s_and_b32 s{sK+1}, s59, 0xffff
        s_lshl_b32 s{sK+2}, {SIZE['A_k']}, s{sTY}
        s_mov_b32 s{sK+3}, 0x20000
        s_mov_b32 s{sV}, s60
        s_and_b32 s{sV+1}, s61, 0xffff
        s_mov_b32 s{sV+2}, s{sK+2}
        s_mov_b32 s{sV+3}, 0x20000""")
        srd(a, sWO, 70, SIZE['A_wo'])
        srd(a, sWS, 68, SIZE['ws'])
        srd(a, sBV, 60, 0)

    def late_common(self):
        a = self.a
        a(f"""s_lshl_b32 s{sBUFSZ}, 16384, s{sTY}
        s_lshl_b32 s{sT0}, 2048, s{sTY}
        s_mul_i32 s{sKVM0}, s{sT0}, s{sLW}
        s_add_u32 s{sRINGEND}, s{sKVM0}, 98304
        s_lshl_b32 s{sT0}, s{sB}, 3
        s_add_u32 s{sT0}, s{sT0}, s{sHG}
        s_lshl_b32 s{sTBASE}, s{sT0}, 19
        s_add_u32 s{sT1}, s{sTY}, 18
        s_lshl_b32 s{sKVOFF}, s{sT0}, s{sT1}
        s_lshr_b32 s{sT0}, s{sLW}, 1
        s_lshl_b32 s{sT0}, s{sT0}, 17
        s_and_b32 s{sT1}, s{sLW}, 1
        s_lshl_b32 s{sT2}, s{sT1}, 12
        s_add_u32 s{sT0}, s{sT0}, s{sT2}
        s_add_u32 s{sTBASE}, s{sTBASE}, s{sT0}
        s_cmp_eq_u32 s{sTY}, 1
        s_cselect_b32 s{sT0}, s{sT0}, s{sKVM0}
        s_add_u32 s{sKVOFF}, s{sKVOFF}, s{sT0}
        s_lshl_b32 s{sT1}, s{sT1}, 3
        s_cmp_eq_u32 s{sTY}, 1
        s_cselect_b32 s{sT1}, 0, s{sT1}
        s_mov_b32 s{sKVN}, 0
        v_lshlrev_b32 v6, 8, v2
        v_add_u32 v7, s{sT1}, v2""")
        for n in range(4):
            a(f"""v_add_u32 v1, {4*n}, v7
            v_xor_b32 v1, v1, v3
            v_and_b32 v1, 15, v1
            v_lshl_add_u32 v{vKVO+n}, v1, 4, v6""")
        a(f"""v_lshlrev_b32 v1, 1, v2
        v_xor_b32 v1, v1, v3
        v_lshl_add_u32 v{vVVO}, v1, 4, v6
        v_xor_b32 v{vVVO+1}, 128, v{vVVO}""")

    def late_wo(self):
        a = self.a
        for n in range(6):
            a(f"""v_add_u32 v1, {64*n}, v0
            v_mul_u32_u24 v6, 2731, v1
            v_lshrrev_b32 v6, 16, v6
            v_mul_u32_u24 v7, 24, v6
            v_sub_u32 v1, v1, v7
            v_and_b32 v7, 6, v6
            v_xor_b32 v1, v1, v7
            v_lshlrev_b32 v1, 4, v1
            v_mul_u32_u24 v6, 1152, v6
            v_add_u32 v1, v1, v6
            v_subrev_u32 v{vOVO+n}, {1024*(n&3)}, v1""")
        a(f"""s_lshl_b32 s{sT0}, s{sHG}, 9
        s_lshl_b32 s{sT1}, s{sLW}, 4
        s_add_u32 s{sT0}, s{sT0}, s{sT1}
        s_mul_i32 s{sOBASE}, s{sT0}, 1152
        s_and_b32 s{sROT}, s{sB}, 3
        s_mul_i32 s{sOLW}, s{sLW}, 6144
        s_cmp_eq_u32 s{sTY}, 1
        s_mov_b32 s{sRB}, {WR}
        s_mov_b32 s{sRB+1}, {R2}
        s_cselect_b32 s{sRB+2}, {R0}, {R1}
        s_cselect_b32 s{sRB+3}, {R1}, {R0}""")

    def x_adv(self):
        self.a(f"""s_add_u32 s{sXN}, s{sXN}, 1
        s_add_u32 s{sXCH}, s{sXCH}, 1
        s_cmp_eq_u32 s{sXCH}, 9
        s_cselect_b32 s{sXCH}, 0, s{sXCH}""")

    def kv_items_b(self):
        f = self.kvflag
        items = []
        for n in range(8):
            t = ""
            if n == 0:
                t += f"s_mov_b32 m0, s{sKVM0}\ns_cmp_eq_u32 s{sKVN}, 15\n"
            if n == 4:
                t += f"s_add_u32 m0, s{sKVM0}, 16384\ns_add_u32 s{sKVM0}, s{sKVM0}, 32768\n"
            if self.bthr < 63:
                t += f"s_waitcnt vmcnt({self.bthr - 1})\n"
            if n < 4:
                t += f"buffer_load_dwordx4 v{vKVO+n}, {sr(sK)}, s{sKVOFF} offen offset:{1024*n}{f} lds\n"
            else:
                t += f"buffer_load_dwordx4 v{vVVO+(n&1)}, {sr(sV)}, s{sKVOFF} offen offset:{1024*(n-4)}{f} lds\n"
            if n == 0:
                t += f"s_cselect_b32 s{sKVCNT}, 131072, 0\ns_add_u32 s{sKVCNT}, s{sKVCNT}, 8192\ns_add_u32 s{sKVN}, s{sKVN}, 1\n"
            if n == 7:
                t += f"""s_add_u32 s{sKVOFF}, s{sKVOFF}, s{sKVCNT}
                s_cmp_ge_u32 s{sKVM0}, s{sRINGEND}
                s_cselect_b32 s{sKVCNT}, 98304, 0
                s_sub_u32 s{sKVM0}, s{sKVM0}, s{sKVCNT}"""
            items.append(t)
        return items

    def wo_addr(self, buf):
        return f"""s_add_u32 s{sT0}, s{sOCI}, s{sROT}
                s_and_b32 s{sT0}, s{sT0}, 3
                s_lshr_b32 s{sT1}, s{sOCI}, 2
                s_lshl_b32 s{sT1}, s{sT1}, 2
                s_add_u32 s{sT0}, s{sT0}, s{sT1}
                s_mul_i32 s{sT0}, s{sT0}, 73728
                s_add_u32 s{sT0}, s{sT0}, s{sOG}
                s_add_u32 s{sT1}, s{buf}, s{sOLW}
                s_mov_b32 m0, s{sT1}
                s_add_u32 s{sT0}, s{sT0}, s{sOBASE}"""

    def wo_adv(self):
        if self.gmajor:
            l, e = self.lab("wa"), self.lab("we")
            return f"""s_cmp_ge_u32 s{sOCI}, 4
                s_cbranch_scc1 {l}
                s_add_u32 s{sOG}, s{sOG}, 384
                s_cmp_eq_u32 s{sOG}, 1152
                s_cselect_b32 s{sOG}, 0, s{sOG}
                s_addc_u32 s{sOCI}, s{sOCI}, 0
                s_branch {e}
                {l}:
                s_add_u32 s{sOCI}, s{sOCI}, 1
                s_cmp_eq_u32 s{sOCI}, 8
                s_cselect_b32 s{sOCI}, 4, s{sOCI}
                s_cselect_b32 s{sT0}, 384, 0
                s_add_u32 s{sOG}, s{sOG}, s{sT0}
                {e}:"""
        return f"""s_add_u32 s{sOG}, s{sOG}, 384
                s_cmp_eq_u32 s{sOG}, 1152
                s_cselect_b32 s{sOG}, 0, s{sOG}
                s_addc_u32 s{sOCI}, s{sOCI}, 0"""

    def wo_items(self):
        items = []
        for n in range(6):
            t = self.wo_addr(sOBUF) + "\n" if n == 0 else ""
            if n == 4:
                t += f"s_add_u32 m0, s{sT1}, 4096\ns_nop 0\n"
            t += f"buffer_load_dwordx4 v{vOVO+n}, {sr(sWO)}, s{sT0} offen offset:{1024*(n&3)} lds\n"
            if n == 5:
                t += self.wo_adv()
            items.append(t)
        return items

    def w_items(self, back=False):
        items = []
        for n in range(8):
            if n == 0:
                t = f"s_lshl_b32 s{sT0}, s{sWCH}, 19\ns_add_u32 s{sT0}, s{sT0}, s{sWCOL}\ns_mov_b32 m0, s{sWBUF}\n"
                t += f"s_sub_u32 s{sWCH}, s{sWCH}, 1\ns_cselect_b32 s{sWCH}, 8, s{sWCH}\n" if back else f"s_add_u32 s{sWCH}, s{sWCH}, 1\n"
            elif n == 4:
                t = f"s_add_u32 m0, s{sWBUF}, 4096\ns_add_u32 s{sT0}, s{sT0}, {65536+3072}\n"
            else:
                t = f"s_add_u32 s{sT0}, s{sT0}, {65536-1024}\n"
            t += f"buffer_load_dwordx4 v{vWVO+(n&1)}, {sr(sWQ)}, s{sT0} offen offset:{1024*(n&3)} lds\n"
            if n == 7 and not back:
                t += f"""s_cmp_eq_u32 s{sWCH}, 9
                s_cselect_b32 s{sWCH}, 0, s{sWCH}
                s_add_u32 s{sWN}, s{sWN}, 1
                s_cmp_eq_u32 s{sWN}, 9
                s_cselect_b32 s{sT1}, 512, 0
                s_add_u32 s{sWCOL}, s{sWCOL}, s{sT1}"""
            items.append(t)
        return items

    def subs(self):
        a = self.a
        f = self.kvflag
        a(f"""F_x:
        s_lshl_b32 s{sT0}, s{sXCH}, 7
        s_add_u32 s{sT0}, s{sT0}, s{sXBASE}
        s_and_b32 s{sT1}, s{sXN}, 3
        s_lshl_b32 s{sT1}, s{sT1}, 2
        s_add_u32 s{sT1}, s{sT1}, s{sLW}
        s_lshl_b32 s{sT1}, s{sT1}, 11
        s_add_u32 m0, s{sT1}, {XR}""")
        self.x_adv()
        for n in range(2):
            a(f"buffer_load_dwordx4 v{vXVO+n}, {sr(sX)}, s{sT0} offen offset:{1024*n} lds")
        self.ret()
        a("F_w:")
        for t in self.w_items():
            a(t)
        self.ret()
        a(f"""F_kv:
        s_cmp_eq_u32 s{sTY}, 0
        s_cbranch_scc1 F_kv_a""")
        for t in self.kv_items_b():
            a(t)
        a(f"s_mov_b32 s{sKVCNT}, 8")
        self.ret()
        a(f"""F_kv_a:
        s_mov_b32 s{sKVCNT}, 0
        s_cmp_ge_u32 s{sKVN}, 32
        s_cbranch_scc1 F_kv_ret""")
        if self.follow:
            a(f"""s_cmp_eq_u32 s{sTHR}, 0
            s_cbranch_scc1 F_kv_go
            s_waitcnt vmcnt(0)
            v_readfirstlane_b32 s{sPROG}, v{vPR}""")
            if self.pace < 99:
                check = f"s_add_u32 s{sT1}, s{sPROG}, {self.pace}\ns_cmp_ge_u32 s{sT1}, s{sKVN}"
                a(check + "\ns_cbranch_scc1 F_kv_go")
                self.spin(f"buffer_load_dword v{vPR}, v{vZ}, {sr(sWS)}, s{sPADDR} offen sc1", vPR,
                          f"v_readfirstlane_b32 s{sPROG}, v{vPR}\n" + check)
            a("F_kv_go:")
        a(f"""s_mov_b32 m0, s{sKVM0}
        s_mov_b32 s{sKVCNT}, 4""")
        if self.thr < 63:
            a(f"s_lshr_b32 s{sT1}, {self.thrmask}, s{sKVN}\ns_and_b32 s{sT1}, s{sT1}, s{sTHR}")
        for n in range(4):
            if self.thr < 63:
                l = self.lab("thr")
                a(f"s_cmp_eq_u32 s{sT1}, 0\ns_cbranch_scc1 {l}\ns_waitcnt vmcnt({self.thr-1})\n{l}:")
            if n == 2:
                a(f"s_add_u32 m0, s{sKVM0}, 8192\ns_add_u32 s{sKVN}, s{sKVN}, 1")
            if n < 2:
                a(f"buffer_load_dwordx4 v{vKVO+n}, {sr(sK)}, s{sKVOFF} offen offset:{1024*n}{f} lds")
            else:
                a(f"buffer_load_dwordx4 v{vVVO+(n&1)}, {sr(sV)}, s{sKVOFF} offen offset:{1024*(n-2)}{f} lds")
        a(f"""s_add_u32 s{sKVOFF}, s{sKVOFF}, 8192
        s_add_u32 s{sKVM0}, s{sKVM0}, 16384
        s_cmp_ge_u32 s{sKVM0}, s{sRINGEND}
        s_cselect_b32 s{sT0}, 98304, 0
        s_sub_u32 s{sKVM0}, s{sKVM0}, s{sT0}""")
        if self.follow or self.help:
            a(f"s_cmp_eq_u32 s{sTHR}, 0\ns_cbranch_scc1 F_kv_ret")
        if self.help:
            if self.ahead < 0:
                a(f"""s_add_u32 s{sT1}, s{sPROG}, {self.lead0}
                s_max_u32 s{sTN}, s{sTN}, s{sT1}
                s_add_u32 s{sT1}, s{sPROG}, {self.lead1}
                s_min_u32 s{sT1}, s{sT1}, 31
                s_cmp_le_u32 s{sTN}, s{sT1}
                s_cselect_b32 s{sLAST}, s{sTN}, s{sLAST}
                s_addc_u32 s{sTN}, s{sTN}, 0""")
            else:
                a(f"""s_cmp_lt_u32 s{sKVN}, {self.early_n}
                s_cselect_b32 s{sLAST}, {self.ahead0}, {self.ahead}
                s_add_u32 s{sLAST}, s{sKVN}, s{sLAST}
                s_min_u32 s{sLAST}, s{sLAST}, 31
                s_max_u32 s{sLAST}, s{sLAST}, {self.from_}""")
            a(f"""s_and_b32 s{sT0}, s{sLAST}, 15
            s_lshl_b32 s{sT0}, s{sT0}, 13
            s_lshr_b32 s{sT1}, s{sLAST}, 4
            s_lshl_b32 s{sT1}, s{sT1}, 18
            s_add_u32 s{sT0}, s{sT0}, s{sT1}
            s_add_u32 s{sT0}, s{sT0}, s{sTBASE}
            v_lshlrev_b32 v1, 7, v0
            s_mov_b64 exec, {(1 << self.help) - 1}
            buffer_load_dword v{vDUM}, v1, {sr(sBV)}, s{sT0} offen offset:{4096 - 128*self.help}
            s_mov_b64 exec, -1""")
        if self.follow:
            a(f"buffer_load_dword v{vPR}, v{vZ}, {sr(sWS)}, s{sPADDR} offen sc1")
        a("F_kv_ret:")
        self.ret()
        a("F_wo:")
        for t in self.wo_items():
            a(t)
        self.ret()

    def kvwait(self):
        l = self.lab("kw")
        self.a(f"""s_waitcnt vmcnt(8)
        s_cmp_eq_u32 s{sKVCNT}, 8
        s_cbranch_scc1 {l}
        s_waitcnt vmcnt({self.NA})
        s_cmp_eq_u32 s{sKVCNT}, 4
        s_cbranch_scc1 {l}
        s_waitcnt vmcnt(0)
        {l}:""")

    def pretouch_wq(self, dst):
        if not self.touch:
            return
        a = self.a
        l = self.lab("pt")
        a(f"s_cmp_eq_u32 s{sTY}, 1\ns_cbranch_scc1 {l}")
        self.other_srd(sPT, 64, SIZE['B_wq'])
        a(f"""s_lshl_b32 s{sT0}, s{sB}, 2
        s_add_u32 s{sT0}, s{sT0}, s{sLW}
        s_mul_i32 s{sT0}, s{sT0}, {9*8192}
        s_lshl_b32 s{sT1}, s{sHG}, 10
        s_add_u32 s{sT0}, s{sT0}, s{sT1}
        v_lshrrev_b32 v1, 2, v0
        v_and_b32 v6, 3, v0
        v_lshlrev_b32 v6, 7, v6
        v_lshl_add_u32 v1, v1, 13, v6
        s_mov_b32 exec_hi, 15
        buffer_load_dword v{dst}, v1, {sr(sPT)}, s{sT0} offen offset:512""")
        if self.touch & 2:
            a(f"buffer_load_dword v{dst+1}, v1, {sr(sWQ)}, s{sT0} offen offset:512")
        a(f"s_mov_b64 exec, -1\n{l}:")

    def pretouch_wo(self, first):
        if not self.touch:
            return
        a = self.a
        l = self.lab("pt")
        a(f"s_cmp_eq_u32 s{sTY}, 1\ns_cbranch_scc1 {l}")
        if first:
            self.other_srd(sPT, 72, SIZE['B_wo'])
            a(f"""s_lshl_b32 s{sT0}, s{sB}, 2
            s_add_u32 s{sT0}, s{sT0}, s{sLW}
            s_mul_i32 s{sT0}, s{sT0}, 9216
            s_mul_i32 s{sTN}, s{sHG}, 589824
            s_add_u32 s{sTN}, s{sTN}, s{sT0}""")
        else:
            a(f"v_lshlrev_b32 v1, 7, v0\ns_mov_b64 exec, 0xfff\nbuffer_load_dword v{vFA+32}, v1, {sr(sPT)}, s{sTN} offen")
            if self.touch & 2:
                a(f"buffer_load_dword v{vFA+33}, v1, {sr(sWO)}, s{sTN} offen")
            a(f"s_mov_b64 exec, -1\ns_add_u32 s{sTN}, s{sTN}, 1536")
        a(f"{l}:")

    def rdA(self, reg, areg, mt, off0, off1, tag):
        return [(f"ds_read_b64_tr_b16 {vr(reg + 2*j, 2)}, v{areg+mt} offset:{o}", tag + (j,)) for j, o in enumerate((off0, off1))]

    def rdB(self, ks, qt):
        return (f"ds_read_b128 {vr(vFB + (ks*4+qt)*4, 4)}, v{vXA+ks} offset:{2048*qt}", ("B", ks, qt))

    def mfma(self, acc, mt, qt, areg, ks):
        c = vr(acc + (mt*4+qt)*4, 4)
        return f"v_mfma_f32_16x16x32_bf16 {c}, {vr(areg, 4)}, {vr(vFB + (ks*4+qt)*4, 4)}, {c}"

    def qA(self, ks, mt):
        return vFA + (ks*4 + mt)*4

    def q_rdA(self, ks, mt):
        return self.rdA(self.qA(ks, mt), vWA, mt, 32*ks*128, (32*ks+4)*128, ("A", ks, mt))

    def q_finalize(self, acc, pending):
        a = self.a
        a(f"s_mov_b32 s{sT2}, {fbits(QSCALE)}")
        mul, cvt, put = [], [], []
        for mt in range(4):
            for qt in range(4):
                c = acc + (mt*4+qt)*4
                mul.append("\n".join(f"v_mul_f32 v{c+r}, s{sT2}, v{c+r}" for r in range(4)))
                cvt.append(f"v_cvt_pk_bf16_f32 v{c}, v{c}, v{c+1}\nv_cvt_pk_bf16_f32 v{c+1}, v{c+2}, v{c+3}")
                put.append((f"v_xor_b32 v1, {32*mt}, v{vQW}\n" if qt == 0 else "") + f"ds_write_b64 v1, {vr(c,2)} offset:{2048*qt}")
        work = ["\n".join(([put[k-2]] if 2 <= k < 18 else []) + ([cvt[k-1]] if 1 <= k < 17 else []) + ([mul[k]] if k < 16 else [])) for k in range(18)]
        lead = len(pending) - 16 + 5
        for k, t in enumerate(pending):
            a(t)
            if k + 1 == lead:
                a("s_nop 3")
            if k + 1 >= lead:
                a(work.pop(0))
        for t in work:
            a(t)
        a("s_waitcnt lgkmcnt(0)")

    ORDER4 = [(mt, qt) for mt in range(4) for qt in range(4)]
    ORDER3 = [(mt, qt) for mt in range(3) for qt in range(4)]
    NEXTX = [f"s_add_u32 s{sN}, s{sN}, 1\ns_and_b32 s{sT0}, s{sN}, 3\ns_lshl_b32 s{sT0}, s{sT0}, 13",
             f"v_add_u32 v{vXA}, s{sT0}, v{vXA0}", f"v_add_u32 v{vXA+1}, s{sT0}, v{vXA0+1}"]

    def pj_first(self):
        a = self.a
        ACC0 = vACC
        a("L_pj:")
        if not (self.probes or self.stamps):
            self.late_srds()
        a(f"""v_mov_b32 v{vZ}, 0
        s_cmp_lg_u32 s{sLW}, 0
        s_cbranch_scc1 L_pj_a
        s_lshl_b32 s{sT0}, s{sTY}, 11
        s_lshl_b32 s{sT1}, s{sHG}, 2
        s_add_u32 s{sT0}, s{sT0}, s{sT1}
        s_add_u32 s{sT0}, s{sT0}, s{sFADDR}
        s_cmp_eq_u32 s{sTY}, 1
        s_cselect_b32 s{sT1}, s{sPADDR}, s{sT0}
        s_mov_b64 exec, 1
        buffer_store_dword v{vZ}, v{vZ}, {sr(sWS)}, s{sT0} offen sc1
        buffer_store_dword v{vZ}, v{vZ}, {sr(sWS)}, s{sT1} offen sc1
        s_mov_b64 exec, -1
        L_pj_a:""")
        self.early(6)
        for i in list(range(vKVO, vXVO)) + list(range(vOVO, vWVO)):
            a(f"v_mov_b32 v{i}, 0")
        a(f"""s_lshl_b32 s{sT2}, s{sLW}, 13
        s_mov_b32 s{sWB}, {R1}
        s_mov_b32 s{sWB+1}, {R2}
        s_mov_b32 s{sWB+2}, {WR}
        v_lshrrev_b32 v1, 2, v3
        v_lshl_add_u32 v6, v2, 3, v1
        v_lshrrev_b32 v1, 1, v1
        v_and_b32 v7, 1, v2
        v_lshl_or_b32 v1, v7, 1, v1
        v_and_b32 v7, 3, v0
        v_lshlrev_b32 v7, 3, v7
        v_lshl_add_u32 v6, v6, 7, v7
        v_lshl_add_u32 v6, v1, 5, v6
        v_add_u32 v{vWA0}, s{sT2}, v6
        v_add_u32 v{vWA}, {WR}, v{vWA0}""")
        for mt in range(1, 4):
            a(f"v_xor_b32 v{vWA+mt}, {32*mt}, v{vWA}")
        a(f"""v_lshrrev_b32 v1, 1, v3
        v_xor_b32 v6, v1, v2
        v_lshlrev_b32 v6, 4, v6
        v_lshl_add_u32 v6, v3, 7, v6
        v_add_u32 v{vXA0}, {XR}, v6
        v_xor_b32 v{vXA0+1}, 64, v{vXA0}
        v_mov_b32 v{vXA}, v{vXA0}
        v_mov_b32 v{vXA+1}, v{vXA0+1}
        v_lshrrev_b32 v6, 1, v2
        v_xor_b32 v6, v6, v1
        v_lshlrev_b32 v6, 4, v6
        v_lshl_add_u32 v6, v3, 7, v6
        v_and_b32 v7, 1, v2
        v_lshl_add_u32 v6, v7, 3, v6
        v_add_u32 v6, s{sT2}, v6
        v_add_u32 v{vQW}, {R2}, v6""")
        for i in range(64):
            a(f"v_mov_b32 v{ACC0+i}, 0")
        for i in range(16):
            a(f"v_mov_b32 v{vFA+16+i}, 0\nv_mov_b32 v{vFB+16+i}, 0")
        self.early(4)
        srd(a, sPT, sDBGP, 256)
        a(f"""v_mov_b32 v1, 1
        s_lshl_b32 s{sT0}, s{sB}, 2
        s_mov_b32 s{sN}, 0
        s_waitcnt vmcnt(0)
        s_cmp_lg_u32 s{sLW}, 0
        s_cbranch_scc1 L_q0
        s_mov_b64 exec, 1
        buffer_atomic_add v1, v{vZ}, {sr(sPT)}, s{sT0} offen offset:{128*bool(self.dbgst)} sc1
        s_mov_b64 exec, -1""")
        nextbuf = [f"v_add_u32 v{vWA}, s{sWB}, v{vWA0}\ns_mov_b32 s{sT0}, s{sWB}", f"v_xor_b32 v{vWA+1}, 32, v{vWA}\ns_mov_b32 s{sWB}, s{sWB+1}",
                   f"v_xor_b32 v{vWA+2}, 64, v{vWA}\ns_mov_b32 s{sWB+1}, s{sWB+2}", f"v_xor_b32 v{vWA+3}, 96, v{vWA}\ns_mov_b32 s{sWB+2}, s{sT0}"]
        a("L_q0:\ns_barrier")
        self.probe(0, True)
        lg = Lg(a)
        rd = lambda ks: [self.rdB(ks, 0)] + self.q_rdA(ks, 0) + [self.rdB(ks, q) for q in (1, 2, 3)] + sum((self.q_rdA(ks, m) for m in (1, 2, 3)), [])
        r0 = rd(0)
        plan = {k: [] for k in range(-1, 32)}
        for i, x in enumerate(r0):
            plan[i // 2 - 1].append(x)
        for pos, m in ((6, 0), (8, 1), (12, 2), (16, 3)):
            for j, x in enumerate(self.q_rdA(1, m)):
                plan[pos + j].append(x)
        for q in range(4):
            plan[18 + q].append(self.rdB(1, q))
        tail = nextbuf + self.NEXTX
        for x in plan[-1]:
            lg.issue(*x)
        for k in range(32):
            mt, qt = self.ORDER4[k & 15]
            if k == 16:
                lg.wait(*[tag for _, tag in r0])
            a(self.mfma(ACC0, mt, qt, self.qA(1 - (k >> 4), mt), 1 - (k >> 4)))
            for x in plan[k]:
                lg.issue(*x)
            if k >= 22 and tail:
                a(tail.pop(0))
            if k == 30:
                lg.drain()
                a(f"s_cmp_eq_u32 s{sN}, 1")
        self.probe(1)
        a("s_cbranch_scc1 L_q0_setup")
        if self.wqat > 1:
            a(f"s_cmp_eq_u32 s{sN}, {self.wqat}\ns_cbranch_scc1 L_q0_touch")
        a(f"s_cmp_lt_u32 s{sN}, 9\ns_cbranch_scc1 L_q0")
        self.early(10)
        self.q_finalize(ACC0, [self.mfma(ACC0, mt, qt, self.qA(1, mt), 1) for mt, qt in self.ORDER4])
        self.early(12)
        a(f"v_xor_b32 v{vQW}, {R2 ^ WR}, v{vQW}")
        self.stamp(1)
        a("s_branch L_pj_rest")

    def pj_setup(self):
        a = self.a
        a("L_q0_setup:")
        self.late_common()
        self.late_wo()
        a(f"""s_cmp_eq_u32 s{sTY}, 1
        s_cselect_b32 s{sKVN}, 2, {self.adist}
        s_lshl_b32 s{sT0}, s{sKVN}, 13
        s_add_u32 s{sKVOFF}, s{sKVOFF}, s{sT0}
        s_mul_i32 s{sT0}, s{sKVN}, s{sBUFSZ}
        s_add_u32 s{sKVM0}, s{sKVM0}, s{sT0}
        s_mov_b32 s{sTHR}, 1
        s_add_u32 s{sWCOL}, s{sWCOL}, 512
        s_add_u32 s{sWCH}, s{sWCH}, 7
        s_sub_u32 s{sT0}, s{sWCH}, 9
        s_cselect_b32 s{sWCH}, s{sWCH}, s{sT0}
        s_lshl_b32 s{sT2}, s{sLW}, 13
        s_add_u32 s{sWBUF}, s{sT2}, {WR}
        s_mov_b32 s{sXN}, 4
        s_add_u32 s{sXCH}, s{sXCH}, 4
        s_sub_u32 s{sT0}, s{sXCH}, 9
        s_cselect_b32 s{sXCH}, s{sXCH}, s{sT0}
        s_mov_b32 s{sOCI}, 0
        s_mov_b32 s{sOG}, 0
        s_mov_b32 s{sOBUF}, {WR}
        s_mov_b32 s{sTN}, 0
        s_mov_b32 s{sLAST}, 2
        v_mov_b32 v{vPR}, 0""")
        for i in range(64):
            a(f"v_mov_b32 v{vACC+64+i}, 0")
        if self.wqat > 1:
            a("s_branch L_q0\nL_q0_touch:")
        self.pretouch_wq(vFA + 34)
        a("s_branch L_q0")

    def stream_slot(self, ty, rdA, MT, acc, aset, loads, after, readB=True):
        e = self.a
        e("s_barrier")
        self.probe(0, True)
        lg = Lg(e)
        for t, tag in rdA:
            lg.issue(t, tag)
        lg.drain()
        self.probe(1)
        e("s_barrier")
        self.probe(2)
        for ks in (0, 1):
            for q in range(4 if readB else 0):
                lg.issue(*self.rdB(ks, q))
        if loads is None:
            return
        def mk(ks, mt, qt):
            def f():
                lg.wait(("B", ks, qt))
                e(self.mfma(acc, mt, qt, aset(ks, mt), ks))
            return f
        mm = [mk(ks, mt, qt) for ks in (0, 1) for mt in range(MT) for qt in range(4)]
        self.spread(mm, loads + (self.kv_items_b() if ty else []))
        self.probe(6)
        if not ty:
            if getattr(self, "extra", None):
                l = self.lab("tx")
                e(f"s_cmp_ge_u32 s{sN}, 15\ns_cbranch_scc1 {l}")
                self.pretouch_wo(False)
                e(f"{l}:")
                self.extra = None
            self.call("F_kv")
        for t in after:
            e(t)

    def store_items(self, G):
        acc = vACC + 48 * G
        items = []
        for qd in range(6):
            c = acc + 8*qd
            t = "\n".join(f"v_cvt_pk_bf16_f32 v{c+i}, v{c+2*i}, v{c+2*i+1}" for i in range(4))
            t += f"\nbuffer_store_dwordx4 {vr(c,4)}, v{vST}, {sr(sWS)}, s{sM} offen offset:{1024*(qd&3)} sc1"
            if qd in (3, 5):
                t += f"\ns_add_u32 s{sM}, s{sM}, {4096 if qd == 3 else 24576-4096}"
            items.append(t)
        return items

    def pj_rest(self):
        a = self.a
        ACC1 = vACC + 64
        qrd = sum((self.q_rdA(ks, m) for ks in (0, 1) for m in range(4)), [])
        a(f"L_pj_rest:\nv_mov_b32 v{vXA}, v{vXA0}\nv_mov_b32 v{vXA+1}, v{vXA0+1}")
        self.prio_set(1)
        prevx = [f"s_add_u32 s{sN}, s{sN}, 1\ns_sub_u32 s{sT0}, 9, s{sN}\ns_and_b32 s{sT0}, s{sT0}, 3\ns_lshl_b32 s{sT0}, s{sT0}, 13"] + self.NEXTX[1:]
        a(f"s_cmp_eq_u32 s{sTY}, 1\ns_cbranch_scc1 L_q1_1")
        if self.help:
            self.other_srd(sBV, 56, SIZE['B_v'])
        if self.follow:
            self.wait_init(vZ, vDUM)
        if self.aidle:
            self.pretouch_wo(True)
            a(f"s_mov_b32 s{sM}, 6\nL_idle_a:\ns_barrier")
            self.probe(0, True)
            a("s_barrier")
            if self.aidle == 1:
                self.pretouch_wo(False)
            self.call("F_kv")
            self.kvwait()
            a(f"s_sub_u32 s{sM}, s{sM}, 1\ns_cmp_lg_u32 s{sM}, 0\ns_cbranch_scc1 L_idle_a")
        for ty in (0, 1):
            nk = 8 if ty else self.NA
            a(f"L_q1_{ty}:")
            if self.aidle == 2 and not ty:
                self.extra = "touch"
            self.stream_slot(ty, qrd, 4, ACC1, self.qA, self.w_items(True), prevx)
            a(f"s_sub_u32 s{sT0}, s{sN}, 11\ns_cmp_ge_u32 s{sT0}, 5\ns_cbranch_scc1 L_q1_nox{ty}")
            self.call("F_x")
            a(f"""s_sub_u32 s{sXN}, s{sXN}, 2
            s_add_u32 s{sXCH}, s{sXCH}, 7
            s_sub_u32 s{sT0}, s{sXCH}, 9
            s_cselect_b32 s{sXCH}, s{sXCH}, s{sT0}""")
            self.probe(4)
            a(f"s_waitcnt vmcnt({nk + 2})")
            self.probe(5)
            a(f"s_branch L_q1_{ty}\nL_q1_nox{ty}:")
            self.probe(4)
            a(f"s_waitcnt vmcnt({nk})")
            self.probe(5)
            a(f"s_cmp_lt_u32 s{sN}, 17\ns_cbranch_scc1 L_q1_{ty}")
            if not ty:
                a("s_branch L_q1_last")
        a("L_q1_last:")
        self.stream_slot(0, qrd, 4, ACC1, self.qA, None, None)
        self.call("F_kv")
        a("s_waitcnt lgkmcnt(0)")
        self.q_finalize(ACC1, [self.mfma(ACC1, mt, qt, self.qA(ks, mt), ks) for ks in (0, 1) for mt, qt in self.ORDER4])
        self.kvwait()
        self.stamp(2)
        a("s_barrier")
        self.probe(0, True)
        a("s_barrier")
        if not self.aidle:
            self.pretouch_wo(True)
        self.call("F_kv")
        for i in range(144):
            a(f"v_mov_b32 v{vACC+i}, 0")
        a(f"""v_lshrrev_b32 v6, 2, v0
        v_bfe_u32 v1, v6, 1, 2
        v_and_b32 v7, 3, v0
        v_lshlrev_b32 v7, 3, v7
        v_mul_u32_u24 v6, 384, v6
        v_add_u32 v6, v6, v7
        s_mul_i32 s{sT0}, s{sLW}, 3""")
        for nt in range(3):
            a(f"""s_add_u32 s{sT1}, s{sT0}, {nt}
            v_xor_b32 v7, s{sT1}, v1
            v_lshl_add_u32 v{vOA0+nt}, v7, 5, v6
            v_add_u32 v{vOA+nt}, {WR}, v{vOA0+nt}""")
        a(f"""s_lshl_b32 s{sT0}, s{sTY}, 4
        s_add_u32 s{sT0}, s{sT0}, s{sB}
        s_lshl_b32 s{sT0}, s{sT0}, 3
        s_add_u32 s{sT0}, s{sT0}, s{sHG}
        s_mul_i32 s{sM}, s{sT0}, {PART}
        s_add_u32 s{sM}, s{sM}, s{sOLW}
        v_lshlrev_b32 v{vST}, 4, v0""")
        self.kvwait()
        if self.aidle:
            a(f"s_cmp_eq_u32 s{sTY}, 0\ns_cbranch_scc1 L_kvl_done")
        a(f"s_mov_b32 s{sN}, 6\nL_kvl:\ns_barrier")
        self.probe(0, True)
        a("s_barrier")
        self.probe(2)
        if not self.aidle:
            self.pretouch_wo(False)
        self.call("F_kv")
        self.probe(4)
        self.kvwait()
        self.probe(5)
        a(f"""s_sub_u32 s{sN}, s{sN}, 1
        s_cmp_lg_u32 s{sN}, 0
        s_cbranch_scc1 L_kvl
        L_kvl_done:
        s_barrier""")
        self.probe(0, True)
        a("s_barrier")
        self.call("F_wo")
        self.call("F_kv")
        self.kvwait()
        self.stamp(3)
        oA = lambda c, ks, mt: vFA + 4*mt + (0 if ks == 0 else 12 + 12*(c & 1))
        o_rdA = lambda c, ks, mt: self.rdA(oA(c, ks, mt), vOA, mt, 32*ks*384, (32*ks+16)*384, ("A", ks, mt))
        xa_step = [f"s_add_u32 s{sN}, s{sN}, 1\ns_add_u32 s{sT0}, s{sROT}, s{sN}\ns_and_b32 s{sT0}, s{sT0}, 3\ns_lshl_b32 s{sT0}, s{sT0}, 13",
                   f"v_add_u32 v{vXA}, s{sT0}, v{vXA0}", f"v_add_u32 v{vXA+1}, s{sT0}, v{vXA0+1}"]
        a(f"s_mov_b32 s{sN}, -1")
        for t in xa_step:
            a(t)
        ord_ = sum((o_rdA(0, ks, m) for ks in (0, 1) for m in range(3)), [])
        a(f"s_cmp_eq_u32 s{sTY}, 1\ns_cbranch_scc1 L_o2_1")
        for ty in (0, 1):
            a(f"L_o2_{ty}:")
            for G in range(3):
                self.stream_slot(ty, ord_, 3, vACC + 48*G, lambda ks, mt: oA(0, ks, mt), self.wo_items(), xa_step if G == 0 else [], G == 0)
                self.probe(4)
                if ty:
                    a("s_waitcnt vmcnt(8)")
                else:
                    self.kvwait()
                self.probe(5)
            a(f"s_cmp_lt_u32 s{sN}, 4\ns_cbranch_scc1 L_o2_{ty}")
            if not ty:
                a("s_branch L_o2_done")
        a("L_o2_done:")
        self.stamp(4)
        if self.probes:
            a(f"s_add_u32 s{sSLOT}, s{sSLOT}, 3")
        a("s_barrier\ns_barrier")
        if self.touch & 4:
            a(f"""s_cmp_eq_u32 s{sTY}, 1
            s_cbranch_scc1 L_t38
            s_lshl_b32 s{sT0}, s{sB}, 2
            s_add_u32 s{sT0}, s{sT0}, s{sLW}
            s_mul_i32 s{sT0}, s{sT0}, 4608
            s_mul_i32 s{sT1}, s{sHG}, 589824
            s_add_u32 s{sT0}, s{sT0}, s{sT1}
            s_add_u32 s{sT0}, s{sT0}, 294912
            v_lshlrev_b32 v1, 7, v0
            s_mov_b32 exec_hi, 15
            buffer_load_dword v{vDUM}, v1, {sr(sWO)}, s{sT0} offen
            s_mov_b64 exec, -1
            L_t38:""")
        self.call("F_kv")
        a(f"""v_lshl_add_u32 v1, v0, 2, s{sRB}
        v_cmp_gt_u32 vcc, 6, v0
        s_and_saveexec_b64 {sr(sT0, 2)}, vcc
        s_cmp_lg_u32 s{sLW}, 0
        s_cbranch_scc1 L_nz
        ds_write_b32 v1, v{vZ} offset:{SYNC - WR}
        L_nz:
        s_mov_b64 exec, -1
        s_waitcnt lgkmcnt(0)""")
        self.kvwait()
        srd(a, sPT, sDBGP, 256)
        a(f"""s_lshl_b32 s{sT2}, s{sB}, 2
        s_barrier
        s_barrier
        buffer_load_dword v{vDUM}, v{vZ}, {sr(sPT)}, s{sT2} offen offset:{128*bool(self.dbgst)} sc1
        s_mov_b32 s{sOBUF}, s{sRB+1}""")
        self.call("F_wo")
        a(f"""s_waitcnt vmcnt(6)
        v_readfirstlane_b32 s{sT1}, v{vDUM}
        s_cmp_ge_u32 s{sT1}, 16
        s_cbranch_scc1 L_init_ok""")
        self.wait_init(vZ, vDUM)
        a(f"L_init_ok:\ns_barrier\ns_barrier\ns_mov_b32 s{sOBUF}, s{sRB+2}")
        self.call("F_wo")
        if self.prio & 4:
            a("s_setprio 0")
        self.stamp(5)
        st = []
        for c in range(12):
            grp = (lambda c: c >> 2) if self.gmajor else (lambda c: c % 3)
            acc, prev = vACC + 48 * grp(c), vACC + 48 * grp(max(c - 1, 0))
            newB = c % 3 == 0 or self.gmajor
            lg = Lg(a)
            if c == 0:
                for ks in (0, 1):
                    for m in range(3):
                        for x in o_rdA(0, ks, m):
                            lg.issue(*x)
                lg.drain()
            a("s_barrier")
            self.probe(0, True)
            b0 = [self.rdB(0, q) for q in range(4)] if newB else []
            r0 = b0[:1] + o_rdA(c, 0, 0) + b0[1:] + o_rdA(c, 0, 1) + o_rdA(c, 0, 2)
            ra1 = sum((o_rdA(c, 1, m) for m in range(3)), [])
            if c == 0:
                r0, ra1 = b0 + [self.rdB(1, q) for q in range(4)], []
            plan = {k: [] for k in range(-1, 24)}
            for i, x in enumerate(r0):
                plan[(i // 2 - 1 if newB else i - 1) if c else -1].append(x)
            for i, x in enumerate(ra1):
                plan[5 + i if c else 12 + i // 2].append(x)
            for q in range(4 if newB and c else 0):
                plan[12 + q].append(self.rdB(1, q))
            fill = [f"v_add_u32 v{vOA+nt}, s{sRB + ((c+1)&3)}, v{vOA0+nt}" for nt in range(3)] + (xa_step if newB else [])
            for x in plan[-1]:
                lg.issue(*x)
            for k in range(0 if c else 12, 24):
                mt, qt = self.ORDER3[k % 12]
                if k == 12 and c:
                    lg.wait(*[tag for _, tag in r0])
                elif not c:
                    lg.wait(("A", 0, mt, 0), ("A", 0, mt, 1), ("B", 0, qt))
                a(self.mfma(prev, mt, qt, oA(c - 1, 1, mt), 1) if k < 12 else self.mfma(acc, mt, qt, oA(c, 0, mt), 0))
                for x in plan[k]:
                    lg.issue(*x)
                if k >= (16 if c else 19) and fill:
                    a(fill.pop(0))
                    if not c and fill:
                        a(fill.pop(0))
                if self.gmajor:
                    if k == 11 and c in (self.store0, self.store1):
                        st += self.store_items(int(c == self.store1))
                    step = self.stp0 if c < self.store1 else self.stp
                else:
                    if c >= 10 and k == 9:
                        st += self.store_items(c - 10)
                    step = self.stp
                if st and k % step == step - 1:
                    a(st.pop(0))
                if k == 22:
                    lg.drain()
            assert not fill
            if c < 2:
                a(f"s_waitcnt vmcnt({6 - 6*c})")
            if c in (4, 8):
                self.stamp(6 + (c >> 3))
        for k, (mt, qt) in enumerate(self.ORDER3):
            a(self.mfma(vACC + 96, mt, qt, oA(11, 1, mt), 1))
            if k == 9:
                st += self.store_items(2)
            if st and k % 2 == 1:
                a(st.pop(0))
        for t in st:
            a(t)
        self.stamp(8)
        a(f"""v_mov_b32 v1, {SYNC}
        v_mov_b32 v6, 1
        s_lshl_b32 s{sT0}, s{sTY}, 11
        s_lshl_b32 s{sT1}, s{sHG}, 2
        s_add_u32 s{sT0}, s{sT0}, s{sT1}
        s_add_u32 s{sT0}, s{sT0}, s{sFADDR}
        s_mov_b64 exec, 1""")
        for k in range(1):
            a(f"""s_waitcnt vmcnt(0)
            ds_add_rtn_u32 v7, v1, v6 offset:{4*k}
            s_waitcnt lgkmcnt(0)
            v_readfirstlane_b32 s{sT1}, v7
            s_cmp_lg_u32 s{sT1}, 3
            s_cbranch_scc1 L_nf{k}
            buffer_store_dword v6, v{vZ}, {sr(sWS)}, s{sT0} offen offset:{32*k} sc1
            L_nf{k}:""")
            if k == 0:
                self.stamp(13)
        a("s_mov_b64 exec, -1")
        self.stamp(9)
        self.probe_dump()
        a("s_branch L_reduce")

    def at_first(self):
        a = self.a
        a("L_at:")
        self.prio_set(0)

        issued = []
        WBUFS = (WR, R1, R2)

        def ldx(n, direct):
            if n <= 3 or n >= 9 or direct:
                self.call("F_x")
            else:
                a(f"s_lshl_b32 s{sT0}, s{sXCH}, 7\ns_add_u32 s{sT0}, s{sT0}, s{sXBASE}")
                self.x_adv()
                for i in range(2):
                    a(f"buffer_load_dwordx4 {vr(vO + (n-4)*8 + 4*i, 4)}, v{vXVO+i}, {sr(sX)}, s{sT0} offen offset:{1024*i}")
            issued.extend([("x", n)] * 2)

        def ldw(n):
            if n == 9:
                a(f"s_sub_u32 s{sWCH}, s{sWCH}, 1\ns_cselect_b32 s{sWCH}, 8, s{sWCH}")
            a(f"s_lshl_b32 s{sWBUF}, s{sLW}, 13\ns_add_u32 s{sWBUF}, s{sWBUF}, {WBUFS[n % 3]}")
            self.call("F_w")
            issued.extend([("w", n)] * 8)

        def prefill(k, ty):
            for _ in range(2 - ty):
                self.call("F_kv")
            issued.extend([("kv", k)] * 8)

        def wait(*tags):
            k = max(i for i, t in enumerate(issued) if t in tags) + 1
            a(f"s_waitcnt vmcnt({min(63, len(issued) - k)})")
        def first_stage(ty):
            del issued[:]
            direct = ty == 1 and self.xplan
            ldx(0, direct); ldw(0)
            self.early(2)
            self.call("F_atset")
            self.early(4)
            ldx(1, direct); ldw(1)
            wait(("x", 0), ("w", 0))
            self.early(5)
            for n in range(9):
                a("s_barrier")
                self.probe(0, True)
                if 1 <= n <= 5 and not direct:
                    wait(("x", n + 3))
                    for i in range(2):
                        a(f"ds_write_b128 v{vT}, {vr(vO + (n-1)*8 + 4*i, 4)} offset:{((n+3)&3)*8192 + 1024*i}")
                if n == 0:
                    for k in range(2, 4 if direct else 9):
                        ldx(k, direct)
                elif direct and n <= 5:
                    ldx(n + 3, direct)
                if n + 2 <= 9:
                    ldw(n + 2)
                if n == 8:
                    prefill(0, ty)
                    if ty or self.adist == 4:
                        prefill(1, ty)
                self.probe(4)
                wait(*([("w", n + 1)] + [("kv", 0) if n == 8 else ("x", n + 1)]))
                a("s_waitcnt lgkmcnt(0)")
                self.probe(5)
        a(f"s_mov_b32 s{sXN}, 0\ns_cmp_eq_u32 s{sTY}, 0\ns_cbranch_scc1 L_at_a")
        first_stage(1)
        a("s_branch L_at_done\nL_at_a:")
        if self.xplan & 2:
            self.other_srd(sPT, 64, SIZE['B_wq'])
            a(f"""s_lshl_b32 s{sT0}, s{sB}, 2
            s_add_u32 s{sT0}, s{sT0}, s{sLW}
            s_mul_i32 s{sT0}, s{sT0}, {9*8192}
            s_lshl_b32 s{sT1}, s{sHG}, 10
            s_add_u32 s{sT0}, s{sT0}, s{sT1}
            v_lshrrev_b32 v1, 2, v0
            v_and_b32 v6, 3, v0
            v_lshlrev_b32 v6, 7, v6
            v_lshl_add_u32 v1, v1, 13, v6
            s_mov_b32 exec_hi, 15
            buffer_load_dword v{vP+3}, v1, {sr(sPT)}, s{sT0} offen""")
            if self.xplan & 4:
                a(f"buffer_load_dword v{vP+2}, v1, {sr(sWQ)}, s{sT0} offen")
            a("s_mov_b64 exec, -1")
        if self.xtouch:
            self.other_srd(sPT, 40, SIZE['B_x'])
            a(f"v_mul_u32_u24 v1, 1152, v0\ns_mul_i32 s{sT2}, s{sB}, 73728")
            for j in range(2):
                a(f"""s_add_u32 s{sT0}, s{sXCH}, s{sLW}
                s_add_u32 s{sT0}, s{sT0}, {self.xfrom + 4*j}
                s_mul_i32 s{sT1}, s{sT0}, 57
                s_lshr_b32 s{sT1}, s{sT1}, 9
                s_mul_i32 s{sT1}, s{sT1}, 9
                s_sub_u32 s{sT0}, s{sT0}, s{sT1}
                s_lshl_b32 s{sT0}, s{sT0}, 7
                s_add_u32 s{sT0}, s{sT0}, s{sT2}
                buffer_load_dword v{vP+j}, v1, {sr(sPT)}, s{sT0} offen""")
        first_stage(0)
        a("L_at_done:")
        if self.prio & 1:
            a("s_setprio 0")
        a("s_branch L_stage\nF_atset:")
        if not (self.probes or self.stamps):
            self.late_srds()
        self.late_common()
        a(f"""s_mov_b32 s{sTHR}, 0
        s_lshl_b32 s{sT0}, s{sLW}, 11
        s_add_u32 s{sT0}, s{sT0}, {XR}
        v_lshl_add_u32 v{vT}, v0, 4, s{sT0}""")
        self.at_setup()
        if self.xplan:
            a(f"s_cmp_eq_u32 s{sTY}, 0\ns_cbranch_scc1 F_atset_ret")
            for i in range(vO, vO + 40):
                a(f"v_mov_b32 v{i}, 0")
            a("F_atset_ret:")
        self.ret()

    def at_setup(self):
        a = self.a
        a(f"""s_lshr_b32 s{sT0}, s{sLW}, 1
        s_mul_i32 s{sT0}, s{sT0}, s{sTY}
        s_lshl_b32 s{sT0}, s{sT0}, 13
        v_xor_b32 v7, v2, v3
        v_lshlrev_b32 v7, 4, v7
        v_lshl_add_u32 v7, v3, 8, v7
        v_add_u32 v{vKA}, s{sT0}, v7""")
        for ks in range(1, 4):
            a(f"v_xor_b32 v{vKA+ks}, {64*ks}, v{vKA}")
        a(f"""s_lshr_b32 s{sT1}, s{sBUFSZ}, 1
        s_add_u32 s{sT0}, s{sT0}, s{sT1}
        v_lshrrev_b32 v1, 2, v0
        v_and_b32 v6, 7, v1
        v_lshlrev_b32 v7, 8, v1
        v_lshl_add_u32 v7, v6, 5, v7
        v_and_b32 v1, 3, v0
        v_lshl_add_u32 v7, v1, 3, v7
        v_add_u32 v{vVA}, s{sT0}, v7""")
        for dt in range(1, 8):
            a(f"v_xor_b32 v{vVA+dt}, {32*dt}, v{vVA}")
        a(f"""s_mov_b32 s{sRPOS}, 0
        s_mov_b32 s{sSTAGE}, 0
        s_mov_b32 s{sQBUF}, {R2 - XR}
        s_mov_b32 s{sM}, 3
        s_lshr_b32 s{sT0}, s{sLW}, 1
        s_lshl_b32 s{sT0}, s{sT0}, 14
        s_and_b32 s{sT1}, s{sLW}, 1
        s_lshl_b32 s{sT1}, s{sT1}, 12
        s_add_u32 s{sT0}, s{sT0}, s{sT1}
        s_add_u32 s{sT0}, s{sT0}, {XR}
        v_lshrrev_b32 v6, 1, v3
        v_xor_b32 v6, v6, v2
        v_lshlrev_b32 v6, 4, v6
        v_lshl_add_u32 v6, v3, 7, v6
        v_add_u32 v{vH}, s{sT0}, v6
        v_xor_b32 v{vH+1}, 64, v{vH}""")
        for i in list(range(vO + 40, vO + 64)) + list(range(vNM + 1, vNM + 8)) + [vL0, vL0 + 1, vL0 + 2, vL0 + 3, 4] + list(range(vOVO, vOVO + 6)):
            a(f"v_mov_b32 v{i}, 0")

    def at_rest(self):
        a = self.a
        publish = self.follow or self.gate
        a(f"""L_stage:
        s_mov_b32 s{sTH}, 0xff7fffff
        s_mov_b32 s{sFLOOR}, 0xff7fffff
        s_mov_b32 s{sFIRST}, 0
        s_cmp_lg_u32 s{sSTAGE}, 0
        s_cbranch_scc1 L_stage_a
        v_mov_b32 v{vNM}, 0
        L_stage_a:""")
        for i in range(2):
            a(f"v_add_u32 v{vT+i}, s{sQBUF}, v{vH+i}")
        a(f"s_mov_b32 s{sN}, 0\nL_tile:\ns_barrier")
        self.probe(0, True)
        a(f"s_cmp_lg_u32 s{sN}, 0\ns_cbranch_scc1 L_tile_k")
        for qt in range(2):
            for ks in range(4):
                a(f"ds_read_b128 {vr(vQ + (qt*4+ks)*4, 4)}, v{vT+(ks&1)} offset:{2048*qt + 8192*(ks>>1)}")
        a("s_waitcnt lgkmcnt(0)\nL_tile_k:")
        lg = Lg(a)
        for ks in range(4):
            for kt in range(2):
                lg.issue(f"ds_read_b128 {vr(vKF + (ks*2+kt)*4, 4)}, v{vKA+ks} offset:{4096*kt}", ("K", ks, kt))
        a("s_barrier")
        vreads = [(f"ds_read_b64_tr_b16 {vr(vVF + dt*4 + 2*j, 2)}, v{vVA+dt} offset:{4096*j}", ("V", dt, j)) for dt in range(8) for j in range(2)]
        S = lambda qt, kt: vS + (qt*2 + kt)*4
        O = lambda dt, qt: vO + (((dt >> 1)*2 + qt)*2 + (dt & 1))*4
        for ks in range(4):
            for kt in range(2):
                lg.wait(("K", ks, kt))
                for qt in range(2):
                    c = vr(vNM + 4*qt, 4) if ks == 0 else vr(S(qt, kt), 4)
                    a(f"v_mfma_f32_16x16x32_bf16 {vr(S(qt, kt), 4)}, {vr(vKF + (ks*2+kt)*4, 4)}, {vr(vQ + (qt*4+ks)*4, 4)}, {c}")
                    if len(lg.q) < 15:
                        lg.issue(*vreads.pop(0))
        for t, tag in vreads:
            lg.issue(t, tag)
        a(f"""s_add_u32 s{sRPOS}, s{sRPOS}, s{sBUFSZ}
        s_cmp_ge_u32 s{sRPOS}, 98304
        s_cselect_b32 s{sT0}, 98304, 0
        s_sub_u32 s{sRPOS}, s{sRPOS}, s{sT0}
        s_sub_u32 s{sT0}, s{sBUFSZ}, s{sT0}""")
        adv = [f"v_add_u32 v{vKA+i}, s{sT0}, v{vKA+i}" for i in range(12)]
        for t in adv[:2]:
            a(t)
        adv = adv[2:]
        t0, t1 = vT, vT + 1
        a(f"""v_max3_f32 v{t0}, v{vS}, v{vS+1}, v{vS+2}
        v_max3_f32 v{t0}, v{t0}, v{vS+3}, v{vS+4}
        v_max3_f32 v{t1}, v{vS+8}, v{vS+9}, v{vS+10}
        v_max3_f32 v{t0}, v{t0}, v{vS+5}, v{vS+6}
        v_max3_f32 v{t1}, v{t1}, v{vS+11}, v{vS+12}
        v_max_f32 v{t0}, v{t0}, v{vS+7}
        v_max3_f32 v{t1}, v{t1}, v{vS+13}, v{vS+14}
        v_max_f32 v{t1}, v{t1}, v{vS+15}
        v_max_f32 v{vT+2}, v{t0}, v{t1}
        v_cmp_lt_f32 vcc, s{sTH}, v{vT+2}
        s_cbranch_vccnz L_rescale
        L_tile_exp:""")
        ex = lambda u: [f"v_exp_f32 v{vS+8*u+i}, v{vS+8*u+i}" for i in range(8)]
        cv = lambda u: [f"v_cvt_pk_bf16_f32 v{vP+4*u+i}, v{vS+8*u+2*i}, v{vS+8*u+2*i+1}" for i in range(4)]
        if self.pkl:
            ad = lambda u: [x for i in range(4) for x in (f"v_pk_add_f32 {vr(vL0+2*u, 2)}, {vr(vL0+2*u, 2)}, {vr(vS+8*u+2*i, 2)}", "")]
        else:
            ad = lambda u: [f"v_add_f32 v{vL0+2*u+(i&1)}, v{vL0+2*u+(i&1)}, v{vS+8*u+i}" for i in range(8)]
        pv = lambda dt, u: f"v_mfma_f32_16x16x32_bf16 {vr(O(dt, u), 4)}, {vr(vVF + dt*4, 4)}, {vr(vP+4*u, 4)}, {vr(O(dt, u), 4)}"
        e0, c0, a0 = ex(0), cv(0), ad(0)
        e1, c1, a1 = ex(1), cv(1), ad(1)
        for t in e0[:3] + [e0[3], c0[0], e0[4], e0[5], c0[1], e0[6], e0[7], c0[2], e1[0], c0[3], e1[1], a0[0]]:
            a(t)
        gaps = [[e1[2]], [e1[3], c1[0]], [e1[4]], [e1[5], c1[1]], [e1[6]], [e1[7]], [c1[2], a0[1]], [c1[3], a0[2], a0[3] or "s_nop 0"]]
        for dt in range(8):
            if dt % 2 == 0:
                lg.wait(("V", dt + 1, 0), ("V", dt + 1, 1))
            a(pv(dt, 0))
            for t in gaps[dt]:
                a(t)
        rest = [x for pair in zip(a1, a0[4:] + adv[:4]) for x in pair] + adv[4:]
        for dt in range(8):
            a(pv(dt, 1))
            for _ in range(3):
                if rest: a(rest.pop(0))
        assert not rest
        self.probe(6)
        a(f"s_or_b32 s{sT0}, s{sSTAGE}, s{sN}\ns_cbranch_scc1 L_tile_nw\ns_waitcnt vmcnt(0)\nL_tile_nw:")
        if publish:
            a(f"""s_cmp_gt_u32 s{sTY}, s{sLW}
            s_cbranch_scc0 L_tile_np""")
            if not self.follow:
                a(f"s_add_u32 s{sM}, s{sM}, 1\ns_cmp_eq_u32 s{sM}, {self.gate + 1}\ns_cbranch_scc0 L_tile_np\ns_sub_u32 s{sM}, s{sM}, 1")
            a(f"""v_mov_b32 v5, s{sM}
            s_mov_b64 exec, 1
            buffer_store_dword v5, v4, {sr(sWS)}, s{sPADDR} offen sc1
            s_mov_b64 exec, -1
            s_add_u32 s{sM}, s{sM}, 1
            L_tile_np:""")
        a(f"""s_add_u32 s{sN}, s{sN}, 1
        s_cmp_lt_u32 s{sN}, 16
        s_cbranch_scc1 L_tile""")
        a(f"""v_add_f32 v{vL0}, v{vL0}, v{vL0+1}
        v_add_f32 v{vL0+1}, v{vL0+2}, v{vL0+3}
        v_mov_b32 v{vT}, v{vL0}
        v_mov_b32 v{vT+1}, v{vL0+1}
        s_mov_b32 s{sQBUF}, {WR - XR}
        s_add_u32 s{sSTAGE}, s{sSTAGE}, 1
        v_permlane32_swap_b32 v{vL0}, v{vT}
        v_permlane32_swap_b32 v{vL0+1}, v{vT+1}
        v_add_f32 v{vL0}, v{vL0}, v{vT}
        v_add_f32 v{vL0+1}, v{vL0+1}, v{vT+1}
        v_mov_b32 v{vT}, v{vL0}
        v_mov_b32 v{vT+1}, v{vL0+1}
        s_nop 1
        v_permlane16_swap_b32 v{vL0}, v{vT}
        v_permlane16_swap_b32 v{vL0+1}, v{vT+1}
        v_add_f32 v{vT}, v{vL0}, v{vT}
        v_add_f32 v{vT+1}, v{vL0+1}, v{vT+1}
        v_rcp_f32 v{vT}, v{vT}
        v_rcp_f32 v{vT+1}, v{vT+1}
        s_nop 0""")
        mul, put = [], []
        for qt in range(2):
            for p in range(4):
                c = vO + (p*2 + qt)*8
                mul.append("\n".join(f"v_mul_f32 v{c+i}, v{c+i}, v{vT+qt}" for i in range(8)))
                put.append("\n".join(f"v_cvt_pk_bf16_f32 v{c+i}, v{c+2*i}, v{c+2*i+1}" for i in range(4)) +
                           f"\nds_write_b128 v{vH + (p&1)}, {vr(c,4)} offset:{2048*qt + 8192*(p>>1)}")
        for k in range(9):
            if k < 8: a(mul[k])
            if k: a(put[k-1])
        a(f"""s_cmp_lt_u32 s{sSTAGE}, 2
        s_cbranch_scc0 L_feed0""")
        self.late_wo()
        a(f"""s_mov_b32 s{sOCI}, {7 if self.gmajor else 5}
        s_mov_b32 s{sOG}, 0
        s_waitcnt lgkmcnt(0)
        s_branch L_stage""")
        a("L_feed0:")
        self.prio_set(2)
        a(f"""s_mov_b32 s{sN}, 0
        s_waitcnt lgkmcnt(0)
        L_feed:
        {self.wo_addr(sRB+3)}
        s_barrier""")
        self.probe(0, True)
        if self.probes:
            a(f"s_mov_b32 m0, s{sT1}\ns_nop 0")
        for n in range(6):
            if n == 4:
                a(f"s_add_u32 m0, s{sT1}, 4096\ns_nop 0")
            a(f"buffer_load_dwordx4 v{vOVO+n}, {sr(sWO)}, s{sT0} offen offset:{1024*(n&3)} lds")
        a(f"""{self.wo_adv()}
        s_mov_b32 s{sT0}, s{sRB+3}
        s_mov_b32 s{sRB+3}, s{sRB}
        s_mov_b32 s{sRB}, s{sRB+1}
        s_mov_b32 s{sRB+1}, s{sRB+2}
        s_mov_b32 s{sRB+2}, s{sT0}
        s_add_u32 s{sN}, s{sN}, 1""")
        self.probe(4)
        a(f"""s_waitcnt vmcnt(12)
        s_cmp_lt_u32 s{sN}, 9
        s_cbranch_scc1 L_feed""")
        if self.gate:
            a(f"s_or_b32 s{sT0}, s{sTY}, s{sLW}\ns_cbranch_scc1 L_gate")
            self.wait_init(4, 5)
            self.spin(f"buffer_load_dword v5, v4, {sr(sWS)}, s{sPADDR} offen sc1", 5,
                      f"v_readfirstlane_b32 s{sT1}, v5\ns_cmp_ge_u32 s{sT1}, {self.gate}")
            a("L_gate:")
        a("""s_barrier
        s_waitcnt vmcnt(6)
        s_barrier
        s_waitcnt vmcnt(0)
        s_barrier""")
        self.probe_dump()

    def reduce(self):
        a = self.a
        vL, vO0, vD, vSum = 6, 14, 40, 104
        of = ("", " sc1", " nt", " sc0 sc1")[self.outf]
        a("L_reduce:")
        self.stamp(10)
        a(f"""s_setprio 0
        s_lshr_b32 s{sSTAGE}, s{sWAVE}, 2
        s_lshl_b32 s{sT1}, s{sSTAGE}, 2
        s_add_u32 s{sT1}, s{sT1}, {SYNC + 8}
        v_mov_b32 v9, s{sT1}
        s_mov_b32 s{sSPIN}, {SPIN}
        s_cmp_lg_u32 s{sLW}, 0
        s_cbranch_scc1 L_red_work
        s_lshl_b32 s{sT0}, s{sSTAGE}, 11
        s_add_u32 s{sFADDR}, s{sFADDR}, s{sT0}
        v_mov_b32 v4, 0
        v_and_b32 v8, 7, v0
        v_lshlrev_b32 v8, 2, v8
        s_cmp_eq_u32 s{sSTAGE}, 1
        s_cbranch_scc1 L_red_poll""")
        self.wait_init(4, 5)
        a(f"""s_mov_b32 s{sSPIN}, {SPIN}
        L_red_poll:""")
        NP = self.polls
        ld = lambda k: f"buffer_load_dword v{16+k}, v8, {sr(sWS)}, s{sFADDR} offen sc1"
        for k in range(NP - 1):
            a(ld(k) + f"\ns_sleep {self.nap}")
        a("L_red_again:")
        for k in range(NP):
            a(f"""{ld((k + NP - 1) % NP)}
            s_waitcnt vmcnt({NP - 1})
            v_cmp_eq_u32 vcc, 1, v{16+k}
            s_and_b32 s{sT2}, vcc_lo, 0xff
            s_sub_u32 s{sSPIN}, s{sSPIN}, 1
            s_cselect_b32 s{sT2}, 0xff, s{sT2}
            v_mov_b32 v10, s{sT2}
            ds_write_b32 v9, v10
            s_cmp_eq_u32 s{sT2}, 0xff
            s_cbranch_scc1 L_red_end
            s_sleep {self.nap}""")
        a(f"""s_branch L_red_again
        L_red_work:""")
        srd(a, sX, sOUTP, SIZE['out'])
        a(f"""s_lshl_b32 s{sN}, s{sTY}, 3
        s_add_u32 s{sN}, s{sN}, s{sHG}
        s_sub_u32 s{sT0}, s{sLW}, 1
        s_lshl_b32 s{sT0}, s{sT0}, 4
        s_add_u32 s{sN}, s{sN}, s{sT0}
        s_mul_i32 s{sN}, s{sN}, 48
        s_lshl_b32 s{sT0}, s{sSTAGE}, 4
        s_add_u32 s{sT0}, s{sT0}, s{sB}
        s_mul_i32 s{sM}, s{sT0}, {8*PART}
        s_mul_i32 s{sOBASE}, s{sB}, {64*2304}
        s_mul_i32 s{sT0}, s{sSTAGE}, 1152
        s_add_u32 s{sOBASE}, s{sOBASE}, s{sT0}""")
        for k in range(2):
            a(f"""v_add_u32 v1, s{sN}, v0
            v_lshlrev_b32 v{vL+k}, 4, v1
            v_lshrrev_b32 v11, 6, v1
            v_mul_u32_u24 v12, 43, v11
            v_lshrrev_b32 v12, 8, v12
            v_mul_u32_u24 v13, 6, v12
            v_sub_u32 v13, v11, v13
            v_mul_u32_u24 v12, 96, v12
            v_lshrrev_b32 v11, 1, v13
            v_lshl_add_u32 v12, v11, 5, v12
            v_and_b32 v13, 1, v13
            v_lshlrev_b32 v13, 5, v13
            v_and_b32 v11, 15, v1
            v_add_u32 v13, v13, v11
            v_mul_u32_u24 v13, 2304, v13
            v_bfe_u32 v11, v1, 4, 2
            v_lshl_add_u32 v12, v11, 3, v12
            v_add_u32 v{vO0+k}, v12, v13
            s_add_u32 s{sN}, s{sN}, 2304""")
        for i in range(16):
            a(f"v_mov_b32 v{vSum+i}, 0")
        a(f"""s_mov_b32 exec_hi, 0xffff
        s_mov_b32 s{sN}, 0
        s_mov_b32 s{sOG}, 0
        L_red_look:
        ds_read_b32 v5, v9
        s_waitcnt lgkmcnt(0)
        v_readfirstlane_b32 s{sT2}, v5
        s_sub_u32 s{sSPIN}, s{sSPIN}, 1
        s_cselect_b32 s{sT2}, 0xff, s{sT2}
        s_andn2_b32 s{sT2}, s{sT2}, s{sN}
        s_cbranch_scc1 L_red_new
        s_getreg_b32 s{sT0}, hwreg(HW_REG_IB_STS)
        s_and_b32 s{sT0}, s{sT0}, 0xc000000f
        s_cselect_b32 s{sT0}, 0, s{sOG}
        s_cmp_lg_u32 s{sT0}, 0
        s_cbranch_scc1 L_red_add
        s_sleep 1
        s_branch L_red_look
        L_red_new:
        s_or_b32 s{sN}, s{sN}, s{sT2}
        s_or_b32 s{sOG}, s{sOG}, s{sT2}""")
        for h in range(8):
            a(f"""s_bitcmp1_b32 s{sT2}, {h}
            s_cbranch_scc0 L_red_h{h}
            s_add_u32 s{sT0}, s{sM}, {h*PART}
            buffer_load_dwordx4 {vr(vD+4*h,4)}, v{vL}, {sr(sWS)}, s{sT0} offen sc1
            buffer_load_dwordx4 {vr(vD+32+4*h,4)}, v{vL+1}, {sr(sWS)}, s{sT0} offen sc1
            L_red_h{h}:""")
        self.stamp(14)
        a(f"s_cmp_lg_u32 s{sN}, 0xff\ns_cbranch_scc1 L_red_look\nL_red_add:\ns_waitcnt vmcnt(0)")
        for h in range(8):
            a(f"s_bitcmp1_b32 s{sOG}, {h}\ns_cbranch_scc0 L_red_a{h}")
            for k in range(2):
                for i in range(4):
                    r, t = vD + 32*k + 4*h + i, 10 + 2*(i & 1)
                    a(f"""v_lshlrev_b32 v{t}, 16, v{r}
                    v_and_b32 v{t+1}, 0xffff0000, v{r}
                    v_pk_add_f32 {vr(vSum+8*k+2*i, 2)}, {vr(vSum+8*k+2*i, 2)}, {vr(t, 2)}""")
            a(f"L_red_a{h}:")
        a(f"""s_mov_b32 s{sOG}, 0
        s_cmp_lg_u32 s{sN}, 0xff
        s_cbranch_scc1 L_red_look
        s_add_u32 s{sT0}, s{sOBASE}, {16*2304}""")
        for k in range(2):
            for i in range(4):
                a(f"v_cvt_pk_bf16_f32 v{vSum+16+4*k+i}, v{vSum+8*k+2*i}, v{vSum+8*k+2*i+1}")
            a(f"""buffer_store_dwordx2 {vr(vSum+16+4*k,2)}, v{vO0+k}, {sr(sX)}, s{sOBASE} offen{of}
            buffer_store_dwordx2 {vr(vSum+18+4*k,2)}, v{vO0+k}, {sr(sX)}, s{sT0} offen{of}""")
        a("L_red_end:")
        if self.stamps:
            a("s_mov_b64 exec, -1\ns_waitcnt vmcnt(0)")
            self.stamp(12)
            self.stamp_dump(0)
            self.stamp_dump(1)
            if self.hold:
                a(f"""s_cmp_lg_u32 s2, {self.hwg}
                s_cbranch_scc1 L_end
                s_cmp_lg_u32 s{sWAVE}, 4
                s_cbranch_scc1 L_end
                v_readlane_b32 s{sT0}, v255, 0
                v_readlane_b32 s{sT1}, v255, {self.hi}
                v_readlane_b32 s{sT2}, v255, {self.hj}
                s_sub_u32 s{sT2}, s{sT2}, s{sT1}
                s_add_u32 s{sT2}, s{sT2}, {self.hold*100}
                s_mov_b32 s{sSPIN}, {SPIN}
                L_hold:
                s_memrealtime s[98:99]
                s_waitcnt lgkmcnt(0)
                s_sub_u32 s98, s98, s{sT0}
                s_cmp_ge_u32 s98, s{sT2}
                s_cbranch_scc1 L_end
                s_sub_u32 s{sSPIN}, s{sSPIN}, 1
                s_cbranch_scc0 L_hold""")
        a("s_endpgm")

    def at_rare(self):
        a = self.a
        t, u, al = vT, vP, vP + 2
        a(f"""L_rescale:
        v_mov_b32 v{u}, v{t}
        v_mov_b32 v{u+1}, v{t+1}
        s_nop 1
        v_permlane32_swap_b32 v{t}, v{u}
        v_permlane32_swap_b32 v{t+1}, v{u+1}
        v_max_f32 v{t}, v{t}, v{u}
        v_max_f32 v{t+1}, v{t+1}, v{u+1}
        v_mov_b32 v{u}, v{t}
        v_mov_b32 v{u+1}, v{t+1}
        s_nop 1
        v_permlane16_swap_b32 v{t}, v{u}
        v_permlane16_swap_b32 v{t+1}, v{u+1}
        v_max3_f32 v{t}, v{t}, v{u}, s{sFLOOR}
        v_max3_f32 v{t+1}, v{t+1}, v{u+1}, s{sFLOOR}
        v_max_f32 v{al}, 0, v{t}
        v_max_f32 v{al+2}, 0, v{t+1}
        v_exp_f32 v{al}, -v{al}
        v_exp_f32 v{al+2}, -v{al+2}
        s_mov_b32 s{sTH}, 0x41000000
        s_mov_b32 s{sFLOOR}, 0
        v_mul_f32 v{al}, s{sFIRST}, v{al}
        v_mul_f32 v{al+2}, s{sFIRST}, v{al+2}
        s_mov_b32 s{sFIRST}, 1.0""")
        for qt in range(2):
            for i in range(8):
                a(f"v_sub_f32 v{vS+8*qt+i}, v{vS+8*qt+i}, v{t+qt}")
            for i in range(4):
                a(f"v_sub_f32 v{vNM+4*qt+i}, v{vNM+4*qt+i}, v{t+qt}")
            a(f"v_pk_mul_f32 {vr(vL0+2*qt, 2)}, {vr(vL0+2*qt, 2)}, {vr(al+2*qt,2)} op_sel_hi:[1,0]")
            for p in range(4):
                for i in range(0, 8, 2):
                    c = vO + (p*2 + qt)*8 + i
                    a(f"v_pk_mul_f32 {vr(c,2)}, {vr(c,2)}, {vr(al+2*qt,2)} op_sel_hi:[1,0]")
        a("s_branch L_tile_exp")

    def main(self):
        a = self.a
        self.prologue()
        a(f"s_cmp_ge_u32 s{sWAVE}, 4\ns_cbranch_scc1 L_pj\ns_branch L_at")
        self.subs()
        self.at_first()
        self.pj_first()
        self.pj_setup()
        self.at_rest()
        self.reduce()
        self.at_rare()
        self.pj_rest()
        a("L_end:\ns_endpgm")
        return a.text()


HEADER = open("cdna_kernels/" + NAME + ".s.ref").read().split("; Override launch geometry")[0]


def build(**kw):
    return HEADER + single(Gen(**kw).main(), 256, 512, LDS_BYTES, vgpr=256, accum=256, sgpr=102)


if __name__ == "__main__":
    kw = {}
    for x in sys.argv[2:]:
        k, v = x.split("=")
        kw[k] = int(v, 0)
    open(sys.argv[1], "w").write(build(**kw))
```

```python
import sys, struct
sys.path.insert(0, "tools")
from asmlib import *

KERNEL = NAME + "_kernel"
R0, R1, R2, WR, XR = 0, 32768, 65536, 98304, 131072
SYNC = WR + 24576
LDS_BYTES = 163840
PART = 73728
FLAG_OFF = 32 << 20
PROBE_OFF = 241 << 20
QSCALE = 1.4426950408889634 / 128 ** 0.5
SPIN = 1 << 16


def fbits(x):
    return "0x%08x" % struct.unpack("<I", struct.pack("<f", x))[0]


sWAVE, sLW, sHG, sTY, sB = 3, 4, 5, 6, 7
sK, sV, sX, sWQ, sWO, sWS = 8, 12, 16, 20, 24, 28
sKVOFF, sKVM0, sKVN = 32, 33, 34
sWCOL, sWCH, sWN = 35, 36, 37
sXBASE, sXCH, sXN = 38, 39, 40
sOCI, sOBASE, sROT = 41, 42, 43
sN, sM = 44, 45
sT0, sT1, sT2 = 46, 47, 48
sBUFSZ, sRINGEND, sWBUF, sOLW, sOBUF, sTHR, sKVCNT = 49, 50, 51, 52, 53, 54, 55
sTH, sFLOOR, sRPOS, sSTAGE = 56, 57, 58, 59
sRB = 60
sRET = 64
sFIRST, sQBUF, sSLOT = 66, 67, 68
sC8K = 67
sWB = 69
sBV, sPT = 72, 76
sOUTP, sDBGP = 80, 82
sTN, sLAST, sPADDR, sTBASE = 84, 85, 86, 87
sFADDR, sSPIN, sPROG, sOG = 88, 89, 90, 91

vKVO, vVVO, vXVO, vOVO, vWVO = 8, 12, 14, 16, 22
vWA, vWA0, vQW = 24, 28, 29
vOA0, vOA, vST = 24, 27, 30
vXA0, vXA, vZ = 31, 33, 35
vFA, vFB, vACC = 36, 72, 104
vPR, vDUM = 4, 5
vKA, vVA, vH, vT, vL0 = 24, 28, 38, 40, 76
vP, vS, vNM, vQ, vKF, vVF, vO = 44, 52, 68, 84, 116, 148, 180


def vr(i, n):
    return f"v[{i}:{i+n-1}]"


def sr(i, n=4):
    return f"s[{i}:{i+n-1}]"


class Lg:
    def __init__(self, a):
        self.a, self.q = a, []
    def issue(self, text, tag):
        if len(self.q) == 15:
            self.wait(self.q[0])
        self.a(text)
        self.q.append(tag)
    def wait(self, *tags):
        idx = max((i for i, t in enumerate(self.q) if t in tags), default=-1)
        if idx < 0:
            return
        self.a(f"s_waitcnt lgkmcnt({len(self.q) - idx - 1})")
        self.q = self.q[idx + 1:]
    def drain(self):
        self.a("s_waitcnt lgkmcnt(0)")
        self.q = []


DEFAULTS = dict(stamps=0, probes=0, vmprobe=2, thr=4, prefill=8, store0=4, store1=8, ipf=1, touch=5, xtouch=1,
                prio=7, gate=0, thrmask=0xffffffff, help=0, lead0=3, lead1=6, kvnt=1, pace=99, dbgst=0, ahead=-1, from_=0, bthr=63, polls=1, nap=2, sdw=1, alate=0, wqat=4, diag=0, hrot=0, early_n=0, ahead0=0, hold=0, hi=0, hj=0, hwg=8, xplan=3, xfrom=1, aidle=0, adist=4, outf=0, stp=3, gmajor=0, stp0=12, pkl=1, flagop=0, partop=0, defer=0)


class Gen:
    def __init__(self, **kw):
        self.a = Asm()
        self.o = dict(DEFAULTS)
        assert set(kw) <= set(DEFAULTS), kw
        self.o.update(kw)
        for k, v in self.o.items():
            setattr(self, k, v)
        self.kvflag = " nt" if self.kvnt else ""
        self.follow = (self.help and self.ahead < 0) or self.pace < 99
        self.NA = 4 + bool(self.help) + bool(self.follow)
        self.uid = 0
        assert self.pkl or not self.defer
        assert not (self.help and self.ahead < 0 and self.touch)

    def lab(self, s):
        self.uid += 1
        return f"L_{s}{self.uid}"

    def stamp(self, k):
        if self.stamps:
            self.a(f"s_memrealtime s[98:99]\ns_memtime s[100:101]\ns_waitcnt lgkmcnt(0)\nv_writelane_b32 v255, s98, {k}\nv_writelane_b32 v255, s100, {16+k}")

    def stamp_dump(self, role):
        if self.stamps:
            l = self.lab("sd")
            self.a(f"""s_cmp_lg_u32 s{sWAVE}, {4*role + self.sdw}
            s_cbranch_scc1 {l}
            s_lshl_b32 s{sT0}, s2, 8
            s_add_u32 s{sT0}, s{sT0}, {STAMP_OFF + 128*role}
            v_lshlrev_b32 v1, 2, v0
            s_mov_b64 exec, 0xffffffff
            buffer_store_dword v255, v1, {sr(sWS)}, s{sT0} offen
            s_mov_b64 exec, -1""")
            if self.dbgst:
                srd(self.a, sPT, sDBGP, 256)
                self.a(f"""s_cmp_lg_u32 s{sTY}, {self.dbgst - 1}
                s_cbranch_scc1 {l}
                v_not_b32 v11, v255
                v_cmp_eq_u32 vcc, 0, v0
                s_nop 1
                v_cndmask_b32 v11, v255, v11, vcc
                s_mov_b64 exec, {0x3ff if role else 0x1c00}
                buffer_atomic_umax v11, v1, {sr(sPT)}, 0 offen sc1
                s_mov_b64 exec, -1""")
            self.a(f"{l}:")

    def probe(self, k, first=False):
        if self.probes:
            if first:
                self.a(f"s_add_u32 s{sSLOT}, s{sSLOT}, 1")
            self.a(f"s_memtime s[98:99]\ns_getreg_b32 s100, hwreg(HW_REG_IB_STS)\ns_waitcnt lgkmcnt(0)\ns_mov_b32 m0, s{sSLOT}\nv_writelane_b32 v{248+k}, s98, m0")
            if k == self.vmprobe:
                self.a("v_writelane_b32 v251, s100, m0")

    def early(self, lane):
        if self.probes:
            self.a(f"s_memtime s[98:99]\ns_waitcnt lgkmcnt(0)\nv_writelane_b32 v255, s98, {lane}")

    def probe_dump(self):
        if self.probes:
            l = self.lab("pd")
            self.a(f"""s_cmp_lg_u32 s{sLW}, 0
            s_cbranch_scc1 {l}
            s_lshl_b32 s{sT0}, s2, 1
            s_lshr_b32 s{sT1}, s{sWAVE}, 2
            s_add_u32 s{sT0}, s{sT0}, s{sT1}
            s_lshl_b32 s{sT0}, s{sT0}, 11
            s_add_u32 s{sT0}, s{sT0}, {PROBE_OFF}
            v_lshlrev_b32 v1, 2, v0""")
            for k in range(8):
                self.a(f"buffer_store_dword v{248+k}, v1, {sr(sWS)}, s{sT0} offen offset:{256*k}")
            self.a(f"{l}:")

    def prio_set(self, bit, off=None):
        if self.prio >> bit & 1:
            self.a("s_setprio 1")
        elif off is not None and self.prio >> off & 1:
            self.a("s_setprio 0")

    def call(self, name):
        self.a(f"s_call_b64 {sr(sRET, 2)}, {name}")

    def ret(self):
        self.a(f"s_setpc_b64 {sr(sRET, 2)}")

    def spread(self, base, fill, start=0):
        n, m = len(base) - start, len(fill)
        j = 0
        for k, t in enumerate(base):
            while k >= start and j < m and j * n <= (k - start) * m:
                self.a(fill[j]); j += 1
            if callable(t): t()
            else: self.a(t)
        for t in fill[j:]:
            self.a(t)

    def other_srd(self, dst, karg_off, size):
        self.a(f"""s_load_dwordx2 {sr(dst, 2)}, s[0:1], {karg_off}
        s_waitcnt lgkmcnt(0)
        s_and_b32 s{dst+1}, s{dst+1}, 0xffff
        s_mov_b32 s{dst+2}, {size}
        s_mov_b32 s{dst+3}, 0x20000""")

    def spin(self, load, vdst, done):
        l, e = self.lab("sp"), self.lab("se")
        self.a(f"""s_mov_b32 s{sSPIN}, {SPIN}
        {l}:
        {load}
        s_waitcnt vmcnt(0) lgkmcnt(0)
        {done}
        s_cbranch_scc1 {e}
        s_sleep 1
        s_sub_u32 s{sSPIN}, s{sSPIN}, 1
        s_cmp_lg_u32 s{sSPIN}, 0
        s_cbranch_scc1 {l}
        {e}:""")

    def wait_init(self, vz, vd):
        srd(self.a, sPT, sDBGP, 256)
        self.a(f"s_lshl_b32 s{sT2}, s{sB}, 2")
        self.spin(f"buffer_load_dword v{vd}, v{vz}, {sr(sPT)}, s{sT2} offen offset:{128*bool(self.dbgst)} sc1", vd,
                  f"v_readfirstlane_b32 s{sT1}, v{vd}\ns_cmp_ge_u32 s{sT1}, 16")

    def prologue(self):
        a = self.a
        a("s_cmp_ge_u32 s2, 256\ns_cbranch_scc1 L_end")
        if self.probes or self.stamps:
            a("s_memtime s[96:97]" if self.probes else "s_memrealtime s[96:97]")
        a(f"""s_load_dwordx2 s[68:69], s[0:1], 96
        s_load_dwordx4 {sr(sOUTP)}, s[0:1], 80
        s_and_b32 s{sHG}, s2, 7
        s_lshr_b32 s{sTY}, s2, 3
        s_and_b32 s{sTY}, s{sTY}, 1
        s_lshr_b32 s{sB}, s2, 4
        s_mul_i32 s{sT0}, s{sTY}, 40
        s_add_u32 s0, s0, s{sT0}
        s_addc_u32 s1, s1, 0
        s_load_dwordx8 s[56:63], s[0:1], 0
        s_load_dwordx2 s[70:71], s[0:1], 32""")
        if self.ipf:
            a(f"""s_getpc_b64 {sr(sT0, 2)}
            L_pc:
            s_sub_u32 s{sT0}, s{sT0}, L_pc-{KERNEL}
            s_subb_u32 s{sT0+1}, s{sT0+1}, 0
            s_and_b32 s{sT2}, s2, 0xf8
            v_lshrrev_b32 v1, 6, v0
            v_add_lshl_u32 v6, v1, s{sT2}, 7
            v_min_u32 v6, L_end-{KERNEL}, v6
            v_mov_b32 v7, s{sT0+1}
            v_add_co_u32 v6, vcc, s{sT0}, v6
            s_nop 1
            v_addc_co_u32 v7, vcc, 0, v7, vcc
            global_load_dword v{vFA+32}, v[6:7], off""")
        a(f"""v_lshrrev_b32 v1, 6, v0
        v_and_b32 v0, 63, v0
        v_readfirstlane_b32 s{sWAVE}, v1
        v_lshrrev_b32 v2, 4, v0
        v_and_b32 v3, 15, v0
        s_and_b32 s{sLW}, s{sWAVE}, 3
        v_lshrrev_b32 v4, 3, v0
        v_and_b32 v5, 7, v0
        v_mul_u32_u24 v7, 1152, v4""")
        for n in range(2):
            a(f"""v_add_u32 v6, {4*n}, v2
            v_xor_b32 v6, v6, v5
            v_lshl_add_u32 v6, v6, 4, v7
            v_add_u32 v{vXVO+n}, {n*(8*1152-1024)}, v6""")
        a(f"""v_and_b32 v1, 1, v2
        v_lshlrev_b32 v1, 1, v1
        v_xor_b32 v1, v1, v5
        v_lshlrev_b32 v1, 4, v1
        v_lshl_add_u32 v{vWVO}, v4, 13, v1
        v_xor_b32 v{vWVO+1}, 64, v{vWVO}
        s_lshl_b32 s{sWCOL}, s{sHG}, 10
        s_lshl_b32 s{sT0}, s{sLW}, 7
        s_add_u32 s{sWCOL}, s{sWCOL}, s{sT0}
        s_mov_b32 s{sWN}, 0
        s_mul_i32 s{sT0}, s{sHG}, {self.hrot}
        s_add_u32 s{sT0}, s{sT0}, s{sB}
        s_mul_i32 s{sT1}, s{sT0}, 57
        s_lshr_b32 s{sT1}, s{sT1}, 9
        s_mul_i32 s{sT1}, s{sT1}, 9
        s_sub_u32 s{sXCH}, s{sT0}, s{sT1}
        s_mov_b32 s{sWCH}, s{sXCH}
        s_mul_i32 s{sXBASE}, s{sB}, 73728
        s_mul_i32 s{sT0}, s{sLW}, 18432
        s_add_u32 s{sXBASE}, s{sXBASE}, s{sT0}
        s_lshl_b32 s{sT0}, s{sB}, 3
        s_add_u32 s{sT0}, s{sT0}, s{sHG}
        s_lshl_b32 s{sPADDR}, s{sT0}, 7
        s_add_u32 s{sPADDR}, s{sPADDR}, {FLAG_OFF + 4096}
        s_lshl_b32 s{sFADDR}, s{sB}, 7
        s_add_u32 s{sFADDR}, s{sFADDR}, {FLAG_OFF}
        s_waitcnt lgkmcnt(0)""")
        srd(a, sX, 56, SIZE['A_x'])
        srd(a, sWQ, 62, SIZE['A_wq'])
        if self.probes or self.stamps:
            self.late_srds()
        if self.probes or self.stamps:
            a(f"s_mov_b32 s{sSLOT}, -1")
            for k in range(8):
                a(f"v_mov_b32 v{248+k}, 0")
            a("v_writelane_b32 v255, s96, 0")
            self.early(1)

    def late_srds(self):
        a = self.a
        a(f"""s_mov_b32 s{sK}, s58
        s_and_b32 s{sK+1}, s59, 0xffff
        s_lshl_b32 s{sK+2}, {SIZE['A_k']}, s{sTY}
        s_mov_b32 s{sK+3}, 0x20000
        s_mov_b32 s{sV}, s60
        s_and_b32 s{sV+1}, s61, 0xffff
        s_mov_b32 s{sV+2}, s{sK+2}
        s_mov_b32 s{sV+3}, 0x20000""")
        srd(a, sWO, 70, SIZE['A_wo'])
        srd(a, sWS, 68, SIZE['ws'])
        srd(a, sBV, 60, 0)

    def late_common(self):
        a = self.a
        a(f"""s_lshl_b32 s{sBUFSZ}, 16384, s{sTY}
        s_lshl_b32 s{sT0}, 2048, s{sTY}
        s_mul_i32 s{sKVM0}, s{sT0}, s{sLW}
        s_add_u32 s{sRINGEND}, s{sKVM0}, 98304
        s_lshl_b32 s{sT0}, s{sB}, 3
        s_add_u32 s{sT0}, s{sT0}, s{sHG}
        s_lshl_b32 s{sTBASE}, s{sT0}, 19
        s_add_u32 s{sT1}, s{sTY}, 18
        s_lshl_b32 s{sKVOFF}, s{sT0}, s{sT1}
        s_lshr_b32 s{sT0}, s{sLW}, 1
        s_lshl_b32 s{sT0}, s{sT0}, 17
        s_and_b32 s{sT1}, s{sLW}, 1
        s_lshl_b32 s{sT2}, s{sT1}, 12
        s_add_u32 s{sT0}, s{sT0}, s{sT2}
        s_add_u32 s{sTBASE}, s{sTBASE}, s{sT0}
        s_cmp_eq_u32 s{sTY}, 1
        s_cselect_b32 s{sT0}, s{sT0}, s{sKVM0}
        s_add_u32 s{sKVOFF}, s{sKVOFF}, s{sT0}
        s_lshl_b32 s{sT1}, s{sT1}, 3
        s_cmp_eq_u32 s{sTY}, 1
        s_cselect_b32 s{sT1}, 0, s{sT1}
        s_mov_b32 s{sKVN}, 0
        v_lshlrev_b32 v6, 8, v2
        v_add_u32 v7, s{sT1}, v2""")
        for n in range(4):
            a(f"""v_add_u32 v1, {4*n}, v7
            v_xor_b32 v1, v1, v3
            v_and_b32 v1, 15, v1
            v_lshl_add_u32 v{vKVO+n}, v1, 4, v6""")
        a(f"""v_lshlrev_b32 v1, 1, v2
        v_xor_b32 v1, v1, v3
        v_lshl_add_u32 v{vVVO}, v1, 4, v6
        v_xor_b32 v{vVVO+1}, 128, v{vVVO}""")

    def late_wo(self):
        a = self.a
        for n in range(6):
            a(f"""v_add_u32 v1, {64*n}, v0
            v_mul_u32_u24 v6, 2731, v1
            v_lshrrev_b32 v6, 16, v6
            v_mul_u32_u24 v7, 24, v6
            v_sub_u32 v1, v1, v7
            v_and_b32 v7, 6, v6
            v_xor_b32 v1, v1, v7
            v_lshlrev_b32 v1, 4, v1
            v_mul_u32_u24 v6, 1152, v6
            v_add_u32 v1, v1, v6
            v_subrev_u32 v{vOVO+n}, {1024*(n&3)}, v1""")
        a(f"""s_lshl_b32 s{sT0}, s{sHG}, 9
        s_lshl_b32 s{sT1}, s{sLW}, 4
        s_add_u32 s{sT0}, s{sT0}, s{sT1}
        s_mul_i32 s{sOBASE}, s{sT0}, 1152
        s_and_b32 s{sROT}, s{sB}, 3
        s_mul_i32 s{sOLW}, s{sLW}, 6144
        s_cmp_eq_u32 s{sTY}, 1
        s_mov_b32 s{sRB}, {WR}
        s_mov_b32 s{sRB+1}, {R2}
        s_cselect_b32 s{sRB+2}, {R0}, {R1}
        s_cselect_b32 s{sRB+3}, {R1}, {R0}""")

    def x_adv(self):
        self.a(f"""s_add_u32 s{sXN}, s{sXN}, 1
        s_add_u32 s{sXCH}, s{sXCH}, 1
        s_cmp_eq_u32 s{sXCH}, 9
        s_cselect_b32 s{sXCH}, 0, s{sXCH}""")

    def kv_items_b(self):
        f = self.kvflag
        items = []
        for n in range(8):
            t = ""
            if n == 0:
                t += f"s_mov_b32 m0, s{sKVM0}\ns_cmp_eq_u32 s{sKVN}, 15\n"
            if n == 4:
                t += f"s_add_u32 m0, s{sKVM0}, 16384\ns_add_u32 s{sKVM0}, s{sKVM0}, 32768\n"
            if self.bthr < 63:
                t += f"s_waitcnt vmcnt({self.bthr - 1})\n"
            if n < 4:
                t += f"buffer_load_dwordx4 v{vKVO+n}, {sr(sK)}, s{sKVOFF} offen offset:{1024*n}{f} lds\n"
            else:
                t += f"buffer_load_dwordx4 v{vVVO+(n&1)}, {sr(sV)}, s{sKVOFF} offen offset:{1024*(n-4)}{f} lds\n"
            if n == 0:
                t += f"s_cselect_b32 s{sKVCNT}, 131072, 0\ns_add_u32 s{sKVCNT}, s{sKVCNT}, 8192\ns_add_u32 s{sKVN}, s{sKVN}, 1\n"
            if n == 7:
                t += f"""s_add_u32 s{sKVOFF}, s{sKVOFF}, s{sKVCNT}
                s_cmp_ge_u32 s{sKVM0}, s{sRINGEND}
                s_cselect_b32 s{sKVCNT}, 98304, 0
                s_sub_u32 s{sKVM0}, s{sKVM0}, s{sKVCNT}"""
            items.append(t)
        return items

    def wo_addr(self, buf):
        return f"""s_add_u32 s{sT0}, s{sOCI}, s{sROT}
                s_and_b32 s{sT0}, s{sT0}, 3
                s_lshr_b32 s{sT1}, s{sOCI}, 2
                s_lshl_b32 s{sT1}, s{sT1}, 2
                s_add_u32 s{sT0}, s{sT0}, s{sT1}
                s_mul_i32 s{sT0}, s{sT0}, 73728
                s_add_u32 s{sT0}, s{sT0}, s{sOG}
                s_add_u32 s{sT1}, s{buf}, s{sOLW}
                s_mov_b32 m0, s{sT1}
                s_add_u32 s{sT0}, s{sT0}, s{sOBASE}"""

    def wo_adv(self):
        if self.gmajor:
            l, e = self.lab("wa"), self.lab("we")
            return f"""s_cmp_ge_u32 s{sOCI}, 4
                s_cbranch_scc1 {l}
                s_add_u32 s{sOG}, s{sOG}, 384
                s_cmp_eq_u32 s{sOG}, 1152
                s_cselect_b32 s{sOG}, 0, s{sOG}
                s_addc_u32 s{sOCI}, s{sOCI}, 0
                s_branch {e}
                {l}:
                s_add_u32 s{sOCI}, s{sOCI}, 1
                s_cmp_eq_u32 s{sOCI}, 8
                s_cselect_b32 s{sOCI}, 4, s{sOCI}
                s_cselect_b32 s{sT0}, 384, 0
                s_add_u32 s{sOG}, s{sOG}, s{sT0}
                {e}:"""
        return f"""s_add_u32 s{sOG}, s{sOG}, 384
                s_cmp_eq_u32 s{sOG}, 1152
                s_cselect_b32 s{sOG}, 0, s{sOG}
                s_addc_u32 s{sOCI}, s{sOCI}, 0"""

    def wo_items(self):
        items = []
        for n in range(6):
            t = self.wo_addr(sOBUF) + "\n" if n == 0 else ""
            if n == 4:
                t += f"s_add_u32 m0, s{sT1}, 4096\ns_nop 0\n"
            t += f"buffer_load_dwordx4 v{vOVO+n}, {sr(sWO)}, s{sT0} offen offset:{1024*(n&3)} lds\n"
            if n == 5:
                t += self.wo_adv()
            items.append(t)
        return items

    def w_items(self, back=False):
        items = []
        for n in range(8):
            if n == 0:
                t = f"s_lshl_b32 s{sT0}, s{sWCH}, 19\ns_add_u32 s{sT0}, s{sT0}, s{sWCOL}\ns_mov_b32 m0, s{sWBUF}\n"
                t += f"s_sub_u32 s{sWCH}, s{sWCH}, 1\ns_cselect_b32 s{sWCH}, 8, s{sWCH}\n" if back else f"s_add_u32 s{sWCH}, s{sWCH}, 1\n"
            elif n == 4:
                t = f"s_add_u32 m0, s{sWBUF}, 4096\ns_add_u32 s{sT0}, s{sT0}, {65536+3072}\n"
            else:
                t = f"s_add_u32 s{sT0}, s{sT0}, {65536-1024}\n"
            t += f"buffer_load_dwordx4 v{vWVO+(n&1)}, {sr(sWQ)}, s{sT0} offen offset:{1024*(n&3)} lds\n"
            if n == 7 and not back:
                t += f"""s_cmp_eq_u32 s{sWCH}, 9
                s_cselect_b32 s{sWCH}, 0, s{sWCH}
                s_add_u32 s{sWN}, s{sWN}, 1
                s_cmp_eq_u32 s{sWN}, 9
                s_cselect_b32 s{sT1}, 512, 0
                s_add_u32 s{sWCOL}, s{sWCOL}, s{sT1}"""
            items.append(t)
        return items

    def subs(self):
        a = self.a
        f = self.kvflag
        a(f"""F_x:
        s_lshl_b32 s{sT0}, s{sXCH}, 7
        s_add_u32 s{sT0}, s{sT0}, s{sXBASE}
        s_and_b32 s{sT1}, s{sXN}, 3
        s_lshl_b32 s{sT1}, s{sT1}, 2
        s_add_u32 s{sT1}, s{sT1}, s{sLW}
        s_lshl_b32 s{sT1}, s{sT1}, 11
        s_add_u32 m0, s{sT1}, {XR}""")
        self.x_adv()
        for n in range(2):
            a(f"buffer_load_dwordx4 v{vXVO+n}, {sr(sX)}, s{sT0} offen offset:{1024*n} lds")
        self.ret()
        a("F_w:")
        for t in self.w_items():
            a(t)
        self.ret()
        a(f"""F_kv:
        s_cmp_eq_u32 s{sTY}, 0
        s_cbranch_scc1 F_kv_a""")
        for t in self.kv_items_b():
            a(t)
        a(f"s_mov_b32 s{sKVCNT}, 8")
        self.ret()
        a(f"""F_kv_a:
        s_mov_b32 s{sKVCNT}, 0
        s_cmp_ge_u32 s{sKVN}, 32
        s_cbranch_scc1 F_kv_ret""")
        if self.follow:
            a(f"""s_cmp_eq_u32 s{sTHR}, 0
            s_cbranch_scc1 F_kv_go
            s_waitcnt vmcnt(0)
            v_readfirstlane_b32 s{sPROG}, v{vPR}""")
            if self.pace < 99:
                check = f"s_add_u32 s{sT1}, s{sPROG}, {self.pace}\ns_cmp_ge_u32 s{sT1}, s{sKVN}"
                a(check + "\ns_cbranch_scc1 F_kv_go")
                self.spin(f"buffer_load_dword v{vPR}, v{vZ}, {sr(sWS)}, s{sPADDR} offen sc1", vPR,
                          f"v_readfirstlane_b32 s{sPROG}, v{vPR}\n" + check)
            a("F_kv_go:")
        a(f"""s_mov_b32 m0, s{sKVM0}
        s_mov_b32 s{sKVCNT}, 4""")
        if self.thr < 63:
            a(f"s_lshr_b32 s{sT1}, {self.thrmask}, s{sKVN}\ns_and_b32 s{sT1}, s{sT1}, s{sTHR}")
        for n in range(4):
            if self.thr < 63:
                l = self.lab("thr")
                a(f"s_cmp_eq_u32 s{sT1}, 0\ns_cbranch_scc1 {l}\ns_waitcnt vmcnt({self.thr-1})\n{l}:")
            if n == 2:
                a(f"s_add_u32 m0, s{sKVM0}, 8192\ns_add_u32 s{sKVN}, s{sKVN}, 1")
            if n < 2:
                a(f"buffer_load_dwordx4 v{vKVO+n}, {sr(sK)}, s{sKVOFF} offen offset:{1024*n}{f} lds")
            else:
                a(f"buffer_load_dwordx4 v{vVVO+(n&1)}, {sr(sV)}, s{sKVOFF} offen offset:{1024*(n-2)}{f} lds")
        a(f"""s_add_u32 s{sKVOFF}, s{sKVOFF}, 8192
        s_add_u32 s{sKVM0}, s{sKVM0}, 16384
        s_cmp_ge_u32 s{sKVM0}, s{sRINGEND}
        s_cselect_b32 s{sT0}, 98304, 0
        s_sub_u32 s{sKVM0}, s{sKVM0}, s{sT0}""")
        if self.follow or self.help:
            a(f"s_cmp_eq_u32 s{sTHR}, 0\ns_cbranch_scc1 F_kv_ret")
        if self.help:
            if self.ahead < 0:
                a(f"""s_add_u32 s{sT1}, s{sPROG}, {self.lead0}
                s_max_u32 s{sTN}, s{sTN}, s{sT1}
                s_add_u32 s{sT1}, s{sPROG}, {self.lead1}
                s_min_u32 s{sT1}, s{sT1}, 31
                s_cmp_le_u32 s{sTN}, s{sT1}
                s_cselect_b32 s{sLAST}, s{sTN}, s{sLAST}
                s_addc_u32 s{sTN}, s{sTN}, 0""")
            else:
                a(f"""s_cmp_lt_u32 s{sKVN}, {self.early_n}
                s_cselect_b32 s{sLAST}, {self.ahead0}, {self.ahead}
                s_add_u32 s{sLAST}, s{sKVN}, s{sLAST}
                s_min_u32 s{sLAST}, s{sLAST}, 31
                s_max_u32 s{sLAST}, s{sLAST}, {self.from_}""")
            a(f"""s_and_b32 s{sT0}, s{sLAST}, 15
            s_lshl_b32 s{sT0}, s{sT0}, 13
            s_lshr_b32 s{sT1}, s{sLAST}, 4
            s_lshl_b32 s{sT1}, s{sT1}, 18
            s_add_u32 s{sT0}, s{sT0}, s{sT1}
            s_add_u32 s{sT0}, s{sT0}, s{sTBASE}
            v_lshlrev_b32 v1, 7, v0
            s_mov_b64 exec, {(1 << self.help) - 1}
            buffer_load_dword v{vDUM}, v1, {sr(sBV)}, s{sT0} offen offset:{4096 - 128*self.help}
            s_mov_b64 exec, -1""")
        if self.follow:
            a(f"buffer_load_dword v{vPR}, v{vZ}, {sr(sWS)}, s{sPADDR} offen sc1")
        a("F_kv_ret:")
        self.ret()
        a("F_wo:")
        for t in self.wo_items():
            a(t)
        self.ret()

    def kvwait(self):
        l = self.lab("kw")
        self.a(f"""s_waitcnt vmcnt(8)
        s_cmp_eq_u32 s{sKVCNT}, 8
        s_cbranch_scc1 {l}
        s_waitcnt vmcnt({self.NA})
        s_cmp_eq_u32 s{sKVCNT}, 4
        s_cbranch_scc1 {l}
        s_waitcnt vmcnt(0)
        {l}:""")

    def pretouch_wq(self, dst):
        if not self.touch:
            return
        a = self.a
        l = self.lab("pt")
        a(f"s_cmp_eq_u32 s{sTY}, 1\ns_cbranch_scc1 {l}")
        self.other_srd(sPT, 64, SIZE['B_wq'])
        a(f"""s_lshl_b32 s{sT0}, s{sB}, 2
        s_add_u32 s{sT0}, s{sT0}, s{sLW}
        s_mul_i32 s{sT0}, s{sT0}, {9*8192}
        s_lshl_b32 s{sT1}, s{sHG}, 10
        s_add_u32 s{sT0}, s{sT0}, s{sT1}
        v_lshrrev_b32 v1, 2, v0
        v_and_b32 v6, 3, v0
        v_lshlrev_b32 v6, 7, v6
        v_lshl_add_u32 v1, v1, 13, v6
        s_mov_b32 exec_hi, 15
        buffer_load_dword v{dst}, v1, {sr(sPT)}, s{sT0} offen offset:512""")
        if self.touch & 2:
            a(f"buffer_load_dword v{dst+1}, v1, {sr(sWQ)}, s{sT0} offen offset:512")
        a(f"s_mov_b64 exec, -1\n{l}:")

    def pretouch_wo(self, first):
        if not self.touch:
            return
        a = self.a
        l = self.lab("pt")
        a(f"s_cmp_eq_u32 s{sTY}, 1\ns_cbranch_scc1 {l}")
        if first:
            self.other_srd(sPT, 72, SIZE['B_wo'])
            a(f"""s_lshl_b32 s{sT0}, s{sB}, 2
            s_add_u32 s{sT0}, s{sT0}, s{sLW}
            s_mul_i32 s{sT0}, s{sT0}, 9216
            s_mul_i32 s{sTN}, s{sHG}, 589824
            s_add_u32 s{sTN}, s{sTN}, s{sT0}""")
        else:
            a(f"v_lshlrev_b32 v1, 7, v0\ns_mov_b64 exec, 0xfff\nbuffer_load_dword v{vFA+32}, v1, {sr(sPT)}, s{sTN} offen")
            if self.touch & 2:
                a(f"buffer_load_dword v{vFA+33}, v1, {sr(sWO)}, s{sTN} offen")
            a(f"s_mov_b64 exec, -1\ns_add_u32 s{sTN}, s{sTN}, 1536")
        a(f"{l}:")

    def rdA(self, reg, areg, mt, off0, off1, tag):
        return [(f"ds_read_b64_tr_b16 {vr(reg + 2*j, 2)}, v{areg+mt} offset:{o}", tag + (j,)) for j, o in enumerate((off0, off1))]

    def rdB(self, ks, qt):
        return (f"ds_read_b128 {vr(vFB + (ks*4+qt)*4, 4)}, v{vXA+ks} offset:{2048*qt}", ("B", ks, qt))

    def mfma(self, acc, mt, qt, areg, ks):
        c = vr(acc + (mt*4+qt)*4, 4)
        return f"v_mfma_f32_16x16x32_bf16 {c}, {vr(areg, 4)}, {vr(vFB + (ks*4+qt)*4, 4)}, {c}"

    def qA(self, ks, mt):
        return vFA + (ks*4 + mt)*4

    def q_rdA(self, ks, mt):
        return self.rdA(self.qA(ks, mt), vWA, mt, 32*ks*128, (32*ks+4)*128, ("A", ks, mt))

    def q_finalize(self, acc, pending):
        a = self.a
        a(f"s_mov_b32 s{sT2}, {fbits(QSCALE)}")
        mul, cvt, put = [], [], []
        for mt in range(4):
            for qt in range(4):
                c = acc + (mt*4+qt)*4
                mul.append("\n".join(f"v_mul_f32 v{c+r}, s{sT2}, v{c+r}" for r in range(4)))
                cvt.append(f"v_cvt_pk_bf16_f32 v{c}, v{c}, v{c+1}\nv_cvt_pk_bf16_f32 v{c+1}, v{c+2}, v{c+3}")
                put.append((f"v_xor_b32 v1, {32*mt}, v{vQW}\n" if qt == 0 else "") + f"ds_write_b64 v1, {vr(c,2)} offset:{2048*qt}")
        work = ["\n".join(([put[k-2]] if 2 <= k < 18 else []) + ([cvt[k-1]] if 1 <= k < 17 else []) + ([mul[k]] if k < 16 else [])) for k in range(18)]
        lead = len(pending) - 16 + 5
        for k, t in enumerate(pending):
            a(t)
            if k + 1 == lead:
                a("s_nop 3")
            if k + 1 >= lead:
                a(work.pop(0))
        for t in work:
            a(t)
        a("s_waitcnt lgkmcnt(0)")

    ORDER4 = [(mt, qt) for mt in range(4) for qt in range(4)]
    ORDER3 = [(mt, qt) for mt in range(3) for qt in range(4)]
    NEXTX = [f"s_add_u32 s{sN}, s{sN}, 1\ns_and_b32 s{sT0}, s{sN}, 3\ns_lshl_b32 s{sT0}, s{sT0}, 13",
             f"v_add_u32 v{vXA}, s{sT0}, v{vXA0}", f"v_add_u32 v{vXA+1}, s{sT0}, v{vXA0+1}"]

    def pj_first(self):
        a = self.a
        ACC0 = vACC
        a("L_pj:")
        if not (self.probes or self.stamps):
            self.late_srds()
        a(f"""v_mov_b32 v{vZ}, 0
        s_cmp_lg_u32 s{sLW}, 0
        s_cbranch_scc1 L_pj_a
        s_lshl_b32 s{sT0}, s{sTY}, 11
        s_lshl_b32 s{sT1}, s{sHG}, 2
        s_add_u32 s{sT0}, s{sT0}, s{sT1}
        s_add_u32 s{sT0}, s{sT0}, s{sFADDR}
        s_cmp_eq_u32 s{sTY}, 1
        s_cselect_b32 s{sT1}, s{sPADDR}, s{sT0}
        s_mov_b64 exec, 1
        buffer_store_dword v{vZ}, v{vZ}, {sr(sWS)}, s{sT0} offen sc1
        buffer_store_dword v{vZ}, v{vZ}, {sr(sWS)}, s{sT1} offen sc1
        s_mov_b64 exec, -1
        L_pj_a:""")
        self.early(6)
        for i in list(range(vKVO, vXVO)) + list(range(vOVO, vWVO)):
            a(f"v_mov_b32 v{i}, 0")
        a(f"""s_lshl_b32 s{sT2}, s{sLW}, 13
        s_mov_b32 s{sWB}, {R1}
        s_mov_b32 s{sWB+1}, {R2}
        s_mov_b32 s{sWB+2}, {WR}
        v_lshrrev_b32 v1, 2, v3
        v_lshl_add_u32 v6, v2, 3, v1
        v_lshrrev_b32 v1, 1, v1
        v_and_b32 v7, 1, v2
        v_lshl_or_b32 v1, v7, 1, v1
        v_and_b32 v7, 3, v0
        v_lshlrev_b32 v7, 3, v7
        v_lshl_add_u32 v6, v6, 7, v7
        v_lshl_add_u32 v6, v1, 5, v6
        v_add_u32 v{vWA0}, s{sT2}, v6
        v_add_u32 v{vWA}, {WR}, v{vWA0}""")
        for mt in range(1, 4):
            a(f"v_xor_b32 v{vWA+mt}, {32*mt}, v{vWA}")
        a(f"""v_lshrrev_b32 v1, 1, v3
        v_xor_b32 v6, v1, v2
        v_lshlrev_b32 v6, 4, v6
        v_lshl_add_u32 v6, v3, 7, v6
        v_add_u32 v{vXA0}, {XR}, v6
        v_xor_b32 v{vXA0+1}, 64, v{vXA0}
        v_mov_b32 v{vXA}, v{vXA0}
        v_mov_b32 v{vXA+1}, v{vXA0+1}
        v_lshrrev_b32 v6, 1, v2
        v_xor_b32 v6, v6, v1
        v_lshlrev_b32 v6, 4, v6
        v_lshl_add_u32 v6, v3, 7, v6
        v_and_b32 v7, 1, v2
        v_lshl_add_u32 v6, v7, 3, v6
        v_add_u32 v6, s{sT2}, v6
        v_add_u32 v{vQW}, {R2}, v6""")
        for i in range(64):
            a(f"v_mov_b32 v{ACC0+i}, 0")
        for i in range(16):
            a(f"v_mov_b32 v{vFA+16+i}, 0\nv_mov_b32 v{vFB+16+i}, 0")
        self.early(4)
        srd(a, sPT, sDBGP, 256)
        a(f"""v_mov_b32 v1, 1
        s_lshl_b32 s{sT0}, s{sB}, 2
        s_mov_b32 s{sN}, 0
        s_waitcnt vmcnt(0)
        s_cmp_lg_u32 s{sLW}, 0
        s_cbranch_scc1 L_q0
        s_mov_b64 exec, 1
        buffer_atomic_add v1, v{vZ}, {sr(sPT)}, s{sT0} offen offset:{128*bool(self.dbgst)} sc1
        s_mov_b64 exec, -1""")
        nextbuf = [f"v_add_u32 v{vWA}, s{sWB}, v{vWA0}\ns_mov_b32 s{sT0}, s{sWB}", f"v_xor_b32 v{vWA+1}, 32, v{vWA}\ns_mov_b32 s{sWB}, s{sWB+1}",
                   f"v_xor_b32 v{vWA+2}, 64, v{vWA}\ns_mov_b32 s{sWB+1}, s{sWB+2}", f"v_xor_b32 v{vWA+3}, 96, v{vWA}\ns_mov_b32 s{sWB+2}, s{sT0}"]
        a("L_q0:\ns_barrier")
        self.probe(0, True)
        lg = Lg(a)
        rd = lambda ks: [self.rdB(ks, 0)] + self.q_rdA(ks, 0) + [self.rdB(ks, q) for q in (1, 2, 3)] + sum((self.q_rdA(ks, m) for m in (1, 2, 3)), [])
        r0 = rd(0)
        plan = {k: [] for k in range(-1, 32)}
        for i, x in enumerate(r0):
            plan[i // 2 - 1].append(x)
        for pos, m in ((6, 0), (8, 1), (12, 2), (16, 3)):
            for j, x in enumerate(self.q_rdA(1, m)):
                plan[pos + j].append(x)
        for q in range(4):
            plan[18 + q].append(self.rdB(1, q))
        tail = nextbuf + self.NEXTX
        for x in plan[-1]:
            lg.issue(*x)
        for k in range(32):
            mt, qt = self.ORDER4[k & 15]
            if k == 16:
                lg.wait(*[tag for _, tag in r0])
            a(self.mfma(ACC0, mt, qt, self.qA(1 - (k >> 4), mt), 1 - (k >> 4)))
            for x in plan[k]:
                lg.issue(*x)
            if k >= 22 and tail:
                a(tail.pop(0))
            if k == 30:
                lg.drain()
                a(f"s_cmp_eq_u32 s{sN}, 1")
        self.probe(1)
        a("s_cbranch_scc1 L_q0_setup")
        if self.wqat > 1:
            a(f"s_cmp_eq_u32 s{sN}, {self.wqat}\ns_cbranch_scc1 L_q0_touch")
        a(f"s_cmp_lt_u32 s{sN}, 9\ns_cbranch_scc1 L_q0")
        self.early(10)
        self.q_finalize(ACC0, [self.mfma(ACC0, mt, qt, self.qA(1, mt), 1) for mt, qt in self.ORDER4])
        self.early(12)
        a(f"v_xor_b32 v{vQW}, {R2 ^ WR}, v{vQW}")
        self.stamp(1)
        a("s_branch L_pj_rest")

    def pj_setup(self):
        a = self.a
        a("L_q0_setup:")
        self.late_common()
        self.late_wo()
        a(f"""s_cmp_eq_u32 s{sTY}, 1
        s_cselect_b32 s{sKVN}, 2, {self.adist}
        s_lshl_b32 s{sT0}, s{sKVN}, 13
        s_add_u32 s{sKVOFF}, s{sKVOFF}, s{sT0}
        s_mul_i32 s{sT0}, s{sKVN}, s{sBUFSZ}
        s_add_u32 s{sKVM0}, s{sKVM0}, s{sT0}
        s_mov_b32 s{sTHR}, 1
        s_add_u32 s{sWCOL}, s{sWCOL}, 512
        s_add_u32 s{sWCH}, s{sWCH}, 7
        s_sub_u32 s{sT0}, s{sWCH}, 9
        s_cselect_b32 s{sWCH}, s{sWCH}, s{sT0}
        s_lshl_b32 s{sT2}, s{sLW}, 13
        s_add_u32 s{sWBUF}, s{sT2}, {WR}
        s_mov_b32 s{sXN}, 4
        s_add_u32 s{sXCH}, s{sXCH}, 4
        s_sub_u32 s{sT0}, s{sXCH}, 9
        s_cselect_b32 s{sXCH}, s{sXCH}, s{sT0}
        s_mov_b32 s{sOCI}, 0
        s_mov_b32 s{sOG}, 0
        s_mov_b32 s{sOBUF}, {WR}
        s_mov_b32 s{sTN}, 0
        s_mov_b32 s{sLAST}, 2
        v_mov_b32 v{vPR}, 0""")
        for i in range(64):
            a(f"v_mov_b32 v{vACC+64+i}, 0")
        if self.wqat > 1:
            a("s_branch L_q0\nL_q0_touch:")
        self.pretouch_wq(vFA + 34)
        a("s_branch L_q0")

    def stream_slot(self, ty, rdA, MT, acc, aset, loads, after, readB=True):
        e = self.a
        e("s_barrier")
        self.probe(0, True)
        lg = Lg(e)
        for t, tag in rdA:
            lg.issue(t, tag)
        lg.drain()
        self.probe(1)
        e("s_barrier")
        self.probe(2)
        for ks in (0, 1):
            for q in range(4 if readB else 0):
                lg.issue(*self.rdB(ks, q))
        if loads is None:
            return
        def mk(ks, mt, qt):
            def f():
                lg.wait(("B", ks, qt))
                e(self.mfma(acc, mt, qt, aset(ks, mt), ks))
            return f
        mm = [mk(ks, mt, qt) for ks in (0, 1) for mt in range(MT) for qt in range(4)]
        self.spread(mm, loads + (self.kv_items_b() if ty else []))
        self.probe(6)
        if not ty:
            if getattr(self, "extra", None):
                l = self.lab("tx")
                e(f"s_cmp_ge_u32 s{sN}, 15\ns_cbranch_scc1 {l}")
                self.pretouch_wo(False)
                e(f"{l}:")
                self.extra = None
            self.call("F_kv")
        for t in after:
            e(t)

    def store_items(self, G):
        acc = vACC + 48 * G
        items = []
        for qd in range(6):
            c = acc + 8*qd
            t = "\n".join(f"v_cvt_pk_bf16_f32 v{c+i}, v{c+2*i}, v{c+2*i+1}" for i in range(4))
            t += f"\nbuffer_store_dwordx4 {vr(c,4)}, v{vST}, {sr(sWS)}, s{sM} offen offset:{1024*(qd&3)} {('sc1', 'sc1 nt', 'sc0 sc1')[self.partop]}"
            if qd in (3, 5):
                t += f"\ns_add_u32 s{sM}, s{sM}, {4096 if qd == 3 else 24576-4096}"
            items.append(t)
        return items

    def pj_rest(self):
        a = self.a
        ACC1 = vACC + 64
        qrd = sum((self.q_rdA(ks, m) for ks in (0, 1) for m in range(4)), [])
        a(f"L_pj_rest:\nv_mov_b32 v{vXA}, v{vXA0}\nv_mov_b32 v{vXA+1}, v{vXA0+1}")
        self.prio_set(1)
        prevx = [f"s_add_u32 s{sN}, s{sN}, 1\ns_sub_u32 s{sT0}, 9, s{sN}\ns_and_b32 s{sT0}, s{sT0}, 3\ns_lshl_b32 s{sT0}, s{sT0}, 13"] + self.NEXTX[1:]
        a(f"s_cmp_eq_u32 s{sTY}, 1\ns_cbranch_scc1 L_q1_1")
        if self.help:
            self.other_srd(sBV, 56, SIZE['B_v'])
        if self.follow:
            self.wait_init(vZ, vDUM)
        if self.aidle:
            self.pretouch_wo(True)
            a(f"s_mov_b32 s{sM}, 6\nL_idle_a:\ns_barrier")
            self.probe(0, True)
            a("s_barrier")
            if self.aidle == 1:
                self.pretouch_wo(False)
            self.call("F_kv")
            self.kvwait()
            a(f"s_sub_u32 s{sM}, s{sM}, 1\ns_cmp_lg_u32 s{sM}, 0\ns_cbranch_scc1 L_idle_a")
        for ty in (0, 1):
            nk = 8 if ty else self.NA
            a(f"L_q1_{ty}:")
            if self.aidle == 2 and not ty:
                self.extra = "touch"
            self.stream_slot(ty, qrd, 4, ACC1, self.qA, self.w_items(True), prevx)
            a(f"s_sub_u32 s{sT0}, s{sN}, 11\ns_cmp_ge_u32 s{sT0}, 5\ns_cbranch_scc1 L_q1_nox{ty}")
            self.call("F_x")
            a(f"""s_sub_u32 s{sXN}, s{sXN}, 2
            s_add_u32 s{sXCH}, s{sXCH}, 7
            s_sub_u32 s{sT0}, s{sXCH}, 9
            s_cselect_b32 s{sXCH}, s{sXCH}, s{sT0}""")
            self.probe(4)
            a(f"s_waitcnt vmcnt({nk + 2})")
            self.probe(5)
            a(f"s_branch L_q1_{ty}\nL_q1_nox{ty}:")
            self.probe(4)
            a(f"s_waitcnt vmcnt({nk})")
            self.probe(5)
            a(f"s_cmp_lt_u32 s{sN}, 17\ns_cbranch_scc1 L_q1_{ty}")
            if not ty:
                a("s_branch L_q1_last")
        a("L_q1_last:")
        self.stream_slot(0, qrd, 4, ACC1, self.qA, None, None)
        self.call("F_kv")
        a("s_waitcnt lgkmcnt(0)")
        self.q_finalize(ACC1, [self.mfma(ACC1, mt, qt, self.qA(ks, mt), ks) for ks in (0, 1) for mt, qt in self.ORDER4])
        self.kvwait()
        self.stamp(2)
        a("s_barrier")
        self.probe(0, True)
        a("s_barrier")
        if not self.aidle:
            self.pretouch_wo(True)
        self.call("F_kv")
        for i in range(144):
            a(f"v_mov_b32 v{vACC+i}, 0")
        a(f"""v_lshrrev_b32 v6, 2, v0
        v_bfe_u32 v1, v6, 1, 2
        v_and_b32 v7, 3, v0
        v_lshlrev_b32 v7, 3, v7
        v_mul_u32_u24 v6, 384, v6
        v_add_u32 v6, v6, v7
        s_mul_i32 s{sT0}, s{sLW}, 3""")
        for nt in range(3):
            a(f"""s_add_u32 s{sT1}, s{sT0}, {nt}
            v_xor_b32 v7, s{sT1}, v1
            v_lshl_add_u32 v{vOA0+nt}, v7, 5, v6
            v_add_u32 v{vOA+nt}, {WR}, v{vOA0+nt}""")
        a(f"""s_lshl_b32 s{sT0}, s{sTY}, 4
        s_add_u32 s{sT0}, s{sT0}, s{sB}
        s_lshl_b32 s{sT0}, s{sT0}, 3
        s_add_u32 s{sT0}, s{sT0}, s{sHG}
        s_mul_i32 s{sM}, s{sT0}, {PART}
        s_add_u32 s{sM}, s{sM}, s{sOLW}
        v_lshlrev_b32 v{vST}, 4, v0""")
        self.kvwait()
        if self.aidle:
            a(f"s_cmp_eq_u32 s{sTY}, 0\ns_cbranch_scc1 L_kvl_done")
        a(f"s_mov_b32 s{sN}, 6\nL_kvl:\ns_barrier")
        self.probe(0, True)
        a("s_barrier")
        self.probe(2)
        if not self.aidle:
            self.pretouch_wo(False)
        self.call("F_kv")
        self.probe(4)
        self.kvwait()
        self.probe(5)
        a(f"""s_sub_u32 s{sN}, s{sN}, 1
        s_cmp_lg_u32 s{sN}, 0
        s_cbranch_scc1 L_kvl
        L_kvl_done:
        s_barrier""")
        self.probe(0, True)
        a("s_barrier")
        self.call("F_wo")
        self.call("F_kv")
        self.kvwait()
        self.stamp(3)
        oA = lambda c, ks, mt: vFA + 4*mt + (0 if ks == 0 else 12 + 12*(c & 1))
        o_rdA = lambda c, ks, mt: self.rdA(oA(c, ks, mt), vOA, mt, 32*ks*384, (32*ks+16)*384, ("A", ks, mt))
        xa_step = [f"s_add_u32 s{sN}, s{sN}, 1\ns_add_u32 s{sT0}, s{sROT}, s{sN}\ns_and_b32 s{sT0}, s{sT0}, 3\ns_lshl_b32 s{sT0}, s{sT0}, 13",
                   f"v_add_u32 v{vXA}, s{sT0}, v{vXA0}", f"v_add_u32 v{vXA+1}, s{sT0}, v{vXA0+1}"]
        a(f"s_mov_b32 s{sN}, -1")
        for t in xa_step:
            a(t)
        ord_ = sum((o_rdA(0, ks, m) for ks in (0, 1) for m in range(3)), [])
        a(f"s_cmp_eq_u32 s{sTY}, 1\ns_cbranch_scc1 L_o2_1")
        for ty in (0, 1):
            a(f"L_o2_{ty}:")
            for G in range(3):
                self.stream_slot(ty, ord_, 3, vACC + 48*G, lambda ks, mt: oA(0, ks, mt), self.wo_items(), xa_step if G == 0 else [], G == 0)
                self.probe(4)
                if ty:
                    a("s_waitcnt vmcnt(8)")
                else:
                    self.kvwait()
                self.probe(5)
            a(f"s_cmp_lt_u32 s{sN}, 4\ns_cbranch_scc1 L_o2_{ty}")
            if not ty:
                a("s_branch L_o2_done")
        a("L_o2_done:")
        self.stamp(4)
        if self.probes:
            a(f"s_add_u32 s{sSLOT}, s{sSLOT}, 3")
        a("s_barrier\ns_barrier")
        if self.touch & 4:
            a(f"""s_cmp_eq_u32 s{sTY}, 1
            s_cbranch_scc1 L_t38
            s_lshl_b32 s{sT0}, s{sB}, 2
            s_add_u32 s{sT0}, s{sT0}, s{sLW}
            s_mul_i32 s{sT0}, s{sT0}, 4608
            s_mul_i32 s{sT1}, s{sHG}, 589824
            s_add_u32 s{sT0}, s{sT0}, s{sT1}
            s_add_u32 s{sT0}, s{sT0}, 294912
            v_lshlrev_b32 v1, 7, v0
            s_mov_b32 exec_hi, 15
            buffer_load_dword v{vDUM}, v1, {sr(sWO)}, s{sT0} offen
            s_mov_b64 exec, -1
            L_t38:""")
        self.call("F_kv")
        a(f"""v_lshl_add_u32 v1, v0, 2, s{sRB}
        v_cmp_gt_u32 vcc, 6, v0
        s_and_saveexec_b64 {sr(sT0, 2)}, vcc
        s_cmp_lg_u32 s{sLW}, 0
        s_cbranch_scc1 L_nz
        ds_write_b32 v1, v{vZ} offset:{SYNC - WR}
        L_nz:
        s_mov_b64 exec, -1
        s_waitcnt lgkmcnt(0)""")
        self.kvwait()
        srd(a, sPT, sDBGP, 256)
        a(f"""s_lshl_b32 s{sT2}, s{sB}, 2
        s_barrier
        s_barrier
        buffer_load_dword v{vDUM}, v{vZ}, {sr(sPT)}, s{sT2} offen offset:{128*bool(self.dbgst)} sc1
        s_mov_b32 s{sOBUF}, s{sRB+1}""")
        self.call("F_wo")
        a(f"""s_waitcnt vmcnt(6)
        v_readfirstlane_b32 s{sT1}, v{vDUM}
        s_cmp_ge_u32 s{sT1}, 16
        s_cbranch_scc1 L_init_ok""")
        self.wait_init(vZ, vDUM)
        a(f"L_init_ok:\ns_barrier\ns_barrier\ns_mov_b32 s{sOBUF}, s{sRB+2}")
        self.call("F_wo")
        if self.prio & 4:
            a("s_setprio 0")
        self.stamp(5)
        st = []
        for c in range(12):
            grp = (lambda c: c >> 2) if self.gmajor else (lambda c: c % 3)
            acc, prev = vACC + 48 * grp(c), vACC + 48 * grp(max(c - 1, 0))
            newB = c % 3 == 0 or self.gmajor
            lg = Lg(a)
            if c == 0:
                for ks in (0, 1):
                    for m in range(3):
                        for x in o_rdA(0, ks, m):
                            lg.issue(*x)
                lg.drain()
            a("s_barrier")
            self.probe(0, True)
            b0 = [self.rdB(0, q) for q in range(4)] if newB else []
            r0 = b0[:1] + o_rdA(c, 0, 0) + b0[1:] + o_rdA(c, 0, 1) + o_rdA(c, 0, 2)
            ra1 = sum((o_rdA(c, 1, m) for m in range(3)), [])
            if c == 0:
                r0, ra1 = b0 + [self.rdB(1, q) for q in range(4)], []
            plan = {k: [] for k in range(-1, 24)}
            for i, x in enumerate(r0):
                plan[(i // 2 - 1 if newB else i - 1) if c else -1].append(x)
            for i, x in enumerate(ra1):
                plan[5 + i if c else 12 + i // 2].append(x)
            for q in range(4 if newB and c else 0):
                plan[12 + q].append(self.rdB(1, q))
            fill = [f"v_add_u32 v{vOA+nt}, s{sRB + ((c+1)&3)}, v{vOA0+nt}" for nt in range(3)] + (xa_step if newB else [])
            for x in plan[-1]:
                lg.issue(*x)
            for k in range(0 if c else 12, 24):
                mt, qt = self.ORDER3[k % 12]
                if k == 12 and c:
                    lg.wait(*[tag for _, tag in r0])
                elif not c:
                    lg.wait(("A", 0, mt, 0), ("A", 0, mt, 1), ("B", 0, qt))
                a(self.mfma(prev, mt, qt, oA(c - 1, 1, mt), 1) if k < 12 else self.mfma(acc, mt, qt, oA(c, 0, mt), 0))
                for x in plan[k]:
                    lg.issue(*x)
                if k >= (16 if c else 19) and fill:
                    a(fill.pop(0))
                    if not c and fill:
                        a(fill.pop(0))
                if self.gmajor:
                    if k == 11 and c in (self.store0, self.store1):
                        st += self.store_items(int(c == self.store1))
                    step = self.stp0 if c < self.store1 else self.stp
                else:
                    if c >= 10 and k == 9:
                        st += self.store_items(c - 10)
                    step = self.stp
                if st and k % step == step - 1:
                    a(st.pop(0))
                if k == 22:
                    lg.drain()
            assert not fill
            if c < 2:
                a(f"s_waitcnt vmcnt({6 - 6*c})")
            if c in (4, 8):
                self.stamp(6 + (c >> 3))
        for k, (mt, qt) in enumerate(self.ORDER3):
            a(self.mfma(vACC + 96, mt, qt, oA(11, 1, mt), 1))
            if k == 9:
                st += self.store_items(2)
            if st and k % 2 == 1:
                a(st.pop(0))
        for t in st:
            a(t)
        self.stamp(8)
        a(f"""v_mov_b32 v1, {SYNC}
        v_mov_b32 v6, 1
        s_lshl_b32 s{sT0}, s{sTY}, 11
        s_lshl_b32 s{sT1}, s{sHG}, 2
        s_add_u32 s{sT0}, s{sT0}, s{sT1}
        s_add_u32 s{sT0}, s{sT0}, s{sFADDR}
        s_mov_b64 exec, 1""")
        for k in range(1):
            a(f"""s_waitcnt vmcnt(0)
            ds_add_rtn_u32 v7, v1, v6 offset:{4*k}
            s_waitcnt lgkmcnt(0)
            v_readfirstlane_b32 s{sT1}, v7
            s_cmp_lg_u32 s{sT1}, 3
            s_cbranch_scc1 L_nf{k}
            {("buffer_store_dword", "buffer_store_dword", "buffer_atomic_add")[self.flagop]} v6, v{vZ}, {sr(sWS)}, s{sT0} offen offset:{32*k} {("sc1", "sc0 sc1", "sc1")[self.flagop]}
            L_nf{k}:""")
            if k == 0:
                self.stamp(13)
        a("s_mov_b64 exec, -1")
        self.stamp(9)
        self.probe_dump()
        a("s_branch L_reduce")

    def at_first(self):
        a = self.a
        a("L_at:")
        self.prio_set(0)

        issued = []
        WBUFS = (WR, R1, R2)

        def ldx(n, direct):
            if n <= 3 or n >= 9 or direct:
                self.call("F_x")
            else:
                a(f"s_lshl_b32 s{sT0}, s{sXCH}, 7\ns_add_u32 s{sT0}, s{sT0}, s{sXBASE}")
                self.x_adv()
                for i in range(2):
                    a(f"buffer_load_dwordx4 {vr(vO + (n-4)*8 + 4*i, 4)}, v{vXVO+i}, {sr(sX)}, s{sT0} offen offset:{1024*i}")
            issued.extend([("x", n)] * 2)

        def ldw(n):
            if n == 9:
                a(f"s_sub_u32 s{sWCH}, s{sWCH}, 1\ns_cselect_b32 s{sWCH}, 8, s{sWCH}")
            a(f"s_lshl_b32 s{sWBUF}, s{sLW}, 13\ns_add_u32 s{sWBUF}, s{sWBUF}, {WBUFS[n % 3]}")
            self.call("F_w")
            issued.extend([("w", n)] * 8)

        def prefill(k, ty):
            for _ in range(2 - ty):
                self.call("F_kv")
            issued.extend([("kv", k)] * 8)

        def wait(*tags):
            k = max(i for i, t in enumerate(issued) if t in tags) + 1
            a(f"s_waitcnt vmcnt({min(63, len(issued) - k)})")
        def first_stage(ty):
            del issued[:]
            direct = ty == 1 and self.xplan
            ldx(0, direct); ldw(0)
            self.early(2)
            self.call("F_atset")
            self.early(4)
            ldx(1, direct); ldw(1)
            wait(("x", 0), ("w", 0))
            self.early(5)
            for n in range(9):
                a("s_barrier")
                self.probe(0, True)
                if 1 <= n <= 5 and not direct:
                    wait(("x", n + 3))
                    for i in range(2):
                        a(f"ds_write_b128 v{vT}, {vr(vO + (n-1)*8 + 4*i, 4)} offset:{((n+3)&3)*8192 + 1024*i}")
                if n == 0:
                    for k in range(2, 4 if direct else 9):
                        ldx(k, direct)
                elif direct and n <= 5:
                    ldx(n + 3, direct)
                if n + 2 <= 9:
                    ldw(n + 2)
                if n == 8:
                    prefill(0, ty)
                    if ty or self.adist == 4:
                        prefill(1, ty)
                self.probe(4)
                wait(*([("w", n + 1)] + [("kv", 0) if n == 8 else ("x", n + 1)]))
                a("s_waitcnt lgkmcnt(0)")
                self.probe(5)
        a(f"s_mov_b32 s{sXN}, 0\ns_cmp_eq_u32 s{sTY}, 0\ns_cbranch_scc1 L_at_a")
        first_stage(1)
        a("s_branch L_at_done\nL_at_a:")
        if self.xplan & 2:
            self.other_srd(sPT, 64, SIZE['B_wq'])
            a(f"""s_lshl_b32 s{sT0}, s{sB}, 2
            s_add_u32 s{sT0}, s{sT0}, s{sLW}
            s_mul_i32 s{sT0}, s{sT0}, {9*8192}
            s_lshl_b32 s{sT1}, s{sHG}, 10
            s_add_u32 s{sT0}, s{sT0}, s{sT1}
            v_lshrrev_b32 v1, 2, v0
            v_and_b32 v6, 3, v0
            v_lshlrev_b32 v6, 7, v6
            v_lshl_add_u32 v1, v1, 13, v6
            s_mov_b32 exec_hi, 15
            buffer_load_dword v{vP+3}, v1, {sr(sPT)}, s{sT0} offen""")
            if self.xplan & 4:
                a(f"buffer_load_dword v{vP+2}, v1, {sr(sWQ)}, s{sT0} offen")
            a("s_mov_b64 exec, -1")
        if self.xtouch:
            self.other_srd(sPT, 40, SIZE['B_x'])
            a(f"v_mul_u32_u24 v1, 1152, v0\ns_mul_i32 s{sT2}, s{sB}, 73728")
            for j in range(2):
                a(f"""s_add_u32 s{sT0}, s{sXCH}, s{sLW}
                s_add_u32 s{sT0}, s{sT0}, {self.xfrom + 4*j}
                s_mul_i32 s{sT1}, s{sT0}, 57
                s_lshr_b32 s{sT1}, s{sT1}, 9
                s_mul_i32 s{sT1}, s{sT1}, 9
                s_sub_u32 s{sT0}, s{sT0}, s{sT1}
                s_lshl_b32 s{sT0}, s{sT0}, 7
                s_add_u32 s{sT0}, s{sT0}, s{sT2}
                buffer_load_dword v{vP+j}, v1, {sr(sPT)}, s{sT0} offen""")
        first_stage(0)
        a("L_at_done:")
        if self.prio & 1:
            a("s_setprio 0")
        a("s_branch L_stage\nF_atset:")
        if not (self.probes or self.stamps):
            self.late_srds()
        self.late_common()
        a(f"""s_mov_b32 s{sTHR}, 0
        s_lshl_b32 s{sT0}, s{sLW}, 11
        s_add_u32 s{sT0}, s{sT0}, {XR}
        v_lshl_add_u32 v{vT}, v0, 4, s{sT0}""")
        self.at_setup()
        if self.xplan:
            a(f"s_cmp_eq_u32 s{sTY}, 0\ns_cbranch_scc1 F_atset_ret")
            for i in range(vO, vO + 40):
                a(f"v_mov_b32 v{i}, 0")
            a("F_atset_ret:")
        self.ret()

    def at_setup(self):
        a = self.a
        a(f"""s_lshr_b32 s{sT0}, s{sLW}, 1
        s_mul_i32 s{sT0}, s{sT0}, s{sTY}
        s_lshl_b32 s{sT0}, s{sT0}, 13
        v_xor_b32 v7, v2, v3
        v_lshlrev_b32 v7, 4, v7
        v_lshl_add_u32 v7, v3, 8, v7
        v_add_u32 v{vKA}, s{sT0}, v7""")
        for ks in range(1, 4):
            a(f"v_xor_b32 v{vKA+ks}, {64*ks}, v{vKA}")
        a(f"""s_lshr_b32 s{sT1}, s{sBUFSZ}, 1
        s_add_u32 s{sT0}, s{sT0}, s{sT1}
        v_lshrrev_b32 v1, 2, v0
        v_and_b32 v6, 7, v1
        v_lshlrev_b32 v7, 8, v1
        v_lshl_add_u32 v7, v6, 5, v7
        v_and_b32 v1, 3, v0
        v_lshl_add_u32 v7, v1, 3, v7
        v_add_u32 v{vVA}, s{sT0}, v7""")
        for dt in range(1, 8):
            a(f"v_xor_b32 v{vVA+dt}, {32*dt}, v{vVA}")
        a(f"""s_mov_b32 s{sRPOS}, 0
        s_mov_b32 s{sSTAGE}, 0
        s_mov_b32 s{sQBUF}, {R2 - XR}
        s_mov_b32 s{sM}, 3
        s_lshr_b32 s{sT0}, s{sLW}, 1
        s_lshl_b32 s{sT0}, s{sT0}, 14
        s_and_b32 s{sT1}, s{sLW}, 1
        s_lshl_b32 s{sT1}, s{sT1}, 12
        s_add_u32 s{sT0}, s{sT0}, s{sT1}
        s_add_u32 s{sT0}, s{sT0}, {XR}
        v_lshrrev_b32 v6, 1, v3
        v_xor_b32 v6, v6, v2
        v_lshlrev_b32 v6, 4, v6
        v_lshl_add_u32 v6, v3, 7, v6
        v_add_u32 v{vH}, s{sT0}, v6
        v_xor_b32 v{vH+1}, 64, v{vH}""")
        for i in list(range(vO + 40, vO + 64)) + list(range(vNM + 1, vNM + 8)) + [vL0, vL0 + 1, vL0 + 2, vL0 + 3, 4] + list(range(vOVO, vOVO + 6)):
            a(f"v_mov_b32 v{i}, 0")

    def at_rest(self):
        a = self.a
        publish = self.follow or self.gate
        a(f"""L_stage:
        s_mov_b32 s{sTH}, 0xff7fffff
        s_mov_b32 s{sFLOOR}, 0xff7fffff
        s_mov_b32 s{sFIRST}, 0
        s_cmp_lg_u32 s{sSTAGE}, 0
        s_cbranch_scc1 L_stage_a
        v_mov_b32 v{vNM}, 0
        L_stage_a:""")
        for i in range(2):
            a(f"v_add_u32 v{vT+i}, s{sQBUF}, v{vH+i}")
        a(f"s_mov_b32 s{sN}, 0\nL_tile:\ns_barrier")
        self.probe(0, True)
        a(f"s_cmp_lg_u32 s{sN}, 0\ns_cbranch_scc1 L_tile_k")
        for qt in range(2):
            for ks in range(4):
                a(f"ds_read_b128 {vr(vQ + (qt*4+ks)*4, 4)}, v{vT+(ks&1)} offset:{2048*qt + 8192*(ks>>1)}")
        a("s_waitcnt lgkmcnt(0)\nL_tile_k:")
        lg = Lg(a)
        for ks in range(4):
            for kt in range(2):
                lg.issue(f"ds_read_b128 {vr(vKF + (ks*2+kt)*4, 4)}, v{vKA+ks} offset:{4096*kt}", ("K", ks, kt))
        a("s_barrier")
        O = lambda dt, qt: vO + (((dt >> 1)*2 + qt)*2 + (dt & 1))*4
        pv = lambda dt, u: f"v_mfma_f32_16x16x32_bf16 {vr(O(dt, u), 4)}, {vr(vVF + dt*4, 4)}, {vr(vP+4*u, 4)}, {vr(O(dt, u), 4)}"
        if self.defer:
            a(f"s_cmp_eq_u32 s{sN}, 0\ns_cbranch_scc1 L_tile_q")
            late = [f"v_pk_add_f32 {vr(vL0+2*u, 2)}, {vr(vL0+2*u, 2)}, {vr(vS+8*u+2*i, 2)}" for u, i in ((1, 0), (0, 2), (1, 1), (0, 3), (1, 2), (1, 3))]
            late += [f"v_add_u32 v{vVA+i}, s{sPROG}, v{vVA+i}" for i in range(8)]
            def deferred():
                l = list(late)
                for dt in range(8):
                    a(pv(dt, 1))
                    for _ in range(2):
                        if l: a(l.pop(0))
            deferred()
            a("L_tile_q:")
        vreads = [(f"ds_read_b64_tr_b16 {vr(vVF + dt*4 + 2*j, 2)}, v{vVA+dt} offset:{4096*j}", ("V", dt, j)) for dt in range(8) for j in range(2)]
        S = lambda qt, kt: vS + (qt*2 + kt)*4
        O = lambda dt, qt: vO + (((dt >> 1)*2 + qt)*2 + (dt & 1))*4
        for ks in range(4):
            for kt in range(2):
                lg.wait(("K", ks, kt))
                for qt in range(2):
                    c = vr(vNM + 4*qt, 4) if ks == 0 else vr(S(qt, kt), 4)
                    a(f"v_mfma_f32_16x16x32_bf16 {vr(S(qt, kt), 4)}, {vr(vKF + (ks*2+kt)*4, 4)}, {vr(vQ + (qt*4+ks)*4, 4)}, {c}")
                    if len(lg.q) < 15:
                        lg.issue(*vreads.pop(0))
        for t, tag in vreads:
            lg.issue(t, tag)
        a(f"""s_add_u32 s{sRPOS}, s{sRPOS}, s{sBUFSZ}
        s_cmp_ge_u32 s{sRPOS}, 98304
        s_cselect_b32 s{sT0}, 98304, 0
        s_sub_u32 s{sRPOS}, s{sRPOS}, s{sT0}
        s_sub_u32 s{sPROG}, s{sBUFSZ}, s{sT0}""")
        adv = [f"v_add_u32 v{vKA+i}, s{sPROG}, v{vKA+i}" for i in range(12)]
        nadv = 4 if self.defer else 2
        for t in adv[:nadv]:
            a(t)
        adv = adv[nadv:]
        t0, t1 = vT, vT + 1
        a(f"""v_max3_f32 v{t0}, v{vS}, v{vS+1}, v{vS+2}
        v_max3_f32 v{t0}, v{t0}, v{vS+3}, v{vS+4}
        v_max3_f32 v{t1}, v{vS+8}, v{vS+9}, v{vS+10}
        v_max3_f32 v{t0}, v{t0}, v{vS+5}, v{vS+6}
        v_max3_f32 v{t1}, v{t1}, v{vS+11}, v{vS+12}
        v_max_f32 v{t0}, v{t0}, v{vS+7}
        v_max3_f32 v{t1}, v{t1}, v{vS+13}, v{vS+14}
        v_max_f32 v{t1}, v{t1}, v{vS+15}
        v_max_f32 v{vT+2}, v{t0}, v{t1}
        v_cmp_lt_f32 vcc, s{sTH}, v{vT+2}
        s_cbranch_vccnz L_rescale
        L_tile_exp:""")
        ex = lambda u: [f"v_exp_f32 v{vS+8*u+i}, v{vS+8*u+i}" for i in range(8)]
        cv = lambda u: [f"v_cvt_pk_bf16_f32 v{vP+4*u+i}, v{vS+8*u+2*i}, v{vS+8*u+2*i+1}" for i in range(4)]
        if self.pkl:
            ad = lambda u: [x for i in range(4) for x in (f"v_pk_add_f32 {vr(vL0+2*u, 2)}, {vr(vL0+2*u, 2)}, {vr(vS+8*u+2*i, 2)}", "")]
        else:
            ad = lambda u: [f"v_add_f32 v{vL0+2*u+(i&1)}, v{vL0+2*u+(i&1)}, v{vS+8*u+i}" for i in range(8)]
        pv = lambda dt, u: f"v_mfma_f32_16x16x32_bf16 {vr(O(dt, u), 4)}, {vr(vVF + dt*4, 4)}, {vr(vP+4*u, 4)}, {vr(O(dt, u), 4)}"
        e0, c0, a0 = ex(0), cv(0), ad(0)
        e1, c1, a1 = ex(1), cv(1), ad(1)
        for t in e0[:3] + [e0[3], c0[0], e0[4], e0[5], c0[1], e0[6], e0[7], c0[2], e1[0], c0[3], e1[1], a0[0]]:
            a(t)
        gaps = [[e1[2]], [e1[3], c1[0]], [e1[4]], [e1[5], c1[1]], [e1[6]], [e1[7]], [c1[2], a0[1]], [c1[3], a0[2], a0[3] or "s_nop 0"]]
        for dt in range(8):
            if dt % 2 == 0:
                lg.wait(("V", dt + 1, 0), ("V", dt + 1, 1))
            a(pv(dt, 0))
            for t in gaps[dt]:
                a(t)
        rest = [x for pair in zip(a1, a0[4:] + adv[:4]) for x in pair] + adv[4:]
        if not self.defer:
            for dt in range(8):
                a(pv(dt, 1))
                for _ in range(3):
                    if rest: a(rest.pop(0))
            assert not rest
        self.probe(6)
        a(f"s_or_b32 s{sT0}, s{sSTAGE}, s{sN}\ns_cbranch_scc1 L_tile_nw\ns_waitcnt vmcnt(0)\nL_tile_nw:")
        if publish:
            a(f"""s_cmp_gt_u32 s{sTY}, s{sLW}
            s_cbranch_scc0 L_tile_np""")
            if not self.follow:
                a(f"s_add_u32 s{sM}, s{sM}, 1\ns_cmp_eq_u32 s{sM}, {self.gate + 1}\ns_cbranch_scc0 L_tile_np\ns_sub_u32 s{sM}, s{sM}, 1")
            a(f"""v_mov_b32 v5, s{sM}
            s_mov_b64 exec, 1
            buffer_store_dword v5, v4, {sr(sWS)}, s{sPADDR} offen sc1
            s_mov_b64 exec, -1
            s_add_u32 s{sM}, s{sM}, 1
            L_tile_np:""")
        a(f"""s_add_u32 s{sN}, s{sN}, 1
        s_cmp_lt_u32 s{sN}, 16
        s_cbranch_scc1 L_tile""")
        if self.defer:
            deferred()
        a(f"""v_add_f32 v{vL0}, v{vL0}, v{vL0+1}
        v_add_f32 v{vL0+1}, v{vL0+2}, v{vL0+3}
        v_mov_b32 v{vT}, v{vL0}
        v_mov_b32 v{vT+1}, v{vL0+1}
        s_mov_b32 s{sQBUF}, {WR - XR}
        s_add_u32 s{sSTAGE}, s{sSTAGE}, 1
        v_permlane32_swap_b32 v{vL0}, v{vT}
        v_permlane32_swap_b32 v{vL0+1}, v{vT+1}
        v_add_f32 v{vL0}, v{vL0}, v{vT}
        v_add_f32 v{vL0+1}, v{vL0+1}, v{vT+1}
        v_mov_b32 v{vT}, v{vL0}
        v_mov_b32 v{vT+1}, v{vL0+1}
        s_nop 1
        v_permlane16_swap_b32 v{vL0}, v{vT}
        v_permlane16_swap_b32 v{vL0+1}, v{vT+1}
        v_add_f32 v{vT}, v{vL0}, v{vT}
        v_add_f32 v{vT+1}, v{vL0+1}, v{vT+1}
        v_rcp_f32 v{vT}, v{vT}
        v_rcp_f32 v{vT+1}, v{vT+1}
        s_nop 0""")
        mul, put = [], []
        for qt in range(2):
            for p in range(4):
                c = vO + (p*2 + qt)*8
                mul.append("\n".join(f"v_mul_f32 v{c+i}, v{c+i}, v{vT+qt}" for i in range(8)))
                put.append("\n".join(f"v_cvt_pk_bf16_f32 v{c+i}, v{c+2*i}, v{c+2*i+1}" for i in range(4)) +
                           f"\nds_write_b128 v{vH + (p&1)}, {vr(c,4)} offset:{2048*qt + 8192*(p>>1)}")
        for k in range(9):
            if k < 8: a(mul[k])
            if k: a(put[k-1])
        a(f"""s_cmp_lt_u32 s{sSTAGE}, 2
        s_cbranch_scc0 L_feed0""")
        self.late_wo()
        a(f"""s_mov_b32 s{sOCI}, {7 if self.gmajor else 5}
        s_mov_b32 s{sOG}, 0
        s_waitcnt lgkmcnt(0)
        s_branch L_stage""")
        a("L_feed0:")
        self.prio_set(2)
        a(f"""s_mov_b32 s{sN}, 0
        s_waitcnt lgkmcnt(0)
        L_feed:
        {self.wo_addr(sRB+3)}
        s_barrier""")
        self.probe(0, True)
        if self.probes:
            a(f"s_mov_b32 m0, s{sT1}\ns_nop 0")
        for n in range(6):
            if n == 4:
                a(f"s_add_u32 m0, s{sT1}, 4096\ns_nop 0")
            a(f"buffer_load_dwordx4 v{vOVO+n}, {sr(sWO)}, s{sT0} offen offset:{1024*(n&3)} lds")
        a(f"""{self.wo_adv()}
        s_mov_b32 s{sT0}, s{sRB+3}
        s_mov_b32 s{sRB+3}, s{sRB}
        s_mov_b32 s{sRB}, s{sRB+1}
        s_mov_b32 s{sRB+1}, s{sRB+2}
        s_mov_b32 s{sRB+2}, s{sT0}
        s_add_u32 s{sN}, s{sN}, 1""")
        self.probe(4)
        a(f"""s_waitcnt vmcnt(12)
        s_cmp_lt_u32 s{sN}, 9
        s_cbranch_scc1 L_feed""")
        if self.gate:
            a(f"s_or_b32 s{sT0}, s{sTY}, s{sLW}\ns_cbranch_scc1 L_gate")
            self.wait_init(4, 5)
            self.spin(f"buffer_load_dword v5, v4, {sr(sWS)}, s{sPADDR} offen sc1", 5,
                      f"v_readfirstlane_b32 s{sT1}, v5\ns_cmp_ge_u32 s{sT1}, {self.gate}")
            a("L_gate:")
        a("""s_barrier
        s_waitcnt vmcnt(6)
        s_barrier
        s_waitcnt vmcnt(0)
        s_barrier""")
        self.probe_dump()

    def reduce(self):
        a = self.a
        vL, vO0, vD, vSum = 6, 14, 40, 104
        of = ("", " sc1", " nt", " sc0 sc1")[self.outf]
        a("L_reduce:")
        self.stamp(10)
        a(f"""s_setprio 0
        s_lshr_b32 s{sSTAGE}, s{sWAVE}, 2
        s_lshl_b32 s{sT1}, s{sSTAGE}, 2
        s_add_u32 s{sT1}, s{sT1}, {SYNC + 8}
        v_mov_b32 v9, s{sT1}
        s_mov_b32 s{sSPIN}, {SPIN}
        s_cmp_lg_u32 s{sLW}, 0
        s_cbranch_scc1 L_red_work
        s_lshl_b32 s{sT0}, s{sSTAGE}, 11
        s_add_u32 s{sFADDR}, s{sFADDR}, s{sT0}
        v_mov_b32 v4, 0
        v_and_b32 v8, 7, v0
        v_lshlrev_b32 v8, 2, v8
        s_cmp_eq_u32 s{sSTAGE}, 1
        s_cbranch_scc1 L_red_poll""")
        self.wait_init(4, 5)
        a(f"""s_mov_b32 s{sSPIN}, {SPIN}
        L_red_poll:""")
        NP = self.polls
        ld = lambda k: f"buffer_load_dword v{16+k}, v8, {sr(sWS)}, s{sFADDR} offen {('sc1', 'sc0 sc1')[self.flagop == 1]}"
        for k in range(NP - 1):
            a(ld(k) + f"\ns_sleep {self.nap}")
        a("L_red_again:")
        for k in range(NP):
            a(f"""{ld((k + NP - 1) % NP)}
            s_waitcnt vmcnt({NP - 1})
            v_cmp_eq_u32 vcc, 1, v{16+k}
            s_and_b32 s{sT2}, vcc_lo, 0xff
            s_sub_u32 s{sSPIN}, s{sSPIN}, 1
            s_cselect_b32 s{sT2}, 0xff, s{sT2}
            v_mov_b32 v10, s{sT2}
            ds_write_b32 v9, v10
            s_cmp_eq_u32 s{sT2}, 0xff
            s_cbranch_scc1 L_red_end
            s_sleep {self.nap}""")
        a(f"""s_branch L_red_again
        L_red_work:""")
        srd(a, sX, sOUTP, SIZE['out'])
        a(f"""s_lshl_b32 s{sN}, s{sTY}, 3
        s_add_u32 s{sN}, s{sN}, s{sHG}
        s_sub_u32 s{sT0}, s{sLW}, 1
        s_lshl_b32 s{sT0}, s{sT0}, 4
        s_add_u32 s{sN}, s{sN}, s{sT0}
        s_mul_i32 s{sN}, s{sN}, 48
        s_lshl_b32 s{sT0}, s{sSTAGE}, 4
        s_add_u32 s{sT0}, s{sT0}, s{sB}
        s_mul_i32 s{sM}, s{sT0}, {8*PART}
        s_mul_i32 s{sOBASE}, s{sB}, {64*2304}
        s_mul_i32 s{sT0}, s{sSTAGE}, 1152
        s_add_u32 s{sOBASE}, s{sOBASE}, s{sT0}""")
        for k in range(2):
            a(f"""v_add_u32 v1, s{sN}, v0
            v_lshlrev_b32 v{vL+k}, 4, v1
            v_lshrrev_b32 v11, 6, v1
            v_mul_u32_u24 v12, 43, v11
            v_lshrrev_b32 v12, 8, v12
            v_mul_u32_u24 v13, 6, v12
            v_sub_u32 v13, v11, v13
            v_mul_u32_u24 v12, 96, v12
            v_lshrrev_b32 v11, 1, v13
            v_lshl_add_u32 v12, v11, 5, v12
            v_and_b32 v13, 1, v13
            v_lshlrev_b32 v13, 5, v13
            v_and_b32 v11, 15, v1
            v_add_u32 v13, v13, v11
            v_mul_u32_u24 v13, 2304, v13
            v_bfe_u32 v11, v1, 4, 2
            v_lshl_add_u32 v12, v11, 3, v12
            v_add_u32 v{vO0+k}, v12, v13
            s_add_u32 s{sN}, s{sN}, 2304""")
        for i in range(16):
            a(f"v_mov_b32 v{vSum+i}, 0")
        a(f"""s_mov_b32 exec_hi, 0xffff
        s_mov_b32 s{sN}, 0
        s_mov_b32 s{sOG}, 0
        L_red_look:
        ds_read_b32 v5, v9
        s_waitcnt lgkmcnt(0)
        v_readfirstlane_b32 s{sT2}, v5
        s_sub_u32 s{sSPIN}, s{sSPIN}, 1
        s_cselect_b32 s{sT2}, 0xff, s{sT2}
        s_andn2_b32 s{sT2}, s{sT2}, s{sN}
        s_cbranch_scc1 L_red_new
        s_getreg_b32 s{sT0}, hwreg(HW_REG_IB_STS)
        s_and_b32 s{sT0}, s{sT0}, 0xc000000f
        s_cselect_b32 s{sT0}, 0, s{sOG}
        s_cmp_lg_u32 s{sT0}, 0
        s_cbranch_scc1 L_red_add
        s_sleep 1
        s_branch L_red_look
        L_red_new:
        s_or_b32 s{sN}, s{sN}, s{sT2}
        s_or_b32 s{sOG}, s{sOG}, s{sT2}""")
        for h in range(8):
            a(f"""s_bitcmp1_b32 s{sT2}, {h}
            s_cbranch_scc0 L_red_h{h}
            s_add_u32 s{sT0}, s{sM}, {h*PART}
            buffer_load_dwordx4 {vr(vD+4*h,4)}, v{vL}, {sr(sWS)}, s{sT0} offen {('sc1', 'sc1', 'sc0 sc1')[self.partop]}
            buffer_load_dwordx4 {vr(vD+32+4*h,4)}, v{vL+1}, {sr(sWS)}, s{sT0} offen {('sc1', 'sc1', 'sc0 sc1')[self.partop]}
            L_red_h{h}:""")
        self.stamp(14)
        a(f"s_cmp_lg_u32 s{sN}, 0xff\ns_cbranch_scc1 L_red_look\nL_red_add:\ns_waitcnt vmcnt(0)")
        for h in range(8):
            a(f"s_bitcmp1_b32 s{sOG}, {h}\ns_cbranch_scc0 L_red_a{h}")
            for k in range(2):
                for i in range(4):
                    r, t = vD + 32*k + 4*h + i, 10 + 2*(i & 1)
                    a(f"""v_lshlrev_b32 v{t}, 16, v{r}
                    v_and_b32 v{t+1}, 0xffff0000, v{r}
                    v_pk_add_f32 {vr(vSum+8*k+2*i, 2)}, {vr(vSum+8*k+2*i, 2)}, {vr(t, 2)}""")
            a(f"L_red_a{h}:")
        a(f"""s_mov_b32 s{sOG}, 0
        s_cmp_lg_u32 s{sN}, 0xff
        s_cbranch_scc1 L_red_look
        s_add_u32 s{sT0}, s{sOBASE}, {16*2304}""")
        for k in range(2):
            for i in range(4):
                a(f"v_cvt_pk_bf16_f32 v{vSum+16+4*k+i}, v{vSum+8*k+2*i}, v{vSum+8*k+2*i+1}")
            a(f"""buffer_store_dwordx2 {vr(vSum+16+4*k,2)}, v{vO0+k}, {sr(sX)}, s{sOBASE} offen{of}
            buffer_store_dwordx2 {vr(vSum+18+4*k,2)}, v{vO0+k}, {sr(sX)}, s{sT0} offen{of}""")
        a("L_red_end:")
        if self.stamps:
            a("s_mov_b64 exec, -1\ns_waitcnt vmcnt(0)")
            self.stamp(12)
            self.stamp_dump(0)
            self.stamp_dump(1)
            if self.hold:
                a(f"""s_cmp_lg_u32 s2, {self.hwg}
                s_cbranch_scc1 L_end
                s_cmp_lg_u32 s{sWAVE}, 4
                s_cbranch_scc1 L_end
                v_readlane_b32 s{sT0}, v255, 0
                v_readlane_b32 s{sT1}, v255, {self.hi}
                v_readlane_b32 s{sT2}, v255, {self.hj}
                s_sub_u32 s{sT2}, s{sT2}, s{sT1}
                s_add_u32 s{sT2}, s{sT2}, {self.hold*100}
                s_mov_b32 s{sSPIN}, {SPIN}
                L_hold:
                s_memrealtime s[98:99]
                s_waitcnt lgkmcnt(0)
                s_sub_u32 s98, s98, s{sT0}
                s_cmp_ge_u32 s98, s{sT2}
                s_cbranch_scc1 L_end
                s_sub_u32 s{sSPIN}, s{sSPIN}, 1
                s_cbranch_scc0 L_hold""")
        a("s_endpgm")

    def at_rare(self):
        a = self.a
        t, u, al = vT, vP, vP + 2
        a(f"""L_rescale:
        v_mov_b32 v{u}, v{t}
        v_mov_b32 v{u+1}, v{t+1}
        s_nop 1
        v_permlane32_swap_b32 v{t}, v{u}
        v_permlane32_swap_b32 v{t+1}, v{u+1}
        v_max_f32 v{t}, v{t}, v{u}
        v_max_f32 v{t+1}, v{t+1}, v{u+1}
        v_mov_b32 v{u}, v{t}
        v_mov_b32 v{u+1}, v{t+1}
        s_nop 1
        v_permlane16_swap_b32 v{t}, v{u}
        v_permlane16_swap_b32 v{t+1}, v{u+1}
        v_max3_f32 v{t}, v{t}, v{u}, s{sFLOOR}
        v_max3_f32 v{t+1}, v{t+1}, v{u+1}, s{sFLOOR}
        v_max_f32 v{al}, 0, v{t}
        v_max_f32 v{al+2}, 0, v{t+1}
        v_exp_f32 v{al}, -v{al}
        v_exp_f32 v{al+2}, -v{al+2}
        s_mov_b32 s{sTH}, 0x41000000
        s_mov_b32 s{sFLOOR}, 0
        v_mul_f32 v{al}, s{sFIRST}, v{al}
        v_mul_f32 v{al+2}, s{sFIRST}, v{al+2}
        s_mov_b32 s{sFIRST}, 1.0""")
        for qt in range(2):
            for i in range(8):
                a(f"v_sub_f32 v{vS+8*qt+i}, v{vS+8*qt+i}, v{t+qt}")
            for i in range(4):
                a(f"v_sub_f32 v{vNM+4*qt+i}, v{vNM+4*qt+i}, v{t+qt}")
            a(f"v_pk_mul_f32 {vr(vL0+2*qt, 2)}, {vr(vL0+2*qt, 2)}, {vr(al+2*qt,2)} op_sel_hi:[1,0]")
            for p in range(4):
                for i in range(0, 8, 2):
                    c = vO + (p*2 + qt)*8 + i
                    a(f"v_pk_mul_f32 {vr(c,2)}, {vr(c,2)}, {vr(al+2*qt,2)} op_sel_hi:[1,0]")
        a("s_branch L_tile_exp")

    def main(self):
        a = self.a
        self.prologue()
        a(f"s_cmp_ge_u32 s{sWAVE}, 4\ns_cbranch_scc1 L_pj\ns_branch L_at")
        self.subs()
        self.at_first()
        self.pj_first()
        self.pj_setup()
        self.at_rest()
        self.reduce()
        self.at_rare()
        self.pj_rest()
        a("L_end:\ns_endpgm")
        return a.text()


HEADER = open("cdna_kernels/" + NAME + ".s.ref").read().split("; Override launch geometry")[0]


def build(**kw):
    return HEADER + single(Gen(**kw).main(), 256, 512, LDS_BYTES, vgpr=256, accum=256, sgpr=102)


if __name__ == "__main__":
    kw = {}
    for x in sys.argv[2:]:
        k, v = x.split("=")
        kw[k] = int(v, 0)
    open(sys.argv[1], "w").write(build(**kw))
```

```python
import sys, struct
sys.path.insert(0, "tools")
from asmlib import *

KERNEL = NAME + "_kernel"
R0, R1, R2, WR, XR = 0, 32768, 65536, 98304, 131072
SYNC = WR + 24576
LDS_BYTES = 163840
PART = 73728
FLAG_OFF = 32 << 20
PROBE_OFF = 241 << 20
QSCALE = 1.4426950408889634 / 128 ** 0.5
SPIN = 1 << 16


def fbits(x):
    return "0x%08x" % struct.unpack("<I", struct.pack("<f", x))[0]


sWAVE, sLW, sHG, sTY, sB = 3, 4, 5, 6, 7
sK, sV, sX, sWQ, sWO, sWS = 8, 12, 16, 20, 24, 28
sKVOFF, sKVM0, sKVN = 32, 33, 34
sWCOL, sWCH, sWN = 35, 36, 37
sXBASE, sXCH, sXN = 38, 39, 40
sOCI, sOBASE, sROT = 41, 42, 43
sN, sM = 44, 45
sT0, sT1, sT2 = 46, 47, 48
sBUFSZ, sRINGEND, sWBUF, sOLW, sOBUF, sTHR, sKVCNT = 49, 50, 51, 52, 53, 54, 55
sTH, sFLOOR, sRPOS, sSTAGE = 56, 57, 58, 59
sRB = 60
sRET = 64
sFIRST, sQBUF, sSLOT = 66, 67, 68
sC8K = 67
sWB = 69
sBV, sPT = 72, 76
sOUTP, sDBGP = 80, 82
sTN, sLAST, sPADDR, sTBASE = 84, 85, 86, 87
sFADDR, sSPIN, sPROG, sOG = 88, 89, 90, 91

vKVO, vVVO, vXVO, vOVO, vWVO = 8, 12, 14, 16, 22
vWA, vWA0, vQW = 24, 28, 29
vOA0, vOA, vST = 24, 27, 30
vXA0, vXA, vZ = 31, 33, 35
vFA, vFB, vACC = 36, 72, 104
vPR, vDUM = 4, 5
vKA, vVA, vH, vT, vL0 = 24, 28, 38, 40, 76
vP, vS, vNM, vQ, vKF, vVF, vO = 44, 52, 68, 84, 116, 148, 180


def vr(i, n):
    return f"v[{i}:{i+n-1}]"


def sr(i, n=4):
    return f"s[{i}:{i+n-1}]"


class Lg:
    def __init__(self, a):
        self.a, self.q = a, []
    def issue(self, text, tag):
        if len(self.q) == 15:
            self.wait(self.q[0])
        self.a(text)
        self.q.append(tag)
    def wait(self, *tags):
        idx = max((i for i, t in enumerate(self.q) if t in tags), default=-1)
        if idx < 0:
            return
        self.a(f"s_waitcnt lgkmcnt({len(self.q) - idx - 1})")
        self.q = self.q[idx + 1:]
    def drain(self):
        self.a("s_waitcnt lgkmcnt(0)")
        self.q = []


DEFAULTS = dict(stamps=0, probes=0, vmprobe=2, thr=5, prefill=8, store0=4, store1=8, ipf=1, touch=5, xtouch=1,
                prio=7, gate=0, thrmask=0xffffffff, help=0, lead0=3, lead1=6, kvnt=1, pace=99, dbgst=0, ahead=-1, from_=0, bthr=63, polls=1, nap=2, sdw=1, alate=0, wqat=4, diag=0, hrot=0, early_n=0, ahead0=0, hold=0, hi=0, hj=0, hwg=8, xplan=3, xfrom=1, aidle=0, adist=4, outf=0, stp=3, gmajor=0, stp0=12, pkl=1, flagop=0, partop=0, defer=0, wpol=0, blk=0, dot=0)


class Gen:
    def __init__(self, **kw):
        self.a = Asm()
        self.o = dict(DEFAULTS)
        assert set(kw) <= set(DEFAULTS), kw
        self.o.update(kw)
        for k, v in self.o.items():
            setattr(self, k, v)
        self.kvflag = ("", " nt", " sc1 nt", " sc0 sc1 nt", " sc0 nt")[self.kvnt]
        self.wflag = ("", " sc1", " sc0 sc1", " sc0")[self.wpol]
        self.follow = (self.help and self.ahead < 0) or self.pace < 99
        self.NA = 4 + bool(self.help) + bool(self.follow)
        self.uid = 0
        assert self.pkl or not self.defer
        assert not (self.help and self.ahead < 0 and self.touch)

    def lab(self, s):
        self.uid += 1
        return f"L_{s}{self.uid}"

    def stamp(self, k):
        if self.stamps:
            self.a(f"s_memrealtime s[98:99]\ns_memtime s[100:101]\ns_waitcnt lgkmcnt(0)\nv_writelane_b32 v255, s98, {k}\nv_writelane_b32 v255, s100, {16+k}")

    def stamp_dump(self, role):
        if self.stamps:
            l = self.lab("sd")
            self.a(f"""s_cmp_lg_u32 s{sWAVE}, {4*role + self.sdw}
            s_cbranch_scc1 {l}
            s_lshl_b32 s{sT0}, s2, 8
            s_add_u32 s{sT0}, s{sT0}, {STAMP_OFF + 128*role}
            v_lshlrev_b32 v1, 2, v0
            s_mov_b64 exec, 0xffffffff
            buffer_store_dword v255, v1, {sr(sWS)}, s{sT0} offen
            s_mov_b64 exec, -1""")
            if self.dbgst:
                srd(self.a, sPT, sDBGP, 256)
                self.a(f"""s_cmp_lg_u32 s{sTY}, {self.dbgst - 1}
                s_cbranch_scc1 {l}
                v_not_b32 v11, v255
                v_cmp_eq_u32 vcc, 0, v0
                s_nop 1
                v_cndmask_b32 v11, v255, v11, vcc
                s_mov_b64 exec, {0x3ff if role else 0x1c00}
                buffer_atomic_umax v11, v1, {sr(sPT)}, 0 offen sc1
                s_mov_b64 exec, -1""")
            self.a(f"{l}:")

    def probe(self, k, first=False):
        if self.probes:
            if first:
                self.a(f"s_add_u32 s{sSLOT}, s{sSLOT}, 1")
            self.a(f"s_memtime s[98:99]\ns_getreg_b32 s100, hwreg(HW_REG_IB_STS)\ns_waitcnt lgkmcnt(0)\ns_mov_b32 m0, s{sSLOT}\nv_writelane_b32 v{248+k}, s98, m0")
            if k == self.vmprobe:
                self.a("v_writelane_b32 v251, s100, m0")

    def early(self, lane):
        if self.probes:
            self.a(f"s_memtime s[98:99]\ns_waitcnt lgkmcnt(0)\nv_writelane_b32 v255, s98, {lane}")

    def probe_dump(self):
        if self.probes:
            l = self.lab("pd")
            self.a(f"""s_cmp_lg_u32 s{sLW}, 0
            s_cbranch_scc1 {l}
            s_lshl_b32 s{sT0}, s2, 1
            s_lshr_b32 s{sT1}, s{sWAVE}, 2
            s_add_u32 s{sT0}, s{sT0}, s{sT1}
            s_lshl_b32 s{sT0}, s{sT0}, 11
            s_add_u32 s{sT0}, s{sT0}, {PROBE_OFF}
            v_lshlrev_b32 v1, 2, v0""")
            for k in range(8):
                self.a(f"buffer_store_dword v{248+k}, v1, {sr(sWS)}, s{sT0} offen offset:{256*k}")
            self.a(f"{l}:")

    def prio_set(self, bit, off=None):
        if self.prio >> bit & 1:
            self.a("s_setprio 1")
        elif off is not None and self.prio >> off & 1:
            self.a("s_setprio 0")

    def call(self, name):
        self.a(f"s_call_b64 {sr(sRET, 2)}, {name}")

    def ret(self):
        self.a(f"s_setpc_b64 {sr(sRET, 2)}")

    def spread(self, base, fill, start=0):
        n, m = len(base) - start, len(fill)
        j = 0
        for k, t in enumerate(base):
            while k >= start and j < m and j * n <= (k - start) * m:
                self.a(fill[j]); j += 1
            if callable(t): t()
            else: self.a(t)
        for t in fill[j:]:
            self.a(t)

    def other_srd(self, dst, karg_off, size):
        self.a(f"""s_load_dwordx2 {sr(dst, 2)}, s[0:1], {karg_off}
        s_waitcnt lgkmcnt(0)
        s_and_b32 s{dst+1}, s{dst+1}, 0xffff
        s_mov_b32 s{dst+2}, {size}
        s_mov_b32 s{dst+3}, 0x20000""")

    def spin(self, load, vdst, done):
        l, e = self.lab("sp"), self.lab("se")
        self.a(f"""s_mov_b32 s{sSPIN}, {SPIN}
        {l}:
        {load}
        s_waitcnt vmcnt(0) lgkmcnt(0)
        {done}
        s_cbranch_scc1 {e}
        s_sleep 1
        s_sub_u32 s{sSPIN}, s{sSPIN}, 1
        s_cmp_lg_u32 s{sSPIN}, 0
        s_cbranch_scc1 {l}
        {e}:""")

    def wait_init(self, vz, vd):
        srd(self.a, sPT, sDBGP, 256)
        self.a(f"s_lshl_b32 s{sT2}, s{sB}, 2")
        self.spin(f"buffer_load_dword v{vd}, v{vz}, {sr(sPT)}, s{sT2} offen offset:{128*bool(self.dbgst)} sc1", vd,
                  f"v_readfirstlane_b32 s{sT1}, v{vd}\ns_cmp_ge_u32 s{sT1}, 16")

    def prologue(self):
        a = self.a
        a("s_cmp_ge_u32 s2, 256\ns_cbranch_scc1 L_end")
        if self.probes or self.stamps:
            a("s_memtime s[96:97]" if self.probes else "s_memrealtime s[96:97]")
        a(f"""s_load_dwordx2 s[68:69], s[0:1], 96
        s_load_dwordx4 {sr(sOUTP)}, s[0:1], 80
        s_and_b32 s{sHG}, s2, 7
        s_lshr_b32 s{sTY}, s2, 3
        s_and_b32 s{sTY}, s{sTY}, 1
        s_lshr_b32 s{sB}, s2, 4
        s_mul_i32 s{sT0}, s{sTY}, 40
        s_add_u32 s0, s0, s{sT0}
        s_addc_u32 s1, s1, 0
        s_load_dwordx8 s[56:63], s[0:1], 0
        s_load_dwordx2 s[70:71], s[0:1], 32""")
        if self.ipf:
            a(f"""s_getpc_b64 {sr(sT0, 2)}
            L_pc:
            s_sub_u32 s{sT0}, s{sT0}, L_pc-{KERNEL}
            s_subb_u32 s{sT0+1}, s{sT0+1}, 0
            s_and_b32 s{sT2}, s2, 0xf8
            v_lshrrev_b32 v1, 6, v0
            v_add_lshl_u32 v6, v1, s{sT2}, 7
            v_min_u32 v6, L_end-{KERNEL}, v6
            v_mov_b32 v7, s{sT0+1}
            v_add_co_u32 v6, vcc, s{sT0}, v6
            s_nop 1
            v_addc_co_u32 v7, vcc, 0, v7, vcc
            global_load_dword v{vFA+32}, v[6:7], off""")
        a(f"""v_lshrrev_b32 v1, 6, v0
        v_and_b32 v0, 63, v0
        v_readfirstlane_b32 s{sWAVE}, v1
        v_lshrrev_b32 v2, 4, v0
        v_and_b32 v3, 15, v0
        s_and_b32 s{sLW}, s{sWAVE}, 3
        v_lshrrev_b32 v4, 3, v0
        v_and_b32 v5, 7, v0
        v_mul_u32_u24 v7, 1152, v4""")
        for n in range(2):
            a(f"""v_add_u32 v6, {4*n}, v2
            v_xor_b32 v6, v6, v5
            v_lshl_add_u32 v6, v6, 4, v7
            v_add_u32 v{vXVO+n}, {n*(8*1152-1024)}, v6""")
        a(f"""v_and_b32 v1, 1, v2
        v_lshlrev_b32 v1, 1, v1
        v_xor_b32 v1, v1, v5
        v_lshlrev_b32 v1, 4, v1
        v_lshl_add_u32 v{vWVO}, v4, 13, v1
        v_xor_b32 v{vWVO+1}, 64, v{vWVO}
        s_lshl_b32 s{sWCOL}, s{sHG}, 10
        s_lshl_b32 s{sT0}, s{sLW}, 7
        s_add_u32 s{sWCOL}, s{sWCOL}, s{sT0}
        s_mov_b32 s{sWN}, 0
        s_mul_i32 s{sT0}, s{sHG}, {self.hrot}
        s_add_u32 s{sT0}, s{sT0}, s{sB}
        s_mul_i32 s{sT1}, s{sT0}, 57
        s_lshr_b32 s{sT1}, s{sT1}, 9
        s_mul_i32 s{sT1}, s{sT1}, 9
        s_sub_u32 s{sXCH}, s{sT0}, s{sT1}
        s_mov_b32 s{sWCH}, s{sXCH}
        s_mul_i32 s{sXBASE}, s{sB}, 73728
        s_mul_i32 s{sT0}, s{sLW}, 18432
        s_add_u32 s{sXBASE}, s{sXBASE}, s{sT0}
        s_lshl_b32 s{sT0}, s{sB}, 3
        s_add_u32 s{sT0}, s{sT0}, s{sHG}
        s_lshl_b32 s{sPADDR}, s{sT0}, 7
        s_add_u32 s{sPADDR}, s{sPADDR}, {FLAG_OFF + 4096}
        s_lshl_b32 s{sFADDR}, s{sB}, 7
        s_add_u32 s{sFADDR}, s{sFADDR}, {FLAG_OFF}
        s_waitcnt lgkmcnt(0)""")
        srd(a, sX, 56, SIZE['A_x'])
        srd(a, sWQ, 62, SIZE['A_wq'])
        if self.probes or self.stamps:
            self.late_srds()
        if self.probes or self.stamps:
            a(f"s_mov_b32 s{sSLOT}, -1")
            for k in range(8):
                a(f"v_mov_b32 v{248+k}, 0")
            a("v_writelane_b32 v255, s96, 0")
            self.early(1)

    def late_srds(self):
        a = self.a
        a(f"""s_mov_b32 s{sK}, s58
        s_and_b32 s{sK+1}, s59, 0xffff
        s_lshl_b32 s{sK+2}, {SIZE['A_k']}, s{sTY}
        s_mov_b32 s{sK+3}, 0x20000
        s_mov_b32 s{sV}, s60
        s_and_b32 s{sV+1}, s61, 0xffff
        s_mov_b32 s{sV+2}, s{sK+2}
        s_mov_b32 s{sV+3}, 0x20000""")
        srd(a, sWO, 70, SIZE['A_wo'])
        srd(a, sWS, 68, SIZE['ws'])
        srd(a, sBV, 60, 0)

    def late_common(self):
        a = self.a
        a(f"""s_lshl_b32 s{sBUFSZ}, 16384, s{sTY}
        s_lshl_b32 s{sT0}, 2048, s{sTY}
        s_mul_i32 s{sKVM0}, s{sT0}, s{sLW}
        s_add_u32 s{sRINGEND}, s{sKVM0}, 98304
        s_lshl_b32 s{sT0}, s{sB}, 3
        s_add_u32 s{sT0}, s{sT0}, s{sHG}
        s_lshl_b32 s{sTBASE}, s{sT0}, 19
        s_add_u32 s{sT1}, s{sTY}, 18
        s_lshl_b32 s{sKVOFF}, s{sT0}, s{sT1}
        s_lshr_b32 s{sT0}, s{sLW}, 1
        s_lshl_b32 s{sT0}, s{sT0}, 17
        s_and_b32 s{sT1}, s{sLW}, 1
        s_lshl_b32 s{sT2}, s{sT1}, 12
        s_add_u32 s{sT0}, s{sT0}, s{sT2}
        s_add_u32 s{sTBASE}, s{sTBASE}, s{sT0}
        s_cmp_eq_u32 s{sTY}, 1
        s_cselect_b32 s{sT0}, s{sT0}, s{sKVM0}
        s_add_u32 s{sKVOFF}, s{sKVOFF}, s{sT0}
        s_lshl_b32 s{sT1}, s{sT1}, 3
        s_cmp_eq_u32 s{sTY}, 1
        s_cselect_b32 s{sT1}, 0, s{sT1}
        s_mov_b32 s{sKVN}, 0
        v_lshlrev_b32 v6, 8, v2
        v_add_u32 v7, s{sT1}, v2""")
        for n in range(4):
            a(f"""v_add_u32 v1, {4*n}, v7
            v_xor_b32 v1, v1, v3
            v_and_b32 v1, 15, v1
            v_lshl_add_u32 v{vKVO+n}, v1, 4, v6""")
        a(f"""v_lshlrev_b32 v1, 1, v2
        v_xor_b32 v1, v1, v3
        v_lshl_add_u32 v{vVVO}, v1, 4, v6
        v_xor_b32 v{vVVO+1}, 128, v{vVVO}""")

    def late_wo(self):
        a = self.a
        for n in range(6):
            a(f"""v_add_u32 v1, {64*n}, v0
            v_mul_u32_u24 v6, 2731, v1
            v_lshrrev_b32 v6, 16, v6
            v_mul_u32_u24 v7, 24, v6
            v_sub_u32 v1, v1, v7
            v_and_b32 v7, 6, v6
            v_xor_b32 v1, v1, v7
            v_lshlrev_b32 v1, 4, v1
            v_mul_u32_u24 v6, 1152, v6
            v_add_u32 v1, v1, v6
            v_subrev_u32 v{vOVO+n}, {1024*(n&3)}, v1""")
        a(f"""s_lshl_b32 s{sT0}, s{sHG}, 9
        s_lshl_b32 s{sT1}, s{sLW}, 4
        s_add_u32 s{sT0}, s{sT0}, s{sT1}
        s_mul_i32 s{sOBASE}, s{sT0}, 1152
        s_and_b32 s{sROT}, s{sB}, 3
        s_mul_i32 s{sOLW}, s{sLW}, 6144
        s_cmp_eq_u32 s{sTY}, 1
        s_mov_b32 s{sRB}, {WR}
        s_mov_b32 s{sRB+1}, {R2}
        s_cselect_b32 s{sRB+2}, {R0}, {R1}
        s_cselect_b32 s{sRB+3}, {R1}, {R0}""")

    def x_adv(self):
        self.a(f"""s_add_u32 s{sXN}, s{sXN}, 1
        s_add_u32 s{sXCH}, s{sXCH}, 1
        s_cmp_eq_u32 s{sXCH}, 9
        s_cselect_b32 s{sXCH}, 0, s{sXCH}""")

    def kv_items_b(self):
        f = self.kvflag
        items = []
        for n in range(8):
            t = ""
            if n == 0:
                t += f"s_mov_b32 m0, s{sKVM0}\ns_cmp_eq_u32 s{sKVN}, 15\n"
            if n == 4:
                t += f"s_add_u32 m0, s{sKVM0}, 16384\ns_add_u32 s{sKVM0}, s{sKVM0}, 32768\n"
            if self.bthr < 63:
                t += f"s_waitcnt vmcnt({self.bthr - 1})\n"
            if n < 4:
                t += f"buffer_load_dwordx4 v{vKVO+n}, {sr(sK)}, s{sKVOFF} offen offset:{1024*n}{f} lds\n"
            else:
                t += f"buffer_load_dwordx4 v{vVVO+(n&1)}, {sr(sV)}, s{sKVOFF} offen offset:{1024*(n-4)}{f} lds\n"
            if n == 0:
                t += f"s_cselect_b32 s{sKVCNT}, 131072, 0\ns_add_u32 s{sKVCNT}, s{sKVCNT}, 8192\ns_add_u32 s{sKVN}, s{sKVN}, 1\n"
            if n == 7:
                t += f"""s_add_u32 s{sKVOFF}, s{sKVOFF}, s{sKVCNT}
                s_cmp_ge_u32 s{sKVM0}, s{sRINGEND}
                s_cselect_b32 s{sKVCNT}, 98304, 0
                s_sub_u32 s{sKVM0}, s{sKVM0}, s{sKVCNT}"""
            items.append(t)
        return items

    def wo_addr(self, buf):
        return f"""s_add_u32 s{sT0}, s{sOCI}, s{sROT}
                s_and_b32 s{sT0}, s{sT0}, 3
                s_lshr_b32 s{sT1}, s{sOCI}, 2
                s_lshl_b32 s{sT1}, s{sT1}, 2
                s_add_u32 s{sT0}, s{sT0}, s{sT1}
                s_mul_i32 s{sT0}, s{sT0}, 73728
                s_add_u32 s{sT0}, s{sT0}, s{sOG}
                s_add_u32 s{sT1}, s{buf}, s{sOLW}
                s_mov_b32 m0, s{sT1}
                s_add_u32 s{sT0}, s{sT0}, s{sOBASE}"""

    def wo_adv(self):
        if self.gmajor:
            l, e = self.lab("wa"), self.lab("we")
            return f"""s_cmp_ge_u32 s{sOCI}, 4
                s_cbranch_scc1 {l}
                s_add_u32 s{sOG}, s{sOG}, 384
                s_cmp_eq_u32 s{sOG}, 1152
                s_cselect_b32 s{sOG}, 0, s{sOG}
                s_addc_u32 s{sOCI}, s{sOCI}, 0
                s_branch {e}
                {l}:
                s_add_u32 s{sOCI}, s{sOCI}, 1
                s_cmp_eq_u32 s{sOCI}, 8
                s_cselect_b32 s{sOCI}, 4, s{sOCI}
                s_cselect_b32 s{sT0}, 384, 0
                s_add_u32 s{sOG}, s{sOG}, s{sT0}
                {e}:"""
        return f"""s_add_u32 s{sOG}, s{sOG}, 384
                s_cmp_eq_u32 s{sOG}, 1152
                s_cselect_b32 s{sOG}, 0, s{sOG}
                s_addc_u32 s{sOCI}, s{sOCI}, 0"""

    def wo_items(self):
        items = []
        for n in range(6):
            t = self.wo_addr(sOBUF) + "\n" if n == 0 else ""
            if n == 4:
                t += f"s_add_u32 m0, s{sT1}, 4096\ns_nop 0\n"
            t += f"buffer_load_dwordx4 v{vOVO+n}, {sr(sWO)}, s{sT0} offen offset:{1024*(n&3)}{self.wflag} lds\n"
            if n == 5:
                t += self.wo_adv()
            items.append(t)
        return items

    def w_items(self, back=False):
        items = []
        for n in range(8):
            if n == 0:
                t = f"s_lshl_b32 s{sT0}, s{sWCH}, 19\ns_add_u32 s{sT0}, s{sT0}, s{sWCOL}\ns_mov_b32 m0, s{sWBUF}\n"
                t += f"s_sub_u32 s{sWCH}, s{sWCH}, 1\ns_cselect_b32 s{sWCH}, 8, s{sWCH}\n" if back else f"s_add_u32 s{sWCH}, s{sWCH}, 1\n"
            elif n == 4:
                t = f"s_add_u32 m0, s{sWBUF}, 4096\ns_add_u32 s{sT0}, s{sT0}, {65536+3072}\n"
            else:
                t = f"s_add_u32 s{sT0}, s{sT0}, {65536-1024}\n"
            t += f"buffer_load_dwordx4 v{vWVO+(n&1)}, {sr(sWQ)}, s{sT0} offen offset:{1024*(n&3)}{self.wflag} lds\n"
            if n == 7 and not back:
                t += f"""s_cmp_eq_u32 s{sWCH}, 9
                s_cselect_b32 s{sWCH}, 0, s{sWCH}
                s_add_u32 s{sWN}, s{sWN}, 1
                s_cmp_eq_u32 s{sWN}, 9
                s_cselect_b32 s{sT1}, 512, 0
                s_add_u32 s{sWCOL}, s{sWCOL}, s{sT1}"""
            items.append(t)
        return items

    def subs(self):
        a = self.a
        f = self.kvflag
        a(f"""F_x:
        s_lshl_b32 s{sT0}, s{sXCH}, 7
        s_add_u32 s{sT0}, s{sT0}, s{sXBASE}
        s_and_b32 s{sT1}, s{sXN}, 3
        s_lshl_b32 s{sT1}, s{sT1}, 2
        s_add_u32 s{sT1}, s{sT1}, s{sLW}
        s_lshl_b32 s{sT1}, s{sT1}, 11
        s_add_u32 m0, s{sT1}, {XR}""")
        self.x_adv()
        for n in range(2):
            a(f"buffer_load_dwordx4 v{vXVO+n}, {sr(sX)}, s{sT0} offen offset:{1024*n} lds")
        self.ret()
        a("F_w:")
        for t in self.w_items():
            a(t)
        self.ret()
        a(f"""F_kv:
        s_cmp_eq_u32 s{sTY}, 0
        s_cbranch_scc1 F_kv_a""")
        for t in self.kv_items_b():
            a(t)
        a(f"s_mov_b32 s{sKVCNT}, 8")
        self.ret()
        a(f"""F_kv_a:
        s_mov_b32 s{sKVCNT}, 0
        s_cmp_ge_u32 s{sKVN}, 32
        s_cbranch_scc1 F_kv_ret""")
        if self.follow:
            a(f"""s_cmp_eq_u32 s{sTHR}, 0
            s_cbranch_scc1 F_kv_go
            s_waitcnt vmcnt(0)
            v_readfirstlane_b32 s{sPROG}, v{vPR}""")
            if self.pace < 99:
                check = f"s_add_u32 s{sT1}, s{sPROG}, {self.pace}\ns_cmp_ge_u32 s{sT1}, s{sKVN}"
                a(check + "\ns_cbranch_scc1 F_kv_go")
                self.spin(f"buffer_load_dword v{vPR}, v{vZ}, {sr(sWS)}, s{sPADDR} offen sc1", vPR,
                          f"v_readfirstlane_b32 s{sPROG}, v{vPR}\n" + check)
            a("F_kv_go:")
        a(f"""s_mov_b32 m0, s{sKVM0}
        s_mov_b32 s{sKVCNT}, 4""")
        if self.thr < 63:
            a(f"s_lshr_b32 s{sT1}, {self.thrmask}, s{sKVN}\ns_and_b32 s{sT1}, s{sT1}, s{sTHR}")
        for n in range(4):
            if self.thr < 63:
                l = self.lab("thr")
                a(f"s_cmp_eq_u32 s{sT1}, 0\ns_cbranch_scc1 {l}\ns_waitcnt vmcnt({self.thr-1})\n{l}:")
            if n == 2:
                a(f"s_add_u32 m0, s{sKVM0}, 8192\ns_add_u32 s{sKVN}, s{sKVN}, 1")
            if n < 2:
                a(f"buffer_load_dwordx4 v{vKVO+n}, {sr(sK)}, s{sKVOFF} offen offset:{1024*n}{f} lds")
            else:
                a(f"buffer_load_dwordx4 v{vVVO+(n&1)}, {sr(sV)}, s{sKVOFF} offen offset:{1024*(n-2)}{f} lds")
        a(f"""s_add_u32 s{sKVOFF}, s{sKVOFF}, 8192
        s_add_u32 s{sKVM0}, s{sKVM0}, 16384
        s_cmp_ge_u32 s{sKVM0}, s{sRINGEND}
        s_cselect_b32 s{sT0}, 98304, 0
        s_sub_u32 s{sKVM0}, s{sKVM0}, s{sT0}""")
        if self.follow or self.help:
            a(f"s_cmp_eq_u32 s{sTHR}, 0\ns_cbranch_scc1 F_kv_ret")
        if self.help:
            if self.ahead < 0:
                a(f"""s_add_u32 s{sT1}, s{sPROG}, {self.lead0}
                s_max_u32 s{sTN}, s{sTN}, s{sT1}
                s_add_u32 s{sT1}, s{sPROG}, {self.lead1}
                s_min_u32 s{sT1}, s{sT1}, 31
                s_cmp_le_u32 s{sTN}, s{sT1}
                s_cselect_b32 s{sLAST}, s{sTN}, s{sLAST}
                s_addc_u32 s{sTN}, s{sTN}, 0""")
            else:
                a(f"""s_cmp_lt_u32 s{sKVN}, {self.early_n}
                s_cselect_b32 s{sLAST}, {self.ahead0}, {self.ahead}
                s_add_u32 s{sLAST}, s{sKVN}, s{sLAST}
                s_min_u32 s{sLAST}, s{sLAST}, 31
                s_max_u32 s{sLAST}, s{sLAST}, {self.from_}""")
            a(f"""s_and_b32 s{sT0}, s{sLAST}, 15
            s_lshl_b32 s{sT0}, s{sT0}, 13
            s_lshr_b32 s{sT1}, s{sLAST}, 4
            s_lshl_b32 s{sT1}, s{sT1}, 18
            s_add_u32 s{sT0}, s{sT0}, s{sT1}
            s_add_u32 s{sT0}, s{sT0}, s{sTBASE}
            v_lshlrev_b32 v1, 7, v0
            s_mov_b64 exec, {(1 << self.help) - 1}
            buffer_load_dword v{vDUM}, v1, {sr(sBV)}, s{sT0} offen offset:{4096 - 128*self.help}
            s_mov_b64 exec, -1""")
        if self.follow:
            a(f"buffer_load_dword v{vPR}, v{vZ}, {sr(sWS)}, s{sPADDR} offen sc1")
        a("F_kv_ret:")
        self.ret()
        a("F_wo:")
        for t in self.wo_items():
            a(t)
        self.ret()

    def kvwait(self):
        l = self.lab("kw")
        self.a(f"""s_waitcnt vmcnt(8)
        s_cmp_eq_u32 s{sKVCNT}, 8
        s_cbranch_scc1 {l}
        s_waitcnt vmcnt({self.NA})
        s_cmp_eq_u32 s{sKVCNT}, 4
        s_cbranch_scc1 {l}
        s_waitcnt vmcnt(0)
        {l}:""")

    def pretouch_wq(self, dst):
        if not self.touch:
            return
        a = self.a
        l = self.lab("pt")
        a(f"s_cmp_eq_u32 s{sTY}, 1\ns_cbranch_scc1 {l}")
        self.other_srd(sPT, 64, SIZE['B_wq'])
        a(f"""s_lshl_b32 s{sT0}, s{sB}, 2
        s_add_u32 s{sT0}, s{sT0}, s{sLW}
        s_mul_i32 s{sT0}, s{sT0}, {9*8192}
        s_lshl_b32 s{sT1}, s{sHG}, 10
        s_add_u32 s{sT0}, s{sT0}, s{sT1}
        v_lshrrev_b32 v1, 2, v0
        v_and_b32 v6, 3, v0
        v_lshlrev_b32 v6, 7, v6
        v_lshl_add_u32 v1, v1, 13, v6
        s_mov_b32 exec_hi, 15
        buffer_load_dword v{dst}, v1, {sr(sPT)}, s{sT0} offen offset:512""")
        if self.touch & 2:
            a(f"buffer_load_dword v{dst+1}, v1, {sr(sWQ)}, s{sT0} offen offset:512")
        a(f"s_mov_b64 exec, -1\n{l}:")

    def pretouch_wo(self, first):
        if not self.touch:
            return
        a = self.a
        l = self.lab("pt")
        a(f"s_cmp_eq_u32 s{sTY}, 1\ns_cbranch_scc1 {l}")
        if first:
            self.other_srd(sPT, 72, SIZE['B_wo'])
            a(f"""s_lshl_b32 s{sT0}, s{sB}, 2
            s_add_u32 s{sT0}, s{sT0}, s{sLW}
            s_mul_i32 s{sT0}, s{sT0}, 9216
            s_mul_i32 s{sTN}, s{sHG}, 589824
            s_add_u32 s{sTN}, s{sTN}, s{sT0}""")
        else:
            a(f"v_lshlrev_b32 v1, 7, v0\ns_mov_b64 exec, 0xfff\nbuffer_load_dword v{vFA+32}, v1, {sr(sPT)}, s{sTN} offen")
            if self.touch & 2:
                a(f"buffer_load_dword v{vFA+33}, v1, {sr(sWO)}, s{sTN} offen")
            a(f"s_mov_b64 exec, -1\ns_add_u32 s{sTN}, s{sTN}, 1536")
        a(f"{l}:")

    def rdA(self, reg, areg, mt, off0, off1, tag):
        return [(f"ds_read_b64_tr_b16 {vr(reg + 2*j, 2)}, v{areg+mt} offset:{o}", tag + (j,)) for j, o in enumerate((off0, off1))]

    def rdB(self, ks, qt):
        return (f"ds_read_b128 {vr(vFB + (ks*4+qt)*4, 4)}, v{vXA+ks} offset:{2048*qt}", ("B", ks, qt))

    def mfma(self, acc, mt, qt, areg, ks):
        c = vr(acc + (mt*4+qt)*4, 4)
        return f"v_mfma_f32_16x16x32_bf16 {c}, {vr(areg, 4)}, {vr(vFB + (ks*4+qt)*4, 4)}, {c}"

    def qA(self, ks, mt):
        return vFA + (ks*4 + mt)*4

    def q_rdA(self, ks, mt):
        return self.rdA(self.qA(ks, mt), vWA, mt, 32*ks*128, (32*ks+4)*128, ("A", ks, mt))

    def q_finalize(self, acc, pending):
        a = self.a
        a(f"s_mov_b32 s{sT2}, {fbits(QSCALE)}")
        mul, cvt, put = [], [], []
        for mt in range(4):
            for qt in range(4):
                c = acc + (mt*4+qt)*4
                mul.append("\n".join(f"v_mul_f32 v{c+r}, s{sT2}, v{c+r}" for r in range(4)))
                cvt.append(f"v_cvt_pk_bf16_f32 v{c}, v{c}, v{c+1}\nv_cvt_pk_bf16_f32 v{c+1}, v{c+2}, v{c+3}")
                put.append((f"v_xor_b32 v1, {32*mt}, v{vQW}\n" if qt == 0 else "") + f"ds_write_b64 v1, {vr(c,2)} offset:{2048*qt}")
        work = ["\n".join(([put[k-2]] if 2 <= k < 18 else []) + ([cvt[k-1]] if 1 <= k < 17 else []) + ([mul[k]] if k < 16 else [])) for k in range(18)]
        lead = len(pending) - 16 + 5
        for k, t in enumerate(pending):
            a(t)
            if k + 1 == lead:
                a("s_nop 3")
            if k + 1 >= lead:
                a(work.pop(0))
        for t in work:
            a(t)
        a("s_waitcnt lgkmcnt(0)")

    ORDER4 = [(mt, qt) for mt in range(4) for qt in range(4)]
    ORDER3 = [(mt, qt) for mt in range(3) for qt in range(4)]
    NEXTX = [f"s_add_u32 s{sN}, s{sN}, 1\ns_and_b32 s{sT0}, s{sN}, 3\ns_lshl_b32 s{sT0}, s{sT0}, 13",
             f"v_add_u32 v{vXA}, s{sT0}, v{vXA0}", f"v_add_u32 v{vXA+1}, s{sT0}, v{vXA0+1}"]

    def pj_first(self):
        a = self.a
        ACC0 = vACC
        a("L_pj:")
        if not (self.probes or self.stamps):
            self.late_srds()
        a(f"""v_mov_b32 v{vZ}, 0
        s_cmp_lg_u32 s{sLW}, 0
        s_cbranch_scc1 L_pj_a
        s_lshl_b32 s{sT0}, s{sTY}, 11
        s_lshl_b32 s{sT1}, s{sHG}, 2
        s_add_u32 s{sT0}, s{sT0}, s{sT1}
        s_add_u32 s{sT0}, s{sT0}, s{sFADDR}
        s_cmp_eq_u32 s{sTY}, 1
        s_cselect_b32 s{sT1}, s{sPADDR}, s{sT0}
        s_mov_b64 exec, 1
        buffer_store_dword v{vZ}, v{vZ}, {sr(sWS)}, s{sT0} offen sc1
        buffer_store_dword v{vZ}, v{vZ}, {sr(sWS)}, s{sT1} offen sc1
        s_mov_b64 exec, -1
        L_pj_a:""")
        self.early(6)
        for i in list(range(vKVO, vXVO)) + list(range(vOVO, vWVO)):
            a(f"v_mov_b32 v{i}, 0")
        a(f"""s_lshl_b32 s{sT2}, s{sLW}, 13
        s_mov_b32 s{sWB}, {R1}
        s_mov_b32 s{sWB+1}, {R2}
        s_mov_b32 s{sWB+2}, {WR}
        v_lshrrev_b32 v1, 2, v3
        v_lshl_add_u32 v6, v2, 3, v1
        v_lshrrev_b32 v1, 1, v1
        v_and_b32 v7, 1, v2
        v_lshl_or_b32 v1, v7, 1, v1
        v_and_b32 v7, 3, v0
        v_lshlrev_b32 v7, 3, v7
        v_lshl_add_u32 v6, v6, 7, v7
        v_lshl_add_u32 v6, v1, 5, v6
        v_add_u32 v{vWA0}, s{sT2}, v6
        v_add_u32 v{vWA}, {WR}, v{vWA0}""")
        for mt in range(1, 4):
            a(f"v_xor_b32 v{vWA+mt}, {32*mt}, v{vWA}")
        a(f"""v_lshrrev_b32 v1, 1, v3
        v_xor_b32 v6, v1, v2
        v_lshlrev_b32 v6, 4, v6
        v_lshl_add_u32 v6, v3, 7, v6
        v_add_u32 v{vXA0}, {XR}, v6
        v_xor_b32 v{vXA0+1}, 64, v{vXA0}
        v_mov_b32 v{vXA}, v{vXA0}
        v_mov_b32 v{vXA+1}, v{vXA0+1}
        v_lshrrev_b32 v6, 1, v2
        v_xor_b32 v6, v6, v1
        v_lshlrev_b32 v6, 4, v6
        v_lshl_add_u32 v6, v3, 7, v6
        v_and_b32 v7, 1, v2
        v_lshl_add_u32 v6, v7, 3, v6
        v_add_u32 v6, s{sT2}, v6
        v_add_u32 v{vQW}, {R2}, v6""")
        for i in range(64):
            a(f"v_mov_b32 v{ACC0+i}, 0")
        for i in range(16):
            a(f"v_mov_b32 v{vFA+16+i}, 0\nv_mov_b32 v{vFB+16+i}, 0")
        self.early(4)
        srd(a, sPT, sDBGP, 256)
        a(f"""v_mov_b32 v1, 1
        s_lshl_b32 s{sT0}, s{sB}, 2
        s_mov_b32 s{sN}, 0
        s_waitcnt vmcnt(0)
        s_cmp_lg_u32 s{sLW}, 0
        s_cbranch_scc1 L_q0
        s_mov_b64 exec, 1
        buffer_atomic_add v1, v{vZ}, {sr(sPT)}, s{sT0} offen offset:{128*bool(self.dbgst)} sc1
        s_mov_b64 exec, -1""")
        nextbuf = [f"v_add_u32 v{vWA}, s{sWB}, v{vWA0}\ns_mov_b32 s{sT0}, s{sWB}", f"v_xor_b32 v{vWA+1}, 32, v{vWA}\ns_mov_b32 s{sWB}, s{sWB+1}",
                   f"v_xor_b32 v{vWA+2}, 64, v{vWA}\ns_mov_b32 s{sWB+1}, s{sWB+2}", f"v_xor_b32 v{vWA+3}, 96, v{vWA}\ns_mov_b32 s{sWB+2}, s{sT0}"]
        a("L_q0:\ns_barrier")
        self.probe(0, True)
        lg = Lg(a)
        rd = lambda ks: [self.rdB(ks, 0)] + self.q_rdA(ks, 0) + [self.rdB(ks, q) for q in (1, 2, 3)] + sum((self.q_rdA(ks, m) for m in (1, 2, 3)), [])
        r0 = rd(0)
        plan = {k: [] for k in range(-1, 32)}
        for i, x in enumerate(r0):
            plan[i // 2 - 1].append(x)
        for pos, m in ((6, 0), (8, 1), (12, 2), (16, 3)):
            for j, x in enumerate(self.q_rdA(1, m)):
                plan[pos + j].append(x)
        for q in range(4):
            plan[18 + q].append(self.rdB(1, q))
        tail = nextbuf + self.NEXTX
        for x in plan[-1]:
            lg.issue(*x)
        for k in range(32):
            mt, qt = self.ORDER4[k & 15]
            if k == 16:
                lg.wait(*[tag for _, tag in r0])
            a(self.mfma(ACC0, mt, qt, self.qA(1 - (k >> 4), mt), 1 - (k >> 4)))
            for x in plan[k]:
                lg.issue(*x)
            if k >= 22 and tail:
                a(tail.pop(0))
            if k == 30:
                lg.drain()
                a(f"s_cmp_eq_u32 s{sN}, 1")
        self.probe(1)
        a("s_cbranch_scc1 L_q0_setup")
        if self.wqat > 1:
            a(f"s_cmp_eq_u32 s{sN}, {self.wqat}\ns_cbranch_scc1 L_q0_touch")
        a(f"s_cmp_lt_u32 s{sN}, 9\ns_cbranch_scc1 L_q0")
        self.early(10)
        self.q_finalize(ACC0, [self.mfma(ACC0, mt, qt, self.qA(1, mt), 1) for mt, qt in self.ORDER4])
        self.early(12)
        a(f"v_xor_b32 v{vQW}, {R2 ^ WR}, v{vQW}")
        self.stamp(1)
        a("s_branch L_pj_rest")

    def pj_setup(self):
        a = self.a
        a("L_q0_setup:")
        self.late_common()
        self.late_wo()
        a(f"""s_cmp_eq_u32 s{sTY}, 1
        s_cselect_b32 s{sKVN}, 2, {self.adist}
        s_lshl_b32 s{sT0}, s{sKVN}, 13
        s_add_u32 s{sKVOFF}, s{sKVOFF}, s{sT0}
        s_mul_i32 s{sT0}, s{sKVN}, s{sBUFSZ}
        s_add_u32 s{sKVM0}, s{sKVM0}, s{sT0}
        s_mov_b32 s{sTHR}, 1
        s_add_u32 s{sWCOL}, s{sWCOL}, 512
        s_add_u32 s{sWCH}, s{sWCH}, 7
        s_sub_u32 s{sT0}, s{sWCH}, 9
        s_cselect_b32 s{sWCH}, s{sWCH}, s{sT0}
        s_lshl_b32 s{sT2}, s{sLW}, 13
        s_add_u32 s{sWBUF}, s{sT2}, {WR}
        s_mov_b32 s{sXN}, 4
        s_add_u32 s{sXCH}, s{sXCH}, 4
        s_sub_u32 s{sT0}, s{sXCH}, 9
        s_cselect_b32 s{sXCH}, s{sXCH}, s{sT0}
        s_mov_b32 s{sOCI}, 0
        s_mov_b32 s{sOG}, 0
        s_mov_b32 s{sOBUF}, {WR}
        s_mov_b32 s{sTN}, 0
        s_mov_b32 s{sLAST}, 2
        v_mov_b32 v{vPR}, 0""")
        for i in range(64):
            a(f"v_mov_b32 v{vACC+64+i}, 0")
        if self.wqat > 1:
            a("s_branch L_q0\nL_q0_touch:")
        self.pretouch_wq(vFA + 34)
        a("s_branch L_q0")

    def stream_slot(self, ty, rdA, MT, acc, aset, loads, after, readB=True):
        e = self.a
        e("s_barrier")
        self.probe(0, True)
        lg = Lg(e)
        for t, tag in rdA:
            lg.issue(t, tag)
        lg.drain()
        self.probe(1)
        e("s_barrier")
        self.probe(2)
        for ks in (0, 1):
            for q in range(4 if readB else 0):
                lg.issue(*self.rdB(ks, q))
        if loads is None:
            return
        def mk(ks, mt, qt):
            def f():
                lg.wait(("B", ks, qt))
                e(self.mfma(acc, mt, qt, aset(ks, mt), ks))
            return f
        mm = [mk(ks, mt, qt) for ks in (0, 1) for mt in range(MT) for qt in range(4)]
        self.spread(mm, loads + (self.kv_items_b() if ty else []))
        self.probe(6)
        if not ty:
            if getattr(self, "extra", None):
                l = self.lab("tx")
                e(f"s_cmp_ge_u32 s{sN}, 15\ns_cbranch_scc1 {l}")
                self.pretouch_wo(False)
                e(f"{l}:")
                self.extra = None
            self.call("F_kv")
        for t in after:
            e(t)

    def store_items(self, G):
        acc = vACC + 48 * G
        items = []
        for qd in range(6):
            c = acc + 8*qd
            t = "\n".join(f"v_cvt_pk_bf16_f32 v{c+i}, v{c+2*i}, v{c+2*i+1}" for i in range(4))
            t += f"\nbuffer_store_dwordx4 {vr(c,4)}, v{vST}, {sr(sWS)}, s{sM} offen offset:{1024*(qd&3)} {('sc1', 'sc1 nt', 'sc0 sc1')[self.partop]}"
            if qd in (3, 5):
                t += f"\ns_add_u32 s{sM}, s{sM}, {4096 if qd == 3 else 24576-4096}"
            items.append(t)
        return items

    def pj_rest(self):
        a = self.a
        ACC1 = vACC + 64
        qrd = sum((self.q_rdA(ks, m) for ks in (0, 1) for m in range(4)), [])
        a(f"L_pj_rest:\nv_mov_b32 v{vXA}, v{vXA0}\nv_mov_b32 v{vXA+1}, v{vXA0+1}")
        self.prio_set(1)
        prevx = [f"s_add_u32 s{sN}, s{sN}, 1\ns_sub_u32 s{sT0}, 9, s{sN}\ns_and_b32 s{sT0}, s{sT0}, 3\ns_lshl_b32 s{sT0}, s{sT0}, 13"] + self.NEXTX[1:]
        a(f"s_cmp_eq_u32 s{sTY}, 1\ns_cbranch_scc1 L_q1_1")
        if self.help:
            self.other_srd(sBV, 56, SIZE['B_v'])
        if self.follow:
            self.wait_init(vZ, vDUM)
        if self.aidle:
            self.pretouch_wo(True)
            a(f"s_mov_b32 s{sM}, 6\nL_idle_a:\ns_barrier")
            self.probe(0, True)
            a("s_barrier")
            if self.aidle == 1:
                self.pretouch_wo(False)
            self.call("F_kv")
            self.kvwait()
            a(f"s_sub_u32 s{sM}, s{sM}, 1\ns_cmp_lg_u32 s{sM}, 0\ns_cbranch_scc1 L_idle_a")
        for ty in (0, 1):
            nk = 8 if ty else self.NA
            a(f"L_q1_{ty}:")
            if self.aidle == 2 and not ty:
                self.extra = "touch"
            self.stream_slot(ty, qrd, 4, ACC1, self.qA, self.w_items(True), prevx)
            a(f"s_sub_u32 s{sT0}, s{sN}, 11\ns_cmp_ge_u32 s{sT0}, 5\ns_cbranch_scc1 L_q1_nox{ty}")
            self.call("F_x")
            a(f"""s_sub_u32 s{sXN}, s{sXN}, 2
            s_add_u32 s{sXCH}, s{sXCH}, 7
            s_sub_u32 s{sT0}, s{sXCH}, 9
            s_cselect_b32 s{sXCH}, s{sXCH}, s{sT0}""")
            self.probe(4)
            a(f"s_waitcnt vmcnt({nk + 2})")
            self.probe(5)
            a(f"s_branch L_q1_{ty}\nL_q1_nox{ty}:")
            self.probe(4)
            a(f"s_waitcnt vmcnt({nk})")
            self.probe(5)
            a(f"s_cmp_lt_u32 s{sN}, 17\ns_cbranch_scc1 L_q1_{ty}")
            if not ty:
                a("s_branch L_q1_last")
        a("L_q1_last:")
        self.stream_slot(0, qrd, 4, ACC1, self.qA, None, None)
        self.call("F_kv")
        a("s_waitcnt lgkmcnt(0)")
        self.q_finalize(ACC1, [self.mfma(ACC1, mt, qt, self.qA(ks, mt), ks) for ks in (0, 1) for mt, qt in self.ORDER4])
        self.kvwait()
        self.stamp(2)
        a("s_barrier")
        self.probe(0, True)
        a("s_barrier")
        if not self.aidle:
            self.pretouch_wo(True)
        self.call("F_kv")
        for i in range(144):
            a(f"v_mov_b32 v{vACC+i}, 0")
        a(f"""v_lshrrev_b32 v6, 2, v0
        v_bfe_u32 v1, v6, 1, 2
        v_and_b32 v7, 3, v0
        v_lshlrev_b32 v7, 3, v7
        v_mul_u32_u24 v6, 384, v6
        v_add_u32 v6, v6, v7
        s_mul_i32 s{sT0}, s{sLW}, 3""")
        for nt in range(3):
            a(f"""s_add_u32 s{sT1}, s{sT0}, {nt}
            v_xor_b32 v7, s{sT1}, v1
            v_lshl_add_u32 v{vOA0+nt}, v7, 5, v6
            v_add_u32 v{vOA+nt}, {WR}, v{vOA0+nt}""")
        a(f"""s_lshl_b32 s{sT0}, s{sTY}, 4
        s_add_u32 s{sT0}, s{sT0}, s{sB}
        s_lshl_b32 s{sT0}, s{sT0}, 3
        s_add_u32 s{sT0}, s{sT0}, s{sHG}
        s_mul_i32 s{sM}, s{sT0}, {PART}
        s_add_u32 s{sM}, s{sM}, s{sOLW}
        v_lshlrev_b32 v{vST}, 4, v0""")
        self.kvwait()
        if self.aidle:
            a(f"s_cmp_eq_u32 s{sTY}, 0\ns_cbranch_scc1 L_kvl_done")
        a(f"s_mov_b32 s{sN}, 6\nL_kvl:\ns_barrier")
        self.probe(0, True)
        a("s_barrier")
        self.probe(2)
        if not self.aidle:
            self.pretouch_wo(False)
        self.call("F_kv")
        self.probe(4)
        self.kvwait()
        self.probe(5)
        a(f"""s_sub_u32 s{sN}, s{sN}, 1
        s_cmp_lg_u32 s{sN}, 0
        s_cbranch_scc1 L_kvl
        L_kvl_done:
        s_barrier""")
        self.probe(0, True)
        a("s_barrier")
        self.call("F_wo")
        self.call("F_kv")
        self.kvwait()
        self.stamp(3)
        oA = lambda c, ks, mt: vFA + 4*mt + (0 if ks == 0 else 12 + 12*(c & 1))
        o_rdA = lambda c, ks, mt: self.rdA(oA(c, ks, mt), vOA, mt, 32*ks*384, (32*ks+16)*384, ("A", ks, mt))
        xa_step = [f"s_add_u32 s{sN}, s{sN}, 1\ns_add_u32 s{sT0}, s{sROT}, s{sN}\ns_and_b32 s{sT0}, s{sT0}, 3\ns_lshl_b32 s{sT0}, s{sT0}, 13",
                   f"v_add_u32 v{vXA}, s{sT0}, v{vXA0}", f"v_add_u32 v{vXA+1}, s{sT0}, v{vXA0+1}"]
        a(f"s_mov_b32 s{sN}, -1")
        for t in xa_step:
            a(t)
        ord_ = sum((o_rdA(0, ks, m) for ks in (0, 1) for m in range(3)), [])
        a(f"s_cmp_eq_u32 s{sTY}, 1\ns_cbranch_scc1 L_o2_1")
        for ty in (0, 1):
            a(f"L_o2_{ty}:")
            for G in range(3):
                self.stream_slot(ty, ord_, 3, vACC + 48*G, lambda ks, mt: oA(0, ks, mt), self.wo_items(), xa_step if G == 0 else [], G == 0)
                self.probe(4)
                if ty:
                    a("s_waitcnt vmcnt(8)")
                else:
                    self.kvwait()
                self.probe(5)
            a(f"s_cmp_lt_u32 s{sN}, 4\ns_cbranch_scc1 L_o2_{ty}")
            if not ty:
                a("s_branch L_o2_done")
        a("L_o2_done:")
        self.stamp(4)
        if self.probes:
            a(f"s_add_u32 s{sSLOT}, s{sSLOT}, 3")
        a("s_barrier\ns_barrier")
        if self.touch & 4:
            a(f"""s_cmp_eq_u32 s{sTY}, 1
            s_cbranch_scc1 L_t38
            s_lshl_b32 s{sT0}, s{sB}, 2
            s_add_u32 s{sT0}, s{sT0}, s{sLW}
            s_mul_i32 s{sT0}, s{sT0}, 4608
            s_mul_i32 s{sT1}, s{sHG}, 589824
            s_add_u32 s{sT0}, s{sT0}, s{sT1}
            s_add_u32 s{sT0}, s{sT0}, 294912
            v_lshlrev_b32 v1, 7, v0
            s_mov_b32 exec_hi, 15
            buffer_load_dword v{vDUM}, v1, {sr(sWO)}, s{sT0} offen
            s_mov_b64 exec, -1
            L_t38:""")
        self.call("F_kv")
        a(f"""v_lshl_add_u32 v1, v0, 2, s{sRB}
        v_cmp_gt_u32 vcc, 6, v0
        s_and_saveexec_b64 {sr(sT0, 2)}, vcc
        s_cmp_lg_u32 s{sLW}, 0
        s_cbranch_scc1 L_nz
        ds_write_b32 v1, v{vZ} offset:{SYNC - WR}
        L_nz:
        s_mov_b64 exec, -1
        s_waitcnt lgkmcnt(0)""")
        self.kvwait()
        srd(a, sPT, sDBGP, 256)
        a(f"""s_lshl_b32 s{sT2}, s{sB}, 2
        s_barrier
        s_barrier
        buffer_load_dword v{vDUM}, v{vZ}, {sr(sPT)}, s{sT2} offen offset:{128*bool(self.dbgst)} sc1
        s_mov_b32 s{sOBUF}, s{sRB+1}""")
        self.call("F_wo")
        a(f"""s_waitcnt vmcnt(6)
        v_readfirstlane_b32 s{sT1}, v{vDUM}
        s_cmp_ge_u32 s{sT1}, 16
        s_cbranch_scc1 L_init_ok""")
        self.wait_init(vZ, vDUM)
        a(f"L_init_ok:\ns_barrier\ns_barrier\ns_mov_b32 s{sOBUF}, s{sRB+2}")
        self.call("F_wo")
        if self.prio & 4:
            a("s_setprio 0")
        self.stamp(5)
        st = []
        for c in range(12):
            grp = (lambda c: c >> 2) if self.gmajor else (lambda c: c % 3)
            acc, prev = vACC + 48 * grp(c), vACC + 48 * grp(max(c - 1, 0))
            newB = c % 3 == 0 or self.gmajor
            lg = Lg(a)
            if c == 0:
                for ks in (0, 1):
                    for m in range(3):
                        for x in o_rdA(0, ks, m):
                            lg.issue(*x)
                lg.drain()
            a("s_barrier")
            self.probe(0, True)
            b0 = [self.rdB(0, q) for q in range(4)] if newB else []
            r0 = b0[:1] + o_rdA(c, 0, 0) + b0[1:] + o_rdA(c, 0, 1) + o_rdA(c, 0, 2)
            ra1 = sum((o_rdA(c, 1, m) for m in range(3)), [])
            if c == 0:
                r0, ra1 = b0 + [self.rdB(1, q) for q in range(4)], []
            plan = {k: [] for k in range(-1, 24)}
            for i, x in enumerate(r0):
                plan[(i // 2 - 1 if newB else i - 1) if c else -1].append(x)
            for i, x in enumerate(ra1):
                plan[5 + i if c else 12 + i // 2].append(x)
            for q in range(4 if newB and c else 0):
                plan[12 + q].append(self.rdB(1, q))
            fill = [f"v_add_u32 v{vOA+nt}, s{sRB + ((c+1)&3)}, v{vOA0+nt}" for nt in range(3)] + (xa_step if newB else [])
            for x in plan[-1]:
                lg.issue(*x)
            for k in range(0 if c else 12, 24):
                mt, qt = self.ORDER3[k % 12]
                if k == 12 and c:
                    lg.wait(*[tag for _, tag in r0])
                elif not c:
                    lg.wait(("A", 0, mt, 0), ("A", 0, mt, 1), ("B", 0, qt))
                a(self.mfma(prev, mt, qt, oA(c - 1, 1, mt), 1) if k < 12 else self.mfma(acc, mt, qt, oA(c, 0, mt), 0))
                for x in plan[k]:
                    lg.issue(*x)
                if k >= (16 if c else 19) and fill:
                    a(fill.pop(0))
                    if not c and fill:
                        a(fill.pop(0))
                if self.gmajor:
                    if k == 11 and c in (self.store0, self.store1):
                        st += self.store_items(int(c == self.store1))
                    step = self.stp0 if c < self.store1 else self.stp
                else:
                    if c >= 10 and k == 9:
                        st += self.store_items(c - 10)
                    step = self.stp
                if st and k % step == step - 1:
                    a(st.pop(0))
                if k == 22:
                    lg.drain()
            assert not fill
            if c < 2:
                a(f"s_waitcnt vmcnt({6 - 6*c})")
            if c in (4, 8):
                self.stamp(6 + (c >> 3))
        for k, (mt, qt) in enumerate(self.ORDER3):
            a(self.mfma(vACC + 96, mt, qt, oA(11, 1, mt), 1))
            if k == 9:
                st += self.store_items(2)
            if st and k % 2 == 1:
                a(st.pop(0))
        for t in st:
            a(t)
        self.stamp(8)
        a(f"""v_mov_b32 v1, {SYNC}
        v_mov_b32 v6, 1
        s_lshl_b32 s{sT0}, s{sTY}, 11
        s_lshl_b32 s{sT1}, s{sHG}, 2
        s_add_u32 s{sT0}, s{sT0}, s{sT1}
        s_add_u32 s{sT0}, s{sT0}, s{sFADDR}
        s_mov_b64 exec, 1""")
        for k in range(1):
            a(f"""s_waitcnt vmcnt(0)
            ds_add_rtn_u32 v7, v1, v6 offset:{4*k}
            s_waitcnt lgkmcnt(0)
            v_readfirstlane_b32 s{sT1}, v7
            s_cmp_lg_u32 s{sT1}, 3
            s_cbranch_scc1 L_nf{k}
            {("buffer_store_dword", "buffer_store_dword", "buffer_atomic_add")[self.flagop]} v6, v{vZ}, {sr(sWS)}, s{sT0} offen offset:{32*k} {("sc1", "sc0 sc1", "sc1")[self.flagop]}
            L_nf{k}:""")
            if k == 0:
                self.stamp(13)
        a("s_mov_b64 exec, -1")
        self.stamp(9)
        self.probe_dump()
        a("s_branch L_reduce")

    def at_first(self):
        a = self.a
        a("L_at:")
        self.prio_set(0)

        issued = []
        WBUFS = (WR, R1, R2)

        def ldx(n, direct):
            if n <= 3 or n >= 9 or direct:
                self.call("F_x")
            else:
                a(f"s_lshl_b32 s{sT0}, s{sXCH}, 7\ns_add_u32 s{sT0}, s{sT0}, s{sXBASE}")
                self.x_adv()
                for i in range(2):
                    a(f"buffer_load_dwordx4 {vr(vO + (n-4)*8 + 4*i, 4)}, v{vXVO+i}, {sr(sX)}, s{sT0} offen offset:{1024*i}")
            issued.extend([("x", n)] * 2)

        def ldw(n):
            if n == 9:
                a(f"s_sub_u32 s{sWCH}, s{sWCH}, 1\ns_cselect_b32 s{sWCH}, 8, s{sWCH}")
            a(f"s_lshl_b32 s{sWBUF}, s{sLW}, 13\ns_add_u32 s{sWBUF}, s{sWBUF}, {WBUFS[n % 3]}")
            self.call("F_w")
            issued.extend([("w", n)] * 8)

        def prefill(k, ty):
            for _ in range(2 - ty):
                self.call("F_kv")
            issued.extend([("kv", k)] * 8)

        def wait(*tags):
            k = max(i for i, t in enumerate(issued) if t in tags) + 1
            a(f"s_waitcnt vmcnt({min(63, len(issued) - k)})")
        def first_stage(ty):
            del issued[:]
            direct = ty == 1 and self.xplan
            ldx(0, direct); ldw(0)
            self.early(2)
            self.call("F_atset")
            self.early(4)
            ldx(1, direct); ldw(1)
            wait(("x", 0), ("w", 0))
            self.early(5)
            for n in range(9):
                a("s_barrier")
                self.probe(0, True)
                if 1 <= n <= 5 and not direct:
                    wait(("x", n + 3))
                    for i in range(2):
                        a(f"ds_write_b128 v{vT}, {vr(vO + (n-1)*8 + 4*i, 4)} offset:{((n+3)&3)*8192 + 1024*i}")
                if n == 0:
                    for k in range(2, 4 if direct else 9):
                        ldx(k, direct)
                elif direct and n <= 5:
                    ldx(n + 3, direct)
                if n + 2 <= 9:
                    ldw(n + 2)
                if n == 8:
                    prefill(0, ty)
                    if ty or self.adist == 4:
                        prefill(1, ty)
                self.probe(4)
                wait(*([("w", n + 1)] + [("kv", 0) if n == 8 else ("x", n + 1)]))
                a("s_waitcnt lgkmcnt(0)")
                self.probe(5)
        a(f"s_mov_b32 s{sXN}, 0\ns_cmp_eq_u32 s{sTY}, 0\ns_cbranch_scc1 L_at_a")
        first_stage(1)
        a("s_branch L_at_done\nL_at_a:")
        if self.xplan & 2:
            self.other_srd(sPT, 64, SIZE['B_wq'])
            a(f"""s_lshl_b32 s{sT0}, s{sB}, 2
            s_add_u32 s{sT0}, s{sT0}, s{sLW}
            s_mul_i32 s{sT0}, s{sT0}, {9*8192}
            s_lshl_b32 s{sT1}, s{sHG}, 10
            s_add_u32 s{sT0}, s{sT0}, s{sT1}
            v_lshrrev_b32 v1, 2, v0
            v_and_b32 v6, 3, v0
            v_lshlrev_b32 v6, 7, v6
            v_lshl_add_u32 v1, v1, 13, v6
            s_mov_b32 exec_hi, 15
            buffer_load_dword v{vP+3}, v1, {sr(sPT)}, s{sT0} offen""")
            if self.xplan & 4:
                a(f"buffer_load_dword v{vP+2}, v1, {sr(sWQ)}, s{sT0} offen")
            a("s_mov_b64 exec, -1")
        if self.xtouch:
            self.other_srd(sPT, 40, SIZE['B_x'])
            a(f"v_mul_u32_u24 v1, 1152, v0\ns_mul_i32 s{sT2}, s{sB}, 73728")
            for j in range(2):
                a(f"""s_add_u32 s{sT0}, s{sXCH}, s{sLW}
                s_add_u32 s{sT0}, s{sT0}, {self.xfrom + 4*j}
                s_mul_i32 s{sT1}, s{sT0}, 57
                s_lshr_b32 s{sT1}, s{sT1}, 9
                s_mul_i32 s{sT1}, s{sT1}, 9
                s_sub_u32 s{sT0}, s{sT0}, s{sT1}
                s_lshl_b32 s{sT0}, s{sT0}, 7
                s_add_u32 s{sT0}, s{sT0}, s{sT2}
                buffer_load_dword v{vP+j}, v1, {sr(sPT)}, s{sT0} offen""")
        first_stage(0)
        a("L_at_done:")
        if self.prio & 1:
            a("s_setprio 0")
        a("s_branch L_stage\nF_atset:")
        if not (self.probes or self.stamps):
            self.late_srds()
        self.late_common()
        a(f"""s_mov_b32 s{sTHR}, 0
        s_lshl_b32 s{sT0}, s{sLW}, 11
        s_add_u32 s{sT0}, s{sT0}, {XR}
        v_lshl_add_u32 v{vT}, v0, 4, s{sT0}""")
        self.at_setup()
        if self.xplan:
            a(f"s_cmp_eq_u32 s{sTY}, 0\ns_cbranch_scc1 F_atset_ret")
            for i in range(vO, vO + 40):
                a(f"v_mov_b32 v{i}, 0")
            a("F_atset_ret:")
        self.ret()

    def at_setup(self):
        a = self.a
        a(f"""s_lshr_b32 s{sT0}, s{sLW}, 1
        s_mul_i32 s{sT0}, s{sT0}, s{sTY}
        s_lshl_b32 s{sT0}, s{sT0}, 13
        v_xor_b32 v7, v2, v3
        v_lshlrev_b32 v7, 4, v7
        v_lshl_add_u32 v7, v3, 8, v7
        v_add_u32 v{vKA}, s{sT0}, v7""")
        for ks in range(1, 4):
            a(f"v_xor_b32 v{vKA+ks}, {64*ks}, v{vKA}")
        a(f"""s_lshr_b32 s{sT1}, s{sBUFSZ}, 1
        s_add_u32 s{sT0}, s{sT0}, s{sT1}
        v_lshrrev_b32 v1, 2, v0
        v_and_b32 v6, 7, v1
        v_lshlrev_b32 v7, 8, v1
        v_lshl_add_u32 v7, v6, 5, v7
        v_and_b32 v1, 3, v0
        v_lshl_add_u32 v7, v1, 3, v7
        v_add_u32 v{vVA}, s{sT0}, v7""")
        for dt in range(1, 8):
            a(f"v_xor_b32 v{vVA+dt}, {32*dt}, v{vVA}")
        a(f"""s_mov_b32 s{sRPOS}, 0
        s_mov_b32 s{sSTAGE}, 0
        s_mov_b32 s{sQBUF}, {R2 - XR}
        s_mov_b32 s{sM}, 3
        s_lshr_b32 s{sT0}, s{sLW}, 1
        s_lshl_b32 s{sT0}, s{sT0}, 14
        s_and_b32 s{sT1}, s{sLW}, 1
        s_lshl_b32 s{sT1}, s{sT1}, 12
        s_add_u32 s{sT0}, s{sT0}, s{sT1}
        s_add_u32 s{sT0}, s{sT0}, {XR}
        v_lshrrev_b32 v6, 1, v3
        v_xor_b32 v6, v6, v2
        v_lshlrev_b32 v6, 4, v6
        v_lshl_add_u32 v6, v3, 7, v6
        v_add_u32 v{vH}, s{sT0}, v6
        v_xor_b32 v{vH+1}, 64, v{vH}""")
        for i in list(range(vO + 40, vO + 64)) + list(range(vNM + 1, vNM + 8)) + [vL0, vL0 + 1, vL0 + 2, vL0 + 3, 4] + list(range(vOVO, vOVO + 6)):
            a(f"v_mov_b32 v{i}, 0")

    def at_rest(self):
        a = self.a
        publish = self.follow or self.gate
        a(f"""L_stage:
        s_mov_b32 s{sTH}, 0xff7fffff
        s_mov_b32 s{sFLOOR}, 0xff7fffff
        s_mov_b32 s{sFIRST}, 0
        s_cmp_lg_u32 s{sSTAGE}, 0
        s_cbranch_scc1 L_stage_a
        v_mov_b32 v{vNM}, 0
        L_stage_a:""")
        for i in range(2):
            a(f"v_add_u32 v{vT+i}, s{sQBUF}, v{vH+i}")
        a(f"s_mov_b32 s{sN}, 0\nL_tile:\ns_barrier")
        self.probe(0, True)
        a(f"s_cmp_lg_u32 s{sN}, 0\ns_cbranch_scc1 L_tile_k")
        for qt in range(2):
            for ks in range(4):
                a(f"ds_read_b128 {vr(vQ + (qt*4+ks)*4, 4)}, v{vT+(ks&1)} offset:{2048*qt + 8192*(ks>>1)}")
        a("s_waitcnt lgkmcnt(0)\nL_tile_k:")
        lg = Lg(a)
        for ks in range(4):
            for kt in range(2):
                lg.issue(f"ds_read_b128 {vr(vKF + (ks*2+kt)*4, 4)}, v{vKA+ks} offset:{4096*kt}", ("K", ks, kt))
        a("s_barrier")
        O = lambda dt, qt: vO + (((dt >> 1)*2 + qt)*2 + (dt & 1))*4
        pv = lambda dt, u: f"v_mfma_f32_16x16x32_bf16 {vr(O(dt, u), 4)}, {vr(vVF + dt*4, 4)}, {vr(vP+4*u, 4)}, {vr(O(dt, u), 4)}"
        if self.defer:
            a(f"s_cmp_eq_u32 s{sN}, 0\ns_cbranch_scc1 L_tile_q")
            late = [f"v_pk_add_f32 {vr(vL0+2*u, 2)}, {vr(vL0+2*u, 2)}, {vr(vS+8*u+2*i, 2)}" for u, i in ((1, 0), (0, 2), (1, 1), (0, 3), (1, 2), (1, 3))]
            late += [f"v_add_u32 v{vVA+i}, s{sPROG}, v{vVA+i}" for i in range(8)]
            def deferred():
                l = list(late)
                for dt in range(8):
                    a(pv(dt, 1))
                    for _ in range(2):
                        if l: a(l.pop(0))
            deferred()
            a("L_tile_q:")
        vreads = [(f"ds_read_b64_tr_b16 {vr(vVF + dt*4 + 2*j, 2)}, v{vVA+dt} offset:{4096*j}", ("V", dt, j)) for dt in range(8) for j in range(2)]
        S = lambda qt, kt: vS + (qt*2 + kt)*4
        O = lambda dt, qt: vO + (((dt >> 1)*2 + qt)*2 + (dt & 1))*4
        for ks in range(4):
            for kt in range(2):
                lg.wait(("K", ks, kt))
                for qt in range(2):
                    c = vr(vNM + 4*qt, 4) if ks == 0 else vr(S(qt, kt), 4)
                    a(f"v_mfma_f32_16x16x32_bf16 {vr(S(qt, kt), 4)}, {vr(vKF + (ks*2+kt)*4, 4)}, {vr(vQ + (qt*4+ks)*4, 4)}, {c}")
                    if len(lg.q) < 15:
                        lg.issue(*vreads.pop(0))
        for t, tag in vreads:
            lg.issue(t, tag)
        a(f"""s_add_u32 s{sRPOS}, s{sRPOS}, s{sBUFSZ}
        s_cmp_ge_u32 s{sRPOS}, 98304
        s_cselect_b32 s{sT0}, 98304, 0
        s_sub_u32 s{sRPOS}, s{sRPOS}, s{sT0}
        s_sub_u32 s{sPROG}, s{sBUFSZ}, s{sT0}""")
        adv = [f"v_add_u32 v{vKA+i}, s{sPROG}, v{vKA+i}" for i in range(12)]
        nadv = 4 if self.defer else 2
        for t in adv[:nadv]:
            a(t)
        adv = adv[nadv:]
        t0, t1 = vT, vT + 1
        a(f"""v_max3_f32 v{t0}, v{vS}, v{vS+1}, v{vS+2}
        v_max3_f32 v{t0}, v{t0}, v{vS+3}, v{vS+4}
        v_max3_f32 v{t1}, v{vS+8}, v{vS+9}, v{vS+10}
        v_max3_f32 v{t0}, v{t0}, v{vS+5}, v{vS+6}
        v_max3_f32 v{t1}, v{t1}, v{vS+11}, v{vS+12}
        v_max_f32 v{t0}, v{t0}, v{vS+7}
        v_max3_f32 v{t1}, v{t1}, v{vS+13}, v{vS+14}
        v_max_f32 v{t1}, v{t1}, v{vS+15}
        v_max_f32 v{vT+2}, v{t0}, v{t1}
        v_cmp_lt_f32 vcc, s{sTH}, v{vT+2}
        s_cbranch_vccnz L_rescale
        L_tile_exp:""")
        ex = lambda u: [f"v_exp_f32 v{vS+8*u+i}, v{vS+8*u+i}" for i in range(8)]
        cv = lambda u: [f"v_cvt_pk_bf16_f32 v{vP+4*u+i}, v{vS+8*u+2*i}, v{vS+8*u+2*i+1}" for i in range(4)]
        if self.pkl:
            ad = lambda u: [x for i in range(4) for x in (f"v_pk_add_f32 {vr(vL0+2*u, 2)}, {vr(vL0+2*u, 2)}, {vr(vS+8*u+2*i, 2)}", "")]
        else:
            ad = lambda u: [f"v_add_f32 v{vL0+2*u+(i&1)}, v{vL0+2*u+(i&1)}, v{vS+8*u+i}" for i in range(8)]
        pv = lambda dt, u: f"v_mfma_f32_16x16x32_bf16 {vr(O(dt, u), 4)}, {vr(vVF + dt*4, 4)}, {vr(vP+4*u, 4)}, {vr(O(dt, u), 4)}"
        e0, c0, a0 = ex(0), cv(0), ad(0)
        e1, c1, a1 = ex(1), cv(1), ad(1)
        for t in e0[:3] + [e0[3], c0[0], e0[4], e0[5], c0[1], e0[6], e0[7], c0[2], e1[0], c0[3], e1[1], a0[0]]:
            a(t)
        gaps = [[e1[2]], [e1[3], c1[0]], [e1[4]], [e1[5], c1[1]], [e1[6]], [e1[7]], [c1[2], a0[1]], [c1[3], a0[2], a0[3] or "s_nop 0"]]
        for dt in range(8):
            if dt % 2 == 0:
                lg.wait(("V", dt + 1, 0), ("V", dt + 1, 1))
            a(pv(dt, 0))
            for t in gaps[dt]:
                a(t)
        rest = [x for pair in zip(a1, a0[4:] + adv[:4]) for x in pair] + adv[4:]
        assert self.pkl and not self.defer and not publish
        a(f"s_cmp_eq_u32 s{sN}, 15\ns_cbranch_scc1 L_tile_last")
        if not self.defer:
            for dt in range(8):
                a(pv(dt, 1))
                for _ in range(3):
                    if rest: a(rest.pop(0))
            assert not rest
        self.probe(6)
        a(f"s_or_b32 s{sT0}, s{sSTAGE}, s{sN}\ns_cbranch_scc1 L_tile_nw\ns_waitcnt vmcnt(0)\nL_tile_nw:")
        if publish:
            a(f"""s_cmp_gt_u32 s{sTY}, s{sLW}
            s_cbranch_scc0 L_tile_np""")
            if not self.follow:
                a(f"s_add_u32 s{sM}, s{sM}, 1\ns_cmp_eq_u32 s{sM}, {self.gate + 1}\ns_cbranch_scc0 L_tile_np\ns_sub_u32 s{sM}, s{sM}, 1")
            a(f"""v_mov_b32 v5, s{sM}
            s_mov_b64 exec, 1
            buffer_store_dword v5, v4, {sr(sWS)}, s{sPADDR} offen sc1
            s_mov_b64 exec, -1
            s_add_u32 s{sM}, s{sM}, 1
            L_tile_np:""")
        a(f"s_add_u32 s{sN}, s{sN}, 1\ns_branch L_tile")
        R = vT + 2
        chain = [x for x in a0[4:] if x] + [x for x in a1 if x]
        chain = [chain[0], chain[2], chain[1], chain[3], chain[4], chain[5]]
        chain += f"""v_add_f32 v{vL0}, v{vL0}, v{vL0+1}
        v_add_f32 v{vL0+1}, v{vL0+2}, v{vL0+3}
        v_mov_b32 v{vL0+2}, v{vL0}
        v_mov_b32 v{vL0+3}, v{vL0+1}
        s_mov_b32 s{sQBUF}, {WR - XR}
        s_add_u32 s{sSTAGE}, s{sSTAGE}, 1
        v_permlane32_swap_b32 v{vL0}, v{vL0+2}
        v_permlane32_swap_b32 v{vL0+1}, v{vL0+3}
        v_add_f32 v{vL0}, v{vL0}, v{vL0+2}
        v_add_f32 v{vL0+1}, v{vL0+1}, v{vL0+3}
        v_mov_b32 v{vL0+2}, v{vL0}
        v_mov_b32 v{vL0+3}, v{vL0+1}
        s_nop 1
        v_permlane16_swap_b32 v{vL0}, v{vL0+2}
        v_permlane16_swap_b32 v{vL0+1}, v{vL0+3}
        v_add_f32 v{R}, v{vL0}, v{vL0+2}
        v_add_f32 v{R-2}, v{vL0+1}, v{vL0+3}
        v_rcp_f32 v{R}, v{R}
        v_rcp_f32 v{R-2}, v{R-2}
        s_nop 0""".split("\n")
        a("L_tile_last:")
        for dt in range(8):
            a(pv(dt, 1))
            for _ in range(3):
                a(chain.pop(0))
        for t in chain:
            a(t)
        mul, put = [], []
        for qt in range(2):
            for p in range(4):
                c = vO + (p*2 + qt)*8
                mul.append("\n".join(f"v_pk_mul_f32 {vr(c+i, 2)}, {vr(c+i, 2)}, {vr(R-2*qt, 2)} op_sel_hi:[1,0]" for i in range(0, 8, 2)))
                put.append("\n".join(f"v_cvt_pk_bf16_f32 v{c+i}, v{c+2*i}, v{c+2*i+1}" for i in range(4)) +
                           f"\nds_write_b128 v{vH + (p&1)}, {vr(c,4)} offset:{2048*qt + 8192*(p>>1)}")
        for k in range(9):
            if k < 8: a(mul[k])
            if k: a(put[k-1])
        self.probe(6)
        a(f"""s_cmp_lt_u32 s{sSTAGE}, 2
        s_cbranch_scc0 L_feed0""")
        for t in adv:
            a(t)
        self.late_wo()
        a(f"""s_mov_b32 s{sOCI}, {7 if self.gmajor else 5}
        s_mov_b32 s{sOG}, 0
        s_waitcnt lgkmcnt(0)
        s_branch L_stage""")
        a("L_feed0:")
        self.prio_set(2)
        a(f"""s_mov_b32 s{sN}, 0
        {self.wo_addr(sRB+3)}
        s_waitcnt lgkmcnt(0)
        L_feed:
        s_barrier""")
        self.probe(0, True)
        if self.probes:
            a(f"s_mov_b32 m0, s{sT1}\ns_nop 0")
        nxt = self.wo_addr(sRB+3).replace(f"s{sT0}", f"s{sT2}").replace(f"s{sT1}", f"s{sM}").split("\n")
        nxt = [t for t in nxt if "m0" not in t]
        between = [self.wo_adv(),
                   f"s_mov_b32 s{sT2}, s{sRB+3}\ns_mov_b32 s{sRB+3}, s{sRB}\ns_mov_b32 s{sRB}, s{sRB+1}\ns_mov_b32 s{sRB+1}, s{sRB+2}\ns_mov_b32 s{sRB+2}, s{sT2}",
                   "\n".join(nxt[:5]), f"s_add_u32 m0, s{sT1}, 4096\n" + "\n".join(nxt[5:]),
                   f"s_add_u32 s{sN}, s{sN}, 1\ns_mov_b32 s{sT1}, s{sM}\ns_cmp_lt_u32 s{sN}, 9", f"s_mov_b32 m0, s{sM}\ns_mov_b32 s{sT0}, s{sT2}"]
        for n in range(6):
            a(f"buffer_load_dwordx4 v{vOVO+n}, {sr(sWO)}, s{sT0} offen offset:{1024*(n&3)}{self.wflag} lds")
            a(between[n])
        self.probe(4)
        a("s_waitcnt vmcnt(12)\ns_cbranch_scc1 L_feed")
        if self.gate:
            a(f"s_or_b32 s{sT0}, s{sTY}, s{sLW}\ns_cbranch_scc1 L_gate")
            self.wait_init(4, 5)
            self.spin(f"buffer_load_dword v5, v4, {sr(sWS)}, s{sPADDR} offen sc1", 5,
                      f"v_readfirstlane_b32 s{sT1}, v5\ns_cmp_ge_u32 s{sT1}, {self.gate}")
            a("L_gate:")
        a("""s_barrier
        s_waitcnt vmcnt(6)
        s_barrier
        s_waitcnt vmcnt(0)
        s_barrier""")
        self.probe_dump()

    def reduce(self):
        a = self.a
        vL, vO0, vD, vSum = 6, 14, 40, 104
        of = ("", " sc1", " nt", " sc0 sc1")[self.outf]
        a("L_reduce:")
        self.stamp(10)
        a(f"""s_setprio 0
        s_lshr_b32 s{sSTAGE}, s{sWAVE}, 2
        s_lshl_b32 s{sT1}, s{sSTAGE}, 2
        s_add_u32 s{sT1}, s{sT1}, {SYNC + 8}
        v_mov_b32 v9, s{sT1}
        s_mov_b32 s{sSPIN}, {SPIN}
        s_cmp_lg_u32 s{sLW}, 0
        s_cbranch_scc1 L_red_work
        s_lshl_b32 s{sT0}, s{sSTAGE}, 11
        s_add_u32 s{sFADDR}, s{sFADDR}, s{sT0}
        v_mov_b32 v4, 0
        v_and_b32 v8, 7, v0
        v_lshlrev_b32 v8, 2, v8
        s_cmp_eq_u32 s{sSTAGE}, 1
        s_cbranch_scc1 L_red_poll""")
        self.wait_init(4, 5)
        a(f"""s_mov_b32 s{sSPIN}, {SPIN}
        L_red_poll:""")
        NP = self.polls
        ld = lambda k: f"buffer_load_dword v{16+k}, v8, {sr(sWS)}, s{sFADDR} offen {('sc1', 'sc0 sc1')[self.flagop == 1]}"
        for k in range(NP - 1):
            a(ld(k) + f"\ns_sleep {self.nap}")
        a("L_red_again:")
        for k in range(NP):
            a(f"""{ld((k + NP - 1) % NP)}
            s_waitcnt vmcnt({NP - 1})
            v_cmp_eq_u32 vcc, 1, v{16+k}
            s_and_b32 s{sT2}, vcc_lo, 0xff
            s_sub_u32 s{sSPIN}, s{sSPIN}, 1
            s_cselect_b32 s{sT2}, 0xff, s{sT2}
            v_mov_b32 v10, s{sT2}
            ds_write_b32 v9, v10
            s_cmp_eq_u32 s{sT2}, 0xff
            s_cbranch_scc1 L_red_end
            s_sleep {self.nap}""")
        a(f"""s_branch L_red_again
        L_red_work:""")
        srd(a, sX, sOUTP, SIZE['out'])
        a(f"""s_lshl_b32 s{sN}, s{sTY}, 3
        s_add_u32 s{sN}, s{sN}, s{sHG}
        s_sub_u32 s{sT0}, s{sLW}, 1
        s_lshl_b32 s{sT0}, s{sT0}, 4
        s_add_u32 s{sN}, s{sN}, s{sT0}
        s_mul_i32 s{sN}, s{sN}, 48
        s_lshl_b32 s{sT0}, s{sSTAGE}, 4
        s_add_u32 s{sT0}, s{sT0}, s{sB}
        s_mul_i32 s{sM}, s{sT0}, {8*PART}
        s_mul_i32 s{sOBASE}, s{sB}, {64*2304}
        s_mul_i32 s{sT0}, s{sSTAGE}, 1152
        s_add_u32 s{sOBASE}, s{sOBASE}, s{sT0}""")
        for k in range(2):
            a(f"""v_add_u32 v1, s{sN}, v0
            v_lshlrev_b32 v{vL+k}, 4, v1
            v_lshrrev_b32 v11, 6, v1
            v_mul_u32_u24 v12, 43, v11
            v_lshrrev_b32 v12, 8, v12
            v_mul_u32_u24 v13, 6, v12
            v_sub_u32 v13, v11, v13
            v_mul_u32_u24 v12, 96, v12
            v_lshrrev_b32 v11, 1, v13
            v_lshl_add_u32 v12, v11, 5, v12
            v_and_b32 v13, 1, v13
            v_lshlrev_b32 v13, 5, v13
            v_and_b32 v11, 15, v1
            v_add_u32 v13, v13, v11
            v_mul_u32_u24 v13, 2304, v13
            v_bfe_u32 v11, v1, 4, 2
            v_lshl_add_u32 v12, v11, 3, v12
            v_add_u32 v{vO0+k}, v12, v13
            s_add_u32 s{sN}, s{sN}, 2304""")
        for i in range(16):
            a(f"v_mov_b32 v{vSum+i}, 0")
        if self.dot:
            a("v_mov_b32 v16, 0x3f80\nv_mov_b32 v17, 0x3f800000")
        a(f"""s_mov_b32 exec_hi, 0xffff
        s_mov_b32 s{sN}, 0
        s_mov_b32 s{sOG}, 0
        L_red_look:
        ds_read_b32 v5, v9
        s_waitcnt lgkmcnt(0)
        v_readfirstlane_b32 s{sT2}, v5
        s_sub_u32 s{sSPIN}, s{sSPIN}, 1
        s_cselect_b32 s{sT2}, 0xff, s{sT2}
        s_andn2_b32 s{sT2}, s{sT2}, s{sN}
        s_cbranch_scc1 L_red_new
        s_getreg_b32 s{sT0}, hwreg(HW_REG_IB_STS)
        s_and_b32 s{sT0}, s{sT0}, 0xc000000f
        s_cselect_b32 s{sT0}, 0, s{sOG}
        s_cmp_lg_u32 s{sT0}, 0
        s_cbranch_scc1 L_red_add
        s_sleep 1
        s_branch L_red_look
        L_red_new:
        s_or_b32 s{sN}, s{sN}, s{sT2}
        s_or_b32 s{sOG}, s{sOG}, s{sT2}""")
        for h in range(8):
            a(f"""s_bitcmp1_b32 s{sT2}, {h}
            s_cbranch_scc0 L_red_h{h}
            s_add_u32 s{sT0}, s{sM}, {h*PART}
            buffer_load_dwordx4 {vr(vD+4*h,4)}, v{vL}, {sr(sWS)}, s{sT0} offen {('sc1', 'sc1', 'sc0 sc1')[self.partop]}
            buffer_load_dwordx4 {vr(vD+32+4*h,4)}, v{vL+1}, {sr(sWS)}, s{sT0} offen {('sc1', 'sc1', 'sc0 sc1')[self.partop]}
            L_red_h{h}:""")
        self.stamp(14)
        if not self.blk:
            a(f"s_cmp_lg_u32 s{sN}, 0xff\ns_cbranch_scc1 L_red_look")
        a("L_red_add:\ns_waitcnt vmcnt(0)")
        for h in range(8):
            a(f"s_bitcmp1_b32 s{sOG}, {h}\ns_cbranch_scc0 L_red_a{h}")
            for k in range(2):
                for i in range(4):
                    r, t = vD + 32*k + 4*h + i, 10 + 2*(i & 1)
                    if self.dot:
                        c = vSum + 8*k + 2*i
                        a(f"v_dot2_f32_bf16 v{c}, v{r}, v16, v{c}\nv_dot2_f32_bf16 v{c+1}, v{r}, v17, v{c+1}")
                        continue
                    a(f"""v_lshlrev_b32 v{t}, 16, v{r}
                    v_and_b32 v{t+1}, 0xffff0000, v{r}
                    v_pk_add_f32 {vr(vSum+8*k+2*i, 2)}, {vr(vSum+8*k+2*i, 2)}, {vr(t, 2)}""")
            a(f"L_red_a{h}:")
        a(f"""s_mov_b32 s{sOG}, 0
        s_cmp_lg_u32 s{sN}, 0xff
        s_cbranch_scc1 L_red_look
        s_add_u32 s{sT0}, s{sOBASE}, {16*2304}""")
        if self.dot:
            a("s_nop 1")
        for k in range(2):
            for i in range(4):
                a(f"v_cvt_pk_bf16_f32 v{vSum+16+4*k+i}, v{vSum+8*k+2*i}, v{vSum+8*k+2*i+1}")
            a(f"""buffer_store_dwordx2 {vr(vSum+16+4*k,2)}, v{vO0+k}, {sr(sX)}, s{sOBASE} offen{of}
            buffer_store_dwordx2 {vr(vSum+18+4*k,2)}, v{vO0+k}, {sr(sX)}, s{sT0} offen{of}""")
        a("L_red_end:")
        if self.stamps:
            a("s_mov_b64 exec, -1\ns_waitcnt vmcnt(0)")
            self.stamp(12)
            self.stamp_dump(0)
            self.stamp_dump(1)
            if self.hold:
                a(f"""s_cmp_lg_u32 s2, {self.hwg}
                s_cbranch_scc1 L_end
                s_cmp_lg_u32 s{sWAVE}, 4
                s_cbranch_scc1 L_end
                v_readlane_b32 s{sT0}, v255, 0
                v_readlane_b32 s{sT1}, v255, {self.hi}
                v_readlane_b32 s{sT2}, v255, {self.hj}
                s_sub_u32 s{sT2}, s{sT2}, s{sT1}
                s_add_u32 s{sT2}, s{sT2}, {self.hold*100}
                s_mov_b32 s{sSPIN}, {SPIN}
                L_hold:
                s_memrealtime s[98:99]
                s_waitcnt lgkmcnt(0)
                s_sub_u32 s98, s98, s{sT0}
                s_cmp_ge_u32 s98, s{sT2}
                s_cbranch_scc1 L_end
                s_sub_u32 s{sSPIN}, s{sSPIN}, 1
                s_cbranch_scc0 L_hold""")
        a("s_endpgm")

    def at_rare(self):
        a = self.a
        t, u, al = vT, vP, vP + 2
        a(f"""L_rescale:
        v_mov_b32 v{u}, v{t}
        v_mov_b32 v{u+1}, v{t+1}
        s_nop 1
        v_permlane32_swap_b32 v{t}, v{u}
        v_permlane32_swap_b32 v{t+1}, v{u+1}
        v_max_f32 v{t}, v{t}, v{u}
        v_max_f32 v{t+1}, v{t+1}, v{u+1}
        v_mov_b32 v{u}, v{t}
        v_mov_b32 v{u+1}, v{t+1}
        s_nop 1
        v_permlane16_swap_b32 v{t}, v{u}
        v_permlane16_swap_b32 v{t+1}, v{u+1}
        v_max3_f32 v{t}, v{t}, v{u}, s{sFLOOR}
        v_max3_f32 v{t+1}, v{t+1}, v{u+1}, s{sFLOOR}
        v_max_f32 v{al}, 0, v{t}
        v_max_f32 v{al+2}, 0, v{t+1}
        v_exp_f32 v{al}, -v{al}
        v_exp_f32 v{al+2}, -v{al+2}
        s_mov_b32 s{sTH}, 0x41000000
        s_mov_b32 s{sFLOOR}, 0
        v_mul_f32 v{al}, s{sFIRST}, v{al}
        v_mul_f32 v{al+2}, s{sFIRST}, v{al+2}
        s_mov_b32 s{sFIRST}, 1.0""")
        for qt in range(2):
            for i in range(8):
                a(f"v_sub_f32 v{vS+8*qt+i}, v{vS+8*qt+i}, v{t+qt}")
            for i in range(4):
                a(f"v_sub_f32 v{vNM+4*qt+i}, v{vNM+4*qt+i}, v{t+qt}")
            a(f"v_pk_mul_f32 {vr(vL0+2*qt, 2)}, {vr(vL0+2*qt, 2)}, {vr(al+2*qt,2)} op_sel_hi:[1,0]")
            for p in range(4):
                for i in range(0, 8, 2):
                    c = vO + (p*2 + qt)*8 + i
                    a(f"v_pk_mul_f32 {vr(c,2)}, {vr(c,2)}, {vr(al+2*qt,2)} op_sel_hi:[1,0]")
        a("s_branch L_tile_exp")

    def main(self):
        a = self.a
        self.prologue()
        a(f"s_cmp_ge_u32 s{sWAVE}, 4\ns_cbranch_scc1 L_pj\ns_branch L_at")
        self.subs()
        self.at_first()
        self.pj_first()
        self.pj_setup()
        self.at_rest()
        self.reduce()
        self.at_rare()
        self.pj_rest()
        a("L_end:\ns_endpgm")
        return a.text()


HEADER = open("cdna_kernels/" + NAME + ".s.ref").read().split("; Override launch geometry")[0]


def build(**kw):
    return HEADER + single(Gen(**kw).main(), 256, 512, LDS_BYTES, vgpr=256, accum=256, sgpr=102)


if __name__ == "__main__":
    kw = {}
    for x in sys.argv[2:]:
        k, v = x.split("=")
        kw[k] = int(v, 0)
    open(sys.argv[1], "w").write(build(**kw))
```

```python
import sys, struct
sys.path.insert(0, "tools")
from asmlib import *

KERNEL = NAME + "_kernel"
R0, R1, R2, WR, XR = 0, 32768, 65536, 98304, 131072
SYNC = WR + 24576
LDS_BYTES = 163840
PART = 73728
FLAG_OFF = 32 << 20
PROBE_OFF = 241 << 20
QSCALE = 1.4426950408889634 / 128 ** 0.5
SPIN = 1 << 16


def fbits(x):
    return "0x%08x" % struct.unpack("<I", struct.pack("<f", x))[0]


sWAVE, sLW, sHG, sTY, sB = 3, 4, 5, 6, 7
sK, sV, sX, sWQ, sWO, sWS = 8, 12, 16, 20, 24, 28
sKVOFF, sKVM0, sKVN = 32, 33, 34
sWCOL, sWCH, sWN = 35, 36, 37
sXBASE, sXCH, sXN = 38, 39, 40
sOCI, sOBASE, sROT = 41, 42, 43
sN, sM = 44, 45
sT0, sT1, sT2 = 46, 47, 48
sBUFSZ, sRINGEND, sWBUF, sOLW, sOBUF, sTHR, sKVCNT = 49, 50, 51, 52, 53, 54, 55
sTH, sFLOOR, sRPOS, sSTAGE = 56, 57, 58, 59
sRB = 60
sRET = 64
sFIRST, sQBUF, sSLOT = 66, 67, 68
sC8K = 67
sWB = 69
sBV, sPT = 72, 76
sOUTP, sDBGP = 80, 82
sTN, sLAST, sPADDR, sTBASE = 84, 85, 86, 87
sFADDR, sSPIN, sPROG, sOG = 88, 89, 90, 91

vKVO, vVVO, vXVO, vOVO, vWVO = 8, 12, 14, 16, 22
vWA, vWA0, vQW = 24, 28, 29
vOA0, vOA, vST = 24, 27, 30
vXA0, vXA, vZ = 31, 33, 35
vFA, vFB, vACC = 36, 72, 104
vPR, vDUM = 4, 5
vKA, vVA, vH, vT, vL0 = 24, 28, 38, 40, 76
vP, vS, vNM, vQ, vKF, vVF, vO = 44, 52, 68, 84, 116, 148, 180


def vr(i, n):
    return f"v[{i}:{i+n-1}]"


def sr(i, n=4):
    return f"s[{i}:{i+n-1}]"


class Lg:
    def __init__(self, a):
        self.a, self.q = a, []
    def issue(self, text, tag):
        if len(self.q) == 15:
            self.wait(self.q[0])
        self.a(text)
        self.q.append(tag)
    def wait(self, *tags):
        idx = max((i for i, t in enumerate(self.q) if t in tags), default=-1)
        if idx < 0:
            return
        self.a(f"s_waitcnt lgkmcnt({len(self.q) - idx - 1})")
        self.q = self.q[idx + 1:]
    def drain(self):
        self.a("s_waitcnt lgkmcnt(0)")
        self.q = []


DEFAULTS = dict(stamps=0, probes=0, vmprobe=2, thr=5, prefill=8, store0=4, store1=8, ipf=1, touch=5, xtouch=1,
                prio=7, gate=0, thrmask=0xffffffff, help=0, lead0=3, lead1=6, kvnt=1, pace=99, dbgst=0, ahead=-1, from_=0, bthr=63, polls=1, nap=2, sdw=1, alate=0, wqat=4, diag=0, hrot=0, early_n=0, ahead0=0, hold=0, hi=0, hj=0, hwg=8, xplan=3, xfrom=1, aidle=0, adist=4, outf=0, stp=3, gmajor=0, stp0=12, pkl=1, flagop=0, partop=0, defer=0, wpol=0, blk=0, dot=0, wmap=0)


class Gen:
    def __init__(self, **kw):
        self.a = Asm()
        self.o = dict(DEFAULTS)
        assert set(kw) <= set(DEFAULTS), kw
        self.o.update(kw)
        for k, v in self.o.items():
            setattr(self, k, v)
        self.kvflag = ("", " nt", " sc1 nt", " sc0 sc1 nt", " sc0 nt")[self.kvnt]
        self.wflag = ("", " sc1", " sc0 sc1", " sc0")[self.wpol]
        self.follow = (self.help and self.ahead < 0) or self.pace < 99
        self.NA = 4 + bool(self.help) + bool(self.follow)
        self.uid = 0
        assert self.pkl or not self.defer
        assert not (self.help and self.ahead < 0 and self.touch)

    def lab(self, s):
        self.uid += 1
        return f"L_{s}{self.uid}"

    def stamp(self, k):
        if self.stamps:
            self.a(f"s_memrealtime s[98:99]\ns_memtime s[100:101]\ns_waitcnt lgkmcnt(0)\nv_writelane_b32 v255, s98, {k}\nv_writelane_b32 v255, s100, {16+k}")

    def stamp_dump(self, role):
        if self.stamps:
            l = self.lab("sd")
            self.a(f"""s_cmp_lg_u32 s{sWAVE}, {4*role + self.sdw}
            s_cbranch_scc1 {l}
            s_lshl_b32 s{sT0}, s2, 8
            s_add_u32 s{sT0}, s{sT0}, {STAMP_OFF + 128*role}
            v_lshlrev_b32 v1, 2, v0
            s_mov_b64 exec, 0xffffffff
            buffer_store_dword v255, v1, {sr(sWS)}, s{sT0} offen
            s_mov_b64 exec, -1""")
            if self.dbgst:
                srd(self.a, sPT, sDBGP, 256)
                self.a(f"""s_cmp_lg_u32 s{sTY}, {self.dbgst - 1}
                s_cbranch_scc1 {l}
                v_not_b32 v11, v255
                v_cmp_eq_u32 vcc, 0, v0
                s_nop 1
                v_cndmask_b32 v11, v255, v11, vcc
                s_mov_b64 exec, {0x3ff if role else 0x1c00}
                buffer_atomic_umax v11, v1, {sr(sPT)}, 0 offen sc1
                s_mov_b64 exec, -1""")
            self.a(f"{l}:")

    def probe(self, k, first=False):
        if self.probes:
            if first:
                self.a(f"s_add_u32 s{sSLOT}, s{sSLOT}, 1")
            self.a(f"s_memtime s[98:99]\ns_getreg_b32 s100, hwreg(HW_REG_IB_STS)\ns_waitcnt lgkmcnt(0)\ns_mov_b32 m0, s{sSLOT}\nv_writelane_b32 v{248+k}, s98, m0")
            if k == self.vmprobe:
                self.a("v_writelane_b32 v251, s100, m0")

    def early(self, lane):
        if self.probes:
            self.a(f"s_memtime s[98:99]\ns_waitcnt lgkmcnt(0)\nv_writelane_b32 v255, s98, {lane}")

    def probe_dump(self):
        if self.probes:
            l = self.lab("pd")
            self.a(f"""s_cmp_lg_u32 s{sLW}, 0
            s_cbranch_scc1 {l}
            s_lshl_b32 s{sT0}, s2, 1
            s_lshr_b32 s{sT1}, s{sWAVE}, 2
            s_add_u32 s{sT0}, s{sT0}, s{sT1}
            s_lshl_b32 s{sT0}, s{sT0}, 11
            s_add_u32 s{sT0}, s{sT0}, {PROBE_OFF}
            v_lshlrev_b32 v1, 2, v0""")
            for k in range(8):
                self.a(f"buffer_store_dword v{248+k}, v1, {sr(sWS)}, s{sT0} offen offset:{256*k}")
            self.a(f"{l}:")

    def prio_set(self, bit, off=None):
        if self.prio >> bit & 1:
            self.a("s_setprio 1")
        elif off is not None and self.prio >> off & 1:
            self.a("s_setprio 0")

    def call(self, name):
        self.a(f"s_call_b64 {sr(sRET, 2)}, {name}")

    def ret(self):
        self.a(f"s_setpc_b64 {sr(sRET, 2)}")

    def spread(self, base, fill, start=0):
        n, m = len(base) - start, len(fill)
        j = 0
        for k, t in enumerate(base):
            while k >= start and j < m and j * n <= (k - start) * m:
                self.a(fill[j]); j += 1
            if callable(t): t()
            else: self.a(t)
        for t in fill[j:]:
            self.a(t)

    def other_srd(self, dst, karg_off, size):
        self.a(f"""s_load_dwordx2 {sr(dst, 2)}, s[0:1], {karg_off}
        s_waitcnt lgkmcnt(0)
        s_and_b32 s{dst+1}, s{dst+1}, 0xffff
        s_mov_b32 s{dst+2}, {size}
        s_mov_b32 s{dst+3}, 0x20000""")

    def spin(self, load, vdst, done):
        l, e = self.lab("sp"), self.lab("se")
        self.a(f"""s_mov_b32 s{sSPIN}, {SPIN}
        {l}:
        {load}
        s_waitcnt vmcnt(0) lgkmcnt(0)
        {done}
        s_cbranch_scc1 {e}
        s_sleep 1
        s_sub_u32 s{sSPIN}, s{sSPIN}, 1
        s_cmp_lg_u32 s{sSPIN}, 0
        s_cbranch_scc1 {l}
        {e}:""")

    def wait_init(self, vz, vd):
        srd(self.a, sPT, sDBGP, 256)
        self.a(f"s_lshl_b32 s{sT2}, s{sB}, 2")
        self.spin(f"buffer_load_dword v{vd}, v{vz}, {sr(sPT)}, s{sT2} offen offset:{128*bool(self.dbgst)} sc1", vd,
                  f"v_readfirstlane_b32 s{sT1}, v{vd}\ns_cmp_ge_u32 s{sT1}, 16")

    def decode(self):
        if self.wmap == 0:
            return f"s_lshr_b32 s{sTY}, s2, 3\ns_and_b32 s{sTY}, s{sTY}, 1\ns_lshr_b32 s{sB}, s2, 4"
        return f"s_lshr_b32 s{sTY}, s2, 7\ns_xor_b32 s{sTY}, s{sTY}, {self.wmap - 1}\ns_lshr_b32 s{sB}, s2, 3\ns_and_b32 s{sB}, s{sB}, 15"

    def prologue(self):
        a = self.a
        a("s_cmp_ge_u32 s2, 256\ns_cbranch_scc1 L_end")
        if self.probes or self.stamps:
            a("s_memtime s[96:97]" if self.probes else "s_memrealtime s[96:97]")
        a(f"""s_load_dwordx2 s[68:69], s[0:1], 96
        s_load_dwordx4 {sr(sOUTP)}, s[0:1], 80
        s_and_b32 s{sHG}, s2, 7
        {self.decode()}
        s_mul_i32 s{sT0}, s{sTY}, 40
        s_add_u32 s0, s0, s{sT0}
        s_addc_u32 s1, s1, 0
        s_load_dwordx8 s[56:63], s[0:1], 0
        s_load_dwordx2 s[70:71], s[0:1], 32""")
        if self.ipf:
            a(f"""s_getpc_b64 {sr(sT0, 2)}
            L_pc:
            s_sub_u32 s{sT0}, s{sT0}, L_pc-{KERNEL}
            s_subb_u32 s{sT0+1}, s{sT0+1}, 0
            s_and_b32 s{sT2}, s2, 0xf8
            v_lshrrev_b32 v1, 6, v0
            v_add_lshl_u32 v6, v1, s{sT2}, 7
            v_min_u32 v6, L_end-{KERNEL}, v6
            v_mov_b32 v7, s{sT0+1}
            v_add_co_u32 v6, vcc, s{sT0}, v6
            s_nop 1
            v_addc_co_u32 v7, vcc, 0, v7, vcc
            global_load_dword v{vFA+32}, v[6:7], off""")
        a(f"""v_lshrrev_b32 v1, 6, v0
        v_and_b32 v0, 63, v0
        v_readfirstlane_b32 s{sWAVE}, v1
        v_lshrrev_b32 v2, 4, v0
        v_and_b32 v3, 15, v0
        s_and_b32 s{sLW}, s{sWAVE}, 3
        v_lshrrev_b32 v4, 3, v0
        v_and_b32 v5, 7, v0
        v_mul_u32_u24 v7, 1152, v4""")
        for n in range(2):
            a(f"""v_add_u32 v6, {4*n}, v2
            v_xor_b32 v6, v6, v5
            v_lshl_add_u32 v6, v6, 4, v7
            v_add_u32 v{vXVO+n}, {n*(8*1152-1024)}, v6""")
        a(f"""v_and_b32 v1, 1, v2
        v_lshlrev_b32 v1, 1, v1
        v_xor_b32 v1, v1, v5
        v_lshlrev_b32 v1, 4, v1
        v_lshl_add_u32 v{vWVO}, v4, 13, v1
        v_xor_b32 v{vWVO+1}, 64, v{vWVO}
        s_lshl_b32 s{sWCOL}, s{sHG}, 10
        s_lshl_b32 s{sT0}, s{sLW}, 7
        s_add_u32 s{sWCOL}, s{sWCOL}, s{sT0}
        s_mov_b32 s{sWN}, 0
        s_mul_i32 s{sT0}, s{sHG}, {self.hrot}
        s_add_u32 s{sT0}, s{sT0}, s{sB}
        s_mul_i32 s{sT1}, s{sT0}, 57
        s_lshr_b32 s{sT1}, s{sT1}, 9
        s_mul_i32 s{sT1}, s{sT1}, 9
        s_sub_u32 s{sXCH}, s{sT0}, s{sT1}
        s_mov_b32 s{sWCH}, s{sXCH}
        s_mul_i32 s{sXBASE}, s{sB}, 73728
        s_mul_i32 s{sT0}, s{sLW}, 18432
        s_add_u32 s{sXBASE}, s{sXBASE}, s{sT0}
        s_lshl_b32 s{sT0}, s{sB}, 3
        s_add_u32 s{sT0}, s{sT0}, s{sHG}
        s_lshl_b32 s{sPADDR}, s{sT0}, 7
        s_add_u32 s{sPADDR}, s{sPADDR}, {FLAG_OFF + 4096}
        s_lshl_b32 s{sFADDR}, s{sB}, 7
        s_add_u32 s{sFADDR}, s{sFADDR}, {FLAG_OFF}
        s_waitcnt lgkmcnt(0)""")
        srd(a, sX, 56, SIZE['A_x'])
        srd(a, sWQ, 62, SIZE['A_wq'])
        if self.probes or self.stamps:
            self.late_srds()
        if self.probes or self.stamps:
            a(f"s_mov_b32 s{sSLOT}, -1")
            for k in range(8):
                a(f"v_mov_b32 v{248+k}, 0")
            a("v_writelane_b32 v255, s96, 0")
            self.early(1)

    def late_srds(self):
        a = self.a
        a(f"""s_mov_b32 s{sK}, s58
        s_and_b32 s{sK+1}, s59, 0xffff
        s_lshl_b32 s{sK+2}, {SIZE['A_k']}, s{sTY}
        s_mov_b32 s{sK+3}, 0x20000
        s_mov_b32 s{sV}, s60
        s_and_b32 s{sV+1}, s61, 0xffff
        s_mov_b32 s{sV+2}, s{sK+2}
        s_mov_b32 s{sV+3}, 0x20000""")
        srd(a, sWO, 70, SIZE['A_wo'])
        srd(a, sWS, 68, SIZE['ws'])
        srd(a, sBV, 60, 0)

    def late_common(self):
        a = self.a
        a(f"""s_lshl_b32 s{sBUFSZ}, 16384, s{sTY}
        s_lshl_b32 s{sT0}, 2048, s{sTY}
        s_mul_i32 s{sKVM0}, s{sT0}, s{sLW}
        s_add_u32 s{sRINGEND}, s{sKVM0}, 98304
        s_lshl_b32 s{sT0}, s{sB}, 3
        s_add_u32 s{sT0}, s{sT0}, s{sHG}
        s_lshl_b32 s{sTBASE}, s{sT0}, 19
        s_add_u32 s{sT1}, s{sTY}, 18
        s_lshl_b32 s{sKVOFF}, s{sT0}, s{sT1}
        s_lshr_b32 s{sT0}, s{sLW}, 1
        s_lshl_b32 s{sT0}, s{sT0}, 17
        s_and_b32 s{sT1}, s{sLW}, 1
        s_lshl_b32 s{sT2}, s{sT1}, 12
        s_add_u32 s{sT0}, s{sT0}, s{sT2}
        s_add_u32 s{sTBASE}, s{sTBASE}, s{sT0}
        s_cmp_eq_u32 s{sTY}, 1
        s_cselect_b32 s{sT0}, s{sT0}, s{sKVM0}
        s_add_u32 s{sKVOFF}, s{sKVOFF}, s{sT0}
        s_lshl_b32 s{sT1}, s{sT1}, 3
        s_cmp_eq_u32 s{sTY}, 1
        s_cselect_b32 s{sT1}, 0, s{sT1}
        s_mov_b32 s{sKVN}, 0
        v_lshlrev_b32 v6, 8, v2
        v_add_u32 v7, s{sT1}, v2""")
        for n in range(4):
            a(f"""v_add_u32 v1, {4*n}, v7
            v_xor_b32 v1, v1, v3
            v_and_b32 v1, 15, v1
            v_lshl_add_u32 v{vKVO+n}, v1, 4, v6""")
        a(f"""v_lshlrev_b32 v1, 1, v2
        v_xor_b32 v1, v1, v3
        v_lshl_add_u32 v{vVVO}, v1, 4, v6
        v_xor_b32 v{vVVO+1}, 128, v{vVVO}""")

    def late_wo(self):
        a = self.a
        for n in range(6):
            a(f"""v_add_u32 v1, {64*n}, v0
            v_mul_u32_u24 v6, 2731, v1
            v_lshrrev_b32 v6, 16, v6
            v_mul_u32_u24 v7, 24, v6
            v_sub_u32 v1, v1, v7
            v_and_b32 v7, 6, v6
            v_xor_b32 v1, v1, v7
            v_lshlrev_b32 v1, 4, v1
            v_mul_u32_u24 v6, 1152, v6
            v_add_u32 v1, v1, v6
            v_subrev_u32 v{vOVO+n}, {1024*(n&3)}, v1""")
        a(f"""s_lshl_b32 s{sT0}, s{sHG}, 9
        s_lshl_b32 s{sT1}, s{sLW}, 4
        s_add_u32 s{sT0}, s{sT0}, s{sT1}
        s_mul_i32 s{sOBASE}, s{sT0}, 1152
        s_and_b32 s{sROT}, s{sB}, 3
        s_mul_i32 s{sOLW}, s{sLW}, 6144
        s_cmp_eq_u32 s{sTY}, 1
        s_mov_b32 s{sRB}, {WR}
        s_mov_b32 s{sRB+1}, {R2}
        s_cselect_b32 s{sRB+2}, {R0}, {R1}
        s_cselect_b32 s{sRB+3}, {R1}, {R0}""")

    def x_adv(self):
        self.a(f"""s_add_u32 s{sXN}, s{sXN}, 1
        s_add_u32 s{sXCH}, s{sXCH}, 1
        s_cmp_eq_u32 s{sXCH}, 9
        s_cselect_b32 s{sXCH}, 0, s{sXCH}""")

    def kv_items_b(self):
        f = self.kvflag
        items = []
        for n in range(8):
            t = ""
            if n == 0:
                t += f"s_mov_b32 m0, s{sKVM0}\ns_cmp_eq_u32 s{sKVN}, 15\n"
            if n == 4:
                t += f"s_add_u32 m0, s{sKVM0}, 16384\ns_add_u32 s{sKVM0}, s{sKVM0}, 32768\n"
            if self.bthr < 63:
                t += f"s_waitcnt vmcnt({self.bthr - 1})\n"
            if n < 4:
                t += f"buffer_load_dwordx4 v{vKVO+n}, {sr(sK)}, s{sKVOFF} offen offset:{1024*n}{f} lds\n"
            else:
                t += f"buffer_load_dwordx4 v{vVVO+(n&1)}, {sr(sV)}, s{sKVOFF} offen offset:{1024*(n-4)}{f} lds\n"
            if n == 0:
                t += f"s_cselect_b32 s{sKVCNT}, 131072, 0\ns_add_u32 s{sKVCNT}, s{sKVCNT}, 8192\ns_add_u32 s{sKVN}, s{sKVN}, 1\n"
            if n == 7:
                t += f"""s_add_u32 s{sKVOFF}, s{sKVOFF}, s{sKVCNT}
                s_cmp_ge_u32 s{sKVM0}, s{sRINGEND}
                s_cselect_b32 s{sKVCNT}, 98304, 0
                s_sub_u32 s{sKVM0}, s{sKVM0}, s{sKVCNT}"""
            items.append(t)
        return items

    def wo_addr(self, buf):
        return f"""s_add_u32 s{sT0}, s{sOCI}, s{sROT}
                s_and_b32 s{sT0}, s{sT0}, 3
                s_lshr_b32 s{sT1}, s{sOCI}, 2
                s_lshl_b32 s{sT1}, s{sT1}, 2
                s_add_u32 s{sT0}, s{sT0}, s{sT1}
                s_mul_i32 s{sT0}, s{sT0}, 73728
                s_add_u32 s{sT0}, s{sT0}, s{sOG}
                s_add_u32 s{sT1}, s{buf}, s{sOLW}
                s_mov_b32 m0, s{sT1}
                s_add_u32 s{sT0}, s{sT0}, s{sOBASE}"""

    def wo_adv(self):
        if self.gmajor:
            l, e = self.lab("wa"), self.lab("we")
            return f"""s_cmp_ge_u32 s{sOCI}, 4
                s_cbranch_scc1 {l}
                s_add_u32 s{sOG}, s{sOG}, 384
                s_cmp_eq_u32 s{sOG}, 1152
                s_cselect_b32 s{sOG}, 0, s{sOG}
                s_addc_u32 s{sOCI}, s{sOCI}, 0
                s_branch {e}
                {l}:
                s_add_u32 s{sOCI}, s{sOCI}, 1
                s_cmp_eq_u32 s{sOCI}, 8
                s_cselect_b32 s{sOCI}, 4, s{sOCI}
                s_cselect_b32 s{sT0}, 384, 0
                s_add_u32 s{sOG}, s{sOG}, s{sT0}
                {e}:"""
        return f"""s_add_u32 s{sOG}, s{sOG}, 384
                s_cmp_eq_u32 s{sOG}, 1152
                s_cselect_b32 s{sOG}, 0, s{sOG}
                s_addc_u32 s{sOCI}, s{sOCI}, 0"""

    def wo_items(self):
        items = []
        for n in range(6):
            t = self.wo_addr(sOBUF) + "\n" if n == 0 else ""
            if n == 4:
                t += f"s_add_u32 m0, s{sT1}, 4096\ns_nop 0\n"
            t += f"buffer_load_dwordx4 v{vOVO+n}, {sr(sWO)}, s{sT0} offen offset:{1024*(n&3)}{self.wflag} lds\n"
            if n == 5:
                t += self.wo_adv()
            items.append(t)
        return items

    def w_items(self, back=False):
        items = []
        for n in range(8):
            if n == 0:
                t = f"s_lshl_b32 s{sT0}, s{sWCH}, 19\ns_add_u32 s{sT0}, s{sT0}, s{sWCOL}\ns_mov_b32 m0, s{sWBUF}\n"
                t += f"s_sub_u32 s{sWCH}, s{sWCH}, 1\ns_cselect_b32 s{sWCH}, 8, s{sWCH}\n" if back else f"s_add_u32 s{sWCH}, s{sWCH}, 1\n"
            elif n == 4:
                t = f"s_add_u32 m0, s{sWBUF}, 4096\ns_add_u32 s{sT0}, s{sT0}, {65536+3072}\n"
            else:
                t = f"s_add_u32 s{sT0}, s{sT0}, {65536-1024}\n"
            t += f"buffer_load_dwordx4 v{vWVO+(n&1)}, {sr(sWQ)}, s{sT0} offen offset:{1024*(n&3)}{self.wflag} lds\n"
            if n == 7 and not back:
                t += f"""s_cmp_eq_u32 s{sWCH}, 9
                s_cselect_b32 s{sWCH}, 0, s{sWCH}
                s_add_u32 s{sWN}, s{sWN}, 1
                s_cmp_eq_u32 s{sWN}, 9
                s_cselect_b32 s{sT1}, 512, 0
                s_add_u32 s{sWCOL}, s{sWCOL}, s{sT1}"""
            items.append(t)
        return items

    def subs(self):
        a = self.a
        f = self.kvflag
        a(f"""F_x:
        s_lshl_b32 s{sT0}, s{sXCH}, 7
        s_add_u32 s{sT0}, s{sT0}, s{sXBASE}
        s_and_b32 s{sT1}, s{sXN}, 3
        s_lshl_b32 s{sT1}, s{sT1}, 2
        s_add_u32 s{sT1}, s{sT1}, s{sLW}
        s_lshl_b32 s{sT1}, s{sT1}, 11
        s_add_u32 m0, s{sT1}, {XR}""")
        self.x_adv()
        for n in range(2):
            a(f"buffer_load_dwordx4 v{vXVO+n}, {sr(sX)}, s{sT0} offen offset:{1024*n} lds")
        self.ret()
        a("F_w:")
        for t in self.w_items():
            a(t)
        self.ret()
        a(f"""F_kv:
        s_cmp_eq_u32 s{sTY}, 0
        s_cbranch_scc1 F_kv_a""")
        for t in self.kv_items_b():
            a(t)
        a(f"s_mov_b32 s{sKVCNT}, 8")
        self.ret()
        a(f"""F_kv_a:
        s_mov_b32 s{sKVCNT}, 0
        s_cmp_ge_u32 s{sKVN}, 32
        s_cbranch_scc1 F_kv_ret""")
        if self.follow:
            a(f"""s_cmp_eq_u32 s{sTHR}, 0
            s_cbranch_scc1 F_kv_go
            s_waitcnt vmcnt(0)
            v_readfirstlane_b32 s{sPROG}, v{vPR}""")
            if self.pace < 99:
                check = f"s_add_u32 s{sT1}, s{sPROG}, {self.pace}\ns_cmp_ge_u32 s{sT1}, s{sKVN}"
                a(check + "\ns_cbranch_scc1 F_kv_go")
                self.spin(f"buffer_load_dword v{vPR}, v{vZ}, {sr(sWS)}, s{sPADDR} offen sc1", vPR,
                          f"v_readfirstlane_b32 s{sPROG}, v{vPR}\n" + check)
            a("F_kv_go:")
        a(f"""s_mov_b32 m0, s{sKVM0}
        s_mov_b32 s{sKVCNT}, 4""")
        if self.thr < 63:
            a(f"s_lshr_b32 s{sT1}, {self.thrmask}, s{sKVN}\ns_and_b32 s{sT1}, s{sT1}, s{sTHR}")
        for n in range(4):
            if self.thr < 63:
                l = self.lab("thr")
                a(f"s_cmp_eq_u32 s{sT1}, 0\ns_cbranch_scc1 {l}\ns_waitcnt vmcnt({self.thr-1})\n{l}:")
            if n == 2:
                a(f"s_add_u32 m0, s{sKVM0}, 8192\ns_add_u32 s{sKVN}, s{sKVN}, 1")
            if n < 2:
                a(f"buffer_load_dwordx4 v{vKVO+n}, {sr(sK)}, s{sKVOFF} offen offset:{1024*n}{f} lds")
            else:
                a(f"buffer_load_dwordx4 v{vVVO+(n&1)}, {sr(sV)}, s{sKVOFF} offen offset:{1024*(n-2)}{f} lds")
        a(f"""s_add_u32 s{sKVOFF}, s{sKVOFF}, 8192
        s_add_u32 s{sKVM0}, s{sKVM0}, 16384
        s_cmp_ge_u32 s{sKVM0}, s{sRINGEND}
        s_cselect_b32 s{sT0}, 98304, 0
        s_sub_u32 s{sKVM0}, s{sKVM0}, s{sT0}""")
        if self.follow or self.help:
            a(f"s_cmp_eq_u32 s{sTHR}, 0\ns_cbranch_scc1 F_kv_ret")
        if self.help:
            if self.ahead < 0:
                a(f"""s_add_u32 s{sT1}, s{sPROG}, {self.lead0}
                s_max_u32 s{sTN}, s{sTN}, s{sT1}
                s_add_u32 s{sT1}, s{sPROG}, {self.lead1}
                s_min_u32 s{sT1}, s{sT1}, 31
                s_cmp_le_u32 s{sTN}, s{sT1}
                s_cselect_b32 s{sLAST}, s{sTN}, s{sLAST}
                s_addc_u32 s{sTN}, s{sTN}, 0""")
            else:
                a(f"""s_cmp_lt_u32 s{sKVN}, {self.early_n}
                s_cselect_b32 s{sLAST}, {self.ahead0}, {self.ahead}
                s_add_u32 s{sLAST}, s{sKVN}, s{sLAST}
                s_min_u32 s{sLAST}, s{sLAST}, 31
                s_max_u32 s{sLAST}, s{sLAST}, {self.from_}""")
            a(f"""s_and_b32 s{sT0}, s{sLAST}, 15
            s_lshl_b32 s{sT0}, s{sT0}, 13
            s_lshr_b32 s{sT1}, s{sLAST}, 4
            s_lshl_b32 s{sT1}, s{sT1}, 18
            s_add_u32 s{sT0}, s{sT0}, s{sT1}
            s_add_u32 s{sT0}, s{sT0}, s{sTBASE}
            v_lshlrev_b32 v1, 7, v0
            s_mov_b64 exec, {(1 << self.help) - 1}
            buffer_load_dword v{vDUM}, v1, {sr(sBV)}, s{sT0} offen offset:{4096 - 128*self.help}
            s_mov_b64 exec, -1""")
        if self.follow:
            a(f"buffer_load_dword v{vPR}, v{vZ}, {sr(sWS)}, s{sPADDR} offen sc1")
        a("F_kv_ret:")
        self.ret()
        a("F_wo:")
        for t in self.wo_items():
            a(t)
        self.ret()

    def kvwait(self):
        l = self.lab("kw")
        self.a(f"""s_waitcnt vmcnt(8)
        s_cmp_eq_u32 s{sKVCNT}, 8
        s_cbranch_scc1 {l}
        s_waitcnt vmcnt({self.NA})
        s_cmp_eq_u32 s{sKVCNT}, 4
        s_cbranch_scc1 {l}
        s_waitcnt vmcnt(0)
        {l}:""")

    def pretouch_wq(self, dst):
        if not self.touch:
            return
        a = self.a
        l = self.lab("pt")
        a(f"s_cmp_eq_u32 s{sTY}, 1\ns_cbranch_scc1 {l}")
        self.other_srd(sPT, 64, SIZE['B_wq'])
        a(f"""s_lshl_b32 s{sT0}, s{sB}, 2
        s_add_u32 s{sT0}, s{sT0}, s{sLW}
        s_mul_i32 s{sT0}, s{sT0}, {9*8192}
        s_lshl_b32 s{sT1}, s{sHG}, 10
        s_add_u32 s{sT0}, s{sT0}, s{sT1}
        v_lshrrev_b32 v1, 2, v0
        v_and_b32 v6, 3, v0
        v_lshlrev_b32 v6, 7, v6
        v_lshl_add_u32 v1, v1, 13, v6
        s_mov_b32 exec_hi, 15
        buffer_load_dword v{dst}, v1, {sr(sPT)}, s{sT0} offen offset:512""")
        if self.touch & 2:
            a(f"buffer_load_dword v{dst+1}, v1, {sr(sWQ)}, s{sT0} offen offset:512")
        a(f"s_mov_b64 exec, -1\n{l}:")

    def pretouch_wo(self, first):
        if not self.touch:
            return
        a = self.a
        l = self.lab("pt")
        a(f"s_cmp_eq_u32 s{sTY}, 1\ns_cbranch_scc1 {l}")
        if first:
            self.other_srd(sPT, 72, SIZE['B_wo'])
            a(f"""s_lshl_b32 s{sT0}, s{sB}, 2
            s_add_u32 s{sT0}, s{sT0}, s{sLW}
            s_mul_i32 s{sT0}, s{sT0}, 9216
            s_mul_i32 s{sTN}, s{sHG}, 589824
            s_add_u32 s{sTN}, s{sTN}, s{sT0}""")
        else:
            a(f"v_lshlrev_b32 v1, 7, v0\ns_mov_b64 exec, 0xfff\nbuffer_load_dword v{vFA+32}, v1, {sr(sPT)}, s{sTN} offen")
            if self.touch & 2:
                a(f"buffer_load_dword v{vFA+33}, v1, {sr(sWO)}, s{sTN} offen")
            a(f"s_mov_b64 exec, -1\ns_add_u32 s{sTN}, s{sTN}, 1536")
        a(f"{l}:")

    def rdA(self, reg, areg, mt, off0, off1, tag):
        return [(f"ds_read_b64_tr_b16 {vr(reg + 2*j, 2)}, v{areg+mt} offset:{o}", tag + (j,)) for j, o in enumerate((off0, off1))]

    def rdB(self, ks, qt):
        return (f"ds_read_b128 {vr(vFB + (ks*4+qt)*4, 4)}, v{vXA+ks} offset:{2048*qt}", ("B", ks, qt))

    def mfma(self, acc, mt, qt, areg, ks):
        c = vr(acc + (mt*4+qt)*4, 4)
        return f"v_mfma_f32_16x16x32_bf16 {c}, {vr(areg, 4)}, {vr(vFB + (ks*4+qt)*4, 4)}, {c}"

    def qA(self, ks, mt):
        return vFA + (ks*4 + mt)*4

    def q_rdA(self, ks, mt):
        return self.rdA(self.qA(ks, mt), vWA, mt, 32*ks*128, (32*ks+4)*128, ("A", ks, mt))

    def q_finalize(self, acc, pending):
        a = self.a
        a(f"s_mov_b32 s{sT2}, {fbits(QSCALE)}")
        mul, cvt, put = [], [], []
        for mt in range(4):
            for qt in range(4):
                c = acc + (mt*4+qt)*4
                mul.append("\n".join(f"v_mul_f32 v{c+r}, s{sT2}, v{c+r}" for r in range(4)))
                cvt.append(f"v_cvt_pk_bf16_f32 v{c}, v{c}, v{c+1}\nv_cvt_pk_bf16_f32 v{c+1}, v{c+2}, v{c+3}")
                put.append((f"v_xor_b32 v1, {32*mt}, v{vQW}\n" if qt == 0 else "") + f"ds_write_b64 v1, {vr(c,2)} offset:{2048*qt}")
        work = ["\n".join(([put[k-2]] if 2 <= k < 18 else []) + ([cvt[k-1]] if 1 <= k < 17 else []) + ([mul[k]] if k < 16 else [])) for k in range(18)]
        lead = len(pending) - 16 + 5
        for k, t in enumerate(pending):
            a(t)
            if k + 1 == lead:
                a("s_nop 3")
            if k + 1 >= lead:
                a(work.pop(0))
        for t in work:
            a(t)
        a("s_waitcnt lgkmcnt(0)")

    ORDER4 = [(mt, qt) for mt in range(4) for qt in range(4)]
    ORDER3 = [(mt, qt) for mt in range(3) for qt in range(4)]
    NEXTX = [f"s_add_u32 s{sN}, s{sN}, 1\ns_and_b32 s{sT0}, s{sN}, 3\ns_lshl_b32 s{sT0}, s{sT0}, 13",
             f"v_add_u32 v{vXA}, s{sT0}, v{vXA0}", f"v_add_u32 v{vXA+1}, s{sT0}, v{vXA0+1}"]

    def pj_first(self):
        a = self.a
        ACC0 = vACC
        a("L_pj:")
        if not (self.probes or self.stamps):
            self.late_srds()
        a(f"""v_mov_b32 v{vZ}, 0
        s_cmp_lg_u32 s{sLW}, 0
        s_cbranch_scc1 L_pj_a
        s_lshl_b32 s{sT0}, s{sTY}, 11
        s_lshl_b32 s{sT1}, s{sHG}, 2
        s_add_u32 s{sT0}, s{sT0}, s{sT1}
        s_add_u32 s{sT0}, s{sT0}, s{sFADDR}
        s_cmp_eq_u32 s{sTY}, 1
        s_cselect_b32 s{sT1}, s{sPADDR}, s{sT0}
        s_mov_b64 exec, 1
        buffer_store_dword v{vZ}, v{vZ}, {sr(sWS)}, s{sT0} offen sc1
        buffer_store_dword v{vZ}, v{vZ}, {sr(sWS)}, s{sT1} offen sc1
        s_mov_b64 exec, -1
        L_pj_a:""")
        self.early(6)
        for i in list(range(vKVO, vXVO)) + list(range(vOVO, vWVO)):
            a(f"v_mov_b32 v{i}, 0")
        a(f"""s_lshl_b32 s{sT2}, s{sLW}, 13
        s_mov_b32 s{sWB}, {R1}
        s_mov_b32 s{sWB+1}, {R2}
        s_mov_b32 s{sWB+2}, {WR}
        v_lshrrev_b32 v1, 2, v3
        v_lshl_add_u32 v6, v2, 3, v1
        v_lshrrev_b32 v1, 1, v1
        v_and_b32 v7, 1, v2
        v_lshl_or_b32 v1, v7, 1, v1
        v_and_b32 v7, 3, v0
        v_lshlrev_b32 v7, 3, v7
        v_lshl_add_u32 v6, v6, 7, v7
        v_lshl_add_u32 v6, v1, 5, v6
        v_add_u32 v{vWA0}, s{sT2}, v6
        v_add_u32 v{vWA}, {WR}, v{vWA0}""")
        for mt in range(1, 4):
            a(f"v_xor_b32 v{vWA+mt}, {32*mt}, v{vWA}")
        a(f"""v_lshrrev_b32 v1, 1, v3
        v_xor_b32 v6, v1, v2
        v_lshlrev_b32 v6, 4, v6
        v_lshl_add_u32 v6, v3, 7, v6
        v_add_u32 v{vXA0}, {XR}, v6
        v_xor_b32 v{vXA0+1}, 64, v{vXA0}
        v_mov_b32 v{vXA}, v{vXA0}
        v_mov_b32 v{vXA+1}, v{vXA0+1}
        v_lshrrev_b32 v6, 1, v2
        v_xor_b32 v6, v6, v1
        v_lshlrev_b32 v6, 4, v6
        v_lshl_add_u32 v6, v3, 7, v6
        v_and_b32 v7, 1, v2
        v_lshl_add_u32 v6, v7, 3, v6
        v_add_u32 v6, s{sT2}, v6
        v_add_u32 v{vQW}, {R2}, v6""")
        for i in range(64):
            a(f"v_mov_b32 v{ACC0+i}, 0")
        for i in range(16):
            a(f"v_mov_b32 v{vFA+16+i}, 0\nv_mov_b32 v{vFB+16+i}, 0")
        self.early(4)
        srd(a, sPT, sDBGP, 256)
        a(f"""v_mov_b32 v1, 1
        s_lshl_b32 s{sT0}, s{sB}, 2
        s_mov_b32 s{sN}, 0
        s_waitcnt vmcnt(0)
        s_cmp_lg_u32 s{sLW}, 0
        s_cbranch_scc1 L_q0
        s_mov_b64 exec, 1
        buffer_atomic_add v1, v{vZ}, {sr(sPT)}, s{sT0} offen offset:{128*bool(self.dbgst)} sc1
        s_mov_b64 exec, -1""")
        nextbuf = [f"v_add_u32 v{vWA}, s{sWB}, v{vWA0}\ns_mov_b32 s{sT0}, s{sWB}", f"v_xor_b32 v{vWA+1}, 32, v{vWA}\ns_mov_b32 s{sWB}, s{sWB+1}",
                   f"v_xor_b32 v{vWA+2}, 64, v{vWA}\ns_mov_b32 s{sWB+1}, s{sWB+2}", f"v_xor_b32 v{vWA+3}, 96, v{vWA}\ns_mov_b32 s{sWB+2}, s{sT0}"]
        a("L_q0:\ns_barrier")
        self.probe(0, True)
        lg = Lg(a)
        rd = lambda ks: [self.rdB(ks, 0)] + self.q_rdA(ks, 0) + [self.rdB(ks, q) for q in (1, 2, 3)] + sum((self.q_rdA(ks, m) for m in (1, 2, 3)), [])
        r0 = rd(0)
        plan = {k: [] for k in range(-1, 32)}
        for i, x in enumerate(r0):
            plan[i // 2 - 1].append(x)
        for pos, m in ((6, 0), (8, 1), (12, 2), (16, 3)):
            for j, x in enumerate(self.q_rdA(1, m)):
                plan[pos + j].append(x)
        for q in range(4):
            plan[18 + q].append(self.rdB(1, q))
        tail = nextbuf + self.NEXTX
        for x in plan[-1]:
            lg.issue(*x)
        for k in range(32):
            mt, qt = self.ORDER4[k & 15]
            if k == 16:
                lg.wait(*[tag for _, tag in r0])
            a(self.mfma(ACC0, mt, qt, self.qA(1 - (k >> 4), mt), 1 - (k >> 4)))
            for x in plan[k]:
                lg.issue(*x)
            if k >= 22 and tail:
                a(tail.pop(0))
            if k == 30:
                lg.drain()
                a(f"s_cmp_eq_u32 s{sN}, 1")
        self.probe(1)
        a("s_cbranch_scc1 L_q0_setup")
        if self.wqat > 1:
            a(f"s_cmp_eq_u32 s{sN}, {self.wqat}\ns_cbranch_scc1 L_q0_touch")
        a(f"s_cmp_lt_u32 s{sN}, 9\ns_cbranch_scc1 L_q0")
        self.early(10)
        self.q_finalize(ACC0, [self.mfma(ACC0, mt, qt, self.qA(1, mt), 1) for mt, qt in self.ORDER4])
        self.early(12)
        a(f"v_xor_b32 v{vQW}, {R2 ^ WR}, v{vQW}")
        self.stamp(1)
        a("s_branch L_pj_rest")

    def pj_setup(self):
        a = self.a
        a("L_q0_setup:")
        self.late_common()
        self.late_wo()
        a(f"""s_cmp_eq_u32 s{sTY}, 1
        s_cselect_b32 s{sKVN}, 2, {self.adist}
        s_lshl_b32 s{sT0}, s{sKVN}, 13
        s_add_u32 s{sKVOFF}, s{sKVOFF}, s{sT0}
        s_mul_i32 s{sT0}, s{sKVN}, s{sBUFSZ}
        s_add_u32 s{sKVM0}, s{sKVM0}, s{sT0}
        s_mov_b32 s{sTHR}, 1
        s_add_u32 s{sWCOL}, s{sWCOL}, 512
        s_add_u32 s{sWCH}, s{sWCH}, 7
        s_sub_u32 s{sT0}, s{sWCH}, 9
        s_cselect_b32 s{sWCH}, s{sWCH}, s{sT0}
        s_lshl_b32 s{sT2}, s{sLW}, 13
        s_add_u32 s{sWBUF}, s{sT2}, {WR}
        s_mov_b32 s{sXN}, 4
        s_add_u32 s{sXCH}, s{sXCH}, 4
        s_sub_u32 s{sT0}, s{sXCH}, 9
        s_cselect_b32 s{sXCH}, s{sXCH}, s{sT0}
        s_mov_b32 s{sOCI}, 0
        s_mov_b32 s{sOG}, 0
        s_mov_b32 s{sOBUF}, {WR}
        s_mov_b32 s{sTN}, 0
        s_mov_b32 s{sLAST}, 2
        v_mov_b32 v{vPR}, 0""")
        for i in range(64):
            a(f"v_mov_b32 v{vACC+64+i}, 0")
        if self.wqat > 1:
            a("s_branch L_q0\nL_q0_touch:")
        self.pretouch_wq(vFA + 34)
        a("s_branch L_q0")

    def stream_slot(self, ty, rdA, MT, acc, aset, loads, after, readB=True):
        e = self.a
        e("s_barrier")
        self.probe(0, True)
        lg = Lg(e)
        for t, tag in rdA:
            lg.issue(t, tag)
        lg.drain()
        self.probe(1)
        e("s_barrier")
        self.probe(2)
        for ks in (0, 1):
            for q in range(4 if readB else 0):
                lg.issue(*self.rdB(ks, q))
        if loads is None:
            return
        def mk(ks, mt, qt):
            def f():
                lg.wait(("B", ks, qt))
                e(self.mfma(acc, mt, qt, aset(ks, mt), ks))
            return f
        mm = [mk(ks, mt, qt) for ks in (0, 1) for mt in range(MT) for qt in range(4)]
        self.spread(mm, loads + (self.kv_items_b() if ty else []))
        self.probe(6)
        if not ty:
            if getattr(self, "extra", None):
                l = self.lab("tx")
                e(f"s_cmp_ge_u32 s{sN}, 15\ns_cbranch_scc1 {l}")
                self.pretouch_wo(False)
                e(f"{l}:")
                self.extra = None
            self.call("F_kv")
        for t in after:
            e(t)

    def store_items(self, G):
        acc = vACC + 48 * G
        items = []
        for qd in range(6):
            c = acc + 8*qd
            t = "\n".join(f"v_cvt_pk_bf16_f32 v{c+i}, v{c+2*i}, v{c+2*i+1}" for i in range(4))
            t += f"\nbuffer_store_dwordx4 {vr(c,4)}, v{vST}, {sr(sWS)}, s{sM} offen offset:{1024*(qd&3)} {('sc1', 'sc1 nt', 'sc0 sc1')[self.partop]}"
            if qd in (3, 5):
                t += f"\ns_add_u32 s{sM}, s{sM}, {4096 if qd == 3 else 24576-4096}"
            items.append(t)
        return items

    def pj_rest(self):
        a = self.a
        ACC1 = vACC + 64
        qrd = sum((self.q_rdA(ks, m) for ks in (0, 1) for m in range(4)), [])
        a(f"L_pj_rest:\nv_mov_b32 v{vXA}, v{vXA0}\nv_mov_b32 v{vXA+1}, v{vXA0+1}")
        self.prio_set(1)
        prevx = [f"s_add_u32 s{sN}, s{sN}, 1\ns_sub_u32 s{sT0}, 9, s{sN}\ns_and_b32 s{sT0}, s{sT0}, 3\ns_lshl_b32 s{sT0}, s{sT0}, 13"] + self.NEXTX[1:]
        a(f"s_cmp_eq_u32 s{sTY}, 1\ns_cbranch_scc1 L_q1_1")
        if self.help:
            self.other_srd(sBV, 56, SIZE['B_v'])
        if self.follow:
            self.wait_init(vZ, vDUM)
        if self.aidle:
            self.pretouch_wo(True)
            a(f"s_mov_b32 s{sM}, 6\nL_idle_a:\ns_barrier")
            self.probe(0, True)
            a("s_barrier")
            if self.aidle == 1:
                self.pretouch_wo(False)
            self.call("F_kv")
            self.kvwait()
            a(f"s_sub_u32 s{sM}, s{sM}, 1\ns_cmp_lg_u32 s{sM}, 0\ns_cbranch_scc1 L_idle_a")
        for ty in (0, 1):
            nk = 8 if ty else self.NA
            a(f"L_q1_{ty}:")
            if self.aidle == 2 and not ty:
                self.extra = "touch"
            self.stream_slot(ty, qrd, 4, ACC1, self.qA, self.w_items(True), prevx)
            a(f"s_sub_u32 s{sT0}, s{sN}, 11\ns_cmp_ge_u32 s{sT0}, 5\ns_cbranch_scc1 L_q1_nox{ty}")
            self.call("F_x")
            a(f"""s_sub_u32 s{sXN}, s{sXN}, 2
            s_add_u32 s{sXCH}, s{sXCH}, 7
            s_sub_u32 s{sT0}, s{sXCH}, 9
            s_cselect_b32 s{sXCH}, s{sXCH}, s{sT0}""")
            self.probe(4)
            a(f"s_waitcnt vmcnt({nk + 2})")
            self.probe(5)
            a(f"s_branch L_q1_{ty}\nL_q1_nox{ty}:")
            self.probe(4)
            a(f"s_waitcnt vmcnt({nk})")
            self.probe(5)
            a(f"s_cmp_lt_u32 s{sN}, 17\ns_cbranch_scc1 L_q1_{ty}")
            if not ty:
                a("s_branch L_q1_last")
        a("L_q1_last:")
        self.stream_slot(0, qrd, 4, ACC1, self.qA, None, None)
        self.call("F_kv")
        a("s_waitcnt lgkmcnt(0)")
        self.q_finalize(ACC1, [self.mfma(ACC1, mt, qt, self.qA(ks, mt), ks) for ks in (0, 1) for mt, qt in self.ORDER4])
        self.kvwait()
        self.stamp(2)
        a("s_barrier")
        self.probe(0, True)
        a("s_barrier")
        if not self.aidle:
            self.pretouch_wo(True)
        self.call("F_kv")
        for i in range(144):
            a(f"v_mov_b32 v{vACC+i}, 0")
        a(f"""v_lshrrev_b32 v6, 2, v0
        v_bfe_u32 v1, v6, 1, 2
        v_and_b32 v7, 3, v0
        v_lshlrev_b32 v7, 3, v7
        v_mul_u32_u24 v6, 384, v6
        v_add_u32 v6, v6, v7
        s_mul_i32 s{sT0}, s{sLW}, 3""")
        for nt in range(3):
            a(f"""s_add_u32 s{sT1}, s{sT0}, {nt}
            v_xor_b32 v7, s{sT1}, v1
            v_lshl_add_u32 v{vOA0+nt}, v7, 5, v6
            v_add_u32 v{vOA+nt}, {WR}, v{vOA0+nt}""")
        a(f"""s_lshl_b32 s{sT0}, s{sTY}, 4
        s_add_u32 s{sT0}, s{sT0}, s{sB}
        s_lshl_b32 s{sT0}, s{sT0}, 3
        s_add_u32 s{sT0}, s{sT0}, s{sHG}
        s_mul_i32 s{sM}, s{sT0}, {PART}
        s_add_u32 s{sM}, s{sM}, s{sOLW}
        v_lshl_add_u32 v{vST}, v3, 2, v2
        v_lshlrev_b32 v{vST}, 4, v{vST}""")
        self.kvwait()
        if self.aidle:
            a(f"s_cmp_eq_u32 s{sTY}, 0\ns_cbranch_scc1 L_kvl_done")
        a(f"s_mov_b32 s{sN}, 6\nL_kvl:\ns_barrier")
        self.probe(0, True)
        a("s_barrier")
        self.probe(2)
        if not self.aidle:
            self.pretouch_wo(False)
        self.call("F_kv")
        self.probe(4)
        self.kvwait()
        self.probe(5)
        a(f"""s_sub_u32 s{sN}, s{sN}, 1
        s_cmp_lg_u32 s{sN}, 0
        s_cbranch_scc1 L_kvl
        L_kvl_done:
        s_barrier""")
        self.probe(0, True)
        a("s_barrier")
        self.call("F_wo")
        self.call("F_kv")
        self.kvwait()
        self.stamp(3)
        oA = lambda c, ks, mt: vFA + 4*mt + (0 if ks == 0 else 12 + 12*(c & 1))
        o_rdA = lambda c, ks, mt: self.rdA(oA(c, ks, mt), vOA, mt, 32*ks*384, (32*ks+16)*384, ("A", ks, mt))
        xa_step = [f"s_add_u32 s{sN}, s{sN}, 1\ns_add_u32 s{sT0}, s{sROT}, s{sN}\ns_and_b32 s{sT0}, s{sT0}, 3\ns_lshl_b32 s{sT0}, s{sT0}, 13",
                   f"v_add_u32 v{vXA}, s{sT0}, v{vXA0}", f"v_add_u32 v{vXA+1}, s{sT0}, v{vXA0+1}"]
        a(f"s_mov_b32 s{sN}, -1")
        for t in xa_step:
            a(t)
        ord_ = sum((o_rdA(0, ks, m) for ks in (0, 1) for m in range(3)), [])
        a(f"s_cmp_eq_u32 s{sTY}, 1\ns_cbranch_scc1 L_o2_1")
        for ty in (0, 1):
            a(f"L_o2_{ty}:")
            for G in range(3):
                self.stream_slot(ty, ord_, 3, vACC + 48*G, lambda ks, mt: oA(0, ks, mt), self.wo_items(), xa_step if G == 0 else [], G == 0)
                self.probe(4)
                if ty:
                    a("s_waitcnt vmcnt(8)")
                else:
                    self.kvwait()
                self.probe(5)
            a(f"s_cmp_lt_u32 s{sN}, 4\ns_cbranch_scc1 L_o2_{ty}")
            if not ty:
                a("s_branch L_o2_done")
        a("L_o2_done:")
        self.stamp(4)
        if self.probes:
            a(f"s_add_u32 s{sSLOT}, s{sSLOT}, 3")
        a("s_barrier\ns_barrier")
        if self.touch & 4:
            a(f"""s_cmp_eq_u32 s{sTY}, 1
            s_cbranch_scc1 L_t38
            s_lshl_b32 s{sT0}, s{sB}, 2
            s_add_u32 s{sT0}, s{sT0}, s{sLW}
            s_mul_i32 s{sT0}, s{sT0}, 4608
            s_mul_i32 s{sT1}, s{sHG}, 589824
            s_add_u32 s{sT0}, s{sT0}, s{sT1}
            s_add_u32 s{sT0}, s{sT0}, 294912
            v_lshlrev_b32 v1, 7, v0
            s_mov_b32 exec_hi, 15
            buffer_load_dword v{vDUM}, v1, {sr(sWO)}, s{sT0} offen
            s_mov_b64 exec, -1
            L_t38:""")
        self.call("F_kv")
        a(f"""v_lshl_add_u32 v1, v0, 2, s{sRB}
        v_cmp_gt_u32 vcc, 6, v0
        s_and_saveexec_b64 {sr(sT0, 2)}, vcc
        s_cmp_lg_u32 s{sLW}, 0
        s_cbranch_scc1 L_nz
        ds_write_b32 v1, v{vZ} offset:{SYNC - WR}
        L_nz:
        s_mov_b64 exec, -1
        s_waitcnt lgkmcnt(0)""")
        self.kvwait()
        srd(a, sPT, sDBGP, 256)
        a(f"""s_lshl_b32 s{sT2}, s{sB}, 2
        s_barrier
        s_barrier
        buffer_load_dword v{vDUM}, v{vZ}, {sr(sPT)}, s{sT2} offen offset:{128*bool(self.dbgst)} sc1
        s_mov_b32 s{sOBUF}, s{sRB+1}""")
        self.call("F_wo")
        a(f"""s_waitcnt vmcnt(6)
        v_readfirstlane_b32 s{sT1}, v{vDUM}
        s_cmp_ge_u32 s{sT1}, 16
        s_cbranch_scc1 L_init_ok""")
        self.wait_init(vZ, vDUM)
        a(f"L_init_ok:\ns_barrier\ns_barrier\ns_mov_b32 s{sOBUF}, s{sRB+2}")
        self.call("F_wo")
        if self.prio & 4:
            a("s_setprio 0")
        self.stamp(5)
        st = []
        for c in range(12):
            grp = (lambda c: c >> 2) if self.gmajor else (lambda c: c % 3)
            acc, prev = vACC + 48 * grp(c), vACC + 48 * grp(max(c - 1, 0))
            newB = c % 3 == 0 or self.gmajor
            lg = Lg(a)
            if c == 0:
                for ks in (0, 1):
                    for m in range(3):
                        for x in o_rdA(0, ks, m):
                            lg.issue(*x)
                lg.drain()
            a("s_barrier")
            self.probe(0, True)
            b0 = [self.rdB(0, q) for q in range(4)] if newB else []
            r0 = b0[:1] + o_rdA(c, 0, 0) + b0[1:] + o_rdA(c, 0, 1) + o_rdA(c, 0, 2)
            ra1 = sum((o_rdA(c, 1, m) for m in range(3)), [])
            if c == 0:
                r0, ra1 = b0 + [self.rdB(1, q) for q in range(4)], []
            plan = {k: [] for k in range(-1, 24)}
            for i, x in enumerate(r0):
                plan[(i // 2 - 1 if newB else i - 1) if c else -1].append(x)
            for i, x in enumerate(ra1):
                plan[5 + i if c else 12 + i // 2].append(x)
            for q in range(4 if newB and c else 0):
                plan[12 + q].append(self.rdB(1, q))
            fill = [f"v_add_u32 v{vOA+nt}, s{sRB + ((c+1)&3)}, v{vOA0+nt}" for nt in range(3)] + (xa_step if newB else [])
            for x in plan[-1]:
                lg.issue(*x)
            for k in range(0 if c else 12, 24):
                mt, qt = self.ORDER3[k % 12]
                if k == 12 and c:
                    lg.wait(*[tag for _, tag in r0])
                elif not c:
                    lg.wait(("A", 0, mt, 0), ("A", 0, mt, 1), ("B", 0, qt))
                a(self.mfma(prev, mt, qt, oA(c - 1, 1, mt), 1) if k < 12 else self.mfma(acc, mt, qt, oA(c, 0, mt), 0))
                for x in plan[k]:
                    lg.issue(*x)
                if k >= (16 if c else 19) and fill:
                    a(fill.pop(0))
                    if not c and fill:
                        a(fill.pop(0))
                if self.gmajor:
                    if k == 11 and c in (self.store0, self.store1):
                        st += self.store_items(int(c == self.store1))
                    step = self.stp0 if c < self.store1 else self.stp
                else:
                    if c >= 10 and k == 9:
                        st += self.store_items(c - 10)
                    step = self.stp
                if st and k % step == step - 1:
                    a(st.pop(0))
                if k == 22:
                    lg.drain()
            assert not fill
            if c < 2:
                a(f"s_waitcnt vmcnt({6 - 6*c})")
            if c in (4, 8):
                self.stamp(6 + (c >> 3))
        for k, (mt, qt) in enumerate(self.ORDER3):
            a(self.mfma(vACC + 96, mt, qt, oA(11, 1, mt), 1))
            if k == 9:
                st += self.store_items(2)
            if st and k % 2 == 1:
                a(st.pop(0))
        for t in st:
            a(t)
        self.stamp(8)
        a(f"""v_mov_b32 v1, {SYNC}
        v_mov_b32 v6, 1
        s_lshl_b32 s{sT0}, s{sTY}, 11
        s_lshl_b32 s{sT1}, s{sHG}, 2
        s_add_u32 s{sT0}, s{sT0}, s{sT1}
        s_add_u32 s{sT0}, s{sT0}, s{sFADDR}
        s_mov_b64 exec, 1""")
        for k in range(1):
            a(f"""s_waitcnt vmcnt(0)
            ds_add_rtn_u32 v7, v1, v6 offset:{4*k}
            s_waitcnt lgkmcnt(0)
            v_readfirstlane_b32 s{sT1}, v7
            s_cmp_lg_u32 s{sT1}, 3
            s_cbranch_scc1 L_nf{k}
            {("buffer_store_dword", "buffer_store_dword", "buffer_atomic_add")[self.flagop]} v6, v{vZ}, {sr(sWS)}, s{sT0} offen offset:{32*k} {("sc1", "sc0 sc1", "sc1")[self.flagop]}
            L_nf{k}:""")
            if k == 0:
                self.stamp(13)
        a("s_mov_b64 exec, -1")
        self.stamp(9)
        self.probe_dump()
        a("s_branch L_reduce")

    def at_first(self):
        a = self.a
        a("L_at:")
        self.prio_set(0)

        issued = []
        WBUFS = (WR, R1, R2)

        def ldx(n, direct):
            if n <= 3 or n >= 9 or direct:
                self.call("F_x")
            else:
                a(f"s_lshl_b32 s{sT0}, s{sXCH}, 7\ns_add_u32 s{sT0}, s{sT0}, s{sXBASE}")
                self.x_adv()
                for i in range(2):
                    a(f"buffer_load_dwordx4 {vr(vO + (n-4)*8 + 4*i, 4)}, v{vXVO+i}, {sr(sX)}, s{sT0} offen offset:{1024*i}")
            issued.extend([("x", n)] * 2)

        def ldw(n):
            if n == 9:
                a(f"s_sub_u32 s{sWCH}, s{sWCH}, 1\ns_cselect_b32 s{sWCH}, 8, s{sWCH}")
            a(f"s_lshl_b32 s{sWBUF}, s{sLW}, 13\ns_add_u32 s{sWBUF}, s{sWBUF}, {WBUFS[n % 3]}")
            self.call("F_w")
            issued.extend([("w", n)] * 8)

        def prefill(k, ty):
            for _ in range(2 - ty):
                self.call("F_kv")
            issued.extend([("kv", k)] * 8)

        def wait(*tags):
            k = max(i for i, t in enumerate(issued) if t in tags) + 1
            a(f"s_waitcnt vmcnt({min(63, len(issued) - k)})")
        def first_stage(ty):
            del issued[:]
            direct = ty == 1 and self.xplan
            ldx(0, direct); ldw(0)
            self.early(2)
            self.call("F_atset")
            self.early(4)
            ldx(1, direct); ldw(1)
            wait(("x", 0), ("w", 0))
            self.early(5)
            for n in range(9):
                a("s_barrier")
                self.probe(0, True)
                if 1 <= n <= 5 and not direct:
                    wait(("x", n + 3))
                    for i in range(2):
                        a(f"ds_write_b128 v{vT}, {vr(vO + (n-1)*8 + 4*i, 4)} offset:{((n+3)&3)*8192 + 1024*i}")
                if n == 0:
                    for k in range(2, 4 if direct else 9):
                        ldx(k, direct)
                elif direct and n <= 5:
                    ldx(n + 3, direct)
                if n + 2 <= 9:
                    ldw(n + 2)
                if n == 8:
                    prefill(0, ty)
                    if ty or self.adist == 4:
                        prefill(1, ty)
                self.probe(4)
                wait(*([("w", n + 1)] + [("kv", 0) if n == 8 else ("x", n + 1)]))
                a("s_waitcnt lgkmcnt(0)")
                self.probe(5)
        a(f"s_mov_b32 s{sXN}, 0\ns_cmp_eq_u32 s{sTY}, 0\ns_cbranch_scc1 L_at_a")
        first_stage(1)
        a("s_branch L_at_done\nL_at_a:")
        if self.xplan & 2:
            self.other_srd(sPT, 64, SIZE['B_wq'])
            a(f"""s_lshl_b32 s{sT0}, s{sB}, 2
            s_add_u32 s{sT0}, s{sT0}, s{sLW}
            s_mul_i32 s{sT0}, s{sT0}, {9*8192}
            s_lshl_b32 s{sT1}, s{sHG}, 10
            s_add_u32 s{sT0}, s{sT0}, s{sT1}
            v_lshrrev_b32 v1, 2, v0
            v_and_b32 v6, 3, v0
            v_lshlrev_b32 v6, 7, v6
            v_lshl_add_u32 v1, v1, 13, v6
            s_mov_b32 exec_hi, 15
            buffer_load_dword v{vP+3}, v1, {sr(sPT)}, s{sT0} offen""")
            if self.xplan & 4:
                a(f"buffer_load_dword v{vP+2}, v1, {sr(sWQ)}, s{sT0} offen")
            a("s_mov_b64 exec, -1")
        if self.xtouch:
            self.other_srd(sPT, 40, SIZE['B_x'])
            a(f"v_mul_u32_u24 v1, 1152, v0\ns_mul_i32 s{sT2}, s{sB}, 73728")
            for j in range(2):
                a(f"""s_add_u32 s{sT0}, s{sXCH}, s{sLW}
                s_add_u32 s{sT0}, s{sT0}, {self.xfrom + 4*j}
                s_mul_i32 s{sT1}, s{sT0}, 57
                s_lshr_b32 s{sT1}, s{sT1}, 9
                s_mul_i32 s{sT1}, s{sT1}, 9
                s_sub_u32 s{sT0}, s{sT0}, s{sT1}
                s_lshl_b32 s{sT0}, s{sT0}, 7
                s_add_u32 s{sT0}, s{sT0}, s{sT2}
                buffer_load_dword v{vP+j}, v1, {sr(sPT)}, s{sT0} offen""")
        first_stage(0)
        a("L_at_done:")
        if self.prio & 1:
            a("s_setprio 0")
        a("s_branch L_stage\nF_atset:")
        if not (self.probes or self.stamps):
            self.late_srds()
        self.late_common()
        a(f"""s_mov_b32 s{sTHR}, 0
        s_lshl_b32 s{sT0}, s{sLW}, 11
        s_add_u32 s{sT0}, s{sT0}, {XR}
        v_lshl_add_u32 v{vT}, v0, 4, s{sT0}""")
        self.at_setup()
        if self.xplan:
            a(f"s_cmp_eq_u32 s{sTY}, 0\ns_cbranch_scc1 F_atset_ret")
            for i in range(vO, vO + 40):
                a(f"v_mov_b32 v{i}, 0")
            a("F_atset_ret:")
        self.ret()

    def at_setup(self):
        a = self.a
        a(f"""s_lshr_b32 s{sT0}, s{sLW}, 1
        s_mul_i32 s{sT0}, s{sT0}, s{sTY}
        s_lshl_b32 s{sT0}, s{sT0}, 13
        v_xor_b32 v7, v2, v3
        v_lshlrev_b32 v7, 4, v7
        v_lshl_add_u32 v7, v3, 8, v7
        v_add_u32 v{vKA}, s{sT0}, v7""")
        for ks in range(1, 4):
            a(f"v_xor_b32 v{vKA+ks}, {64*ks}, v{vKA}")
        a(f"""s_lshr_b32 s{sT1}, s{sBUFSZ}, 1
        s_add_u32 s{sT0}, s{sT0}, s{sT1}
        v_lshrrev_b32 v1, 2, v0
        v_and_b32 v6, 7, v1
        v_lshlrev_b32 v7, 8, v1
        v_lshl_add_u32 v7, v6, 5, v7
        v_and_b32 v1, 3, v0
        v_lshl_add_u32 v7, v1, 3, v7
        v_add_u32 v{vVA}, s{sT0}, v7""")
        for dt in range(1, 8):
            a(f"v_xor_b32 v{vVA+dt}, {32*dt}, v{vVA}")
        a(f"""s_mov_b32 s{sRPOS}, 0
        s_mov_b32 s{sSTAGE}, 0
        s_mov_b32 s{sQBUF}, {R2 - XR}
        s_mov_b32 s{sM}, 3
        s_lshr_b32 s{sT0}, s{sLW}, 1
        s_lshl_b32 s{sT0}, s{sT0}, 14
        s_and_b32 s{sT1}, s{sLW}, 1
        s_lshl_b32 s{sT1}, s{sT1}, 12
        s_add_u32 s{sT0}, s{sT0}, s{sT1}
        s_add_u32 s{sT0}, s{sT0}, {XR}
        v_lshrrev_b32 v6, 1, v3
        v_xor_b32 v6, v6, v2
        v_lshlrev_b32 v6, 4, v6
        v_lshl_add_u32 v6, v3, 7, v6
        v_add_u32 v{vH}, s{sT0}, v6
        v_xor_b32 v{vH+1}, 64, v{vH}""")
        for i in list(range(vO + 40, vO + 64)) + list(range(vNM + 1, vNM + 8)) + [vL0, vL0 + 1, vL0 + 2, vL0 + 3, 4] + list(range(vOVO, vOVO + 6)):
            a(f"v_mov_b32 v{i}, 0")

    def at_rest(self):
        a = self.a
        publish = self.follow or self.gate
        a(f"""L_stage:
        s_mov_b32 s{sTH}, 0xff7fffff
        s_mov_b32 s{sFLOOR}, 0xff7fffff
        s_mov_b32 s{sFIRST}, 0
        s_cmp_lg_u32 s{sSTAGE}, 0
        s_cbranch_scc1 L_stage_a
        v_mov_b32 v{vNM}, 0
        L_stage_a:""")
        for i in range(2):
            a(f"v_add_u32 v{vT+i}, s{sQBUF}, v{vH+i}")
        a(f"s_mov_b32 s{sN}, 0\nL_tile:\ns_barrier")
        self.probe(0, True)
        a(f"s_cmp_lg_u32 s{sN}, 0\ns_cbranch_scc1 L_tile_k")
        for qt in range(2):
            for ks in range(4):
                a(f"ds_read_b128 {vr(vQ + (qt*4+ks)*4, 4)}, v{vT+(ks&1)} offset:{2048*qt + 8192*(ks>>1)}")
        a("s_waitcnt lgkmcnt(0)\nL_tile_k:")
        lg = Lg(a)
        for ks in range(4):
            for kt in range(2):
                lg.issue(f"ds_read_b128 {vr(vKF + (ks*2+kt)*4, 4)}, v{vKA+ks} offset:{4096*kt}", ("K", ks, kt))
        a("s_barrier")
        O = lambda dt, qt: vO + (((dt >> 1)*2 + qt)*2 + (dt & 1))*4
        pv = lambda dt, u: f"v_mfma_f32_16x16x32_bf16 {vr(O(dt, u), 4)}, {vr(vVF + dt*4, 4)}, {vr(vP+4*u, 4)}, {vr(O(dt, u), 4)}"
        if self.defer:
            a(f"s_cmp_eq_u32 s{sN}, 0\ns_cbranch_scc1 L_tile_q")
            late = [f"v_pk_add_f32 {vr(vL0+2*u, 2)}, {vr(vL0+2*u, 2)}, {vr(vS+8*u+2*i, 2)}" for u, i in ((1, 0), (0, 2), (1, 1), (0, 3), (1, 2), (1, 3))]
            late += [f"v_add_u32 v{vVA+i}, s{sPROG}, v{vVA+i}" for i in range(8)]
            def deferred():
                l = list(late)
                for dt in range(8):
                    a(pv(dt, 1))
                    for _ in range(2):
                        if l: a(l.pop(0))
            deferred()
            a("L_tile_q:")
        vreads = [(f"ds_read_b64_tr_b16 {vr(vVF + dt*4 + 2*j, 2)}, v{vVA+dt} offset:{4096*j}", ("V", dt, j)) for dt in range(8) for j in range(2)]
        S = lambda qt, kt: vS + (qt*2 + kt)*4
        O = lambda dt, qt: vO + (((dt >> 1)*2 + qt)*2 + (dt & 1))*4
        for ks in range(4):
            for kt in range(2):
                lg.wait(("K", ks, kt))
                for qt in range(2):
                    c = vr(vNM + 4*qt, 4) if ks == 0 else vr(S(qt, kt), 4)
                    a(f"v_mfma_f32_16x16x32_bf16 {vr(S(qt, kt), 4)}, {vr(vKF + (ks*2+kt)*4, 4)}, {vr(vQ + (qt*4+ks)*4, 4)}, {c}")
                    if len(lg.q) < 15:
                        lg.issue(*vreads.pop(0))
        for t, tag in vreads:
            lg.issue(t, tag)
        a(f"""s_add_u32 s{sRPOS}, s{sRPOS}, s{sBUFSZ}
        s_cmp_ge_u32 s{sRPOS}, 98304
        s_cselect_b32 s{sT0}, 98304, 0
        s_sub_u32 s{sRPOS}, s{sRPOS}, s{sT0}
        s_sub_u32 s{sPROG}, s{sBUFSZ}, s{sT0}""")
        adv = [f"v_add_u32 v{vKA+i}, s{sPROG}, v{vKA+i}" for i in range(12)]
        nadv = 4 if self.defer else 2
        for t in adv[:nadv]:
            a(t)
        adv = adv[nadv:]
        t0, t1 = vT, vT + 1
        a(f"""v_max3_f32 v{t0}, v{vS}, v{vS+1}, v{vS+2}
        v_max3_f32 v{t0}, v{t0}, v{vS+3}, v{vS+4}
        v_max3_f32 v{t1}, v{vS+8}, v{vS+9}, v{vS+10}
        v_max3_f32 v{t0}, v{t0}, v{vS+5}, v{vS+6}
        v_max3_f32 v{t1}, v{t1}, v{vS+11}, v{vS+12}
        v_max_f32 v{t0}, v{t0}, v{vS+7}
        v_max3_f32 v{t1}, v{t1}, v{vS+13}, v{vS+14}
        v_max_f32 v{t1}, v{t1}, v{vS+15}
        v_max_f32 v{vT+2}, v{t0}, v{t1}
        v_cmp_lt_f32 vcc, s{sTH}, v{vT+2}
        s_cbranch_vccnz L_rescale
        L_tile_exp:""")
        ex = lambda u: [f"v_exp_f32 v{vS+8*u+i}, v{vS+8*u+i}" for i in range(8)]
        cv = lambda u: [f"v_cvt_pk_bf16_f32 v{vP+4*u+i}, v{vS+8*u+2*i}, v{vS+8*u+2*i+1}" for i in range(4)]
        if self.pkl:
            ad = lambda u: [x for i in range(4) for x in (f"v_pk_add_f32 {vr(vL0+2*u, 2)}, {vr(vL0+2*u, 2)}, {vr(vS+8*u+2*i, 2)}", "")]
        else:
            ad = lambda u: [f"v_add_f32 v{vL0+2*u+(i&1)}, v{vL0+2*u+(i&1)}, v{vS+8*u+i}" for i in range(8)]
        pv = lambda dt, u: f"v_mfma_f32_16x16x32_bf16 {vr(O(dt, u), 4)}, {vr(vVF + dt*4, 4)}, {vr(vP+4*u, 4)}, {vr(O(dt, u), 4)}"
        e0, c0, a0 = ex(0), cv(0), ad(0)
        e1, c1, a1 = ex(1), cv(1), ad(1)
        for t in e0[:3] + [e0[3], c0[0], e0[4], e0[5], c0[1], e0[6], e0[7], c0[2], e1[0], c0[3], e1[1], a0[0]]:
            a(t)
        gaps = [[e1[2]], [e1[3], c1[0]], [e1[4]], [e1[5], c1[1]], [e1[6]], [e1[7]], [c1[2], a0[1]], [c1[3], a0[2], a0[3] or "s_nop 0"]]
        for dt in range(8):
            if dt % 2 == 0:
                lg.wait(("V", dt + 1, 0), ("V", dt + 1, 1))
            a(pv(dt, 0))
            for t in gaps[dt]:
                a(t)
        rest = [x for pair in zip(a1, a0[4:] + adv[:4]) for x in pair] + adv[4:]
        assert self.pkl and not self.defer and not publish
        a(f"s_cmp_eq_u32 s{sN}, 15\ns_cbranch_scc1 L_tile_last")
        if not self.defer:
            for dt in range(8):
                a(pv(dt, 1))
                for _ in range(3):
                    if rest: a(rest.pop(0))
            assert not rest
        self.probe(6)
        a(f"s_or_b32 s{sT0}, s{sSTAGE}, s{sN}\ns_cbranch_scc1 L_tile_nw\ns_waitcnt vmcnt(0)\nL_tile_nw:")
        if publish:
            a(f"""s_cmp_gt_u32 s{sTY}, s{sLW}
            s_cbranch_scc0 L_tile_np""")
            if not self.follow:
                a(f"s_add_u32 s{sM}, s{sM}, 1\ns_cmp_eq_u32 s{sM}, {self.gate + 1}\ns_cbranch_scc0 L_tile_np\ns_sub_u32 s{sM}, s{sM}, 1")
            a(f"""v_mov_b32 v5, s{sM}
            s_mov_b64 exec, 1
            buffer_store_dword v5, v4, {sr(sWS)}, s{sPADDR} offen sc1
            s_mov_b64 exec, -1
            s_add_u32 s{sM}, s{sM}, 1
            L_tile_np:""")
        a(f"s_add_u32 s{sN}, s{sN}, 1\ns_branch L_tile")
        R = vT + 2
        chain = [x for x in a0[4:] if x] + [x for x in a1 if x]
        chain = [chain[0], chain[2], chain[1], chain[3], chain[4], chain[5]]
        chain += f"""v_add_f32 v{vL0}, v{vL0}, v{vL0+1}
        v_add_f32 v{vL0+1}, v{vL0+2}, v{vL0+3}
        v_mov_b32 v{vL0+2}, v{vL0}
        v_mov_b32 v{vL0+3}, v{vL0+1}
        s_mov_b32 s{sQBUF}, {WR - XR}
        s_add_u32 s{sSTAGE}, s{sSTAGE}, 1
        v_permlane32_swap_b32 v{vL0}, v{vL0+2}
        v_permlane32_swap_b32 v{vL0+1}, v{vL0+3}
        v_add_f32 v{vL0}, v{vL0}, v{vL0+2}
        v_add_f32 v{vL0+1}, v{vL0+1}, v{vL0+3}
        v_mov_b32 v{vL0+2}, v{vL0}
        v_mov_b32 v{vL0+3}, v{vL0+1}
        s_nop 1
        v_permlane16_swap_b32 v{vL0}, v{vL0+2}
        v_permlane16_swap_b32 v{vL0+1}, v{vL0+3}
        v_add_f32 v{R}, v{vL0}, v{vL0+2}
        v_add_f32 v{R-2}, v{vL0+1}, v{vL0+3}
        v_rcp_f32 v{R}, v{R}
        v_rcp_f32 v{R-2}, v{R-2}
        s_nop 0""".split("\n")
        a("L_tile_last:")
        for dt in range(8):
            a(pv(dt, 1))
            for _ in range(3):
                a(chain.pop(0))
        for t in chain:
            a(t)
        mul, put = [], []
        for qt in range(2):
            for p in range(4):
                c = vO + (p*2 + qt)*8
                mul.append("\n".join(f"v_pk_mul_f32 {vr(c+i, 2)}, {vr(c+i, 2)}, {vr(R-2*qt, 2)} op_sel_hi:[1,0]" for i in range(0, 8, 2)))
                put.append("\n".join(f"v_cvt_pk_bf16_f32 v{c+i}, v{c+2*i}, v{c+2*i+1}" for i in range(4)) +
                           f"\nds_write_b128 v{vH + (p&1)}, {vr(c,4)} offset:{2048*qt + 8192*(p>>1)}")
        for k in range(9):
            if k < 8: a(mul[k])
            if k: a(put[k-1])
        self.probe(6)
        a(f"""s_cmp_lt_u32 s{sSTAGE}, 2
        s_cbranch_scc0 L_feed0""")
        for t in adv:
            a(t)
        self.late_wo()
        a(f"""s_mov_b32 s{sOCI}, {7 if self.gmajor else 5}
        s_mov_b32 s{sOG}, 0
        s_waitcnt lgkmcnt(0)
        s_branch L_stage""")
        a("L_feed0:")
        self.prio_set(2)
        a(f"""s_mov_b32 s{sN}, 0
        {self.wo_addr(sRB+3)}
        s_waitcnt lgkmcnt(0)
        L_feed:
        s_barrier""")
        self.probe(0, True)
        if self.probes:
            a(f"s_mov_b32 m0, s{sT1}\ns_nop 0")
        nxt = self.wo_addr(sRB+3).replace(f"s{sT0}", f"s{sT2}").replace(f"s{sT1}", f"s{sM}").split("\n")
        nxt = [t for t in nxt if "m0" not in t]
        between = [self.wo_adv(),
                   f"s_mov_b32 s{sT2}, s{sRB+3}\ns_mov_b32 s{sRB+3}, s{sRB}\ns_mov_b32 s{sRB}, s{sRB+1}\ns_mov_b32 s{sRB+1}, s{sRB+2}\ns_mov_b32 s{sRB+2}, s{sT2}",
                   "\n".join(nxt[:5]), f"s_add_u32 m0, s{sT1}, 4096\n" + "\n".join(nxt[5:]),
                   f"s_add_u32 s{sN}, s{sN}, 1\ns_mov_b32 s{sT1}, s{sM}\ns_cmp_lt_u32 s{sN}, 9", f"s_mov_b32 m0, s{sM}\ns_mov_b32 s{sT0}, s{sT2}"]
        for n in range(6):
            a(f"buffer_load_dwordx4 v{vOVO+n}, {sr(sWO)}, s{sT0} offen offset:{1024*(n&3)}{self.wflag} lds")
            a(between[n])
        self.probe(4)
        a("s_waitcnt vmcnt(12)\ns_cbranch_scc1 L_feed")
        if self.gate:
            a(f"s_or_b32 s{sT0}, s{sTY}, s{sLW}\ns_cbranch_scc1 L_gate")
            self.wait_init(4, 5)
            self.spin(f"buffer_load_dword v5, v4, {sr(sWS)}, s{sPADDR} offen sc1", 5,
                      f"v_readfirstlane_b32 s{sT1}, v5\ns_cmp_ge_u32 s{sT1}, {self.gate}")
            a("L_gate:")
        a("""s_barrier
        s_waitcnt vmcnt(6)
        s_barrier
        s_waitcnt vmcnt(0)
        s_barrier""")
        self.probe_dump()

    def reduce(self):
        a = self.a
        vL, vO0, vD, vSum = 6, 14, 40, 104
        of = ("", " sc1", " nt", " sc0 sc1")[self.outf]
        a("L_reduce:")
        self.stamp(10)
        a(f"""s_setprio 0
        s_lshr_b32 s{sSTAGE}, s{sWAVE}, 2
        s_lshl_b32 s{sT1}, s{sSTAGE}, 2
        s_add_u32 s{sT1}, s{sT1}, {SYNC + 8}
        v_mov_b32 v9, s{sT1}
        s_mov_b32 s{sSPIN}, {SPIN}
        s_cmp_lg_u32 s{sLW}, 0
        s_cbranch_scc1 L_red_work
        s_lshl_b32 s{sT0}, s{sSTAGE}, 11
        s_add_u32 s{sFADDR}, s{sFADDR}, s{sT0}
        v_mov_b32 v4, 0
        v_and_b32 v8, 7, v0
        v_lshlrev_b32 v8, 2, v8
        s_cmp_eq_u32 s{sSTAGE}, 1
        s_cbranch_scc1 L_red_poll""")
        self.wait_init(4, 5)
        a(f"""s_mov_b32 s{sSPIN}, {SPIN}
        L_red_poll:""")
        NP = self.polls
        ld = lambda k: f"buffer_load_dword v{16+k}, v8, {sr(sWS)}, s{sFADDR} offen {('sc1', 'sc0 sc1')[self.flagop == 1]}"
        for k in range(NP - 1):
            a(ld(k) + f"\ns_sleep {self.nap}")
        a("L_red_again:")
        for k in range(NP):
            a(f"""{ld((k + NP - 1) % NP)}
            s_waitcnt vmcnt({NP - 1})
            v_cmp_eq_u32 vcc, 1, v{16+k}
            s_and_b32 s{sT2}, vcc_lo, 0xff
            s_sub_u32 s{sSPIN}, s{sSPIN}, 1
            s_cselect_b32 s{sT2}, 0xff, s{sT2}
            v_mov_b32 v10, s{sT2}
            ds_write_b32 v9, v10
            s_cmp_eq_u32 s{sT2}, 0xff
            s_cbranch_scc1 L_red_end
            s_sleep {self.nap}""")
        a(f"""s_branch L_red_again
        L_red_work:""")
        srd(a, sX, sOUTP, SIZE['out'])
        a(f"""s_lshl_b32 s{sN}, s{sTY}, 3
        s_add_u32 s{sN}, s{sN}, s{sHG}
        s_sub_u32 s{sT0}, s{sLW}, 1
        s_lshl_b32 s{sT0}, s{sT0}, 4
        s_add_u32 s{sN}, s{sN}, s{sT0}
        s_mul_i32 s{sN}, s{sN}, 3
        s_lshl_b32 s{sT0}, s{sSTAGE}, 4
        s_add_u32 s{sT0}, s{sT0}, s{sB}
        s_mul_i32 s{sM}, s{sT0}, {8*PART}
        s_mul_i32 s{sOBASE}, s{sB}, {64*2304}
        s_mul_i32 s{sT0}, s{sSTAGE}, 1152
        s_add_u32 s{sOBASE}, s{sOBASE}, s{sT0}""")
        a(f"""v_bfe_u32 v10, v0, 2, 2
        v_and_b32 v11, 3, v0
        v_bfe_u32 v12, v0, 4, 1""")
        for k in range(2):
            a(f"v_lshrrev_b32 v1, 5, v0\nv_add_u32 v1, s{sN}, v1" if k == 0 else f"s_add_u32 s{sN}, s{sN}, 2\nv_mov_b32 v1, s{sN}")
            a(f"""v_lshrrev_b32 v13, 4, v1
            v_bfe_u32 v16, v1, 3, 1
            v_and_b32 v1, 7, v1
            v_lshl_add_u32 v1, v1, 1, v12
            v_lshl_add_u32 v17, v13, 2, v10
            v_lshl_add_u32 v17, v17, 1, v16
            v_lshl_add_u32 v18, v1, 2, v11
            v_lshlrev_b32 v18, 4, v18
            v_lshl_add_u32 v{vL+k}, v17, 10, v18
            v_lshl_add_u32 v1, v16, 5, v1
            v_mul_u32_u24 v1, 2304, v1
            v_lshl_add_u32 v1, v13, 7, v1
            v_lshl_add_u32 v1, v10, 5, v1
            v_lshl_add_u32 v{vO0+k}, v11, 3, v1""")
        for i in range(16):
            a(f"v_mov_b32 v{vSum+i}, 0")
        if self.dot:
            a("v_mov_b32 v16, 0x3f80\nv_mov_b32 v17, 0x3f800000")
        a(f"""s_mov_b32 s{sN}, 0
        s_mov_b32 s{sOG}, 0
        L_red_look:
        ds_read_b32 v5, v9
        s_waitcnt lgkmcnt(0)
        v_readfirstlane_b32 s{sT2}, v5
        s_sub_u32 s{sSPIN}, s{sSPIN}, 1
        s_cselect_b32 s{sT2}, 0xff, s{sT2}
        s_andn2_b32 s{sT2}, s{sT2}, s{sN}
        s_cbranch_scc1 L_red_new
        s_getreg_b32 s{sT0}, hwreg(HW_REG_IB_STS)
        s_and_b32 s{sT0}, s{sT0}, 0xc000000f
        s_cselect_b32 s{sT0}, 0, s{sOG}
        s_cmp_lg_u32 s{sT0}, 0
        s_cbranch_scc1 L_red_add
        s_sleep 1
        s_branch L_red_look
        L_red_new:
        s_or_b32 s{sN}, s{sN}, s{sT2}
        s_or_b32 s{sOG}, s{sOG}, s{sT2}""")
        for h in range(8):
            a(f"""s_bitcmp1_b32 s{sT2}, {h}
            s_cbranch_scc0 L_red_h{h}
            s_add_u32 s{sT0}, s{sM}, {h*PART}
            buffer_load_dwordx4 {vr(vD+4*h,4)}, v{vL}, {sr(sWS)}, s{sT0} offen {('sc1', 'sc1', 'sc0 sc1')[self.partop]}
            s_mov_b32 exec_hi, 0
            buffer_load_dwordx4 {vr(vD+32+4*h,4)}, v{vL+1}, {sr(sWS)}, s{sT0} offen {('sc1', 'sc1', 'sc0 sc1')[self.partop]}
            s_mov_b32 exec_hi, -1
            L_red_h{h}:""")
        self.stamp(14)
        if not self.blk:
            a(f"s_cmp_lg_u32 s{sN}, 0xff\ns_cbranch_scc1 L_red_look")
        a("L_red_add:\ns_waitcnt vmcnt(0)")
        for h in range(8):
            a(f"s_bitcmp1_b32 s{sOG}, {h}\ns_cbranch_scc0 L_red_a{h}")
            for k in range(2):
                for i in range(4):
                    r, t = vD + 32*k + 4*h + i, 10 + 2*(i & 1)
                    if self.dot:
                        c = vSum + 8*k + 2*i
                        a(f"v_dot2_f32_bf16 v{c}, v{r}, v16, v{c}\nv_dot2_f32_bf16 v{c+1}, v{r}, v17, v{c+1}")
                        continue
                    a(f"""v_lshlrev_b32 v{t}, 16, v{r}
                    v_and_b32 v{t+1}, 0xffff0000, v{r}
                    v_pk_add_f32 {vr(vSum+8*k+2*i, 2)}, {vr(vSum+8*k+2*i, 2)}, {vr(t, 2)}""")
            a(f"L_red_a{h}:")
        a(f"""s_mov_b32 s{sOG}, 0
        s_cmp_lg_u32 s{sN}, 0xff
        s_cbranch_scc1 L_red_look
        s_add_u32 s{sT0}, s{sOBASE}, {16*2304}""")
        if self.dot:
            a("s_nop 1")
        for k in range(2):
            if k:
                a("s_mov_b32 exec_hi, 0")
            for i in range(4):
                a(f"v_cvt_pk_bf16_f32 v{vSum+16+4*k+i}, v{vSum+8*k+2*i}, v{vSum+8*k+2*i+1}")
            a(f"""buffer_store_dwordx2 {vr(vSum+16+4*k,2)}, v{vO0+k}, {sr(sX)}, s{sOBASE} offen{of}
            buffer_store_dwordx2 {vr(vSum+18+4*k,2)}, v{vO0+k}, {sr(sX)}, s{sT0} offen{of}""")
        a("L_red_end:")
        if self.stamps:
            a("s_mov_b64 exec, -1\ns_waitcnt vmcnt(0)")
            self.stamp(12)
            self.stamp_dump(0)
            self.stamp_dump(1)
            if self.hold:
                a(f"""s_cmp_lg_u32 s2, {self.hwg}
                s_cbranch_scc1 L_end
                s_cmp_lg_u32 s{sWAVE}, 4
                s_cbranch_scc1 L_end
                v_readlane_b32 s{sT0}, v255, 0
                v_readlane_b32 s{sT1}, v255, {self.hi}
                v_readlane_b32 s{sT2}, v255, {self.hj}
                s_sub_u32 s{sT2}, s{sT2}, s{sT1}
                s_add_u32 s{sT2}, s{sT2}, {self.hold*100}
                s_mov_b32 s{sSPIN}, {SPIN}
                L_hold:
                s_memrealtime s[98:99]
                s_waitcnt lgkmcnt(0)
                s_sub_u32 s98, s98, s{sT0}
                s_cmp_ge_u32 s98, s{sT2}
                s_cbranch_scc1 L_end
                s_sub_u32 s{sSPIN}, s{sSPIN}, 1
                s_cbranch_scc0 L_hold""")
        a("s_endpgm")

    def at_rare(self):
        a = self.a
        t, u, al = vT, vP, vP + 2
        a(f"""L_rescale:
        v_mov_b32 v{u}, v{t}
        v_mov_b32 v{u+1}, v{t+1}
        s_nop 1
        v_permlane32_swap_b32 v{t}, v{u}
        v_permlane32_swap_b32 v{t+1}, v{u+1}
        v_max_f32 v{t}, v{t}, v{u}
        v_max_f32 v{t+1}, v{t+1}, v{u+1}
        v_mov_b32 v{u}, v{t}
        v_mov_b32 v{u+1}, v{t+1}
        s_nop 1
        v_permlane16_swap_b32 v{t}, v{u}
        v_permlane16_swap_b32 v{t+1}, v{u+1}
        v_max3_f32 v{t}, v{t}, v{u}, s{sFLOOR}
        v_max3_f32 v{t+1}, v{t+1}, v{u+1}, s{sFLOOR}
        v_max_f32 v{al}, 0, v{t}
        v_max_f32 v{al+2}, 0, v{t+1}
        v_exp_f32 v{al}, -v{al}
        v_exp_f32 v{al+2}, -v{al+2}
        s_mov_b32 s{sTH}, 0x41000000
        s_mov_b32 s{sFLOOR}, 0
        v_mul_f32 v{al}, s{sFIRST}, v{al}
        v_mul_f32 v{al+2}, s{sFIRST}, v{al+2}
        s_mov_b32 s{sFIRST}, 1.0""")
        for qt in range(2):
            for i in range(8):
                a(f"v_sub_f32 v{vS+8*qt+i}, v{vS+8*qt+i}, v{t+qt}")
            for i in range(4):
                a(f"v_sub_f32 v{vNM+4*qt+i}, v{vNM+4*qt+i}, v{t+qt}")
            a(f"v_pk_mul_f32 {vr(vL0+2*qt, 2)}, {vr(vL0+2*qt, 2)}, {vr(al+2*qt,2)} op_sel_hi:[1,0]")
            for p in range(4):
                for i in range(0, 8, 2):
                    c = vO + (p*2 + qt)*8 + i
                    a(f"v_pk_mul_f32 {vr(c,2)}, {vr(c,2)}, {vr(al+2*qt,2)} op_sel_hi:[1,0]")
        a("s_branch L_tile_exp")

    def main(self):
        a = self.a
        self.prologue()
        a(f"s_cmp_ge_u32 s{sWAVE}, 4\ns_cbranch_scc1 L_pj\ns_branch L_at")
        self.subs()
        self.at_first()
        self.pj_first()
        self.pj_setup()
        self.at_rest()
        self.reduce()
        self.at_rare()
        self.pj_rest()
        a("L_end:\ns_endpgm")
        return a.text()


HEADER = open("cdna_kernels/" + NAME + ".s.ref").read().split("; Override launch geometry")[0]


def build(**kw):
    return HEADER + single(Gen(**kw).main(), 256, 512, LDS_BYTES, vgpr=256, accum=256, sgpr=102)


if __name__ == "__main__":
    kw = {}
    for x in sys.argv[2:]:
        k, v = x.split("=")
        kw[k] = int(v, 0)
    open(sys.argv[1], "w").write(build(**kw))
```

```python
import sys, struct
sys.path.insert(0, "tools")
from asmlib import *

KERNEL = NAME + "_kernel"
R0, R1, R2, WR, XR = 0, 32768, 65536, 98304, 131072
SYNC = WR + 24576
LDS_BYTES = 163840
PART = 73728
FLAG_OFF = 32 << 20
PROBE_OFF = 241 << 20
QSCALE = 1.4426950408889634 / 128 ** 0.5
SPIN = 1 << 16


def fbits(x):
    return "0x%08x" % struct.unpack("<I", struct.pack("<f", x))[0]


sWAVE, sLW, sHG, sTY, sB = 3, 4, 5, 6, 7
sK, sV, sX, sWQ, sWO, sWS = 8, 12, 16, 20, 24, 28
sKVOFF, sKVM0, sKVN = 32, 33, 34
sWCOL, sWCH, sWN = 35, 36, 37
sXBASE, sXCH, sXN = 38, 39, 40
sOCI, sOBASE, sROT = 41, 42, 43
sN, sM = 44, 45
sT0, sT1, sT2 = 46, 47, 48
sBUFSZ, sRINGEND, sWBUF, sOLW, sOBUF, sTHR, sKVCNT = 49, 50, 51, 52, 53, 54, 55
sTH, sFLOOR, sRPOS, sSTAGE = 56, 57, 58, 59
sRB = 60
sRET = 64
sFIRST, sQBUF, sSLOT = 66, 67, 68
sC8K = 67
sWB = 69
sBV, sPT = 72, 76
sOUTP, sDBGP = 80, 82
sTN, sLAST, sPADDR, sTBASE = 84, 85, 86, 87
sFADDR, sSPIN, sPROG, sOG = 88, 89, 90, 91
sBXP, sBWP = 92, 94

vKVO, vVVO, vXVO, vOVO, vWVO = 8, 12, 14, 16, 22
vWA, vWA0, vQW = 24, 28, 29
vOA0, vOA, vST = 24, 27, 30
vXA0, vXA, vZ = 31, 33, 35
vFA, vFB, vACC = 36, 72, 104
vPR, vDUM = 4, 5
vKA, vVA, vH, vT, vL0 = 24, 28, 38, 40, 76
vP, vS, vNM, vQ, vKF, vVF, vO = 44, 52, 68, 84, 116, 148, 180


def vr(i, n):
    return f"v[{i}:{i+n-1}]"


def sr(i, n=4):
    return f"s[{i}:{i+n-1}]"


class Lg:
    def __init__(self, a):
        self.a, self.q = a, []
    def issue(self, text, tag):
        if len(self.q) == 15:
            self.wait(self.q[0])
        self.a(text)
        self.q.append(tag)
    def wait(self, *tags):
        idx = max((i for i, t in enumerate(self.q) if t in tags), default=-1)
        if idx < 0:
            return
        self.a(f"s_waitcnt lgkmcnt({len(self.q) - idx - 1})")
        self.q = self.q[idx + 1:]
    def drain(self):
        self.a("s_waitcnt lgkmcnt(0)")
        self.q = []


DEFAULTS = dict(stamps=0, probes=0, vmprobe=2, thr=5, prefill=8, store0=4, store1=8, ipf=1, touch=5, xtouch=1,
                prio=7, gate=0, thrmask=0xffffffff, help=0, lead0=3, lead1=6, kvnt=1, pace=99, dbgst=0, ahead=-1, from_=0, bthr=63, polls=1, nap=2, sdw=1, alate=0, wqat=4, diag=0, hrot=0, early_n=0, ahead0=0, hold=0, hi=0, hj=0, hwg=8, xplan=3, xfrom=1, aidle=0, adist=4, outf=1, stp=3, gmajor=0, stp0=12, pkl=1, flagop=0, partop=0, defer=0, wpol=0, blk=0, dot=0, wmap=0, wide=1, inl=1)


class Gen:
    def __init__(self, **kw):
        self.a = Asm()
        self.o = dict(DEFAULTS)
        assert set(kw) <= set(DEFAULTS), kw
        self.o.update(kw)
        for k, v in self.o.items():
            setattr(self, k, v)
        self.kvflag = ("", " nt", " sc1 nt", " sc0 sc1 nt", " sc0 nt")[self.kvnt]
        self.wflag = ("", " sc1", " sc0 sc1", " sc0")[self.wpol]
        self.follow = (self.help and self.ahead < 0) or self.pace < 99
        self.NA = 4 + bool(self.help) + bool(self.follow)
        self.uid = 0
        assert self.pkl or not self.defer
        assert not (self.help and self.ahead < 0 and self.touch)

    def lab(self, s):
        self.uid += 1
        return f"L_{s}{self.uid}"

    def stamp(self, k):
        if self.stamps:
            self.a(f"s_memrealtime s[98:99]\ns_memtime s[100:101]\ns_waitcnt lgkmcnt(0)\nv_writelane_b32 v255, s98, {k}\nv_writelane_b32 v255, s100, {16+k}")

    def stamp_dump(self, role):
        if self.stamps:
            l = self.lab("sd")
            self.a(f"""s_cmp_lg_u32 s{sWAVE}, {4*role + self.sdw}
            s_cbranch_scc1 {l}
            s_lshl_b32 s{sT0}, s2, 8
            s_add_u32 s{sT0}, s{sT0}, {STAMP_OFF + 128*role}
            v_lshlrev_b32 v1, 2, v0
            s_mov_b64 exec, 0xffffffff
            buffer_store_dword v255, v1, {sr(sWS)}, s{sT0} offen
            s_mov_b64 exec, -1""")
            if self.dbgst:
                srd(self.a, sPT, sDBGP, 256)
                self.a(f"""s_cmp_lg_u32 s{sTY}, {self.dbgst - 1}
                s_cbranch_scc1 {l}
                v_not_b32 v11, v255
                v_cmp_eq_u32 vcc, 0, v0
                s_nop 1
                v_cndmask_b32 v11, v255, v11, vcc
                s_mov_b64 exec, {0x3ff if role else 0x1c00}
                buffer_atomic_umax v11, v1, {sr(sPT)}, 0 offen sc1
                s_mov_b64 exec, -1""")
            self.a(f"{l}:")

    def probe(self, k, first=False):
        if self.probes:
            if first:
                self.a(f"s_add_u32 s{sSLOT}, s{sSLOT}, 1")
            self.a(f"s_memtime s[98:99]\ns_getreg_b32 s100, hwreg(HW_REG_IB_STS)\ns_waitcnt lgkmcnt(0)\ns_mov_b32 m0, s{sSLOT}\nv_writelane_b32 v{248+k}, s98, m0")
            if k == self.vmprobe:
                self.a("v_writelane_b32 v251, s100, m0")

    def early(self, lane):
        if self.probes:
            self.a(f"s_memtime s[98:99]\ns_waitcnt lgkmcnt(0)\nv_writelane_b32 v255, s98, {lane}")

    def probe_dump(self):
        if self.probes:
            l = self.lab("pd")
            self.a(f"""s_cmp_lg_u32 s{sLW}, 0
            s_cbranch_scc1 {l}
            s_lshl_b32 s{sT0}, s2, 1
            s_lshr_b32 s{sT1}, s{sWAVE}, 2
            s_add_u32 s{sT0}, s{sT0}, s{sT1}
            s_lshl_b32 s{sT0}, s{sT0}, 11
            s_add_u32 s{sT0}, s{sT0}, {PROBE_OFF}
            v_lshlrev_b32 v1, 2, v0""")
            for k in range(8):
                self.a(f"buffer_store_dword v{248+k}, v1, {sr(sWS)}, s{sT0} offen offset:{256*k}")
            self.a(f"{l}:")

    def prio_set(self, bit, off=None):
        if self.prio >> bit & 1:
            self.a("s_setprio 1")
        elif off is not None and self.prio >> off & 1:
            self.a("s_setprio 0")

    def call(self, name):
        self.a(f"s_call_b64 {sr(sRET, 2)}, {name}")

    def ret(self):
        self.a(f"s_setpc_b64 {sr(sRET, 2)}")

    def spread(self, base, fill, start=0):
        n, m = len(base) - start, len(fill)
        j = 0
        for k, t in enumerate(base):
            while k >= start and j < m and j * n <= (k - start) * m:
                self.a(fill[j]); j += 1
            if callable(t): t()
            else: self.a(t)
        for t in fill[j:]:
            self.a(t)

    def other_srd(self, dst, karg_off, size):
        self.a(f"""s_load_dwordx2 {sr(dst, 2)}, s[0:1], {karg_off}
        s_waitcnt lgkmcnt(0)
        s_and_b32 s{dst+1}, s{dst+1}, 0xffff
        s_mov_b32 s{dst+2}, {size}
        s_mov_b32 s{dst+3}, 0x20000""")

    def spin(self, load, vdst, done):
        l, e = self.lab("sp"), self.lab("se")
        self.a(f"""s_mov_b32 s{sSPIN}, {SPIN}
        {l}:
        {load}
        s_waitcnt vmcnt(0) lgkmcnt(0)
        {done}
        s_cbranch_scc1 {e}
        s_sleep 1
        s_sub_u32 s{sSPIN}, s{sSPIN}, 1
        s_cmp_lg_u32 s{sSPIN}, 0
        s_cbranch_scc1 {l}
        {e}:""")

    def wait_init(self, vz, vd):
        srd(self.a, sPT, sDBGP, 256)
        self.a(f"s_lshl_b32 s{sT2}, s{sB}, 2")
        self.spin(f"buffer_load_dword v{vd}, v{vz}, {sr(sPT)}, s{sT2} offen offset:{128*bool(self.dbgst)} sc1", vd,
                  f"v_readfirstlane_b32 s{sT1}, v{vd}\ns_cmp_ge_u32 s{sT1}, 16")

    def decode(self):
        if self.wmap == 0:
            return f"s_lshr_b32 s{sTY}, s2, 3\ns_and_b32 s{sTY}, s{sTY}, 1\ns_lshr_b32 s{sB}, s2, 4"
        return f"s_lshr_b32 s{sTY}, s2, 7\ns_xor_b32 s{sTY}, s{sTY}, {self.wmap - 1}\ns_lshr_b32 s{sB}, s2, 3\ns_and_b32 s{sB}, s{sB}, 15"

    def prologue(self):
        a = self.a
        a("s_cmp_ge_u32 s2, 256\ns_cbranch_scc1 L_end")
        if self.probes or self.stamps:
            a("s_memtime s[96:97]" if self.probes else "s_memrealtime s[96:97]")
        a(f"""s_load_dwordx2 s[68:69], s[0:1], 96
        s_load_dwordx4 {sr(sOUTP)}, s[0:1], 80
        s_load_dwordx2 {sr(sBXP, 2)}, s[0:1], 40
        s_load_dwordx2 {sr(sBWP, 2)}, s[0:1], 64
        s_and_b32 s{sHG}, s2, 7
        {self.decode()}
        s_mul_i32 s{sT0}, s{sTY}, 40
        s_add_u32 s0, s0, s{sT0}
        s_addc_u32 s1, s1, 0
        s_load_dwordx8 s[56:63], s[0:1], 0
        s_load_dwordx2 s[70:71], s[0:1], 32""")
        if self.ipf:
            a(f"""s_getpc_b64 {sr(sT0, 2)}
            L_pc:
            s_sub_u32 s{sT0}, s{sT0}, L_pc-{KERNEL}
            s_subb_u32 s{sT0+1}, s{sT0+1}, 0
            s_and_b32 s{sT2}, s2, 0xf8
            v_lshrrev_b32 v1, 6, v0
            v_add_lshl_u32 v6, v1, s{sT2}, 7
            v_min_u32 v6, L_end-{KERNEL}, v6
            v_mov_b32 v7, s{sT0+1}
            v_add_co_u32 v6, vcc, s{sT0}, v6
            s_nop 1
            v_addc_co_u32 v7, vcc, 0, v7, vcc
            global_load_dword v{vFA+32}, v[6:7], off""")
        a(f"""v_lshrrev_b32 v1, 6, v0
        v_and_b32 v0, 63, v0
        v_readfirstlane_b32 s{sWAVE}, v1
        v_lshrrev_b32 v2, 4, v0
        v_and_b32 v3, 15, v0
        s_and_b32 s{sLW}, s{sWAVE}, 3
        v_lshrrev_b32 v4, 3, v0
        v_and_b32 v5, 7, v0
        v_mul_u32_u24 v7, 1152, v4""")
        for n in range(2):
            a(f"""v_add_u32 v6, {4*n}, v2
            v_xor_b32 v6, v6, v5
            v_lshl_add_u32 v6, v6, 4, v7
            v_add_u32 v{vXVO+n}, {n*(8*1152-1024)}, v6""")
        a(f"""v_and_b32 v1, 1, v2
        v_lshlrev_b32 v1, 1, v1
        v_xor_b32 v1, v1, v5
        v_lshlrev_b32 v1, 4, v1
        v_lshl_add_u32 v{vWVO}, v4, 13, v1
        v_xor_b32 v{vWVO+1}, 64, v{vWVO}
        s_lshl_b32 s{sWCOL}, s{sHG}, 10
        s_lshl_b32 s{sT0}, s{sLW}, 7
        s_add_u32 s{sWCOL}, s{sWCOL}, s{sT0}
        s_mov_b32 s{sWN}, 0
        s_mul_i32 s{sT0}, s{sHG}, {self.hrot}
        s_add_u32 s{sT0}, s{sT0}, s{sB}
        s_mul_i32 s{sT1}, s{sT0}, 57
        s_lshr_b32 s{sT1}, s{sT1}, 9
        s_mul_i32 s{sT1}, s{sT1}, 9
        s_sub_u32 s{sXCH}, s{sT0}, s{sT1}
        s_mov_b32 s{sWCH}, s{sXCH}
        s_mul_i32 s{sXBASE}, s{sB}, 73728
        s_mul_i32 s{sT0}, s{sLW}, 18432
        s_add_u32 s{sXBASE}, s{sXBASE}, s{sT0}
        s_lshl_b32 s{sT0}, s{sB}, 3
        s_add_u32 s{sT0}, s{sT0}, s{sHG}
        s_lshl_b32 s{sPADDR}, s{sT0}, 7
        s_add_u32 s{sPADDR}, s{sPADDR}, {FLAG_OFF + 4096}
        s_lshl_b32 s{sFADDR}, s{sB}, 7
        s_add_u32 s{sFADDR}, s{sFADDR}, {FLAG_OFF}
        s_waitcnt lgkmcnt(0)""")
        srd(a, sX, 56, SIZE['A_x'])
        srd(a, sWQ, 62, SIZE['A_wq'])
        if self.probes or self.stamps:
            self.late_srds()
        if self.probes or self.stamps:
            a(f"s_mov_b32 s{sSLOT}, -1")
            for k in range(8):
                a(f"v_mov_b32 v{248+k}, 0")
            a("v_writelane_b32 v255, s96, 0")
            self.early(1)

    def late_srds(self):
        a = self.a
        a(f"""s_mov_b32 s{sK}, s58
        s_and_b32 s{sK+1}, s59, 0xffff
        s_lshl_b32 s{sK+2}, {SIZE['A_k']}, s{sTY}
        s_mov_b32 s{sK+3}, 0x20000
        s_mov_b32 s{sV}, s60
        s_and_b32 s{sV+1}, s61, 0xffff
        s_mov_b32 s{sV+2}, s{sK+2}
        s_mov_b32 s{sV+3}, 0x20000""")
        srd(a, sWO, 70, SIZE['A_wo'])
        srd(a, sWS, 68, SIZE['ws'])
        srd(a, sBV, 60, 0)

    def late_common(self):
        a = self.a
        a(f"""s_lshl_b32 s{sBUFSZ}, 16384, s{sTY}
        s_lshl_b32 s{sT0}, 2048, s{sTY}
        s_mul_i32 s{sKVM0}, s{sT0}, s{sLW}
        s_add_u32 s{sRINGEND}, s{sKVM0}, 98304
        s_lshl_b32 s{sT0}, s{sB}, 3
        s_add_u32 s{sT0}, s{sT0}, s{sHG}
        s_lshl_b32 s{sTBASE}, s{sT0}, 19
        s_add_u32 s{sT1}, s{sTY}, 18
        s_lshl_b32 s{sKVOFF}, s{sT0}, s{sT1}
        s_lshr_b32 s{sT0}, s{sLW}, 1
        s_lshl_b32 s{sT0}, s{sT0}, 17
        s_and_b32 s{sT1}, s{sLW}, 1
        s_lshl_b32 s{sT2}, s{sT1}, 12
        s_add_u32 s{sT0}, s{sT0}, s{sT2}
        s_add_u32 s{sTBASE}, s{sTBASE}, s{sT0}
        s_cmp_eq_u32 s{sTY}, 1
        s_cselect_b32 s{sT0}, s{sT0}, s{sKVM0}
        s_add_u32 s{sKVOFF}, s{sKVOFF}, s{sT0}
        s_lshl_b32 s{sT1}, s{sT1}, 3
        s_cmp_eq_u32 s{sTY}, 1
        s_cselect_b32 s{sT1}, 0, s{sT1}
        s_mov_b32 s{sKVN}, 0
        v_lshlrev_b32 v6, 8, v2
        v_add_u32 v7, s{sT1}, v2""")
        for n in range(4):
            a(f"""v_add_u32 v1, {4*n}, v7
            v_xor_b32 v1, v1, v3
            v_and_b32 v1, 15, v1
            v_lshl_add_u32 v{vKVO+n}, v1, 4, v6""")
        a(f"""v_lshlrev_b32 v1, 1, v2
        v_xor_b32 v1, v1, v3
        v_lshl_add_u32 v{vVVO}, v1, 4, v6
        v_xor_b32 v{vVVO+1}, 128, v{vVVO}""")

    def late_wo(self):
        a = self.a
        for n in range(6):
            a(f"""v_add_u32 v1, {64*n}, v0
            v_mul_u32_u24 v6, 2731, v1
            v_lshrrev_b32 v6, 16, v6
            v_mul_u32_u24 v7, 24, v6
            v_sub_u32 v1, v1, v7
            v_and_b32 v7, 6, v6
            v_xor_b32 v1, v1, v7
            v_lshlrev_b32 v1, 4, v1
            v_mul_u32_u24 v6, 1152, v6
            v_add_u32 v1, v1, v6
            v_subrev_u32 v{vOVO+n}, {1024*(n&3)}, v1""")
        a(f"""s_lshl_b32 s{sT0}, s{sHG}, 9
        s_lshl_b32 s{sT1}, s{sLW}, 4
        s_add_u32 s{sT0}, s{sT0}, s{sT1}
        s_mul_i32 s{sOBASE}, s{sT0}, 1152
        s_and_b32 s{sROT}, s{sB}, 3
        s_mul_i32 s{sOLW}, s{sLW}, 6144
        s_cmp_eq_u32 s{sTY}, 1
        s_mov_b32 s{sRB}, {WR}
        s_mov_b32 s{sRB+1}, {R2}
        s_cselect_b32 s{sRB+2}, {R0}, {R1}
        s_cselect_b32 s{sRB+3}, {R1}, {R0}""")

    def x_adv(self):
        self.a(f"""s_add_u32 s{sXN}, s{sXN}, 1
        s_add_u32 s{sXCH}, s{sXCH}, 1
        s_cmp_eq_u32 s{sXCH}, 9
        s_cselect_b32 s{sXCH}, 0, s{sXCH}""")

    def kv_items_b(self):
        f = self.kvflag
        items = []
        for n in range(8):
            t = ""
            if n == 0:
                t += f"s_mov_b32 m0, s{sKVM0}\ns_cmp_eq_u32 s{sKVN}, 15\n"
            if n == 4:
                t += f"s_add_u32 m0, s{sKVM0}, 16384\ns_add_u32 s{sKVM0}, s{sKVM0}, 32768\n"
            if self.bthr < 63:
                t += f"s_waitcnt vmcnt({self.bthr - 1})\n"
            if n < 4:
                t += f"buffer_load_dwordx4 v{vKVO+n}, {sr(sK)}, s{sKVOFF} offen offset:{1024*n}{f} lds\n"
            else:
                t += f"buffer_load_dwordx4 v{vVVO+(n&1)}, {sr(sV)}, s{sKVOFF} offen offset:{1024*(n-4)}{f} lds\n"
            if n == 0:
                t += f"s_cselect_b32 s{sKVCNT}, 131072, 0\ns_add_u32 s{sKVCNT}, s{sKVCNT}, 8192\ns_add_u32 s{sKVN}, s{sKVN}, 1\n"
            if n == 7:
                t += f"""s_add_u32 s{sKVOFF}, s{sKVOFF}, s{sKVCNT}
                s_cmp_ge_u32 s{sKVM0}, s{sRINGEND}
                s_cselect_b32 s{sKVCNT}, 98304, 0
                s_sub_u32 s{sKVM0}, s{sKVM0}, s{sKVCNT}"""
            items.append(t)
        return items

    def wo_addr(self, buf):
        return f"""s_add_u32 s{sT0}, s{sOCI}, s{sROT}
                s_and_b32 s{sT0}, s{sT0}, 3
                s_lshr_b32 s{sT1}, s{sOCI}, 2
                s_lshl_b32 s{sT1}, s{sT1}, 2
                s_add_u32 s{sT0}, s{sT0}, s{sT1}
                s_mul_i32 s{sT0}, s{sT0}, 73728
                s_add_u32 s{sT0}, s{sT0}, s{sOG}
                s_add_u32 s{sT1}, s{buf}, s{sOLW}
                s_mov_b32 m0, s{sT1}
                s_add_u32 s{sT0}, s{sT0}, s{sOBASE}"""

    def wo_adv(self):
        if self.gmajor:
            l, e = self.lab("wa"), self.lab("we")
            return f"""s_cmp_ge_u32 s{sOCI}, 4
                s_cbranch_scc1 {l}
                s_add_u32 s{sOG}, s{sOG}, 384
                s_cmp_eq_u32 s{sOG}, 1152
                s_cselect_b32 s{sOG}, 0, s{sOG}
                s_addc_u32 s{sOCI}, s{sOCI}, 0
                s_branch {e}
                {l}:
                s_add_u32 s{sOCI}, s{sOCI}, 1
                s_cmp_eq_u32 s{sOCI}, 8
                s_cselect_b32 s{sOCI}, 4, s{sOCI}
                s_cselect_b32 s{sT0}, 384, 0
                s_add_u32 s{sOG}, s{sOG}, s{sT0}
                {e}:"""
        return f"""s_add_u32 s{sOG}, s{sOG}, 384
                s_cmp_eq_u32 s{sOG}, 1152
                s_cselect_b32 s{sOG}, 0, s{sOG}
                s_addc_u32 s{sOCI}, s{sOCI}, 0"""

    def wo_items(self):
        items = []
        for n in range(6):
            t = self.wo_addr(sOBUF) + "\n" if n == 0 else ""
            if n == 4:
                t += f"s_add_u32 m0, s{sT1}, 4096\ns_nop 0\n"
            t += f"buffer_load_dwordx4 v{vOVO+n}, {sr(sWO)}, s{sT0} offen offset:{1024*(n&3)}{self.wflag} lds\n"
            if n == 5:
                t += self.wo_adv()
            items.append(t)
        return items

    def w_items(self, back=False):
        items = []
        for n in range(8):
            if n == 0:
                t = f"s_lshl_b32 s{sT0}, s{sWCH}, 19\ns_add_u32 s{sT0}, s{sT0}, s{sWCOL}\ns_mov_b32 m0, s{sWBUF}\n"
                t += f"s_sub_u32 s{sWCH}, s{sWCH}, 1\ns_cselect_b32 s{sWCH}, 8, s{sWCH}\n" if back else f"s_add_u32 s{sWCH}, s{sWCH}, 1\n"
            elif n == 4:
                t = f"s_add_u32 m0, s{sWBUF}, 4096\ns_add_u32 s{sT0}, s{sT0}, {65536+3072}\n"
            else:
                t = f"s_add_u32 s{sT0}, s{sT0}, {65536-1024}\n"
            t += f"buffer_load_dwordx4 v{vWVO+(n&1)}, {sr(sWQ)}, s{sT0} offen offset:{1024*(n&3)}{self.wflag} lds\n"
            if n == 7 and not back:
                t += f"""s_cmp_eq_u32 s{sWCH}, 9
                s_cselect_b32 s{sWCH}, 0, s{sWCH}
                s_add_u32 s{sWN}, s{sWN}, 1
                s_cmp_eq_u32 s{sWN}, 9
                s_cselect_b32 s{sT1}, 512, 0
                s_add_u32 s{sWCOL}, s{sWCOL}, s{sT1}"""
            items.append(t)
        return items

    def x_body(self):
        a = self.a
        a(f"""s_lshl_b32 s{sT0}, s{sXCH}, 7
        s_add_u32 s{sT0}, s{sT0}, s{sXBASE}
        s_and_b32 s{sT1}, s{sXN}, 3
        s_lshl_b32 s{sT1}, s{sT1}, 2
        s_add_u32 s{sT1}, s{sT1}, s{sLW}
        s_lshl_b32 s{sT1}, s{sT1}, 11
        s_add_u32 m0, s{sT1}, {XR}""")
        self.x_adv()
        for n in range(2):
            a(f"buffer_load_dwordx4 v{vXVO+n}, {sr(sX)}, s{sT0} offen offset:{1024*n} lds")

    def subs(self):
        a = self.a
        f = self.kvflag
        a("F_x:")
        self.x_body()
        self.ret()
        a("F_w:")
        for t in self.w_items():
            a(t)
        self.ret()
        a(f"""F_kv:
        s_cmp_eq_u32 s{sTY}, 0
        s_cbranch_scc1 F_kv_a""")
        for t in self.kv_items_b():
            a(t)
        a(f"s_mov_b32 s{sKVCNT}, 8")
        self.ret()
        a(f"""F_kv_a:
        s_mov_b32 s{sKVCNT}, 0
        s_cmp_ge_u32 s{sKVN}, 32
        s_cbranch_scc1 F_kv_ret""")
        if self.follow:
            a(f"""s_cmp_eq_u32 s{sTHR}, 0
            s_cbranch_scc1 F_kv_go
            s_waitcnt vmcnt(0)
            v_readfirstlane_b32 s{sPROG}, v{vPR}""")
            if self.pace < 99:
                check = f"s_add_u32 s{sT1}, s{sPROG}, {self.pace}\ns_cmp_ge_u32 s{sT1}, s{sKVN}"
                a(check + "\ns_cbranch_scc1 F_kv_go")
                self.spin(f"buffer_load_dword v{vPR}, v{vZ}, {sr(sWS)}, s{sPADDR} offen sc1", vPR,
                          f"v_readfirstlane_b32 s{sPROG}, v{vPR}\n" + check)
            a("F_kv_go:")
        a(f"""s_mov_b32 m0, s{sKVM0}
        s_mov_b32 s{sKVCNT}, 4""")
        if self.thr < 63:
            a(f"s_lshr_b32 s{sT1}, {self.thrmask}, s{sKVN}\ns_and_b32 s{sT1}, s{sT1}, s{sTHR}")
        for n in range(4):
            if self.thr < 63:
                l = self.lab("thr")
                a(f"s_cmp_eq_u32 s{sT1}, 0\ns_cbranch_scc1 {l}\ns_waitcnt vmcnt({self.thr-1})\n{l}:")
            if n == 2:
                a(f"s_add_u32 m0, s{sKVM0}, 8192\ns_add_u32 s{sKVN}, s{sKVN}, 1")
            if n < 2:
                a(f"buffer_load_dwordx4 v{vKVO+n}, {sr(sK)}, s{sKVOFF} offen offset:{1024*n}{f} lds")
            else:
                a(f"buffer_load_dwordx4 v{vVVO+(n&1)}, {sr(sV)}, s{sKVOFF} offen offset:{1024*(n-2)}{f} lds")
        a(f"""s_add_u32 s{sKVOFF}, s{sKVOFF}, 8192
        s_add_u32 s{sKVM0}, s{sKVM0}, 16384
        s_cmp_ge_u32 s{sKVM0}, s{sRINGEND}
        s_cselect_b32 s{sT0}, 98304, 0
        s_sub_u32 s{sKVM0}, s{sKVM0}, s{sT0}""")
        if self.follow or self.help:
            a(f"s_cmp_eq_u32 s{sTHR}, 0\ns_cbranch_scc1 F_kv_ret")
        if self.help:
            if self.ahead < 0:
                a(f"""s_add_u32 s{sT1}, s{sPROG}, {self.lead0}
                s_max_u32 s{sTN}, s{sTN}, s{sT1}
                s_add_u32 s{sT1}, s{sPROG}, {self.lead1}
                s_min_u32 s{sT1}, s{sT1}, 31
                s_cmp_le_u32 s{sTN}, s{sT1}
                s_cselect_b32 s{sLAST}, s{sTN}, s{sLAST}
                s_addc_u32 s{sTN}, s{sTN}, 0""")
            else:
                a(f"""s_cmp_lt_u32 s{sKVN}, {self.early_n}
                s_cselect_b32 s{sLAST}, {self.ahead0}, {self.ahead}
                s_add_u32 s{sLAST}, s{sKVN}, s{sLAST}
                s_min_u32 s{sLAST}, s{sLAST}, 31
                s_max_u32 s{sLAST}, s{sLAST}, {self.from_}""")
            a(f"""s_and_b32 s{sT0}, s{sLAST}, 15
            s_lshl_b32 s{sT0}, s{sT0}, 13
            s_lshr_b32 s{sT1}, s{sLAST}, 4
            s_lshl_b32 s{sT1}, s{sT1}, 18
            s_add_u32 s{sT0}, s{sT0}, s{sT1}
            s_add_u32 s{sT0}, s{sT0}, s{sTBASE}
            v_lshlrev_b32 v1, 7, v0
            s_mov_b64 exec, {(1 << self.help) - 1}
            buffer_load_dword v{vDUM}, v1, {sr(sBV)}, s{sT0} offen offset:{4096 - 128*self.help}
            s_mov_b64 exec, -1""")
        if self.follow:
            a(f"buffer_load_dword v{vPR}, v{vZ}, {sr(sWS)}, s{sPADDR} offen sc1")
        a("F_kv_ret:")
        self.ret()
        a("F_wo:")
        for t in self.wo_items():
            a(t)
        self.ret()

    def kvwait(self):
        l = self.lab("kw")
        self.a(f"""s_waitcnt vmcnt(8)
        s_cmp_eq_u32 s{sKVCNT}, 8
        s_cbranch_scc1 {l}
        s_waitcnt vmcnt({self.NA})
        s_cmp_eq_u32 s{sKVCNT}, 4
        s_cbranch_scc1 {l}
        s_waitcnt vmcnt(0)
        {l}:""")

    def pretouch_wq(self, dst):
        if not self.touch:
            return
        a = self.a
        l = self.lab("pt")
        a(f"s_cmp_eq_u32 s{sTY}, 1\ns_cbranch_scc1 {l}")
        srd(a, sPT, sBWP, SIZE['B_wq'])
        a(f"""s_lshl_b32 s{sT0}, s{sB}, 2
        s_add_u32 s{sT0}, s{sT0}, s{sLW}
        s_mul_i32 s{sT0}, s{sT0}, {9*8192}
        s_lshl_b32 s{sT1}, s{sHG}, 10
        s_add_u32 s{sT0}, s{sT0}, s{sT1}
        v_lshrrev_b32 v1, 2, v0
        v_and_b32 v6, 3, v0
        v_lshlrev_b32 v6, 7, v6
        v_lshl_add_u32 v1, v1, 13, v6
        s_mov_b32 exec_hi, 15
        buffer_load_dword v{dst}, v1, {sr(sPT)}, s{sT0} offen offset:512""")
        if self.touch & 2:
            a(f"buffer_load_dword v{dst+1}, v1, {sr(sWQ)}, s{sT0} offen offset:512")
        a(f"s_mov_b64 exec, -1\n{l}:")

    def pretouch_wo(self, first):
        if not self.touch:
            return
        a = self.a
        l = self.lab("pt")
        a(f"s_cmp_eq_u32 s{sTY}, 1\ns_cbranch_scc1 {l}")
        if first:
            self.other_srd(sPT, 72, SIZE['B_wo'])
            a(f"""s_lshl_b32 s{sT0}, s{sB}, 2
            s_add_u32 s{sT0}, s{sT0}, s{sLW}
            s_mul_i32 s{sT0}, s{sT0}, 9216
            s_mul_i32 s{sTN}, s{sHG}, 589824
            s_add_u32 s{sTN}, s{sTN}, s{sT0}""")
        else:
            a(f"v_lshlrev_b32 v1, 7, v0\ns_mov_b64 exec, 0xfff\nbuffer_load_dword v{vFA+32}, v1, {sr(sPT)}, s{sTN} offen")
            if self.touch & 2:
                a(f"buffer_load_dword v{vFA+33}, v1, {sr(sWO)}, s{sTN} offen")
            a(f"s_mov_b64 exec, -1\ns_add_u32 s{sTN}, s{sTN}, 1536")
        a(f"{l}:")

    def rdA(self, reg, areg, mt, off0, off1, tag):
        return [(f"ds_read_b64_tr_b16 {vr(reg + 2*j, 2)}, v{areg+mt} offset:{o}", tag + (j,)) for j, o in enumerate((off0, off1))]

    def rdB(self, ks, qt):
        return (f"ds_read_b128 {vr(vFB + (ks*4+qt)*4, 4)}, v{vXA+ks} offset:{2048*qt}", ("B", ks, qt))

    def mfma(self, acc, mt, qt, areg, ks):
        c = vr(acc + (mt*4+qt)*4, 4)
        return f"v_mfma_f32_16x16x32_bf16 {c}, {vr(areg, 4)}, {vr(vFB + (ks*4+qt)*4, 4)}, {c}"

    def qA(self, ks, mt):
        return vFA + (ks*4 + mt)*4

    def q_rdA(self, ks, mt):
        return self.rdA(self.qA(ks, mt), vWA, mt, 32*ks*128, (32*ks+4)*128, ("A", ks, mt))

    def q_finalize(self, acc, pending):
        a = self.a
        a(f"s_mov_b32 s{sT2}, {fbits(QSCALE)}")
        mul, cvt, put = [], [], []
        for mt in range(4):
            for qt in range(4):
                c = acc + (mt*4+qt)*4
                mul.append("\n".join(f"v_mul_f32 v{c+r}, s{sT2}, v{c+r}" for r in range(4)))
                cvt.append(f"v_cvt_pk_bf16_f32 v{c}, v{c}, v{c+1}\nv_cvt_pk_bf16_f32 v{c+1}, v{c+2}, v{c+3}")
                put.append((f"v_xor_b32 v1, {32*mt}, v{vQW}\n" if qt == 0 else "") + f"ds_write_b64 v1, {vr(c,2)} offset:{2048*qt}")
        work = ["\n".join(([put[k-2]] if 2 <= k < 18 else []) + ([cvt[k-1]] if 1 <= k < 17 else []) + ([mul[k]] if k < 16 else [])) for k in range(18)]
        lead = len(pending) - 16 + 5
        for k, t in enumerate(pending):
            a(t)
            if k + 1 == lead:
                a("s_nop 3")
            if k + 1 >= lead:
                a(work.pop(0))
        for t in work:
            a(t)
        a("s_waitcnt lgkmcnt(0)")

    ORDER4 = [(mt, qt) for mt in range(4) for qt in range(4)]
    ORDER3 = [(mt, qt) for mt in range(3) for qt in range(4)]
    NEXTX = [f"s_add_u32 s{sN}, s{sN}, 1\ns_and_b32 s{sT0}, s{sN}, 3\ns_lshl_b32 s{sT0}, s{sT0}, 13",
             f"v_add_u32 v{vXA}, s{sT0}, v{vXA0}", f"v_add_u32 v{vXA+1}, s{sT0}, v{vXA0+1}"]

    def pj_first(self):
        a = self.a
        ACC0 = vACC
        a("L_pj:")
        if not (self.probes or self.stamps):
            self.late_srds()
        a(f"""v_mov_b32 v{vZ}, 0
        s_cmp_lg_u32 s{sLW}, 0
        s_cbranch_scc1 L_pj_a
        s_lshl_b32 s{sT0}, s{sTY}, 11
        s_lshl_b32 s{sT1}, s{sHG}, 2
        s_add_u32 s{sT0}, s{sT0}, s{sT1}
        s_add_u32 s{sT0}, s{sT0}, s{sFADDR}
        s_cmp_eq_u32 s{sTY}, 1
        s_cselect_b32 s{sT1}, s{sPADDR}, s{sT0}
        s_mov_b64 exec, 1
        buffer_store_dword v{vZ}, v{vZ}, {sr(sWS)}, s{sT0} offen sc1
        buffer_store_dword v{vZ}, v{vZ}, {sr(sWS)}, s{sT1} offen sc1
        s_mov_b64 exec, -1
        L_pj_a:""")
        self.early(6)
        for i in list(range(vKVO, vXVO)) + list(range(vOVO, vWVO)):
            a(f"v_mov_b32 v{i}, 0")
        a(f"""s_lshl_b32 s{sT2}, s{sLW}, 13
        s_mov_b32 s{sWB}, {R1}
        s_mov_b32 s{sWB+1}, {R2}
        s_mov_b32 s{sWB+2}, {WR}
        v_lshrrev_b32 v1, 2, v3
        v_lshl_add_u32 v6, v2, 3, v1
        v_lshrrev_b32 v1, 1, v1
        v_and_b32 v7, 1, v2
        v_lshl_or_b32 v1, v7, 1, v1
        v_and_b32 v7, 3, v0
        v_lshlrev_b32 v7, 3, v7
        v_lshl_add_u32 v6, v6, 7, v7
        v_lshl_add_u32 v6, v1, 5, v6
        v_add_u32 v{vWA0}, s{sT2}, v6
        v_add_u32 v{vWA}, {WR}, v{vWA0}""")
        for mt in range(1, 4):
            a(f"v_xor_b32 v{vWA+mt}, {32*mt}, v{vWA}")
        a(f"""v_lshrrev_b32 v1, 1, v3
        v_xor_b32 v6, v1, v2
        v_lshlrev_b32 v6, 4, v6
        v_lshl_add_u32 v6, v3, 7, v6
        v_add_u32 v{vXA0}, {XR}, v6
        v_xor_b32 v{vXA0+1}, 64, v{vXA0}
        v_mov_b32 v{vXA}, v{vXA0}
        v_mov_b32 v{vXA+1}, v{vXA0+1}
        v_lshrrev_b32 v6, 1, v2
        v_xor_b32 v6, v6, v1
        v_lshlrev_b32 v6, 4, v6
        v_lshl_add_u32 v6, v3, 7, v6
        v_and_b32 v7, 1, v2
        v_lshl_add_u32 v6, v7, 3, v6
        v_add_u32 v6, s{sT2}, v6
        v_add_u32 v{vQW}, {R2}, v6""")
        for i in range(64):
            a(f"v_mov_b32 v{ACC0+i}, 0")
        for i in range(16):
            a(f"v_mov_b32 v{vFA+16+i}, 0\nv_mov_b32 v{vFB+16+i}, 0")
        self.early(4)
        srd(a, sPT, sDBGP, 256)
        a(f"""v_mov_b32 v1, 1
        s_lshl_b32 s{sT0}, s{sB}, 2
        s_mov_b32 s{sN}, 0
        s_waitcnt vmcnt(0)
        s_cmp_lg_u32 s{sLW}, 0
        s_cbranch_scc1 L_q0
        s_mov_b64 exec, 1
        buffer_atomic_add v1, v{vZ}, {sr(sPT)}, s{sT0} offen offset:{128*bool(self.dbgst)} sc1
        s_mov_b64 exec, -1""")
        nextbuf = [f"v_add_u32 v{vWA}, s{sWB}, v{vWA0}\ns_mov_b32 s{sT0}, s{sWB}", f"v_xor_b32 v{vWA+1}, 32, v{vWA}\ns_mov_b32 s{sWB}, s{sWB+1}",
                   f"v_xor_b32 v{vWA+2}, 64, v{vWA}\ns_mov_b32 s{sWB+1}, s{sWB+2}", f"v_xor_b32 v{vWA+3}, 96, v{vWA}\ns_mov_b32 s{sWB+2}, s{sT0}"]
        a("L_q0:\ns_barrier")
        self.probe(0, True)
        lg = Lg(a)
        rd = lambda ks: [self.rdB(ks, 0)] + self.q_rdA(ks, 0) + [self.rdB(ks, q) for q in (1, 2, 3)] + sum((self.q_rdA(ks, m) for m in (1, 2, 3)), [])
        r0 = rd(0)
        plan = {k: [] for k in range(-1, 32)}
        for i, x in enumerate(r0):
            plan[i // 2 - 1].append(x)
        for pos, m in ((6, 0), (8, 1), (12, 2), (16, 3)):
            for j, x in enumerate(self.q_rdA(1, m)):
                plan[pos + j].append(x)
        for q in range(4):
            plan[18 + q].append(self.rdB(1, q))
        tail = nextbuf + self.NEXTX
        for x in plan[-1]:
            lg.issue(*x)
        for k in range(32):
            mt, qt = self.ORDER4[k & 15]
            if k == 16:
                lg.wait(*[tag for _, tag in r0])
            a(self.mfma(ACC0, mt, qt, self.qA(1 - (k >> 4), mt), 1 - (k >> 4)))
            for x in plan[k]:
                lg.issue(*x)
            if k >= 22 and tail:
                a(tail.pop(0))
            if k == 30:
                lg.drain()
                a(f"s_cmp_eq_u32 s{sN}, 1")
        self.probe(1)
        a("s_cbranch_scc1 L_q0_setup")
        if self.wqat > 1:
            a(f"s_cmp_eq_u32 s{sN}, {self.wqat}\ns_cbranch_scc1 L_q0_touch")
        a(f"s_cmp_lt_u32 s{sN}, 9\ns_cbranch_scc1 L_q0")
        self.early(10)
        self.q_finalize(ACC0, [self.mfma(ACC0, mt, qt, self.qA(1, mt), 1) for mt, qt in self.ORDER4])
        self.early(12)
        a(f"v_xor_b32 v{vQW}, {R2 ^ WR}, v{vQW}")
        self.stamp(1)
        a("s_branch L_pj_rest")

    def pj_setup(self):
        a = self.a
        a("L_q0_setup:")
        self.late_common()
        self.late_wo()
        a(f"""s_cmp_eq_u32 s{sTY}, 1
        s_cselect_b32 s{sKVN}, 2, {self.adist}
        s_lshl_b32 s{sT0}, s{sKVN}, 13
        s_add_u32 s{sKVOFF}, s{sKVOFF}, s{sT0}
        s_mul_i32 s{sT0}, s{sKVN}, s{sBUFSZ}
        s_add_u32 s{sKVM0}, s{sKVM0}, s{sT0}
        s_mov_b32 s{sTHR}, 1
        s_add_u32 s{sWCOL}, s{sWCOL}, 512
        s_add_u32 s{sWCH}, s{sWCH}, 7
        s_sub_u32 s{sT0}, s{sWCH}, 9
        s_cselect_b32 s{sWCH}, s{sWCH}, s{sT0}
        s_lshl_b32 s{sT2}, s{sLW}, 13
        s_add_u32 s{sWBUF}, s{sT2}, {WR}
        s_mov_b32 s{sXN}, 4
        s_add_u32 s{sXCH}, s{sXCH}, 4
        s_sub_u32 s{sT0}, s{sXCH}, 9
        s_cselect_b32 s{sXCH}, s{sXCH}, s{sT0}
        s_mov_b32 s{sOCI}, 0
        s_mov_b32 s{sOG}, 0
        s_mov_b32 s{sOBUF}, {WR}
        s_mov_b32 s{sTN}, 0
        s_mov_b32 s{sLAST}, 2
        v_mov_b32 v{vPR}, 0""")
        for i in range(64):
            a(f"v_mov_b32 v{vACC+64+i}, 0")
        if self.wqat > 1:
            a("s_branch L_q0\nL_q0_touch:")
        self.pretouch_wq(vFA + 34)
        a("s_branch L_q0")

    def stream_slot(self, ty, rdA, MT, acc, aset, loads, after, readB=True):
        e = self.a
        e("s_barrier")
        self.probe(0, True)
        lg = Lg(e)
        for t, tag in rdA:
            lg.issue(t, tag)
        lg.drain()
        self.probe(1)
        e("s_barrier")
        self.probe(2)
        for ks in (0, 1):
            for q in range(4 if readB else 0):
                lg.issue(*self.rdB(ks, q))
        if loads is None:
            return
        def mk(ks, mt, qt):
            def f():
                lg.wait(("B", ks, qt))
                e(self.mfma(acc, mt, qt, aset(ks, mt), ks))
            return f
        mm = [mk(ks, mt, qt) for ks in (0, 1) for mt in range(MT) for qt in range(4)]
        self.spread(mm, loads + (self.kv_items_b() if ty else []))
        self.probe(6)
        if not ty:
            if getattr(self, "extra", None):
                l = self.lab("tx")
                e(f"s_cmp_ge_u32 s{sN}, 15\ns_cbranch_scc1 {l}")
                self.pretouch_wo(False)
                e(f"{l}:")
                self.extra = None
            self.call("F_kv")
        for t in after:
            e(t)

    def store_items(self, G):
        acc = vACC + 48 * G
        items = []
        for qd in range(6):
            c = acc + 8*qd
            t = "\n".join(f"v_cvt_pk_bf16_f32 v{c+i}, v{c+2*i}, v{c+2*i+1}" for i in range(4))
            t += f"\nbuffer_store_dwordx4 {vr(c,4)}, v{vST}, {sr(sWS)}, s{sM} offen offset:{1024*(qd&3)} {('sc1', 'sc1 nt', 'sc0 sc1')[self.partop]}"
            if qd in (3, 5):
                t += f"\ns_add_u32 s{sM}, s{sM}, {4096 if qd == 3 else 24576-4096}"
            items.append(t)
        return items

    def pj_rest(self):
        a = self.a
        ACC1 = vACC + 64
        qrd = sum((self.q_rdA(ks, m) for ks in (0, 1) for m in range(4)), [])
        a(f"L_pj_rest:\nv_mov_b32 v{vXA}, v{vXA0}\nv_mov_b32 v{vXA+1}, v{vXA0+1}")
        self.prio_set(1)
        prevx = [f"s_add_u32 s{sN}, s{sN}, 1\ns_sub_u32 s{sT0}, 9, s{sN}\ns_and_b32 s{sT0}, s{sT0}, 3\ns_lshl_b32 s{sT0}, s{sT0}, 13"] + self.NEXTX[1:]
        a(f"s_cmp_eq_u32 s{sTY}, 1\ns_cbranch_scc1 L_q1_1")
        if self.help:
            self.other_srd(sBV, 56, SIZE['B_v'])
        if self.follow:
            self.wait_init(vZ, vDUM)
        if self.aidle:
            self.pretouch_wo(True)
            a(f"s_mov_b32 s{sM}, 6\nL_idle_a:\ns_barrier")
            self.probe(0, True)
            a("s_barrier")
            if self.aidle == 1:
                self.pretouch_wo(False)
            self.call("F_kv")
            self.kvwait()
            a(f"s_sub_u32 s{sM}, s{sM}, 1\ns_cmp_lg_u32 s{sM}, 0\ns_cbranch_scc1 L_idle_a")
        for ty in (0, 1):
            nk = 8 if ty else self.NA
            a(f"L_q1_{ty}:")
            if self.aidle == 2 and not ty:
                self.extra = "touch"
            self.stream_slot(ty, qrd, 4, ACC1, self.qA, self.w_items(True), prevx)
            a(f"s_sub_u32 s{sT0}, s{sN}, 11\ns_cmp_ge_u32 s{sT0}, 5\ns_cbranch_scc1 L_q1_nox{ty}")
            self.call("F_x")
            a(f"""s_sub_u32 s{sXN}, s{sXN}, 2
            s_add_u32 s{sXCH}, s{sXCH}, 7
            s_sub_u32 s{sT0}, s{sXCH}, 9
            s_cselect_b32 s{sXCH}, s{sXCH}, s{sT0}""")
            self.probe(4)
            a(f"s_waitcnt vmcnt({nk + 2})")
            self.probe(5)
            a(f"s_branch L_q1_{ty}\nL_q1_nox{ty}:")
            self.probe(4)
            a(f"s_waitcnt vmcnt({nk})")
            self.probe(5)
            a(f"s_cmp_lt_u32 s{sN}, 17\ns_cbranch_scc1 L_q1_{ty}")
            if not ty:
                a("s_branch L_q1_last")
        a("L_q1_last:")
        self.stream_slot(0, qrd, 4, ACC1, self.qA, None, None)
        self.call("F_kv")
        a("s_waitcnt lgkmcnt(0)")
        self.q_finalize(ACC1, [self.mfma(ACC1, mt, qt, self.qA(ks, mt), ks) for ks in (0, 1) for mt, qt in self.ORDER4])
        self.kvwait()
        self.stamp(2)
        a("s_barrier")
        self.probe(0, True)
        a("s_barrier")
        if not self.aidle:
            self.pretouch_wo(True)
        self.call("F_kv")
        for i in range(144):
            a(f"v_mov_b32 v{vACC+i}, 0")
        a(f"""v_lshrrev_b32 v6, 2, v0
        v_bfe_u32 v1, v6, 1, 2
        v_and_b32 v7, 3, v0
        v_lshlrev_b32 v7, 3, v7
        v_mul_u32_u24 v6, 384, v6
        v_add_u32 v6, v6, v7
        s_mul_i32 s{sT0}, s{sLW}, 3""")
        for nt in range(3):
            a(f"""s_add_u32 s{sT1}, s{sT0}, {nt}
            v_xor_b32 v7, s{sT1}, v1
            v_lshl_add_u32 v{vOA0+nt}, v7, 5, v6
            v_add_u32 v{vOA+nt}, {WR}, v{vOA0+nt}""")
        a(f"""s_lshl_b32 s{sT0}, s{sTY}, 4
        s_add_u32 s{sT0}, s{sT0}, s{sB}
        s_lshl_b32 s{sT0}, s{sT0}, 3
        s_add_u32 s{sT0}, s{sT0}, s{sHG}
        s_mul_i32 s{sM}, s{sT0}, {PART}
        s_add_u32 s{sM}, s{sM}, s{sOLW}
        v_lshl_add_u32 v{vST}, v3, 2, v2
        v_lshlrev_b32 v{vST}, 4, v{vST}""")
        self.kvwait()
        if self.aidle:
            a(f"s_cmp_eq_u32 s{sTY}, 0\ns_cbranch_scc1 L_kvl_done")
        a(f"s_mov_b32 s{sN}, 6\nL_kvl:\ns_barrier")
        self.probe(0, True)
        a("s_barrier")
        self.probe(2)
        if not self.aidle:
            self.pretouch_wo(False)
        self.call("F_kv")
        self.probe(4)
        self.kvwait()
        self.probe(5)
        a(f"""s_sub_u32 s{sN}, s{sN}, 1
        s_cmp_lg_u32 s{sN}, 0
        s_cbranch_scc1 L_kvl
        L_kvl_done:
        s_barrier""")
        self.probe(0, True)
        a("s_barrier")
        self.call("F_wo")
        self.call("F_kv")
        self.kvwait()
        self.stamp(3)
        oA = lambda c, ks, mt: vFA + 4*mt + (0 if ks == 0 else 12 + 12*(c & 1))
        o_rdA = lambda c, ks, mt: self.rdA(oA(c, ks, mt), vOA, mt, 32*ks*384, (32*ks+16)*384, ("A", ks, mt))
        xa_step = [f"s_add_u32 s{sN}, s{sN}, 1\ns_add_u32 s{sT0}, s{sROT}, s{sN}\ns_and_b32 s{sT0}, s{sT0}, 3\ns_lshl_b32 s{sT0}, s{sT0}, 13",
                   f"v_add_u32 v{vXA}, s{sT0}, v{vXA0}", f"v_add_u32 v{vXA+1}, s{sT0}, v{vXA0+1}"]
        a(f"s_mov_b32 s{sN}, -1")
        for t in xa_step:
            a(t)
        ord_ = sum((o_rdA(0, ks, m) for ks in (0, 1) for m in range(3)), [])
        a(f"s_cmp_eq_u32 s{sTY}, 1\ns_cbranch_scc1 L_o2_1")
        for ty in (0, 1):
            a(f"L_o2_{ty}:")
            for G in range(3):
                self.stream_slot(ty, ord_, 3, vACC + 48*G, lambda ks, mt: oA(0, ks, mt), self.wo_items(), xa_step if G == 0 else [], G == 0)
                self.probe(4)
                if ty:
                    a("s_waitcnt vmcnt(8)")
                else:
                    self.kvwait()
                self.probe(5)
            a(f"s_cmp_lt_u32 s{sN}, 4\ns_cbranch_scc1 L_o2_{ty}")
            if not ty:
                a("s_branch L_o2_done")
        a("L_o2_done:")
        self.stamp(4)
        if self.probes:
            a(f"s_add_u32 s{sSLOT}, s{sSLOT}, 3")
        a("s_barrier\ns_barrier")
        if self.touch & 4:
            a(f"""s_cmp_eq_u32 s{sTY}, 1
            s_cbranch_scc1 L_t38
            s_lshl_b32 s{sT0}, s{sB}, 2
            s_add_u32 s{sT0}, s{sT0}, s{sLW}
            s_mul_i32 s{sT0}, s{sT0}, 4608
            s_mul_i32 s{sT1}, s{sHG}, 589824
            s_add_u32 s{sT0}, s{sT0}, s{sT1}
            s_add_u32 s{sT0}, s{sT0}, 294912
            v_lshlrev_b32 v1, 7, v0
            s_mov_b32 exec_hi, 15
            buffer_load_dword v{vDUM}, v1, {sr(sWO)}, s{sT0} offen
            s_mov_b64 exec, -1
            L_t38:""")
        self.call("F_kv")
        a(f"""v_lshl_add_u32 v1, v0, 2, s{sRB}
        v_cmp_gt_u32 vcc, 6, v0
        s_and_saveexec_b64 {sr(sT0, 2)}, vcc
        s_cmp_lg_u32 s{sLW}, 0
        s_cbranch_scc1 L_nz
        ds_write_b32 v1, v{vZ} offset:{SYNC - WR}
        L_nz:
        s_mov_b64 exec, -1
        s_waitcnt lgkmcnt(0)""")
        self.kvwait()
        srd(a, sPT, sDBGP, 256)
        a(f"""s_lshl_b32 s{sT2}, s{sB}, 2
        s_barrier
        s_barrier
        buffer_load_dword v{vDUM}, v{vZ}, {sr(sPT)}, s{sT2} offen offset:{128*bool(self.dbgst)} sc1
        s_mov_b32 s{sOBUF}, s{sRB+1}""")
        self.call("F_wo")
        a(f"""s_waitcnt vmcnt(6)
        v_readfirstlane_b32 s{sT1}, v{vDUM}
        s_cmp_ge_u32 s{sT1}, 16
        s_cbranch_scc1 L_init_ok""")
        self.wait_init(vZ, vDUM)
        a(f"L_init_ok:\ns_barrier\ns_barrier\ns_mov_b32 s{sOBUF}, s{sRB+2}")
        self.call("F_wo")
        if self.prio & 4:
            a("s_setprio 0")
        self.stamp(5)
        st = []
        for c in range(12):
            grp = (lambda c: c >> 2) if self.gmajor else (lambda c: c % 3)
            acc, prev = vACC + 48 * grp(c), vACC + 48 * grp(max(c - 1, 0))
            newB = c % 3 == 0 or self.gmajor
            lg = Lg(a)
            if c == 0:
                for ks in (0, 1):
                    for m in range(3):
                        for x in o_rdA(0, ks, m):
                            lg.issue(*x)
                lg.drain()
            a("s_barrier")
            self.probe(0, True)
            b0 = [self.rdB(0, q) for q in range(4)] if newB else []
            r0 = b0[:1] + o_rdA(c, 0, 0) + b0[1:] + o_rdA(c, 0, 1) + o_rdA(c, 0, 2)
            ra1 = sum((o_rdA(c, 1, m) for m in range(3)), [])
            if c == 0:
                r0, ra1 = b0 + [self.rdB(1, q) for q in range(4)], []
            plan = {k: [] for k in range(-1, 24)}
            for i, x in enumerate(r0):
                plan[(i // 2 - 1 if newB else i - 1) if c else -1].append(x)
            for i, x in enumerate(ra1):
                plan[5 + i if c else 12 + i // 2].append(x)
            for q in range(4 if newB and c else 0):
                plan[12 + q].append(self.rdB(1, q))
            fill = [f"v_add_u32 v{vOA+nt}, s{sRB + ((c+1)&3)}, v{vOA0+nt}" for nt in range(3)] + (xa_step if newB else [])
            for x in plan[-1]:
                lg.issue(*x)
            for k in range(0 if c else 12, 24):
                mt, qt = self.ORDER3[k % 12]
                if k == 12 and c:
                    lg.wait(*[tag for _, tag in r0])
                elif not c:
                    lg.wait(("A", 0, mt, 0), ("A", 0, mt, 1), ("B", 0, qt))
                a(self.mfma(prev, mt, qt, oA(c - 1, 1, mt), 1) if k < 12 else self.mfma(acc, mt, qt, oA(c, 0, mt), 0))
                for x in plan[k]:
                    lg.issue(*x)
                if k >= (16 if c else 19) and fill:
                    a(fill.pop(0))
                    if not c and fill:
                        a(fill.pop(0))
                if self.gmajor:
                    if k == 11 and c in (self.store0, self.store1):
                        st += self.store_items(int(c == self.store1))
                    step = self.stp0 if c < self.store1 else self.stp
                else:
                    if c >= 10 and k == 9:
                        st += self.store_items(c - 10)
                    step = self.stp
                if st and k % step == step - 1:
                    a(st.pop(0))
                if k == 22:
                    lg.drain()
            assert not fill
            if c < 2:
                a(f"s_waitcnt vmcnt({6 - 6*c})")
            if c in (4, 8):
                self.stamp(6 + (c >> 3))
        for k, (mt, qt) in enumerate(self.ORDER3):
            a(self.mfma(vACC + 96, mt, qt, oA(11, 1, mt), 1))
            if k == 9:
                st += self.store_items(2)
            if st and k % 2 == 1:
                a(st.pop(0))
        for t in st:
            a(t)
        self.stamp(8)
        a(f"""v_mov_b32 v1, {SYNC}
        v_mov_b32 v6, 1
        s_lshl_b32 s{sT0}, s{sTY}, 11
        s_lshl_b32 s{sT1}, s{sHG}, 2
        s_add_u32 s{sT0}, s{sT0}, s{sT1}
        s_add_u32 s{sT0}, s{sT0}, s{sFADDR}
        s_mov_b64 exec, 1""")
        for k in range(1):
            a(f"""s_waitcnt vmcnt(0)
            ds_add_rtn_u32 v7, v1, v6 offset:{4*k}
            s_waitcnt lgkmcnt(0)
            v_readfirstlane_b32 s{sT1}, v7
            s_cmp_lg_u32 s{sT1}, 3
            s_cbranch_scc1 L_nf{k}
            {("buffer_store_dword", "buffer_store_dword", "buffer_atomic_add")[self.flagop]} v6, v{vZ}, {sr(sWS)}, s{sT0} offen offset:{32*k} {("sc1", "sc0 sc1", "sc1")[self.flagop]}
            L_nf{k}:""")
            if k == 0:
                self.stamp(13)
        a("s_mov_b64 exec, -1")
        self.stamp(9)
        self.probe_dump()
        a("s_branch L_reduce")

    def at_first(self):
        a = self.a
        a("L_at:")
        self.prio_set(0)

        issued = []
        WBUFS = (WR, R1, R2)

        def ldx(n, direct):
            if n == 0 and self.inl:
                self.x_body()
            elif n <= 3 or n >= 9 or direct:
                self.call("F_x")
            else:
                a(f"s_lshl_b32 s{sT0}, s{sXCH}, 7\ns_add_u32 s{sT0}, s{sT0}, s{sXBASE}")
                self.x_adv()
                for i in range(2):
                    a(f"buffer_load_dwordx4 {vr(vO + (n-4)*8 + 4*i, 4)}, v{vXVO+i}, {sr(sX)}, s{sT0} offen offset:{1024*i}")
            issued.extend([("x", n)] * 2)

        def ldw(n):
            if n == 9:
                a(f"s_sub_u32 s{sWCH}, s{sWCH}, 1\ns_cselect_b32 s{sWCH}, 8, s{sWCH}")
            a(f"s_lshl_b32 s{sWBUF}, s{sLW}, 13\ns_add_u32 s{sWBUF}, s{sWBUF}, {WBUFS[n % 3]}")
            if n == 0 and self.inl:
                for t in self.w_items():
                    a(t)
            else:
                self.call("F_w")
            issued.extend([("w", n)] * 8)

        def prefill(k, ty):
            for _ in range(2 - ty):
                self.call("F_kv")
            issued.extend([("kv", k)] * 8)

        def wait(*tags):
            k = max(i for i, t in enumerate(issued) if t in tags) + 1
            a(f"s_waitcnt vmcnt({min(63, len(issued) - k)})")
        def first_stage(ty, head):
            del issued[:]
            direct = ty == 1 and self.xplan
            if head:
                ldx(0, direct); ldw(0)
                return
            issued.extend([("x", 0)] * 2 + [("w", 0)] * 8)
            self.early(2)
            self.call("F_atset")
            self.early(4)
            ldx(1, direct); ldw(1)
            wait(("x", 0), ("w", 0))
            self.early(5)
            for n in range(9):
                a("s_barrier")
                self.probe(0, True)
                if 1 <= n <= 5 and not direct:
                    wait(("x", n + 3))
                    for i in range(2):
                        a(f"ds_write_b128 v{vT}, {vr(vO + (n-1)*8 + 4*i, 4)} offset:{((n+3)&3)*8192 + 1024*i}")
                if n == 0:
                    for k in range(2, 4 if direct else 9):
                        ldx(k, direct)
                elif direct and n <= 5:
                    ldx(n + 3, direct)
                if n + 2 <= 9:
                    ldw(n + 2)
                if n == 8:
                    prefill(0, ty)
                    if ty or self.adist == 4:
                        prefill(1, ty)
                self.probe(4)
                wait(*([("w", n + 1)] + [("kv", 0) if n == 8 else ("x", n + 1)]))
                a("s_waitcnt lgkmcnt(0)")
                self.probe(5)
        a(f"s_mov_b32 s{sXN}, 0\ns_cmp_eq_u32 s{sTY}, 0\ns_cbranch_scc1 L_at_a")
        first_stage(1, True)
        a("s_branch L_at_b\nL_at_a:")
        if self.xplan & 2:
            srd(a, sPT, sBWP, SIZE['B_wq'])
            a(f"""s_lshl_b32 s{sT0}, s{sB}, 2
            s_add_u32 s{sT0}, s{sT0}, s{sLW}
            s_mul_i32 s{sT0}, s{sT0}, {9*8192}
            s_lshl_b32 s{sT1}, s{sHG}, 10
            s_add_u32 s{sT0}, s{sT0}, s{sT1}
            v_lshrrev_b32 v1, 2, v0
            v_and_b32 v6, 3, v0
            v_lshlrev_b32 v6, 7, v6
            v_lshl_add_u32 v1, v1, 13, v6
            s_mov_b32 exec_hi, 15
            buffer_load_dword v{vP+3}, v1, {sr(sPT)}, s{sT0} offen""")
            if self.xplan & 4:
                a(f"buffer_load_dword v{vP+2}, v1, {sr(sWQ)}, s{sT0} offen")
            a("s_mov_b64 exec, -1")
        if self.xtouch:
            srd(a, sBV, sBXP, SIZE['B_x'])
            a(f"v_mul_u32_u24 v1, 1152, v0\ns_mul_i32 s{sT2}, s{sB}, 73728")
            for j in range(2):
                a(f"""s_add_u32 s{sT0}, s{sXCH}, s{sLW}
                s_add_u32 s{sT0}, s{sT0}, {self.xfrom + 4*j}
                s_mul_i32 s{sT1}, s{sT0}, 57
                s_lshr_b32 s{sT1}, s{sT1}, 9
                s_mul_i32 s{sT1}, s{sT1}, 9
                s_sub_u32 s{sT0}, s{sT0}, s{sT1}
                s_lshl_b32 s{sT0}, s{sT0}, 7
                s_add_u32 s{sT0}, s{sT0}, s{sT2}
                buffer_load_dword v{vP+j}, v1, {sr(sBV)}, s{sT0} offen""")
        first_stage(0, True)
        first_stage(0, False)
        a("s_branch L_at_done\nL_at_b:")
        first_stage(1, False)
        a("L_at_done:")
        if self.prio & 1:
            a("s_setprio 0")
        a("s_branch L_stage\nF_atset:")
        if not (self.probes or self.stamps):
            self.late_srds()
        self.late_common()
        a(f"""s_mov_b32 s{sTHR}, 0
        s_lshl_b32 s{sT0}, s{sLW}, 11
        s_add_u32 s{sT0}, s{sT0}, {XR}
        v_lshl_add_u32 v{vT}, v0, 4, s{sT0}""")
        self.at_setup()
        if self.xplan:
            a(f"s_cmp_eq_u32 s{sTY}, 0\ns_cbranch_scc1 F_atset_ret")
            for i in range(vO, vO + 40):
                a(f"v_mov_b32 v{i}, 0")
            a("F_atset_ret:")
        self.ret()

    def at_setup(self):
        a = self.a
        a(f"""s_lshr_b32 s{sT0}, s{sLW}, 1
        s_mul_i32 s{sT0}, s{sT0}, s{sTY}
        s_lshl_b32 s{sT0}, s{sT0}, 13
        v_xor_b32 v7, v2, v3
        v_lshlrev_b32 v7, 4, v7
        v_lshl_add_u32 v7, v3, 8, v7
        v_add_u32 v{vKA}, s{sT0}, v7""")
        for ks in range(1, 4):
            a(f"v_xor_b32 v{vKA+ks}, {64*ks}, v{vKA}")
        a(f"""s_lshr_b32 s{sT1}, s{sBUFSZ}, 1
        s_add_u32 s{sT0}, s{sT0}, s{sT1}
        v_lshrrev_b32 v1, 2, v0
        v_and_b32 v6, 7, v1
        v_lshlrev_b32 v7, 8, v1
        v_lshl_add_u32 v7, v6, 5, v7
        v_and_b32 v1, 3, v0
        v_lshl_add_u32 v7, v1, 3, v7
        v_add_u32 v{vVA}, s{sT0}, v7""")
        for dt in range(1, 8):
            a(f"v_xor_b32 v{vVA+dt}, {32*dt}, v{vVA}")
        a(f"""s_mov_b32 s{sRPOS}, 0
        s_mov_b32 s{sSTAGE}, 0
        s_mov_b32 s{sQBUF}, {R2 - XR}
        s_mov_b32 s{sM}, 3
        s_lshr_b32 s{sT0}, s{sLW}, 1
        s_lshl_b32 s{sT0}, s{sT0}, 14
        s_and_b32 s{sT1}, s{sLW}, 1
        s_lshl_b32 s{sT1}, s{sT1}, 12
        s_add_u32 s{sT0}, s{sT0}, s{sT1}
        s_add_u32 s{sT0}, s{sT0}, {XR}
        v_lshrrev_b32 v6, 1, v3
        v_xor_b32 v6, v6, v2
        v_lshlrev_b32 v6, 4, v6
        v_lshl_add_u32 v6, v3, 7, v6
        v_add_u32 v{vH}, s{sT0}, v6
        v_xor_b32 v{vH+1}, 64, v{vH}""")
        for i in list(range(vO + 40, vO + 64)) + list(range(vNM + 1, vNM + 8)) + [vL0, vL0 + 1, vL0 + 2, vL0 + 3, 4] + list(range(vOVO, vOVO + 6)):
            a(f"v_mov_b32 v{i}, 0")

    def at_rest(self):
        a = self.a
        publish = self.follow or self.gate
        a(f"""L_stage:
        s_mov_b32 s{sTH}, 0xff7fffff
        s_mov_b32 s{sFLOOR}, 0xff7fffff
        s_mov_b32 s{sFIRST}, 0
        s_cmp_lg_u32 s{sSTAGE}, 0
        s_cbranch_scc1 L_stage_a
        v_mov_b32 v{vNM}, 0
        L_stage_a:""")
        for i in range(2):
            a(f"v_add_u32 v{vT+i}, s{sQBUF}, v{vH+i}")
        a(f"s_mov_b32 s{sN}, 0\nL_tile:\ns_barrier")
        self.probe(0, True)
        a(f"s_cmp_lg_u32 s{sN}, 0\ns_cbranch_scc1 L_tile_k")
        for qt in range(2):
            for ks in range(4):
                a(f"ds_read_b128 {vr(vQ + (qt*4+ks)*4, 4)}, v{vT+(ks&1)} offset:{2048*qt + 8192*(ks>>1)}")
        a("s_waitcnt lgkmcnt(0)\nL_tile_k:")
        lg = Lg(a)
        for ks in range(4):
            for kt in range(2):
                lg.issue(f"ds_read_b128 {vr(vKF + (ks*2+kt)*4, 4)}, v{vKA+ks} offset:{4096*kt}", ("K", ks, kt))
        a("s_barrier")
        O = lambda dt, qt: vO + (((dt >> 1)*2 + qt)*2 + (dt & 1))*4
        pv = lambda dt, u: f"v_mfma_f32_16x16x32_bf16 {vr(O(dt, u), 4)}, {vr(vVF + dt*4, 4)}, {vr(vP+4*u, 4)}, {vr(O(dt, u), 4)}"
        if self.defer:
            a(f"s_cmp_eq_u32 s{sN}, 0\ns_cbranch_scc1 L_tile_q")
            late = [f"v_pk_add_f32 {vr(vL0+2*u, 2)}, {vr(vL0+2*u, 2)}, {vr(vS+8*u+2*i, 2)}" for u, i in ((1, 0), (0, 2), (1, 1), (0, 3), (1, 2), (1, 3))]
            late += [f"v_add_u32 v{vVA+i}, s{sPROG}, v{vVA+i}" for i in range(8)]
            def deferred():
                l = list(late)
                for dt in range(8):
                    a(pv(dt, 1))
                    for _ in range(2):
                        if l: a(l.pop(0))
            deferred()
            a("L_tile_q:")
        vreads = [(f"ds_read_b64_tr_b16 {vr(vVF + dt*4 + 2*j, 2)}, v{vVA+dt} offset:{4096*j}", ("V", dt, j)) for dt in range(8) for j in range(2)]
        S = lambda qt, kt: vS + (qt*2 + kt)*4
        O = lambda dt, qt: vO + (((dt >> 1)*2 + qt)*2 + (dt & 1))*4
        for ks in range(4):
            for kt in range(2):
                lg.wait(("K", ks, kt))
                for qt in range(2):
                    c = vr(vNM + 4*qt, 4) if ks == 0 else vr(S(qt, kt), 4)
                    a(f"v_mfma_f32_16x16x32_bf16 {vr(S(qt, kt), 4)}, {vr(vKF + (ks*2+kt)*4, 4)}, {vr(vQ + (qt*4+ks)*4, 4)}, {c}")
                    if len(lg.q) < 15:
                        lg.issue(*vreads.pop(0))
        for t, tag in vreads:
            lg.issue(t, tag)
        a(f"""s_add_u32 s{sRPOS}, s{sRPOS}, s{sBUFSZ}
        s_cmp_ge_u32 s{sRPOS}, 98304
        s_cselect_b32 s{sT0}, 98304, 0
        s_sub_u32 s{sRPOS}, s{sRPOS}, s{sT0}
        s_sub_u32 s{sPROG}, s{sBUFSZ}, s{sT0}""")
        adv = [f"v_add_u32 v{vKA+i}, s{sPROG}, v{vKA+i}" for i in range(12)]
        nadv = 4 if self.defer else 2
        for t in adv[:nadv]:
            a(t)
        adv = adv[nadv:]
        t0, t1 = vT, vT + 1
        a(f"""v_max3_f32 v{t0}, v{vS}, v{vS+1}, v{vS+2}
        v_max3_f32 v{t0}, v{t0}, v{vS+3}, v{vS+4}
        v_max3_f32 v{t1}, v{vS+8}, v{vS+9}, v{vS+10}
        v_max3_f32 v{t0}, v{t0}, v{vS+5}, v{vS+6}
        v_max3_f32 v{t1}, v{t1}, v{vS+11}, v{vS+12}
        v_max_f32 v{t0}, v{t0}, v{vS+7}
        v_max3_f32 v{t1}, v{t1}, v{vS+13}, v{vS+14}
        v_max_f32 v{t1}, v{t1}, v{vS+15}
        v_max_f32 v{vT+2}, v{t0}, v{t1}
        v_cmp_lt_f32 vcc, s{sTH}, v{vT+2}
        s_cbranch_vccnz L_rescale
        L_tile_exp:""")
        ex = lambda u: [f"v_exp_f32 v{vS+8*u+i}, v{vS+8*u+i}" for i in range(8)]
        cv = lambda u: [f"v_cvt_pk_bf16_f32 v{vP+4*u+i}, v{vS+8*u+2*i}, v{vS+8*u+2*i+1}" for i in range(4)]
        if self.pkl:
            ad = lambda u: [x for i in range(4) for x in (f"v_pk_add_f32 {vr(vL0+2*u, 2)}, {vr(vL0+2*u, 2)}, {vr(vS+8*u+2*i, 2)}", "")]
        else:
            ad = lambda u: [f"v_add_f32 v{vL0+2*u+(i&1)}, v{vL0+2*u+(i&1)}, v{vS+8*u+i}" for i in range(8)]
        pv = lambda dt, u: f"v_mfma_f32_16x16x32_bf16 {vr(O(dt, u), 4)}, {vr(vVF + dt*4, 4)}, {vr(vP+4*u, 4)}, {vr(O(dt, u), 4)}"
        e0, c0, a0 = ex(0), cv(0), ad(0)
        e1, c1, a1 = ex(1), cv(1), ad(1)
        for t in e0[:3] + [e0[3], c0[0], e0[4], e0[5], c0[1], e0[6], e0[7], c0[2], e1[0], c0[3], e1[1], a0[0]]:
            a(t)
        gaps = [[e1[2]], [e1[3], c1[0]], [e1[4]], [e1[5], c1[1]], [e1[6]], [e1[7]], [c1[2], a0[1]], [c1[3], a0[2], a0[3] or "s_nop 0"]]
        for dt in range(8):
            if dt % 2 == 0:
                lg.wait(("V", dt + 1, 0), ("V", dt + 1, 1))
            a(pv(dt, 0))
            for t in gaps[dt]:
                a(t)
        rest = [x for pair in zip(a1, a0[4:] + adv[:4]) for x in pair] + adv[4:]
        assert self.pkl and not self.defer and not publish
        a(f"s_cmp_eq_u32 s{sN}, 15\ns_cbranch_scc1 L_tile_last")
        if not self.defer:
            for dt in range(8):
                a(pv(dt, 1))
                for _ in range(3):
                    if rest: a(rest.pop(0))
            assert not rest
        self.probe(6)
        a(f"s_or_b32 s{sT0}, s{sSTAGE}, s{sN}\ns_cbranch_scc1 L_tile_nw\ns_waitcnt vmcnt(0)\nL_tile_nw:")
        if publish:
            a(f"""s_cmp_gt_u32 s{sTY}, s{sLW}
            s_cbranch_scc0 L_tile_np""")
            if not self.follow:
                a(f"s_add_u32 s{sM}, s{sM}, 1\ns_cmp_eq_u32 s{sM}, {self.gate + 1}\ns_cbranch_scc0 L_tile_np\ns_sub_u32 s{sM}, s{sM}, 1")
            a(f"""v_mov_b32 v5, s{sM}
            s_mov_b64 exec, 1
            buffer_store_dword v5, v4, {sr(sWS)}, s{sPADDR} offen sc1
            s_mov_b64 exec, -1
            s_add_u32 s{sM}, s{sM}, 1
            L_tile_np:""")
        a(f"s_add_u32 s{sN}, s{sN}, 1\ns_branch L_tile")
        R = vT + 2
        chain = [x for x in a0[4:] if x] + [x for x in a1 if x]
        chain = [chain[0], chain[2], chain[1], chain[3], chain[4], chain[5]]
        chain += f"""v_add_f32 v{vL0}, v{vL0}, v{vL0+1}
        v_add_f32 v{vL0+1}, v{vL0+2}, v{vL0+3}
        v_mov_b32 v{vL0+2}, v{vL0}
        v_mov_b32 v{vL0+3}, v{vL0+1}
        s_mov_b32 s{sQBUF}, {WR - XR}
        s_add_u32 s{sSTAGE}, s{sSTAGE}, 1
        v_permlane32_swap_b32 v{vL0}, v{vL0+2}
        v_permlane32_swap_b32 v{vL0+1}, v{vL0+3}
        v_add_f32 v{vL0}, v{vL0}, v{vL0+2}
        v_add_f32 v{vL0+1}, v{vL0+1}, v{vL0+3}
        v_mov_b32 v{vL0+2}, v{vL0}
        v_mov_b32 v{vL0+3}, v{vL0+1}
        s_nop 1
        v_permlane16_swap_b32 v{vL0}, v{vL0+2}
        v_permlane16_swap_b32 v{vL0+1}, v{vL0+3}
        v_add_f32 v{R}, v{vL0}, v{vL0+2}
        v_add_f32 v{R-2}, v{vL0+1}, v{vL0+3}
        v_rcp_f32 v{R}, v{R}
        v_rcp_f32 v{R-2}, v{R-2}
        s_nop 0""".split("\n")
        a("L_tile_last:")
        for dt in range(8):
            a(pv(dt, 1))
            for _ in range(3):
                a(chain.pop(0))
        for t in chain:
            a(t)
        mul, put = [], []
        for qt in range(2):
            for p in range(4):
                c = vO + (p*2 + qt)*8
                mul.append("\n".join(f"v_pk_mul_f32 {vr(c+i, 2)}, {vr(c+i, 2)}, {vr(R-2*qt, 2)} op_sel_hi:[1,0]" for i in range(0, 8, 2)))
                put.append("\n".join(f"v_cvt_pk_bf16_f32 v{c+i}, v{c+2*i}, v{c+2*i+1}" for i in range(4)) +
                           f"\nds_write_b128 v{vH + (p&1)}, {vr(c,4)} offset:{2048*qt + 8192*(p>>1)}")
        for k in range(9):
            if k < 8: a(mul[k])
            if k: a(put[k-1])
        self.probe(6)
        a(f"""s_cmp_lt_u32 s{sSTAGE}, 2
        s_cbranch_scc0 L_feed0""")
        for t in adv:
            a(t)
        self.late_wo()
        a(f"""s_mov_b32 s{sOCI}, {7 if self.gmajor else 5}
        s_mov_b32 s{sOG}, 0
        s_waitcnt lgkmcnt(0)
        s_branch L_stage""")
        a("L_feed0:")
        self.prio_set(2)
        a(f"""s_mov_b32 s{sN}, 0
        {self.wo_addr(sRB+3)}
        s_waitcnt lgkmcnt(0)
        L_feed:
        s_barrier""")
        self.probe(0, True)
        if self.probes:
            a(f"s_mov_b32 m0, s{sT1}\ns_nop 0")
        nxt = self.wo_addr(sRB+3).replace(f"s{sT0}", f"s{sT2}").replace(f"s{sT1}", f"s{sM}").split("\n")
        nxt = [t for t in nxt if "m0" not in t]
        between = [self.wo_adv(),
                   f"s_mov_b32 s{sT2}, s{sRB+3}\ns_mov_b32 s{sRB+3}, s{sRB}\ns_mov_b32 s{sRB}, s{sRB+1}\ns_mov_b32 s{sRB+1}, s{sRB+2}\ns_mov_b32 s{sRB+2}, s{sT2}",
                   "\n".join(nxt[:5]), f"s_add_u32 m0, s{sT1}, 4096\n" + "\n".join(nxt[5:]),
                   f"s_add_u32 s{sN}, s{sN}, 1\ns_mov_b32 s{sT1}, s{sM}\ns_cmp_lt_u32 s{sN}, 9", f"s_mov_b32 m0, s{sM}\ns_mov_b32 s{sT0}, s{sT2}"]
        for n in range(6):
            a(f"buffer_load_dwordx4 v{vOVO+n}, {sr(sWO)}, s{sT0} offen offset:{1024*(n&3)}{self.wflag} lds")
            a(between[n])
        self.probe(4)
        a("s_waitcnt vmcnt(12)\ns_cbranch_scc1 L_feed")
        if self.gate:
            a(f"s_or_b32 s{sT0}, s{sTY}, s{sLW}\ns_cbranch_scc1 L_gate")
            self.wait_init(4, 5)
            self.spin(f"buffer_load_dword v5, v4, {sr(sWS)}, s{sPADDR} offen sc1", 5,
                      f"v_readfirstlane_b32 s{sT1}, v5\ns_cmp_ge_u32 s{sT1}, {self.gate}")
            a("L_gate:")
        a("""s_barrier
        s_waitcnt vmcnt(6)
        s_barrier
        s_waitcnt vmcnt(0)
        s_barrier""")
        self.probe_dump()

    def reduce(self):
        a = self.a
        vL, vO0, vD, vSum = 6, 14, 40, 104
        of = ("", " sc1", " nt", " sc0 sc1")[self.outf]
        a("L_reduce:")
        self.stamp(10)
        a(f"""s_setprio 0
        s_lshr_b32 s{sSTAGE}, s{sWAVE}, 2
        s_lshl_b32 s{sT1}, s{sSTAGE}, 2
        s_add_u32 s{sT1}, s{sT1}, {SYNC + 8}
        v_mov_b32 v9, s{sT1}
        s_mov_b32 s{sSPIN}, {SPIN}
        s_cmp_lg_u32 s{sLW}, 0
        s_cbranch_scc1 L_red_work
        s_lshl_b32 s{sT0}, s{sSTAGE}, 11
        s_add_u32 s{sFADDR}, s{sFADDR}, s{sT0}
        v_mov_b32 v4, 0
        v_and_b32 v8, 7, v0
        v_lshlrev_b32 v8, 2, v8
        s_cmp_eq_u32 s{sSTAGE}, 1
        s_cbranch_scc1 L_red_poll""")
        self.wait_init(4, 5)
        a(f"""s_mov_b32 s{sSPIN}, {SPIN}
        L_red_poll:""")
        NP = self.polls
        ld = lambda k: f"buffer_load_dword v{16+k}, v8, {sr(sWS)}, s{sFADDR} offen {('sc1', 'sc0 sc1')[self.flagop == 1]}"
        for k in range(NP - 1):
            a(ld(k) + f"\ns_sleep {self.nap}")
        a("L_red_again:")
        for k in range(NP):
            a(f"""{ld((k + NP - 1) % NP)}
            s_waitcnt vmcnt({NP - 1})
            v_cmp_eq_u32 vcc, 1, v{16+k}
            s_and_b32 s{sT2}, vcc_lo, 0xff
            s_sub_u32 s{sSPIN}, s{sSPIN}, 1
            s_cselect_b32 s{sT2}, 0xff, s{sT2}
            v_mov_b32 v10, s{sT2}
            ds_write_b32 v9, v10
            s_cmp_eq_u32 s{sT2}, 0xff
            s_cbranch_scc1 L_red_end
            s_sleep {self.nap}""")
        a(f"""s_branch L_red_again
        L_red_work:""")
        srd(a, sX, sOUTP, SIZE['out'])
        a(f"""s_lshl_b32 s{sN}, s{sTY}, 3
        s_add_u32 s{sN}, s{sN}, s{sHG}
        s_sub_u32 s{sT0}, s{sLW}, 1
        s_lshl_b32 s{sT0}, s{sT0}, 4
        s_add_u32 s{sN}, s{sN}, s{sT0}
        s_mul_i32 s{sN}, s{sN}, 3
        s_lshl_b32 s{sT0}, s{sSTAGE}, 4
        s_add_u32 s{sT0}, s{sT0}, s{sB}
        s_mul_i32 s{sM}, s{sT0}, {8*PART}
        s_mul_i32 s{sOBASE}, s{sB}, {64*2304}
        s_mul_i32 s{sT0}, s{sSTAGE}, 1152
        s_add_u32 s{sOBASE}, s{sOBASE}, s{sT0}""")
        a(f"""v_bfe_u32 v10, v0, 2, 2
        v_and_b32 v11, 3, v0
        v_bfe_u32 v12, v0, 4, 1""")
        for k in range(2):
            a(f"v_lshrrev_b32 v1, 5, v0\nv_add_u32 v1, s{sN}, v1" if k == 0 else f"s_add_u32 s{sN}, s{sN}, 2\nv_mov_b32 v1, s{sN}")
            a(f"""v_lshrrev_b32 v13, 4, v1
            v_bfe_u32 v16, v1, 3, 1
            v_and_b32 v1, 7, v1
            v_lshl_add_u32 v1, v1, 1, v12
            v_lshl_add_u32 v17, v13, 2, v10
            v_lshl_add_u32 v17, v17, 1, v16
            v_lshl_add_u32 v18, v1, 2, v11
            v_lshlrev_b32 v18, 4, v18
            v_lshl_add_u32 v{vL+k}, v17, 10, v18
            v_lshl_add_u32 v1, v16, 5, v1
            v_mul_u32_u24 v1, 2304, v1
            v_lshl_add_u32 v1, v13, 7, v1
            v_lshl_add_u32 v1, v10, 5, v1
            v_lshl_add_u32 v{vO0+k}, v11, 3, v1""")
            if self.wide:
                a(f"v_and_b32 v1, 1, v0\nv_mul_u32_u24 v1, {16*2304 - 8}, v1\nv_add_u32 v{vO0+k}, v{vO0+k}, v1")
        if self.wide:
            a("v_and_b32 v1, 1, v0\nv_cmp_eq_u32 vcc, 1, v1")
        for i in range(16):
            a(f"v_mov_b32 v{vSum+i}, 0")
        if self.dot:
            a("v_mov_b32 v16, 0x3f80\nv_mov_b32 v17, 0x3f800000")
        a(f"""s_mov_b32 s{sN}, 0
        s_mov_b32 s{sOG}, 0
        L_red_look:
        ds_read_b32 v5, v9
        s_waitcnt lgkmcnt(0)
        v_readfirstlane_b32 s{sT2}, v5
        s_sub_u32 s{sSPIN}, s{sSPIN}, 1
        s_cselect_b32 s{sT2}, 0xff, s{sT2}
        s_andn2_b32 s{sT2}, s{sT2}, s{sN}
        s_cbranch_scc1 L_red_new
        s_getreg_b32 s{sT0}, hwreg(HW_REG_IB_STS)
        s_and_b32 s{sT0}, s{sT0}, 0xc000000f
        s_cselect_b32 s{sT0}, 0, s{sOG}
        s_cmp_lg_u32 s{sT0}, 0
        s_cbranch_scc1 L_red_add
        s_sleep 1
        s_branch L_red_look
        L_red_new:
        s_or_b32 s{sN}, s{sN}, s{sT2}
        s_or_b32 s{sOG}, s{sOG}, s{sT2}""")
        for h in range(8):
            a(f"""s_bitcmp1_b32 s{sT2}, {h}
            s_cbranch_scc0 L_red_h{h}
            s_add_u32 s{sT0}, s{sM}, {h*PART}
            buffer_load_dwordx4 {vr(vD+4*h,4)}, v{vL}, {sr(sWS)}, s{sT0} offen {('sc1', 'sc1', 'sc0 sc1')[self.partop]}
            s_mov_b32 exec_hi, 0
            buffer_load_dwordx4 {vr(vD+32+4*h,4)}, v{vL+1}, {sr(sWS)}, s{sT0} offen {('sc1', 'sc1', 'sc0 sc1')[self.partop]}
            s_mov_b32 exec_hi, -1
            L_red_h{h}:""")
        self.stamp(14)
        if not self.blk:
            a(f"s_cmp_lg_u32 s{sN}, 0xff\ns_cbranch_scc1 L_red_look")
        a("L_red_add:\ns_waitcnt vmcnt(0)")
        for h in range(8):
            a(f"s_bitcmp1_b32 s{sOG}, {h}\ns_cbranch_scc0 L_red_a{h}")
            for k in range(2):
                for i in range(4):
                    r, t = vD + 32*k + 4*h + i, 10 + 2*(i & 1)
                    if self.dot:
                        c = vSum + 8*k + 2*i
                        a(f"v_dot2_f32_bf16 v{c}, v{r}, v16, v{c}\nv_dot2_f32_bf16 v{c+1}, v{r}, v17, v{c+1}")
                        continue
                    a(f"""v_lshlrev_b32 v{t}, 16, v{r}
                    v_and_b32 v{t+1}, 0xffff0000, v{r}
                    v_pk_add_f32 {vr(vSum+8*k+2*i, 2)}, {vr(vSum+8*k+2*i, 2)}, {vr(t, 2)}""")
            a(f"L_red_a{h}:")
        a(f"""s_mov_b32 s{sOG}, 0
        s_cmp_lg_u32 s{sN}, 0xff
        s_cbranch_scc1 L_red_look
        s_add_u32 s{sT0}, s{sOBASE}, {16*2304}""")
        if self.dot:
            a("s_nop 1")
        for k in range(2):
            if k:
                a("s_mov_b32 exec_hi, 0")
            for i in range(4):
                a(f"v_cvt_pk_bf16_f32 v{vSum+16+4*k+i}, v{vSum+8*k+2*i}, v{vSum+8*k+2*i+1}")
            c = vSum + 16 + 4*k
            if self.wide:
                a(f"""v_cndmask_b32 v10, v{c+2}, v{c}, vcc
                v_cndmask_b32 v11, v{c+3}, v{c+1}, vcc
                s_nop 1
                v_mov_b32_dpp v12, v10 quad_perm:[1,0,3,2] row_mask:0xf bank_mask:0xf
                v_mov_b32_dpp v13, v11 quad_perm:[1,0,3,2] row_mask:0xf bank_mask:0xf
                v_cndmask_b32 v{c}, v{c}, v12, vcc
                v_cndmask_b32 v{c+1}, v{c+1}, v13, vcc
                v_cndmask_b32 v{c+2}, v12, v{c+2}, vcc
                v_cndmask_b32 v{c+3}, v13, v{c+3}, vcc
                buffer_store_dwordx4 {vr(c,4)}, v{vO0+k}, {sr(sX)}, s{sOBASE} offen{of}""")
            else:
                a(f"""buffer_store_dwordx2 {vr(c,2)}, v{vO0+k}, {sr(sX)}, s{sOBASE} offen{of}
                buffer_store_dwordx2 {vr(c+2,2)}, v{vO0+k}, {sr(sX)}, s{sT0} offen{of}""")
        a("L_red_end:")
        if self.stamps:
            a("s_mov_b64 exec, -1\ns_waitcnt vmcnt(0)")
            self.stamp(12)
            self.stamp_dump(0)
            self.stamp_dump(1)
            if self.hold:
                a(f"""s_cmp_lg_u32 s2, {self.hwg}
                s_cbranch_scc1 L_end
                s_cmp_lg_u32 s{sWAVE}, 4
                s_cbranch_scc1 L_end
                v_readlane_b32 s{sT0}, v255, 0
                v_readlane_b32 s{sT1}, v255, {self.hi}
                v_readlane_b32 s{sT2}, v255, {self.hj}
                s_sub_u32 s{sT2}, s{sT2}, s{sT1}
                s_add_u32 s{sT2}, s{sT2}, {self.hold*100}
                s_mov_b32 s{sSPIN}, {SPIN}
                L_hold:
                s_memrealtime s[98:99]
                s_waitcnt lgkmcnt(0)
                s_sub_u32 s98, s98, s{sT0}
                s_cmp_ge_u32 s98, s{sT2}
                s_cbranch_scc1 L_end
                s_sub_u32 s{sSPIN}, s{sSPIN}, 1
                s_cbranch_scc0 L_hold""")
        a("s_endpgm")

    def at_rare(self):
        a = self.a
        t, u, al = vT, vP, vP + 2
        a(f"""L_rescale:
        v_mov_b32 v{u}, v{t}
        v_mov_b32 v{u+1}, v{t+1}
        s_nop 1
        v_permlane32_swap_b32 v{t}, v{u}
        v_permlane32_swap_b32 v{t+1}, v{u+1}
        v_max_f32 v{t}, v{t}, v{u}
        v_max_f32 v{t+1}, v{t+1}, v{u+1}
        v_mov_b32 v{u}, v{t}
        v_mov_b32 v{u+1}, v{t+1}
        s_nop 1
        v_permlane16_swap_b32 v{t}, v{u}
        v_permlane16_swap_b32 v{t+1}, v{u+1}
        v_max3_f32 v{t}, v{t}, v{u}, s{sFLOOR}
        v_max3_f32 v{t+1}, v{t+1}, v{u+1}, s{sFLOOR}
        v_max_f32 v{al}, 0, v{t}
        v_max_f32 v{al+2}, 0, v{t+1}
        v_exp_f32 v{al}, -v{al}
        v_exp_f32 v{al+2}, -v{al+2}
        s_mov_b32 s{sTH}, 0x41000000
        s_mov_b32 s{sFLOOR}, 0
        v_mul_f32 v{al}, s{sFIRST}, v{al}
        v_mul_f32 v{al+2}, s{sFIRST}, v{al+2}
        s_mov_b32 s{sFIRST}, 1.0""")
        for qt in range(2):
            for i in range(8):
                a(f"v_sub_f32 v{vS+8*qt+i}, v{vS+8*qt+i}, v{t+qt}")
            for i in range(4):
                a(f"v_sub_f32 v{vNM+4*qt+i}, v{vNM+4*qt+i}, v{t+qt}")
            a(f"v_pk_mul_f32 {vr(vL0+2*qt, 2)}, {vr(vL0+2*qt, 2)}, {vr(al+2*qt,2)} op_sel_hi:[1,0]")
            for p in range(4):
                for i in range(0, 8, 2):
                    c = vO + (p*2 + qt)*8 + i
                    a(f"v_pk_mul_f32 {vr(c,2)}, {vr(c,2)}, {vr(al+2*qt,2)} op_sel_hi:[1,0]")
        a("s_branch L_tile_exp")

    def main(self):
        a = self.a
        self.prologue()
        a(f"s_cmp_ge_u32 s{sWAVE}, 4\ns_cbranch_scc1 L_pj")
        if self.inl:
            self.at_first()
            self.subs()
        else:
            a("s_branch L_at")
            self.subs()
            self.at_first()
        self.pj_first()
        self.pj_setup()
        self.at_rest()
        self.reduce()
        self.at_rare()
        self.pj_rest()
        a("L_end:\ns_endpgm")
        return a.text()


HEADER = open("cdna_kernels/" + NAME + ".s.ref").read().split("; Override launch geometry")[0]


ABOUT = """; Fused two-branch attention block, one launch, one 512-thread workgroup per CU.
"""


def build(**kw):
    return HEADER + ABOUT + single(Gen(**kw).main(), 256, 512, LDS_BYTES, vgpr=256, accum=256, sgpr=102)


if __name__ == "__main__":
    kw = {}
    for x in sys.argv[2:]:
        k, v = x.split("=")
        kw[k] = int(v, 0)
    open(sys.argv[1], "w").write(build(**kw))
```

```python
import sys, struct
sys.path.insert(0, "tools")
from asmlib import *

KERNEL = NAME + "_kernel"
R0, R1, R2, WR, XR = 0, 32768, 65536, 98304, 131072
SYNC = WR + 24576
LDS_BYTES = 163840
PART = 73728
FLAG_OFF = 32 << 20
PROBE_OFF = 241 << 20
QSCALE = 1.4426950408889634 / 128 ** 0.5
SPIN = 1 << 16


def fbits(x):
    return "0x%08x" % struct.unpack("<I", struct.pack("<f", x))[0]


sWAVE, sLW, sHG, sTY, sB = 3, 4, 5, 6, 7
sK, sV, sX, sWQ, sWO, sWS = 8, 12, 16, 20, 24, 28
sKVOFF, sKVM0, sKVN = 32, 33, 34
sWCOL, sWCH, sWN = 35, 36, 37
sXBASE, sXCH, sXN = 38, 39, 40
sOCI, sOBASE, sROT = 41, 42, 43
sN, sM = 44, 45
sT0, sT1, sT2 = 46, 47, 48
sBUFSZ, sRINGEND, sWBUF, sOLW, sOBUF, sTHR, sKVCNT = 49, 50, 51, 52, 53, 54, 55
sTH, sFLOOR, sRPOS, sSTAGE = 56, 57, 58, 59
sRB = 60
sRET = 64
sFIRST, sQBUF, sSLOT = 66, 67, 68
sC8K = 67
sWB = 69
sBV, sPT = 72, 76
sOUTP, sDBGP = 80, 82
sTN, sLAST, sPADDR, sTBASE = 84, 85, 86, 87
sFADDR, sSPIN, sPROG, sOG = 88, 89, 90, 91
sBXP, sBWP = 92, 94

vKVO, vVVO, vXVO, vOVO, vWVO = 8, 12, 14, 16, 22
vWA, vWA0, vQW = 24, 28, 29
vOA0, vOA, vST = 24, 27, 30
vXA0, vXA, vZ = 31, 33, 35
vFA, vFB, vACC = 36, 72, 104
vPR, vDUM = 4, 5
vKA, vVA, vH, vT, vL0 = 24, 28, 38, 40, 76
vP, vS, vNM, vQ, vKF, vVF, vO = 44, 52, 68, 84, 116, 148, 180


def vr(i, n):
    return f"v[{i}:{i+n-1}]"


def sr(i, n=4):
    return f"s[{i}:{i+n-1}]"


class Lg:
    def __init__(self, a):
        self.a, self.q = a, []
    def issue(self, text, tag):
        if len(self.q) == 15:
            self.wait(self.q[0])
        self.a(text)
        self.q.append(tag)
    def wait(self, *tags):
        idx = max((i for i, t in enumerate(self.q) if t in tags), default=-1)
        if idx < 0:
            return
        self.a(f"s_waitcnt lgkmcnt({len(self.q) - idx - 1})")
        self.q = self.q[idx + 1:]
    def drain(self):
        self.a("s_waitcnt lgkmcnt(0)")
        self.q = []


DEFAULTS = dict(stamps=0, probes=0, vmprobe=2, thr=5, prefill=8, store0=4, store1=8, ipf=1, touch=5, xtouch=1,
                prio=7, gate=0, thrmask=0xffffffff, help=0, lead0=3, lead1=6, kvnt=1, pace=99, dbgst=0, ahead=-1, from_=0, bthr=63, polls=1, nap=2, sdw=1, alate=0, wqat=4, diag=0, hrot=0, early_n=0, ahead0=0, hold=0, hi=0, hj=0, hwg=8, xplan=3, xfrom=1, aidle=0, adist=4, outf=1, stp=3, gmajor=0, stp0=12, pkl=1, flagop=0, partop=0, defer=0, wpol=0, blk=0, dot=0, wmap=0, wide=1, inl=1)


class Gen:
    def __init__(self, **kw):
        self.a = Asm()
        self.o = dict(DEFAULTS)
        assert set(kw) <= set(DEFAULTS), kw
        self.o.update(kw)
        for k, v in self.o.items():
            setattr(self, k, v)
        self.kvflag = ("", " nt", " sc1 nt", " sc0 sc1 nt", " sc0 nt")[self.kvnt]
        self.wflag = ("", " sc1", " sc0 sc1", " sc0")[self.wpol]
        self.follow = (self.help and self.ahead < 0) or self.pace < 99
        self.NA = 4 + bool(self.help) + bool(self.follow)
        self.uid = 0
        assert not (self.gate or self.follow)
        assert self.pkl or not self.defer
        assert not (self.help and self.ahead < 0 and self.touch)

    def lab(self, s):
        self.uid += 1
        return f"L_{s}{self.uid}"

    def stamp(self, k):
        if self.stamps:
            self.a(f"s_memrealtime s[98:99]\ns_memtime s[100:101]\ns_waitcnt lgkmcnt(0)\nv_writelane_b32 v255, s98, {k}\nv_writelane_b32 v255, s100, {16+k}")

    def stamp_dump(self, role):
        if self.stamps:
            l = self.lab("sd")
            self.a(f"""s_cmp_lg_u32 s{sWAVE}, {4*role + self.sdw}
            s_cbranch_scc1 {l}
            s_lshl_b32 s{sT0}, s2, 8
            s_add_u32 s{sT0}, s{sT0}, {STAMP_OFF + 128*role}
            v_lshlrev_b32 v1, 2, v0
            s_mov_b64 exec, 0xffffffff
            buffer_store_dword v255, v1, {sr(sWS)}, s{sT0} offen
            s_mov_b64 exec, -1""")
            if self.dbgst:
                srd(self.a, sPT, sDBGP, 256)
                self.a(f"""s_cmp_lg_u32 s{sTY}, {self.dbgst - 1}
                s_cbranch_scc1 {l}
                v_not_b32 v11, v255
                v_cmp_eq_u32 vcc, 0, v0
                s_nop 1
                v_cndmask_b32 v11, v255, v11, vcc
                s_mov_b64 exec, {0x3ff if role else 0x1c00}
                buffer_atomic_umax v11, v1, {sr(sPT)}, 0 offen sc1
                s_mov_b64 exec, -1""")
            self.a(f"{l}:")

    def probe(self, k, first=False):
        if self.probes:
            if first:
                self.a(f"s_add_u32 s{sSLOT}, s{sSLOT}, 1")
            self.a(f"s_memtime s[98:99]\ns_getreg_b32 s100, hwreg(HW_REG_IB_STS)\ns_waitcnt lgkmcnt(0)\ns_mov_b32 m0, s{sSLOT}\nv_writelane_b32 v{248+k}, s98, m0")
            if k == self.vmprobe:
                self.a("v_writelane_b32 v251, s100, m0")

    def early(self, lane):
        if self.probes:
            self.a(f"s_memtime s[98:99]\ns_waitcnt lgkmcnt(0)\nv_writelane_b32 v255, s98, {lane}")

    def probe_dump(self):
        if self.probes:
            l = self.lab("pd")
            self.a(f"""s_cmp_lg_u32 s{sLW}, 0
            s_cbranch_scc1 {l}
            s_lshl_b32 s{sT0}, s2, 1
            s_lshr_b32 s{sT1}, s{sWAVE}, 2
            s_add_u32 s{sT0}, s{sT0}, s{sT1}
            s_lshl_b32 s{sT0}, s{sT0}, 11
            s_add_u32 s{sT0}, s{sT0}, {PROBE_OFF}
            v_lshlrev_b32 v1, 2, v0""")
            for k in range(8):
                self.a(f"buffer_store_dword v{248+k}, v1, {sr(sWS)}, s{sT0} offen offset:{256*k}")
            self.a(f"{l}:")

    def prio_set(self, bit, off=None):
        if self.prio >> bit & 1:
            self.a("s_setprio 1")
        elif off is not None and self.prio >> off & 1:
            self.a("s_setprio 0")

    def call(self, name):
        self.a(f"s_call_b64 {sr(sRET, 2)}, {name}")

    def ret(self):
        self.a(f"s_setpc_b64 {sr(sRET, 2)}")

    def spread(self, base, fill, start=0):
        n, m = len(base) - start, len(fill)
        j = 0
        for k, t in enumerate(base):
            while k >= start and j < m and j * n <= (k - start) * m:
                self.a(fill[j]); j += 1
            if callable(t): t()
            else: self.a(t)
        for t in fill[j:]:
            self.a(t)

    def other_srd(self, dst, karg_off, size):
        self.a(f"""s_load_dwordx2 {sr(dst, 2)}, s[0:1], {karg_off}
        s_waitcnt lgkmcnt(0)
        s_and_b32 s{dst+1}, s{dst+1}, 0xffff
        s_mov_b32 s{dst+2}, {size}
        s_mov_b32 s{dst+3}, 0x20000""")

    def spin(self, load, vdst, done):
        l, e = self.lab("sp"), self.lab("se")
        self.a(f"""s_mov_b32 s{sSPIN}, {SPIN}
        {l}:
        {load}
        s_waitcnt vmcnt(0) lgkmcnt(0)
        {done}
        s_cbranch_scc1 {e}
        s_sleep 1
        s_sub_u32 s{sSPIN}, s{sSPIN}, 1
        s_cmp_lg_u32 s{sSPIN}, 0
        s_cbranch_scc1 {l}
        {e}:""")

    def wait_init(self, vz, vd):
        srd(self.a, sPT, sDBGP, 256)
        self.a(f"s_lshl_b32 s{sT2}, s{sB}, 2")
        self.spin(f"buffer_load_dword v{vd}, v{vz}, {sr(sPT)}, s{sT2} offen offset:{128*bool(self.dbgst)} sc1", vd,
                  f"v_readfirstlane_b32 s{sT1}, v{vd}\ns_cmp_ge_u32 s{sT1}, 16")

    def decode(self):
        if self.wmap == 0:
            return f"s_lshr_b32 s{sTY}, s2, 3\ns_and_b32 s{sTY}, s{sTY}, 1\ns_lshr_b32 s{sB}, s2, 4"
        return f"s_lshr_b32 s{sTY}, s2, 7\ns_xor_b32 s{sTY}, s{sTY}, {self.wmap - 1}\ns_lshr_b32 s{sB}, s2, 3\ns_and_b32 s{sB}, s{sB}, 15"

    def prologue(self):
        a = self.a
        a("s_cmp_ge_u32 s2, 256\ns_cbranch_scc1 L_end")
        if self.probes or self.stamps:
            a("s_memtime s[96:97]" if self.probes else "s_memrealtime s[96:97]")
        a(f"""s_load_dwordx2 s[68:69], s[0:1], 96
        s_load_dwordx4 {sr(sOUTP)}, s[0:1], 80
        s_load_dwordx2 {sr(sBXP, 2)}, s[0:1], 40
        s_load_dwordx2 {sr(sBWP, 2)}, s[0:1], 64
        s_and_b32 s{sHG}, s2, 7
        {self.decode()}
        s_mul_i32 s{sT0}, s{sTY}, 40
        s_add_u32 s0, s0, s{sT0}
        s_addc_u32 s1, s1, 0
        s_load_dwordx8 s[56:63], s[0:1], 0
        s_load_dwordx2 s[70:71], s[0:1], 32""")
        if self.ipf:
            a(f"""s_getpc_b64 {sr(sT0, 2)}
            L_pc:
            s_sub_u32 s{sT0}, s{sT0}, L_pc-{KERNEL}
            s_subb_u32 s{sT0+1}, s{sT0+1}, 0
            s_and_b32 s{sT2}, s2, 0xf8
            v_lshrrev_b32 v1, 6, v0
            v_add_lshl_u32 v6, v1, s{sT2}, 7
            v_min_u32 v6, L_end-{KERNEL}, v6
            v_mov_b32 v7, s{sT0+1}
            v_add_co_u32 v6, vcc, s{sT0}, v6
            s_nop 1
            v_addc_co_u32 v7, vcc, 0, v7, vcc
            global_load_dword v{vFA+32}, v[6:7], off""")
        a(f"""v_lshrrev_b32 v1, 6, v0
        v_and_b32 v0, 63, v0
        v_readfirstlane_b32 s{sWAVE}, v1
        v_lshrrev_b32 v2, 4, v0
        v_and_b32 v3, 15, v0
        s_and_b32 s{sLW}, s{sWAVE}, 3
        v_lshrrev_b32 v4, 3, v0
        v_and_b32 v5, 7, v0
        v_mul_u32_u24 v7, 1152, v4""")
        for n in range(2):
            a(f"""v_add_u32 v6, {4*n}, v2
            v_xor_b32 v6, v6, v5
            v_lshl_add_u32 v6, v6, 4, v7
            v_add_u32 v{vXVO+n}, {n*(8*1152-1024)}, v6""")
        a(f"""v_and_b32 v1, 1, v2
        v_lshlrev_b32 v1, 1, v1
        v_xor_b32 v1, v1, v5
        v_lshlrev_b32 v1, 4, v1
        v_lshl_add_u32 v{vWVO}, v4, 13, v1
        v_xor_b32 v{vWVO+1}, 64, v{vWVO}
        s_lshl_b32 s{sWCOL}, s{sHG}, 10
        s_lshl_b32 s{sT0}, s{sLW}, 7
        s_add_u32 s{sWCOL}, s{sWCOL}, s{sT0}
        s_mov_b32 s{sWN}, 0
        s_mul_i32 s{sT0}, s{sHG}, {self.hrot}
        s_add_u32 s{sT0}, s{sT0}, s{sB}
        s_mul_i32 s{sT1}, s{sT0}, 57
        s_lshr_b32 s{sT1}, s{sT1}, 9
        s_mul_i32 s{sT1}, s{sT1}, 9
        s_sub_u32 s{sXCH}, s{sT0}, s{sT1}
        s_mov_b32 s{sWCH}, s{sXCH}
        s_mul_i32 s{sXBASE}, s{sB}, 73728
        s_mul_i32 s{sT0}, s{sLW}, 18432
        s_add_u32 s{sXBASE}, s{sXBASE}, s{sT0}
        s_lshl_b32 s{sT0}, s{sB}, 3
        s_add_u32 s{sT0}, s{sT0}, s{sHG}
        s_lshl_b32 s{sPADDR}, s{sT0}, 7
        s_add_u32 s{sPADDR}, s{sPADDR}, {FLAG_OFF + 32768}
        s_lshl_b32 s{sFADDR}, s{sB}, 10
        s_add_u32 s{sFADDR}, s{sFADDR}, {FLAG_OFF}
        s_waitcnt lgkmcnt(0)""")
        srd(a, sX, 56, SIZE['A_x'])
        srd(a, sWQ, 62, SIZE['A_wq'])
        if self.probes or self.stamps:
            self.late_srds()
        if self.probes or self.stamps:
            a(f"s_mov_b32 s{sSLOT}, -1")
            for k in range(8):
                a(f"v_mov_b32 v{248+k}, 0")
            a("v_writelane_b32 v255, s96, 0")
            self.early(1)

    def late_srds(self):
        a = self.a
        a(f"""s_mov_b32 s{sK}, s58
        s_and_b32 s{sK+1}, s59, 0xffff
        s_lshl_b32 s{sK+2}, {SIZE['A_k']}, s{sTY}
        s_mov_b32 s{sK+3}, 0x20000
        s_mov_b32 s{sV}, s60
        s_and_b32 s{sV+1}, s61, 0xffff
        s_mov_b32 s{sV+2}, s{sK+2}
        s_mov_b32 s{sV+3}, 0x20000""")
        srd(a, sWO, 70, SIZE['A_wo'])
        srd(a, sWS, 68, SIZE['ws'])
        srd(a, sBV, 60, 0)

    def late_common(self):
        a = self.a
        a(f"""s_lshl_b32 s{sBUFSZ}, 16384, s{sTY}
        s_lshl_b32 s{sT0}, 2048, s{sTY}
        s_mul_i32 s{sKVM0}, s{sT0}, s{sLW}
        s_add_u32 s{sRINGEND}, s{sKVM0}, 98304
        s_lshl_b32 s{sT0}, s{sB}, 3
        s_add_u32 s{sT0}, s{sT0}, s{sHG}
        s_lshl_b32 s{sTBASE}, s{sT0}, 19
        s_add_u32 s{sT1}, s{sTY}, 18
        s_lshl_b32 s{sKVOFF}, s{sT0}, s{sT1}
        s_lshr_b32 s{sT0}, s{sLW}, 1
        s_lshl_b32 s{sT0}, s{sT0}, 17
        s_and_b32 s{sT1}, s{sLW}, 1
        s_lshl_b32 s{sT2}, s{sT1}, 12
        s_add_u32 s{sT0}, s{sT0}, s{sT2}
        s_add_u32 s{sTBASE}, s{sTBASE}, s{sT0}
        s_cmp_eq_u32 s{sTY}, 1
        s_cselect_b32 s{sT0}, s{sT0}, s{sKVM0}
        s_add_u32 s{sKVOFF}, s{sKVOFF}, s{sT0}
        s_lshl_b32 s{sT1}, s{sT1}, 3
        s_cmp_eq_u32 s{sTY}, 1
        s_cselect_b32 s{sT1}, 0, s{sT1}
        s_mov_b32 s{sKVN}, 0
        v_lshlrev_b32 v6, 8, v2
        v_add_u32 v7, s{sT1}, v2""")
        for n in range(4):
            a(f"""v_add_u32 v1, {4*n}, v7
            v_xor_b32 v1, v1, v3
            v_and_b32 v1, 15, v1
            v_lshl_add_u32 v{vKVO+n}, v1, 4, v6""")
        a(f"""v_lshlrev_b32 v1, 1, v2
        v_xor_b32 v1, v1, v3
        v_lshl_add_u32 v{vVVO}, v1, 4, v6
        v_xor_b32 v{vVVO+1}, 128, v{vVVO}""")

    def late_wo(self):
        a = self.a
        for n in range(6):
            a(f"""v_add_u32 v1, {64*n}, v0
            v_mul_u32_u24 v6, 2731, v1
            v_lshrrev_b32 v6, 16, v6
            v_mul_u32_u24 v7, 24, v6
            v_sub_u32 v1, v1, v7
            v_and_b32 v7, 6, v6
            v_xor_b32 v1, v1, v7
            v_lshlrev_b32 v1, 4, v1
            v_mul_u32_u24 v6, 1152, v6
            v_add_u32 v1, v1, v6
            v_subrev_u32 v{vOVO+n}, {1024*(n&3)}, v1""")
        a(f"""s_lshl_b32 s{sT0}, s{sHG}, 9
        s_lshl_b32 s{sT1}, s{sLW}, 4
        s_add_u32 s{sT0}, s{sT0}, s{sT1}
        s_mul_i32 s{sOBASE}, s{sT0}, 1152
        s_and_b32 s{sROT}, s{sB}, 3
        s_mul_i32 s{sOLW}, s{sLW}, 6144
        s_cmp_eq_u32 s{sTY}, 1
        s_mov_b32 s{sRB}, {WR}
        s_mov_b32 s{sRB+1}, {R2}
        s_cselect_b32 s{sRB+2}, {R0}, {R1}
        s_cselect_b32 s{sRB+3}, {R1}, {R0}""")

    def x_adv(self):
        self.a(f"""s_add_u32 s{sXN}, s{sXN}, 1
        s_add_u32 s{sXCH}, s{sXCH}, 1
        s_cmp_eq_u32 s{sXCH}, 9
        s_cselect_b32 s{sXCH}, 0, s{sXCH}""")

    def kv_items_b(self):
        f = self.kvflag
        items = []
        for n in range(8):
            t = ""
            if n == 0:
                t += f"s_mov_b32 m0, s{sKVM0}\ns_cmp_eq_u32 s{sKVN}, 15\n"
            if n == 4:
                t += f"s_add_u32 m0, s{sKVM0}, 16384\ns_add_u32 s{sKVM0}, s{sKVM0}, 32768\n"
            if self.bthr < 63:
                t += f"s_waitcnt vmcnt({self.bthr - 1})\n"
            if n < 4:
                t += f"buffer_load_dwordx4 v{vKVO+n}, {sr(sK)}, s{sKVOFF} offen offset:{1024*n}{f} lds\n"
            else:
                t += f"buffer_load_dwordx4 v{vVVO+(n&1)}, {sr(sV)}, s{sKVOFF} offen offset:{1024*(n-4)}{f} lds\n"
            if n == 0:
                t += f"s_cselect_b32 s{sKVCNT}, 131072, 0\ns_add_u32 s{sKVCNT}, s{sKVCNT}, 8192\ns_add_u32 s{sKVN}, s{sKVN}, 1\n"
            if n == 7:
                t += f"""s_add_u32 s{sKVOFF}, s{sKVOFF}, s{sKVCNT}
                s_cmp_ge_u32 s{sKVM0}, s{sRINGEND}
                s_cselect_b32 s{sKVCNT}, 98304, 0
                s_sub_u32 s{sKVM0}, s{sKVM0}, s{sKVCNT}"""
            items.append(t)
        return items

    def wo_addr(self, buf):
        return f"""s_add_u32 s{sT0}, s{sOCI}, s{sROT}
                s_and_b32 s{sT0}, s{sT0}, 3
                s_lshr_b32 s{sT1}, s{sOCI}, 2
                s_lshl_b32 s{sT1}, s{sT1}, 2
                s_add_u32 s{sT0}, s{sT0}, s{sT1}
                s_mul_i32 s{sT0}, s{sT0}, 73728
                s_add_u32 s{sT0}, s{sT0}, s{sOG}
                s_add_u32 s{sT1}, s{buf}, s{sOLW}
                s_mov_b32 m0, s{sT1}
                s_add_u32 s{sT0}, s{sT0}, s{sOBASE}"""

    def wo_adv(self):
        if self.gmajor:
            l, e = self.lab("wa"), self.lab("we")
            return f"""s_cmp_ge_u32 s{sOCI}, 4
                s_cbranch_scc1 {l}
                s_add_u32 s{sOG}, s{sOG}, 384
                s_cmp_eq_u32 s{sOG}, 1152
                s_cselect_b32 s{sOG}, 0, s{sOG}
                s_addc_u32 s{sOCI}, s{sOCI}, 0
                s_branch {e}
                {l}:
                s_add_u32 s{sOCI}, s{sOCI}, 1
                s_cmp_eq_u32 s{sOCI}, 8
                s_cselect_b32 s{sOCI}, 4, s{sOCI}
                s_cselect_b32 s{sT0}, 384, 0
                s_add_u32 s{sOG}, s{sOG}, s{sT0}
                {e}:"""
        return f"""s_add_u32 s{sOG}, s{sOG}, 384
                s_cmp_eq_u32 s{sOG}, 1152
                s_cselect_b32 s{sOG}, 0, s{sOG}
                s_addc_u32 s{sOCI}, s{sOCI}, 0"""

    def wo_items(self):
        items = []
        for n in range(6):
            t = self.wo_addr(sOBUF) + "\n" if n == 0 else ""
            if n == 4:
                t += f"s_add_u32 m0, s{sT1}, 4096\ns_nop 0\n"
            t += f"buffer_load_dwordx4 v{vOVO+n}, {sr(sWO)}, s{sT0} offen offset:{1024*(n&3)}{self.wflag} lds\n"
            if n == 5:
                t += self.wo_adv()
            items.append(t)
        return items

    def w_items(self, back=False):
        items = []
        for n in range(8):
            if n == 0:
                t = f"s_lshl_b32 s{sT0}, s{sWCH}, 19\ns_add_u32 s{sT0}, s{sT0}, s{sWCOL}\ns_mov_b32 m0, s{sWBUF}\n"
                t += f"s_sub_u32 s{sWCH}, s{sWCH}, 1\ns_cselect_b32 s{sWCH}, 8, s{sWCH}\n" if back else f"s_add_u32 s{sWCH}, s{sWCH}, 1\n"
            elif n == 4:
                t = f"s_add_u32 m0, s{sWBUF}, 4096\ns_add_u32 s{sT0}, s{sT0}, {65536+3072}\n"
            else:
                t = f"s_add_u32 s{sT0}, s{sT0}, {65536-1024}\n"
            t += f"buffer_load_dwordx4 v{vWVO+(n&1)}, {sr(sWQ)}, s{sT0} offen offset:{1024*(n&3)}{self.wflag} lds\n"
            if n == 7 and not back:
                t += f"""s_cmp_eq_u32 s{sWCH}, 9
                s_cselect_b32 s{sWCH}, 0, s{sWCH}
                s_add_u32 s{sWN}, s{sWN}, 1
                s_cmp_eq_u32 s{sWN}, 9
                s_cselect_b32 s{sT1}, 512, 0
                s_add_u32 s{sWCOL}, s{sWCOL}, s{sT1}"""
            items.append(t)
        return items

    def x_body(self):
        a = self.a
        a(f"""s_lshl_b32 s{sT0}, s{sXCH}, 7
        s_add_u32 s{sT0}, s{sT0}, s{sXBASE}
        s_and_b32 s{sT1}, s{sXN}, 3
        s_lshl_b32 s{sT1}, s{sT1}, 2
        s_add_u32 s{sT1}, s{sT1}, s{sLW}
        s_lshl_b32 s{sT1}, s{sT1}, 11
        s_add_u32 m0, s{sT1}, {XR}""")
        self.x_adv()
        for n in range(2):
            a(f"buffer_load_dwordx4 v{vXVO+n}, {sr(sX)}, s{sT0} offen offset:{1024*n} lds")

    def subs(self):
        a = self.a
        f = self.kvflag
        a("F_x:")
        self.x_body()
        self.ret()
        a("F_w:")
        for t in self.w_items():
            a(t)
        self.ret()
        a(f"""F_kv:
        s_cmp_eq_u32 s{sTY}, 0
        s_cbranch_scc1 F_kv_a""")
        for t in self.kv_items_b():
            a(t)
        a(f"s_mov_b32 s{sKVCNT}, 8")
        self.ret()
        a(f"""F_kv_a:
        s_mov_b32 s{sKVCNT}, 0
        s_cmp_ge_u32 s{sKVN}, 32
        s_cbranch_scc1 F_kv_ret""")
        if self.follow:
            a(f"""s_cmp_eq_u32 s{sTHR}, 0
            s_cbranch_scc1 F_kv_go
            s_waitcnt vmcnt(0)
            v_readfirstlane_b32 s{sPROG}, v{vPR}""")
            if self.pace < 99:
                check = f"s_add_u32 s{sT1}, s{sPROG}, {self.pace}\ns_cmp_ge_u32 s{sT1}, s{sKVN}"
                a(check + "\ns_cbranch_scc1 F_kv_go")
                self.spin(f"buffer_load_dword v{vPR}, v{vZ}, {sr(sWS)}, s{sPADDR} offen sc1", vPR,
                          f"v_readfirstlane_b32 s{sPROG}, v{vPR}\n" + check)
            a("F_kv_go:")
        a(f"""s_mov_b32 m0, s{sKVM0}
        s_mov_b32 s{sKVCNT}, 4""")
        if self.thr < 63:
            a(f"s_lshr_b32 s{sT1}, {self.thrmask}, s{sKVN}\ns_and_b32 s{sT1}, s{sT1}, s{sTHR}")
        for n in range(4):
            if self.thr < 63:
                l = self.lab("thr")
                a(f"s_cmp_eq_u32 s{sT1}, 0\ns_cbranch_scc1 {l}\ns_waitcnt vmcnt({self.thr-1})\n{l}:")
            if n == 2:
                a(f"s_add_u32 m0, s{sKVM0}, 8192\ns_add_u32 s{sKVN}, s{sKVN}, 1")
            if n < 2:
                a(f"buffer_load_dwordx4 v{vKVO+n}, {sr(sK)}, s{sKVOFF} offen offset:{1024*n}{f} lds")
            else:
                a(f"buffer_load_dwordx4 v{vVVO+(n&1)}, {sr(sV)}, s{sKVOFF} offen offset:{1024*(n-2)}{f} lds")
        a(f"""s_add_u32 s{sKVOFF}, s{sKVOFF}, 8192
        s_add_u32 s{sKVM0}, s{sKVM0}, 16384
        s_cmp_ge_u32 s{sKVM0}, s{sRINGEND}
        s_cselect_b32 s{sT0}, 98304, 0
        s_sub_u32 s{sKVM0}, s{sKVM0}, s{sT0}""")
        if self.follow or self.help:
            a(f"s_cmp_eq_u32 s{sTHR}, 0\ns_cbranch_scc1 F_kv_ret")
        if self.help:
            if self.ahead < 0:
                a(f"""s_add_u32 s{sT1}, s{sPROG}, {self.lead0}
                s_max_u32 s{sTN}, s{sTN}, s{sT1}
                s_add_u32 s{sT1}, s{sPROG}, {self.lead1}
                s_min_u32 s{sT1}, s{sT1}, 31
                s_cmp_le_u32 s{sTN}, s{sT1}
                s_cselect_b32 s{sLAST}, s{sTN}, s{sLAST}
                s_addc_u32 s{sTN}, s{sTN}, 0""")
            else:
                a(f"""s_cmp_lt_u32 s{sKVN}, {self.early_n}
                s_cselect_b32 s{sLAST}, {self.ahead0}, {self.ahead}
                s_add_u32 s{sLAST}, s{sKVN}, s{sLAST}
                s_min_u32 s{sLAST}, s{sLAST}, 31
                s_max_u32 s{sLAST}, s{sLAST}, {self.from_}""")
            a(f"""s_and_b32 s{sT0}, s{sLAST}, 15
            s_lshl_b32 s{sT0}, s{sT0}, 13
            s_lshr_b32 s{sT1}, s{sLAST}, 4
            s_lshl_b32 s{sT1}, s{sT1}, 18
            s_add_u32 s{sT0}, s{sT0}, s{sT1}
            s_add_u32 s{sT0}, s{sT0}, s{sTBASE}
            v_lshlrev_b32 v1, 7, v0
            s_mov_b64 exec, {(1 << self.help) - 1}
            buffer_load_dword v{vDUM}, v1, {sr(sBV)}, s{sT0} offen offset:{4096 - 128*self.help}
            s_mov_b64 exec, -1""")
        if self.follow:
            a(f"buffer_load_dword v{vPR}, v{vZ}, {sr(sWS)}, s{sPADDR} offen sc1")
        a("F_kv_ret:")
        self.ret()
        a("F_wo:")
        for t in self.wo_items():
            a(t)
        self.ret()

    def kvwait(self):
        l = self.lab("kw")
        self.a(f"""s_waitcnt vmcnt(8)
        s_cmp_eq_u32 s{sKVCNT}, 8
        s_cbranch_scc1 {l}
        s_waitcnt vmcnt({self.NA})
        s_cmp_eq_u32 s{sKVCNT}, 4
        s_cbranch_scc1 {l}
        s_waitcnt vmcnt(0)
        {l}:""")

    def pretouch_wq(self, dst):
        if not self.touch:
            return
        a = self.a
        l = self.lab("pt")
        a(f"s_cmp_eq_u32 s{sTY}, 1\ns_cbranch_scc1 {l}")
        srd(a, sPT, sBWP, SIZE['B_wq'])
        a(f"""s_lshl_b32 s{sT0}, s{sB}, 2
        s_add_u32 s{sT0}, s{sT0}, s{sLW}
        s_mul_i32 s{sT0}, s{sT0}, {9*8192}
        s_lshl_b32 s{sT1}, s{sHG}, 10
        s_add_u32 s{sT0}, s{sT0}, s{sT1}
        v_lshrrev_b32 v1, 2, v0
        v_and_b32 v6, 3, v0
        v_lshlrev_b32 v6, 7, v6
        v_lshl_add_u32 v1, v1, 13, v6
        s_mov_b32 exec_hi, 15
        buffer_load_dword v{dst}, v1, {sr(sPT)}, s{sT0} offen offset:512""")
        if self.touch & 2:
            a(f"buffer_load_dword v{dst+1}, v1, {sr(sWQ)}, s{sT0} offen offset:512")
        a(f"s_mov_b64 exec, -1\n{l}:")

    def touch_own_last(self):
        l = self.lab("tl")
        self.a(f"""s_cmp_eq_u32 s{sTY}, 1
        s_cbranch_scc1 {l}
        s_lshl_b32 s{sT0}, s{sB}, 2
        s_add_u32 s{sT0}, s{sT0}, s{sLW}
        s_mul_i32 s{sT0}, s{sT0}, 4608
        s_mul_i32 s{sT1}, s{sHG}, 589824
        s_add_u32 s{sT0}, s{sT0}, s{sT1}
        s_add_u32 s{sT0}, s{sT0}, 294912
        v_lshlrev_b32 v1, 7, v0
        s_mov_b32 exec_hi, 15
        buffer_load_dword v{vDUM}, v1, {sr(sWO)}, s{sT0} offen
        s_mov_b64 exec, -1
        {l}:""")

    def pretouch_wo(self, first):
        if not self.touch:
            return
        a = self.a
        l = self.lab("pt")
        a(f"s_cmp_eq_u32 s{sTY}, 1\ns_cbranch_scc1 {l}")
        if first:
            self.other_srd(sPT, 72, SIZE['B_wo'])
            a(f"""s_lshl_b32 s{sT0}, s{sB}, 2
            s_add_u32 s{sT0}, s{sT0}, s{sLW}
            s_mul_i32 s{sT0}, s{sT0}, 9216
            s_mul_i32 s{sTN}, s{sHG}, 589824
            s_add_u32 s{sTN}, s{sTN}, s{sT0}""")
        else:
            a(f"v_lshlrev_b32 v1, 7, v0\ns_mov_b64 exec, 0xfff\nbuffer_load_dword v{vFA+32}, v1, {sr(sPT)}, s{sTN} offen")
            if self.touch & 2:
                a(f"buffer_load_dword v{vFA+33}, v1, {sr(sWO)}, s{sTN} offen")
            a(f"s_mov_b64 exec, -1\ns_add_u32 s{sTN}, s{sTN}, 1536")
        a(f"{l}:")

    def rdA(self, reg, areg, mt, off0, off1, tag):
        return [(f"ds_read_b64_tr_b16 {vr(reg + 2*j, 2)}, v{areg+mt} offset:{o}", tag + (j,)) for j, o in enumerate((off0, off1))]

    def rdB(self, ks, qt):
        return (f"ds_read_b128 {vr(vFB + (ks*4+qt)*4, 4)}, v{vXA+ks} offset:{2048*qt}", ("B", ks, qt))

    def mfma(self, acc, mt, qt, areg, ks):
        c = vr(acc + (mt*4+qt)*4, 4)
        return f"v_mfma_f32_16x16x32_bf16 {c}, {vr(areg, 4)}, {vr(vFB + (ks*4+qt)*4, 4)}, {c}"

    def qA(self, ks, mt):
        return vFA + (ks*4 + mt)*4

    def q_rdA(self, ks, mt):
        return self.rdA(self.qA(ks, mt), vWA, mt, 32*ks*128, (32*ks+4)*128, ("A", ks, mt))

    def q_finalize(self, acc, pending):
        a = self.a
        a(f"s_mov_b32 s{sT2}, {fbits(QSCALE)}")
        mul, cvt, put = [], [], []
        for mt in range(4):
            for qt in range(4):
                c = acc + (mt*4+qt)*4
                mul.append("\n".join(f"v_mul_f32 v{c+r}, s{sT2}, v{c+r}" for r in range(4)))
                cvt.append(f"v_cvt_pk_bf16_f32 v{c}, v{c}, v{c+1}\nv_cvt_pk_bf16_f32 v{c+1}, v{c+2}, v{c+3}")
                put.append((f"v_xor_b32 v1, {32*mt}, v{vQW}\n" if qt == 0 else "") + f"ds_write_b64 v1, {vr(c,2)} offset:{2048*qt}")
        work = ["\n".join(([put[k-2]] if 2 <= k < 18 else []) + ([cvt[k-1]] if 1 <= k < 17 else []) + ([mul[k]] if k < 16 else [])) for k in range(18)]
        lead = len(pending) - 16 + 5
        for k, t in enumerate(pending):
            a(t)
            if k + 1 == lead:
                a("s_nop 3")
            if k + 1 >= lead:
                a(work.pop(0))
        for t in work:
            a(t)
        a("s_waitcnt lgkmcnt(0)")

    ORDER4 = [(mt, qt) for mt in range(4) for qt in range(4)]
    ORDER3 = [(mt, qt) for mt in range(3) for qt in range(4)]
    NEXTX = [f"s_add_u32 s{sN}, s{sN}, 1\ns_and_b32 s{sT0}, s{sN}, 3\ns_lshl_b32 s{sT0}, s{sT0}, 13",
             f"v_add_u32 v{vXA}, s{sT0}, v{vXA0}", f"v_add_u32 v{vXA+1}, s{sT0}, v{vXA0+1}"]

    def pj_first(self):
        a = self.a
        ACC0 = vACC
        a("L_pj:")
        if not (self.probes or self.stamps):
            self.late_srds()
        a(f"""v_mov_b32 v{vZ}, 0
        s_cmp_lg_u32 s{sLW}, 0
        s_cbranch_scc1 L_pj_a
        s_lshl_b32 s{sT0}, s{sTY}, 14
        s_lshl_b32 s{sT1}, s{sHG}, 7
        s_add_u32 s{sT0}, s{sT0}, s{sT1}
        s_add_u32 s{sT0}, s{sT0}, s{sFADDR}
        v_lshlrev_b32 v1, 4, v0
        v_mov_b32 v{vFA}, 0
        v_mov_b32 v{vFA+1}, 0
        v_mov_b32 v{vFA+2}, 0
        v_mov_b32 v{vFA+3}, 0
        s_mov_b64 exec, 0xff
        buffer_store_dwordx4 {vr(vFA, 4)}, v1, {sr(sWS)}, s{sT0} offen sc1
        s_mov_b64 exec, -1
        L_pj_a:""")
        self.early(6)
        for i in list(range(vKVO, vXVO)) + list(range(vOVO, vWVO)):
            a(f"v_mov_b32 v{i}, 0")
        a(f"""s_lshl_b32 s{sT2}, s{sLW}, 13
        s_mov_b32 s{sWB}, {R1}
        s_mov_b32 s{sWB+1}, {R2}
        s_mov_b32 s{sWB+2}, {WR}
        v_lshrrev_b32 v1, 2, v3
        v_lshl_add_u32 v6, v2, 3, v1
        v_lshrrev_b32 v1, 1, v1
        v_and_b32 v7, 1, v2
        v_lshl_or_b32 v1, v7, 1, v1
        v_and_b32 v7, 3, v0
        v_lshlrev_b32 v7, 3, v7
        v_lshl_add_u32 v6, v6, 7, v7
        v_lshl_add_u32 v6, v1, 5, v6
        v_add_u32 v{vWA0}, s{sT2}, v6
        v_add_u32 v{vWA}, {WR}, v{vWA0}""")
        for mt in range(1, 4):
            a(f"v_xor_b32 v{vWA+mt}, {32*mt}, v{vWA}")
        a(f"""v_lshrrev_b32 v1, 1, v3
        v_xor_b32 v6, v1, v2
        v_lshlrev_b32 v6, 4, v6
        v_lshl_add_u32 v6, v3, 7, v6
        v_add_u32 v{vXA0}, {XR}, v6
        v_xor_b32 v{vXA0+1}, 64, v{vXA0}
        v_mov_b32 v{vXA}, v{vXA0}
        v_mov_b32 v{vXA+1}, v{vXA0+1}
        v_lshrrev_b32 v6, 1, v2
        v_xor_b32 v6, v6, v1
        v_lshlrev_b32 v6, 4, v6
        v_lshl_add_u32 v6, v3, 7, v6
        v_and_b32 v7, 1, v2
        v_lshl_add_u32 v6, v7, 3, v6
        v_add_u32 v6, s{sT2}, v6
        v_add_u32 v{vQW}, {R2}, v6""")
        for i in range(64):
            a(f"v_mov_b32 v{ACC0+i}, 0")
        for i in range(16):
            a(f"v_mov_b32 v{vFA+16+i}, 0\nv_mov_b32 v{vFB+16+i}, 0")
        self.early(4)
        srd(a, sPT, sDBGP, 256)
        a(f"""v_mov_b32 v1, 1
        s_lshl_b32 s{sT0}, s{sB}, 2
        s_mov_b32 s{sN}, 0
        s_waitcnt vmcnt(0)
        s_cmp_lg_u32 s{sLW}, 0
        s_cbranch_scc1 L_q0
        s_mov_b64 exec, 1
        buffer_atomic_add v1, v{vZ}, {sr(sPT)}, s{sT0} offen offset:{128*bool(self.dbgst)} sc1
        s_mov_b64 exec, -1""")
        nextbuf = [f"v_add_u32 v{vWA}, s{sWB}, v{vWA0}\ns_mov_b32 s{sT0}, s{sWB}", f"v_xor_b32 v{vWA+1}, 32, v{vWA}\ns_mov_b32 s{sWB}, s{sWB+1}",
                   f"v_xor_b32 v{vWA+2}, 64, v{vWA}\ns_mov_b32 s{sWB+1}, s{sWB+2}", f"v_xor_b32 v{vWA+3}, 96, v{vWA}\ns_mov_b32 s{sWB+2}, s{sT0}"]
        a("L_q0:\ns_barrier")
        self.probe(0, True)
        lg = Lg(a)
        rd = lambda ks: [self.rdB(ks, 0)] + self.q_rdA(ks, 0) + [self.rdB(ks, q) for q in (1, 2, 3)] + sum((self.q_rdA(ks, m) for m in (1, 2, 3)), [])
        r0 = rd(0)
        plan = {k: [] for k in range(-1, 32)}
        for i, x in enumerate(r0):
            plan[i // 2 - 1].append(x)
        for pos, m in ((6, 0), (8, 1), (12, 2), (16, 3)):
            for j, x in enumerate(self.q_rdA(1, m)):
                plan[pos + j].append(x)
        for q in range(4):
            plan[18 + q].append(self.rdB(1, q))
        tail = nextbuf + self.NEXTX
        for x in plan[-1]:
            lg.issue(*x)
        for k in range(32):
            mt, qt = self.ORDER4[k & 15]
            if k == 16:
                lg.wait(*[tag for _, tag in r0])
            a(self.mfma(ACC0, mt, qt, self.qA(1 - (k >> 4), mt), 1 - (k >> 4)))
            for x in plan[k]:
                lg.issue(*x)
            if k >= 22 and tail:
                a(tail.pop(0))
            if k == 30:
                lg.drain()
                a(f"s_cmp_eq_u32 s{sN}, 1")
        self.probe(1)
        a("s_cbranch_scc1 L_q0_setup")
        if self.wqat > 1:
            a(f"s_cmp_eq_u32 s{sN}, {self.wqat}\ns_cbranch_scc1 L_q0_touch")
        a(f"s_cmp_lt_u32 s{sN}, 9\ns_cbranch_scc1 L_q0")
        self.early(10)
        self.q_finalize(ACC0, [self.mfma(ACC0, mt, qt, self.qA(1, mt), 1) for mt, qt in self.ORDER4])
        self.early(12)
        a(f"v_xor_b32 v{vQW}, {R2 ^ WR}, v{vQW}")
        self.stamp(1)
        a("s_branch L_pj_rest")

    def pj_setup(self):
        a = self.a
        a("L_q0_setup:")
        self.late_common()
        self.late_wo()
        a(f"""s_cmp_eq_u32 s{sTY}, 1
        s_cselect_b32 s{sKVN}, 2, {self.adist}
        s_lshl_b32 s{sT0}, s{sKVN}, 13
        s_add_u32 s{sKVOFF}, s{sKVOFF}, s{sT0}
        s_mul_i32 s{sT0}, s{sKVN}, s{sBUFSZ}
        s_add_u32 s{sKVM0}, s{sKVM0}, s{sT0}
        s_mov_b32 s{sTHR}, 1
        s_add_u32 s{sWCOL}, s{sWCOL}, 512
        s_add_u32 s{sWCH}, s{sWCH}, 7
        s_sub_u32 s{sT0}, s{sWCH}, 9
        s_cselect_b32 s{sWCH}, s{sWCH}, s{sT0}
        s_lshl_b32 s{sT2}, s{sLW}, 13
        s_add_u32 s{sWBUF}, s{sT2}, {WR}
        s_mov_b32 s{sXN}, 4
        s_add_u32 s{sXCH}, s{sXCH}, 4
        s_sub_u32 s{sT0}, s{sXCH}, 9
        s_cselect_b32 s{sXCH}, s{sXCH}, s{sT0}
        s_mov_b32 s{sOCI}, 0
        s_mov_b32 s{sOG}, 0
        s_mov_b32 s{sOBUF}, {WR}
        s_mov_b32 s{sTN}, 0
        s_mov_b32 s{sLAST}, 2
        v_mov_b32 v{vPR}, 0""")
        for i in range(64):
            a(f"v_mov_b32 v{vACC+64+i}, 0")
        if self.wqat > 1:
            a("s_branch L_q0\nL_q0_touch:")
        self.pretouch_wq(vFA + 34)
        a("s_branch L_q0")

    def stream_slot(self, ty, rdA, MT, acc, aset, loads, after, readB=True):
        e = self.a
        e("s_barrier")
        self.probe(0, True)
        lg = Lg(e)
        for t, tag in rdA:
            lg.issue(t, tag)
        lg.drain()
        self.probe(1)
        e("s_barrier")
        self.probe(2)
        for ks in (0, 1):
            for q in range(4 if readB else 0):
                lg.issue(*self.rdB(ks, q))
        if loads is None:
            return
        def mk(ks, mt, qt):
            def f():
                lg.wait(("B", ks, qt))
                e(self.mfma(acc, mt, qt, aset(ks, mt), ks))
            return f
        mm = [mk(ks, mt, qt) for ks in (0, 1) for mt in range(MT) for qt in range(4)]
        self.spread(mm, loads + (self.kv_items_b() if ty else []))
        self.probe(6)
        if not ty:
            if getattr(self, "extra", None):
                l = self.lab("tx")
                e(f"s_cmp_ge_u32 s{sN}, 15\ns_cbranch_scc1 {l}")
                self.pretouch_wo(False)
                e(f"{l}:")
                self.extra = None
            self.call("F_kv")
        for t in after:
            e(t)

    def store_items(self, G):
        acc = vACC + 48 * G
        items = []
        for qd in range(6):
            c = acc + 8*qd
            t = "\n".join(f"v_cvt_pk_bf16_f32 v{c+i}, v{c+2*i}, v{c+2*i+1}" for i in range(4))
            t += f"\nbuffer_store_dwordx4 {vr(c,4)}, v{vST}, {sr(sWS)}, s{sM} offen offset:{1024*(qd&3)} {('sc1', 'sc1 nt', 'sc0 sc1')[self.partop]}"
            if qd in (3, 5):
                t += f"\ns_add_u32 s{sM}, s{sM}, {4096 if qd == 3 else 24576-4096}"
            items.append(t)
        return items

    def pj_rest(self):
        a = self.a
        ACC1 = vACC + 64
        qrd = sum((self.q_rdA(ks, m) for ks in (0, 1) for m in range(4)), [])
        a(f"L_pj_rest:\nv_mov_b32 v{vXA}, v{vXA0}\nv_mov_b32 v{vXA+1}, v{vXA0+1}")
        self.prio_set(1)
        prevx = [f"s_add_u32 s{sN}, s{sN}, 1\ns_sub_u32 s{sT0}, 9, s{sN}\ns_and_b32 s{sT0}, s{sT0}, 3\ns_lshl_b32 s{sT0}, s{sT0}, 13"] + self.NEXTX[1:]
        a(f"s_cmp_eq_u32 s{sTY}, 1\ns_cbranch_scc1 L_q1_1")
        if self.help:
            self.other_srd(sBV, 56, SIZE['B_v'])
        if self.follow:
            self.wait_init(vZ, vDUM)
        if self.aidle:
            self.pretouch_wo(True)
            a(f"s_mov_b32 s{sM}, 6\nL_idle_a:\ns_barrier")
            self.probe(0, True)
            a("s_barrier")
            if self.aidle == 1:
                self.pretouch_wo(False)
            self.call("F_kv")
            self.kvwait()
            a(f"s_sub_u32 s{sM}, s{sM}, 1\ns_cmp_lg_u32 s{sM}, 0\ns_cbranch_scc1 L_idle_a")
        for ty in (0, 1):
            nk = 8 if ty else self.NA
            a(f"L_q1_{ty}:")
            if self.aidle == 2 and not ty:
                self.extra = "touch"
            self.stream_slot(ty, qrd, 4, ACC1, self.qA, self.w_items(True), prevx)
            a(f"s_sub_u32 s{sT0}, s{sN}, 11\ns_cmp_ge_u32 s{sT0}, 5\ns_cbranch_scc1 L_q1_nox{ty}")
            self.call("F_x")
            a(f"""s_sub_u32 s{sXN}, s{sXN}, 2
            s_add_u32 s{sXCH}, s{sXCH}, 7
            s_sub_u32 s{sT0}, s{sXCH}, 9
            s_cselect_b32 s{sXCH}, s{sXCH}, s{sT0}""")
            self.probe(4)
            a(f"s_waitcnt vmcnt({nk + 2})")
            self.probe(5)
            a(f"s_branch L_q1_{ty}\nL_q1_nox{ty}:")
            self.probe(4)
            a(f"s_waitcnt vmcnt({nk})")
            self.probe(5)
            a(f"s_cmp_lt_u32 s{sN}, 17\ns_cbranch_scc1 L_q1_{ty}")
            if not ty:
                a("s_branch L_q1_last")
        a("L_q1_last:")
        self.stream_slot(0, qrd, 4, ACC1, self.qA, None, None)
        self.call("F_kv")
        a("s_waitcnt lgkmcnt(0)")
        self.q_finalize(ACC1, [self.mfma(ACC1, mt, qt, self.qA(ks, mt), ks) for ks in (0, 1) for mt, qt in self.ORDER4])
        self.kvwait()
        self.stamp(2)
        a("s_barrier")
        self.probe(0, True)
        a("s_barrier")
        if not self.aidle:
            self.pretouch_wo(True)
        self.call("F_kv")
        for i in range(144):
            a(f"v_mov_b32 v{vACC+i}, 0")
        a(f"""v_lshrrev_b32 v6, 2, v0
        v_bfe_u32 v1, v6, 1, 2
        v_and_b32 v7, 3, v0
        v_lshlrev_b32 v7, 3, v7
        v_mul_u32_u24 v6, 384, v6
        v_add_u32 v6, v6, v7
        s_mul_i32 s{sT0}, s{sLW}, 3""")
        for nt in range(3):
            a(f"""s_add_u32 s{sT1}, s{sT0}, {nt}
            v_xor_b32 v7, s{sT1}, v1
            v_lshl_add_u32 v{vOA0+nt}, v7, 5, v6
            v_add_u32 v{vOA+nt}, {WR}, v{vOA0+nt}""")
        a(f"""s_lshl_b32 s{sT0}, s{sTY}, 4
        s_add_u32 s{sT0}, s{sT0}, s{sB}
        s_lshl_b32 s{sT0}, s{sT0}, 3
        s_add_u32 s{sT0}, s{sT0}, s{sHG}
        s_mul_i32 s{sM}, s{sT0}, {PART}
        s_add_u32 s{sM}, s{sM}, s{sOLW}
        v_lshl_add_u32 v{vST}, v3, 2, v2
        v_lshlrev_b32 v{vST}, 4, v{vST}""")
        self.kvwait()
        if self.aidle:
            a(f"s_cmp_eq_u32 s{sTY}, 0\ns_cbranch_scc1 L_kvl_done")
        a(f"s_mov_b32 s{sN}, 6\nL_kvl:\ns_barrier")
        self.probe(0, True)
        a("s_barrier")
        self.probe(2)
        if not self.aidle:
            self.pretouch_wo(False)
        self.call("F_kv")
        self.probe(4)
        self.kvwait()
        self.probe(5)
        a(f"""s_sub_u32 s{sN}, s{sN}, 1
        s_cmp_lg_u32 s{sN}, 0
        s_cbranch_scc1 L_kvl
        L_kvl_done:
        s_barrier""")
        self.probe(0, True)
        a("s_barrier")
        self.call("F_wo")
        if self.touch & 8:
            self.touch_own_last()
        self.call("F_kv")
        self.kvwait()
        self.stamp(3)
        oA = lambda c, ks, mt: vFA + 4*mt + (0 if ks == 0 else 12 + 12*(c & 1))
        o_rdA = lambda c, ks, mt: self.rdA(oA(c, ks, mt), vOA, mt, 32*ks*384, (32*ks+16)*384, ("A", ks, mt))
        xa_step = [f"s_add_u32 s{sN}, s{sN}, 1\ns_add_u32 s{sT0}, s{sROT}, s{sN}\ns_and_b32 s{sT0}, s{sT0}, 3\ns_lshl_b32 s{sT0}, s{sT0}, 13",
                   f"v_add_u32 v{vXA}, s{sT0}, v{vXA0}", f"v_add_u32 v{vXA+1}, s{sT0}, v{vXA0+1}"]
        a(f"s_mov_b32 s{sN}, -1")
        for t in xa_step:
            a(t)
        ord_ = sum((o_rdA(0, ks, m) for ks in (0, 1) for m in range(3)), [])
        a(f"s_cmp_eq_u32 s{sTY}, 1\ns_cbranch_scc1 L_o2_1")
        for ty in (0, 1):
            a(f"L_o2_{ty}:")
            for G in range(3):
                self.stream_slot(ty, ord_, 3, vACC + 48*G, lambda ks, mt: oA(0, ks, mt), self.wo_items(), xa_step if G == 0 else [], G == 0)
                self.probe(4)
                if ty:
                    a("s_waitcnt vmcnt(8)")
                else:
                    self.kvwait()
                self.probe(5)
            a(f"s_cmp_lt_u32 s{sN}, 4\ns_cbranch_scc1 L_o2_{ty}")
            if not ty:
                a("s_branch L_o2_done")
        a("L_o2_done:")
        self.stamp(4)
        if self.probes:
            a(f"s_add_u32 s{sSLOT}, s{sSLOT}, 3")
        a("s_barrier\ns_barrier")
        if self.touch & 4:
            self.touch_own_last()
        self.call("F_kv")
        a(f"""v_lshl_add_u32 v1, v0, 2, s{sRB}
        v_cmp_gt_u32 vcc, 6, v0
        s_and_saveexec_b64 {sr(sT0, 2)}, vcc
        s_cmp_lg_u32 s{sLW}, 0
        s_cbranch_scc1 L_nz
        ds_write_b32 v1, v{vZ} offset:{SYNC - WR}
        L_nz:
        s_mov_b64 exec, -1
        s_waitcnt lgkmcnt(0)""")
        self.kvwait()
        srd(a, sPT, sDBGP, 256)
        a(f"""s_lshl_b32 s{sT2}, s{sB}, 2
        s_barrier
        s_barrier
        buffer_load_dword v{vDUM}, v{vZ}, {sr(sPT)}, s{sT2} offen offset:{128*bool(self.dbgst)} sc1
        s_mov_b32 s{sOBUF}, s{sRB+1}""")
        self.call("F_wo")
        a(f"""s_waitcnt vmcnt(6)
        v_readfirstlane_b32 s{sT1}, v{vDUM}
        s_cmp_ge_u32 s{sT1}, 16
        s_cbranch_scc1 L_init_ok""")
        self.wait_init(vZ, vDUM)
        a(f"L_init_ok:\ns_barrier\ns_barrier\ns_mov_b32 s{sOBUF}, s{sRB+2}")
        self.call("F_wo")
        if self.prio & 4:
            a("s_setprio 0")
        self.stamp(5)
        st = []
        for c in range(12):
            grp = (lambda c: c >> 2) if self.gmajor else (lambda c: c % 3)
            acc, prev = vACC + 48 * grp(c), vACC + 48 * grp(max(c - 1, 0))
            newB = c % 3 == 0 or self.gmajor
            lg = Lg(a)
            if c == 0:
                for ks in (0, 1):
                    for m in range(3):
                        for x in o_rdA(0, ks, m):
                            lg.issue(*x)
                lg.drain()
            a("s_barrier")
            self.probe(0, True)
            b0 = [self.rdB(0, q) for q in range(4)] if newB else []
            r0 = b0[:1] + o_rdA(c, 0, 0) + b0[1:] + o_rdA(c, 0, 1) + o_rdA(c, 0, 2)
            ra1 = sum((o_rdA(c, 1, m) for m in range(3)), [])
            if c == 0:
                r0, ra1 = b0 + [self.rdB(1, q) for q in range(4)], []
            plan = {k: [] for k in range(-1, 24)}
            for i, x in enumerate(r0):
                plan[(i // 2 - 1 if newB else i - 1) if c else -1].append(x)
            for i, x in enumerate(ra1):
                plan[5 + i if c else 12 + i // 2].append(x)
            for q in range(4 if newB and c else 0):
                plan[12 + q].append(self.rdB(1, q))
            fill = [f"v_add_u32 v{vOA+nt}, s{sRB + ((c+1)&3)}, v{vOA0+nt}" for nt in range(3)] + (xa_step if newB else [])
            for x in plan[-1]:
                lg.issue(*x)
            for k in range(0 if c else 12, 24):
                mt, qt = self.ORDER3[k % 12]
                if k == 12 and c:
                    lg.wait(*[tag for _, tag in r0])
                elif not c:
                    lg.wait(("A", 0, mt, 0), ("A", 0, mt, 1), ("B", 0, qt))
                a(self.mfma(prev, mt, qt, oA(c - 1, 1, mt), 1) if k < 12 else self.mfma(acc, mt, qt, oA(c, 0, mt), 0))
                for x in plan[k]:
                    lg.issue(*x)
                if k >= (16 if c else 19) and fill:
                    a(fill.pop(0))
                    if not c and fill:
                        a(fill.pop(0))
                if self.gmajor:
                    if k == 11 and c in (self.store0, self.store1):
                        st += self.store_items(int(c == self.store1))
                    step = self.stp0 if c < self.store1 else self.stp
                else:
                    if c >= 10 and k == 9:
                        st += self.store_items(c - 10)
                    step = self.stp
                if st and k % step == step - 1:
                    a(st.pop(0))
                if k == 22:
                    lg.drain()
            assert not fill
            if c < 2:
                a(f"s_waitcnt vmcnt({6 - 6*c})")
            if c in (4, 8):
                self.stamp(6 + (c >> 3))
        for k, (mt, qt) in enumerate(self.ORDER3):
            a(self.mfma(vACC + 96, mt, qt, oA(11, 1, mt), 1))
            if k == 9:
                st += self.store_items(2)
            if st and k % 2 == 1:
                a(st.pop(0))
        for t in st:
            a(t)
        self.stamp(8)
        a(f"""v_mov_b32 v1, {SYNC}
        v_mov_b32 v6, 1
        v_lshlrev_b32 v5, 4, v0
        v_mov_b32 v{vFA}, 1
        v_mov_b32 v{vFA+1}, 1
        v_mov_b32 v{vFA+2}, 1
        v_mov_b32 v{vFA+3}, 1
        s_lshl_b32 s{sT0}, s{sTY}, 14
        s_lshl_b32 s{sT1}, s{sHG}, 7
        s_add_u32 s{sT0}, s{sT0}, s{sT1}
        s_add_u32 s{sT0}, s{sT0}, s{sFADDR}
        s_mov_b64 exec, 1""")
        for k in range(1):
            a(f"""s_waitcnt vmcnt(0)
            ds_add_rtn_u32 v7, v1, v6 offset:{4*k}
            s_waitcnt lgkmcnt(0)
            v_readfirstlane_b32 s{sT1}, v7
            s_cmp_lg_u32 s{sT1}, 3
            s_cbranch_scc1 L_nf{k}
            s_mov_b64 exec, 0xff
            buffer_store_dwordx4 {vr(vFA, 4)}, v5, {sr(sWS)}, s{sT0} offen sc1
            L_nf{k}:""")
            if k == 0:
                self.stamp(13)
        a("s_mov_b64 exec, -1")
        self.stamp(9)
        self.probe_dump()
        a("s_branch L_reduce")

    def at_first(self):
        a = self.a
        a("L_at:")
        self.prio_set(0)

        issued = []
        WBUFS = (WR, R1, R2)

        def ldx(n, direct):
            if n == 0 and self.inl:
                self.x_body()
            elif n <= 3 or n >= 9 or direct:
                self.call("F_x")
            else:
                a(f"s_lshl_b32 s{sT0}, s{sXCH}, 7\ns_add_u32 s{sT0}, s{sT0}, s{sXBASE}")
                self.x_adv()
                for i in range(2):
                    a(f"buffer_load_dwordx4 {vr(vO + (n-4)*8 + 4*i, 4)}, v{vXVO+i}, {sr(sX)}, s{sT0} offen offset:{1024*i}")
            issued.extend([("x", n)] * 2)

        def ldw(n):
            if n == 9:
                a(f"s_sub_u32 s{sWCH}, s{sWCH}, 1\ns_cselect_b32 s{sWCH}, 8, s{sWCH}")
            a(f"s_lshl_b32 s{sWBUF}, s{sLW}, 13\ns_add_u32 s{sWBUF}, s{sWBUF}, {WBUFS[n % 3]}")
            if n == 0 and self.inl:
                for t in self.w_items():
                    a(t)
            else:
                self.call("F_w")
            issued.extend([("w", n)] * 8)

        def prefill(k, ty):
            for _ in range(2 - ty):
                self.call("F_kv")
            issued.extend([("kv", k)] * 8)

        def wait(*tags):
            k = max(i for i, t in enumerate(issued) if t in tags) + 1
            a(f"s_waitcnt vmcnt({min(63, len(issued) - k)})")
        def first_stage(ty, head):
            del issued[:]
            direct = ty == 1 and self.xplan
            if head:
                ldx(0, direct); ldw(0)
                return
            issued.extend([("x", 0)] * 2 + [("w", 0)] * 8)
            self.early(2)
            self.call("F_atset")
            self.early(4)
            ldx(1, direct); ldw(1)
            wait(("x", 0), ("w", 0))
            self.early(5)
            for n in range(9):
                a("s_barrier")
                self.probe(0, True)
                if 1 <= n <= 5 and not direct:
                    wait(("x", n + 3))
                    for i in range(2):
                        a(f"ds_write_b128 v{vT}, {vr(vO + (n-1)*8 + 4*i, 4)} offset:{((n+3)&3)*8192 + 1024*i}")
                if n == 0:
                    for k in range(2, 4 if direct else 9):
                        ldx(k, direct)
                elif direct and n <= 5:
                    ldx(n + 3, direct)
                if n + 2 <= 9:
                    ldw(n + 2)
                if n == 8:
                    prefill(0, ty)
                    if ty or self.adist == 4:
                        prefill(1, ty)
                self.probe(4)
                wait(*([("w", n + 1)] + [("kv", 0) if n == 8 else ("x", n + 1)]))
                a("s_waitcnt lgkmcnt(0)")
                self.probe(5)
        a(f"s_mov_b32 s{sXN}, 0\ns_cmp_eq_u32 s{sTY}, 0\ns_cbranch_scc1 L_at_a")
        first_stage(1, True)
        a("s_branch L_at_b\nL_at_a:")
        if self.xplan & 2:
            srd(a, sPT, sBWP, SIZE['B_wq'])
            a(f"""s_lshl_b32 s{sT0}, s{sB}, 2
            s_add_u32 s{sT0}, s{sT0}, s{sLW}
            s_mul_i32 s{sT0}, s{sT0}, {9*8192}
            s_lshl_b32 s{sT1}, s{sHG}, 10
            s_add_u32 s{sT0}, s{sT0}, s{sT1}
            v_lshrrev_b32 v1, 2, v0
            v_and_b32 v6, 3, v0
            v_lshlrev_b32 v6, 7, v6
            v_lshl_add_u32 v1, v1, 13, v6
            s_mov_b32 exec_hi, 15
            buffer_load_dword v{vP+3}, v1, {sr(sPT)}, s{sT0} offen""")
            if self.xplan & 4:
                a(f"buffer_load_dword v{vP+2}, v1, {sr(sWQ)}, s{sT0} offen")
            a("s_mov_b64 exec, -1")
        if self.xtouch:
            srd(a, sBV, sBXP, SIZE['B_x'])
            a(f"v_mul_u32_u24 v1, 1152, v0\ns_mul_i32 s{sT2}, s{sB}, 73728")
            for j in range(2):
                a(f"""s_add_u32 s{sT0}, s{sXCH}, s{sLW}
                s_add_u32 s{sT0}, s{sT0}, {self.xfrom + 4*j}
                s_mul_i32 s{sT1}, s{sT0}, 57
                s_lshr_b32 s{sT1}, s{sT1}, 9
                s_mul_i32 s{sT1}, s{sT1}, 9
                s_sub_u32 s{sT0}, s{sT0}, s{sT1}
                s_lshl_b32 s{sT0}, s{sT0}, 7
                s_add_u32 s{sT0}, s{sT0}, s{sT2}
                buffer_load_dword v{vP+j}, v1, {sr(sBV)}, s{sT0} offen""")
        first_stage(0, True)
        first_stage(0, False)
        a("s_branch L_at_done\nL_at_b:")
        first_stage(1, False)
        a("L_at_done:")
        if self.prio & 1:
            a("s_setprio 0")
        a("s_branch L_stage\nF_atset:")
        if not (self.probes or self.stamps):
            self.late_srds()
        self.late_common()
        a(f"""s_mov_b32 s{sTHR}, 0
        s_lshl_b32 s{sT0}, s{sLW}, 11
        s_add_u32 s{sT0}, s{sT0}, {XR}
        v_lshl_add_u32 v{vT}, v0, 4, s{sT0}""")
        self.at_setup()
        if self.xplan:
            a(f"s_cmp_eq_u32 s{sTY}, 0\ns_cbranch_scc1 F_atset_ret")
            for i in range(vO, vO + 40):
                a(f"v_mov_b32 v{i}, 0")
            a("F_atset_ret:")
        self.ret()

    def at_setup(self):
        a = self.a
        a(f"""s_lshr_b32 s{sT0}, s{sLW}, 1
        s_mul_i32 s{sT0}, s{sT0}, s{sTY}
        s_lshl_b32 s{sT0}, s{sT0}, 13
        v_xor_b32 v7, v2, v3
        v_lshlrev_b32 v7, 4, v7
        v_lshl_add_u32 v7, v3, 8, v7
        v_add_u32 v{vKA}, s{sT0}, v7""")
        for ks in range(1, 4):
            a(f"v_xor_b32 v{vKA+ks}, {64*ks}, v{vKA}")
        a(f"""s_lshr_b32 s{sT1}, s{sBUFSZ}, 1
        s_add_u32 s{sT0}, s{sT0}, s{sT1}
        v_lshrrev_b32 v1, 2, v0
        v_and_b32 v6, 7, v1
        v_lshlrev_b32 v7, 8, v1
        v_lshl_add_u32 v7, v6, 5, v7
        v_and_b32 v1, 3, v0
        v_lshl_add_u32 v7, v1, 3, v7
        v_add_u32 v{vVA}, s{sT0}, v7""")
        for dt in range(1, 8):
            a(f"v_xor_b32 v{vVA+dt}, {32*dt}, v{vVA}")
        a(f"""s_mov_b32 s{sRPOS}, 0
        s_mov_b32 s{sSTAGE}, 0
        s_mov_b32 s{sQBUF}, {R2 - XR}
        s_mov_b32 s{sM}, 3
        s_lshr_b32 s{sT0}, s{sLW}, 1
        s_lshl_b32 s{sT0}, s{sT0}, 14
        s_and_b32 s{sT1}, s{sLW}, 1
        s_lshl_b32 s{sT1}, s{sT1}, 12
        s_add_u32 s{sT0}, s{sT0}, s{sT1}
        s_add_u32 s{sT0}, s{sT0}, {XR}
        v_lshrrev_b32 v6, 1, v3
        v_xor_b32 v6, v6, v2
        v_lshlrev_b32 v6, 4, v6
        v_lshl_add_u32 v6, v3, 7, v6
        v_add_u32 v{vH}, s{sT0}, v6
        v_xor_b32 v{vH+1}, 64, v{vH}""")
        for i in list(range(vO + 40, vO + 64)) + list(range(vNM + 1, vNM + 8)) + [vL0, vL0 + 1, vL0 + 2, vL0 + 3, 4] + list(range(vOVO, vOVO + 6)):
            a(f"v_mov_b32 v{i}, 0")

    def at_rest(self):
        a = self.a
        publish = self.follow or self.gate
        a(f"""L_stage:
        s_mov_b32 s{sTH}, 0xff7fffff
        s_mov_b32 s{sFLOOR}, 0xff7fffff
        s_mov_b32 s{sFIRST}, 0
        s_cmp_lg_u32 s{sSTAGE}, 0
        s_cbranch_scc1 L_stage_a
        v_mov_b32 v{vNM}, 0
        L_stage_a:""")
        for i in range(2):
            a(f"v_add_u32 v{vT+i}, s{sQBUF}, v{vH+i}")
        a(f"s_mov_b32 s{sN}, 0\nL_tile:\ns_barrier")
        self.probe(0, True)
        a(f"s_cmp_lg_u32 s{sN}, 0\ns_cbranch_scc1 L_tile_k")
        for qt in range(2):
            for ks in range(4):
                a(f"ds_read_b128 {vr(vQ + (qt*4+ks)*4, 4)}, v{vT+(ks&1)} offset:{2048*qt + 8192*(ks>>1)}")
        a("s_waitcnt lgkmcnt(0)\nL_tile_k:")
        lg = Lg(a)
        for ks in range(4):
            for kt in range(2):
                lg.issue(f"ds_read_b128 {vr(vKF + (ks*2+kt)*4, 4)}, v{vKA+ks} offset:{4096*kt}", ("K", ks, kt))
        a("s_barrier")
        O = lambda dt, qt: vO + (((dt >> 1)*2 + qt)*2 + (dt & 1))*4
        pv = lambda dt, u: f"v_mfma_f32_16x16x32_bf16 {vr(O(dt, u), 4)}, {vr(vVF + dt*4, 4)}, {vr(vP+4*u, 4)}, {vr(O(dt, u), 4)}"
        if self.defer:
            a(f"s_cmp_eq_u32 s{sN}, 0\ns_cbranch_scc1 L_tile_q")
            late = [f"v_pk_add_f32 {vr(vL0+2*u, 2)}, {vr(vL0+2*u, 2)}, {vr(vS+8*u+2*i, 2)}" for u, i in ((1, 0), (0, 2), (1, 1), (0, 3), (1, 2), (1, 3))]
            late += [f"v_add_u32 v{vVA+i}, s{sPROG}, v{vVA+i}" for i in range(8)]
            def deferred():
                l = list(late)
                for dt in range(8):
                    a(pv(dt, 1))
                    for _ in range(2):
                        if l: a(l.pop(0))
            deferred()
            a("L_tile_q:")
        vreads = [(f"ds_read_b64_tr_b16 {vr(vVF + dt*4 + 2*j, 2)}, v{vVA+dt} offset:{4096*j}", ("V", dt, j)) for dt in range(8) for j in range(2)]
        S = lambda qt, kt: vS + (qt*2 + kt)*4
        O = lambda dt, qt: vO + (((dt >> 1)*2 + qt)*2 + (dt & 1))*4
        for ks in range(4):
            for kt in range(2):
                lg.wait(("K", ks, kt))
                for qt in range(2):
                    c = vr(vNM + 4*qt, 4) if ks == 0 else vr(S(qt, kt), 4)
                    a(f"v_mfma_f32_16x16x32_bf16 {vr(S(qt, kt), 4)}, {vr(vKF + (ks*2+kt)*4, 4)}, {vr(vQ + (qt*4+ks)*4, 4)}, {c}")
                    if len(lg.q) < 15:
                        lg.issue(*vreads.pop(0))
        for t, tag in vreads:
            lg.issue(t, tag)
        a(f"""s_add_u32 s{sRPOS}, s{sRPOS}, s{sBUFSZ}
        s_cmp_ge_u32 s{sRPOS}, 98304
        s_cselect_b32 s{sT0}, 98304, 0
        s_sub_u32 s{sRPOS}, s{sRPOS}, s{sT0}
        s_sub_u32 s{sPROG}, s{sBUFSZ}, s{sT0}""")
        adv = [f"v_add_u32 v{vKA+i}, s{sPROG}, v{vKA+i}" for i in range(12)]
        nadv = 4 if self.defer else 2
        for t in adv[:nadv]:
            a(t)
        adv = adv[nadv:]
        t0, t1 = vT, vT + 1
        a(f"""v_max3_f32 v{t0}, v{vS}, v{vS+1}, v{vS+2}
        v_max3_f32 v{t0}, v{t0}, v{vS+3}, v{vS+4}
        v_max3_f32 v{t1}, v{vS+8}, v{vS+9}, v{vS+10}
        v_max3_f32 v{t0}, v{t0}, v{vS+5}, v{vS+6}
        v_max3_f32 v{t1}, v{t1}, v{vS+11}, v{vS+12}
        v_max_f32 v{t0}, v{t0}, v{vS+7}
        v_max3_f32 v{t1}, v{t1}, v{vS+13}, v{vS+14}
        v_max_f32 v{t1}, v{t1}, v{vS+15}
        v_max_f32 v{vT+2}, v{t0}, v{t1}
        v_cmp_lt_f32 vcc, s{sTH}, v{vT+2}
        s_cbranch_vccnz L_rescale
        L_tile_exp:""")
        ex = lambda u: [f"v_exp_f32 v{vS+8*u+i}, v{vS+8*u+i}" for i in range(8)]
        cv = lambda u: [f"v_cvt_pk_bf16_f32 v{vP+4*u+i}, v{vS+8*u+2*i}, v{vS+8*u+2*i+1}" for i in range(4)]
        if self.pkl:
            ad = lambda u: [x for i in range(4) for x in (f"v_pk_add_f32 {vr(vL0+2*u, 2)}, {vr(vL0+2*u, 2)}, {vr(vS+8*u+2*i, 2)}", "")]
        else:
            ad = lambda u: [f"v_add_f32 v{vL0+2*u+(i&1)}, v{vL0+2*u+(i&1)}, v{vS+8*u+i}" for i in range(8)]
        pv = lambda dt, u: f"v_mfma_f32_16x16x32_bf16 {vr(O(dt, u), 4)}, {vr(vVF + dt*4, 4)}, {vr(vP+4*u, 4)}, {vr(O(dt, u), 4)}"
        e0, c0, a0 = ex(0), cv(0), ad(0)
        e1, c1, a1 = ex(1), cv(1), ad(1)
        for t in e0[:3] + [e0[3], c0[0], e0[4], e0[5], c0[1], e0[6], e0[7], c0[2], e1[0], c0[3], e1[1], a0[0]]:
            a(t)
        gaps = [[e1[2]], [e1[3], c1[0]], [e1[4]], [e1[5], c1[1]], [e1[6]], [e1[7]], [c1[2], a0[1]], [c1[3], a0[2], a0[3] or "s_nop 0"]]
        for dt in range(8):
            if dt % 2 == 0:
                lg.wait(("V", dt + 1, 0), ("V", dt + 1, 1))
            a(pv(dt, 0))
            for t in gaps[dt]:
                a(t)
        rest = [x for pair in zip(a1, a0[4:] + adv[:4]) for x in pair] + adv[4:]
        assert self.pkl and not self.defer and not publish
        a(f"s_cmp_eq_u32 s{sN}, 15\ns_cbranch_scc1 L_tile_last")
        if not self.defer:
            for dt in range(8):
                a(pv(dt, 1))
                for _ in range(3):
                    if rest: a(rest.pop(0))
            assert not rest
        self.probe(6)
        a(f"s_or_b32 s{sT0}, s{sSTAGE}, s{sN}\ns_cbranch_scc1 L_tile_nw\ns_waitcnt vmcnt(0)\nL_tile_nw:")
        if publish:
            a(f"""s_cmp_gt_u32 s{sTY}, s{sLW}
            s_cbranch_scc0 L_tile_np""")
            if not self.follow:
                a(f"s_add_u32 s{sM}, s{sM}, 1\ns_cmp_eq_u32 s{sM}, {self.gate + 1}\ns_cbranch_scc0 L_tile_np\ns_sub_u32 s{sM}, s{sM}, 1")
            a(f"""v_mov_b32 v5, s{sM}
            s_mov_b64 exec, 1
            buffer_store_dword v5, v4, {sr(sWS)}, s{sPADDR} offen sc1
            s_mov_b64 exec, -1
            s_add_u32 s{sM}, s{sM}, 1
            L_tile_np:""")
        a(f"s_add_u32 s{sN}, s{sN}, 1\ns_branch L_tile")
        R = vT + 2
        chain = [x for x in a0[4:] if x] + [x for x in a1 if x]
        chain = [chain[0], chain[2], chain[1], chain[3], chain[4], chain[5]]
        chain += f"""v_add_f32 v{vL0}, v{vL0}, v{vL0+1}
        v_add_f32 v{vL0+1}, v{vL0+2}, v{vL0+3}
        v_mov_b32 v{vL0+2}, v{vL0}
        v_mov_b32 v{vL0+3}, v{vL0+1}
        s_mov_b32 s{sQBUF}, {WR - XR}
        s_add_u32 s{sSTAGE}, s{sSTAGE}, 1
        v_permlane32_swap_b32 v{vL0}, v{vL0+2}
        v_permlane32_swap_b32 v{vL0+1}, v{vL0+3}
        v_add_f32 v{vL0}, v{vL0}, v{vL0+2}
        v_add_f32 v{vL0+1}, v{vL0+1}, v{vL0+3}
        v_mov_b32 v{vL0+2}, v{vL0}
        v_mov_b32 v{vL0+3}, v{vL0+1}
        s_nop 1
        v_permlane16_swap_b32 v{vL0}, v{vL0+2}
        v_permlane16_swap_b32 v{vL0+1}, v{vL0+3}
        v_add_f32 v{R}, v{vL0}, v{vL0+2}
        v_add_f32 v{R-2}, v{vL0+1}, v{vL0+3}
        v_rcp_f32 v{R}, v{R}
        v_rcp_f32 v{R-2}, v{R-2}
        s_nop 0""".split("\n")
        a("L_tile_last:")
        for dt in range(8):
            a(pv(dt, 1))
            for _ in range(3):
                a(chain.pop(0))
        for t in chain:
            a(t)
        mul, put = [], []
        for qt in range(2):
            for p in range(4):
                c = vO + (p*2 + qt)*8
                mul.append("\n".join(f"v_pk_mul_f32 {vr(c+i, 2)}, {vr(c+i, 2)}, {vr(R-2*qt, 2)} op_sel_hi:[1,0]" for i in range(0, 8, 2)))
                put.append("\n".join(f"v_cvt_pk_bf16_f32 v{c+i}, v{c+2*i}, v{c+2*i+1}" for i in range(4)) +
                           f"\nds_write_b128 v{vH + (p&1)}, {vr(c,4)} offset:{2048*qt + 8192*(p>>1)}")
        for k in range(9):
            if k < 8: a(mul[k])
            if k: a(put[k-1])
        self.probe(6)
        a(f"""s_cmp_lt_u32 s{sSTAGE}, 2
        s_cbranch_scc0 L_feed0""")
        for t in adv:
            a(t)
        self.late_wo()
        a(f"""s_mov_b32 s{sOCI}, {7 if self.gmajor else 5}
        s_mov_b32 s{sOG}, 0
        s_waitcnt lgkmcnt(0)
        s_branch L_stage""")
        a("L_feed0:")
        self.prio_set(2)
        a(f"""s_mov_b32 s{sN}, 0
        {self.wo_addr(sRB+3)}
        s_waitcnt lgkmcnt(0)
        L_feed:
        s_barrier""")
        self.probe(0, True)
        if self.probes:
            a(f"s_mov_b32 m0, s{sT1}\ns_nop 0")
        nxt = self.wo_addr(sRB+3).replace(f"s{sT0}", f"s{sT2}").replace(f"s{sT1}", f"s{sM}").split("\n")
        nxt = [t for t in nxt if "m0" not in t]
        between = [self.wo_adv(),
                   f"s_mov_b32 s{sT2}, s{sRB+3}\ns_mov_b32 s{sRB+3}, s{sRB}\ns_mov_b32 s{sRB}, s{sRB+1}\ns_mov_b32 s{sRB+1}, s{sRB+2}\ns_mov_b32 s{sRB+2}, s{sT2}",
                   "\n".join(nxt[:5]), f"s_add_u32 m0, s{sT1}, 4096\n" + "\n".join(nxt[5:]),
                   f"s_add_u32 s{sN}, s{sN}, 1\ns_mov_b32 s{sT1}, s{sM}\ns_cmp_lt_u32 s{sN}, 9", f"s_mov_b32 m0, s{sM}\ns_mov_b32 s{sT0}, s{sT2}"]
        for n in range(6):
            a(f"buffer_load_dwordx4 v{vOVO+n}, {sr(sWO)}, s{sT0} offen offset:{1024*(n&3)}{self.wflag} lds")
            a(between[n])
        self.probe(4)
        a("s_waitcnt vmcnt(12)\ns_cbranch_scc1 L_feed")
        if self.gate:
            a(f"s_or_b32 s{sT0}, s{sTY}, s{sLW}\ns_cbranch_scc1 L_gate")
            self.wait_init(4, 5)
            self.spin(f"buffer_load_dword v5, v4, {sr(sWS)}, s{sPADDR} offen sc1", 5,
                      f"v_readfirstlane_b32 s{sT1}, v5\ns_cmp_ge_u32 s{sT1}, {self.gate}")
            a("L_gate:")
        a("""s_barrier
        s_waitcnt vmcnt(6)
        s_barrier
        s_waitcnt vmcnt(0)
        s_barrier""")
        self.probe_dump()

    def reduce(self):
        a = self.a
        vL, vO0, vD, vSum = 6, 14, 40, 104
        of = ("", " sc1", " nt", " sc0 sc1")[self.outf]
        a("L_reduce:")
        self.stamp(10)
        a(f"""s_setprio 0
        s_lshr_b32 s{sSTAGE}, s{sWAVE}, 2
        s_lshl_b32 s{sT1}, s{sSTAGE}, 2
        s_add_u32 s{sT1}, s{sT1}, {SYNC + 8}
        v_mov_b32 v9, s{sT1}
        s_mov_b32 s{sSPIN}, {SPIN}
        s_cmp_lg_u32 s{sLW}, 0
        s_cbranch_scc1 L_red_work
        s_lshl_b32 s{sT0}, s{sSTAGE}, 14
        s_add_u32 s{sFADDR}, s{sFADDR}, s{sT0}
        v_mov_b32 v4, 0
        v_and_b32 v8, 7, v0
        v_lshlrev_b32 v8, 7, v8
        s_cmp_eq_u32 s{sSTAGE}, 1
        s_cbranch_scc1 L_red_poll""")
        self.wait_init(4, 5)
        a(f"""s_mov_b32 s{sSPIN}, {SPIN}
        L_red_poll:""")
        NP = self.polls
        ld = lambda k: f"buffer_load_dword v{16+k}, v8, {sr(sWS)}, s{sFADDR} offen {('sc1', 'sc0 sc1')[self.flagop == 1]}"
        for k in range(NP - 1):
            a(ld(k) + f"\ns_sleep {self.nap}")
        a("L_red_again:")
        for k in range(NP):
            a(f"""{ld((k + NP - 1) % NP)}
            s_waitcnt vmcnt({NP - 1})
            v_cmp_eq_u32 vcc, 1, v{16+k}
            s_and_b32 s{sT2}, vcc_lo, 0xff
            s_sub_u32 s{sSPIN}, s{sSPIN}, 1
            s_cselect_b32 s{sT2}, 0xff, s{sT2}
            v_mov_b32 v10, s{sT2}
            ds_write_b32 v9, v10
            s_cmp_eq_u32 s{sT2}, 0xff
            s_cbranch_scc1 L_red_end
            s_sleep {self.nap}""")
        a(f"""s_branch L_red_again
        L_red_work:""")
        srd(a, sX, sOUTP, SIZE['out'])
        a(f"""s_lshl_b32 s{sN}, s{sTY}, 3
        s_add_u32 s{sN}, s{sN}, s{sHG}
        s_sub_u32 s{sT0}, s{sLW}, 1
        s_lshl_b32 s{sT0}, s{sT0}, 4
        s_add_u32 s{sN}, s{sN}, s{sT0}
        s_mul_i32 s{sN}, s{sN}, 3
        s_lshl_b32 s{sT0}, s{sSTAGE}, 4
        s_add_u32 s{sT0}, s{sT0}, s{sB}
        s_mul_i32 s{sM}, s{sT0}, {8*PART}
        s_mul_i32 s{sOBASE}, s{sB}, {64*2304}
        s_mul_i32 s{sT0}, s{sSTAGE}, 1152
        s_add_u32 s{sOBASE}, s{sOBASE}, s{sT0}""")
        a(f"""v_bfe_u32 v10, v0, 2, 2
        v_and_b32 v11, 3, v0
        v_bfe_u32 v12, v0, 4, 1""")
        for k in range(2):
            a(f"v_lshrrev_b32 v1, 5, v0\nv_add_u32 v1, s{sN}, v1" if k == 0 else f"s_add_u32 s{sN}, s{sN}, 2\nv_mov_b32 v1, s{sN}")
            a(f"""v_lshrrev_b32 v13, 4, v1
            v_bfe_u32 v16, v1, 3, 1
            v_and_b32 v1, 7, v1
            v_lshl_add_u32 v1, v1, 1, v12
            v_lshl_add_u32 v17, v13, 2, v10
            v_lshl_add_u32 v17, v17, 1, v16
            v_lshl_add_u32 v18, v1, 2, v11
            v_lshlrev_b32 v18, 4, v18
            v_lshl_add_u32 v{vL+k}, v17, 10, v18
            v_lshl_add_u32 v1, v16, 5, v1
            v_mul_u32_u24 v1, 2304, v1
            v_lshl_add_u32 v1, v13, 7, v1
            v_lshl_add_u32 v1, v10, 5, v1
            v_lshl_add_u32 v{vO0+k}, v11, 3, v1""")
            if self.wide:
                a(f"v_and_b32 v1, 1, v0\nv_mul_u32_u24 v1, {16*2304 - 8}, v1\nv_add_u32 v{vO0+k}, v{vO0+k}, v1")
        if self.wide:
            a("v_and_b32 v1, 1, v0\nv_cmp_eq_u32 vcc, 1, v1")
        for i in range(16):
            a(f"v_mov_b32 v{vSum+i}, 0")
        if self.dot:
            a("v_mov_b32 v16, 0x3f80\nv_mov_b32 v17, 0x3f800000")
        a(f"""s_mov_b32 s{sN}, 0
        s_mov_b32 s{sOG}, 0
        L_red_look:
        ds_read_b32 v5, v9
        s_waitcnt lgkmcnt(0)
        v_readfirstlane_b32 s{sT2}, v5
        s_sub_u32 s{sSPIN}, s{sSPIN}, 1
        s_cselect_b32 s{sT2}, 0xff, s{sT2}
        s_andn2_b32 s{sT2}, s{sT2}, s{sN}
        s_cbranch_scc1 L_red_new
        s_getreg_b32 s{sT0}, hwreg(HW_REG_IB_STS)
        s_and_b32 s{sT0}, s{sT0}, 0xc000000f
        s_cselect_b32 s{sT0}, 0, s{sOG}
        s_cmp_lg_u32 s{sT0}, 0
        s_cbranch_scc1 L_red_add
        s_sleep 1
        s_branch L_red_look
        L_red_new:
        s_or_b32 s{sN}, s{sN}, s{sT2}
        s_or_b32 s{sOG}, s{sOG}, s{sT2}""")
        for h in range(8):
            a(f"""s_bitcmp1_b32 s{sT2}, {h}
            s_cbranch_scc0 L_red_h{h}
            s_add_u32 s{sT0}, s{sM}, {h*PART}
            buffer_load_dwordx4 {vr(vD+4*h,4)}, v{vL}, {sr(sWS)}, s{sT0} offen {('sc1', 'sc1', 'sc0 sc1')[self.partop]}
            s_mov_b32 exec_hi, 0
            buffer_load_dwordx4 {vr(vD+32+4*h,4)}, v{vL+1}, {sr(sWS)}, s{sT0} offen {('sc1', 'sc1', 'sc0 sc1')[self.partop]}
            s_mov_b32 exec_hi, -1
            L_red_h{h}:""")
        self.stamp(14)
        if not self.blk:
            a(f"s_cmp_lg_u32 s{sN}, 0xff\ns_cbranch_scc1 L_red_look")
        a("L_red_add:\ns_waitcnt vmcnt(0)")
        for h in range(8):
            a(f"s_bitcmp1_b32 s{sOG}, {h}\ns_cbranch_scc0 L_red_a{h}")
            for k in range(2):
                for i in range(4):
                    r, t = vD + 32*k + 4*h + i, 10 + 2*(i & 1)
                    if self.dot:
                        c = vSum + 8*k + 2*i
                        a(f"v_dot2_f32_bf16 v{c}, v{r}, v16, v{c}\nv_dot2_f32_bf16 v{c+1}, v{r}, v17, v{c+1}")
                        continue
                    a(f"""v_lshlrev_b32 v{t}, 16, v{r}
                    v_and_b32 v{t+1}, 0xffff0000, v{r}
                    v_pk_add_f32 {vr(vSum+8*k+2*i, 2)}, {vr(vSum+8*k+2*i, 2)}, {vr(t, 2)}""")
            a(f"L_red_a{h}:")
        a(f"""s_mov_b32 s{sOG}, 0
        s_cmp_lg_u32 s{sN}, 0xff
        s_cbranch_scc1 L_red_look
        s_add_u32 s{sT0}, s{sOBASE}, {16*2304}""")
        if self.dot:
            a("s_nop 1")
        for k in range(2):
            if k:
                a("s_mov_b32 exec_hi, 0")
            for i in range(4):
                a(f"v_cvt_pk_bf16_f32 v{vSum+16+4*k+i}, v{vSum+8*k+2*i}, v{vSum+8*k+2*i+1}")
            c = vSum + 16 + 4*k
            if self.wide:
                a(f"""v_cndmask_b32 v10, v{c+2}, v{c}, vcc
                v_cndmask_b32 v11, v{c+3}, v{c+1}, vcc
                s_nop 1
                v_mov_b32_dpp v12, v10 quad_perm:[1,0,3,2] row_mask:0xf bank_mask:0xf
                v_mov_b32_dpp v13, v11 quad_perm:[1,0,3,2] row_mask:0xf bank_mask:0xf
                v_cndmask_b32 v{c}, v{c}, v12, vcc
                v_cndmask_b32 v{c+1}, v{c+1}, v13, vcc
                v_cndmask_b32 v{c+2}, v12, v{c+2}, vcc
                v_cndmask_b32 v{c+3}, v13, v{c+3}, vcc
                buffer_store_dwordx4 {vr(c,4)}, v{vO0+k}, {sr(sX)}, s{sOBASE} offen{of}""")
            else:
                a(f"""buffer_store_dwordx2 {vr(c,2)}, v{vO0+k}, {sr(sX)}, s{sOBASE} offen{of}
                buffer_store_dwordx2 {vr(c+2,2)}, v{vO0+k}, {sr(sX)}, s{sT0} offen{of}""")
        a("L_red_end:")
        if self.stamps:
            a("s_mov_b64 exec, -1\ns_waitcnt vmcnt(0)")
            self.stamp(12)
            self.stamp_dump(0)
            self.stamp_dump(1)
            if self.hold:
                a(f"""s_cmp_lg_u32 s2, {self.hwg}
                s_cbranch_scc1 L_end
                s_cmp_lg_u32 s{sWAVE}, 4
                s_cbranch_scc1 L_end
                v_readlane_b32 s{sT0}, v255, 0
                v_readlane_b32 s{sT1}, v255, {self.hi}
                v_readlane_b32 s{sT2}, v255, {self.hj}
                s_sub_u32 s{sT2}, s{sT2}, s{sT1}
                s_add_u32 s{sT2}, s{sT2}, {self.hold*100}
                s_mov_b32 s{sSPIN}, {SPIN}
                L_hold:
                s_memrealtime s[98:99]
                s_waitcnt lgkmcnt(0)
                s_sub_u32 s98, s98, s{sT0}
                s_cmp_ge_u32 s98, s{sT2}
                s_cbranch_scc1 L_end
                s_sub_u32 s{sSPIN}, s{sSPIN}, 1
                s_cbranch_scc0 L_hold""")
        a("s_endpgm")

    def at_rare(self):
        a = self.a
        t, u, al = vT, vP, vP + 2
        a(f"""L_rescale:
        v_mov_b32 v{u}, v{t}
        v_mov_b32 v{u+1}, v{t+1}
        s_nop 1
        v_permlane32_swap_b32 v{t}, v{u}
        v_permlane32_swap_b32 v{t+1}, v{u+1}
        v_max_f32 v{t}, v{t}, v{u}
        v_max_f32 v{t+1}, v{t+1}, v{u+1}
        v_mov_b32 v{u}, v{t}
        v_mov_b32 v{u+1}, v{t+1}
        s_nop 1
        v_permlane16_swap_b32 v{t}, v{u}
        v_permlane16_swap_b32 v{t+1}, v{u+1}
        v_max3_f32 v{t}, v{t}, v{u}, s{sFLOOR}
        v_max3_f32 v{t+1}, v{t+1}, v{u+1}, s{sFLOOR}
        v_max_f32 v{al}, 0, v{t}
        v_max_f32 v{al+2}, 0, v{t+1}
        v_exp_f32 v{al}, -v{al}
        v_exp_f32 v{al+2}, -v{al+2}
        s_mov_b32 s{sTH}, 0x41000000
        s_mov_b32 s{sFLOOR}, 0
        v_mul_f32 v{al}, s{sFIRST}, v{al}
        v_mul_f32 v{al+2}, s{sFIRST}, v{al+2}
        s_mov_b32 s{sFIRST}, 1.0""")
        for qt in range(2):
            for i in range(8):
                a(f"v_sub_f32 v{vS+8*qt+i}, v{vS+8*qt+i}, v{t+qt}")
            for i in range(4):
                a(f"v_sub_f32 v{vNM+4*qt+i}, v{vNM+4*qt+i}, v{t+qt}")
            a(f"v_pk_mul_f32 {vr(vL0+2*qt, 2)}, {vr(vL0+2*qt, 2)}, {vr(al+2*qt,2)} op_sel_hi:[1,0]")
            for p in range(4):
                for i in range(0, 8, 2):
                    c = vO + (p*2 + qt)*8 + i
                    a(f"v_pk_mul_f32 {vr(c,2)}, {vr(c,2)}, {vr(al+2*qt,2)} op_sel_hi:[1,0]")
        a("s_branch L_tile_exp")

    def main(self):
        a = self.a
        self.prologue()
        a(f"s_cmp_ge_u32 s{sWAVE}, 4\ns_cbranch_scc1 L_pj")
        if self.inl:
            self.at_first()
            self.subs()
        else:
            a("s_branch L_at")
            self.subs()
            self.at_first()
        self.pj_first()
        self.pj_setup()
        self.at_rest()
        self.reduce()
        self.at_rare()
        self.pj_rest()
        a("L_end:\ns_endpgm")
        return a.text()


HEADER = open("cdna_kernels/" + NAME + ".s.ref").read().split("; Override launch geometry")[0]


ABOUT = """; Fused two-branch attention block, one launch, one 512-thread workgroup per CU.
"""


def build(**kw):
    return HEADER + ABOUT + single(Gen(**kw).main(), 256, 512, LDS_BYTES, vgpr=256, accum=256, sgpr=102)


if __name__ == "__main__":
    kw = {}
    for x in sys.argv[2:]:
        k, v = x.split("=")
        kw[k] = int(v, 0)
    open(sys.argv[1], "w").write(build(**kw))
```

```python
import sys, struct
sys.path.insert(0, "tools")
from asmlib import *

KERNEL = NAME + "_kernel"
R0, R1, R2, WR, XR = 0, 32768, 65536, 98304, 131072
SYNC = WR + 24576
LDS_BYTES = 163840
PART = 73728
FLAG_OFF = 32 << 20
PROBE_OFF = 241 << 20
QSCALE = 1.4426950408889634 / 128 ** 0.5
SPIN = 1 << 16


def fbits(x):
    return "0x%08x" % struct.unpack("<I", struct.pack("<f", x))[0]


sWAVE, sLW, sHG, sTY, sB = 3, 4, 5, 6, 7
sK, sV, sX, sWQ, sWO, sWS = 8, 12, 16, 20, 24, 28
sKVOFF, sKVM0, sKVN = 32, 33, 34
sWCOL, sWCH, sWN = 35, 36, 37
sXBASE, sXCH, sXN = 38, 39, 40
sOCI, sOBASE, sROT = 41, 42, 43
sN, sM = 44, 45
sT0, sT1, sT2 = 46, 47, 48
sBUFSZ, sRINGEND, sWBUF, sOLW, sOBUF, sTHR, sKVCNT = 49, 50, 51, 52, 53, 54, 55
sTH, sFLOOR, sRPOS, sSTAGE = 56, 57, 58, 59
sRB = 60
sRET = 64
sFIRST, sQBUF, sSLOT = 66, 67, 68
sC8K = 67
sWB = 69
sBV, sPT = 72, 76
sOUTP, sDBGP = 80, 82
sTN, sLAST, sPADDR, sTBASE = 84, 85, 86, 87
sFADDR, sSPIN, sPROG, sOG = 88, 89, 90, 91
sBXP, sBWP = 92, 94

vKVO, vVVO, vXVO, vOVO, vWVO = 8, 12, 14, 16, 22
vWA, vWA0, vQW = 24, 28, 29
vOA0, vOA, vST = 24, 27, 30
vXA0, vXA, vZ = 31, 33, 35
vFA, vFB, vACC = 36, 72, 104
vPR, vDUM = 4, 5
vKA, vVA, vH, vT, vL0 = 24, 28, 38, 40, 76
vP, vS, vNM, vQ, vKF, vVF, vO = 44, 52, 68, 84, 116, 148, 180


def vr(i, n):
    return f"v[{i}:{i+n-1}]"


def sr(i, n=4):
    return f"s[{i}:{i+n-1}]"


class Lg:
    def __init__(self, a):
        self.a, self.q = a, []
    def issue(self, text, tag):
        if len(self.q) == 15:
            self.wait(self.q[0])
        self.a(text)
        self.q.append(tag)
    def wait(self, *tags):
        idx = max((i for i, t in enumerate(self.q) if t in tags), default=-1)
        if idx < 0:
            return
        self.a(f"s_waitcnt lgkmcnt({len(self.q) - idx - 1})")
        self.q = self.q[idx + 1:]
    def drain(self):
        self.a("s_waitcnt lgkmcnt(0)")
        self.q = []


DEFAULTS = dict(stamps=0, probes=0, vmprobe=2, thr=5, prefill=8, store0=4, store1=8, ipf=1, touch=5, xtouch=1,
                prio=7, gate=0, thrmask=0xffffffff, help=0, lead0=3, lead1=6, kvnt=1, pace=99, dbgst=0, ahead=-1, from_=0, bthr=63, polls=1, nap=2, sdw=1, alate=0, wqat=4, diag=0, hrot=0, early_n=0, ahead0=0, hold=0, hi=0, hj=0, hwg=8, xplan=3, xfrom=1, aidle=0, adist=4, outf=1, stp=3, gmajor=0, stp0=12, pkl=1, flagop=0, partop=0, defer=0, wpol=0, blk=0, dot=0, wmap=0, wide=1, inl=1, lite=0, prefa=8, front=100, hyb=1, thr2=0)


class Gen:
    def __init__(self, **kw):
        self.a = Asm()
        self.o = dict(DEFAULTS)
        assert set(kw) <= set(DEFAULTS), kw
        self.o.update(kw)
        for k, v in self.o.items():
            setattr(self, k, v)
        self.kvflag = ("", " nt", " sc1 nt", " sc0 sc1 nt", " sc0 nt")[self.kvnt]
        self.wflag = ("", " sc1", " sc0 sc1", " sc0")[self.wpol]
        self.follow = (self.help and self.ahead < 0) or self.pace < 99
        self.NA = 4 + bool(self.help) + bool(self.follow)
        self.uid = 0
        assert not (self.gate or self.follow)
        assert self.pkl or not self.defer
        assert not (self.help and self.ahead < 0 and self.touch)

    def lab(self, s):
        self.uid += 1
        return f"L_{s}{self.uid}"

    def stamp(self, k):
        if self.stamps:
            self.a(f"s_memrealtime s[98:99]\ns_memtime s[100:101]\ns_waitcnt lgkmcnt(0)\nv_writelane_b32 v255, s98, {k}\nv_writelane_b32 v255, s100, {16+k}")

    def stamp_dump(self, role):
        if self.stamps:
            l = self.lab("sd")
            self.a(f"""s_cmp_lg_u32 s{sWAVE}, {4*role + self.sdw}
            s_cbranch_scc1 {l}
            s_lshl_b32 s{sT0}, s2, 8
            s_add_u32 s{sT0}, s{sT0}, {STAMP_OFF + 128*role}
            v_lshlrev_b32 v1, 2, v0
            s_mov_b64 exec, 0xffffffff
            buffer_store_dword v255, v1, {sr(sWS)}, s{sT0} offen
            s_mov_b64 exec, -1""")
            if self.lite and role:
                self.a(f"s_add_u32 s{sT0}, s{sT0}, {(1 << 20) - 128}\nbuffer_store_dword v254, v1, {sr(sWS)}, s{sT0} offen")
            if self.dbgst:
                srd(self.a, sPT, sDBGP, 256)
                self.a(f"""s_cmp_lg_u32 s{sTY}, {self.dbgst - 1}
                s_cbranch_scc1 {l}
                v_not_b32 v11, v255
                v_cmp_eq_u32 vcc, 0, v0
                s_nop 1
                v_cndmask_b32 v11, v255, v11, vcc
                s_mov_b64 exec, {0x3ff if role else 0x1c00}
                buffer_atomic_umax v11, v1, {sr(sPT)}, 0 offen sc1
                s_mov_b64 exec, -1""")
            self.a(f"{l}:")

    def probe(self, k, first=False):
        if self.lite and first:
            self.a(f"s_add_u32 s{sSLOT}, s{sSLOT}, 1\ns_memrealtime s[98:99]\ns_waitcnt lgkmcnt(0)\ns_mov_b32 m0, s{sSLOT}\nv_writelane_b32 v254, s98, m0")
        if self.probes:
            if first:
                self.a(f"s_add_u32 s{sSLOT}, s{sSLOT}, 1")
            self.a(f"s_memtime s[98:99]\ns_getreg_b32 s100, hwreg(HW_REG_IB_STS)\ns_waitcnt lgkmcnt(0)\ns_mov_b32 m0, s{sSLOT}\nv_writelane_b32 v{248+k}, s98, m0")
            if k == self.vmprobe:
                self.a("v_writelane_b32 v251, s100, m0")

    def early(self, lane):
        if self.probes:
            self.a(f"s_memtime s[98:99]\ns_waitcnt lgkmcnt(0)\nv_writelane_b32 v255, s98, {lane}")

    def probe_dump(self):
        if self.probes:
            l = self.lab("pd")
            self.a(f"""s_cmp_lg_u32 s{sLW}, 0
            s_cbranch_scc1 {l}
            s_lshl_b32 s{sT0}, s2, 1
            s_lshr_b32 s{sT1}, s{sWAVE}, 2
            s_add_u32 s{sT0}, s{sT0}, s{sT1}
            s_lshl_b32 s{sT0}, s{sT0}, 11
            s_add_u32 s{sT0}, s{sT0}, {PROBE_OFF}
            v_lshlrev_b32 v1, 2, v0""")
            for k in range(8):
                self.a(f"buffer_store_dword v{248+k}, v1, {sr(sWS)}, s{sT0} offen offset:{256*k}")
            self.a(f"{l}:")

    def prio_set(self, bit, off=None):
        if self.prio >> bit & 1:
            self.a("s_setprio 1")
        elif off is not None and self.prio >> off & 1:
            self.a("s_setprio 0")

    def call(self, name):
        self.a(f"s_call_b64 {sr(sRET, 2)}, {name}")

    def ret(self):
        self.a(f"s_setpc_b64 {sr(sRET, 2)}")

    def spread(self, base, fill, start=0):
        n, m = (len(base) - start) * self.front // 100, len(fill)
        j = 0
        for k, t in enumerate(base):
            while k >= start and j < m and j * n <= (k - start) * m:
                self.a(fill[j]); j += 1
            if callable(t): t()
            else: self.a(t)
        for t in fill[j:]:
            self.a(t)

    def other_srd(self, dst, karg_off, size):
        self.a(f"""s_load_dwordx2 {sr(dst, 2)}, s[0:1], {karg_off}
        s_waitcnt lgkmcnt(0)
        s_and_b32 s{dst+1}, s{dst+1}, 0xffff
        s_mov_b32 s{dst+2}, {size}
        s_mov_b32 s{dst+3}, 0x20000""")

    def spin(self, load, vdst, done):
        l, e = self.lab("sp"), self.lab("se")
        self.a(f"""s_mov_b32 s{sSPIN}, {SPIN}
        {l}:
        {load}
        s_waitcnt vmcnt(0) lgkmcnt(0)
        {done}
        s_cbranch_scc1 {e}
        s_sleep 1
        s_sub_u32 s{sSPIN}, s{sSPIN}, 1
        s_cmp_lg_u32 s{sSPIN}, 0
        s_cbranch_scc1 {l}
        {e}:""")

    def wait_init(self, vz, vd):
        srd(self.a, sPT, sDBGP, 256)
        self.a(f"s_lshl_b32 s{sT2}, s{sB}, 2")
        self.spin(f"buffer_load_dword v{vd}, v{vz}, {sr(sPT)}, s{sT2} offen offset:{128*bool(self.dbgst)} sc1", vd,
                  f"v_readfirstlane_b32 s{sT1}, v{vd}\ns_cmp_ge_u32 s{sT1}, 16")

    def decode(self):
        if self.wmap == 0:
            return f"s_lshr_b32 s{sTY}, s2, 3\ns_and_b32 s{sTY}, s{sTY}, 1\ns_lshr_b32 s{sB}, s2, 4"
        return f"s_lshr_b32 s{sTY}, s2, 7\ns_xor_b32 s{sTY}, s{sTY}, {self.wmap - 1}\ns_lshr_b32 s{sB}, s2, 3\ns_and_b32 s{sB}, s{sB}, 15"

    def prologue(self):
        a = self.a
        a("s_cmp_ge_u32 s2, 256\ns_cbranch_scc1 L_end")
        if self.probes or self.stamps:
            a("s_memtime s[96:97]" if self.probes else "s_memrealtime s[96:97]")
        a(f"""s_load_dwordx2 s[68:69], s[0:1], 96
        s_load_dwordx4 {sr(sOUTP)}, s[0:1], 80
        s_load_dwordx2 {sr(sBXP, 2)}, s[0:1], 40
        s_load_dwordx2 {sr(sBWP, 2)}, s[0:1], 64
        s_and_b32 s{sHG}, s2, 7
        {self.decode()}
        s_mul_i32 s{sT0}, s{sTY}, 40
        s_add_u32 s0, s0, s{sT0}
        s_addc_u32 s1, s1, 0
        s_load_dwordx8 s[56:63], s[0:1], 0
        s_load_dwordx2 s[70:71], s[0:1], 32""")
        if self.ipf:
            a(f"""s_getpc_b64 {sr(sT0, 2)}
            L_pc:
            s_sub_u32 s{sT0}, s{sT0}, L_pc-{KERNEL}
            s_subb_u32 s{sT0+1}, s{sT0+1}, 0
            s_and_b32 s{sT2}, s2, 0xf8
            v_lshrrev_b32 v1, 6, v0
            v_add_lshl_u32 v6, v1, s{sT2}, 7
            v_min_u32 v6, L_end-{KERNEL}, v6
            v_mov_b32 v7, s{sT0+1}
            v_add_co_u32 v6, vcc, s{sT0}, v6
            s_nop 1
            v_addc_co_u32 v7, vcc, 0, v7, vcc
            global_load_dword v{vFA+32}, v[6:7], off""")
        a(f"""v_lshrrev_b32 v1, 6, v0
        v_and_b32 v0, 63, v0
        v_readfirstlane_b32 s{sWAVE}, v1
        v_lshrrev_b32 v2, 4, v0
        v_and_b32 v3, 15, v0
        s_and_b32 s{sLW}, s{sWAVE}, 3
        v_lshrrev_b32 v4, 3, v0
        v_and_b32 v5, 7, v0
        v_mul_u32_u24 v7, 1152, v4""")
        for n in range(2):
            a(f"""v_add_u32 v6, {4*n}, v2
            v_xor_b32 v6, v6, v5
            v_lshl_add_u32 v6, v6, 4, v7
            v_add_u32 v{vXVO+n}, {n*(8*1152-1024)}, v6""")
        a(f"""v_and_b32 v1, 1, v2
        v_lshlrev_b32 v1, 1, v1
        v_xor_b32 v1, v1, v5
        v_lshlrev_b32 v1, 4, v1
        v_lshl_add_u32 v{vWVO}, v4, 13, v1
        v_xor_b32 v{vWVO+1}, 64, v{vWVO}
        s_lshl_b32 s{sWCOL}, s{sHG}, 10
        s_lshl_b32 s{sT0}, s{sLW}, 7
        s_add_u32 s{sWCOL}, s{sWCOL}, s{sT0}
        s_mov_b32 s{sWN}, 0
        s_mul_i32 s{sT0}, s{sHG}, {self.hrot}
        s_add_u32 s{sT0}, s{sT0}, s{sB}
        s_mul_i32 s{sT1}, s{sT0}, 57
        s_lshr_b32 s{sT1}, s{sT1}, 9
        s_mul_i32 s{sT1}, s{sT1}, 9
        s_sub_u32 s{sXCH}, s{sT0}, s{sT1}
        s_mov_b32 s{sWCH}, s{sXCH}
        s_mul_i32 s{sXBASE}, s{sB}, 73728
        s_mul_i32 s{sT0}, s{sLW}, 18432
        s_add_u32 s{sXBASE}, s{sXBASE}, s{sT0}
        s_lshl_b32 s{sT0}, s{sB}, 3
        s_add_u32 s{sT0}, s{sT0}, s{sHG}
        s_lshl_b32 s{sPADDR}, s{sT0}, 7
        s_add_u32 s{sPADDR}, s{sPADDR}, {FLAG_OFF + 32768}
        s_lshl_b32 s{sFADDR}, s{sB}, 10
        s_add_u32 s{sFADDR}, s{sFADDR}, {FLAG_OFF}
        s_waitcnt lgkmcnt(0)""")
        srd(a, sX, 56, SIZE['A_x'])
        srd(a, sWQ, 62, SIZE['A_wq'])
        if self.probes or self.stamps:
            self.late_srds()
        if self.probes or self.stamps:
            a(f"s_mov_b32 s{sSLOT}, -1")
            for k in range(8):
                a(f"v_mov_b32 v{248+k}, 0")
            a("v_writelane_b32 v255, s96, 0")
            self.early(1)

    def late_srds(self):
        a = self.a
        a(f"""s_mov_b32 s{sK}, s58
        s_and_b32 s{sK+1}, s59, 0xffff
        s_lshl_b32 s{sK+2}, {SIZE['A_k']}, s{sTY}
        s_mov_b32 s{sK+3}, 0x20000
        s_mov_b32 s{sV}, s60
        s_and_b32 s{sV+1}, s61, 0xffff
        s_mov_b32 s{sV+2}, s{sK+2}
        s_mov_b32 s{sV+3}, 0x20000""")
        srd(a, sWO, 70, SIZE['A_wo'])
        srd(a, sWS, 68, SIZE['ws'])
        srd(a, sBV, 60, 0)

    def late_common(self):
        a = self.a
        a(f"""s_lshl_b32 s{sBUFSZ}, 16384, s{sTY}
        s_lshl_b32 s{sT0}, 2048, s{sTY}
        s_mul_i32 s{sKVM0}, s{sT0}, s{sLW}
        s_add_u32 s{sRINGEND}, s{sKVM0}, 98304
        s_lshl_b32 s{sT0}, s{sB}, 3
        s_add_u32 s{sT0}, s{sT0}, s{sHG}
        s_lshl_b32 s{sTBASE}, s{sT0}, 19
        s_add_u32 s{sT1}, s{sTY}, 18
        s_lshl_b32 s{sKVOFF}, s{sT0}, s{sT1}
        s_lshr_b32 s{sT0}, s{sLW}, 1
        s_lshl_b32 s{sT0}, s{sT0}, 17
        s_and_b32 s{sT1}, s{sLW}, 1
        s_lshl_b32 s{sT2}, s{sT1}, 12
        s_add_u32 s{sT0}, s{sT0}, s{sT2}
        s_add_u32 s{sTBASE}, s{sTBASE}, s{sT0}
        s_cmp_eq_u32 s{sTY}, 1
        s_cselect_b32 s{sT0}, s{sT0}, s{sKVM0}
        s_add_u32 s{sKVOFF}, s{sKVOFF}, s{sT0}
        s_lshl_b32 s{sT1}, s{sT1}, 3
        s_cmp_eq_u32 s{sTY}, 1
        s_cselect_b32 s{sT1}, 0, s{sT1}
        s_mov_b32 s{sKVN}, 0
        v_lshlrev_b32 v6, 8, v2
        v_add_u32 v7, s{sT1}, v2""")
        for n in range(4):
            a(f"""v_add_u32 v1, {4*n}, v7
            v_xor_b32 v1, v1, v3
            v_and_b32 v1, 15, v1
            v_lshl_add_u32 v{vKVO+n}, v1, 4, v6""")
        a(f"""v_lshlrev_b32 v1, 1, v2
        v_xor_b32 v1, v1, v3
        v_lshl_add_u32 v{vVVO}, v1, 4, v6
        v_xor_b32 v{vVVO+1}, 128, v{vVVO}""")

    def late_wo(self):
        a = self.a
        for n in range(6):
            a(f"""v_add_u32 v1, {64*n}, v0
            v_mul_u32_u24 v6, 2731, v1
            v_lshrrev_b32 v6, 16, v6
            v_mul_u32_u24 v7, 24, v6
            v_sub_u32 v1, v1, v7
            v_and_b32 v7, 6, v6
            v_xor_b32 v1, v1, v7
            v_lshlrev_b32 v1, 4, v1
            v_mul_u32_u24 v6, 1152, v6
            v_add_u32 v1, v1, v6
            v_subrev_u32 v{vOVO+n}, {1024*(n&3)}, v1""")
        a(f"""s_lshl_b32 s{sT0}, s{sHG}, 9
        s_lshl_b32 s{sT1}, s{sLW}, 4
        s_add_u32 s{sT0}, s{sT0}, s{sT1}
        s_mul_i32 s{sOBASE}, s{sT0}, 1152
        s_and_b32 s{sROT}, s{sB}, 3
        s_mul_i32 s{sOLW}, s{sLW}, 6144
        s_cmp_eq_u32 s{sTY}, 1
        s_mov_b32 s{sRB}, {WR}
        s_mov_b32 s{sRB+1}, {R2}
        s_cselect_b32 s{sRB+2}, {R0}, {R1}
        s_cselect_b32 s{sRB+3}, {R1}, {R0}""")

    def x_adv(self):
        self.a(f"""s_add_u32 s{sXN}, s{sXN}, 1
        s_add_u32 s{sXCH}, s{sXCH}, 1
        s_cmp_eq_u32 s{sXCH}, 9
        s_cselect_b32 s{sXCH}, 0, s{sXCH}""")

    def kv_items_b(self):
        f = self.kvflag
        items = []
        for n in range(8):
            t = ""
            if n == 0:
                t += f"s_mov_b32 m0, s{sKVM0}\ns_cmp_eq_u32 s{sKVN}, 15\n"
            if n == 4:
                t += f"s_add_u32 m0, s{sKVM0}, 16384\ns_add_u32 s{sKVM0}, s{sKVM0}, 32768\n"
            if self.bthr < 63:
                t += f"s_waitcnt vmcnt({self.bthr - 1})\n"
            if n < 4:
                t += f"buffer_load_dwordx4 v{vKVO+n}, {sr(sK)}, s{sKVOFF} offen offset:{1024*n}{f} lds\n"
            else:
                t += f"buffer_load_dwordx4 v{vVVO+(n&1)}, {sr(sV)}, s{sKVOFF} offen offset:{1024*(n-4)}{f} lds\n"
            if n == 0:
                t += f"s_cselect_b32 s{sKVCNT}, 131072, 0\ns_add_u32 s{sKVCNT}, s{sKVCNT}, 8192\ns_add_u32 s{sKVN}, s{sKVN}, 1\n"
            if n == 7:
                t += f"""s_add_u32 s{sKVOFF}, s{sKVOFF}, s{sKVCNT}
                s_cmp_ge_u32 s{sKVM0}, s{sRINGEND}
                s_cselect_b32 s{sKVCNT}, 98304, 0
                s_sub_u32 s{sKVM0}, s{sKVM0}, s{sKVCNT}"""
            items.append(t)
        return items

    def last_seq(self, c):
        if self.hyb and c >= 6:
            return 2 + (c - 6) % 2, (c - 6) // 2
        return c // 3, c % 3

    def wo_addr(self, buf):
        return f"""s_add_u32 s{sT0}, s{sOCI}, s{sROT}
                s_and_b32 s{sT0}, s{sT0}, 3
                s_lshr_b32 s{sT1}, s{sOCI}, 2
                s_lshl_b32 s{sT1}, s{sT1}, 2
                s_add_u32 s{sT0}, s{sT0}, s{sT1}
                s_mul_i32 s{sT0}, s{sT0}, 73728
                s_add_u32 s{sT0}, s{sT0}, s{sOG}
                s_add_u32 s{sT1}, s{buf}, s{sOLW}
                s_mov_b32 m0, s{sT1}
                s_add_u32 s{sT0}, s{sT0}, s{sOBASE}"""

    def wo_adv(self):
        if self.gmajor:
            l, e = self.lab("wa"), self.lab("we")
            return f"""s_cmp_ge_u32 s{sOCI}, 4
                s_cbranch_scc1 {l}
                s_add_u32 s{sOG}, s{sOG}, 384
                s_cmp_eq_u32 s{sOG}, 1152
                s_cselect_b32 s{sOG}, 0, s{sOG}
                s_addc_u32 s{sOCI}, s{sOCI}, 0
                s_branch {e}
                {l}:
                s_add_u32 s{sOCI}, s{sOCI}, 1
                s_cmp_eq_u32 s{sOCI}, 8
                s_cselect_b32 s{sOCI}, 4, s{sOCI}
                s_cselect_b32 s{sT0}, 384, 0
                s_add_u32 s{sOG}, s{sOG}, s{sT0}
                {e}:"""
        return f"""s_add_u32 s{sOG}, s{sOG}, 384
                s_cmp_eq_u32 s{sOG}, 1152
                s_cselect_b32 s{sOG}, 0, s{sOG}
                s_addc_u32 s{sOCI}, s{sOCI}, 0"""

    def wo_items(self):
        items = []
        for n in range(6):
            t = self.wo_addr(sOBUF) + "\n" if n == 0 else ""
            if n == 4:
                t += f"s_add_u32 m0, s{sT1}, 4096\ns_nop 0\n"
            t += f"buffer_load_dwordx4 v{vOVO+n}, {sr(sWO)}, s{sT0} offen offset:{1024*(n&3)}{self.wflag} lds\n"
            if n == 5:
                t += self.wo_adv()
            items.append(t)
        return items

    def w_items(self, back=False):
        items = []
        for n in range(8):
            if n == 0:
                t = f"s_lshl_b32 s{sT0}, s{sWCH}, 19\ns_add_u32 s{sT0}, s{sT0}, s{sWCOL}\ns_mov_b32 m0, s{sWBUF}\n"
                t += f"s_sub_u32 s{sWCH}, s{sWCH}, 1\ns_cselect_b32 s{sWCH}, 8, s{sWCH}\n" if back else f"s_add_u32 s{sWCH}, s{sWCH}, 1\n"
            elif n == 4:
                t = f"s_add_u32 m0, s{sWBUF}, 4096\ns_add_u32 s{sT0}, s{sT0}, {65536+3072}\n"
            else:
                t = f"s_add_u32 s{sT0}, s{sT0}, {65536-1024}\n"
            t += f"buffer_load_dwordx4 v{vWVO+(n&1)}, {sr(sWQ)}, s{sT0} offen offset:{1024*(n&3)}{self.wflag} lds\n"
            if n == 7 and not back:
                t += f"""s_cmp_eq_u32 s{sWCH}, 9
                s_cselect_b32 s{sWCH}, 0, s{sWCH}
                s_add_u32 s{sWN}, s{sWN}, 1
                s_cmp_eq_u32 s{sWN}, 9
                s_cselect_b32 s{sT1}, 512, 0
                s_add_u32 s{sWCOL}, s{sWCOL}, s{sT1}"""
            items.append(t)
        return items

    def x_body(self):
        a = self.a
        a(f"""s_lshl_b32 s{sT0}, s{sXCH}, 7
        s_add_u32 s{sT0}, s{sT0}, s{sXBASE}
        s_and_b32 s{sT1}, s{sXN}, 3
        s_lshl_b32 s{sT1}, s{sT1}, 2
        s_add_u32 s{sT1}, s{sT1}, s{sLW}
        s_lshl_b32 s{sT1}, s{sT1}, 11
        s_add_u32 m0, s{sT1}, {XR}""")
        self.x_adv()
        for n in range(2):
            a(f"buffer_load_dwordx4 v{vXVO+n}, {sr(sX)}, s{sT0} offen offset:{1024*n} lds")

    def subs(self):
        a = self.a
        f = self.kvflag
        a("F_x:")
        self.x_body()
        self.ret()
        a("F_w:")
        for t in self.w_items():
            a(t)
        self.ret()
        a(f"""F_kv:
        s_cmp_eq_u32 s{sTY}, 0
        s_cbranch_scc1 F_kv_a""")
        for t in self.kv_items_b():
            a(t)
        a(f"s_mov_b32 s{sKVCNT}, 8")
        self.ret()
        a(f"""F_kv_a:
        s_mov_b32 s{sKVCNT}, 0
        s_cmp_ge_u32 s{sKVN}, 32
        s_cbranch_scc1 F_kv_ret""")
        if self.follow:
            a(f"""s_cmp_eq_u32 s{sTHR}, 0
            s_cbranch_scc1 F_kv_go
            s_waitcnt vmcnt(0)
            v_readfirstlane_b32 s{sPROG}, v{vPR}""")
            if self.pace < 99:
                check = f"s_add_u32 s{sT1}, s{sPROG}, {self.pace}\ns_cmp_ge_u32 s{sT1}, s{sKVN}"
                a(check + "\ns_cbranch_scc1 F_kv_go")
                self.spin(f"buffer_load_dword v{vPR}, v{vZ}, {sr(sWS)}, s{sPADDR} offen sc1", vPR,
                          f"v_readfirstlane_b32 s{sPROG}, v{vPR}\n" + check)
            a("F_kv_go:")
        a(f"""s_mov_b32 m0, s{sKVM0}
        s_mov_b32 s{sKVCNT}, 4""")
        if self.thr < 63:
            a(f"s_lshr_b32 s{sT1}, {self.thrmask}, s{sKVN}\ns_and_b32 s{sT1}, s{sT1}, s{sTHR}")
        for n in range(4):
            if self.thr < 63:
                l = self.lab("thr")
                if self.thr2:
                    a(f"s_cmp_eq_u32 s{sTHR}, 0\ns_cbranch_scc1 {l}\ns_waitcnt vmcnt({self.thr2-1})")
                a(f"s_cmp_eq_u32 s{sT1}, 0\ns_cbranch_scc1 {l}\ns_waitcnt vmcnt({self.thr-1})\n{l}:")
            if n == 2:
                a(f"s_add_u32 m0, s{sKVM0}, 8192\ns_add_u32 s{sKVN}, s{sKVN}, 1")
            if n < 2:
                a(f"buffer_load_dwordx4 v{vKVO+n}, {sr(sK)}, s{sKVOFF} offen offset:{1024*n}{f} lds")
            else:
                a(f"buffer_load_dwordx4 v{vVVO+(n&1)}, {sr(sV)}, s{sKVOFF} offen offset:{1024*(n-2)}{f} lds")
        a(f"""s_add_u32 s{sKVOFF}, s{sKVOFF}, 8192
        s_add_u32 s{sKVM0}, s{sKVM0}, 16384
        s_cmp_ge_u32 s{sKVM0}, s{sRINGEND}
        s_cselect_b32 s{sT0}, 98304, 0
        s_sub_u32 s{sKVM0}, s{sKVM0}, s{sT0}""")
        if self.follow or self.help:
            a(f"s_cmp_eq_u32 s{sTHR}, 0\ns_cbranch_scc1 F_kv_ret")
        if self.help:
            if self.ahead < 0:
                a(f"""s_add_u32 s{sT1}, s{sPROG}, {self.lead0}
                s_max_u32 s{sTN}, s{sTN}, s{sT1}
                s_add_u32 s{sT1}, s{sPROG}, {self.lead1}
                s_min_u32 s{sT1}, s{sT1}, 31
                s_cmp_le_u32 s{sTN}, s{sT1}
                s_cselect_b32 s{sLAST}, s{sTN}, s{sLAST}
                s_addc_u32 s{sTN}, s{sTN}, 0""")
            else:
                a(f"""s_cmp_lt_u32 s{sKVN}, {self.early_n}
                s_cselect_b32 s{sLAST}, {self.ahead0}, {self.ahead}
                s_add_u32 s{sLAST}, s{sKVN}, s{sLAST}
                s_min_u32 s{sLAST}, s{sLAST}, 31
                s_max_u32 s{sLAST}, s{sLAST}, {self.from_}""")
            a(f"""s_and_b32 s{sT0}, s{sLAST}, 15
            s_lshl_b32 s{sT0}, s{sT0}, 13
            s_lshr_b32 s{sT1}, s{sLAST}, 4
            s_lshl_b32 s{sT1}, s{sT1}, 18
            s_add_u32 s{sT0}, s{sT0}, s{sT1}
            s_add_u32 s{sT0}, s{sT0}, s{sTBASE}
            v_lshlrev_b32 v1, 7, v0
            s_mov_b64 exec, {(1 << self.help) - 1}
            buffer_load_dword v{vDUM}, v1, {sr(sBV)}, s{sT0} offen offset:{4096 - 128*self.help}
            s_mov_b64 exec, -1""")
        if self.follow:
            a(f"buffer_load_dword v{vPR}, v{vZ}, {sr(sWS)}, s{sPADDR} offen sc1")
        a("F_kv_ret:")
        self.ret()
        a("F_wo:")
        for t in self.wo_items():
            a(t)
        self.ret()

    def kvwait(self):
        l = self.lab("kw")
        self.a(f"""s_waitcnt vmcnt(8)
        s_cmp_eq_u32 s{sKVCNT}, 8
        s_cbranch_scc1 {l}
        s_waitcnt vmcnt({self.NA})
        s_cmp_eq_u32 s{sKVCNT}, 4
        s_cbranch_scc1 {l}
        s_waitcnt vmcnt(0)
        {l}:""")

    def pretouch_wq(self, dst):
        if not self.touch:
            return
        a = self.a
        l = self.lab("pt")
        a(f"s_cmp_eq_u32 s{sTY}, 1\ns_cbranch_scc1 {l}")
        srd(a, sPT, sBWP, SIZE['B_wq'])
        a(f"""s_lshl_b32 s{sT0}, s{sB}, 2
        s_add_u32 s{sT0}, s{sT0}, s{sLW}
        s_mul_i32 s{sT0}, s{sT0}, {9*8192}
        s_lshl_b32 s{sT1}, s{sHG}, 10
        s_add_u32 s{sT0}, s{sT0}, s{sT1}
        v_lshrrev_b32 v1, 2, v0
        v_and_b32 v6, 3, v0
        v_lshlrev_b32 v6, 7, v6
        v_lshl_add_u32 v1, v1, 13, v6
        s_mov_b32 exec_hi, 15
        buffer_load_dword v{dst}, v1, {sr(sPT)}, s{sT0} offen offset:512""")
        if self.touch & 2:
            a(f"buffer_load_dword v{dst+1}, v1, {sr(sWQ)}, s{sT0} offen offset:512")
        a(f"s_mov_b64 exec, -1\n{l}:")

    def touch_own_last(self):
        l = self.lab("tl")
        self.a(f"""s_cmp_eq_u32 s{sTY}, 1
        s_cbranch_scc1 {l}
        s_lshl_b32 s{sT0}, s{sB}, 2
        s_add_u32 s{sT0}, s{sT0}, s{sLW}
        s_mul_i32 s{sT0}, s{sT0}, 4608
        s_mul_i32 s{sT1}, s{sHG}, 589824
        s_add_u32 s{sT0}, s{sT0}, s{sT1}
        s_add_u32 s{sT0}, s{sT0}, 294912
        v_lshlrev_b32 v1, 7, v0
        s_mov_b32 exec_hi, 15
        buffer_load_dword v{vDUM}, v1, {sr(sWO)}, s{sT0} offen
        s_mov_b64 exec, -1
        {l}:""")

    def pretouch_wo(self, first):
        if not self.touch:
            return
        a = self.a
        l = self.lab("pt")
        a(f"s_cmp_eq_u32 s{sTY}, 1\ns_cbranch_scc1 {l}")
        if first:
            self.other_srd(sPT, 72, SIZE['B_wo'])
            a(f"""s_lshl_b32 s{sT0}, s{sB}, 2
            s_add_u32 s{sT0}, s{sT0}, s{sLW}
            s_mul_i32 s{sT0}, s{sT0}, 9216
            s_mul_i32 s{sTN}, s{sHG}, 589824
            s_add_u32 s{sTN}, s{sTN}, s{sT0}""")
        else:
            a(f"v_lshlrev_b32 v1, 7, v0\ns_mov_b64 exec, 0xfff\nbuffer_load_dword v{vFA+32}, v1, {sr(sPT)}, s{sTN} offen")
            if self.touch & 2:
                a(f"buffer_load_dword v{vFA+33}, v1, {sr(sWO)}, s{sTN} offen")
            a(f"s_mov_b64 exec, -1\ns_add_u32 s{sTN}, s{sTN}, 1536")
        a(f"{l}:")

    def rdA(self, reg, areg, mt, off0, off1, tag):
        return [(f"ds_read_b64_tr_b16 {vr(reg + 2*j, 2)}, v{areg+mt} offset:{o}", tag + (j,)) for j, o in enumerate((off0, off1))]

    def rdB(self, ks, qt):
        return (f"ds_read_b128 {vr(vFB + (ks*4+qt)*4, 4)}, v{vXA+ks} offset:{2048*qt}", ("B", ks, qt))

    def mfma(self, acc, mt, qt, areg, ks):
        c = vr(acc + (mt*4+qt)*4, 4)
        return f"v_mfma_f32_16x16x32_bf16 {c}, {vr(areg, 4)}, {vr(vFB + (ks*4+qt)*4, 4)}, {c}"

    def qA(self, ks, mt):
        return vFA + (ks*4 + mt)*4

    def q_rdA(self, ks, mt):
        return self.rdA(self.qA(ks, mt), vWA, mt, 32*ks*128, (32*ks+4)*128, ("A", ks, mt))

    def q_finalize(self, acc, pending):
        a = self.a
        a(f"s_mov_b32 s{sT2}, {fbits(QSCALE)}")
        mul, cvt, put = [], [], []
        for mt in range(4):
            for qt in range(4):
                c = acc + (mt*4+qt)*4
                mul.append("\n".join(f"v_mul_f32 v{c+r}, s{sT2}, v{c+r}" for r in range(4)))
                cvt.append(f"v_cvt_pk_bf16_f32 v{c}, v{c}, v{c+1}\nv_cvt_pk_bf16_f32 v{c+1}, v{c+2}, v{c+3}")
                put.append((f"v_xor_b32 v1, {32*mt}, v{vQW}\n" if qt == 0 else "") + f"ds_write_b64 v1, {vr(c,2)} offset:{2048*qt}")
        work = ["\n".join(([put[k-2]] if 2 <= k < 18 else []) + ([cvt[k-1]] if 1 <= k < 17 else []) + ([mul[k]] if k < 16 else [])) for k in range(18)]
        lead = len(pending) - 16 + 5
        for k, t in enumerate(pending):
            a(t)
            if k + 1 == lead:
                a("s_nop 3")
            if k + 1 >= lead:
                a(work.pop(0))
        for t in work:
            a(t)
        a("s_waitcnt lgkmcnt(0)")

    ORDER4 = [(mt, qt) for mt in range(4) for qt in range(4)]
    ORDER3 = [(mt, qt) for mt in range(3) for qt in range(4)]
    NEXTX = [f"s_add_u32 s{sN}, s{sN}, 1\ns_and_b32 s{sT0}, s{sN}, 3\ns_lshl_b32 s{sT0}, s{sT0}, 13",
             f"v_add_u32 v{vXA}, s{sT0}, v{vXA0}", f"v_add_u32 v{vXA+1}, s{sT0}, v{vXA0+1}"]

    def pj_first(self):
        a = self.a
        ACC0 = vACC
        a("L_pj:")
        if not (self.probes or self.stamps):
            self.late_srds()
        a(f"""v_mov_b32 v{vZ}, 0
        s_cmp_lg_u32 s{sLW}, 0
        s_cbranch_scc1 L_pj_a
        s_lshl_b32 s{sT0}, s{sTY}, 14
        s_lshl_b32 s{sT1}, s{sHG}, 7
        s_add_u32 s{sT0}, s{sT0}, s{sT1}
        s_add_u32 s{sT0}, s{sT0}, s{sFADDR}
        v_lshlrev_b32 v1, 4, v0
        v_mov_b32 v{vFA}, 0
        v_mov_b32 v{vFA+1}, 0
        v_mov_b32 v{vFA+2}, 0
        v_mov_b32 v{vFA+3}, 0
        s_mov_b64 exec, 0xff
        buffer_store_dwordx4 {vr(vFA, 4)}, v1, {sr(sWS)}, s{sT0} offen sc1
        s_mov_b64 exec, -1
        L_pj_a:""")
        self.early(6)
        for i in list(range(vKVO, vXVO)) + list(range(vOVO, vWVO)):
            a(f"v_mov_b32 v{i}, 0")
        a(f"""s_lshl_b32 s{sT2}, s{sLW}, 13
        s_mov_b32 s{sWB}, {R1}
        s_mov_b32 s{sWB+1}, {R2}
        s_mov_b32 s{sWB+2}, {WR}
        v_lshrrev_b32 v1, 2, v3
        v_lshl_add_u32 v6, v2, 3, v1
        v_lshrrev_b32 v1, 1, v1
        v_and_b32 v7, 1, v2
        v_lshl_or_b32 v1, v7, 1, v1
        v_and_b32 v7, 3, v0
        v_lshlrev_b32 v7, 3, v7
        v_lshl_add_u32 v6, v6, 7, v7
        v_lshl_add_u32 v6, v1, 5, v6
        v_add_u32 v{vWA0}, s{sT2}, v6
        v_add_u32 v{vWA}, {WR}, v{vWA0}""")
        for mt in range(1, 4):
            a(f"v_xor_b32 v{vWA+mt}, {32*mt}, v{vWA}")
        a(f"""v_lshrrev_b32 v1, 1, v3
        v_xor_b32 v6, v1, v2
        v_lshlrev_b32 v6, 4, v6
        v_lshl_add_u32 v6, v3, 7, v6
        v_add_u32 v{vXA0}, {XR}, v6
        v_xor_b32 v{vXA0+1}, 64, v{vXA0}
        v_mov_b32 v{vXA}, v{vXA0}
        v_mov_b32 v{vXA+1}, v{vXA0+1}
        v_lshrrev_b32 v6, 1, v2
        v_xor_b32 v6, v6, v1
        v_lshlrev_b32 v6, 4, v6
        v_lshl_add_u32 v6, v3, 7, v6
        v_and_b32 v7, 1, v2
        v_lshl_add_u32 v6, v7, 3, v6
        v_add_u32 v6, s{sT2}, v6
        v_add_u32 v{vQW}, {R2}, v6""")
        for i in range(64):
            a(f"v_mov_b32 v{ACC0+i}, 0")
        for i in range(16):
            a(f"v_mov_b32 v{vFA+16+i}, 0\nv_mov_b32 v{vFB+16+i}, 0")
        self.early(4)
        srd(a, sPT, sDBGP, 256)
        a(f"""v_mov_b32 v1, 1
        s_lshl_b32 s{sT0}, s{sB}, 2
        s_mov_b32 s{sN}, 0
        s_waitcnt vmcnt(0)
        s_cmp_lg_u32 s{sLW}, 0
        s_cbranch_scc1 L_q0
        s_mov_b64 exec, 1
        buffer_atomic_add v1, v{vZ}, {sr(sPT)}, s{sT0} offen offset:{128*bool(self.dbgst)} sc1
        s_mov_b64 exec, -1""")
        nextbuf = [f"v_add_u32 v{vWA}, s{sWB}, v{vWA0}\ns_mov_b32 s{sT0}, s{sWB}", f"v_xor_b32 v{vWA+1}, 32, v{vWA}\ns_mov_b32 s{sWB}, s{sWB+1}",
                   f"v_xor_b32 v{vWA+2}, 64, v{vWA}\ns_mov_b32 s{sWB+1}, s{sWB+2}", f"v_xor_b32 v{vWA+3}, 96, v{vWA}\ns_mov_b32 s{sWB+2}, s{sT0}"]
        a("L_q0:\ns_barrier")
        self.probe(0, True)
        lg = Lg(a)
        rd = lambda ks: [self.rdB(ks, 0)] + self.q_rdA(ks, 0) + [self.rdB(ks, q) for q in (1, 2, 3)] + sum((self.q_rdA(ks, m) for m in (1, 2, 3)), [])
        r0 = rd(0)
        plan = {k: [] for k in range(-1, 32)}
        for i, x in enumerate(r0):
            plan[i // 2 - 1].append(x)
        for pos, m in ((6, 0), (8, 1), (12, 2), (16, 3)):
            for j, x in enumerate(self.q_rdA(1, m)):
                plan[pos + j].append(x)
        for q in range(4):
            plan[18 + q].append(self.rdB(1, q))
        tail = nextbuf + self.NEXTX
        for x in plan[-1]:
            lg.issue(*x)
        for k in range(32):
            mt, qt = self.ORDER4[k & 15]
            if k == 16:
                lg.wait(*[tag for _, tag in r0])
            a(self.mfma(ACC0, mt, qt, self.qA(1 - (k >> 4), mt), 1 - (k >> 4)))
            for x in plan[k]:
                lg.issue(*x)
            if k >= 22 and tail:
                a(tail.pop(0))
            if k == 30:
                lg.drain()
                a(f"s_cmp_eq_u32 s{sN}, 1")
        self.probe(1)
        a("s_cbranch_scc1 L_q0_setup")
        if self.wqat > 1:
            a(f"s_cmp_eq_u32 s{sN}, {self.wqat}\ns_cbranch_scc1 L_q0_touch")
        a(f"s_cmp_lt_u32 s{sN}, 9\ns_cbranch_scc1 L_q0")
        self.early(10)
        self.q_finalize(ACC0, [self.mfma(ACC0, mt, qt, self.qA(1, mt), 1) for mt, qt in self.ORDER4])
        self.early(12)
        a(f"v_xor_b32 v{vQW}, {R2 ^ WR}, v{vQW}")
        self.stamp(1)
        a("s_branch L_pj_rest")

    def pj_setup(self):
        a = self.a
        a("L_q0_setup:")
        self.late_common()
        self.late_wo()
        a(f"""s_cmp_eq_u32 s{sTY}, 1
        s_cselect_b32 s{sKVN}, 2, {self.adist}
        s_lshl_b32 s{sT0}, s{sKVN}, 13
        s_add_u32 s{sKVOFF}, s{sKVOFF}, s{sT0}
        s_mul_i32 s{sT0}, s{sKVN}, s{sBUFSZ}
        s_add_u32 s{sKVM0}, s{sKVM0}, s{sT0}
        s_mov_b32 s{sTHR}, 1
        s_add_u32 s{sWCOL}, s{sWCOL}, 512
        s_add_u32 s{sWCH}, s{sWCH}, 7
        s_sub_u32 s{sT0}, s{sWCH}, 9
        s_cselect_b32 s{sWCH}, s{sWCH}, s{sT0}
        s_lshl_b32 s{sT2}, s{sLW}, 13
        s_add_u32 s{sWBUF}, s{sT2}, {WR}
        s_mov_b32 s{sXN}, 4
        s_add_u32 s{sXCH}, s{sXCH}, 4
        s_sub_u32 s{sT0}, s{sXCH}, 9
        s_cselect_b32 s{sXCH}, s{sXCH}, s{sT0}
        s_mov_b32 s{sOCI}, 0
        s_mov_b32 s{sOG}, 0
        s_mov_b32 s{sOBUF}, {WR}
        s_mov_b32 s{sTN}, 0
        s_mov_b32 s{sLAST}, 2
        v_mov_b32 v{vPR}, 0""")
        for i in range(64):
            a(f"v_mov_b32 v{vACC+64+i}, 0")
        if self.wqat > 1:
            a("s_branch L_q0\nL_q0_touch:")
        self.pretouch_wq(vFA + 34)
        a("s_branch L_q0")

    def stream_slot(self, ty, rdA, MT, acc, aset, loads, after, readB=True):
        e = self.a
        e("s_barrier")
        self.probe(0, True)
        lg = Lg(e)
        for t, tag in rdA:
            lg.issue(t, tag)
        lg.drain()
        self.probe(1)
        e("s_barrier")
        self.probe(2)
        for ks in (0, 1):
            for q in range(4 if readB else 0):
                lg.issue(*self.rdB(ks, q))
        if loads is None:
            return
        def mk(ks, mt, qt):
            def f():
                lg.wait(("B", ks, qt))
                e(self.mfma(acc, mt, qt, aset(ks, mt), ks))
            return f
        mm = [mk(ks, mt, qt) for ks in (0, 1) for mt in range(MT) for qt in range(4)]
        self.spread(mm, loads + (self.kv_items_b() if ty else []))
        self.probe(6)
        if not ty:
            if getattr(self, "extra", None):
                l = self.lab("tx")
                e(f"s_cmp_ge_u32 s{sN}, 15\ns_cbranch_scc1 {l}")
                self.pretouch_wo(False)
                e(f"{l}:")
                self.extra = None
            self.call("F_kv")
        for t in after:
            e(t)

    def store_items(self, G):
        acc = vACC + 48 * G
        items = []
        for qd in range(6):
            c = acc + 8*qd
            t = "\n".join(f"v_cvt_pk_bf16_f32 v{c+i}, v{c+2*i}, v{c+2*i+1}" for i in range(4))
            t += f"\nbuffer_store_dwordx4 {vr(c,4)}, v{vST}, {sr(sWS)}, s{sM} offen offset:{1024*(qd&3)} {('sc1', 'sc1 nt', 'sc0 sc1')[self.partop]}"
            if qd in (3, 5):
                t += f"\ns_add_u32 s{sM}, s{sM}, {4096 if qd == 3 else 24576-4096}"
            items.append(t)
        return items

    def pj_rest(self):
        a = self.a
        ACC1 = vACC + 64
        qrd = sum((self.q_rdA(ks, m) for ks in (0, 1) for m in range(4)), [])
        a(f"L_pj_rest:\nv_mov_b32 v{vXA}, v{vXA0}\nv_mov_b32 v{vXA+1}, v{vXA0+1}")
        self.prio_set(1)
        prevx = [f"s_add_u32 s{sN}, s{sN}, 1\ns_sub_u32 s{sT0}, 9, s{sN}\ns_and_b32 s{sT0}, s{sT0}, 3\ns_lshl_b32 s{sT0}, s{sT0}, 13"] + self.NEXTX[1:]
        a(f"s_cmp_eq_u32 s{sTY}, 1\ns_cbranch_scc1 L_q1_1")
        if self.help:
            self.other_srd(sBV, 56, SIZE['B_v'])
        if self.follow:
            self.wait_init(vZ, vDUM)
        if self.aidle:
            self.pretouch_wo(True)
            a(f"s_mov_b32 s{sM}, 6\nL_idle_a:\ns_barrier")
            self.probe(0, True)
            a("s_barrier")
            if self.aidle == 1:
                self.pretouch_wo(False)
            self.call("F_kv")
            self.kvwait()
            a(f"s_sub_u32 s{sM}, s{sM}, 1\ns_cmp_lg_u32 s{sM}, 0\ns_cbranch_scc1 L_idle_a")
        for ty in (0, 1):
            nk = 8 if ty else self.NA
            a(f"L_q1_{ty}:")
            if self.aidle == 2 and not ty:
                self.extra = "touch"
            self.stream_slot(ty, qrd, 4, ACC1, self.qA, self.w_items(True), prevx)
            a(f"s_sub_u32 s{sT0}, s{sN}, 11\ns_cmp_ge_u32 s{sT0}, 5\ns_cbranch_scc1 L_q1_nox{ty}")
            self.call("F_x")
            a(f"""s_sub_u32 s{sXN}, s{sXN}, 2
            s_add_u32 s{sXCH}, s{sXCH}, 7
            s_sub_u32 s{sT0}, s{sXCH}, 9
            s_cselect_b32 s{sXCH}, s{sXCH}, s{sT0}""")
            self.probe(4)
            a(f"s_waitcnt vmcnt({nk + 2})")
            self.probe(5)
            a(f"s_branch L_q1_{ty}\nL_q1_nox{ty}:")
            self.probe(4)
            a(f"s_waitcnt vmcnt({nk})")
            self.probe(5)
            a(f"s_cmp_lt_u32 s{sN}, 17\ns_cbranch_scc1 L_q1_{ty}")
            if not ty:
                a("s_branch L_q1_last")
        a("L_q1_last:")
        self.stream_slot(0, qrd, 4, ACC1, self.qA, None, None)
        self.call("F_kv")
        a("s_waitcnt lgkmcnt(0)")
        self.q_finalize(ACC1, [self.mfma(ACC1, mt, qt, self.qA(ks, mt), ks) for ks in (0, 1) for mt, qt in self.ORDER4])
        self.kvwait()
        self.stamp(2)
        a("s_barrier")
        self.probe(0, True)
        a("s_barrier")
        if not self.aidle:
            self.pretouch_wo(True)
        self.call("F_kv")
        for i in range(144):
            a(f"v_mov_b32 v{vACC+i}, 0")
        a(f"""v_lshrrev_b32 v6, 2, v0
        v_bfe_u32 v1, v6, 1, 2
        v_and_b32 v7, 3, v0
        v_lshlrev_b32 v7, 3, v7
        v_mul_u32_u24 v6, 384, v6
        v_add_u32 v6, v6, v7
        s_mul_i32 s{sT0}, s{sLW}, 3""")
        for nt in range(3):
            a(f"""s_add_u32 s{sT1}, s{sT0}, {nt}
            v_xor_b32 v7, s{sT1}, v1
            v_lshl_add_u32 v{vOA0+nt}, v7, 5, v6
            v_add_u32 v{vOA+nt}, {WR}, v{vOA0+nt}""")
        a(f"""s_lshl_b32 s{sT0}, s{sTY}, 4
        s_add_u32 s{sT0}, s{sT0}, s{sB}
        s_lshl_b32 s{sT0}, s{sT0}, 3
        s_add_u32 s{sT0}, s{sT0}, s{sHG}
        s_mul_i32 s{sM}, s{sT0}, {PART}
        s_add_u32 s{sM}, s{sM}, s{sOLW}
        v_lshl_add_u32 v{vST}, v3, 2, v2
        v_lshlrev_b32 v{vST}, 4, v{vST}""")
        self.kvwait()
        if self.aidle:
            a(f"s_cmp_eq_u32 s{sTY}, 0\ns_cbranch_scc1 L_kvl_done")
        a(f"s_mov_b32 s{sN}, 6\nL_kvl:\ns_barrier")
        self.probe(0, True)
        a("s_barrier")
        self.probe(2)
        if not self.aidle:
            self.pretouch_wo(False)
        self.call("F_kv")
        self.probe(4)
        self.kvwait()
        self.probe(5)
        a(f"""s_sub_u32 s{sN}, s{sN}, 1
        s_cmp_lg_u32 s{sN}, 0
        s_cbranch_scc1 L_kvl
        L_kvl_done:
        s_barrier""")
        self.probe(0, True)
        a("s_barrier")
        self.call("F_wo")
        if self.touch & 8:
            self.touch_own_last()
        self.call("F_kv")
        self.kvwait()
        self.stamp(3)
        oA = lambda c, ks, mt: vFA + 4*mt + (0 if ks == 0 else 12 + 12*(c & 1))
        o_rdA = lambda c, ks, mt: self.rdA(oA(c, ks, mt), vOA, mt, 32*ks*384, (32*ks+16)*384, ("A", ks, mt))
        xa_step = [f"s_add_u32 s{sN}, s{sN}, 1\ns_add_u32 s{sT0}, s{sROT}, s{sN}\ns_and_b32 s{sT0}, s{sT0}, 3\ns_lshl_b32 s{sT0}, s{sT0}, 13",
                   f"v_add_u32 v{vXA}, s{sT0}, v{vXA0}", f"v_add_u32 v{vXA+1}, s{sT0}, v{vXA0+1}"]
        a(f"s_mov_b32 s{sN}, -1")
        for t in xa_step:
            a(t)
        ord_ = sum((o_rdA(0, ks, m) for ks in (0, 1) for m in range(3)), [])
        a(f"s_cmp_eq_u32 s{sTY}, 1\ns_cbranch_scc1 L_o2_1")
        for ty in (0, 1):
            a(f"L_o2_{ty}:")
            for G in range(3):
                self.stream_slot(ty, ord_, 3, vACC + 48*G, lambda ks, mt: oA(0, ks, mt), self.wo_items(), xa_step if G == 0 else [], G == 0)
                self.probe(4)
                if ty:
                    a("s_waitcnt vmcnt(8)")
                else:
                    self.kvwait()
                self.probe(5)
            a(f"s_cmp_lt_u32 s{sN}, 4\ns_cbranch_scc1 L_o2_{ty}")
            if not ty:
                a("s_branch L_o2_done")
        a("L_o2_done:")
        self.stamp(4)
        if self.probes or self.lite:
            a(f"s_add_u32 s{sSLOT}, s{sSLOT}, 3")
        a("s_barrier\ns_barrier")
        if self.touch & 4:
            self.touch_own_last()
        self.call("F_kv")
        a(f"""v_lshl_add_u32 v1, v0, 2, s{sRB}
        v_cmp_gt_u32 vcc, 6, v0
        s_and_saveexec_b64 {sr(sT0, 2)}, vcc
        s_cmp_lg_u32 s{sLW}, 0
        s_cbranch_scc1 L_nz
        ds_write_b32 v1, v{vZ} offset:{SYNC - WR}
        L_nz:
        s_mov_b64 exec, -1
        s_waitcnt lgkmcnt(0)""")
        self.kvwait()
        srd(a, sPT, sDBGP, 256)
        a(f"""s_lshl_b32 s{sT2}, s{sB}, 2
        s_barrier
        s_barrier
        buffer_load_dword v{vDUM}, v{vZ}, {sr(sPT)}, s{sT2} offen offset:{128*bool(self.dbgst)} sc1
        s_mov_b32 s{sOBUF}, s{sRB+1}""")
        self.call("F_wo")
        a(f"""s_waitcnt vmcnt(6)
        v_readfirstlane_b32 s{sT1}, v{vDUM}
        s_cmp_ge_u32 s{sT1}, 16
        s_cbranch_scc1 L_init_ok""")
        self.wait_init(vZ, vDUM)
        a(f"L_init_ok:\ns_barrier\ns_barrier\ns_mov_b32 s{sOBUF}, s{sRB+2}")
        self.call("F_wo")
        if self.prio & 4:
            a("s_setprio 0")
        self.stamp(5)
        st = []
        def xa_to(c):
            if c > 11 or self.last_seq(c)[0] == self.last_seq(c - 1)[0]:
                return []
            return [f"s_add_u32 s{sT0}, s{sROT}, {self.last_seq(c)[0]}\ns_and_b32 s{sT0}, s{sT0}, 3\ns_lshl_b32 s{sT0}, s{sT0}, 13"] + xa_step[1:]
        done_at = {max(c for c in range(12) if self.last_seq(c)[1] == g) + 1: g for g in (0, 1)}
        for c in range(12):
            grp = (lambda c: c >> 2) if self.gmajor else (lambda c: self.last_seq(c)[1])
            acc, prev = vACC + 48 * grp(c), vACC + 48 * grp(max(c - 1, 0))
            newB = c == 0 or self.last_seq(c)[0] != self.last_seq(c - 1)[0] or self.gmajor
            lg = Lg(a)
            if c == 0:
                for ks in (0, 1):
                    for m in range(3):
                        for x in o_rdA(0, ks, m):
                            lg.issue(*x)
                lg.drain()
            a("s_barrier")
            self.probe(0, True)
            b0 = [self.rdB(0, q) for q in range(4)] if newB else []
            r0 = b0[:1] + o_rdA(c, 0, 0) + b0[1:] + o_rdA(c, 0, 1) + o_rdA(c, 0, 2)
            ra1 = sum((o_rdA(c, 1, m) for m in range(3)), [])
            if c == 0:
                r0, ra1 = b0 + [self.rdB(1, q) for q in range(4)], []
            plan = {k: [] for k in range(-1, 24)}
            for i, x in enumerate(r0):
                plan[(i // 2 - 1 if newB else i - 1) if c else -1].append(x)
            for i, x in enumerate(ra1):
                plan[5 + i if c else 12 + i // 2].append(x)
            for q in range(4 if newB and c else 0):
                plan[12 + q].append(self.rdB(1, q))
            fill = [f"v_add_u32 v{vOA+nt}, s{sRB + ((c+1)&3)}, v{vOA0+nt}" for nt in range(3)] + (xa_to(c + 1) if self.hyb else xa_step if newB else [])
            for x in plan[-1]:
                lg.issue(*x)
            for k in range(0 if c else 12, 24):
                mt, qt = self.ORDER3[k % 12]
                if k == 12 and c:
                    lg.wait(*[tag for _, tag in r0])
                elif not c:
                    lg.wait(("A", 0, mt, 0), ("A", 0, mt, 1), ("B", 0, qt))
                a(self.mfma(prev, mt, qt, oA(c - 1, 1, mt), 1) if k < 12 else self.mfma(acc, mt, qt, oA(c, 0, mt), 0))
                for x in plan[k]:
                    lg.issue(*x)
                if k >= (16 if c else 19) and fill:
                    a(fill.pop(0))
                    if not c and fill:
                        a(fill.pop(0))
                if self.gmajor:
                    if k == 11 and c in (self.store0, self.store1):
                        st += self.store_items(int(c == self.store1))
                    step = self.stp0 if c < self.store1 else self.stp
                else:
                    if c in done_at and k == 9:
                        st += self.store_items(done_at[c])
                    step = self.stp
                if st and k % step == step - 1:
                    a(st.pop(0))
                if k == 22:
                    lg.drain()
            assert not fill
            if c < 2:
                a(f"s_waitcnt vmcnt({6 - 6*c})")
            if c in (4, 8):
                self.stamp(6 + (c >> 3))
        for k, (mt, qt) in enumerate(self.ORDER3):
            a(self.mfma(vACC + 96, mt, qt, oA(11, 1, mt), 1))
            if k == 9:
                st += self.store_items(2)
            if st and k % 2 == 1:
                a(st.pop(0))
        for t in st:
            a(t)
        self.stamp(8)
        a(f"""v_mov_b32 v1, {SYNC}
        v_mov_b32 v6, 1
        v_lshlrev_b32 v5, 4, v0
        v_mov_b32 v{vFA}, 1
        v_mov_b32 v{vFA+1}, 1
        v_mov_b32 v{vFA+2}, 1
        v_mov_b32 v{vFA+3}, 1
        s_lshl_b32 s{sT0}, s{sTY}, 14
        s_lshl_b32 s{sT1}, s{sHG}, 7
        s_add_u32 s{sT0}, s{sT0}, s{sT1}
        s_add_u32 s{sT0}, s{sT0}, s{sFADDR}
        s_mov_b64 exec, 1""")
        for k in range(1):
            a(f"""s_waitcnt vmcnt(0)
            ds_add_rtn_u32 v7, v1, v6 offset:{4*k}
            s_waitcnt lgkmcnt(0)
            v_readfirstlane_b32 s{sT1}, v7
            s_cmp_lg_u32 s{sT1}, 3
            s_cbranch_scc1 L_nf{k}
            s_mov_b64 exec, 0xff
            buffer_store_dwordx4 {vr(vFA, 4)}, v5, {sr(sWS)}, s{sT0} offen sc1
            L_nf{k}:""")
            if k == 0:
                self.stamp(13)
        a("s_mov_b64 exec, -1")
        self.stamp(9)
        self.probe_dump()
        a("s_branch L_reduce")

    def at_first(self):
        a = self.a
        a("L_at:")
        self.prio_set(0)

        issued = []
        WBUFS = (WR, R1, R2)

        def ldx(n, direct):
            if n == 0 and self.inl:
                self.x_body()
            elif n <= 3 or n >= 9 or direct:
                self.call("F_x")
            else:
                a(f"s_lshl_b32 s{sT0}, s{sXCH}, 7\ns_add_u32 s{sT0}, s{sT0}, s{sXBASE}")
                self.x_adv()
                for i in range(2):
                    a(f"buffer_load_dwordx4 {vr(vO + (n-4)*8 + 4*i, 4)}, v{vXVO+i}, {sr(sX)}, s{sT0} offen offset:{1024*i}")
            issued.extend([("x", n)] * 2)

        def ldw(n):
            if n == 9:
                a(f"s_sub_u32 s{sWCH}, s{sWCH}, 1\ns_cselect_b32 s{sWCH}, 8, s{sWCH}")
            a(f"s_lshl_b32 s{sWBUF}, s{sLW}, 13\ns_add_u32 s{sWBUF}, s{sWBUF}, {WBUFS[n % 3]}")
            if n == 0 and self.inl:
                for t in self.w_items():
                    a(t)
            else:
                self.call("F_w")
            issued.extend([("w", n)] * 8)

        def prefill(k, ty):
            for _ in range(2 - ty):
                self.call("F_kv")
            issued.extend([("kv", k)] * 8)

        def wait(*tags):
            k = max(i for i, t in enumerate(issued) if t in tags) + 1
            a(f"s_waitcnt vmcnt({min(63, len(issued) - k)})")
        def first_stage(ty, head):
            del issued[:]
            direct = ty == 1 and self.xplan
            if head:
                ldx(0, direct); ldw(0)
                return
            issued.extend([("x", 0)] * 2 + [("w", 0)] * 8)
            self.early(2)
            self.call("F_atset")
            self.early(4)
            ldx(1, direct); ldw(1)
            wait(("x", 0), ("w", 0))
            self.early(5)
            for n in range(9):
                a("s_barrier")
                self.probe(0, True)
                if 1 <= n <= 5 and not direct:
                    wait(("x", n + 3))
                    for i in range(2):
                        a(f"ds_write_b128 v{vT}, {vr(vO + (n-1)*8 + 4*i, 4)} offset:{((n+3)&3)*8192 + 1024*i}")
                if n == 0:
                    for k in range(2, 4 if direct else 9):
                        ldx(k, direct)
                elif direct and n <= 5:
                    ldx(n + 3, direct)
                if n + 2 <= 9:
                    ldw(n + 2)
                if n == (self.prefill if ty else self.prefa):
                    prefill(0, ty)
                if n == 8 and (ty or self.adist == 4):
                    prefill(1, ty)
                self.probe(4)
                wait(*([("w", n + 1)] + [("kv", 0) if n == 8 else ("x", n + 1)]))
                a("s_waitcnt lgkmcnt(0)")
                self.probe(5)
        a(f"s_mov_b32 s{sXN}, 0\ns_cmp_eq_u32 s{sTY}, 0\ns_cbranch_scc1 L_at_a")
        first_stage(1, True)
        a("s_branch L_at_b\nL_at_a:")
        if self.xplan & 2:
            srd(a, sPT, sBWP, SIZE['B_wq'])
            a(f"""s_lshl_b32 s{sT0}, s{sB}, 2
            s_add_u32 s{sT0}, s{sT0}, s{sLW}
            s_mul_i32 s{sT0}, s{sT0}, {9*8192}
            s_lshl_b32 s{sT1}, s{sHG}, 10
            s_add_u32 s{sT0}, s{sT0}, s{sT1}
            v_lshrrev_b32 v1, 2, v0
            v_and_b32 v6, 3, v0
            v_lshlrev_b32 v6, 7, v6
            v_lshl_add_u32 v1, v1, 13, v6
            s_mov_b32 exec_hi, 15
            buffer_load_dword v{vP+3}, v1, {sr(sPT)}, s{sT0} offen""")
            if self.xplan & 4:
                a(f"buffer_load_dword v{vP+2}, v1, {sr(sWQ)}, s{sT0} offen")
            a("s_mov_b64 exec, -1")
        if self.xtouch:
            srd(a, sBV, sBXP, SIZE['B_x'])
            a(f"v_mul_u32_u24 v1, 1152, v0\ns_mul_i32 s{sT2}, s{sB}, 73728")
            for j in range(2):
                a(f"""s_add_u32 s{sT0}, s{sXCH}, s{sLW}
                s_add_u32 s{sT0}, s{sT0}, {self.xfrom + 4*j}
                s_mul_i32 s{sT1}, s{sT0}, 57
                s_lshr_b32 s{sT1}, s{sT1}, 9
                s_mul_i32 s{sT1}, s{sT1}, 9
                s_sub_u32 s{sT0}, s{sT0}, s{sT1}
                s_lshl_b32 s{sT0}, s{sT0}, 7
                s_add_u32 s{sT0}, s{sT0}, s{sT2}
                buffer_load_dword v{vP+j}, v1, {sr(sBV)}, s{sT0} offen""")
        first_stage(0, True)
        first_stage(0, False)
        a("s_branch L_at_done\nL_at_b:")
        first_stage(1, False)
        a("L_at_done:")
        if self.prio & 1:
            a("s_setprio 0")
        a("s_branch L_stage\nF_atset:")
        if not (self.probes or self.stamps):
            self.late_srds()
        self.late_common()
        a(f"""s_mov_b32 s{sTHR}, 0
        s_lshl_b32 s{sT0}, s{sLW}, 11
        s_add_u32 s{sT0}, s{sT0}, {XR}
        v_lshl_add_u32 v{vT}, v0, 4, s{sT0}""")
        self.at_setup()
        if self.xplan:
            a(f"s_cmp_eq_u32 s{sTY}, 0\ns_cbranch_scc1 F_atset_ret")
            for i in range(vO, vO + 40):
                a(f"v_mov_b32 v{i}, 0")
            a("F_atset_ret:")
        self.ret()

    def at_setup(self):
        a = self.a
        a(f"""s_lshr_b32 s{sT0}, s{sLW}, 1
        s_mul_i32 s{sT0}, s{sT0}, s{sTY}
        s_lshl_b32 s{sT0}, s{sT0}, 13
        v_xor_b32 v7, v2, v3
        v_lshlrev_b32 v7, 4, v7
        v_lshl_add_u32 v7, v3, 8, v7
        v_add_u32 v{vKA}, s{sT0}, v7""")
        for ks in range(1, 4):
            a(f"v_xor_b32 v{vKA+ks}, {64*ks}, v{vKA}")
        a(f"""s_lshr_b32 s{sT1}, s{sBUFSZ}, 1
        s_add_u32 s{sT0}, s{sT0}, s{sT1}
        v_lshrrev_b32 v1, 2, v0
        v_and_b32 v6, 7, v1
        v_lshlrev_b32 v7, 8, v1
        v_lshl_add_u32 v7, v6, 5, v7
        v_and_b32 v1, 3, v0
        v_lshl_add_u32 v7, v1, 3, v7
        v_add_u32 v{vVA}, s{sT0}, v7""")
        for dt in range(1, 8):
            a(f"v_xor_b32 v{vVA+dt}, {32*dt}, v{vVA}")
        a(f"""s_mov_b32 s{sRPOS}, 0
        s_mov_b32 s{sSTAGE}, 0
        s_mov_b32 s{sQBUF}, {R2 - XR}
        s_mov_b32 s{sM}, 3
        s_lshr_b32 s{sT0}, s{sLW}, 1
        s_lshl_b32 s{sT0}, s{sT0}, 14
        s_and_b32 s{sT1}, s{sLW}, 1
        s_lshl_b32 s{sT1}, s{sT1}, 12
        s_add_u32 s{sT0}, s{sT0}, s{sT1}
        s_add_u32 s{sT0}, s{sT0}, {XR}
        v_lshrrev_b32 v6, 1, v3
        v_xor_b32 v6, v6, v2
        v_lshlrev_b32 v6, 4, v6
        v_lshl_add_u32 v6, v3, 7, v6
        v_add_u32 v{vH}, s{sT0}, v6
        v_xor_b32 v{vH+1}, 64, v{vH}""")
        for i in list(range(vO + 40, vO + 64)) + list(range(vNM + 1, vNM + 8)) + [vL0, vL0 + 1, vL0 + 2, vL0 + 3, 4] + list(range(vOVO, vOVO + 6)):
            a(f"v_mov_b32 v{i}, 0")

    def at_rest(self):
        a = self.a
        publish = self.follow or self.gate
        a(f"""L_stage:
        s_mov_b32 s{sTH}, 0xff7fffff
        s_mov_b32 s{sFLOOR}, 0xff7fffff
        s_mov_b32 s{sFIRST}, 0
        s_cmp_lg_u32 s{sSTAGE}, 0
        s_cbranch_scc1 L_stage_a
        v_mov_b32 v{vNM}, 0
        L_stage_a:""")
        for i in range(2):
            a(f"v_add_u32 v{vT+i}, s{sQBUF}, v{vH+i}")
        a(f"s_mov_b32 s{sN}, 0\nL_tile:\ns_barrier")
        self.probe(0, True)
        a(f"s_cmp_lg_u32 s{sN}, 0\ns_cbranch_scc1 L_tile_k")
        for qt in range(2):
            for ks in range(4):
                a(f"ds_read_b128 {vr(vQ + (qt*4+ks)*4, 4)}, v{vT+(ks&1)} offset:{2048*qt + 8192*(ks>>1)}")
        a("s_waitcnt lgkmcnt(0)\nL_tile_k:")
        lg = Lg(a)
        for ks in range(4):
            for kt in range(2):
                lg.issue(f"ds_read_b128 {vr(vKF + (ks*2+kt)*4, 4)}, v{vKA+ks} offset:{4096*kt}", ("K", ks, kt))
        a("s_barrier")
        O = lambda dt, qt: vO + (((dt >> 1)*2 + qt)*2 + (dt & 1))*4
        pv = lambda dt, u: f"v_mfma_f32_16x16x32_bf16 {vr(O(dt, u), 4)}, {vr(vVF + dt*4, 4)}, {vr(vP+4*u, 4)}, {vr(O(dt, u), 4)}"
        if self.defer:
            a(f"s_cmp_eq_u32 s{sN}, 0\ns_cbranch_scc1 L_tile_q")
            late = [f"v_pk_add_f32 {vr(vL0+2*u, 2)}, {vr(vL0+2*u, 2)}, {vr(vS+8*u+2*i, 2)}" for u, i in ((1, 0), (0, 2), (1, 1), (0, 3), (1, 2), (1, 3))]
            late += [f"v_add_u32 v{vVA+i}, s{sPROG}, v{vVA+i}" for i in range(8)]
            def deferred():
                l = list(late)
                for dt in range(8):
                    a(pv(dt, 1))
                    for _ in range(2):
                        if l: a(l.pop(0))
            deferred()
            a("L_tile_q:")
        vreads = [(f"ds_read_b64_tr_b16 {vr(vVF + dt*4 + 2*j, 2)}, v{vVA+dt} offset:{4096*j}", ("V", dt, j)) for dt in range(8) for j in range(2)]
        S = lambda qt, kt: vS + (qt*2 + kt)*4
        O = lambda dt, qt: vO + (((dt >> 1)*2 + qt)*2 + (dt & 1))*4
        for ks in range(4):
            for kt in range(2):
                lg.wait(("K", ks, kt))
                for qt in range(2):
                    c = vr(vNM + 4*qt, 4) if ks == 0 else vr(S(qt, kt), 4)
                    a(f"v_mfma_f32_16x16x32_bf16 {vr(S(qt, kt), 4)}, {vr(vKF + (ks*2+kt)*4, 4)}, {vr(vQ + (qt*4+ks)*4, 4)}, {c}")
                    if len(lg.q) < 15:
                        lg.issue(*vreads.pop(0))
        for t, tag in vreads:
            lg.issue(t, tag)
        a(f"""s_add_u32 s{sRPOS}, s{sRPOS}, s{sBUFSZ}
        s_cmp_ge_u32 s{sRPOS}, 98304
        s_cselect_b32 s{sT0}, 98304, 0
        s_sub_u32 s{sRPOS}, s{sRPOS}, s{sT0}
        s_sub_u32 s{sPROG}, s{sBUFSZ}, s{sT0}""")
        adv = [f"v_add_u32 v{vKA+i}, s{sPROG}, v{vKA+i}" for i in range(12)]
        nadv = 4 if self.defer else 2
        for t in adv[:nadv]:
            a(t)
        adv = adv[nadv:]
        t0, t1 = vT, vT + 1
        a(f"""v_max3_f32 v{t0}, v{vS}, v{vS+1}, v{vS+2}
        v_max3_f32 v{t0}, v{t0}, v{vS+3}, v{vS+4}
        v_max3_f32 v{t1}, v{vS+8}, v{vS+9}, v{vS+10}
        v_max3_f32 v{t0}, v{t0}, v{vS+5}, v{vS+6}
        v_max3_f32 v{t1}, v{t1}, v{vS+11}, v{vS+12}
        v_max_f32 v{t0}, v{t0}, v{vS+7}
        v_max3_f32 v{t1}, v{t1}, v{vS+13}, v{vS+14}
        v_max_f32 v{t1}, v{t1}, v{vS+15}
        v_max_f32 v{vT+2}, v{t0}, v{t1}
        v_cmp_lt_f32 vcc, s{sTH}, v{vT+2}
        s_cbranch_vccnz L_rescale
        L_tile_exp:""")
        ex = lambda u: [f"v_exp_f32 v{vS+8*u+i}, v{vS+8*u+i}" for i in range(8)]
        cv = lambda u: [f"v_cvt_pk_bf16_f32 v{vP+4*u+i}, v{vS+8*u+2*i}, v{vS+8*u+2*i+1}" for i in range(4)]
        if self.pkl:
            ad = lambda u: [x for i in range(4) for x in (f"v_pk_add_f32 {vr(vL0+2*u, 2)}, {vr(vL0+2*u, 2)}, {vr(vS+8*u+2*i, 2)}", "")]
        else:
            ad = lambda u: [f"v_add_f32 v{vL0+2*u+(i&1)}, v{vL0+2*u+(i&1)}, v{vS+8*u+i}" for i in range(8)]
        pv = lambda dt, u: f"v_mfma_f32_16x16x32_bf16 {vr(O(dt, u), 4)}, {vr(vVF + dt*4, 4)}, {vr(vP+4*u, 4)}, {vr(O(dt, u), 4)}"
        e0, c0, a0 = ex(0), cv(0), ad(0)
        e1, c1, a1 = ex(1), cv(1), ad(1)
        for t in e0[:3] + [e0[3], c0[0], e0[4], e0[5], c0[1], e0[6], e0[7], c0[2], e1[0], c0[3], e1[1], a0[0]]:
            a(t)
        gaps = [[e1[2]], [e1[3], c1[0]], [e1[4]], [e1[5], c1[1]], [e1[6]], [e1[7]], [c1[2], a0[1]], [c1[3], a0[2], a0[3] or "s_nop 0"]]
        for dt in range(8):
            if dt % 2 == 0:
                lg.wait(("V", dt + 1, 0), ("V", dt + 1, 1))
            a(pv(dt, 0))
            for t in gaps[dt]:
                a(t)
        rest = [x for pair in zip(a1, a0[4:] + adv[:4]) for x in pair] + adv[4:]
        assert self.pkl and not self.defer and not publish
        a(f"s_cmp_eq_u32 s{sN}, 15\ns_cbranch_scc1 L_tile_last")
        if not self.defer:
            for dt in range(8):
                a(pv(dt, 1))
                for _ in range(3):
                    if rest: a(rest.pop(0))
            assert not rest
        self.probe(6)
        a(f"s_or_b32 s{sT0}, s{sSTAGE}, s{sN}\ns_cbranch_scc1 L_tile_nw\ns_waitcnt vmcnt(0)\nL_tile_nw:")
        if publish:
            a(f"""s_cmp_gt_u32 s{sTY}, s{sLW}
            s_cbranch_scc0 L_tile_np""")
            if not self.follow:
                a(f"s_add_u32 s{sM}, s{sM}, 1\ns_cmp_eq_u32 s{sM}, {self.gate + 1}\ns_cbranch_scc0 L_tile_np\ns_sub_u32 s{sM}, s{sM}, 1")
            a(f"""v_mov_b32 v5, s{sM}
            s_mov_b64 exec, 1
            buffer_store_dword v5, v4, {sr(sWS)}, s{sPADDR} offen sc1
            s_mov_b64 exec, -1
            s_add_u32 s{sM}, s{sM}, 1
            L_tile_np:""")
        a(f"s_add_u32 s{sN}, s{sN}, 1\ns_branch L_tile")
        R = vT + 2
        chain = [x for x in a0[4:] if x] + [x for x in a1 if x]
        chain = [chain[0], chain[2], chain[1], chain[3], chain[4], chain[5]]
        chain += f"""v_add_f32 v{vL0}, v{vL0}, v{vL0+1}
        v_add_f32 v{vL0+1}, v{vL0+2}, v{vL0+3}
        v_mov_b32 v{vL0+2}, v{vL0}
        v_mov_b32 v{vL0+3}, v{vL0+1}
        s_mov_b32 s{sQBUF}, {WR - XR}
        s_add_u32 s{sSTAGE}, s{sSTAGE}, 1
        v_permlane32_swap_b32 v{vL0}, v{vL0+2}
        v_permlane32_swap_b32 v{vL0+1}, v{vL0+3}
        v_add_f32 v{vL0}, v{vL0}, v{vL0+2}
        v_add_f32 v{vL0+1}, v{vL0+1}, v{vL0+3}
        v_mov_b32 v{vL0+2}, v{vL0}
        v_mov_b32 v{vL0+3}, v{vL0+1}
        s_nop 1
        v_permlane16_swap_b32 v{vL0}, v{vL0+2}
        v_permlane16_swap_b32 v{vL0+1}, v{vL0+3}
        v_add_f32 v{R}, v{vL0}, v{vL0+2}
        v_add_f32 v{R-2}, v{vL0+1}, v{vL0+3}
        v_rcp_f32 v{R}, v{R}
        v_rcp_f32 v{R-2}, v{R-2}
        s_nop 0""".split("\n")
        a("L_tile_last:")
        for dt in range(8):
            a(pv(dt, 1))
            for _ in range(3):
                a(chain.pop(0))
        for t in chain:
            a(t)
        mul, put = [], []
        for qt in range(2):
            for p in range(4):
                c = vO + (p*2 + qt)*8
                mul.append("\n".join(f"v_pk_mul_f32 {vr(c+i, 2)}, {vr(c+i, 2)}, {vr(R-2*qt, 2)} op_sel_hi:[1,0]" for i in range(0, 8, 2)))
                put.append("\n".join(f"v_cvt_pk_bf16_f32 v{c+i}, v{c+2*i}, v{c+2*i+1}" for i in range(4)) +
                           f"\nds_write_b128 v{vH + (p&1)}, {vr(c,4)} offset:{2048*qt + 8192*(p>>1)}")
        for k in range(9):
            if k < 8: a(mul[k])
            if k: a(put[k-1])
        self.probe(6)
        a(f"""s_cmp_lt_u32 s{sSTAGE}, 2
        s_cbranch_scc0 L_feed0""")
        for t in adv:
            a(t)
        self.late_wo()
        a(f"""s_mov_b32 s{sOCI}, {7 if self.gmajor else 5}
        s_mov_b32 s{sOG}, 0
        s_waitcnt lgkmcnt(0)
        s_branch L_stage""")
        a("L_feed0:")
        if self.hyb:
            seq = sum((kb | g << 2) << 4*i for i, (kb, g) in enumerate(self.last_seq(c) for c in range(3, 12)))
            a(f"s_mov_b32 s{sBV}, {seq & 0xffffffff}\ns_mov_b32 s{sBV+1}, {seq >> 32}")
        self.prio_set(2)
        a(f"""s_mov_b32 s{sN}, 0
        {self.wo_addr(sRB+3)}
        s_waitcnt lgkmcnt(0)
        L_feed:
        s_barrier""")
        self.probe(0, True)
        if self.probes or self.lite:
            a(f"s_mov_b32 m0, s{sT1}\ns_nop 0")
        nxt = self.wo_addr(sRB+3).replace(f"s{sT0}", f"s{sT2}").replace(f"s{sT1}", f"s{sM}").split("\n")
        nxt = [t for t in nxt if "m0" not in t]
        adv = self.wo_adv()
        if self.hyb:
            adv = f"""s_lshr_b64 {sr(sBV, 2)}, {sr(sBV, 2)}, 4
            s_and_b32 s{sOCI}, s{sBV}, 3
            s_or_b32 s{sOCI}, s{sOCI}, 4
            s_bfe_u32 s{sOG}, s{sBV}, 0x20002
            s_mul_i32 s{sOG}, s{sOG}, 384"""
        between = [adv,
                   f"s_mov_b32 s{sT2}, s{sRB+3}\ns_mov_b32 s{sRB+3}, s{sRB}\ns_mov_b32 s{sRB}, s{sRB+1}\ns_mov_b32 s{sRB+1}, s{sRB+2}\ns_mov_b32 s{sRB+2}, s{sT2}",
                   "\n".join(nxt[:5]), f"s_add_u32 m0, s{sT1}, 4096\n" + "\n".join(nxt[5:]),
                   f"s_add_u32 s{sN}, s{sN}, 1\ns_mov_b32 s{sT1}, s{sM}\ns_cmp_lt_u32 s{sN}, 9", f"s_mov_b32 m0, s{sM}\ns_mov_b32 s{sT0}, s{sT2}"]
        for n in range(6):
            a(f"buffer_load_dwordx4 v{vOVO+n}, {sr(sWO)}, s{sT0} offen offset:{1024*(n&3)}{self.wflag} lds")
            a(between[n])
        self.probe(4)
        a("s_waitcnt vmcnt(12)\ns_cbranch_scc1 L_feed")
        if self.gate:
            a(f"s_or_b32 s{sT0}, s{sTY}, s{sLW}\ns_cbranch_scc1 L_gate")
            self.wait_init(4, 5)
            self.spin(f"buffer_load_dword v5, v4, {sr(sWS)}, s{sPADDR} offen sc1", 5,
                      f"v_readfirstlane_b32 s{sT1}, v5\ns_cmp_ge_u32 s{sT1}, {self.gate}")
            a("L_gate:")
        a("""s_barrier
        s_waitcnt vmcnt(6)
        s_barrier
        s_waitcnt vmcnt(0)
        s_barrier""")
        self.probe_dump()

    def reduce(self):
        a = self.a
        vL, vO0, vD, vSum = 6, 14, 40, 104
        of = ("", " sc1", " nt", " sc0 sc1")[self.outf]
        a("L_reduce:")
        self.stamp(10)
        a(f"""s_setprio 0
        s_lshr_b32 s{sSTAGE}, s{sWAVE}, 2
        s_lshl_b32 s{sT1}, s{sSTAGE}, 2
        s_add_u32 s{sT1}, s{sT1}, {SYNC + 8}
        v_mov_b32 v9, s{sT1}
        s_mov_b32 s{sSPIN}, {SPIN}
        s_cmp_lg_u32 s{sLW}, 0
        s_cbranch_scc1 L_red_work
        s_lshl_b32 s{sT0}, s{sSTAGE}, 14
        s_add_u32 s{sFADDR}, s{sFADDR}, s{sT0}
        v_mov_b32 v4, 0
        v_and_b32 v8, 7, v0
        v_lshlrev_b32 v8, 7, v8
        s_cmp_eq_u32 s{sSTAGE}, 1
        s_cbranch_scc1 L_red_poll""")
        self.wait_init(4, 5)
        a(f"""s_mov_b32 s{sSPIN}, {SPIN}
        L_red_poll:""")
        NP = self.polls
        ld = lambda k: f"buffer_load_dword v{16+k}, v8, {sr(sWS)}, s{sFADDR} offen {('sc1', 'sc0 sc1')[self.flagop == 1]}"
        for k in range(NP - 1):
            a(ld(k) + f"\ns_sleep {self.nap}")
        a("L_red_again:")
        for k in range(NP):
            a(f"""{ld((k + NP - 1) % NP)}
            s_waitcnt vmcnt({NP - 1})
            v_cmp_eq_u32 vcc, 1, v{16+k}
            s_and_b32 s{sT2}, vcc_lo, 0xff
            s_sub_u32 s{sSPIN}, s{sSPIN}, 1
            s_cselect_b32 s{sT2}, 0xff, s{sT2}
            v_mov_b32 v10, s{sT2}
            ds_write_b32 v9, v10
            s_cmp_eq_u32 s{sT2}, 0xff
            s_cbranch_scc1 L_red_end
            s_sleep {self.nap}""")
        a(f"""s_branch L_red_again
        L_red_work:""")
        srd(a, sX, sOUTP, SIZE['out'])
        a(f"""s_lshl_b32 s{sN}, s{sTY}, 3
        s_add_u32 s{sN}, s{sN}, s{sHG}
        s_sub_u32 s{sT0}, s{sLW}, 1
        s_lshl_b32 s{sT0}, s{sT0}, 4
        s_add_u32 s{sN}, s{sN}, s{sT0}
        s_mul_i32 s{sN}, s{sN}, 3
        s_lshl_b32 s{sT0}, s{sSTAGE}, 4
        s_add_u32 s{sT0}, s{sT0}, s{sB}
        s_mul_i32 s{sM}, s{sT0}, {8*PART}
        s_mul_i32 s{sOBASE}, s{sB}, {64*2304}
        s_mul_i32 s{sT0}, s{sSTAGE}, 1152
        s_add_u32 s{sOBASE}, s{sOBASE}, s{sT0}""")
        a(f"""v_bfe_u32 v10, v0, 2, 2
        v_and_b32 v11, 3, v0
        v_bfe_u32 v12, v0, 4, 1""")
        for k in range(2):
            a(f"v_lshrrev_b32 v1, 5, v0\nv_add_u32 v1, s{sN}, v1" if k == 0 else f"s_add_u32 s{sN}, s{sN}, 2\nv_mov_b32 v1, s{sN}")
            a(f"""v_lshrrev_b32 v13, 4, v1
            v_bfe_u32 v16, v1, 3, 1
            v_and_b32 v1, 7, v1
            v_lshl_add_u32 v1, v1, 1, v12
            v_lshl_add_u32 v17, v13, 2, v10
            v_lshl_add_u32 v17, v17, 1, v16
            v_lshl_add_u32 v18, v1, 2, v11
            v_lshlrev_b32 v18, 4, v18
            v_lshl_add_u32 v{vL+k}, v17, 10, v18
            v_lshl_add_u32 v1, v16, 5, v1
            v_mul_u32_u24 v1, 2304, v1
            v_lshl_add_u32 v1, v13, 7, v1
            v_lshl_add_u32 v1, v10, 5, v1
            v_lshl_add_u32 v{vO0+k}, v11, 3, v1""")
            if self.wide:
                a(f"v_and_b32 v1, 1, v0\nv_mul_u32_u24 v1, {16*2304 - 8}, v1\nv_add_u32 v{vO0+k}, v{vO0+k}, v1")
        if self.wide:
            a("v_and_b32 v1, 1, v0\nv_cmp_eq_u32 vcc, 1, v1")
        for i in range(16):
            a(f"v_mov_b32 v{vSum+i}, 0")
        if self.dot:
            a("v_mov_b32 v16, 0x3f80\nv_mov_b32 v17, 0x3f800000")
        a(f"""s_mov_b32 s{sN}, 0
        s_mov_b32 s{sOG}, 0
        L_red_look:
        ds_read_b32 v5, v9
        s_waitcnt lgkmcnt(0)
        v_readfirstlane_b32 s{sT2}, v5
        s_sub_u32 s{sSPIN}, s{sSPIN}, 1
        s_cselect_b32 s{sT2}, 0xff, s{sT2}
        s_andn2_b32 s{sT2}, s{sT2}, s{sN}
        s_cbranch_scc1 L_red_new
        s_getreg_b32 s{sT0}, hwreg(HW_REG_IB_STS)
        s_and_b32 s{sT0}, s{sT0}, 0xc000000f
        s_cselect_b32 s{sT0}, 0, s{sOG}
        s_cmp_lg_u32 s{sT0}, 0
        s_cbranch_scc1 L_red_add
        s_sleep 1
        s_branch L_red_look
        L_red_new:
        s_or_b32 s{sN}, s{sN}, s{sT2}
        s_or_b32 s{sOG}, s{sOG}, s{sT2}""")
        for h in range(8):
            a(f"""s_bitcmp1_b32 s{sT2}, {h}
            s_cbranch_scc0 L_red_h{h}
            s_add_u32 s{sT0}, s{sM}, {h*PART}
            buffer_load_dwordx4 {vr(vD+4*h,4)}, v{vL}, {sr(sWS)}, s{sT0} offen {('sc1', 'sc1', 'sc0 sc1')[self.partop]}
            s_mov_b32 exec_hi, 0
            buffer_load_dwordx4 {vr(vD+32+4*h,4)}, v{vL+1}, {sr(sWS)}, s{sT0} offen {('sc1', 'sc1', 'sc0 sc1')[self.partop]}
            s_mov_b32 exec_hi, -1
            L_red_h{h}:""")
        self.stamp(14)
        if not self.blk:
            a(f"s_cmp_lg_u32 s{sN}, 0xff\ns_cbranch_scc1 L_red_look")
        a("L_red_add:\ns_waitcnt vmcnt(0)")
        for h in range(8):
            a(f"s_bitcmp1_b32 s{sOG}, {h}\ns_cbranch_scc0 L_red_a{h}")
            for k in range(2):
                for i in range(4):
                    r, t = vD + 32*k + 4*h + i, 10 + 2*(i & 1)
                    if self.dot:
                        c = vSum + 8*k + 2*i
                        a(f"v_dot2_f32_bf16 v{c}, v{r}, v16, v{c}\nv_dot2_f32_bf16 v{c+1}, v{r}, v17, v{c+1}")
                        continue
                    a(f"""v_lshlrev_b32 v{t}, 16, v{r}
                    v_and_b32 v{t+1}, 0xffff0000, v{r}
                    v_pk_add_f32 {vr(vSum+8*k+2*i, 2)}, {vr(vSum+8*k+2*i, 2)}, {vr(t, 2)}""")
            a(f"L_red_a{h}:")
        a(f"""s_mov_b32 s{sOG}, 0
        s_cmp_lg_u32 s{sN}, 0xff
        s_cbranch_scc1 L_red_look
        s_add_u32 s{sT0}, s{sOBASE}, {16*2304}""")
        if self.dot:
            a("s_nop 1")
        for k in range(2):
            if k:
                a("s_mov_b32 exec_hi, 0")
            for i in range(4):
                a(f"v_cvt_pk_bf16_f32 v{vSum+16+4*k+i}, v{vSum+8*k+2*i}, v{vSum+8*k+2*i+1}")
            c = vSum + 16 + 4*k
            if self.wide:
                a(f"""v_cndmask_b32 v10, v{c+2}, v{c}, vcc
                v_cndmask_b32 v11, v{c+3}, v{c+1}, vcc
                s_nop 1
                v_mov_b32_dpp v12, v10 quad_perm:[1,0,3,2] row_mask:0xf bank_mask:0xf
                v_mov_b32_dpp v13, v11 quad_perm:[1,0,3,2] row_mask:0xf bank_mask:0xf
                v_cndmask_b32 v{c}, v{c}, v12, vcc
                v_cndmask_b32 v{c+1}, v{c+1}, v13, vcc
                v_cndmask_b32 v{c+2}, v12, v{c+2}, vcc
                v_cndmask_b32 v{c+3}, v13, v{c+3}, vcc
                buffer_store_dwordx4 {vr(c,4)}, v{vO0+k}, {sr(sX)}, s{sOBASE} offen{of}""")
            else:
                a(f"""buffer_store_dwordx2 {vr(c,2)}, v{vO0+k}, {sr(sX)}, s{sOBASE} offen{of}
                buffer_store_dwordx2 {vr(c+2,2)}, v{vO0+k}, {sr(sX)}, s{sT0} offen{of}""")
        a("L_red_end:")
        if self.stamps:
            a("s_mov_b64 exec, -1\ns_waitcnt vmcnt(0)")
            self.stamp(12)
            self.stamp_dump(0)
            self.stamp_dump(1)
            if self.hold:
                a(f"""s_cmp_lg_u32 s2, {self.hwg}
                s_cbranch_scc1 L_end
                s_cmp_lg_u32 s{sWAVE}, 4
                s_cbranch_scc1 L_end
                v_readlane_b32 s{sT0}, v255, 0
                v_readlane_b32 s{sT1}, v255, {self.hi}
                v_readlane_b32 s{sT2}, v255, {self.hj}
                s_sub_u32 s{sT2}, s{sT2}, s{sT1}
                s_add_u32 s{sT2}, s{sT2}, {self.hold*100}
                s_mov_b32 s{sSPIN}, {SPIN}
                L_hold:
                s_memrealtime s[98:99]
                s_waitcnt lgkmcnt(0)
                s_sub_u32 s98, s98, s{sT0}
                s_cmp_ge_u32 s98, s{sT2}
                s_cbranch_scc1 L_end
                s_sub_u32 s{sSPIN}, s{sSPIN}, 1
                s_cbranch_scc0 L_hold""")
        a("s_endpgm")

    def at_rare(self):
        a = self.a
        t, u, al = vT, vP, vP + 2
        a(f"""L_rescale:
        v_mov_b32 v{u}, v{t}
        v_mov_b32 v{u+1}, v{t+1}
        s_nop 1
        v_permlane32_swap_b32 v{t}, v{u}
        v_permlane32_swap_b32 v{t+1}, v{u+1}
        v_max_f32 v{t}, v{t}, v{u}
        v_max_f32 v{t+1}, v{t+1}, v{u+1}
        v_mov_b32 v{u}, v{t}
        v_mov_b32 v{u+1}, v{t+1}
        s_nop 1
        v_permlane16_swap_b32 v{t}, v{u}
        v_permlane16_swap_b32 v{t+1}, v{u+1}
        v_max3_f32 v{t}, v{t}, v{u}, s{sFLOOR}
        v_max3_f32 v{t+1}, v{t+1}, v{u+1}, s{sFLOOR}
        v_max_f32 v{al}, 0, v{t}
        v_max_f32 v{al+2}, 0, v{t+1}
        v_exp_f32 v{al}, -v{al}
        v_exp_f32 v{al+2}, -v{al+2}
        s_mov_b32 s{sTH}, 0x41000000
        s_mov_b32 s{sFLOOR}, 0
        v_mul_f32 v{al}, s{sFIRST}, v{al}
        v_mul_f32 v{al+2}, s{sFIRST}, v{al+2}
        s_mov_b32 s{sFIRST}, 1.0""")
        for qt in range(2):
            for i in range(8):
                a(f"v_sub_f32 v{vS+8*qt+i}, v{vS+8*qt+i}, v{t+qt}")
            for i in range(4):
                a(f"v_sub_f32 v{vNM+4*qt+i}, v{vNM+4*qt+i}, v{t+qt}")
            a(f"v_pk_mul_f32 {vr(vL0+2*qt, 2)}, {vr(vL0+2*qt, 2)}, {vr(al+2*qt,2)} op_sel_hi:[1,0]")
            for p in range(4):
                for i in range(0, 8, 2):
                    c = vO + (p*2 + qt)*8 + i
                    a(f"v_pk_mul_f32 {vr(c,2)}, {vr(c,2)}, {vr(al+2*qt,2)} op_sel_hi:[1,0]")
        a("s_branch L_tile_exp")

    def main(self):
        a = self.a
        self.prologue()
        a(f"s_cmp_ge_u32 s{sWAVE}, 4\ns_cbranch_scc1 L_pj")
        if self.inl:
            self.at_first()
            self.subs()
        else:
            a("s_branch L_at")
            self.subs()
            self.at_first()
        self.pj_first()
        self.pj_setup()
        self.at_rest()
        self.reduce()
        self.at_rare()
        self.pj_rest()
        a("L_end:\ns_endpgm")
        return a.text()


HEADER = open("cdna_kernels/" + NAME + ".s.ref").read().split("; Override launch geometry")[0]


ABOUT = """; Fused two-branch attention block, one launch, one 512-thread workgroup per CU.
"""


def build(**kw):
    return HEADER + ABOUT + single(Gen(**kw).main(), 256, 512, LDS_BYTES, vgpr=256, accum=256, sgpr=102)


if __name__ == "__main__":
    kw = {}
    for x in sys.argv[2:]:
        k, v = x.split("=")
        kw[k] = int(v, 0)
    open(sys.argv[1], "w").write(build(**kw))
```

```python
import sys, struct
sys.path.insert(0, "tools")
from asmlib import *

KERNEL = NAME + "_kernel"
R0, R1, R2, WR, XR = 0, 32768, 65536, 98304, 131072
SYNC = WR + 24576
LDS_BYTES = 163840
PART = 73728
FLAG_OFF = 32 << 20
PROBE_OFF = 241 << 20
QSCALE = 1.4426950408889634 / 128 ** 0.5
SPIN = 1 << 16


def fbits(x):
    return "0x%08x" % struct.unpack("<I", struct.pack("<f", x))[0]


sWAVE, sLW, sHG, sTY, sB = 3, 4, 5, 6, 7
sK, sV, sX, sWQ, sWO, sWS = 8, 12, 16, 20, 24, 28
sKVOFF, sKVM0, sKVN = 32, 33, 34
sWCOL, sWCH, sWN = 35, 36, 37
sXBASE, sXCH, sXN = 38, 39, 40
sOCI, sOBASE, sROT = 41, 42, 43
sN, sM = 44, 45
sT0, sT1, sT2 = 46, 47, 48
sBUFSZ, sRINGEND, sWBUF, sOLW, sOBUF, sTHR, sKVCNT = 49, 50, 51, 52, 53, 54, 55
sTH, sFLOOR, sRPOS, sSTAGE = 56, 57, 58, 59
sRB = 60
sRET = 64
sFIRST, sQBUF, sSLOT = 66, 67, 68
sC8K = 67
sWB = 69
sBV, sPT = 72, 76
sOUTP, sDBGP = 80, 82
sTN, sLAST, sPADDR, sTBASE = 84, 85, 86, 87
sFADDR, sSPIN, sPROG, sOG = 88, 89, 90, 91
sBXP, sBWP = 92, 94

vKVO, vVVO, vXVO, vOVO, vWVO = 8, 12, 14, 16, 22
vWA, vWA0, vQW = 24, 28, 29
vOA0, vOA, vST = 24, 27, 30
vXA0, vXA, vZ = 31, 33, 35
vFA, vFB, vACC = 36, 72, 104
vPR, vDUM = 4, 5
vKA, vVA, vH, vT, vL0 = 24, 28, 38, 40, 76
vP, vS, vNM, vQ, vKF, vVF, vO = 44, 52, 68, 84, 116, 148, 180


def vr(i, n):
    return f"v[{i}:{i+n-1}]"


def sr(i, n=4):
    return f"s[{i}:{i+n-1}]"


class Lg:
    def __init__(self, a):
        self.a, self.q = a, []
    def issue(self, text, tag):
        if len(self.q) == 15:
            self.wait(self.q[0])
        self.a(text)
        self.q.append(tag)
    def wait(self, *tags):
        idx = max((i for i, t in enumerate(self.q) if t in tags), default=-1)
        if idx < 0:
            return
        self.a(f"s_waitcnt lgkmcnt({len(self.q) - idx - 1})")
        self.q = self.q[idx + 1:]
    def drain(self):
        self.a("s_waitcnt lgkmcnt(0)")
        self.q = []


DEFAULTS = dict(stamps=0, probes=0, vmprobe=2, thr=63, prefill=8, store0=4, store1=8, ipf=1, touch=0, xtouch=1,
                prio=7, gate=0, thrmask=0xffffffff, help=16, lead0=3, lead1=6, kvnt=1, pace=99, dbgst=0, ahead=4, from_=0, bthr=63, polls=1, nap=2, sdw=1, alate=0, wqat=4, diag=0, hrot=0, early_n=0, ahead0=0, hold=0, hi=0, hj=0, hwg=8, xplan=3, xfrom=1, aidle=0, adist=2, outf=1, stp=3, gmajor=0, stp0=12, pkl=1, flagop=0, partop=0, defer=0, wpol=0, blk=0, dot=0, wmap=0, wide=1, inl=1, lite=0, prefa=8, front=100, hyb=1, thr2=0)


class Gen:
    def __init__(self, **kw):
        self.a = Asm()
        self.o = dict(DEFAULTS)
        assert set(kw) <= set(DEFAULTS), kw
        self.o.update(kw)
        for k, v in self.o.items():
            setattr(self, k, v)
        self.kvflag = ("", " nt", " sc1 nt", " sc0 sc1 nt", " sc0 nt")[self.kvnt]
        self.wflag = ("", " sc1", " sc0 sc1", " sc0")[self.wpol]
        self.follow = (self.help and self.ahead < 0) or self.pace < 99
        self.NA = 4 + bool(self.help) + bool(self.follow)
        self.uid = 0
        assert not (self.gate or self.follow)
        assert self.pkl or not self.defer
        assert not (self.help and self.ahead < 0 and self.touch)

    def lab(self, s):
        self.uid += 1
        return f"L_{s}{self.uid}"

    def stamp(self, k):
        if self.stamps:
            self.a(f"s_memrealtime s[98:99]\ns_memtime s[100:101]\ns_waitcnt lgkmcnt(0)\nv_writelane_b32 v255, s98, {k}\nv_writelane_b32 v255, s100, {16+k}")

    def stamp_dump(self, role):
        if self.stamps:
            l = self.lab("sd")
            self.a(f"""s_cmp_lg_u32 s{sWAVE}, {4*role + self.sdw}
            s_cbranch_scc1 {l}
            s_lshl_b32 s{sT0}, s2, 8
            s_add_u32 s{sT0}, s{sT0}, {STAMP_OFF + 128*role}
            v_lshlrev_b32 v1, 2, v0
            s_mov_b64 exec, 0xffffffff
            buffer_store_dword v255, v1, {sr(sWS)}, s{sT0} offen
            s_mov_b64 exec, -1""")
            if self.lite and role:
                self.a(f"s_add_u32 s{sT0}, s{sT0}, {(1 << 20) - 128}\nbuffer_store_dword v254, v1, {sr(sWS)}, s{sT0} offen")
            if self.dbgst:
                srd(self.a, sPT, sDBGP, 256)
                self.a(f"""s_cmp_lg_u32 s{sTY}, {self.dbgst - 1}
                s_cbranch_scc1 {l}
                v_not_b32 v11, v255
                v_cmp_eq_u32 vcc, 0, v0
                s_nop 1
                v_cndmask_b32 v11, v255, v11, vcc
                s_mov_b64 exec, {0x3ff if role else 0x1c00}
                buffer_atomic_umax v11, v1, {sr(sPT)}, 0 offen sc1
                s_mov_b64 exec, -1""")
            self.a(f"{l}:")

    def probe(self, k, first=False):
        if self.lite and first:
            self.a(f"s_add_u32 s{sSLOT}, s{sSLOT}, 1\ns_memrealtime s[98:99]\ns_waitcnt lgkmcnt(0)\ns_mov_b32 m0, s{sSLOT}\nv_writelane_b32 v254, s98, m0")
        if self.probes:
            if first:
                self.a(f"s_add_u32 s{sSLOT}, s{sSLOT}, 1")
            self.a(f"s_memtime s[98:99]\ns_getreg_b32 s100, hwreg(HW_REG_IB_STS)\ns_waitcnt lgkmcnt(0)\ns_mov_b32 m0, s{sSLOT}\nv_writelane_b32 v{248+k}, s98, m0")
            if k == self.vmprobe:
                self.a("v_writelane_b32 v251, s100, m0")

    def early(self, lane):
        if self.probes:
            self.a(f"s_memtime s[98:99]\ns_waitcnt lgkmcnt(0)\nv_writelane_b32 v255, s98, {lane}")

    def probe_dump(self):
        if self.probes:
            l = self.lab("pd")
            self.a(f"""s_cmp_lg_u32 s{sLW}, 0
            s_cbranch_scc1 {l}
            s_lshl_b32 s{sT0}, s2, 1
            s_lshr_b32 s{sT1}, s{sWAVE}, 2
            s_add_u32 s{sT0}, s{sT0}, s{sT1}
            s_lshl_b32 s{sT0}, s{sT0}, 11
            s_add_u32 s{sT0}, s{sT0}, {PROBE_OFF}
            v_lshlrev_b32 v1, 2, v0""")
            for k in range(8):
                self.a(f"buffer_store_dword v{248+k}, v1, {sr(sWS)}, s{sT0} offen offset:{256*k}")
            self.a(f"{l}:")

    def prio_set(self, bit, off=None):
        if self.prio >> bit & 1:
            self.a("s_setprio 1")
        elif off is not None and self.prio >> off & 1:
            self.a("s_setprio 0")

    def call(self, name):
        self.a(f"s_call_b64 {sr(sRET, 2)}, {name}")

    def ret(self):
        self.a(f"s_setpc_b64 {sr(sRET, 2)}")

    def spread(self, base, fill, start=0):
        n, m = (len(base) - start) * self.front // 100, len(fill)
        j = 0
        for k, t in enumerate(base):
            while k >= start and j < m and j * n <= (k - start) * m:
                self.a(fill[j]); j += 1
            if callable(t): t()
            else: self.a(t)
        for t in fill[j:]:
            self.a(t)

    def other_srd(self, dst, karg_off, size):
        self.a(f"""s_load_dwordx2 {sr(dst, 2)}, s[0:1], {karg_off}
        s_waitcnt lgkmcnt(0)
        s_and_b32 s{dst+1}, s{dst+1}, 0xffff
        s_mov_b32 s{dst+2}, {size}
        s_mov_b32 s{dst+3}, 0x20000""")

    def spin(self, load, vdst, done):
        l, e = self.lab("sp"), self.lab("se")
        self.a(f"""s_mov_b32 s{sSPIN}, {SPIN}
        {l}:
        {load}
        s_waitcnt vmcnt(0) lgkmcnt(0)
        {done}
        s_cbranch_scc1 {e}
        s_sleep 1
        s_sub_u32 s{sSPIN}, s{sSPIN}, 1
        s_cmp_lg_u32 s{sSPIN}, 0
        s_cbranch_scc1 {l}
        {e}:""")

    def wait_init(self, vz, vd):
        srd(self.a, sPT, sDBGP, 256)
        self.a(f"s_lshl_b32 s{sT2}, s{sB}, 2")
        self.spin(f"buffer_load_dword v{vd}, v{vz}, {sr(sPT)}, s{sT2} offen offset:{128*bool(self.dbgst)} sc1", vd,
                  f"v_readfirstlane_b32 s{sT1}, v{vd}\ns_cmp_ge_u32 s{sT1}, 16")

    def decode(self):
        if self.wmap == 0:
            return f"s_lshr_b32 s{sTY}, s2, 3\ns_and_b32 s{sTY}, s{sTY}, 1\ns_lshr_b32 s{sB}, s2, 4"
        return f"s_lshr_b32 s{sTY}, s2, 7\ns_xor_b32 s{sTY}, s{sTY}, {self.wmap - 1}\ns_lshr_b32 s{sB}, s2, 3\ns_and_b32 s{sB}, s{sB}, 15"

    def prologue(self):
        a = self.a
        a("s_cmp_ge_u32 s2, 256\ns_cbranch_scc1 L_end")
        if self.probes or self.stamps:
            a("s_memtime s[96:97]" if self.probes else "s_memrealtime s[96:97]")
        a(f"""s_load_dwordx2 s[68:69], s[0:1], 96
        s_load_dwordx4 {sr(sOUTP)}, s[0:1], 80
        s_load_dwordx2 {sr(sBXP, 2)}, s[0:1], 40
        s_load_dwordx2 {sr(sBWP, 2)}, s[0:1], 64
        s_and_b32 s{sHG}, s2, 7
        {self.decode()}
        s_mul_i32 s{sT0}, s{sTY}, 40
        s_add_u32 s0, s0, s{sT0}
        s_addc_u32 s1, s1, 0
        s_load_dwordx8 s[56:63], s[0:1], 0
        s_load_dwordx2 s[70:71], s[0:1], 32""")
        if self.ipf:
            a(f"""s_getpc_b64 {sr(sT0, 2)}
            L_pc:
            s_sub_u32 s{sT0}, s{sT0}, L_pc-{KERNEL}
            s_subb_u32 s{sT0+1}, s{sT0+1}, 0
            s_and_b32 s{sT2}, s2, 0xf8
            v_lshrrev_b32 v1, 6, v0
            v_add_lshl_u32 v6, v1, s{sT2}, 7
            v_min_u32 v6, L_end-{KERNEL}, v6
            v_mov_b32 v7, s{sT0+1}
            v_add_co_u32 v6, vcc, s{sT0}, v6
            s_nop 1
            v_addc_co_u32 v7, vcc, 0, v7, vcc
            global_load_dword v{vFA+32}, v[6:7], off""")
        a(f"""v_lshrrev_b32 v1, 6, v0
        v_and_b32 v0, 63, v0
        v_readfirstlane_b32 s{sWAVE}, v1
        v_lshrrev_b32 v2, 4, v0
        v_and_b32 v3, 15, v0
        s_and_b32 s{sLW}, s{sWAVE}, 3
        v_lshrrev_b32 v4, 3, v0
        v_and_b32 v5, 7, v0
        v_mul_u32_u24 v7, 1152, v4""")
        for n in range(2):
            a(f"""v_add_u32 v6, {4*n}, v2
            v_xor_b32 v6, v6, v5
            v_lshl_add_u32 v6, v6, 4, v7
            v_add_u32 v{vXVO+n}, {n*(8*1152-1024)}, v6""")
        a(f"""v_and_b32 v1, 1, v2
        v_lshlrev_b32 v1, 1, v1
        v_xor_b32 v1, v1, v5
        v_lshlrev_b32 v1, 4, v1
        v_lshl_add_u32 v{vWVO}, v4, 13, v1
        v_xor_b32 v{vWVO+1}, 64, v{vWVO}
        s_lshl_b32 s{sWCOL}, s{sHG}, 10
        s_lshl_b32 s{sT0}, s{sLW}, 7
        s_add_u32 s{sWCOL}, s{sWCOL}, s{sT0}
        s_mov_b32 s{sWN}, 0
        s_mul_i32 s{sT0}, s{sHG}, {self.hrot}
        s_add_u32 s{sT0}, s{sT0}, s{sB}
        s_mul_i32 s{sT1}, s{sT0}, 57
        s_lshr_b32 s{sT1}, s{sT1}, 9
        s_mul_i32 s{sT1}, s{sT1}, 9
        s_sub_u32 s{sXCH}, s{sT0}, s{sT1}
        s_mov_b32 s{sWCH}, s{sXCH}
        s_mul_i32 s{sXBASE}, s{sB}, 73728
        s_mul_i32 s{sT0}, s{sLW}, 18432
        s_add_u32 s{sXBASE}, s{sXBASE}, s{sT0}
        s_lshl_b32 s{sT0}, s{sB}, 3
        s_add_u32 s{sT0}, s{sT0}, s{sHG}
        s_lshl_b32 s{sPADDR}, s{sT0}, 7
        s_add_u32 s{sPADDR}, s{sPADDR}, {FLAG_OFF + 32768}
        s_lshl_b32 s{sFADDR}, s{sB}, 10
        s_add_u32 s{sFADDR}, s{sFADDR}, {FLAG_OFF}
        s_waitcnt lgkmcnt(0)""")
        srd(a, sX, 56, SIZE['A_x'])
        srd(a, sWQ, 62, SIZE['A_wq'])
        if self.probes or self.stamps:
            self.late_srds()
        if self.probes or self.stamps:
            a(f"s_mov_b32 s{sSLOT}, -1")
            for k in range(8):
                a(f"v_mov_b32 v{248+k}, 0")
            a("v_writelane_b32 v255, s96, 0")
            self.early(1)

    def late_srds(self):
        a = self.a
        a(f"""s_mov_b32 s{sK}, s58
        s_and_b32 s{sK+1}, s59, 0xffff
        s_lshl_b32 s{sK+2}, {SIZE['A_k']}, s{sTY}
        s_mov_b32 s{sK+3}, 0x20000
        s_mov_b32 s{sV}, s60
        s_and_b32 s{sV+1}, s61, 0xffff
        s_mov_b32 s{sV+2}, s{sK+2}
        s_mov_b32 s{sV+3}, 0x20000""")
        srd(a, sWO, 70, SIZE['A_wo'])
        srd(a, sWS, 68, SIZE['ws'])
        srd(a, sBV, 60, 0)

    def late_common(self):
        a = self.a
        a(f"""s_lshl_b32 s{sBUFSZ}, 16384, s{sTY}
        s_lshl_b32 s{sT0}, 2048, s{sTY}
        s_mul_i32 s{sKVM0}, s{sT0}, s{sLW}
        s_add_u32 s{sRINGEND}, s{sKVM0}, 98304
        s_lshl_b32 s{sT0}, s{sB}, 3
        s_add_u32 s{sT0}, s{sT0}, s{sHG}
        s_lshl_b32 s{sTBASE}, s{sT0}, 19
        s_add_u32 s{sT1}, s{sTY}, 18
        s_lshl_b32 s{sKVOFF}, s{sT0}, s{sT1}
        s_lshr_b32 s{sT0}, s{sLW}, 1
        s_lshl_b32 s{sT0}, s{sT0}, 17
        s_and_b32 s{sT1}, s{sLW}, 1
        s_lshl_b32 s{sT2}, s{sT1}, 12
        s_add_u32 s{sT0}, s{sT0}, s{sT2}
        s_add_u32 s{sTBASE}, s{sTBASE}, s{sT0}
        s_cmp_eq_u32 s{sTY}, 1
        s_cselect_b32 s{sT0}, s{sT0}, s{sKVM0}
        s_add_u32 s{sKVOFF}, s{sKVOFF}, s{sT0}
        s_lshl_b32 s{sT1}, s{sT1}, 3
        s_cmp_eq_u32 s{sTY}, 1
        s_cselect_b32 s{sT1}, 0, s{sT1}
        s_mov_b32 s{sKVN}, 0
        v_lshlrev_b32 v6, 8, v2
        v_add_u32 v7, s{sT1}, v2""")
        for n in range(4):
            a(f"""v_add_u32 v1, {4*n}, v7
            v_xor_b32 v1, v1, v3
            v_and_b32 v1, 15, v1
            v_lshl_add_u32 v{vKVO+n}, v1, 4, v6""")
        a(f"""v_lshlrev_b32 v1, 1, v2
        v_xor_b32 v1, v1, v3
        v_lshl_add_u32 v{vVVO}, v1, 4, v6
        v_xor_b32 v{vVVO+1}, 128, v{vVVO}""")

    def late_wo(self):
        a = self.a
        for n in range(6):
            a(f"""v_add_u32 v1, {64*n}, v0
            v_mul_u32_u24 v6, 2731, v1
            v_lshrrev_b32 v6, 16, v6
            v_mul_u32_u24 v7, 24, v6
            v_sub_u32 v1, v1, v7
            v_and_b32 v7, 6, v6
            v_xor_b32 v1, v1, v7
            v_lshlrev_b32 v1, 4, v1
            v_mul_u32_u24 v6, 1152, v6
            v_add_u32 v1, v1, v6
            v_subrev_u32 v{vOVO+n}, {1024*(n&3)}, v1""")
        a(f"""s_lshl_b32 s{sT0}, s{sHG}, 9
        s_lshl_b32 s{sT1}, s{sLW}, 4
        s_add_u32 s{sT0}, s{sT0}, s{sT1}
        s_mul_i32 s{sOBASE}, s{sT0}, 1152
        s_and_b32 s{sROT}, s{sB}, 3
        s_mul_i32 s{sOLW}, s{sLW}, 6144
        s_cmp_eq_u32 s{sTY}, 1
        s_mov_b32 s{sRB}, {WR}
        s_mov_b32 s{sRB+1}, {R2}
        s_cselect_b32 s{sRB+2}, {R0}, {R1}
        s_cselect_b32 s{sRB+3}, {R1}, {R0}""")

    def x_adv(self):
        self.a(f"""s_add_u32 s{sXN}, s{sXN}, 1
        s_add_u32 s{sXCH}, s{sXCH}, 1
        s_cmp_eq_u32 s{sXCH}, 9
        s_cselect_b32 s{sXCH}, 0, s{sXCH}""")

    def kv_items_b(self):
        f = self.kvflag
        items = []
        for n in range(8):
            t = ""
            if n == 0:
                t += f"s_mov_b32 m0, s{sKVM0}\ns_cmp_eq_u32 s{sKVN}, 15\n"
            if n == 4:
                t += f"s_add_u32 m0, s{sKVM0}, 16384\ns_add_u32 s{sKVM0}, s{sKVM0}, 32768\n"
            if self.bthr < 63:
                t += f"s_waitcnt vmcnt({self.bthr - 1})\n"
            if n < 4:
                t += f"buffer_load_dwordx4 v{vKVO+n}, {sr(sK)}, s{sKVOFF} offen offset:{1024*n}{f} lds\n"
            else:
                t += f"buffer_load_dwordx4 v{vVVO+(n&1)}, {sr(sV)}, s{sKVOFF} offen offset:{1024*(n-4)}{f} lds\n"
            if n == 0:
                t += f"s_cselect_b32 s{sKVCNT}, 131072, 0\ns_add_u32 s{sKVCNT}, s{sKVCNT}, 8192\ns_add_u32 s{sKVN}, s{sKVN}, 1\n"
            if n == 7:
                t += f"""s_add_u32 s{sKVOFF}, s{sKVOFF}, s{sKVCNT}
                s_cmp_ge_u32 s{sKVM0}, s{sRINGEND}
                s_cselect_b32 s{sKVCNT}, 98304, 0
                s_sub_u32 s{sKVM0}, s{sKVM0}, s{sKVCNT}"""
            items.append(t)
        return items

    def last_seq(self, c):
        if self.hyb and c >= 6:
            return 2 + (c - 6) % 2, (c - 6) // 2
        return c // 3, c % 3

    def wo_addr(self, buf):
        return f"""s_add_u32 s{sT0}, s{sOCI}, s{sROT}
                s_and_b32 s{sT0}, s{sT0}, 3
                s_lshr_b32 s{sT1}, s{sOCI}, 2
                s_lshl_b32 s{sT1}, s{sT1}, 2
                s_add_u32 s{sT0}, s{sT0}, s{sT1}
                s_mul_i32 s{sT0}, s{sT0}, 73728
                s_add_u32 s{sT0}, s{sT0}, s{sOG}
                s_add_u32 s{sT1}, s{buf}, s{sOLW}
                s_mov_b32 m0, s{sT1}
                s_add_u32 s{sT0}, s{sT0}, s{sOBASE}"""

    def wo_adv(self):
        if self.gmajor:
            l, e = self.lab("wa"), self.lab("we")
            return f"""s_cmp_ge_u32 s{sOCI}, 4
                s_cbranch_scc1 {l}
                s_add_u32 s{sOG}, s{sOG}, 384
                s_cmp_eq_u32 s{sOG}, 1152
                s_cselect_b32 s{sOG}, 0, s{sOG}
                s_addc_u32 s{sOCI}, s{sOCI}, 0
                s_branch {e}
                {l}:
                s_add_u32 s{sOCI}, s{sOCI}, 1
                s_cmp_eq_u32 s{sOCI}, 8
                s_cselect_b32 s{sOCI}, 4, s{sOCI}
                s_cselect_b32 s{sT0}, 384, 0
                s_add_u32 s{sOG}, s{sOG}, s{sT0}
                {e}:"""
        return f"""s_add_u32 s{sOG}, s{sOG}, 384
                s_cmp_eq_u32 s{sOG}, 1152
                s_cselect_b32 s{sOG}, 0, s{sOG}
                s_addc_u32 s{sOCI}, s{sOCI}, 0"""

    def wo_items(self):
        items = []
        for n in range(6):
            t = self.wo_addr(sOBUF) + "\n" if n == 0 else ""
            if n == 4:
                t += f"s_add_u32 m0, s{sT1}, 4096\ns_nop 0\n"
            t += f"buffer_load_dwordx4 v{vOVO+n}, {sr(sWO)}, s{sT0} offen offset:{1024*(n&3)}{self.wflag} lds\n"
            if n == 5:
                t += self.wo_adv()
            items.append(t)
        return items

    def w_items(self, back=False):
        items = []
        for n in range(8):
            if n == 0:
                t = f"s_lshl_b32 s{sT0}, s{sWCH}, 19\ns_add_u32 s{sT0}, s{sT0}, s{sWCOL}\ns_mov_b32 m0, s{sWBUF}\n"
                t += f"s_sub_u32 s{sWCH}, s{sWCH}, 1\ns_cselect_b32 s{sWCH}, 8, s{sWCH}\n" if back else f"s_add_u32 s{sWCH}, s{sWCH}, 1\n"
            elif n == 4:
                t = f"s_add_u32 m0, s{sWBUF}, 4096\ns_add_u32 s{sT0}, s{sT0}, {65536+3072}\n"
            else:
                t = f"s_add_u32 s{sT0}, s{sT0}, {65536-1024}\n"
            t += f"buffer_load_dwordx4 v{vWVO+(n&1)}, {sr(sWQ)}, s{sT0} offen offset:{1024*(n&3)}{self.wflag} lds\n"
            if n == 7 and not back:
                t += f"""s_cmp_eq_u32 s{sWCH}, 9
                s_cselect_b32 s{sWCH}, 0, s{sWCH}
                s_add_u32 s{sWN}, s{sWN}, 1
                s_cmp_eq_u32 s{sWN}, 9
                s_cselect_b32 s{sT1}, 512, 0
                s_add_u32 s{sWCOL}, s{sWCOL}, s{sT1}"""
            items.append(t)
        return items

    def x_body(self):
        a = self.a
        a(f"""s_lshl_b32 s{sT0}, s{sXCH}, 7
        s_add_u32 s{sT0}, s{sT0}, s{sXBASE}
        s_and_b32 s{sT1}, s{sXN}, 3
        s_lshl_b32 s{sT1}, s{sT1}, 2
        s_add_u32 s{sT1}, s{sT1}, s{sLW}
        s_lshl_b32 s{sT1}, s{sT1}, 11
        s_add_u32 m0, s{sT1}, {XR}""")
        self.x_adv()
        for n in range(2):
            a(f"buffer_load_dwordx4 v{vXVO+n}, {sr(sX)}, s{sT0} offen offset:{1024*n} lds")

    def subs(self):
        a = self.a
        f = self.kvflag
        a("F_x:")
        self.x_body()
        self.ret()
        a("F_w:")
        for t in self.w_items():
            a(t)
        self.ret()
        a(f"""F_kv:
        s_cmp_eq_u32 s{sTY}, 0
        s_cbranch_scc1 F_kv_a""")
        for t in self.kv_items_b():
            a(t)
        a(f"s_mov_b32 s{sKVCNT}, 8")
        self.ret()
        a(f"""F_kv_a:
        s_mov_b32 s{sKVCNT}, 0
        s_cmp_ge_u32 s{sKVN}, 32
        s_cbranch_scc1 F_kv_ret""")
        if self.follow:
            a(f"""s_cmp_eq_u32 s{sTHR}, 0
            s_cbranch_scc1 F_kv_go
            s_waitcnt vmcnt(0)
            v_readfirstlane_b32 s{sPROG}, v{vPR}""")
            if self.pace < 99:
                check = f"s_add_u32 s{sT1}, s{sPROG}, {self.pace}\ns_cmp_ge_u32 s{sT1}, s{sKVN}"
                a(check + "\ns_cbranch_scc1 F_kv_go")
                self.spin(f"buffer_load_dword v{vPR}, v{vZ}, {sr(sWS)}, s{sPADDR} offen sc1", vPR,
                          f"v_readfirstlane_b32 s{sPROG}, v{vPR}\n" + check)
            a("F_kv_go:")
        a(f"""s_mov_b32 m0, s{sKVM0}
        s_mov_b32 s{sKVCNT}, 4""")
        if self.thr < 63:
            a(f"s_lshr_b32 s{sT1}, {self.thrmask}, s{sKVN}\ns_and_b32 s{sT1}, s{sT1}, s{sTHR}")
        for n in range(4):
            if self.thr < 63:
                l = self.lab("thr")
                if self.thr2:
                    a(f"s_cmp_eq_u32 s{sTHR}, 0\ns_cbranch_scc1 {l}\ns_waitcnt vmcnt({self.thr2-1})")
                a(f"s_cmp_eq_u32 s{sT1}, 0\ns_cbranch_scc1 {l}\ns_waitcnt vmcnt({self.thr-1})\n{l}:")
            if n == 2:
                a(f"s_add_u32 m0, s{sKVM0}, 8192\ns_add_u32 s{sKVN}, s{sKVN}, 1")
            if n < 2:
                a(f"buffer_load_dwordx4 v{vKVO+n}, {sr(sK)}, s{sKVOFF} offen offset:{1024*n}{f} lds")
            else:
                a(f"buffer_load_dwordx4 v{vVVO+(n&1)}, {sr(sV)}, s{sKVOFF} offen offset:{1024*(n-2)}{f} lds")
        a(f"""s_add_u32 s{sKVOFF}, s{sKVOFF}, 8192
        s_add_u32 s{sKVM0}, s{sKVM0}, 16384
        s_cmp_ge_u32 s{sKVM0}, s{sRINGEND}
        s_cselect_b32 s{sT0}, 98304, 0
        s_sub_u32 s{sKVM0}, s{sKVM0}, s{sT0}""")
        if self.follow or self.help:
            a(f"s_cmp_eq_u32 s{sTHR}, 0\ns_cbranch_scc1 F_kv_ret")
        if self.help:
            if self.ahead < 0:
                a(f"""s_add_u32 s{sT1}, s{sPROG}, {self.lead0}
                s_max_u32 s{sTN}, s{sTN}, s{sT1}
                s_add_u32 s{sT1}, s{sPROG}, {self.lead1}
                s_min_u32 s{sT1}, s{sT1}, 31
                s_cmp_le_u32 s{sTN}, s{sT1}
                s_cselect_b32 s{sLAST}, s{sTN}, s{sLAST}
                s_addc_u32 s{sTN}, s{sTN}, 0""")
            else:
                a(f"""s_cmp_lt_u32 s{sKVN}, {self.early_n}
                s_cselect_b32 s{sLAST}, {self.ahead0}, {self.ahead}
                s_add_u32 s{sLAST}, s{sKVN}, s{sLAST}
                s_min_u32 s{sLAST}, s{sLAST}, 31
                s_max_u32 s{sLAST}, s{sLAST}, {self.from_}""")
            a(f"""s_and_b32 s{sT0}, s{sLAST}, 15
            s_lshl_b32 s{sT0}, s{sT0}, 13
            s_lshr_b32 s{sT1}, s{sLAST}, 4
            s_lshl_b32 s{sT1}, s{sT1}, 18
            s_add_u32 s{sT0}, s{sT0}, s{sT1}
            s_add_u32 s{sT0}, s{sT0}, s{sTBASE}
            v_lshlrev_b32 v1, 7, v0
            s_mov_b64 exec, {(1 << self.help) - 1}
            buffer_load_dword v{vDUM}, v1, {sr(sBV)}, s{sT0} offen offset:{4096 - 128*self.help}
            s_mov_b64 exec, -1""")
        if self.follow:
            a(f"buffer_load_dword v{vPR}, v{vZ}, {sr(sWS)}, s{sPADDR} offen sc1")
        a("F_kv_ret:")
        self.ret()
        a("F_wo:")
        for t in self.wo_items():
            a(t)
        self.ret()

    def kvwait(self, more=0):
        l = self.lab("kw")
        self.a(f"""s_waitcnt vmcnt({8 + more})
        s_cmp_eq_u32 s{sKVCNT}, 8
        s_cbranch_scc1 {l}
        s_waitcnt vmcnt({self.NA + more})
        s_cmp_eq_u32 s{sKVCNT}, 4
        s_cbranch_scc1 {l}
        s_waitcnt vmcnt({more})
        {l}:""")

    def pretouch_wq(self, dst):
        if not self.touch & 33:
            return
        a = self.a
        l = self.lab("pt")
        a(f"s_cmp_eq_u32 s{sTY}, 1\ns_cbranch_scc1 {l}")
        srd(a, sPT, sBWP, SIZE['B_wq'])
        a(f"""s_lshl_b32 s{sT0}, s{sB}, 2
        s_add_u32 s{sT0}, s{sT0}, s{sLW}
        s_mul_i32 s{sT0}, s{sT0}, {9*8192}
        s_lshl_b32 s{sT1}, s{sHG}, 10
        s_add_u32 s{sT0}, s{sT0}, s{sT1}
        v_lshrrev_b32 v1, 2, v0
        v_and_b32 v6, 3, v0
        v_lshlrev_b32 v6, 7, v6
        v_lshl_add_u32 v1, v1, 13, v6
        s_mov_b32 exec_hi, 15
        buffer_load_dword v{dst}, v1, {sr(sPT)}, s{sT0} offen offset:512""")
        if self.touch & 2:
            a(f"buffer_load_dword v{dst+1}, v1, {sr(sWQ)}, s{sT0} offen offset:512")
        a(f"s_mov_b64 exec, -1\n{l}:")

    def touch_own_last(self):
        l = self.lab("tl")
        if not self.touch & 16:
            self.a(f"s_cmp_eq_u32 s{sTY}, 1\ns_cbranch_scc1 {l}")
        self.a(f"""s_lshl_b32 s{sT0}, s{sB}, 2
        s_add_u32 s{sT0}, s{sT0}, s{sLW}
        s_mul_i32 s{sT0}, s{sT0}, 4608
        s_mul_i32 s{sT1}, s{sHG}, 589824
        s_add_u32 s{sT0}, s{sT0}, s{sT1}
        s_add_u32 s{sT0}, s{sT0}, 294912
        v_lshlrev_b32 v1, 7, v0
        s_mov_b32 exec_hi, 15
        buffer_load_dword v{vDUM}, v1, {sr(sWO)}, s{sT0} offen
        s_mov_b64 exec, -1
        {l}:""")

    def pretouch_wo(self, first):
        if not self.touch & 1:
            return
        a = self.a
        l = self.lab("pt")
        a(f"s_cmp_eq_u32 s{sTY}, 1\ns_cbranch_scc1 {l}")
        if first:
            self.other_srd(sPT, 72, SIZE['B_wo'])
            a(f"""s_lshl_b32 s{sT0}, s{sB}, 2
            s_add_u32 s{sT0}, s{sT0}, s{sLW}
            s_mul_i32 s{sT0}, s{sT0}, 9216
            s_mul_i32 s{sTN}, s{sHG}, 589824
            s_add_u32 s{sTN}, s{sTN}, s{sT0}""")
        else:
            a(f"v_lshlrev_b32 v1, 7, v0\ns_mov_b64 exec, 0xfff\nbuffer_load_dword v{vFA+32}, v1, {sr(sPT)}, s{sTN} offen")
            if self.touch & 2:
                a(f"buffer_load_dword v{vFA+33}, v1, {sr(sWO)}, s{sTN} offen")
            a(f"s_mov_b64 exec, -1\ns_add_u32 s{sTN}, s{sTN}, 1536")
        a(f"{l}:")

    def rdA(self, reg, areg, mt, off0, off1, tag):
        return [(f"ds_read_b64_tr_b16 {vr(reg + 2*j, 2)}, v{areg+mt} offset:{o}", tag + (j,)) for j, o in enumerate((off0, off1))]

    def rdB(self, ks, qt):
        return (f"ds_read_b128 {vr(vFB + (ks*4+qt)*4, 4)}, v{vXA+ks} offset:{2048*qt}", ("B", ks, qt))

    def mfma(self, acc, mt, qt, areg, ks):
        c = vr(acc + (mt*4+qt)*4, 4)
        return f"v_mfma_f32_16x16x32_bf16 {c}, {vr(areg, 4)}, {vr(vFB + (ks*4+qt)*4, 4)}, {c}"

    def qA(self, ks, mt):
        return vFA + (ks*4 + mt)*4

    def q_rdA(self, ks, mt):
        return self.rdA(self.qA(ks, mt), vWA, mt, 32*ks*128, (32*ks+4)*128, ("A", ks, mt))

    def q_finalize(self, acc, pending):
        a = self.a
        a(f"s_mov_b32 s{sT2}, {fbits(QSCALE)}")
        mul, cvt, put = [], [], []
        for mt in range(4):
            for qt in range(4):
                c = acc + (mt*4+qt)*4
                mul.append("\n".join(f"v_mul_f32 v{c+r}, s{sT2}, v{c+r}" for r in range(4)))
                cvt.append(f"v_cvt_pk_bf16_f32 v{c}, v{c}, v{c+1}\nv_cvt_pk_bf16_f32 v{c+1}, v{c+2}, v{c+3}")
                put.append((f"v_xor_b32 v1, {32*mt}, v{vQW}\n" if qt == 0 else "") + f"ds_write_b64 v1, {vr(c,2)} offset:{2048*qt}")
        work = ["\n".join(([put[k-2]] if 2 <= k < 18 else []) + ([cvt[k-1]] if 1 <= k < 17 else []) + ([mul[k]] if k < 16 else [])) for k in range(18)]
        lead = len(pending) - 16 + 5
        for k, t in enumerate(pending):
            a(t)
            if k + 1 == lead:
                a("s_nop 3")
            if k + 1 >= lead:
                a(work.pop(0))
        for t in work:
            a(t)
        a("s_waitcnt lgkmcnt(0)")

    ORDER4 = [(mt, qt) for mt in range(4) for qt in range(4)]
    ORDER3 = [(mt, qt) for mt in range(3) for qt in range(4)]
    NEXTX = [f"s_add_u32 s{sN}, s{sN}, 1\ns_and_b32 s{sT0}, s{sN}, 3\ns_lshl_b32 s{sT0}, s{sT0}, 13",
             f"v_add_u32 v{vXA}, s{sT0}, v{vXA0}", f"v_add_u32 v{vXA+1}, s{sT0}, v{vXA0+1}"]

    def pj_first(self):
        a = self.a
        ACC0 = vACC
        a("L_pj:")
        if not (self.probes or self.stamps):
            self.late_srds()
        a(f"""v_mov_b32 v{vZ}, 0
        s_cmp_lg_u32 s{sLW}, 0
        s_cbranch_scc1 L_pj_a
        s_lshl_b32 s{sT0}, s{sTY}, 14
        s_lshl_b32 s{sT1}, s{sHG}, 7
        s_add_u32 s{sT0}, s{sT0}, s{sT1}
        s_add_u32 s{sT0}, s{sT0}, s{sFADDR}
        v_lshlrev_b32 v1, 4, v0
        v_mov_b32 v{vFA}, 0
        v_mov_b32 v{vFA+1}, 0
        v_mov_b32 v{vFA+2}, 0
        v_mov_b32 v{vFA+3}, 0
        s_mov_b64 exec, 0xff
        buffer_store_dwordx4 {vr(vFA, 4)}, v1, {sr(sWS)}, s{sT0} offen sc1
        s_mov_b64 exec, -1
        L_pj_a:""")
        self.early(6)
        for i in list(range(vKVO, vXVO)) + list(range(vOVO, vWVO)):
            a(f"v_mov_b32 v{i}, 0")
        a(f"""s_lshl_b32 s{sT2}, s{sLW}, 13
        s_mov_b32 s{sWB}, {R1}
        s_mov_b32 s{sWB+1}, {R2}
        s_mov_b32 s{sWB+2}, {WR}
        v_lshrrev_b32 v1, 2, v3
        v_lshl_add_u32 v6, v2, 3, v1
        v_lshrrev_b32 v1, 1, v1
        v_and_b32 v7, 1, v2
        v_lshl_or_b32 v1, v7, 1, v1
        v_and_b32 v7, 3, v0
        v_lshlrev_b32 v7, 3, v7
        v_lshl_add_u32 v6, v6, 7, v7
        v_lshl_add_u32 v6, v1, 5, v6
        v_add_u32 v{vWA0}, s{sT2}, v6
        v_add_u32 v{vWA}, {WR}, v{vWA0}""")
        for mt in range(1, 4):
            a(f"v_xor_b32 v{vWA+mt}, {32*mt}, v{vWA}")
        a(f"""v_lshrrev_b32 v1, 1, v3
        v_xor_b32 v6, v1, v2
        v_lshlrev_b32 v6, 4, v6
        v_lshl_add_u32 v6, v3, 7, v6
        v_add_u32 v{vXA0}, {XR}, v6
        v_xor_b32 v{vXA0+1}, 64, v{vXA0}
        v_mov_b32 v{vXA}, v{vXA0}
        v_mov_b32 v{vXA+1}, v{vXA0+1}
        v_lshrrev_b32 v6, 1, v2
        v_xor_b32 v6, v6, v1
        v_lshlrev_b32 v6, 4, v6
        v_lshl_add_u32 v6, v3, 7, v6
        v_and_b32 v7, 1, v2
        v_lshl_add_u32 v6, v7, 3, v6
        v_add_u32 v6, s{sT2}, v6
        v_add_u32 v{vQW}, {R2}, v6""")
        for i in range(64):
            a(f"v_mov_b32 v{ACC0+i}, 0")
        for i in range(16):
            a(f"v_mov_b32 v{vFA+16+i}, 0\nv_mov_b32 v{vFB+16+i}, 0")
        self.early(4)
        srd(a, sPT, sDBGP, 256)
        a(f"""v_mov_b32 v1, 1
        s_lshl_b32 s{sT0}, s{sB}, 2
        s_mov_b32 s{sN}, 0
        s_waitcnt vmcnt(0)
        s_cmp_lg_u32 s{sLW}, 0
        s_cbranch_scc1 L_q0
        s_mov_b64 exec, 1
        buffer_atomic_add v1, v{vZ}, {sr(sPT)}, s{sT0} offen offset:{128*bool(self.dbgst)} sc1
        s_mov_b64 exec, -1""")
        nextbuf = [f"v_add_u32 v{vWA}, s{sWB}, v{vWA0}\ns_mov_b32 s{sT0}, s{sWB}", f"v_xor_b32 v{vWA+1}, 32, v{vWA}\ns_mov_b32 s{sWB}, s{sWB+1}",
                   f"v_xor_b32 v{vWA+2}, 64, v{vWA}\ns_mov_b32 s{sWB+1}, s{sWB+2}", f"v_xor_b32 v{vWA+3}, 96, v{vWA}\ns_mov_b32 s{sWB+2}, s{sT0}"]
        a("L_q0:\ns_barrier")
        self.probe(0, True)
        lg = Lg(a)
        rd = lambda ks: [self.rdB(ks, 0)] + self.q_rdA(ks, 0) + [self.rdB(ks, q) for q in (1, 2, 3)] + sum((self.q_rdA(ks, m) for m in (1, 2, 3)), [])
        r0 = rd(0)
        plan = {k: [] for k in range(-1, 32)}
        for i, x in enumerate(r0):
            plan[i // 2 - 1].append(x)
        for pos, m in ((6, 0), (8, 1), (12, 2), (16, 3)):
            for j, x in enumerate(self.q_rdA(1, m)):
                plan[pos + j].append(x)
        for q in range(4):
            plan[18 + q].append(self.rdB(1, q))
        tail = nextbuf + self.NEXTX
        for x in plan[-1]:
            lg.issue(*x)
        for k in range(32):
            mt, qt = self.ORDER4[k & 15]
            if k == 16:
                lg.wait(*[tag for _, tag in r0])
            a(self.mfma(ACC0, mt, qt, self.qA(1 - (k >> 4), mt), 1 - (k >> 4)))
            for x in plan[k]:
                lg.issue(*x)
            if k >= 22 and tail:
                a(tail.pop(0))
            if k == 30:
                lg.drain()
                a(f"s_cmp_eq_u32 s{sN}, 1")
        self.probe(1)
        a("s_cbranch_scc1 L_q0_setup")
        if self.wqat > 1:
            a(f"s_cmp_eq_u32 s{sN}, {self.wqat}\ns_cbranch_scc1 L_q0_touch")
        a(f"s_cmp_lt_u32 s{sN}, 9\ns_cbranch_scc1 L_q0")
        self.early(10)
        self.q_finalize(ACC0, [self.mfma(ACC0, mt, qt, self.qA(1, mt), 1) for mt, qt in self.ORDER4])
        self.early(12)
        a(f"v_xor_b32 v{vQW}, {R2 ^ WR}, v{vQW}")
        self.stamp(1)
        a("s_branch L_pj_rest")

    def pj_setup(self):
        a = self.a
        a("L_q0_setup:")
        self.late_common()
        self.late_wo()
        a(f"""s_cmp_eq_u32 s{sTY}, 1
        s_cselect_b32 s{sKVN}, 2, {self.adist}
        s_lshl_b32 s{sT0}, s{sKVN}, 13
        s_add_u32 s{sKVOFF}, s{sKVOFF}, s{sT0}
        s_mul_i32 s{sT0}, s{sKVN}, s{sBUFSZ}
        s_add_u32 s{sKVM0}, s{sKVM0}, s{sT0}
        s_mov_b32 s{sTHR}, 1
        s_add_u32 s{sWCOL}, s{sWCOL}, 512
        s_add_u32 s{sWCH}, s{sWCH}, 7
        s_sub_u32 s{sT0}, s{sWCH}, 9
        s_cselect_b32 s{sWCH}, s{sWCH}, s{sT0}
        s_lshl_b32 s{sT2}, s{sLW}, 13
        s_add_u32 s{sWBUF}, s{sT2}, {WR}
        s_mov_b32 s{sXN}, 4
        s_add_u32 s{sXCH}, s{sXCH}, 4
        s_sub_u32 s{sT0}, s{sXCH}, 9
        s_cselect_b32 s{sXCH}, s{sXCH}, s{sT0}
        s_mov_b32 s{sOCI}, 0
        s_mov_b32 s{sOG}, 0
        s_mov_b32 s{sOBUF}, {WR}
        s_mov_b32 s{sTN}, 0
        s_mov_b32 s{sLAST}, 2
        v_mov_b32 v{vPR}, 0""")
        for i in range(64):
            a(f"v_mov_b32 v{vACC+64+i}, 0")
        if self.wqat > 1:
            a("s_branch L_q0\nL_q0_touch:")
        self.pretouch_wq(vFA + 34)
        a("s_branch L_q0")

    def stream_slot(self, ty, rdA, MT, acc, aset, loads, after, readB=True):
        e = self.a
        e("s_barrier")
        self.probe(0, True)
        lg = Lg(e)
        for t, tag in rdA:
            lg.issue(t, tag)
        lg.drain()
        self.probe(1)
        e("s_barrier")
        self.probe(2)
        for ks in (0, 1):
            for q in range(4 if readB else 0):
                lg.issue(*self.rdB(ks, q))
        if loads is None:
            return
        def mk(ks, mt, qt):
            def f():
                lg.wait(("B", ks, qt))
                e(self.mfma(acc, mt, qt, aset(ks, mt), ks))
            return f
        mm = [mk(ks, mt, qt) for ks in (0, 1) for mt in range(MT) for qt in range(4)]
        self.spread(mm, loads + (self.kv_items_b() if ty else []))
        self.probe(6)
        if not ty:
            if getattr(self, "extra", None):
                l = self.lab("tx")
                e(f"s_cmp_ge_u32 s{sN}, 15\ns_cbranch_scc1 {l}")
                self.pretouch_wo(False)
                e(f"{l}:")
                self.extra = None
            self.call("F_kv")
        for t in after:
            e(t)

    def store_items(self, G):
        acc = vACC + 48 * G
        items = []
        for qd in range(6):
            c = acc + 8*qd
            t = "\n".join(f"v_cvt_pk_bf16_f32 v{c+i}, v{c+2*i}, v{c+2*i+1}" for i in range(4))
            t += f"\nbuffer_store_dwordx4 {vr(c,4)}, v{vST}, {sr(sWS)}, s{sM} offen offset:{1024*(qd&3)} {('sc1', 'sc1 nt', 'sc0 sc1')[self.partop]}"
            if qd in (3, 5):
                t += f"\ns_add_u32 s{sM}, s{sM}, {4096 if qd == 3 else 24576-4096}"
            items.append(t)
        return items

    def pj_rest(self):
        a = self.a
        ACC1 = vACC + 64
        qrd = sum((self.q_rdA(ks, m) for ks in (0, 1) for m in range(4)), [])
        a(f"L_pj_rest:\nv_mov_b32 v{vXA}, v{vXA0}\nv_mov_b32 v{vXA+1}, v{vXA0+1}")
        self.prio_set(1)
        prevx = [f"s_add_u32 s{sN}, s{sN}, 1\ns_sub_u32 s{sT0}, 9, s{sN}\ns_and_b32 s{sT0}, s{sT0}, 3\ns_lshl_b32 s{sT0}, s{sT0}, 13"] + self.NEXTX[1:]
        a(f"s_cmp_eq_u32 s{sTY}, 1\ns_cbranch_scc1 L_q1_1")
        if self.help:
            self.other_srd(sBV, 56, SIZE['B_v'])
        if self.follow:
            self.wait_init(vZ, vDUM)
        if self.aidle:
            self.pretouch_wo(True)
            a(f"s_mov_b32 s{sM}, 6\nL_idle_a:\ns_barrier")
            self.probe(0, True)
            a("s_barrier")
            if self.aidle == 1:
                self.pretouch_wo(False)
            self.call("F_kv")
            self.kvwait()
            a(f"s_sub_u32 s{sM}, s{sM}, 1\ns_cmp_lg_u32 s{sM}, 0\ns_cbranch_scc1 L_idle_a")
        for ty in (0, 1):
            nk = 8 if ty else self.NA
            a(f"L_q1_{ty}:")
            if self.aidle == 2 and not ty:
                self.extra = "touch"
            self.stream_slot(ty, qrd, 4, ACC1, self.qA, self.w_items(True), prevx)
            a(f"s_sub_u32 s{sT0}, s{sN}, 11\ns_cmp_ge_u32 s{sT0}, 5\ns_cbranch_scc1 L_q1_nox{ty}")
            self.call("F_x")
            a(f"""s_sub_u32 s{sXN}, s{sXN}, 2
            s_add_u32 s{sXCH}, s{sXCH}, 7
            s_sub_u32 s{sT0}, s{sXCH}, 9
            s_cselect_b32 s{sXCH}, s{sXCH}, s{sT0}""")
            self.probe(4)
            a(f"s_waitcnt vmcnt({nk + 2})")
            self.probe(5)
            a(f"s_branch L_q1_{ty}\nL_q1_nox{ty}:")
            self.probe(4)
            a(f"s_waitcnt vmcnt({nk})")
            self.probe(5)
            a(f"s_cmp_lt_u32 s{sN}, 17\ns_cbranch_scc1 L_q1_{ty}")
            if not ty:
                a("s_branch L_q1_last")
        a("L_q1_last:")
        self.stream_slot(0, qrd, 4, ACC1, self.qA, None, None)
        self.call("F_kv")
        a("s_waitcnt lgkmcnt(0)")
        self.q_finalize(ACC1, [self.mfma(ACC1, mt, qt, self.qA(ks, mt), ks) for ks in (0, 1) for mt, qt in self.ORDER4])
        self.kvwait()
        self.stamp(2)
        a("s_barrier")
        self.probe(0, True)
        a("s_barrier")
        if not self.aidle:
            self.pretouch_wo(True)
        self.call("F_kv")
        for i in range(144):
            a(f"v_mov_b32 v{vACC+i}, 0")
        a(f"""v_lshrrev_b32 v6, 2, v0
        v_bfe_u32 v1, v6, 1, 2
        v_and_b32 v7, 3, v0
        v_lshlrev_b32 v7, 3, v7
        v_mul_u32_u24 v6, 384, v6
        v_add_u32 v6, v6, v7
        s_mul_i32 s{sT0}, s{sLW}, 3""")
        for nt in range(3):
            a(f"""s_add_u32 s{sT1}, s{sT0}, {nt}
            v_xor_b32 v7, s{sT1}, v1
            v_lshl_add_u32 v{vOA0+nt}, v7, 5, v6
            v_add_u32 v{vOA+nt}, {WR}, v{vOA0+nt}""")
        a(f"""s_lshl_b32 s{sT0}, s{sTY}, 4
        s_add_u32 s{sT0}, s{sT0}, s{sB}
        s_lshl_b32 s{sT0}, s{sT0}, 3
        s_add_u32 s{sT0}, s{sT0}, s{sHG}
        s_mul_i32 s{sM}, s{sT0}, {PART}
        s_add_u32 s{sM}, s{sM}, s{sOLW}
        v_lshl_add_u32 v{vST}, v3, 2, v2
        v_lshlrev_b32 v{vST}, 4, v{vST}""")
        self.kvwait()
        if self.aidle:
            a(f"s_cmp_eq_u32 s{sTY}, 0\ns_cbranch_scc1 L_kvl_done")
        a(f"s_mov_b32 s{sN}, 6\nL_kvl:\ns_barrier")
        self.probe(0, True)
        a("s_barrier")
        self.probe(2)
        if not self.aidle:
            self.pretouch_wo(False)
        self.call("F_kv")
        self.probe(4)
        self.kvwait()
        self.probe(5)
        a(f"""s_sub_u32 s{sN}, s{sN}, 1
        s_cmp_lg_u32 s{sN}, 0
        s_cbranch_scc1 L_kvl
        L_kvl_done:
        s_barrier""")
        self.probe(0, True)
        a("s_barrier")
        self.call("F_wo")
        if self.touch & 8:
            self.touch_own_last()
        self.call("F_kv")
        self.kvwait()
        self.stamp(3)
        oA = lambda c, ks, mt: vFA + 4*mt + (0 if ks == 0 else 12 + 12*(c & 1))
        o_rdA = lambda c, ks, mt: self.rdA(oA(c, ks, mt), vOA, mt, 32*ks*384, (32*ks+16)*384, ("A", ks, mt))
        xa_step = [f"s_add_u32 s{sN}, s{sN}, 1\ns_add_u32 s{sT0}, s{sROT}, s{sN}\ns_and_b32 s{sT0}, s{sT0}, 3\ns_lshl_b32 s{sT0}, s{sT0}, 13",
                   f"v_add_u32 v{vXA}, s{sT0}, v{vXA0}", f"v_add_u32 v{vXA+1}, s{sT0}, v{vXA0+1}"]
        a(f"s_mov_b32 s{sN}, -1")
        for t in xa_step:
            a(t)
        ord_ = sum((o_rdA(0, ks, m) for ks in (0, 1) for m in range(3)), [])
        a(f"s_cmp_eq_u32 s{sTY}, 1\ns_cbranch_scc1 L_o2_1")
        for ty in (0, 1):
            a(f"L_o2_{ty}:")
            for G in range(3):
                self.stream_slot(ty, ord_, 3, vACC + 48*G, lambda ks, mt: oA(0, ks, mt), self.wo_items(), xa_step if G == 0 else [], G == 0)
                self.probe(4)
                if ty:
                    a("s_waitcnt vmcnt(8)")
                else:
                    self.kvwait()
                self.probe(5)
            a(f"s_cmp_lt_u32 s{sN}, 4\ns_cbranch_scc1 L_o2_{ty}")
            if not ty:
                a("s_branch L_o2_done")
        a("L_o2_done:")
        self.stamp(4)
        if self.probes or self.lite:
            a(f"s_add_u32 s{sSLOT}, s{sSLOT}, 3")
        a("s_barrier\ns_barrier")
        if self.touch & 4:
            self.touch_own_last()
        self.call("F_kv")
        if self.touch & 16:
            self.touch_own_last()
        a(f"""v_lshl_add_u32 v1, v0, 2, s{sRB}
        v_cmp_gt_u32 vcc, 6, v0
        s_and_saveexec_b64 {sr(sT0, 2)}, vcc
        s_cmp_lg_u32 s{sLW}, 0
        s_cbranch_scc1 L_nz
        ds_write_b32 v1, v{vZ} offset:{SYNC - WR}
        L_nz:
        s_mov_b64 exec, -1
        s_waitcnt lgkmcnt(0)""")
        self.kvwait(1 if self.touch & 16 else 0)
        srd(a, sPT, sDBGP, 256)
        a(f"""s_lshl_b32 s{sT2}, s{sB}, 2
        s_barrier
        s_barrier
        buffer_load_dword v{vDUM}, v{vZ}, {sr(sPT)}, s{sT2} offen offset:{128*bool(self.dbgst)} sc1
        s_mov_b32 s{sOBUF}, s{sRB+1}""")
        self.call("F_wo")
        a(f"""s_waitcnt vmcnt(6)
        v_readfirstlane_b32 s{sT1}, v{vDUM}
        s_cmp_ge_u32 s{sT1}, 16
        s_cbranch_scc1 L_init_ok""")
        self.wait_init(vZ, vDUM)
        a(f"L_init_ok:\ns_barrier\ns_barrier\ns_mov_b32 s{sOBUF}, s{sRB+2}")
        self.call("F_wo")
        if self.prio & 4:
            a("s_setprio 0")
        self.stamp(5)
        st = []
        def xa_to(c):
            if c > 11 or self.last_seq(c)[0] == self.last_seq(c - 1)[0]:
                return []
            return [f"s_add_u32 s{sT0}, s{sROT}, {self.last_seq(c)[0]}\ns_and_b32 s{sT0}, s{sT0}, 3\ns_lshl_b32 s{sT0}, s{sT0}, 13"] + xa_step[1:]
        done_at = {max(c for c in range(12) if self.last_seq(c)[1] == g) + 1: g for g in (0, 1)}
        for c in range(12):
            grp = (lambda c: c >> 2) if self.gmajor else (lambda c: self.last_seq(c)[1])
            acc, prev = vACC + 48 * grp(c), vACC + 48 * grp(max(c - 1, 0))
            newB = c == 0 or self.last_seq(c)[0] != self.last_seq(c - 1)[0] or self.gmajor
            lg = Lg(a)
            if c == 0:
                for ks in (0, 1):
                    for m in range(3):
                        for x in o_rdA(0, ks, m):
                            lg.issue(*x)
                lg.drain()
            a("s_barrier")
            self.probe(0, True)
            b0 = [self.rdB(0, q) for q in range(4)] if newB else []
            r0 = b0[:1] + o_rdA(c, 0, 0) + b0[1:] + o_rdA(c, 0, 1) + o_rdA(c, 0, 2)
            ra1 = sum((o_rdA(c, 1, m) for m in range(3)), [])
            if c == 0:
                r0, ra1 = b0 + [self.rdB(1, q) for q in range(4)], []
            plan = {k: [] for k in range(-1, 24)}
            for i, x in enumerate(r0):
                plan[(i // 2 - 1 if newB else i - 1) if c else -1].append(x)
            for i, x in enumerate(ra1):
                plan[5 + i if c else 12 + i // 2].append(x)
            for q in range(4 if newB and c else 0):
                plan[12 + q].append(self.rdB(1, q))
            fill = [f"v_add_u32 v{vOA+nt}, s{sRB + ((c+1)&3)}, v{vOA0+nt}" for nt in range(3)] + (xa_to(c + 1) if self.hyb else xa_step if newB else [])
            for x in plan[-1]:
                lg.issue(*x)
            for k in range(0 if c else 12, 24):
                mt, qt = self.ORDER3[k % 12]
                if k == 12 and c:
                    lg.wait(*[tag for _, tag in r0])
                elif not c:
                    lg.wait(("A", 0, mt, 0), ("A", 0, mt, 1), ("B", 0, qt))
                a(self.mfma(prev, mt, qt, oA(c - 1, 1, mt), 1) if k < 12 else self.mfma(acc, mt, qt, oA(c, 0, mt), 0))
                for x in plan[k]:
                    lg.issue(*x)
                if k >= (16 if c else 19) and fill:
                    a(fill.pop(0))
                    if not c and fill:
                        a(fill.pop(0))
                if self.gmajor:
                    if k == 11 and c in (self.store0, self.store1):
                        st += self.store_items(int(c == self.store1))
                    step = self.stp0 if c < self.store1 else self.stp
                else:
                    if c in done_at and k == 9:
                        st += self.store_items(done_at[c])
                    step = self.stp
                if st and k % step == step - 1:
                    a(st.pop(0))
                if k == 22:
                    lg.drain()
            assert not fill
            if c < 2:
                a(f"s_waitcnt vmcnt({6 - 6*c})")
            if c in (4, 8):
                self.stamp(6 + (c >> 3))
        for k, (mt, qt) in enumerate(self.ORDER3):
            a(self.mfma(vACC + 96, mt, qt, oA(11, 1, mt), 1))
            if k == 9:
                st += self.store_items(2)
            if st and k % 2 == 1:
                a(st.pop(0))
        for t in st:
            a(t)
        self.stamp(8)
        a(f"""v_mov_b32 v1, {SYNC}
        v_mov_b32 v6, 1
        v_lshlrev_b32 v5, 4, v0
        v_mov_b32 v{vFA}, 1
        v_mov_b32 v{vFA+1}, 1
        v_mov_b32 v{vFA+2}, 1
        v_mov_b32 v{vFA+3}, 1
        s_lshl_b32 s{sT0}, s{sTY}, 14
        s_lshl_b32 s{sT1}, s{sHG}, 7
        s_add_u32 s{sT0}, s{sT0}, s{sT1}
        s_add_u32 s{sT0}, s{sT0}, s{sFADDR}
        s_mov_b64 exec, 1""")
        for k in range(1):
            a(f"""s_waitcnt vmcnt(0)
            ds_add_rtn_u32 v7, v1, v6 offset:{4*k}
            s_waitcnt lgkmcnt(0)
            v_readfirstlane_b32 s{sT1}, v7
            s_cmp_lg_u32 s{sT1}, 3
            s_cbranch_scc1 L_nf{k}
            s_mov_b64 exec, 0xff
            buffer_store_dwordx4 {vr(vFA, 4)}, v5, {sr(sWS)}, s{sT0} offen sc1
            L_nf{k}:""")
            if k == 0:
                self.stamp(13)
        a("s_mov_b64 exec, -1")
        self.stamp(9)
        self.probe_dump()
        a("s_branch L_reduce")

    def at_first(self):
        a = self.a
        a("L_at:")
        self.prio_set(0)

        issued = []
        WBUFS = (WR, R1, R2)

        def ldx(n, direct):
            if n == 0 and self.inl:
                self.x_body()
            elif n <= 3 or n >= 9 or direct:
                self.call("F_x")
            else:
                a(f"s_lshl_b32 s{sT0}, s{sXCH}, 7\ns_add_u32 s{sT0}, s{sT0}, s{sXBASE}")
                self.x_adv()
                for i in range(2):
                    a(f"buffer_load_dwordx4 {vr(vO + (n-4)*8 + 4*i, 4)}, v{vXVO+i}, {sr(sX)}, s{sT0} offen offset:{1024*i}")
            issued.extend([("x", n)] * 2)

        def ldw(n):
            if n == 9:
                a(f"s_sub_u32 s{sWCH}, s{sWCH}, 1\ns_cselect_b32 s{sWCH}, 8, s{sWCH}")
            a(f"s_lshl_b32 s{sWBUF}, s{sLW}, 13\ns_add_u32 s{sWBUF}, s{sWBUF}, {WBUFS[n % 3]}")
            if n == 0 and self.inl:
                for t in self.w_items():
                    a(t)
            else:
                self.call("F_w")
            issued.extend([("w", n)] * 8)

        def prefill(k, ty):
            for _ in range(2 - ty):
                self.call("F_kv")
            issued.extend([("kv", k)] * 8)

        def wait(*tags):
            k = max(i for i, t in enumerate(issued) if t in tags) + 1
            a(f"s_waitcnt vmcnt({min(63, len(issued) - k)})")
        def first_stage(ty, head):
            del issued[:]
            direct = ty == 1 and self.xplan
            if head:
                ldx(0, direct); ldw(0)
                return
            issued.extend([("x", 0)] * 2 + [("w", 0)] * 8)
            self.early(2)
            self.call("F_atset")
            self.early(4)
            ldx(1, direct); ldw(1)
            wait(("x", 0), ("w", 0))
            self.early(5)
            for n in range(9):
                a("s_barrier")
                self.probe(0, True)
                if 1 <= n <= 5 and not direct:
                    wait(("x", n + 3))
                    for i in range(2):
                        a(f"ds_write_b128 v{vT}, {vr(vO + (n-1)*8 + 4*i, 4)} offset:{((n+3)&3)*8192 + 1024*i}")
                if n == 0:
                    for k in range(2, 4 if direct else 9):
                        ldx(k, direct)
                elif direct and n <= 5:
                    ldx(n + 3, direct)
                if n + 2 <= 9:
                    ldw(n + 2)
                if n == (self.prefill if ty else self.prefa):
                    prefill(0, ty)
                if n == 8 and (ty or self.adist == 4):
                    prefill(1, ty)
                self.probe(4)
                wait(*([("w", n + 1)] + [("kv", 0) if n == 8 else ("x", n + 1)]))
                a("s_waitcnt lgkmcnt(0)")
                self.probe(5)
        a(f"s_mov_b32 s{sXN}, 0\ns_cmp_eq_u32 s{sTY}, 0\ns_cbranch_scc1 L_at_a")
        first_stage(1, True)
        a("s_branch L_at_b\nL_at_a:")
        if self.xplan & 2:
            srd(a, sPT, sBWP, SIZE['B_wq'])
            a(f"""s_lshl_b32 s{sT0}, s{sB}, 2
            s_add_u32 s{sT0}, s{sT0}, s{sLW}
            s_mul_i32 s{sT0}, s{sT0}, {9*8192}
            s_lshl_b32 s{sT1}, s{sHG}, 10
            s_add_u32 s{sT0}, s{sT0}, s{sT1}
            v_lshrrev_b32 v1, 2, v0
            v_and_b32 v6, 3, v0
            v_lshlrev_b32 v6, 7, v6
            v_lshl_add_u32 v1, v1, 13, v6
            s_mov_b32 exec_hi, 15
            buffer_load_dword v{vP+3}, v1, {sr(sPT)}, s{sT0} offen""")
            if self.xplan & 4:
                a(f"buffer_load_dword v{vP+2}, v1, {sr(sWQ)}, s{sT0} offen")
            a("s_mov_b64 exec, -1")
        if self.xtouch:
            srd(a, sBV, sBXP, SIZE['B_x'])
            a(f"v_mul_u32_u24 v1, 1152, v0\ns_mul_i32 s{sT2}, s{sB}, 73728")
            for j in range(2):
                a(f"""s_add_u32 s{sT0}, s{sXCH}, s{sLW}
                s_add_u32 s{sT0}, s{sT0}, {self.xfrom + 4*j}
                s_mul_i32 s{sT1}, s{sT0}, 57
                s_lshr_b32 s{sT1}, s{sT1}, 9
                s_mul_i32 s{sT1}, s{sT1}, 9
                s_sub_u32 s{sT0}, s{sT0}, s{sT1}
                s_lshl_b32 s{sT0}, s{sT0}, 7
                s_add_u32 s{sT0}, s{sT0}, s{sT2}
                buffer_load_dword v{vP+j}, v1, {sr(sBV)}, s{sT0} offen""")
        first_stage(0, True)
        first_stage(0, False)
        a("s_branch L_at_done\nL_at_b:")
        first_stage(1, False)
        a("L_at_done:")
        if self.prio & 1:
            a("s_setprio 0")
        a("s_branch L_stage\nF_atset:")
        if not (self.probes or self.stamps):
            self.late_srds()
        self.late_common()
        a(f"""s_mov_b32 s{sTHR}, 0
        s_lshl_b32 s{sT0}, s{sLW}, 11
        s_add_u32 s{sT0}, s{sT0}, {XR}
        v_lshl_add_u32 v{vT}, v0, 4, s{sT0}""")
        self.at_setup()
        if self.xplan:
            a(f"s_cmp_eq_u32 s{sTY}, 0\ns_cbranch_scc1 F_atset_ret")
            for i in range(vO, vO + 40):
                a(f"v_mov_b32 v{i}, 0")
            a("F_atset_ret:")
        self.ret()

    def at_setup(self):
        a = self.a
        a(f"""s_lshr_b32 s{sT0}, s{sLW}, 1
        s_mul_i32 s{sT0}, s{sT0}, s{sTY}
        s_lshl_b32 s{sT0}, s{sT0}, 13
        v_xor_b32 v7, v2, v3
        v_lshlrev_b32 v7, 4, v7
        v_lshl_add_u32 v7, v3, 8, v7
        v_add_u32 v{vKA}, s{sT0}, v7""")
        for ks in range(1, 4):
            a(f"v_xor_b32 v{vKA+ks}, {64*ks}, v{vKA}")
        a(f"""s_lshr_b32 s{sT1}, s{sBUFSZ}, 1
        s_add_u32 s{sT0}, s{sT0}, s{sT1}
        v_lshrrev_b32 v1, 2, v0
        v_and_b32 v6, 7, v1
        v_lshlrev_b32 v7, 8, v1
        v_lshl_add_u32 v7, v6, 5, v7
        v_and_b32 v1, 3, v0
        v_lshl_add_u32 v7, v1, 3, v7
        v_add_u32 v{vVA}, s{sT0}, v7""")
        for dt in range(1, 8):
            a(f"v_xor_b32 v{vVA+dt}, {32*dt}, v{vVA}")
        a(f"""s_mov_b32 s{sRPOS}, 0
        s_mov_b32 s{sSTAGE}, 0
        s_mov_b32 s{sQBUF}, {R2 - XR}
        s_mov_b32 s{sM}, 3
        s_lshr_b32 s{sT0}, s{sLW}, 1
        s_lshl_b32 s{sT0}, s{sT0}, 14
        s_and_b32 s{sT1}, s{sLW}, 1
        s_lshl_b32 s{sT1}, s{sT1}, 12
        s_add_u32 s{sT0}, s{sT0}, s{sT1}
        s_add_u32 s{sT0}, s{sT0}, {XR}
        v_lshrrev_b32 v6, 1, v3
        v_xor_b32 v6, v6, v2
        v_lshlrev_b32 v6, 4, v6
        v_lshl_add_u32 v6, v3, 7, v6
        v_add_u32 v{vH}, s{sT0}, v6
        v_xor_b32 v{vH+1}, 64, v{vH}""")
        for i in list(range(vO + 40, vO + 64)) + list(range(vNM + 1, vNM + 8)) + [vL0, vL0 + 1, vL0 + 2, vL0 + 3, 4] + list(range(vOVO, vOVO + 6)):
            a(f"v_mov_b32 v{i}, 0")

    def at_rest(self):
        a = self.a
        publish = self.follow or self.gate
        a(f"""L_stage:
        s_mov_b32 s{sTH}, 0xff7fffff
        s_mov_b32 s{sFLOOR}, 0xff7fffff
        s_mov_b32 s{sFIRST}, 0
        s_cmp_lg_u32 s{sSTAGE}, 0
        s_cbranch_scc1 L_stage_a
        v_mov_b32 v{vNM}, 0
        L_stage_a:""")
        for i in range(2):
            a(f"v_add_u32 v{vT+i}, s{sQBUF}, v{vH+i}")
        a(f"s_mov_b32 s{sN}, 0\nL_tile:\ns_barrier")
        self.probe(0, True)
        a(f"s_cmp_lg_u32 s{sN}, 0\ns_cbranch_scc1 L_tile_k")
        for qt in range(2):
            for ks in range(4):
                a(f"ds_read_b128 {vr(vQ + (qt*4+ks)*4, 4)}, v{vT+(ks&1)} offset:{2048*qt + 8192*(ks>>1)}")
        a("s_waitcnt lgkmcnt(0)\nL_tile_k:")
        lg = Lg(a)
        for ks in range(4):
            for kt in range(2):
                lg.issue(f"ds_read_b128 {vr(vKF + (ks*2+kt)*4, 4)}, v{vKA+ks} offset:{4096*kt}", ("K", ks, kt))
        a("s_barrier")
        O = lambda dt, qt: vO + (((dt >> 1)*2 + qt)*2 + (dt & 1))*4
        pv = lambda dt, u: f"v_mfma_f32_16x16x32_bf16 {vr(O(dt, u), 4)}, {vr(vVF + dt*4, 4)}, {vr(vP+4*u, 4)}, {vr(O(dt, u), 4)}"
        if self.defer:
            a(f"s_cmp_eq_u32 s{sN}, 0\ns_cbranch_scc1 L_tile_q")
            late = [f"v_pk_add_f32 {vr(vL0+2*u, 2)}, {vr(vL0+2*u, 2)}, {vr(vS+8*u+2*i, 2)}" for u, i in ((1, 0), (0, 2), (1, 1), (0, 3), (1, 2), (1, 3))]
            late += [f"v_add_u32 v{vVA+i}, s{sPROG}, v{vVA+i}" for i in range(8)]
            def deferred():
                l = list(late)
                for dt in range(8):
                    a(pv(dt, 1))
                    for _ in range(2):
                        if l: a(l.pop(0))
            deferred()
            a("L_tile_q:")
        vreads = [(f"ds_read_b64_tr_b16 {vr(vVF + dt*4 + 2*j, 2)}, v{vVA+dt} offset:{4096*j}", ("V", dt, j)) for dt in range(8) for j in range(2)]
        S = lambda qt, kt: vS + (qt*2 + kt)*4
        O = lambda dt, qt: vO + (((dt >> 1)*2 + qt)*2 + (dt & 1))*4
        for ks in range(4):
            for kt in range(2):
                lg.wait(("K", ks, kt))
                for qt in range(2):
                    c = vr(vNM + 4*qt, 4) if ks == 0 else vr(S(qt, kt), 4)
                    a(f"v_mfma_f32_16x16x32_bf16 {vr(S(qt, kt), 4)}, {vr(vKF + (ks*2+kt)*4, 4)}, {vr(vQ + (qt*4+ks)*4, 4)}, {c}")
                    if len(lg.q) < 15:
                        lg.issue(*vreads.pop(0))
        for t, tag in vreads:
            lg.issue(t, tag)
        a(f"""s_add_u32 s{sRPOS}, s{sRPOS}, s{sBUFSZ}
        s_cmp_ge_u32 s{sRPOS}, 98304
        s_cselect_b32 s{sT0}, 98304, 0
        s_sub_u32 s{sRPOS}, s{sRPOS}, s{sT0}
        s_sub_u32 s{sPROG}, s{sBUFSZ}, s{sT0}""")
        adv = [f"v_add_u32 v{vKA+i}, s{sPROG}, v{vKA+i}" for i in range(12)]
        nadv = 4 if self.defer else 2
        for t in adv[:nadv]:
            a(t)
        adv = adv[nadv:]
        t0, t1 = vT, vT + 1
        a(f"""v_max3_f32 v{t0}, v{vS}, v{vS+1}, v{vS+2}
        v_max3_f32 v{t0}, v{t0}, v{vS+3}, v{vS+4}
        v_max3_f32 v{t1}, v{vS+8}, v{vS+9}, v{vS+10}
        v_max3_f32 v{t0}, v{t0}, v{vS+5}, v{vS+6}
        v_max3_f32 v{t1}, v{t1}, v{vS+11}, v{vS+12}
        v_max_f32 v{t0}, v{t0}, v{vS+7}
        v_max3_f32 v{t1}, v{t1}, v{vS+13}, v{vS+14}
        v_max_f32 v{t1}, v{t1}, v{vS+15}
        v_max_f32 v{vT+2}, v{t0}, v{t1}
        v_cmp_lt_f32 vcc, s{sTH}, v{vT+2}
        s_cbranch_vccnz L_rescale
        L_tile_exp:""")
        ex = lambda u: [f"v_exp_f32 v{vS+8*u+i}, v{vS+8*u+i}" for i in range(8)]
        cv = lambda u: [f"v_cvt_pk_bf16_f32 v{vP+4*u+i}, v{vS+8*u+2*i}, v{vS+8*u+2*i+1}" for i in range(4)]
        if self.pkl:
            ad = lambda u: [x for i in range(4) for x in (f"v_pk_add_f32 {vr(vL0+2*u, 2)}, {vr(vL0+2*u, 2)}, {vr(vS+8*u+2*i, 2)}", "")]
        else:
            ad = lambda u: [f"v_add_f32 v{vL0+2*u+(i&1)}, v{vL0+2*u+(i&1)}, v{vS+8*u+i}" for i in range(8)]
        pv = lambda dt, u: f"v_mfma_f32_16x16x32_bf16 {vr(O(dt, u), 4)}, {vr(vVF + dt*4, 4)}, {vr(vP+4*u, 4)}, {vr(O(dt, u), 4)}"
        e0, c0, a0 = ex(0), cv(0), ad(0)
        e1, c1, a1 = ex(1), cv(1), ad(1)
        for t in e0[:3] + [e0[3], c0[0], e0[4], e0[5], c0[1], e0[6], e0[7], c0[2], e1[0], c0[3], e1[1], a0[0]]:
            a(t)
        gaps = [[e1[2]], [e1[3], c1[0]], [e1[4]], [e1[5], c1[1]], [e1[6]], [e1[7]], [c1[2], a0[1]], [c1[3], a0[2], a0[3] or "s_nop 0"]]
        for dt in range(8):
            if dt % 2 == 0:
                lg.wait(("V", dt + 1, 0), ("V", dt + 1, 1))
            a(pv(dt, 0))
            for t in gaps[dt]:
                a(t)
        rest = [x for pair in zip(a1, a0[4:] + adv[:4]) for x in pair] + adv[4:]
        assert self.pkl and not self.defer and not publish
        a(f"s_cmp_eq_u32 s{sN}, 15\ns_cbranch_scc1 L_tile_last")
        if not self.defer:
            for dt in range(8):
                a(pv(dt, 1))
                for _ in range(3):
                    if rest: a(rest.pop(0))
            assert not rest
        self.probe(6)
        a(f"s_or_b32 s{sT0}, s{sSTAGE}, s{sN}\ns_cbranch_scc1 L_tile_nw\ns_waitcnt vmcnt(0)\nL_tile_nw:")
        if publish:
            a(f"""s_cmp_gt_u32 s{sTY}, s{sLW}
            s_cbranch_scc0 L_tile_np""")
            if not self.follow:
                a(f"s_add_u32 s{sM}, s{sM}, 1\ns_cmp_eq_u32 s{sM}, {self.gate + 1}\ns_cbranch_scc0 L_tile_np\ns_sub_u32 s{sM}, s{sM}, 1")
            a(f"""v_mov_b32 v5, s{sM}
            s_mov_b64 exec, 1
            buffer_store_dword v5, v4, {sr(sWS)}, s{sPADDR} offen sc1
            s_mov_b64 exec, -1
            s_add_u32 s{sM}, s{sM}, 1
            L_tile_np:""")
        a(f"s_add_u32 s{sN}, s{sN}, 1\ns_branch L_tile")
        R = vT + 2
        chain = [x for x in a0[4:] if x] + [x for x in a1 if x]
        chain = [chain[0], chain[2], chain[1], chain[3], chain[4], chain[5]]
        chain += f"""v_add_f32 v{vL0}, v{vL0}, v{vL0+1}
        v_add_f32 v{vL0+1}, v{vL0+2}, v{vL0+3}
        v_mov_b32 v{vL0+2}, v{vL0}
        v_mov_b32 v{vL0+3}, v{vL0+1}
        s_mov_b32 s{sQBUF}, {WR - XR}
        s_add_u32 s{sSTAGE}, s{sSTAGE}, 1
        v_permlane32_swap_b32 v{vL0}, v{vL0+2}
        v_permlane32_swap_b32 v{vL0+1}, v{vL0+3}
        v_add_f32 v{vL0}, v{vL0}, v{vL0+2}
        v_add_f32 v{vL0+1}, v{vL0+1}, v{vL0+3}
        v_mov_b32 v{vL0+2}, v{vL0}
        v_mov_b32 v{vL0+3}, v{vL0+1}
        s_nop 1
        v_permlane16_swap_b32 v{vL0}, v{vL0+2}
        v_permlane16_swap_b32 v{vL0+1}, v{vL0+3}
        v_add_f32 v{R}, v{vL0}, v{vL0+2}
        v_add_f32 v{R-2}, v{vL0+1}, v{vL0+3}
        v_rcp_f32 v{R}, v{R}
        v_rcp_f32 v{R-2}, v{R-2}
        s_nop 0""".split("\n")
        a("L_tile_last:")
        for dt in range(8):
            a(pv(dt, 1))
            for _ in range(3):
                a(chain.pop(0))
        for t in chain:
            a(t)
        mul, put = [], []
        for qt in range(2):
            for p in range(4):
                c = vO + (p*2 + qt)*8
                mul.append("\n".join(f"v_pk_mul_f32 {vr(c+i, 2)}, {vr(c+i, 2)}, {vr(R-2*qt, 2)} op_sel_hi:[1,0]" for i in range(0, 8, 2)))
                put.append("\n".join(f"v_cvt_pk_bf16_f32 v{c+i}, v{c+2*i}, v{c+2*i+1}" for i in range(4)) +
                           f"\nds_write_b128 v{vH + (p&1)}, {vr(c,4)} offset:{2048*qt + 8192*(p>>1)}")
        for k in range(9):
            if k < 8: a(mul[k])
            if k: a(put[k-1])
        self.probe(6)
        a(f"""s_cmp_lt_u32 s{sSTAGE}, 2
        s_cbranch_scc0 L_feed0""")
        for t in adv:
            a(t)
        self.late_wo()
        a(f"""s_mov_b32 s{sOCI}, {7 if self.gmajor else 5}
        s_mov_b32 s{sOG}, 0
        s_waitcnt lgkmcnt(0)
        s_branch L_stage""")
        a("L_feed0:")
        if self.hyb:
            seq = sum((kb | g << 2) << 4*i for i, (kb, g) in enumerate(self.last_seq(c) for c in range(3, 12)))
            a(f"s_mov_b32 s{sBV}, {seq & 0xffffffff}\ns_mov_b32 s{sBV+1}, {seq >> 32}")
        self.prio_set(2)
        a(f"""s_mov_b32 s{sN}, 0
        {self.wo_addr(sRB+3)}
        s_waitcnt lgkmcnt(0)
        L_feed:
        s_barrier""")
        self.probe(0, True)
        if self.probes or self.lite:
            a(f"s_mov_b32 m0, s{sT1}\ns_nop 0")
        nxt = self.wo_addr(sRB+3).replace(f"s{sT0}", f"s{sT2}").replace(f"s{sT1}", f"s{sM}").split("\n")
        nxt = [t for t in nxt if "m0" not in t]
        adv = self.wo_adv()
        if self.hyb:
            adv = f"""s_lshr_b64 {sr(sBV, 2)}, {sr(sBV, 2)}, 4
            s_and_b32 s{sOCI}, s{sBV}, 3
            s_or_b32 s{sOCI}, s{sOCI}, 4
            s_bfe_u32 s{sOG}, s{sBV}, 0x20002
            s_mul_i32 s{sOG}, s{sOG}, 384"""
        between = [adv,
                   f"s_mov_b32 s{sT2}, s{sRB+3}\ns_mov_b32 s{sRB+3}, s{sRB}\ns_mov_b32 s{sRB}, s{sRB+1}\ns_mov_b32 s{sRB+1}, s{sRB+2}\ns_mov_b32 s{sRB+2}, s{sT2}",
                   "\n".join(nxt[:5]), f"s_add_u32 m0, s{sT1}, 4096\n" + "\n".join(nxt[5:]),
                   f"s_add_u32 s{sN}, s{sN}, 1\ns_mov_b32 s{sT1}, s{sM}\ns_cmp_lt_u32 s{sN}, 9", f"s_mov_b32 m0, s{sM}\ns_mov_b32 s{sT0}, s{sT2}"]
        for n in range(6):
            a(f"buffer_load_dwordx4 v{vOVO+n}, {sr(sWO)}, s{sT0} offen offset:{1024*(n&3)}{self.wflag} lds")
            a(between[n])
        self.probe(4)
        a("s_waitcnt vmcnt(12)\ns_cbranch_scc1 L_feed")
        if self.gate:
            a(f"s_or_b32 s{sT0}, s{sTY}, s{sLW}\ns_cbranch_scc1 L_gate")
            self.wait_init(4, 5)
            self.spin(f"buffer_load_dword v5, v4, {sr(sWS)}, s{sPADDR} offen sc1", 5,
                      f"v_readfirstlane_b32 s{sT1}, v5\ns_cmp_ge_u32 s{sT1}, {self.gate}")
            a("L_gate:")
        a("""s_barrier
        s_waitcnt vmcnt(6)
        s_barrier
        s_waitcnt vmcnt(0)
        s_barrier""")
        self.probe_dump()

    def reduce(self):
        a = self.a
        vL, vO0, vD, vSum = 6, 14, 40, 104
        of = ("", " sc1", " nt", " sc0 sc1")[self.outf]
        a("L_reduce:")
        self.stamp(10)
        a(f"""s_setprio 0
        s_lshr_b32 s{sSTAGE}, s{sWAVE}, 2
        s_lshl_b32 s{sT1}, s{sSTAGE}, 2
        s_add_u32 s{sT1}, s{sT1}, {SYNC + 8}
        v_mov_b32 v9, s{sT1}
        s_mov_b32 s{sSPIN}, {SPIN}
        s_cmp_lg_u32 s{sLW}, 0
        s_cbranch_scc1 L_red_work
        s_lshl_b32 s{sT0}, s{sSTAGE}, 14
        s_add_u32 s{sFADDR}, s{sFADDR}, s{sT0}
        v_mov_b32 v4, 0
        v_and_b32 v8, 7, v0
        v_lshlrev_b32 v8, 7, v8
        s_cmp_eq_u32 s{sSTAGE}, 1
        s_cbranch_scc1 L_red_poll""")
        self.wait_init(4, 5)
        a(f"""s_mov_b32 s{sSPIN}, {SPIN}
        L_red_poll:""")
        NP = self.polls
        ld = lambda k: f"buffer_load_dword v{16+k}, v8, {sr(sWS)}, s{sFADDR} offen {('sc1', 'sc0 sc1')[self.flagop == 1]}"
        for k in range(NP - 1):
            a(ld(k) + f"\ns_sleep {self.nap}")
        a("L_red_again:")
        for k in range(NP):
            a(f"""{ld((k + NP - 1) % NP)}
            s_waitcnt vmcnt({NP - 1})
            v_cmp_eq_u32 vcc, 1, v{16+k}
            s_and_b32 s{sT2}, vcc_lo, 0xff
            s_sub_u32 s{sSPIN}, s{sSPIN}, 1
            s_cselect_b32 s{sT2}, 0xff, s{sT2}
            v_mov_b32 v10, s{sT2}
            ds_write_b32 v9, v10
            s_cmp_eq_u32 s{sT2}, 0xff
            s_cbranch_scc1 L_red_end
            s_sleep {self.nap}""")
        a(f"""s_branch L_red_again
        L_red_work:""")
        srd(a, sX, sOUTP, SIZE['out'])
        a(f"""s_lshl_b32 s{sN}, s{sTY}, 3
        s_add_u32 s{sN}, s{sN}, s{sHG}
        s_sub_u32 s{sT0}, s{sLW}, 1
        s_lshl_b32 s{sT0}, s{sT0}, 4
        s_add_u32 s{sN}, s{sN}, s{sT0}
        s_mul_i32 s{sN}, s{sN}, 3
        s_lshl_b32 s{sT0}, s{sSTAGE}, 4
        s_add_u32 s{sT0}, s{sT0}, s{sB}
        s_mul_i32 s{sM}, s{sT0}, {8*PART}
        s_mul_i32 s{sOBASE}, s{sB}, {64*2304}
        s_mul_i32 s{sT0}, s{sSTAGE}, 1152
        s_add_u32 s{sOBASE}, s{sOBASE}, s{sT0}""")
        a(f"""v_bfe_u32 v10, v0, 2, 2
        v_and_b32 v11, 3, v0
        v_bfe_u32 v12, v0, 4, 1""")
        for k in range(2):
            a(f"v_lshrrev_b32 v1, 5, v0\nv_add_u32 v1, s{sN}, v1" if k == 0 else f"s_add_u32 s{sN}, s{sN}, 2\nv_mov_b32 v1, s{sN}")
            a(f"""v_lshrrev_b32 v13, 4, v1
            v_bfe_u32 v16, v1, 3, 1
            v_and_b32 v1, 7, v1
            v_lshl_add_u32 v1, v1, 1, v12
            v_lshl_add_u32 v17, v13, 2, v10
            v_lshl_add_u32 v17, v17, 1, v16
            v_lshl_add_u32 v18, v1, 2, v11
            v_lshlrev_b32 v18, 4, v18
            v_lshl_add_u32 v{vL+k}, v17, 10, v18
            v_lshl_add_u32 v1, v16, 5, v1
            v_mul_u32_u24 v1, 2304, v1
            v_lshl_add_u32 v1, v13, 7, v1
            v_lshl_add_u32 v1, v10, 5, v1
            v_lshl_add_u32 v{vO0+k}, v11, 3, v1""")
            if self.wide:
                a(f"v_and_b32 v1, 1, v0\nv_mul_u32_u24 v1, {16*2304 - 8}, v1\nv_add_u32 v{vO0+k}, v{vO0+k}, v1")
        if self.wide:
            a("v_and_b32 v1, 1, v0\nv_cmp_eq_u32 vcc, 1, v1")
        for i in range(16):
            a(f"v_mov_b32 v{vSum+i}, 0")
        if self.dot:
            a("v_mov_b32 v16, 0x3f80\nv_mov_b32 v17, 0x3f800000")
        a(f"""s_mov_b32 s{sN}, 0
        s_mov_b32 s{sOG}, 0
        L_red_look:
        ds_read_b32 v5, v9
        s_waitcnt lgkmcnt(0)
        v_readfirstlane_b32 s{sT2}, v5
        s_sub_u32 s{sSPIN}, s{sSPIN}, 1
        s_cselect_b32 s{sT2}, 0xff, s{sT2}
        s_andn2_b32 s{sT2}, s{sT2}, s{sN}
        s_cbranch_scc1 L_red_new
        s_getreg_b32 s{sT0}, hwreg(HW_REG_IB_STS)
        s_and_b32 s{sT0}, s{sT0}, 0xc000000f
        s_cselect_b32 s{sT0}, 0, s{sOG}
        s_cmp_lg_u32 s{sT0}, 0
        s_cbranch_scc1 L_red_add
        s_sleep 1
        s_branch L_red_look
        L_red_new:
        s_or_b32 s{sN}, s{sN}, s{sT2}
        s_or_b32 s{sOG}, s{sOG}, s{sT2}""")
        for h in range(8):
            a(f"""s_bitcmp1_b32 s{sT2}, {h}
            s_cbranch_scc0 L_red_h{h}
            s_add_u32 s{sT0}, s{sM}, {h*PART}
            buffer_load_dwordx4 {vr(vD+4*h,4)}, v{vL}, {sr(sWS)}, s{sT0} offen {('sc1', 'sc1', 'sc0 sc1')[self.partop]}
            s_mov_b32 exec_hi, 0
            buffer_load_dwordx4 {vr(vD+32+4*h,4)}, v{vL+1}, {sr(sWS)}, s{sT0} offen {('sc1', 'sc1', 'sc0 sc1')[self.partop]}
            s_mov_b32 exec_hi, -1
            L_red_h{h}:""")
        self.stamp(14)
        if not self.blk:
            a(f"s_cmp_lg_u32 s{sN}, 0xff\ns_cbranch_scc1 L_red_look")
        a("L_red_add:\ns_waitcnt vmcnt(0)")
        for h in range(8):
            a(f"s_bitcmp1_b32 s{sOG}, {h}\ns_cbranch_scc0 L_red_a{h}")
            for k in range(2):
                for i in range(4):
                    r, t = vD + 32*k + 4*h + i, 10 + 2*(i & 1)
                    if self.dot:
                        c = vSum + 8*k + 2*i
                        a(f"v_dot2_f32_bf16 v{c}, v{r}, v16, v{c}\nv_dot2_f32_bf16 v{c+1}, v{r}, v17, v{c+1}")
                        continue
                    a(f"""v_lshlrev_b32 v{t}, 16, v{r}
                    v_and_b32 v{t+1}, 0xffff0000, v{r}
                    v_pk_add_f32 {vr(vSum+8*k+2*i, 2)}, {vr(vSum+8*k+2*i, 2)}, {vr(t, 2)}""")
            a(f"L_red_a{h}:")
        a(f"""s_mov_b32 s{sOG}, 0
        s_cmp_lg_u32 s{sN}, 0xff
        s_cbranch_scc1 L_red_look
        s_add_u32 s{sT0}, s{sOBASE}, {16*2304}""")
        if self.dot:
            a("s_nop 1")
        for k in range(2):
            if k:
                a("s_mov_b32 exec_hi, 0")
            for i in range(4):
                a(f"v_cvt_pk_bf16_f32 v{vSum+16+4*k+i}, v{vSum+8*k+2*i}, v{vSum+8*k+2*i+1}")
            c = vSum + 16 + 4*k
            if self.wide:
                a(f"""v_cndmask_b32 v10, v{c+2}, v{c}, vcc
                v_cndmask_b32 v11, v{c+3}, v{c+1}, vcc
                s_nop 1
                v_mov_b32_dpp v12, v10 quad_perm:[1,0,3,2] row_mask:0xf bank_mask:0xf
                v_mov_b32_dpp v13, v11 quad_perm:[1,0,3,2] row_mask:0xf bank_mask:0xf
                v_cndmask_b32 v{c}, v{c}, v12, vcc
                v_cndmask_b32 v{c+1}, v{c+1}, v13, vcc
                v_cndmask_b32 v{c+2}, v12, v{c+2}, vcc
                v_cndmask_b32 v{c+3}, v13, v{c+3}, vcc
                buffer_store_dwordx4 {vr(c,4)}, v{vO0+k}, {sr(sX)}, s{sOBASE} offen{of}""")
            else:
                a(f"""buffer_store_dwordx2 {vr(c,2)}, v{vO0+k}, {sr(sX)}, s{sOBASE} offen{of}
                buffer_store_dwordx2 {vr(c+2,2)}, v{vO0+k}, {sr(sX)}, s{sT0} offen{of}""")
        a("L_red_end:")
        if self.stamps:
            a("s_mov_b64 exec, -1\ns_waitcnt vmcnt(0)")
            self.stamp(12)
            self.stamp_dump(0)
            self.stamp_dump(1)
            if self.hold:
                a(f"""s_cmp_lg_u32 s2, {self.hwg}
                s_cbranch_scc1 L_end
                s_cmp_lg_u32 s{sWAVE}, 4
                s_cbranch_scc1 L_end
                v_readlane_b32 s{sT0}, v255, 0
                v_readlane_b32 s{sT1}, v255, {self.hi}
                v_readlane_b32 s{sT2}, v255, {self.hj}
                s_sub_u32 s{sT2}, s{sT2}, s{sT1}
                s_add_u32 s{sT2}, s{sT2}, {self.hold*100}
                s_mov_b32 s{sSPIN}, {SPIN}
                L_hold:
                s_memrealtime s[98:99]
                s_waitcnt lgkmcnt(0)
                s_sub_u32 s98, s98, s{sT0}
                s_cmp_ge_u32 s98, s{sT2}
                s_cbranch_scc1 L_end
                s_sub_u32 s{sSPIN}, s{sSPIN}, 1
                s_cbranch_scc0 L_hold""")
        a("s_endpgm")

    def at_rare(self):
        a = self.a
        t, u, al = vT, vP, vP + 2
        a(f"""L_rescale:
        v_mov_b32 v{u}, v{t}
        v_mov_b32 v{u+1}, v{t+1}
        s_nop 1
        v_permlane32_swap_b32 v{t}, v{u}
        v_permlane32_swap_b32 v{t+1}, v{u+1}
        v_max_f32 v{t}, v{t}, v{u}
        v_max_f32 v{t+1}, v{t+1}, v{u+1}
        v_mov_b32 v{u}, v{t}
        v_mov_b32 v{u+1}, v{t+1}
        s_nop 1
        v_permlane16_swap_b32 v{t}, v{u}
        v_permlane16_swap_b32 v{t+1}, v{u+1}
        v_max3_f32 v{t}, v{t}, v{u}, s{sFLOOR}
        v_max3_f32 v{t+1}, v{t+1}, v{u+1}, s{sFLOOR}
        v_max_f32 v{al}, 0, v{t}
        v_max_f32 v{al+2}, 0, v{t+1}
        v_exp_f32 v{al}, -v{al}
        v_exp_f32 v{al+2}, -v{al+2}
        s_mov_b32 s{sTH}, 0x41000000
        s_mov_b32 s{sFLOOR}, 0
        v_mul_f32 v{al}, s{sFIRST}, v{al}
        v_mul_f32 v{al+2}, s{sFIRST}, v{al+2}
        s_mov_b32 s{sFIRST}, 1.0""")
        for qt in range(2):
            for i in range(8):
                a(f"v_sub_f32 v{vS+8*qt+i}, v{vS+8*qt+i}, v{t+qt}")
            for i in range(4):
                a(f"v_sub_f32 v{vNM+4*qt+i}, v{vNM+4*qt+i}, v{t+qt}")
            a(f"v_pk_mul_f32 {vr(vL0+2*qt, 2)}, {vr(vL0+2*qt, 2)}, {vr(al+2*qt,2)} op_sel_hi:[1,0]")
            for p in range(4):
                for i in range(0, 8, 2):
                    c = vO + (p*2 + qt)*8 + i
                    a(f"v_pk_mul_f32 {vr(c,2)}, {vr(c,2)}, {vr(al+2*qt,2)} op_sel_hi:[1,0]")
        a("s_branch L_tile_exp")

    def main(self):
        a = self.a
        self.prologue()
        a(f"s_cmp_ge_u32 s{sWAVE}, 4\ns_cbranch_scc1 L_pj")
        if self.inl:
            self.at_first()
            self.subs()
        else:
            a("s_branch L_at")
            self.subs()
            self.at_first()
        self.pj_first()
        self.pj_setup()
        self.at_rest()
        self.reduce()
        self.at_rare()
        self.pj_rest()
        a("L_end:\ns_endpgm")
        return a.text()


HEADER = open("cdna_kernels/" + NAME + ".s.ref").read().split("; Override launch geometry")[0]


ABOUT = """; Fused two-branch attention block, one launch, one 512-thread workgroup per CU.
"""


def build(**kw):
    return HEADER + ABOUT + single(Gen(**kw).main(), 256, 512, LDS_BYTES, vgpr=256, accum=256, sgpr=102)


if __name__ == "__main__":
    kw = {}
    for x in sys.argv[2:]:
        k, v = x.split("=")
        kw[k] = int(v, 0)
    open(sys.argv[1], "w").write(build(**kw))
```

```python
import sys, struct
sys.path.insert(0, "tools")
from asmlib import *

KERNEL = NAME + "_kernel"
R0, R1, R2, WR, XR = 0, 32768, 65536, 98304, 131072
SYNC = WR + 24576
LDS_BYTES = 163840
PART = 73728
FLAG_OFF = 32 << 20
PROBE_OFF = 241 << 20
QSCALE = 1.4426950408889634 / 128 ** 0.5
SPIN = 1 << 16


def fbits(x):
    return "0x%08x" % struct.unpack("<I", struct.pack("<f", x))[0]


sWAVE, sLW, sHG, sTY, sB = 3, 4, 5, 6, 7
sK, sV, sX, sWQ, sWO, sWS = 8, 12, 16, 20, 24, 28
sKVOFF, sKVM0, sKVN = 32, 33, 34
sWCOL, sWCH, sWN = 35, 36, 37
sXBASE, sXCH, sXN = 38, 39, 40
sOCI, sOBASE, sROT = 41, 42, 43
sN, sM = 44, 45
sT0, sT1, sT2 = 46, 47, 48
sBUFSZ, sRINGEND, sWBUF, sOLW, sOBUF, sTHR, sKVCNT = 49, 50, 51, 52, 53, 54, 55
sTH, sFLOOR, sRPOS, sSTAGE = 56, 57, 58, 59
sRB = 60
sRET = 64
sFIRST, sQBUF, sSLOT = 66, 67, 68
sC8K = 67
sWB = 69
sBV, sPT = 72, 76
sOUTP, sDBGP = 80, 82
sTN, sLAST, sPADDR, sTBASE = 84, 85, 86, 87
sFADDR, sSPIN, sPROG, sOG = 88, 89, 90, 91
sBXP, sBWP = 92, 94

vKVO, vVVO, vXVO, vOVO, vWVO = 8, 12, 14, 16, 22
vWA, vWA0, vQW = 24, 28, 29
vOA0, vOA, vST = 24, 27, 30
vXA0, vXA, vZ = 31, 33, 35
vFA, vFB, vACC = 36, 72, 104
vPR, vDUM = 4, 5
vKA, vVA, vH, vT, vL0 = 24, 28, 38, 40, 76
vP, vS, vNM, vQ, vKF, vVF, vO = 44, 52, 68, 84, 116, 148, 180


def vr(i, n):
    return f"v[{i}:{i+n-1}]"


def sr(i, n=4):
    return f"s[{i}:{i+n-1}]"


class Lg:
    def __init__(self, a):
        self.a, self.q = a, []
    def issue(self, text, tag):
        if len(self.q) == 15:
            self.wait(self.q[0])
        self.a(text)
        self.q.append(tag)
    def wait(self, *tags):
        idx = max((i for i, t in enumerate(self.q) if t in tags), default=-1)
        if idx < 0:
            return
        self.a(f"s_waitcnt lgkmcnt({len(self.q) - idx - 1})")
        self.q = self.q[idx + 1:]
    def drain(self):
        self.a("s_waitcnt lgkmcnt(0)")
        self.q = []


DEFAULTS = dict(stamps=0, probes=0, vmprobe=2, thr=63, prefill=8, store0=4, store1=8, ipf=1, touch=0, xtouch=1,
                prio=7, gate=0, thrmask=0xffffffff, help=20, lead0=3, lead1=6, kvnt=1, pace=99, dbgst=0, ahead=4, from_=0, bthr=63, polls=1, nap=2, sdw=1, alate=0, wqat=4, diag=0, hrot=0, early_n=0, ahead0=0, hold=0, hi=0, hj=0, hwg=8, xplan=3, xfrom=1, aidle=0, adist=2, outf=1, stp=3, gmajor=0, stp0=12, pkl=1, flagop=0, partop=0, defer=0, wpol=0, blk=0, dot=0, wmap=0, wide=1, inl=1, lite=0, prefa=8, front=100, hyb=1, thr2=0, weavea=1)


class Gen:
    def __init__(self, **kw):
        self.a = Asm()
        self.o = dict(DEFAULTS)
        assert set(kw) <= set(DEFAULTS), kw
        self.o.update(kw)
        for k, v in self.o.items():
            setattr(self, k, v)
        self.kvflag = ("", " nt", " sc1 nt", " sc0 sc1 nt", " sc0 nt")[self.kvnt]
        self.wflag = ("", " sc1", " sc0 sc1", " sc0")[self.wpol]
        self.follow = (self.help and self.ahead < 0) or self.pace < 99
        self.NA = 4 + bool(self.help) + bool(self.follow)
        self.uid = 0
        assert not (self.gate or self.follow)
        assert self.pkl or not self.defer
        assert not (self.help and self.ahead < 0 and self.touch)

    def lab(self, s):
        self.uid += 1
        return f"L_{s}{self.uid}"

    def stamp(self, k):
        if self.stamps:
            self.a(f"s_memrealtime s[98:99]\ns_memtime s[100:101]\ns_waitcnt lgkmcnt(0)\nv_writelane_b32 v255, s98, {k}\nv_writelane_b32 v255, s100, {16+k}")

    def stamp_dump(self, role):
        if self.stamps:
            l = self.lab("sd")
            self.a(f"""s_cmp_lg_u32 s{sWAVE}, {4*role + self.sdw}
            s_cbranch_scc1 {l}
            s_lshl_b32 s{sT0}, s2, 8
            s_add_u32 s{sT0}, s{sT0}, {STAMP_OFF + 128*role}
            v_lshlrev_b32 v1, 2, v0
            s_mov_b64 exec, 0xffffffff
            buffer_store_dword v255, v1, {sr(sWS)}, s{sT0} offen
            s_mov_b64 exec, -1""")
            if self.lite and role:
                self.a(f"s_add_u32 s{sT0}, s{sT0}, {(1 << 20) - 128}\nbuffer_store_dword v254, v1, {sr(sWS)}, s{sT0} offen")
            if self.dbgst:
                srd(self.a, sPT, sDBGP, 256)
                self.a(f"""s_cmp_lg_u32 s{sTY}, {self.dbgst - 1}
                s_cbranch_scc1 {l}
                v_not_b32 v11, v255
                v_cmp_eq_u32 vcc, 0, v0
                s_nop 1
                v_cndmask_b32 v11, v255, v11, vcc
                s_mov_b64 exec, {0x3ff if role else 0x1c00}
                buffer_atomic_umax v11, v1, {sr(sPT)}, 0 offen sc1
                s_mov_b64 exec, -1""")
            self.a(f"{l}:")

    def probe(self, k, first=False):
        if self.lite and first:
            self.a(f"s_add_u32 s{sSLOT}, s{sSLOT}, 1\ns_memrealtime s[98:99]\ns_waitcnt lgkmcnt(0)\ns_mov_b32 m0, s{sSLOT}\nv_writelane_b32 v254, s98, m0")
        if self.probes:
            if first:
                self.a(f"s_add_u32 s{sSLOT}, s{sSLOT}, 1")
            self.a(f"s_memtime s[98:99]\ns_getreg_b32 s100, hwreg(HW_REG_IB_STS)\ns_waitcnt lgkmcnt(0)\ns_mov_b32 m0, s{sSLOT}\nv_writelane_b32 v{248+k}, s98, m0")
            if k == self.vmprobe:
                self.a("v_writelane_b32 v251, s100, m0")

    def early(self, lane):
        if self.probes:
            self.a(f"s_memtime s[98:99]\ns_waitcnt lgkmcnt(0)\nv_writelane_b32 v255, s98, {lane}")

    def probe_dump(self):
        if self.probes:
            l = self.lab("pd")
            self.a(f"""s_cmp_lg_u32 s{sLW}, 0
            s_cbranch_scc1 {l}
            s_lshl_b32 s{sT0}, s2, 1
            s_lshr_b32 s{sT1}, s{sWAVE}, 2
            s_add_u32 s{sT0}, s{sT0}, s{sT1}
            s_lshl_b32 s{sT0}, s{sT0}, 11
            s_add_u32 s{sT0}, s{sT0}, {PROBE_OFF}
            v_lshlrev_b32 v1, 2, v0""")
            for k in range(8):
                self.a(f"buffer_store_dword v{248+k}, v1, {sr(sWS)}, s{sT0} offen offset:{256*k}")
            self.a(f"{l}:")

    def prio_set(self, bit, off=None):
        if self.prio >> bit & 1:
            self.a("s_setprio 1")
        elif off is not None and self.prio >> off & 1:
            self.a("s_setprio 0")

    def call(self, name):
        self.a(f"s_call_b64 {sr(sRET, 2)}, {name}")

    def ret(self):
        self.a(f"s_setpc_b64 {sr(sRET, 2)}")

    def spread(self, base, fill, start=0):
        n, m = (len(base) - start) * self.front // 100, len(fill)
        j = 0
        for k, t in enumerate(base):
            while k >= start and j < m and j * n <= (k - start) * m:
                self.a(fill[j]); j += 1
            if callable(t): t()
            else: self.a(t)
        for t in fill[j:]:
            self.a(t)

    def other_srd(self, dst, karg_off, size):
        self.a(f"""s_load_dwordx2 {sr(dst, 2)}, s[0:1], {karg_off}
        s_waitcnt lgkmcnt(0)
        s_and_b32 s{dst+1}, s{dst+1}, 0xffff
        s_mov_b32 s{dst+2}, {size}
        s_mov_b32 s{dst+3}, 0x20000""")

    def spin(self, load, vdst, done):
        l, e = self.lab("sp"), self.lab("se")
        self.a(f"""s_mov_b32 s{sSPIN}, {SPIN}
        {l}:
        {load}
        s_waitcnt vmcnt(0) lgkmcnt(0)
        {done}
        s_cbranch_scc1 {e}
        s_sleep 1
        s_sub_u32 s{sSPIN}, s{sSPIN}, 1
        s_cmp_lg_u32 s{sSPIN}, 0
        s_cbranch_scc1 {l}
        {e}:""")

    def wait_init(self, vz, vd):
        srd(self.a, sPT, sDBGP, 256)
        self.a(f"s_lshl_b32 s{sT2}, s{sB}, 2")
        self.spin(f"buffer_load_dword v{vd}, v{vz}, {sr(sPT)}, s{sT2} offen offset:{128*bool(self.dbgst)} sc1", vd,
                  f"v_readfirstlane_b32 s{sT1}, v{vd}\ns_cmp_ge_u32 s{sT1}, 16")

    def decode(self):
        if self.wmap == 0:
            return f"s_lshr_b32 s{sTY}, s2, 3\ns_and_b32 s{sTY}, s{sTY}, 1\ns_lshr_b32 s{sB}, s2, 4"
        return f"s_lshr_b32 s{sTY}, s2, 7\ns_xor_b32 s{sTY}, s{sTY}, {self.wmap - 1}\ns_lshr_b32 s{sB}, s2, 3\ns_and_b32 s{sB}, s{sB}, 15"

    def prologue(self):
        a = self.a
        a("s_cmp_ge_u32 s2, 256\ns_cbranch_scc1 L_end")
        if self.probes or self.stamps:
            a("s_memtime s[96:97]" if self.probes else "s_memrealtime s[96:97]")
        a(f"""s_load_dwordx2 s[68:69], s[0:1], 96
        s_load_dwordx4 {sr(sOUTP)}, s[0:1], 80
        s_load_dwordx2 {sr(sBXP, 2)}, s[0:1], 40
        s_load_dwordx2 {sr(sBWP, 2)}, s[0:1], 64
        s_and_b32 s{sHG}, s2, 7
        {self.decode()}
        s_mul_i32 s{sT0}, s{sTY}, 40
        s_add_u32 s0, s0, s{sT0}
        s_addc_u32 s1, s1, 0
        s_load_dwordx8 s[56:63], s[0:1], 0
        s_load_dwordx2 s[70:71], s[0:1], 32""")
        if self.ipf:
            a(f"""s_getpc_b64 {sr(sT0, 2)}
            L_pc:
            s_sub_u32 s{sT0}, s{sT0}, L_pc-{KERNEL}
            s_subb_u32 s{sT0+1}, s{sT0+1}, 0
            s_and_b32 s{sT2}, s2, 0xf8
            v_lshrrev_b32 v1, 6, v0
            v_add_lshl_u32 v6, v1, s{sT2}, 7
            v_min_u32 v6, L_end-{KERNEL}, v6
            v_mov_b32 v7, s{sT0+1}
            v_add_co_u32 v6, vcc, s{sT0}, v6
            s_nop 1
            v_addc_co_u32 v7, vcc, 0, v7, vcc
            global_load_dword v{vFA+32}, v[6:7], off""")
        a(f"""v_lshrrev_b32 v1, 6, v0
        v_and_b32 v0, 63, v0
        v_readfirstlane_b32 s{sWAVE}, v1
        v_lshrrev_b32 v2, 4, v0
        v_and_b32 v3, 15, v0
        s_and_b32 s{sLW}, s{sWAVE}, 3
        v_lshrrev_b32 v4, 3, v0
        v_and_b32 v5, 7, v0
        v_mul_u32_u24 v7, 1152, v4""")
        for n in range(2):
            a(f"""v_add_u32 v6, {4*n}, v2
            v_xor_b32 v6, v6, v5
            v_lshl_add_u32 v6, v6, 4, v7
            v_add_u32 v{vXVO+n}, {n*(8*1152-1024)}, v6""")
        a(f"""v_and_b32 v1, 1, v2
        v_lshlrev_b32 v1, 1, v1
        v_xor_b32 v1, v1, v5
        v_lshlrev_b32 v1, 4, v1
        v_lshl_add_u32 v{vWVO}, v4, 13, v1
        v_xor_b32 v{vWVO+1}, 64, v{vWVO}
        s_lshl_b32 s{sWCOL}, s{sHG}, 10
        s_lshl_b32 s{sT0}, s{sLW}, 7
        s_add_u32 s{sWCOL}, s{sWCOL}, s{sT0}
        s_mov_b32 s{sWN}, 0
        s_mul_i32 s{sT0}, s{sHG}, {self.hrot}
        s_add_u32 s{sT0}, s{sT0}, s{sB}
        s_mul_i32 s{sT1}, s{sT0}, 57
        s_lshr_b32 s{sT1}, s{sT1}, 9
        s_mul_i32 s{sT1}, s{sT1}, 9
        s_sub_u32 s{sXCH}, s{sT0}, s{sT1}
        s_mov_b32 s{sWCH}, s{sXCH}
        s_mul_i32 s{sXBASE}, s{sB}, 73728
        s_mul_i32 s{sT0}, s{sLW}, 18432
        s_add_u32 s{sXBASE}, s{sXBASE}, s{sT0}
        s_lshl_b32 s{sT0}, s{sB}, 3
        s_add_u32 s{sT0}, s{sT0}, s{sHG}
        s_lshl_b32 s{sPADDR}, s{sT0}, 7
        s_add_u32 s{sPADDR}, s{sPADDR}, {FLAG_OFF + 32768}
        s_lshl_b32 s{sFADDR}, s{sB}, 10
        s_add_u32 s{sFADDR}, s{sFADDR}, {FLAG_OFF}
        s_waitcnt lgkmcnt(0)""")
        srd(a, sX, 56, SIZE['A_x'])
        srd(a, sWQ, 62, SIZE['A_wq'])
        if self.probes or self.stamps:
            self.late_srds()
        if self.probes or self.stamps:
            a(f"s_mov_b32 s{sSLOT}, -1")
            for k in range(8):
                a(f"v_mov_b32 v{248+k}, 0")
            a("v_writelane_b32 v255, s96, 0")
            self.early(1)

    def late_srds(self):
        a = self.a
        a(f"""s_mov_b32 s{sK}, s58
        s_and_b32 s{sK+1}, s59, 0xffff
        s_lshl_b32 s{sK+2}, {SIZE['A_k']}, s{sTY}
        s_mov_b32 s{sK+3}, 0x20000
        s_mov_b32 s{sV}, s60
        s_and_b32 s{sV+1}, s61, 0xffff
        s_mov_b32 s{sV+2}, s{sK+2}
        s_mov_b32 s{sV+3}, 0x20000""")
        srd(a, sWO, 70, SIZE['A_wo'])
        srd(a, sWS, 68, SIZE['ws'])
        srd(a, sBV, 60, 0)

    def late_common(self):
        a = self.a
        a(f"""s_lshl_b32 s{sBUFSZ}, 16384, s{sTY}
        s_lshl_b32 s{sT0}, 2048, s{sTY}
        s_mul_i32 s{sKVM0}, s{sT0}, s{sLW}
        s_add_u32 s{sRINGEND}, s{sKVM0}, 98304
        s_lshl_b32 s{sT0}, s{sB}, 3
        s_add_u32 s{sT0}, s{sT0}, s{sHG}
        s_lshl_b32 s{sTBASE}, s{sT0}, 19
        s_add_u32 s{sT1}, s{sTY}, 18
        s_lshl_b32 s{sKVOFF}, s{sT0}, s{sT1}
        s_lshr_b32 s{sT0}, s{sLW}, 1
        s_lshl_b32 s{sT0}, s{sT0}, 17
        s_and_b32 s{sT1}, s{sLW}, 1
        s_lshl_b32 s{sT2}, s{sT1}, 12
        s_add_u32 s{sT0}, s{sT0}, s{sT2}
        s_add_u32 s{sTBASE}, s{sTBASE}, s{sT0}
        s_cmp_eq_u32 s{sTY}, 1
        s_cselect_b32 s{sT0}, s{sT0}, s{sKVM0}
        s_add_u32 s{sKVOFF}, s{sKVOFF}, s{sT0}
        s_lshl_b32 s{sT1}, s{sT1}, 3
        s_cmp_eq_u32 s{sTY}, 1
        s_cselect_b32 s{sT1}, 0, s{sT1}
        s_mov_b32 s{sKVN}, 0
        v_lshlrev_b32 v6, 8, v2
        v_add_u32 v7, s{sT1}, v2""")
        for n in range(4):
            a(f"""v_add_u32 v1, {4*n}, v7
            v_xor_b32 v1, v1, v3
            v_and_b32 v1, 15, v1
            v_lshl_add_u32 v{vKVO+n}, v1, 4, v6""")
        a(f"""v_lshlrev_b32 v1, 1, v2
        v_xor_b32 v1, v1, v3
        v_lshl_add_u32 v{vVVO}, v1, 4, v6
        v_xor_b32 v{vVVO+1}, 128, v{vVVO}""")

    def late_wo(self):
        a = self.a
        for n in range(6):
            a(f"""v_add_u32 v1, {64*n}, v0
            v_mul_u32_u24 v6, 2731, v1
            v_lshrrev_b32 v6, 16, v6
            v_mul_u32_u24 v7, 24, v6
            v_sub_u32 v1, v1, v7
            v_and_b32 v7, 6, v6
            v_xor_b32 v1, v1, v7
            v_lshlrev_b32 v1, 4, v1
            v_mul_u32_u24 v6, 1152, v6
            v_add_u32 v1, v1, v6
            v_subrev_u32 v{vOVO+n}, {1024*(n&3)}, v1""")
        a(f"""s_lshl_b32 s{sT0}, s{sHG}, 9
        s_lshl_b32 s{sT1}, s{sLW}, 4
        s_add_u32 s{sT0}, s{sT0}, s{sT1}
        s_mul_i32 s{sOBASE}, s{sT0}, 1152
        s_and_b32 s{sROT}, s{sB}, 3
        s_mul_i32 s{sOLW}, s{sLW}, 6144
        s_cmp_eq_u32 s{sTY}, 1
        s_mov_b32 s{sRB}, {WR}
        s_mov_b32 s{sRB+1}, {R2}
        s_cselect_b32 s{sRB+2}, {R0}, {R1}
        s_cselect_b32 s{sRB+3}, {R1}, {R0}""")

    def x_adv(self):
        self.a(f"""s_add_u32 s{sXN}, s{sXN}, 1
        s_add_u32 s{sXCH}, s{sXCH}, 1
        s_cmp_eq_u32 s{sXCH}, 9
        s_cselect_b32 s{sXCH}, 0, s{sXCH}""")

    def kv_items_b(self):
        f = self.kvflag
        items = []
        for n in range(8):
            t = ""
            if n == 0:
                t += f"s_mov_b32 m0, s{sKVM0}\ns_cmp_eq_u32 s{sKVN}, 15\n"
            if n == 4:
                t += f"s_add_u32 m0, s{sKVM0}, 16384\ns_add_u32 s{sKVM0}, s{sKVM0}, 32768\n"
            if self.bthr < 63:
                t += f"s_waitcnt vmcnt({self.bthr - 1})\n"
            if n < 4:
                t += f"buffer_load_dwordx4 v{vKVO+n}, {sr(sK)}, s{sKVOFF} offen offset:{1024*n}{f} lds\n"
            else:
                t += f"buffer_load_dwordx4 v{vVVO+(n&1)}, {sr(sV)}, s{sKVOFF} offen offset:{1024*(n-4)}{f} lds\n"
            if n == 0:
                t += f"s_cselect_b32 s{sKVCNT}, 131072, 0\ns_add_u32 s{sKVCNT}, s{sKVCNT}, 8192\ns_add_u32 s{sKVN}, s{sKVN}, 1\n"
            if n == 7:
                t += f"""s_add_u32 s{sKVOFF}, s{sKVOFF}, s{sKVCNT}
                s_cmp_ge_u32 s{sKVM0}, s{sRINGEND}
                s_cselect_b32 s{sKVCNT}, 98304, 0
                s_sub_u32 s{sKVM0}, s{sKVM0}, s{sKVCNT}"""
            items.append(t)
        return items

    def kv_items_a(self):
        assert self.adist == 2 and self.help and self.ahead >= 0 and self.thr == 63
        f = self.kvflag
        ld = lambda n: (f"buffer_load_dwordx4 v{vKVO+n}, {sr(sK)}, s{sKVOFF} offen offset:{1024*n}{f} lds" if n < 2 else
                        f"buffer_load_dwordx4 v{vVVO+(n&1)}, {sr(sV)}, s{sKVOFF} offen offset:{1024*(n-2)}{f} lds")
        return [f"s_mov_b32 m0, s{sKVM0}\ns_add_u32 s{sKVN}, s{sKVN}, 1\n{ld(0)}",
                f"""{ld(1)}
                s_add_u32 s{sLAST}, s{sKVN}, {self.ahead}
                s_min_u32 s{sLAST}, s{sLAST}, 31
                s_max_u32 s{sLAST}, s{sLAST}, {self.from_}""",
                f"""s_add_u32 m0, s{sKVM0}, 8192
                s_add_u32 s{sKVM0}, s{sKVM0}, 16384
                {ld(2)}
                s_and_b32 s{sTN}, s{sLAST}, 15
                s_lshl_b32 s{sTN}, s{sTN}, 13
                s_lshr_b32 s{sLAST}, s{sLAST}, 4
                s_lshl_b32 s{sLAST}, s{sLAST}, 18""",
                f"""{ld(3)}
                s_add_u32 s{sKVOFF}, s{sKVOFF}, 8192
                s_add_u32 s{sTN}, s{sTN}, s{sLAST}
                s_add_u32 s{sTN}, s{sTN}, s{sTBASE}""",
                f"""s_mov_b64 exec, {(1 << self.help) - 1}
                buffer_load_dword v{vDUM}, v7, {sr(sBV)}, s{sTN} offen offset:{4096 - 128*self.help}
                s_mov_b64 exec, -1
                s_cmp_ge_u32 s{sKVM0}, s{sRINGEND}
                s_cselect_b32 s{sKVCNT}, 98304, 0
                s_sub_u32 s{sKVM0}, s{sKVM0}, s{sKVCNT}"""]

    def last_seq(self, c):
        if self.hyb and c >= 6:
            return 2 + (c - 6) % 2, (c - 6) // 2
        return c // 3, c % 3

    def wo_addr(self, buf):
        return f"""s_add_u32 s{sT0}, s{sOCI}, s{sROT}
                s_and_b32 s{sT0}, s{sT0}, 3
                s_lshr_b32 s{sT1}, s{sOCI}, 2
                s_lshl_b32 s{sT1}, s{sT1}, 2
                s_add_u32 s{sT0}, s{sT0}, s{sT1}
                s_mul_i32 s{sT0}, s{sT0}, 73728
                s_add_u32 s{sT0}, s{sT0}, s{sOG}
                s_add_u32 s{sT1}, s{buf}, s{sOLW}
                s_mov_b32 m0, s{sT1}
                s_add_u32 s{sT0}, s{sT0}, s{sOBASE}"""

    def wo_adv(self):
        if self.gmajor:
            l, e = self.lab("wa"), self.lab("we")
            return f"""s_cmp_ge_u32 s{sOCI}, 4
                s_cbranch_scc1 {l}
                s_add_u32 s{sOG}, s{sOG}, 384
                s_cmp_eq_u32 s{sOG}, 1152
                s_cselect_b32 s{sOG}, 0, s{sOG}
                s_addc_u32 s{sOCI}, s{sOCI}, 0
                s_branch {e}
                {l}:
                s_add_u32 s{sOCI}, s{sOCI}, 1
                s_cmp_eq_u32 s{sOCI}, 8
                s_cselect_b32 s{sOCI}, 4, s{sOCI}
                s_cselect_b32 s{sT0}, 384, 0
                s_add_u32 s{sOG}, s{sOG}, s{sT0}
                {e}:"""
        return f"""s_add_u32 s{sOG}, s{sOG}, 384
                s_cmp_eq_u32 s{sOG}, 1152
                s_cselect_b32 s{sOG}, 0, s{sOG}
                s_addc_u32 s{sOCI}, s{sOCI}, 0"""

    def wo_items(self):
        items = []
        for n in range(6):
            t = self.wo_addr(sOBUF) + "\n" if n == 0 else ""
            if n == 4:
                t += f"s_add_u32 m0, s{sT1}, 4096\ns_nop 0\n"
            t += f"buffer_load_dwordx4 v{vOVO+n}, {sr(sWO)}, s{sT0} offen offset:{1024*(n&3)}{self.wflag} lds\n"
            if n == 5:
                t += self.wo_adv()
            items.append(t)
        return items

    def w_items(self, back=False):
        items = []
        for n in range(8):
            if n == 0:
                t = f"s_lshl_b32 s{sT0}, s{sWCH}, 19\ns_add_u32 s{sT0}, s{sT0}, s{sWCOL}\ns_mov_b32 m0, s{sWBUF}\n"
                t += f"s_sub_u32 s{sWCH}, s{sWCH}, 1\ns_cselect_b32 s{sWCH}, 8, s{sWCH}\n" if back else f"s_add_u32 s{sWCH}, s{sWCH}, 1\n"
            elif n == 4:
                t = f"s_add_u32 m0, s{sWBUF}, 4096\ns_add_u32 s{sT0}, s{sT0}, {65536+3072}\n"
            else:
                t = f"s_add_u32 s{sT0}, s{sT0}, {65536-1024}\n"
            t += f"buffer_load_dwordx4 v{vWVO+(n&1)}, {sr(sWQ)}, s{sT0} offen offset:{1024*(n&3)}{self.wflag} lds\n"
            if n == 7 and not back:
                t += f"""s_cmp_eq_u32 s{sWCH}, 9
                s_cselect_b32 s{sWCH}, 0, s{sWCH}
                s_add_u32 s{sWN}, s{sWN}, 1
                s_cmp_eq_u32 s{sWN}, 9
                s_cselect_b32 s{sT1}, 512, 0
                s_add_u32 s{sWCOL}, s{sWCOL}, s{sT1}"""
            items.append(t)
        return items

    def x_body(self):
        a = self.a
        a(f"""s_lshl_b32 s{sT0}, s{sXCH}, 7
        s_add_u32 s{sT0}, s{sT0}, s{sXBASE}
        s_and_b32 s{sT1}, s{sXN}, 3
        s_lshl_b32 s{sT1}, s{sT1}, 2
        s_add_u32 s{sT1}, s{sT1}, s{sLW}
        s_lshl_b32 s{sT1}, s{sT1}, 11
        s_add_u32 m0, s{sT1}, {XR}""")
        self.x_adv()
        for n in range(2):
            a(f"buffer_load_dwordx4 v{vXVO+n}, {sr(sX)}, s{sT0} offen offset:{1024*n} lds")

    def subs(self):
        a = self.a
        f = self.kvflag
        a("F_x:")
        self.x_body()
        self.ret()
        a("F_w:")
        for t in self.w_items():
            a(t)
        self.ret()
        a(f"""F_kv:
        s_cmp_eq_u32 s{sTY}, 0
        s_cbranch_scc1 F_kv_a""")
        for t in self.kv_items_b():
            a(t)
        a(f"s_mov_b32 s{sKVCNT}, 8")
        self.ret()
        a(f"""F_kv_a:
        s_mov_b32 s{sKVCNT}, 0
        s_cmp_ge_u32 s{sKVN}, 32
        s_cbranch_scc1 F_kv_ret""")
        if self.follow:
            a(f"""s_cmp_eq_u32 s{sTHR}, 0
            s_cbranch_scc1 F_kv_go
            s_waitcnt vmcnt(0)
            v_readfirstlane_b32 s{sPROG}, v{vPR}""")
            if self.pace < 99:
                check = f"s_add_u32 s{sT1}, s{sPROG}, {self.pace}\ns_cmp_ge_u32 s{sT1}, s{sKVN}"
                a(check + "\ns_cbranch_scc1 F_kv_go")
                self.spin(f"buffer_load_dword v{vPR}, v{vZ}, {sr(sWS)}, s{sPADDR} offen sc1", vPR,
                          f"v_readfirstlane_b32 s{sPROG}, v{vPR}\n" + check)
            a("F_kv_go:")
        a(f"""s_mov_b32 m0, s{sKVM0}
        s_mov_b32 s{sKVCNT}, 4""")
        if self.thr < 63:
            a(f"s_lshr_b32 s{sT1}, {self.thrmask}, s{sKVN}\ns_and_b32 s{sT1}, s{sT1}, s{sTHR}")
        for n in range(4):
            if self.thr < 63:
                l = self.lab("thr")
                if self.thr2:
                    a(f"s_cmp_eq_u32 s{sTHR}, 0\ns_cbranch_scc1 {l}\ns_waitcnt vmcnt({self.thr2-1})")
                a(f"s_cmp_eq_u32 s{sT1}, 0\ns_cbranch_scc1 {l}\ns_waitcnt vmcnt({self.thr-1})\n{l}:")
            if n == 2:
                a(f"s_add_u32 m0, s{sKVM0}, 8192\ns_add_u32 s{sKVN}, s{sKVN}, 1")
            if n < 2:
                a(f"buffer_load_dwordx4 v{vKVO+n}, {sr(sK)}, s{sKVOFF} offen offset:{1024*n}{f} lds")
            else:
                a(f"buffer_load_dwordx4 v{vVVO+(n&1)}, {sr(sV)}, s{sKVOFF} offen offset:{1024*(n-2)}{f} lds")
        a(f"""s_add_u32 s{sKVOFF}, s{sKVOFF}, 8192
        s_add_u32 s{sKVM0}, s{sKVM0}, 16384
        s_cmp_ge_u32 s{sKVM0}, s{sRINGEND}
        s_cselect_b32 s{sT0}, 98304, 0
        s_sub_u32 s{sKVM0}, s{sKVM0}, s{sT0}""")
        if self.follow or self.help:
            a(f"s_cmp_eq_u32 s{sTHR}, 0\ns_cbranch_scc1 F_kv_ret")
        if self.help:
            if self.ahead < 0:
                a(f"""s_add_u32 s{sT1}, s{sPROG}, {self.lead0}
                s_max_u32 s{sTN}, s{sTN}, s{sT1}
                s_add_u32 s{sT1}, s{sPROG}, {self.lead1}
                s_min_u32 s{sT1}, s{sT1}, 31
                s_cmp_le_u32 s{sTN}, s{sT1}
                s_cselect_b32 s{sLAST}, s{sTN}, s{sLAST}
                s_addc_u32 s{sTN}, s{sTN}, 0""")
            else:
                a(f"""s_cmp_lt_u32 s{sKVN}, {self.early_n}
                s_cselect_b32 s{sLAST}, {self.ahead0}, {self.ahead}
                s_add_u32 s{sLAST}, s{sKVN}, s{sLAST}
                s_min_u32 s{sLAST}, s{sLAST}, 31
                s_max_u32 s{sLAST}, s{sLAST}, {self.from_}""")
            a(f"""s_and_b32 s{sT0}, s{sLAST}, 15
            s_lshl_b32 s{sT0}, s{sT0}, 13
            s_lshr_b32 s{sT1}, s{sLAST}, 4
            s_lshl_b32 s{sT1}, s{sT1}, 18
            s_add_u32 s{sT0}, s{sT0}, s{sT1}
            s_add_u32 s{sT0}, s{sT0}, s{sTBASE}
            v_lshlrev_b32 v1, 7, v0
            s_mov_b64 exec, {(1 << self.help) - 1}
            buffer_load_dword v{vDUM}, v1, {sr(sBV)}, s{sT0} offen offset:{4096 - 128*self.help}
            s_mov_b64 exec, -1""")
        if self.follow:
            a(f"buffer_load_dword v{vPR}, v{vZ}, {sr(sWS)}, s{sPADDR} offen sc1")
        a("F_kv_ret:")
        self.ret()
        a("F_wo:")
        for t in self.wo_items():
            a(t)
        self.ret()

    def kvwait(self, more=0):
        l = self.lab("kw")
        self.a(f"""s_waitcnt vmcnt({8 + more})
        s_cmp_eq_u32 s{sKVCNT}, 8
        s_cbranch_scc1 {l}
        s_waitcnt vmcnt({self.NA + more})
        s_cmp_eq_u32 s{sKVCNT}, 4
        s_cbranch_scc1 {l}
        s_waitcnt vmcnt({more})
        {l}:""")

    def pretouch_wq(self, dst):
        if not self.touch & 33:
            return
        a = self.a
        l = self.lab("pt")
        a(f"s_cmp_eq_u32 s{sTY}, 1\ns_cbranch_scc1 {l}")
        srd(a, sPT, sBWP, SIZE['B_wq'])
        a(f"""s_lshl_b32 s{sT0}, s{sB}, 2
        s_add_u32 s{sT0}, s{sT0}, s{sLW}
        s_mul_i32 s{sT0}, s{sT0}, {9*8192}
        s_lshl_b32 s{sT1}, s{sHG}, 10
        s_add_u32 s{sT0}, s{sT0}, s{sT1}
        v_lshrrev_b32 v1, 2, v0
        v_and_b32 v6, 3, v0
        v_lshlrev_b32 v6, 7, v6
        v_lshl_add_u32 v1, v1, 13, v6
        s_mov_b32 exec_hi, 15
        buffer_load_dword v{dst}, v1, {sr(sPT)}, s{sT0} offen offset:512""")
        if self.touch & 2:
            a(f"buffer_load_dword v{dst+1}, v1, {sr(sWQ)}, s{sT0} offen offset:512")
        a(f"s_mov_b64 exec, -1\n{l}:")

    def touch_own_last(self):
        l = self.lab("tl")
        if not self.touch & 16:
            self.a(f"s_cmp_eq_u32 s{sTY}, 1\ns_cbranch_scc1 {l}")
        self.a(f"""s_lshl_b32 s{sT0}, s{sB}, 2
        s_add_u32 s{sT0}, s{sT0}, s{sLW}
        s_mul_i32 s{sT0}, s{sT0}, 4608
        s_mul_i32 s{sT1}, s{sHG}, 589824
        s_add_u32 s{sT0}, s{sT0}, s{sT1}
        s_add_u32 s{sT0}, s{sT0}, 294912
        v_lshlrev_b32 v1, 7, v0
        s_mov_b32 exec_hi, 15
        buffer_load_dword v{vDUM}, v1, {sr(sWO)}, s{sT0} offen
        s_mov_b64 exec, -1
        {l}:""")

    def pretouch_wo(self, first):
        if not self.touch & 1:
            return
        a = self.a
        l = self.lab("pt")
        a(f"s_cmp_eq_u32 s{sTY}, 1\ns_cbranch_scc1 {l}")
        if first:
            self.other_srd(sPT, 72, SIZE['B_wo'])
            a(f"""s_lshl_b32 s{sT0}, s{sB}, 2
            s_add_u32 s{sT0}, s{sT0}, s{sLW}
            s_mul_i32 s{sT0}, s{sT0}, 9216
            s_mul_i32 s{sTN}, s{sHG}, 589824
            s_add_u32 s{sTN}, s{sTN}, s{sT0}""")
        else:
            a(f"v_lshlrev_b32 v1, 7, v0\ns_mov_b64 exec, 0xfff\nbuffer_load_dword v{vFA+32}, v1, {sr(sPT)}, s{sTN} offen")
            if self.touch & 2:
                a(f"buffer_load_dword v{vFA+33}, v1, {sr(sWO)}, s{sTN} offen")
            a(f"s_mov_b64 exec, -1\ns_add_u32 s{sTN}, s{sTN}, 1536")
        a(f"{l}:")

    def rdA(self, reg, areg, mt, off0, off1, tag):
        return [(f"ds_read_b64_tr_b16 {vr(reg + 2*j, 2)}, v{areg+mt} offset:{o}", tag + (j,)) for j, o in enumerate((off0, off1))]

    def rdB(self, ks, qt):
        return (f"ds_read_b128 {vr(vFB + (ks*4+qt)*4, 4)}, v{vXA+ks} offset:{2048*qt}", ("B", ks, qt))

    def mfma(self, acc, mt, qt, areg, ks):
        c = vr(acc + (mt*4+qt)*4, 4)
        return f"v_mfma_f32_16x16x32_bf16 {c}, {vr(areg, 4)}, {vr(vFB + (ks*4+qt)*4, 4)}, {c}"

    def qA(self, ks, mt):
        return vFA + (ks*4 + mt)*4

    def q_rdA(self, ks, mt):
        return self.rdA(self.qA(ks, mt), vWA, mt, 32*ks*128, (32*ks+4)*128, ("A", ks, mt))

    def q_finalize(self, acc, pending):
        a = self.a
        a(f"s_mov_b32 s{sT2}, {fbits(QSCALE)}")
        mul, cvt, put = [], [], []
        for mt in range(4):
            for qt in range(4):
                c = acc + (mt*4+qt)*4
                mul.append("\n".join(f"v_mul_f32 v{c+r}, s{sT2}, v{c+r}" for r in range(4)))
                cvt.append(f"v_cvt_pk_bf16_f32 v{c}, v{c}, v{c+1}\nv_cvt_pk_bf16_f32 v{c+1}, v{c+2}, v{c+3}")
                put.append((f"v_xor_b32 v1, {32*mt}, v{vQW}\n" if qt == 0 else "") + f"ds_write_b64 v1, {vr(c,2)} offset:{2048*qt}")
        work = ["\n".join(([put[k-2]] if 2 <= k < 18 else []) + ([cvt[k-1]] if 1 <= k < 17 else []) + ([mul[k]] if k < 16 else [])) for k in range(18)]
        lead = len(pending) - 16 + 5
        for k, t in enumerate(pending):
            a(t)
            if k + 1 == lead:
                a("s_nop 3")
            if k + 1 >= lead:
                a(work.pop(0))
        for t in work:
            a(t)
        a("s_waitcnt lgkmcnt(0)")

    ORDER4 = [(mt, qt) for mt in range(4) for qt in range(4)]
    ORDER3 = [(mt, qt) for mt in range(3) for qt in range(4)]
    NEXTX = [f"s_add_u32 s{sN}, s{sN}, 1\ns_and_b32 s{sT0}, s{sN}, 3\ns_lshl_b32 s{sT0}, s{sT0}, 13",
             f"v_add_u32 v{vXA}, s{sT0}, v{vXA0}", f"v_add_u32 v{vXA+1}, s{sT0}, v{vXA0+1}"]

    def pj_first(self):
        a = self.a
        ACC0 = vACC
        a("L_pj:")
        if not (self.probes or self.stamps):
            self.late_srds()
        a(f"""v_mov_b32 v{vZ}, 0
        s_cmp_lg_u32 s{sLW}, 0
        s_cbranch_scc1 L_pj_a
        s_lshl_b32 s{sT0}, s{sTY}, 14
        s_lshl_b32 s{sT1}, s{sHG}, 7
        s_add_u32 s{sT0}, s{sT0}, s{sT1}
        s_add_u32 s{sT0}, s{sT0}, s{sFADDR}
        v_lshlrev_b32 v1, 4, v0
        v_mov_b32 v{vFA}, 0
        v_mov_b32 v{vFA+1}, 0
        v_mov_b32 v{vFA+2}, 0
        v_mov_b32 v{vFA+3}, 0
        s_mov_b64 exec, 0xff
        buffer_store_dwordx4 {vr(vFA, 4)}, v1, {sr(sWS)}, s{sT0} offen sc1
        s_mov_b64 exec, -1
        L_pj_a:""")
        self.early(6)
        for i in list(range(vKVO, vXVO)) + list(range(vOVO, vWVO)):
            a(f"v_mov_b32 v{i}, 0")
        a(f"""s_lshl_b32 s{sT2}, s{sLW}, 13
        s_mov_b32 s{sWB}, {R1}
        s_mov_b32 s{sWB+1}, {R2}
        s_mov_b32 s{sWB+2}, {WR}
        v_lshrrev_b32 v1, 2, v3
        v_lshl_add_u32 v6, v2, 3, v1
        v_lshrrev_b32 v1, 1, v1
        v_and_b32 v7, 1, v2
        v_lshl_or_b32 v1, v7, 1, v1
        v_and_b32 v7, 3, v0
        v_lshlrev_b32 v7, 3, v7
        v_lshl_add_u32 v6, v6, 7, v7
        v_lshl_add_u32 v6, v1, 5, v6
        v_add_u32 v{vWA0}, s{sT2}, v6
        v_add_u32 v{vWA}, {WR}, v{vWA0}""")
        for mt in range(1, 4):
            a(f"v_xor_b32 v{vWA+mt}, {32*mt}, v{vWA}")
        a(f"""v_lshrrev_b32 v1, 1, v3
        v_xor_b32 v6, v1, v2
        v_lshlrev_b32 v6, 4, v6
        v_lshl_add_u32 v6, v3, 7, v6
        v_add_u32 v{vXA0}, {XR}, v6
        v_xor_b32 v{vXA0+1}, 64, v{vXA0}
        v_mov_b32 v{vXA}, v{vXA0}
        v_mov_b32 v{vXA+1}, v{vXA0+1}
        v_lshrrev_b32 v6, 1, v2
        v_xor_b32 v6, v6, v1
        v_lshlrev_b32 v6, 4, v6
        v_lshl_add_u32 v6, v3, 7, v6
        v_and_b32 v7, 1, v2
        v_lshl_add_u32 v6, v7, 3, v6
        v_add_u32 v6, s{sT2}, v6
        v_add_u32 v{vQW}, {R2}, v6""")
        for i in range(64):
            a(f"v_mov_b32 v{ACC0+i}, 0")
        for i in range(16):
            a(f"v_mov_b32 v{vFA+16+i}, 0\nv_mov_b32 v{vFB+16+i}, 0")
        self.early(4)
        srd(a, sPT, sDBGP, 256)
        a(f"""v_mov_b32 v1, 1
        s_lshl_b32 s{sT0}, s{sB}, 2
        s_mov_b32 s{sN}, 0
        s_waitcnt vmcnt(0)
        s_cmp_lg_u32 s{sLW}, 0
        s_cbranch_scc1 L_q0
        s_mov_b64 exec, 1
        buffer_atomic_add v1, v{vZ}, {sr(sPT)}, s{sT0} offen offset:{128*bool(self.dbgst)} sc1
        s_mov_b64 exec, -1""")
        nextbuf = [f"v_add_u32 v{vWA}, s{sWB}, v{vWA0}\ns_mov_b32 s{sT0}, s{sWB}", f"v_xor_b32 v{vWA+1}, 32, v{vWA}\ns_mov_b32 s{sWB}, s{sWB+1}",
                   f"v_xor_b32 v{vWA+2}, 64, v{vWA}\ns_mov_b32 s{sWB+1}, s{sWB+2}", f"v_xor_b32 v{vWA+3}, 96, v{vWA}\ns_mov_b32 s{sWB+2}, s{sT0}"]
        a("L_q0:\ns_barrier")
        self.probe(0, True)
        lg = Lg(a)
        rd = lambda ks: [self.rdB(ks, 0)] + self.q_rdA(ks, 0) + [self.rdB(ks, q) for q in (1, 2, 3)] + sum((self.q_rdA(ks, m) for m in (1, 2, 3)), [])
        r0 = rd(0)
        plan = {k: [] for k in range(-1, 32)}
        for i, x in enumerate(r0):
            plan[i // 2 - 1].append(x)
        for pos, m in ((6, 0), (8, 1), (12, 2), (16, 3)):
            for j, x in enumerate(self.q_rdA(1, m)):
                plan[pos + j].append(x)
        for q in range(4):
            plan[18 + q].append(self.rdB(1, q))
        tail = nextbuf + self.NEXTX
        for x in plan[-1]:
            lg.issue(*x)
        for k in range(32):
            mt, qt = self.ORDER4[k & 15]
            if k == 16:
                lg.wait(*[tag for _, tag in r0])
            a(self.mfma(ACC0, mt, qt, self.qA(1 - (k >> 4), mt), 1 - (k >> 4)))
            for x in plan[k]:
                lg.issue(*x)
            if k >= 22 and tail:
                a(tail.pop(0))
            if k == 30:
                lg.drain()
                a(f"s_cmp_eq_u32 s{sN}, 1")
        self.probe(1)
        a("s_cbranch_scc1 L_q0_setup")
        if self.wqat > 1:
            a(f"s_cmp_eq_u32 s{sN}, {self.wqat}\ns_cbranch_scc1 L_q0_touch")
        a(f"s_cmp_lt_u32 s{sN}, 9\ns_cbranch_scc1 L_q0")
        self.early(10)
        self.q_finalize(ACC0, [self.mfma(ACC0, mt, qt, self.qA(1, mt), 1) for mt, qt in self.ORDER4])
        self.early(12)
        a(f"v_xor_b32 v{vQW}, {R2 ^ WR}, v{vQW}")
        self.stamp(1)
        a("s_branch L_pj_rest")

    def pj_setup(self):
        a = self.a
        a("L_q0_setup:")
        self.late_common()
        self.late_wo()
        a(f"""s_cmp_eq_u32 s{sTY}, 1
        s_cselect_b32 s{sKVN}, 2, {self.adist}
        s_lshl_b32 s{sT0}, s{sKVN}, 13
        s_add_u32 s{sKVOFF}, s{sKVOFF}, s{sT0}
        s_mul_i32 s{sT0}, s{sKVN}, s{sBUFSZ}
        s_add_u32 s{sKVM0}, s{sKVM0}, s{sT0}
        s_mov_b32 s{sTHR}, 1
        s_add_u32 s{sWCOL}, s{sWCOL}, 512
        s_add_u32 s{sWCH}, s{sWCH}, 7
        s_sub_u32 s{sT0}, s{sWCH}, 9
        s_cselect_b32 s{sWCH}, s{sWCH}, s{sT0}
        s_lshl_b32 s{sT2}, s{sLW}, 13
        s_add_u32 s{sWBUF}, s{sT2}, {WR}
        s_mov_b32 s{sXN}, 4
        s_add_u32 s{sXCH}, s{sXCH}, 4
        s_sub_u32 s{sT0}, s{sXCH}, 9
        s_cselect_b32 s{sXCH}, s{sXCH}, s{sT0}
        s_mov_b32 s{sOCI}, 0
        s_mov_b32 s{sOG}, 0
        s_mov_b32 s{sOBUF}, {WR}
        s_mov_b32 s{sTN}, 0
        s_mov_b32 s{sLAST}, 2
        v_mov_b32 v{vPR}, 0""")
        for i in range(64):
            a(f"v_mov_b32 v{vACC+64+i}, 0")
        if self.wqat > 1:
            a("s_branch L_q0\nL_q0_touch:")
        self.pretouch_wq(vFA + 34)
        a("s_branch L_q0")

    def stream_slot(self, ty, rdA, MT, acc, aset, loads, after, readB=True):
        e = self.a
        e("s_barrier")
        self.probe(0, True)
        lg = Lg(e)
        for t, tag in rdA:
            lg.issue(t, tag)
        lg.drain()
        self.probe(1)
        e("s_barrier")
        self.probe(2)
        for ks in (0, 1):
            for q in range(4 if readB else 0):
                lg.issue(*self.rdB(ks, q))
        if loads is None:
            return
        def mk(ks, mt, qt):
            def f():
                lg.wait(("B", ks, qt))
                e(self.mfma(acc, mt, qt, aset(ks, mt), ks))
            return f
        mm = [mk(ks, mt, qt) for ks in (0, 1) for mt in range(MT) for qt in range(4)]
        self.spread(mm, loads + (self.kv_items_b() if ty else self.kv_items_a() if self.weavea else []))
        self.probe(6)
        if not ty and not self.weavea:
            if getattr(self, "extra", None):
                l = self.lab("tx")
                e(f"s_cmp_ge_u32 s{sN}, 15\ns_cbranch_scc1 {l}")
                self.pretouch_wo(False)
                e(f"{l}:")
                self.extra = None
            self.call("F_kv")
        for t in after:
            e(t)

    def store_items(self, G):
        acc = vACC + 48 * G
        items = []
        for qd in range(6):
            c = acc + 8*qd
            t = "\n".join(f"v_cvt_pk_bf16_f32 v{c+i}, v{c+2*i}, v{c+2*i+1}" for i in range(4))
            t += f"\nbuffer_store_dwordx4 {vr(c,4)}, v{vST}, {sr(sWS)}, s{sM} offen offset:{1024*(qd&3)} {('sc1', 'sc1 nt', 'sc0 sc1')[self.partop]}"
            if qd in (3, 5):
                t += f"\ns_add_u32 s{sM}, s{sM}, {4096 if qd == 3 else 24576-4096}"
            items.append(t)
        return items

    def pj_rest(self):
        a = self.a
        ACC1 = vACC + 64
        qrd = sum((self.q_rdA(ks, m) for ks in (0, 1) for m in range(4)), [])
        a(f"L_pj_rest:\nv_lshlrev_b32 v7, 7, v0\nv_mov_b32 v{vXA}, v{vXA0}\nv_mov_b32 v{vXA+1}, v{vXA0+1}")
        self.prio_set(1)
        prevx = [f"s_add_u32 s{sN}, s{sN}, 1\ns_sub_u32 s{sT0}, 9, s{sN}\ns_and_b32 s{sT0}, s{sT0}, 3\ns_lshl_b32 s{sT0}, s{sT0}, 13"] + self.NEXTX[1:]
        a(f"s_cmp_eq_u32 s{sTY}, 1\ns_cbranch_scc1 L_q1_1")
        if self.help:
            self.other_srd(sBV, 56, SIZE['B_v'])
        if self.follow:
            self.wait_init(vZ, vDUM)
        if self.aidle:
            self.pretouch_wo(True)
            a(f"s_mov_b32 s{sM}, 6\nL_idle_a:\ns_barrier")
            self.probe(0, True)
            a("s_barrier")
            if self.aidle == 1:
                self.pretouch_wo(False)
            self.call("F_kv")
            self.kvwait()
            a(f"s_sub_u32 s{sM}, s{sM}, 1\ns_cmp_lg_u32 s{sM}, 0\ns_cbranch_scc1 L_idle_a")
        for ty in (0, 1):
            nk = 8 if ty else self.NA
            a(f"L_q1_{ty}:")
            if self.aidle == 2 and not ty:
                self.extra = "touch"
            self.stream_slot(ty, qrd, 4, ACC1, self.qA, self.w_items(True), prevx)
            a(f"s_sub_u32 s{sT0}, s{sN}, 11\ns_cmp_ge_u32 s{sT0}, 5\ns_cbranch_scc1 L_q1_nox{ty}")
            self.call("F_x")
            a(f"""s_sub_u32 s{sXN}, s{sXN}, 2
            s_add_u32 s{sXCH}, s{sXCH}, 7
            s_sub_u32 s{sT0}, s{sXCH}, 9
            s_cselect_b32 s{sXCH}, s{sXCH}, s{sT0}""")
            self.probe(4)
            a(f"s_waitcnt vmcnt({nk + 2})")
            self.probe(5)
            a(f"s_branch L_q1_{ty}\nL_q1_nox{ty}:")
            self.probe(4)
            a(f"s_waitcnt vmcnt({nk})")
            self.probe(5)
            a(f"s_cmp_lt_u32 s{sN}, 17\ns_cbranch_scc1 L_q1_{ty}")
            if not ty:
                a("s_branch L_q1_last")
        a("L_q1_last:")
        self.stream_slot(0, qrd, 4, ACC1, self.qA, None, None)
        self.call("F_kv")
        a("s_waitcnt lgkmcnt(0)")
        self.q_finalize(ACC1, [self.mfma(ACC1, mt, qt, self.qA(ks, mt), ks) for ks in (0, 1) for mt, qt in self.ORDER4])
        self.kvwait()
        self.stamp(2)
        a("s_barrier")
        self.probe(0, True)
        a("s_barrier")
        if not self.aidle:
            self.pretouch_wo(True)
        self.call("F_kv")
        for i in range(144):
            a(f"v_mov_b32 v{vACC+i}, 0")
        a(f"""v_lshrrev_b32 v6, 2, v0
        v_bfe_u32 v1, v6, 1, 2
        v_and_b32 v7, 3, v0
        v_lshlrev_b32 v7, 3, v7
        v_mul_u32_u24 v6, 384, v6
        v_add_u32 v6, v6, v7
        s_mul_i32 s{sT0}, s{sLW}, 3""")
        for nt in range(3):
            a(f"""s_add_u32 s{sT1}, s{sT0}, {nt}
            v_xor_b32 v7, s{sT1}, v1
            v_lshl_add_u32 v{vOA0+nt}, v7, 5, v6
            v_add_u32 v{vOA+nt}, {WR}, v{vOA0+nt}""")
        a(f"""s_lshl_b32 s{sT0}, s{sTY}, 4
        s_add_u32 s{sT0}, s{sT0}, s{sB}
        s_lshl_b32 s{sT0}, s{sT0}, 3
        s_add_u32 s{sT0}, s{sT0}, s{sHG}
        s_mul_i32 s{sM}, s{sT0}, {PART}
        s_add_u32 s{sM}, s{sM}, s{sOLW}
        v_lshl_add_u32 v{vST}, v3, 2, v2
        v_lshlrev_b32 v{vST}, 4, v{vST}""")
        self.kvwait()
        if self.aidle:
            a(f"s_cmp_eq_u32 s{sTY}, 0\ns_cbranch_scc1 L_kvl_done")
        a(f"s_mov_b32 s{sN}, 6\nL_kvl:\ns_barrier")
        self.probe(0, True)
        a("s_barrier")
        self.probe(2)
        if not self.aidle:
            self.pretouch_wo(False)
        self.call("F_kv")
        self.probe(4)
        self.kvwait()
        self.probe(5)
        a(f"""s_sub_u32 s{sN}, s{sN}, 1
        s_cmp_lg_u32 s{sN}, 0
        s_cbranch_scc1 L_kvl
        L_kvl_done:
        s_barrier""")
        self.probe(0, True)
        a("s_barrier")
        self.call("F_wo")
        if self.touch & 8:
            self.touch_own_last()
        self.call("F_kv")
        self.kvwait()
        self.stamp(3)
        oA = lambda c, ks, mt: vFA + 4*mt + (0 if ks == 0 else 12 + 12*(c & 1))
        o_rdA = lambda c, ks, mt: self.rdA(oA(c, ks, mt), vOA, mt, 32*ks*384, (32*ks+16)*384, ("A", ks, mt))
        xa_step = [f"s_add_u32 s{sN}, s{sN}, 1\ns_add_u32 s{sT0}, s{sROT}, s{sN}\ns_and_b32 s{sT0}, s{sT0}, 3\ns_lshl_b32 s{sT0}, s{sT0}, 13",
                   f"v_add_u32 v{vXA}, s{sT0}, v{vXA0}", f"v_add_u32 v{vXA+1}, s{sT0}, v{vXA0+1}"]
        a(f"s_mov_b32 s{sN}, -1\nv_lshlrev_b32 v7, 7, v0")
        for t in xa_step:
            a(t)
        ord_ = sum((o_rdA(0, ks, m) for ks in (0, 1) for m in range(3)), [])
        a(f"s_cmp_eq_u32 s{sTY}, 1\ns_cbranch_scc1 L_o2_1")
        for ty in (0, 1):
            a(f"L_o2_{ty}:")
            for G in range(3):
                self.stream_slot(ty, ord_, 3, vACC + 48*G, lambda ks, mt: oA(0, ks, mt), self.wo_items(), xa_step if G == 0 else [], G == 0)
                self.probe(4)
                if ty or self.weavea:
                    a(f"s_waitcnt vmcnt({8 if ty else self.NA})")
                else:
                    self.kvwait()
                self.probe(5)
            a(f"s_cmp_lt_u32 s{sN}, 4\ns_cbranch_scc1 L_o2_{ty}")
            if not ty:
                a("s_branch L_o2_done")
        a("L_o2_done:")
        self.stamp(4)
        if self.probes or self.lite:
            a(f"s_add_u32 s{sSLOT}, s{sSLOT}, 3")
        a("s_barrier\ns_barrier")
        if self.touch & 4:
            self.touch_own_last()
        self.call("F_kv")
        if self.touch & 16:
            self.touch_own_last()
        a(f"""v_lshl_add_u32 v1, v0, 2, s{sRB}
        v_cmp_gt_u32 vcc, 6, v0
        s_and_saveexec_b64 {sr(sT0, 2)}, vcc
        s_cmp_lg_u32 s{sLW}, 0
        s_cbranch_scc1 L_nz
        ds_write_b32 v1, v{vZ} offset:{SYNC - WR}
        L_nz:
        s_mov_b64 exec, -1
        s_waitcnt lgkmcnt(0)""")
        self.kvwait(1 if self.touch & 16 else 0)
        srd(a, sPT, sDBGP, 256)
        a(f"""s_lshl_b32 s{sT2}, s{sB}, 2
        s_barrier
        s_barrier
        buffer_load_dword v{vDUM}, v{vZ}, {sr(sPT)}, s{sT2} offen offset:{128*bool(self.dbgst)} sc1
        s_mov_b32 s{sOBUF}, s{sRB+1}""")
        self.call("F_wo")
        a(f"""s_waitcnt vmcnt(6)
        v_readfirstlane_b32 s{sT1}, v{vDUM}
        s_cmp_ge_u32 s{sT1}, 16
        s_cbranch_scc1 L_init_ok""")
        self.wait_init(vZ, vDUM)
        a(f"L_init_ok:\ns_barrier\ns_barrier\ns_mov_b32 s{sOBUF}, s{sRB+2}")
        self.call("F_wo")
        if self.prio & 4:
            a("s_setprio 0")
        self.stamp(5)
        st = []
        def xa_to(c):
            if c > 11 or self.last_seq(c)[0] == self.last_seq(c - 1)[0]:
                return []
            return [f"s_add_u32 s{sT0}, s{sROT}, {self.last_seq(c)[0]}\ns_and_b32 s{sT0}, s{sT0}, 3\ns_lshl_b32 s{sT0}, s{sT0}, 13"] + xa_step[1:]
        done_at = {max(c for c in range(12) if self.last_seq(c)[1] == g) + 1: g for g in (0, 1)}
        for c in range(12):
            grp = (lambda c: c >> 2) if self.gmajor else (lambda c: self.last_seq(c)[1])
            acc, prev = vACC + 48 * grp(c), vACC + 48 * grp(max(c - 1, 0))
            newB = c == 0 or self.last_seq(c)[0] != self.last_seq(c - 1)[0] or self.gmajor
            lg = Lg(a)
            if c == 0:
                for ks in (0, 1):
                    for m in range(3):
                        for x in o_rdA(0, ks, m):
                            lg.issue(*x)
                lg.drain()
            a("s_barrier")
            self.probe(0, True)
            b0 = [self.rdB(0, q) for q in range(4)] if newB else []
            r0 = b0[:1] + o_rdA(c, 0, 0) + b0[1:] + o_rdA(c, 0, 1) + o_rdA(c, 0, 2)
            ra1 = sum((o_rdA(c, 1, m) for m in range(3)), [])
            if c == 0:
                r0, ra1 = b0 + [self.rdB(1, q) for q in range(4)], []
            plan = {k: [] for k in range(-1, 24)}
            for i, x in enumerate(r0):
                plan[(i // 2 - 1 if newB else i - 1) if c else -1].append(x)
            for i, x in enumerate(ra1):
                plan[5 + i if c else 12 + i // 2].append(x)
            for q in range(4 if newB and c else 0):
                plan[12 + q].append(self.rdB(1, q))
            fill = [f"v_add_u32 v{vOA+nt}, s{sRB + ((c+1)&3)}, v{vOA0+nt}" for nt in range(3)] + (xa_to(c + 1) if self.hyb else xa_step if newB else [])
            for x in plan[-1]:
                lg.issue(*x)
            for k in range(0 if c else 12, 24):
                mt, qt = self.ORDER3[k % 12]
                if k == 12 and c:
                    lg.wait(*[tag for _, tag in r0])
                elif not c:
                    lg.wait(("A", 0, mt, 0), ("A", 0, mt, 1), ("B", 0, qt))
                a(self.mfma(prev, mt, qt, oA(c - 1, 1, mt), 1) if k < 12 else self.mfma(acc, mt, qt, oA(c, 0, mt), 0))
                for x in plan[k]:
                    lg.issue(*x)
                if k >= (16 if c else 19) and fill:
                    a(fill.pop(0))
                    if not c and fill:
                        a(fill.pop(0))
                if self.gmajor:
                    if k == 11 and c in (self.store0, self.store1):
                        st += self.store_items(int(c == self.store1))
                    step = self.stp0 if c < self.store1 else self.stp
                else:
                    if c in done_at and k == 9:
                        st += self.store_items(done_at[c])
                    step = self.stp
                if st and k % step == step - 1:
                    a(st.pop(0))
                if k == 22:
                    lg.drain()
            assert not fill
            if c < 2:
                a(f"s_waitcnt vmcnt({6 - 6*c})")
            if c in (4, 8):
                self.stamp(6 + (c >> 3))
        for k, (mt, qt) in enumerate(self.ORDER3):
            a(self.mfma(vACC + 96, mt, qt, oA(11, 1, mt), 1))
            if k == 9:
                st += self.store_items(2)
            if st and k % 2 == 1:
                a(st.pop(0))
        for t in st:
            a(t)
        self.stamp(8)
        a(f"""v_mov_b32 v1, {SYNC}
        v_mov_b32 v6, 1
        v_lshlrev_b32 v5, 4, v0
        v_mov_b32 v{vFA}, 1
        v_mov_b32 v{vFA+1}, 1
        v_mov_b32 v{vFA+2}, 1
        v_mov_b32 v{vFA+3}, 1
        s_lshl_b32 s{sT0}, s{sTY}, 14
        s_lshl_b32 s{sT1}, s{sHG}, 7
        s_add_u32 s{sT0}, s{sT0}, s{sT1}
        s_add_u32 s{sT0}, s{sT0}, s{sFADDR}
        s_mov_b64 exec, 1""")
        for k in range(1):
            a(f"""s_waitcnt vmcnt(0)
            ds_add_rtn_u32 v7, v1, v6 offset:{4*k}
            s_waitcnt lgkmcnt(0)
            v_readfirstlane_b32 s{sT1}, v7
            s_cmp_lg_u32 s{sT1}, 3
            s_cbranch_scc1 L_nf{k}
            s_mov_b64 exec, 0xff
            buffer_store_dwordx4 {vr(vFA, 4)}, v5, {sr(sWS)}, s{sT0} offen sc1
            L_nf{k}:""")
            if k == 0:
                self.stamp(13)
        a("s_mov_b64 exec, -1")
        self.stamp(9)
        self.probe_dump()
        a("s_branch L_reduce")

    def at_first(self):
        a = self.a
        a("L_at:")
        self.prio_set(0)

        issued = []
        WBUFS = (WR, R1, R2)

        def ldx(n, direct):
            if n == 0 and self.inl:
                self.x_body()
            elif n <= 3 or n >= 9 or direct:
                self.call("F_x")
            else:
                a(f"s_lshl_b32 s{sT0}, s{sXCH}, 7\ns_add_u32 s{sT0}, s{sT0}, s{sXBASE}")
                self.x_adv()
                for i in range(2):
                    a(f"buffer_load_dwordx4 {vr(vO + (n-4)*8 + 4*i, 4)}, v{vXVO+i}, {sr(sX)}, s{sT0} offen offset:{1024*i}")
            issued.extend([("x", n)] * 2)

        def ldw(n):
            if n == 9:
                a(f"s_sub_u32 s{sWCH}, s{sWCH}, 1\ns_cselect_b32 s{sWCH}, 8, s{sWCH}")
            a(f"s_lshl_b32 s{sWBUF}, s{sLW}, 13\ns_add_u32 s{sWBUF}, s{sWBUF}, {WBUFS[n % 3]}")
            if n == 0 and self.inl:
                for t in self.w_items():
                    a(t)
            else:
                self.call("F_w")
            issued.extend([("w", n)] * 8)

        def prefill(k, ty):
            for _ in range(2 - ty):
                self.call("F_kv")
            issued.extend([("kv", k)] * 8)

        def wait(*tags):
            k = max(i for i, t in enumerate(issued) if t in tags) + 1
            a(f"s_waitcnt vmcnt({min(63, len(issued) - k)})")
        def first_stage(ty, head):
            del issued[:]
            direct = ty == 1 and self.xplan
            if head:
                ldx(0, direct); ldw(0)
                return
            issued.extend([("x", 0)] * 2 + [("w", 0)] * 8)
            self.early(2)
            self.call("F_atset")
            self.early(4)
            ldx(1, direct); ldw(1)
            wait(("x", 0), ("w", 0))
            self.early(5)
            for n in range(9):
                a("s_barrier")
                self.probe(0, True)
                if 1 <= n <= 5 and not direct:
                    wait(("x", n + 3))
                    for i in range(2):
                        a(f"ds_write_b128 v{vT}, {vr(vO + (n-1)*8 + 4*i, 4)} offset:{((n+3)&3)*8192 + 1024*i}")
                if n == 0:
                    for k in range(2, 4 if direct else 9):
                        ldx(k, direct)
                elif direct and n <= 5:
                    ldx(n + 3, direct)
                if n + 2 <= 9:
                    ldw(n + 2)
                if n == (self.prefill if ty else self.prefa):
                    prefill(0, ty)
                if n == 8 and (ty or self.adist == 4):
                    prefill(1, ty)
                self.probe(4)
                wait(*([("w", n + 1)] + [("kv", 0) if n == 8 else ("x", n + 1)]))
                a("s_waitcnt lgkmcnt(0)")
                self.probe(5)
        a(f"s_mov_b32 s{sXN}, 0\ns_cmp_eq_u32 s{sTY}, 0\ns_cbranch_scc1 L_at_a")
        first_stage(1, True)
        a("s_branch L_at_b\nL_at_a:")
        if self.xplan & 2:
            srd(a, sPT, sBWP, SIZE['B_wq'])
            a(f"""s_lshl_b32 s{sT0}, s{sB}, 2
            s_add_u32 s{sT0}, s{sT0}, s{sLW}
            s_mul_i32 s{sT0}, s{sT0}, {9*8192}
            s_lshl_b32 s{sT1}, s{sHG}, 10
            s_add_u32 s{sT0}, s{sT0}, s{sT1}
            v_lshrrev_b32 v1, 2, v0
            v_and_b32 v6, 3, v0
            v_lshlrev_b32 v6, 7, v6
            v_lshl_add_u32 v1, v1, 13, v6
            s_mov_b32 exec_hi, 15
            buffer_load_dword v{vP+3}, v1, {sr(sPT)}, s{sT0} offen""")
            if self.xplan & 4:
                a(f"buffer_load_dword v{vP+2}, v1, {sr(sWQ)}, s{sT0} offen")
            a("s_mov_b64 exec, -1")
        if self.xtouch:
            srd(a, sBV, sBXP, SIZE['B_x'])
            a(f"v_mul_u32_u24 v1, 1152, v0\ns_mul_i32 s{sT2}, s{sB}, 73728")
            for j in range(2):
                a(f"""s_add_u32 s{sT0}, s{sXCH}, s{sLW}
                s_add_u32 s{sT0}, s{sT0}, {self.xfrom + 4*j}
                s_mul_i32 s{sT1}, s{sT0}, 57
                s_lshr_b32 s{sT1}, s{sT1}, 9
                s_mul_i32 s{sT1}, s{sT1}, 9
                s_sub_u32 s{sT0}, s{sT0}, s{sT1}
                s_lshl_b32 s{sT0}, s{sT0}, 7
                s_add_u32 s{sT0}, s{sT0}, s{sT2}
                buffer_load_dword v{vP+j}, v1, {sr(sBV)}, s{sT0} offen""")
        first_stage(0, True)
        first_stage(0, False)
        a("s_branch L_at_done\nL_at_b:")
        first_stage(1, False)
        a("L_at_done:")
        if self.prio & 1:
            a("s_setprio 0")
        a("s_branch L_stage\nF_atset:")
        if not (self.probes or self.stamps):
            self.late_srds()
        self.late_common()
        a(f"""s_mov_b32 s{sTHR}, 0
        s_lshl_b32 s{sT0}, s{sLW}, 11
        s_add_u32 s{sT0}, s{sT0}, {XR}
        v_lshl_add_u32 v{vT}, v0, 4, s{sT0}""")
        self.at_setup()
        if self.xplan:
            a(f"s_cmp_eq_u32 s{sTY}, 0\ns_cbranch_scc1 F_atset_ret")
            for i in range(vO, vO + 40):
                a(f"v_mov_b32 v{i}, 0")
            a("F_atset_ret:")
        self.ret()

    def at_setup(self):
        a = self.a
        a(f"""s_lshr_b32 s{sT0}, s{sLW}, 1
        s_mul_i32 s{sT0}, s{sT0}, s{sTY}
        s_lshl_b32 s{sT0}, s{sT0}, 13
        v_xor_b32 v7, v2, v3
        v_lshlrev_b32 v7, 4, v7
        v_lshl_add_u32 v7, v3, 8, v7
        v_add_u32 v{vKA}, s{sT0}, v7""")
        for ks in range(1, 4):
            a(f"v_xor_b32 v{vKA+ks}, {64*ks}, v{vKA}")
        a(f"""s_lshr_b32 s{sT1}, s{sBUFSZ}, 1
        s_add_u32 s{sT0}, s{sT0}, s{sT1}
        v_lshrrev_b32 v1, 2, v0
        v_and_b32 v6, 7, v1
        v_lshlrev_b32 v7, 8, v1
        v_lshl_add_u32 v7, v6, 5, v7
        v_and_b32 v1, 3, v0
        v_lshl_add_u32 v7, v1, 3, v7
        v_add_u32 v{vVA}, s{sT0}, v7""")
        for dt in range(1, 8):
            a(f"v_xor_b32 v{vVA+dt}, {32*dt}, v{vVA}")
        a(f"""s_mov_b32 s{sRPOS}, 0
        s_mov_b32 s{sSTAGE}, 0
        s_mov_b32 s{sQBUF}, {R2 - XR}
        s_mov_b32 s{sM}, 3
        s_lshr_b32 s{sT0}, s{sLW}, 1
        s_lshl_b32 s{sT0}, s{sT0}, 14
        s_and_b32 s{sT1}, s{sLW}, 1
        s_lshl_b32 s{sT1}, s{sT1}, 12
        s_add_u32 s{sT0}, s{sT0}, s{sT1}
        s_add_u32 s{sT0}, s{sT0}, {XR}
        v_lshrrev_b32 v6, 1, v3
        v_xor_b32 v6, v6, v2
        v_lshlrev_b32 v6, 4, v6
        v_lshl_add_u32 v6, v3, 7, v6
        v_add_u32 v{vH}, s{sT0}, v6
        v_xor_b32 v{vH+1}, 64, v{vH}""")
        for i in list(range(vO + 40, vO + 64)) + list(range(vNM + 1, vNM + 8)) + [vL0, vL0 + 1, vL0 + 2, vL0 + 3, 4] + list(range(vOVO, vOVO + 6)):
            a(f"v_mov_b32 v{i}, 0")

    def at_rest(self):
        a = self.a
        publish = self.follow or self.gate
        a(f"""L_stage:
        s_mov_b32 s{sTH}, 0xff7fffff
        s_mov_b32 s{sFLOOR}, 0xff7fffff
        s_mov_b32 s{sFIRST}, 0
        s_cmp_lg_u32 s{sSTAGE}, 0
        s_cbranch_scc1 L_stage_a
        v_mov_b32 v{vNM}, 0
        L_stage_a:""")
        for i in range(2):
            a(f"v_add_u32 v{vT+i}, s{sQBUF}, v{vH+i}")
        a(f"s_mov_b32 s{sN}, 0\nL_tile:\ns_barrier")
        self.probe(0, True)
        a(f"s_cmp_lg_u32 s{sN}, 0\ns_cbranch_scc1 L_tile_k")
        for qt in range(2):
            for ks in range(4):
                a(f"ds_read_b128 {vr(vQ + (qt*4+ks)*4, 4)}, v{vT+(ks&1)} offset:{2048*qt + 8192*(ks>>1)}")
        a("s_waitcnt lgkmcnt(0)\nL_tile_k:")
        lg = Lg(a)
        for ks in range(4):
            for kt in range(2):
                lg.issue(f"ds_read_b128 {vr(vKF + (ks*2+kt)*4, 4)}, v{vKA+ks} offset:{4096*kt}", ("K", ks, kt))
        a("s_barrier")
        O = lambda dt, qt: vO + (((dt >> 1)*2 + qt)*2 + (dt & 1))*4
        pv = lambda dt, u: f"v_mfma_f32_16x16x32_bf16 {vr(O(dt, u), 4)}, {vr(vVF + dt*4, 4)}, {vr(vP+4*u, 4)}, {vr(O(dt, u), 4)}"
        if self.defer:
            a(f"s_cmp_eq_u32 s{sN}, 0\ns_cbranch_scc1 L_tile_q")
            late = [f"v_pk_add_f32 {vr(vL0+2*u, 2)}, {vr(vL0+2*u, 2)}, {vr(vS+8*u+2*i, 2)}" for u, i in ((1, 0), (0, 2), (1, 1), (0, 3), (1, 2), (1, 3))]
            late += [f"v_add_u32 v{vVA+i}, s{sPROG}, v{vVA+i}" for i in range(8)]
            def deferred():
                l = list(late)
                for dt in range(8):
                    a(pv(dt, 1))
                    for _ in range(2):
                        if l: a(l.pop(0))
            deferred()
            a("L_tile_q:")
        vreads = [(f"ds_read_b64_tr_b16 {vr(vVF + dt*4 + 2*j, 2)}, v{vVA+dt} offset:{4096*j}", ("V", dt, j)) for dt in range(8) for j in range(2)]
        S = lambda qt, kt: vS + (qt*2 + kt)*4
        O = lambda dt, qt: vO + (((dt >> 1)*2 + qt)*2 + (dt & 1))*4
        for ks in range(4):
            for kt in range(2):
                lg.wait(("K", ks, kt))
                for qt in range(2):
                    c = vr(vNM + 4*qt, 4) if ks == 0 else vr(S(qt, kt), 4)
                    a(f"v_mfma_f32_16x16x32_bf16 {vr(S(qt, kt), 4)}, {vr(vKF + (ks*2+kt)*4, 4)}, {vr(vQ + (qt*4+ks)*4, 4)}, {c}")
                    if len(lg.q) < 15:
                        lg.issue(*vreads.pop(0))
        for t, tag in vreads:
            lg.issue(t, tag)
        a(f"""s_add_u32 s{sRPOS}, s{sRPOS}, s{sBUFSZ}
        s_cmp_ge_u32 s{sRPOS}, 98304
        s_cselect_b32 s{sT0}, 98304, 0
        s_sub_u32 s{sRPOS}, s{sRPOS}, s{sT0}
        s_sub_u32 s{sPROG}, s{sBUFSZ}, s{sT0}""")
        adv = [f"v_add_u32 v{vKA+i}, s{sPROG}, v{vKA+i}" for i in range(12)]
        nadv = 4 if self.defer else 2
        for t in adv[:nadv]:
            a(t)
        adv = adv[nadv:]
        t0, t1 = vT, vT + 1
        a(f"""v_max3_f32 v{t0}, v{vS}, v{vS+1}, v{vS+2}
        v_max3_f32 v{t0}, v{t0}, v{vS+3}, v{vS+4}
        v_max3_f32 v{t1}, v{vS+8}, v{vS+9}, v{vS+10}
        v_max3_f32 v{t0}, v{t0}, v{vS+5}, v{vS+6}
        v_max3_f32 v{t1}, v{t1}, v{vS+11}, v{vS+12}
        v_max_f32 v{t0}, v{t0}, v{vS+7}
        v_max3_f32 v{t1}, v{t1}, v{vS+13}, v{vS+14}
        v_max_f32 v{t1}, v{t1}, v{vS+15}
        v_max_f32 v{vT+2}, v{t0}, v{t1}
        v_cmp_lt_f32 vcc, s{sTH}, v{vT+2}
        s_cbranch_vccnz L_rescale
        L_tile_exp:""")
        ex = lambda u: [f"v_exp_f32 v{vS+8*u+i}, v{vS+8*u+i}" for i in range(8)]
        cv = lambda u: [f"v_cvt_pk_bf16_f32 v{vP+4*u+i}, v{vS+8*u+2*i}, v{vS+8*u+2*i+1}" for i in range(4)]
        if self.pkl:
            ad = lambda u: [x for i in range(4) for x in (f"v_pk_add_f32 {vr(vL0+2*u, 2)}, {vr(vL0+2*u, 2)}, {vr(vS+8*u+2*i, 2)}", "")]
        else:
            ad = lambda u: [f"v_add_f32 v{vL0+2*u+(i&1)}, v{vL0+2*u+(i&1)}, v{vS+8*u+i}" for i in range(8)]
        pv = lambda dt, u: f"v_mfma_f32_16x16x32_bf16 {vr(O(dt, u), 4)}, {vr(vVF + dt*4, 4)}, {vr(vP+4*u, 4)}, {vr(O(dt, u), 4)}"
        e0, c0, a0 = ex(0), cv(0), ad(0)
        e1, c1, a1 = ex(1), cv(1), ad(1)
        for t in e0[:3] + [e0[3], c0[0], e0[4], e0[5], c0[1], e0[6], e0[7], c0[2], e1[0], c0[3], e1[1], a0[0]]:
            a(t)
        gaps = [[e1[2]], [e1[3], c1[0]], [e1[4]], [e1[5], c1[1]], [e1[6]], [e1[7]], [c1[2], a0[1]], [c1[3], a0[2], a0[3] or "s_nop 0"]]
        for dt in range(8):
            if dt % 2 == 0:
                lg.wait(("V", dt + 1, 0), ("V", dt + 1, 1))
            a(pv(dt, 0))
            for t in gaps[dt]:
                a(t)
        rest = [x for pair in zip(a1, a0[4:] + adv[:4]) for x in pair] + adv[4:]
        assert self.pkl and not self.defer and not publish
        a(f"s_cmp_eq_u32 s{sN}, 15\ns_cbranch_scc1 L_tile_last")
        if not self.defer:
            for dt in range(8):
                a(pv(dt, 1))
                for _ in range(3):
                    if rest: a(rest.pop(0))
            assert not rest
        self.probe(6)
        a(f"s_or_b32 s{sT0}, s{sSTAGE}, s{sN}\ns_cbranch_scc1 L_tile_nw\ns_waitcnt vmcnt(0)\nL_tile_nw:")
        if publish:
            a(f"""s_cmp_gt_u32 s{sTY}, s{sLW}
            s_cbranch_scc0 L_tile_np""")
            if not self.follow:
                a(f"s_add_u32 s{sM}, s{sM}, 1\ns_cmp_eq_u32 s{sM}, {self.gate + 1}\ns_cbranch_scc0 L_tile_np\ns_sub_u32 s{sM}, s{sM}, 1")
            a(f"""v_mov_b32 v5, s{sM}
            s_mov_b64 exec, 1
            buffer_store_dword v5, v4, {sr(sWS)}, s{sPADDR} offen sc1
            s_mov_b64 exec, -1
            s_add_u32 s{sM}, s{sM}, 1
            L_tile_np:""")
        a(f"s_add_u32 s{sN}, s{sN}, 1\ns_branch L_tile")
        R = vT + 2
        chain = [x for x in a0[4:] if x] + [x for x in a1 if x]
        chain = [chain[0], chain[2], chain[1], chain[3], chain[4], chain[5]]
        chain += f"""v_add_f32 v{vL0}, v{vL0}, v{vL0+1}
        v_add_f32 v{vL0+1}, v{vL0+2}, v{vL0+3}
        v_mov_b32 v{vL0+2}, v{vL0}
        v_mov_b32 v{vL0+3}, v{vL0+1}
        s_mov_b32 s{sQBUF}, {WR - XR}
        s_add_u32 s{sSTAGE}, s{sSTAGE}, 1
        v_permlane32_swap_b32 v{vL0}, v{vL0+2}
        v_permlane32_swap_b32 v{vL0+1}, v{vL0+3}
        v_add_f32 v{vL0}, v{vL0}, v{vL0+2}
        v_add_f32 v{vL0+1}, v{vL0+1}, v{vL0+3}
        v_mov_b32 v{vL0+2}, v{vL0}
        v_mov_b32 v{vL0+3}, v{vL0+1}
        s_nop 1
        v_permlane16_swap_b32 v{vL0}, v{vL0+2}
        v_permlane16_swap_b32 v{vL0+1}, v{vL0+3}
        v_add_f32 v{R}, v{vL0}, v{vL0+2}
        v_add_f32 v{R-2}, v{vL0+1}, v{vL0+3}
        v_rcp_f32 v{R}, v{R}
        v_rcp_f32 v{R-2}, v{R-2}
        s_nop 0""".split("\n")
        a("L_tile_last:")
        for dt in range(8):
            a(pv(dt, 1))
            for _ in range(3):
                a(chain.pop(0))
        for t in chain:
            a(t)
        mul, put = [], []
        for qt in range(2):
            for p in range(4):
                c = vO + (p*2 + qt)*8
                mul.append("\n".join(f"v_pk_mul_f32 {vr(c+i, 2)}, {vr(c+i, 2)}, {vr(R-2*qt, 2)} op_sel_hi:[1,0]" for i in range(0, 8, 2)))
                put.append("\n".join(f"v_cvt_pk_bf16_f32 v{c+i}, v{c+2*i}, v{c+2*i+1}" for i in range(4)) +
                           f"\nds_write_b128 v{vH + (p&1)}, {vr(c,4)} offset:{2048*qt + 8192*(p>>1)}")
        for k in range(9):
            if k < 8: a(mul[k])
            if k: a(put[k-1])
        self.probe(6)
        a(f"""s_cmp_lt_u32 s{sSTAGE}, 2
        s_cbranch_scc0 L_feed0""")
        for t in adv:
            a(t)
        self.late_wo()
        a(f"""s_mov_b32 s{sOCI}, {7 if self.gmajor else 5}
        s_mov_b32 s{sOG}, 0
        s_waitcnt lgkmcnt(0)
        s_branch L_stage""")
        a("L_feed0:")
        if self.hyb:
            seq = sum((kb | g << 2) << 4*i for i, (kb, g) in enumerate(self.last_seq(c) for c in range(3, 12)))
            a(f"s_mov_b32 s{sBV}, {seq & 0xffffffff}\ns_mov_b32 s{sBV+1}, {seq >> 32}")
        self.prio_set(2)
        a(f"""s_mov_b32 s{sN}, 0
        {self.wo_addr(sRB+3)}
        s_waitcnt lgkmcnt(0)
        L_feed:
        s_barrier""")
        self.probe(0, True)
        if self.probes or self.lite:
            a(f"s_mov_b32 m0, s{sT1}\ns_nop 0")
        nxt = self.wo_addr(sRB+3).replace(f"s{sT0}", f"s{sT2}").replace(f"s{sT1}", f"s{sM}").split("\n")
        nxt = [t for t in nxt if "m0" not in t]
        adv = self.wo_adv()
        if self.hyb:
            adv = f"""s_lshr_b64 {sr(sBV, 2)}, {sr(sBV, 2)}, 4
            s_and_b32 s{sOCI}, s{sBV}, 3
            s_or_b32 s{sOCI}, s{sOCI}, 4
            s_bfe_u32 s{sOG}, s{sBV}, 0x20002
            s_mul_i32 s{sOG}, s{sOG}, 384"""
        between = [adv,
                   f"s_mov_b32 s{sT2}, s{sRB+3}\ns_mov_b32 s{sRB+3}, s{sRB}\ns_mov_b32 s{sRB}, s{sRB+1}\ns_mov_b32 s{sRB+1}, s{sRB+2}\ns_mov_b32 s{sRB+2}, s{sT2}",
                   "\n".join(nxt[:5]), f"s_add_u32 m0, s{sT1}, 4096\n" + "\n".join(nxt[5:]),
                   f"s_add_u32 s{sN}, s{sN}, 1\ns_mov_b32 s{sT1}, s{sM}\ns_cmp_lt_u32 s{sN}, 9", f"s_mov_b32 m0, s{sM}\ns_mov_b32 s{sT0}, s{sT2}"]
        for n in range(6):
            a(f"buffer_load_dwordx4 v{vOVO+n}, {sr(sWO)}, s{sT0} offen offset:{1024*(n&3)}{self.wflag} lds")
            a(between[n])
        self.probe(4)
        a("s_waitcnt vmcnt(12)\ns_cbranch_scc1 L_feed")
        if self.gate:
            a(f"s_or_b32 s{sT0}, s{sTY}, s{sLW}\ns_cbranch_scc1 L_gate")
            self.wait_init(4, 5)
            self.spin(f"buffer_load_dword v5, v4, {sr(sWS)}, s{sPADDR} offen sc1", 5,
                      f"v_readfirstlane_b32 s{sT1}, v5\ns_cmp_ge_u32 s{sT1}, {self.gate}")
            a("L_gate:")
        a("""s_barrier
        s_waitcnt vmcnt(6)
        s_barrier
        s_waitcnt vmcnt(0)
        s_barrier""")
        self.probe_dump()

    def reduce(self):
        a = self.a
        vL, vO0, vD, vSum = 6, 14, 40, 104
        of = ("", " sc1", " nt", " sc0 sc1")[self.outf]
        a("L_reduce:")
        self.stamp(10)
        a(f"""s_setprio 0
        s_lshr_b32 s{sSTAGE}, s{sWAVE}, 2
        s_lshl_b32 s{sT1}, s{sSTAGE}, 2
        s_add_u32 s{sT1}, s{sT1}, {SYNC + 8}
        v_mov_b32 v9, s{sT1}
        s_mov_b32 s{sSPIN}, {SPIN}
        s_cmp_lg_u32 s{sLW}, 0
        s_cbranch_scc1 L_red_work
        s_lshl_b32 s{sT0}, s{sSTAGE}, 14
        s_add_u32 s{sFADDR}, s{sFADDR}, s{sT0}
        v_mov_b32 v4, 0
        v_and_b32 v8, 7, v0
        v_lshlrev_b32 v8, 7, v8
        s_cmp_eq_u32 s{sSTAGE}, 1
        s_cbranch_scc1 L_red_poll""")
        self.wait_init(4, 5)
        a(f"""s_mov_b32 s{sSPIN}, {SPIN}
        L_red_poll:""")
        NP = self.polls
        ld = lambda k: f"buffer_load_dword v{16+k}, v8, {sr(sWS)}, s{sFADDR} offen {('sc1', 'sc0 sc1')[self.flagop == 1]}"
        for k in range(NP - 1):
            a(ld(k) + f"\ns_sleep {self.nap}")
        a("L_red_again:")
        for k in range(NP):
            a(f"""{ld((k + NP - 1) % NP)}
            s_waitcnt vmcnt({NP - 1})
            v_cmp_eq_u32 vcc, 1, v{16+k}
            s_and_b32 s{sT2}, vcc_lo, 0xff
            s_sub_u32 s{sSPIN}, s{sSPIN}, 1
            s_cselect_b32 s{sT2}, 0xff, s{sT2}
            v_mov_b32 v10, s{sT2}
            ds_write_b32 v9, v10
            s_cmp_eq_u32 s{sT2}, 0xff
            s_cbranch_scc1 L_red_end
            s_sleep {self.nap}""")
        a(f"""s_branch L_red_again
        L_red_work:""")
        srd(a, sX, sOUTP, SIZE['out'])
        a(f"""s_lshl_b32 s{sN}, s{sTY}, 3
        s_add_u32 s{sN}, s{sN}, s{sHG}
        s_sub_u32 s{sT0}, s{sLW}, 1
        s_lshl_b32 s{sT0}, s{sT0}, 4
        s_add_u32 s{sN}, s{sN}, s{sT0}
        s_mul_i32 s{sN}, s{sN}, 3
        s_lshl_b32 s{sT0}, s{sSTAGE}, 4
        s_add_u32 s{sT0}, s{sT0}, s{sB}
        s_mul_i32 s{sM}, s{sT0}, {8*PART}
        s_mul_i32 s{sOBASE}, s{sB}, {64*2304}
        s_mul_i32 s{sT0}, s{sSTAGE}, 1152
        s_add_u32 s{sOBASE}, s{sOBASE}, s{sT0}""")
        a(f"""v_bfe_u32 v10, v0, 2, 2
        v_and_b32 v11, 3, v0
        v_bfe_u32 v12, v0, 4, 1""")
        for k in range(2):
            a(f"v_lshrrev_b32 v1, 5, v0\nv_add_u32 v1, s{sN}, v1" if k == 0 else f"s_add_u32 s{sN}, s{sN}, 2\nv_mov_b32 v1, s{sN}")
            a(f"""v_lshrrev_b32 v13, 4, v1
            v_bfe_u32 v16, v1, 3, 1
            v_and_b32 v1, 7, v1
            v_lshl_add_u32 v1, v1, 1, v12
            v_lshl_add_u32 v17, v13, 2, v10
            v_lshl_add_u32 v17, v17, 1, v16
            v_lshl_add_u32 v18, v1, 2, v11
            v_lshlrev_b32 v18, 4, v18
            v_lshl_add_u32 v{vL+k}, v17, 10, v18
            v_lshl_add_u32 v1, v16, 5, v1
            v_mul_u32_u24 v1, 2304, v1
            v_lshl_add_u32 v1, v13, 7, v1
            v_lshl_add_u32 v1, v10, 5, v1
            v_lshl_add_u32 v{vO0+k}, v11, 3, v1""")
            if self.wide:
                a(f"v_and_b32 v1, 1, v0\nv_mul_u32_u24 v1, {16*2304 - 8}, v1\nv_add_u32 v{vO0+k}, v{vO0+k}, v1")
        if self.wide:
            a("v_and_b32 v1, 1, v0\nv_cmp_eq_u32 vcc, 1, v1")
        for i in range(16):
            a(f"v_mov_b32 v{vSum+i}, 0")
        if self.dot:
            a("v_mov_b32 v16, 0x3f80\nv_mov_b32 v17, 0x3f800000")
        a(f"""s_mov_b32 s{sN}, 0
        s_mov_b32 s{sOG}, 0
        L_red_look:
        ds_read_b32 v5, v9
        s_waitcnt lgkmcnt(0)
        v_readfirstlane_b32 s{sT2}, v5
        s_sub_u32 s{sSPIN}, s{sSPIN}, 1
        s_cselect_b32 s{sT2}, 0xff, s{sT2}
        s_andn2_b32 s{sT2}, s{sT2}, s{sN}
        s_cbranch_scc1 L_red_new
        s_getreg_b32 s{sT0}, hwreg(HW_REG_IB_STS)
        s_and_b32 s{sT0}, s{sT0}, 0xc000000f
        s_cselect_b32 s{sT0}, 0, s{sOG}
        s_cmp_lg_u32 s{sT0}, 0
        s_cbranch_scc1 L_red_add
        s_sleep 1
        s_branch L_red_look
        L_red_new:
        s_or_b32 s{sN}, s{sN}, s{sT2}
        s_or_b32 s{sOG}, s{sOG}, s{sT2}""")
        for h in range(8):
            a(f"""s_bitcmp1_b32 s{sT2}, {h}
            s_cbranch_scc0 L_red_h{h}
            s_add_u32 s{sT0}, s{sM}, {h*PART}
            buffer_load_dwordx4 {vr(vD+4*h,4)}, v{vL}, {sr(sWS)}, s{sT0} offen {('sc1', 'sc1', 'sc0 sc1')[self.partop]}
            s_mov_b32 exec_hi, 0
            buffer_load_dwordx4 {vr(vD+32+4*h,4)}, v{vL+1}, {sr(sWS)}, s{sT0} offen {('sc1', 'sc1', 'sc0 sc1')[self.partop]}
            s_mov_b32 exec_hi, -1
            L_red_h{h}:""")
        self.stamp(14)
        if not self.blk:
            a(f"s_cmp_lg_u32 s{sN}, 0xff\ns_cbranch_scc1 L_red_look")
        a("L_red_add:\ns_waitcnt vmcnt(0)")
        for h in range(8):
            a(f"s_bitcmp1_b32 s{sOG}, {h}\ns_cbranch_scc0 L_red_a{h}")
            for k in range(2):
                for i in range(4):
                    r, t = vD + 32*k + 4*h + i, 10 + 2*(i & 1)
                    if self.dot:
                        c = vSum + 8*k + 2*i
                        a(f"v_dot2_f32_bf16 v{c}, v{r}, v16, v{c}\nv_dot2_f32_bf16 v{c+1}, v{r}, v17, v{c+1}")
                        continue
                    a(f"""v_lshlrev_b32 v{t}, 16, v{r}
                    v_and_b32 v{t+1}, 0xffff0000, v{r}
                    v_pk_add_f32 {vr(vSum+8*k+2*i, 2)}, {vr(vSum+8*k+2*i, 2)}, {vr(t, 2)}""")
            a(f"L_red_a{h}:")
        a(f"""s_mov_b32 s{sOG}, 0
        s_cmp_lg_u32 s{sN}, 0xff
        s_cbranch_scc1 L_red_look
        s_add_u32 s{sT0}, s{sOBASE}, {16*2304}""")
        if self.dot:
            a("s_nop 1")
        for k in range(2):
            if k:
                a("s_mov_b32 exec_hi, 0")
            for i in range(4):
                a(f"v_cvt_pk_bf16_f32 v{vSum+16+4*k+i}, v{vSum+8*k+2*i}, v{vSum+8*k+2*i+1}")
            c = vSum + 16 + 4*k
            if self.wide:
                a(f"""v_cndmask_b32 v10, v{c+2}, v{c}, vcc
                v_cndmask_b32 v11, v{c+3}, v{c+1}, vcc
                s_nop 1
                v_mov_b32_dpp v12, v10 quad_perm:[1,0,3,2] row_mask:0xf bank_mask:0xf
                v_mov_b32_dpp v13, v11 quad_perm:[1,0,3,2] row_mask:0xf bank_mask:0xf
                v_cndmask_b32 v{c}, v{c}, v12, vcc
                v_cndmask_b32 v{c+1}, v{c+1}, v13, vcc
                v_cndmask_b32 v{c+2}, v12, v{c+2}, vcc
                v_cndmask_b32 v{c+3}, v13, v{c+3}, vcc
                buffer_store_dwordx4 {vr(c,4)}, v{vO0+k}, {sr(sX)}, s{sOBASE} offen{of}""")
            else:
                a(f"""buffer_store_dwordx2 {vr(c,2)}, v{vO0+k}, {sr(sX)}, s{sOBASE} offen{of}
                buffer_store_dwordx2 {vr(c+2,2)}, v{vO0+k}, {sr(sX)}, s{sT0} offen{of}""")
        a("L_red_end:")
        if self.stamps:
            a("s_mov_b64 exec, -1\ns_waitcnt vmcnt(0)")
            self.stamp(12)
            self.stamp_dump(0)
            self.stamp_dump(1)
            if self.hold:
                a(f"""s_cmp_lg_u32 s2, {self.hwg}
                s_cbranch_scc1 L_end
                s_cmp_lg_u32 s{sWAVE}, 4
                s_cbranch_scc1 L_end
                v_readlane_b32 s{sT0}, v255, 0
                v_readlane_b32 s{sT1}, v255, {self.hi}
                v_readlane_b32 s{sT2}, v255, {self.hj}
                s_sub_u32 s{sT2}, s{sT2}, s{sT1}
                s_add_u32 s{sT2}, s{sT2}, {self.hold*100}
                s_mov_b32 s{sSPIN}, {SPIN}
                L_hold:
                s_memrealtime s[98:99]
                s_waitcnt lgkmcnt(0)
                s_sub_u32 s98, s98, s{sT0}
                s_cmp_ge_u32 s98, s{sT2}
                s_cbranch_scc1 L_end
                s_sub_u32 s{sSPIN}, s{sSPIN}, 1
                s_cbranch_scc0 L_hold""")
        a("s_endpgm")

    def at_rare(self):
        a = self.a
        t, u, al = vT, vP, vP + 2
        a(f"""L_rescale:
        v_mov_b32 v{u}, v{t}
        v_mov_b32 v{u+1}, v{t+1}
        s_nop 1
        v_permlane32_swap_b32 v{t}, v{u}
        v_permlane32_swap_b32 v{t+1}, v{u+1}
        v_max_f32 v{t}, v{t}, v{u}
        v_max_f32 v{t+1}, v{t+1}, v{u+1}
        v_mov_b32 v{u}, v{t}
        v_mov_b32 v{u+1}, v{t+1}
        s_nop 1
        v_permlane16_swap_b32 v{t}, v{u}
        v_permlane16_swap_b32 v{t+1}, v{u+1}
        v_max3_f32 v{t}, v{t}, v{u}, s{sFLOOR}
        v_max3_f32 v{t+1}, v{t+1}, v{u+1}, s{sFLOOR}
        v_max_f32 v{al}, 0, v{t}
        v_max_f32 v{al+2}, 0, v{t+1}
        v_exp_f32 v{al}, -v{al}
        v_exp_f32 v{al+2}, -v{al+2}
        s_mov_b32 s{sTH}, 0x41000000
        s_mov_b32 s{sFLOOR}, 0
        v_mul_f32 v{al}, s{sFIRST}, v{al}
        v_mul_f32 v{al+2}, s{sFIRST}, v{al+2}
        s_mov_b32 s{sFIRST}, 1.0""")
        for qt in range(2):
            for i in range(8):
                a(f"v_sub_f32 v{vS+8*qt+i}, v{vS+8*qt+i}, v{t+qt}")
            for i in range(4):
                a(f"v_sub_f32 v{vNM+4*qt+i}, v{vNM+4*qt+i}, v{t+qt}")
            a(f"v_pk_mul_f32 {vr(vL0+2*qt, 2)}, {vr(vL0+2*qt, 2)}, {vr(al+2*qt,2)} op_sel_hi:[1,0]")
            for p in range(4):
                for i in range(0, 8, 2):
                    c = vO + (p*2 + qt)*8 + i
                    a(f"v_pk_mul_f32 {vr(c,2)}, {vr(c,2)}, {vr(al+2*qt,2)} op_sel_hi:[1,0]")
        a("s_branch L_tile_exp")

    def main(self):
        a = self.a
        self.prologue()
        a(f"s_cmp_ge_u32 s{sWAVE}, 4\ns_cbranch_scc1 L_pj")
        if self.inl:
            self.at_first()
            self.subs()
        else:
            a("s_branch L_at")
            self.subs()
            self.at_first()
        self.pj_first()
        self.pj_setup()
        self.at_rest()
        self.reduce()
        self.at_rare()
        self.pj_rest()
        a("L_end:\ns_endpgm")
        return a.text()


HEADER = open("cdna_kernels/" + NAME + ".s.ref").read().split("; Override launch geometry")[0]


ABOUT = """; Fused two-branch attention block, one launch, one 512-thread workgroup per CU.
"""


def build(**kw):
    return HEADER + ABOUT + single(Gen(**kw).main(), 256, 512, LDS_BYTES, vgpr=256, accum=256, sgpr=102)


if __name__ == "__main__":
    kw = {}
    for x in sys.argv[2:]:
        k, v = x.split("=")
        kw[k] = int(v, 0)
    open(sys.argv[1], "w").write(build(**kw))
```

```python
import sys, struct
sys.path.insert(0, "tools")
from asmlib import *

KERNEL = NAME + "_kernel"
R0, R1, R2, WR, XR = 0, 32768, 65536, 98304, 131072
SYNC = WR + 24576
LDS_BYTES = 163840
PART = 73728
FLAG_OFF = 32 << 20
PROBE_OFF = 241 << 20
QSCALE = 1.4426950408889634 / 128 ** 0.5
SPIN = 1 << 16


def fbits(x):
    return "0x%08x" % struct.unpack("<I", struct.pack("<f", x))[0]


sWAVE, sLW, sHG, sTY, sB = 3, 4, 5, 6, 7
sK, sV, sX, sWQ, sWO, sWS = 8, 12, 16, 20, 24, 28
sKVOFF, sKVM0, sKVN = 32, 33, 34
sWCOL, sWCH, sWN = 35, 36, 37
sXBASE, sXCH, sXN = 38, 39, 40
sOCI, sOBASE, sROT = 41, 42, 43
sN, sM = 44, 45
sT0, sT1, sT2 = 46, 47, 48
sBUFSZ, sRINGEND, sWBUF, sOLW, sOBUF, sTHR, sKVCNT = 49, 50, 51, 52, 53, 54, 55
sTH, sFLOOR, sRPOS, sSTAGE = 56, 57, 58, 59
sRB = 60
sRET = 64
sFIRST, sQBUF, sSLOT = 66, 67, 68
sC8K = 67
sWB = 69
sBV, sPT = 72, 76
sOUTP, sDBGP = 80, 82
sTN, sLAST, sPADDR, sTBASE = 84, 85, 86, 87
sFADDR, sSPIN, sPROG, sOG = 88, 89, 90, 91
sBXP, sBWP = 92, 94

vKVO, vVVO, vXVO, vOVO, vWVO = 8, 12, 14, 16, 22
vWA, vWA0, vQW = 24, 28, 29
vOA0, vOA, vST = 24, 27, 30
vXA0, vXA, vZ = 31, 33, 35
vFA, vFB, vACC = 36, 72, 104
vPR, vDUM = 4, 5
vKA, vVA, vH, vT, vL0 = 24, 28, 38, 40, 76
vP, vS, vNM, vQ, vKF, vVF, vO = 44, 52, 68, 84, 116, 148, 180


def vr(i, n):
    return f"v[{i}:{i+n-1}]"


def sr(i, n=4):
    return f"s[{i}:{i+n-1}]"


class Lg:
    def __init__(self, a):
        self.a, self.q = a, []
    def issue(self, text, tag):
        if len(self.q) == 15:
            self.wait(self.q[0])
        self.a(text)
        self.q.append(tag)
    def wait(self, *tags):
        idx = max((i for i, t in enumerate(self.q) if t in tags), default=-1)
        if idx < 0:
            return
        self.a(f"s_waitcnt lgkmcnt({len(self.q) - idx - 1})")
        self.q = self.q[idx + 1:]
    def drain(self):
        self.a("s_waitcnt lgkmcnt(0)")
        self.q = []


DEFAULTS = dict(stamps=0, probes=0, vmprobe=2, thr=63, prefill=8, store0=4, store1=8, ipf=1, touch=0, xtouch=1,
                prio=7, gate=0, thrmask=0xffffffff, help=20, lead0=3, lead1=6, kvnt=1, pace=99, dbgst=0, ahead=4, from_=0, bthr=63, polls=1, nap=2, sdw=1, alate=0, wqat=4, diag=0, hrot=0, early_n=0, ahead0=0, hold=0, hi=0, hj=0, hwg=8, xplan=3, xfrom=1, aidle=0, adist=2, outf=1, stp=3, gmajor=0, stp0=12, pkl=1, flagop=0, partop=0, defer=0, wpol=0, blk=0, dot=0, wmap=0, wide=1, inl=1, lite=0, prefa=8, front=100, hyb=1, thr2=0, weavea=1, setup0=1)


class Gen:
    def __init__(self, **kw):
        self.a = Asm()
        self.o = dict(DEFAULTS)
        assert set(kw) <= set(DEFAULTS), kw
        self.o.update(kw)
        for k, v in self.o.items():
            setattr(self, k, v)
        self.kvflag = ("", " nt", " sc1 nt", " sc0 sc1 nt", " sc0 nt")[self.kvnt]
        self.wflag = ("", " sc1", " sc0 sc1", " sc0")[self.wpol]
        self.follow = (self.help and self.ahead < 0) or self.pace < 99
        self.NA = 4 + bool(self.help) + bool(self.follow)
        self.uid = 0
        assert not (self.gate or self.follow)
        assert self.pkl or not self.defer
        assert not (self.help and self.ahead < 0 and self.touch)

    def lab(self, s):
        self.uid += 1
        return f"L_{s}{self.uid}"

    def stamp(self, k):
        if self.stamps:
            self.a(f"s_memrealtime s[98:99]\ns_memtime s[100:101]\ns_waitcnt lgkmcnt(0)\nv_writelane_b32 v255, s98, {k}\nv_writelane_b32 v255, s100, {16+k}")

    def stamp_dump(self, role):
        if self.stamps:
            l = self.lab("sd")
            self.a(f"""s_cmp_lg_u32 s{sWAVE}, {4*role + self.sdw}
            s_cbranch_scc1 {l}
            s_lshl_b32 s{sT0}, s2, 8
            s_add_u32 s{sT0}, s{sT0}, {STAMP_OFF + 128*role}
            v_lshlrev_b32 v1, 2, v0
            s_mov_b64 exec, 0xffffffff
            buffer_store_dword v255, v1, {sr(sWS)}, s{sT0} offen
            s_mov_b64 exec, -1""")
            if self.lite and role:
                self.a(f"s_add_u32 s{sT0}, s{sT0}, {(1 << 20) - 128}\nbuffer_store_dword v254, v1, {sr(sWS)}, s{sT0} offen")
            if self.dbgst:
                srd(self.a, sPT, sDBGP, 256)
                self.a(f"""s_cmp_lg_u32 s{sTY}, {self.dbgst - 1}
                s_cbranch_scc1 {l}
                v_not_b32 v11, v255
                v_cmp_eq_u32 vcc, 0, v0
                s_nop 1
                v_cndmask_b32 v11, v255, v11, vcc
                s_mov_b64 exec, {0x3ff if role else 0x1c00}
                buffer_atomic_umax v11, v1, {sr(sPT)}, 0 offen sc1
                s_mov_b64 exec, -1""")
            self.a(f"{l}:")

    def probe(self, k, first=False):
        if self.lite and first:
            self.a(f"s_add_u32 s{sSLOT}, s{sSLOT}, 1\ns_memrealtime s[98:99]\ns_waitcnt lgkmcnt(0)\ns_mov_b32 m0, s{sSLOT}\nv_writelane_b32 v254, s98, m0")
        if self.probes:
            if first:
                self.a(f"s_add_u32 s{sSLOT}, s{sSLOT}, 1")
            self.a(f"s_memtime s[98:99]\ns_getreg_b32 s100, hwreg(HW_REG_IB_STS)\ns_waitcnt lgkmcnt(0)\ns_mov_b32 m0, s{sSLOT}\nv_writelane_b32 v{248+k}, s98, m0")
            if k == self.vmprobe:
                self.a("v_writelane_b32 v251, s100, m0")

    def early(self, lane):
        if self.probes:
            self.a(f"s_memtime s[98:99]\ns_waitcnt lgkmcnt(0)\nv_writelane_b32 v255, s98, {lane}")

    def probe_dump(self):
        if self.probes:
            l = self.lab("pd")
            self.a(f"""s_cmp_lg_u32 s{sLW}, 0
            s_cbranch_scc1 {l}
            s_lshl_b32 s{sT0}, s2, 1
            s_lshr_b32 s{sT1}, s{sWAVE}, 2
            s_add_u32 s{sT0}, s{sT0}, s{sT1}
            s_lshl_b32 s{sT0}, s{sT0}, 11
            s_add_u32 s{sT0}, s{sT0}, {PROBE_OFF}
            v_lshlrev_b32 v1, 2, v0""")
            for k in range(8):
                self.a(f"buffer_store_dword v{248+k}, v1, {sr(sWS)}, s{sT0} offen offset:{256*k}")
            self.a(f"{l}:")

    def prio_set(self, bit, off=None):
        if self.prio >> bit & 1:
            self.a("s_setprio 1")
        elif off is not None and self.prio >> off & 1:
            self.a("s_setprio 0")

    def call(self, name):
        self.a(f"s_call_b64 {sr(sRET, 2)}, {name}")

    def ret(self):
        self.a(f"s_setpc_b64 {sr(sRET, 2)}")

    def spread(self, base, fill, start=0):
        n, m = (len(base) - start) * self.front // 100, len(fill)
        j = 0
        for k, t in enumerate(base):
            while k >= start and j < m and j * n <= (k - start) * m:
                self.a(fill[j]); j += 1
            if callable(t): t()
            else: self.a(t)
        for t in fill[j:]:
            self.a(t)

    def other_srd(self, dst, karg_off, size):
        self.a(f"""s_load_dwordx2 {sr(dst, 2)}, s[0:1], {karg_off}
        s_waitcnt lgkmcnt(0)
        s_and_b32 s{dst+1}, s{dst+1}, 0xffff
        s_mov_b32 s{dst+2}, {size}
        s_mov_b32 s{dst+3}, 0x20000""")

    def spin(self, load, vdst, done):
        l, e = self.lab("sp"), self.lab("se")
        self.a(f"""s_mov_b32 s{sSPIN}, {SPIN}
        {l}:
        {load}
        s_waitcnt vmcnt(0) lgkmcnt(0)
        {done}
        s_cbranch_scc1 {e}
        s_sleep 1
        s_sub_u32 s{sSPIN}, s{sSPIN}, 1
        s_cmp_lg_u32 s{sSPIN}, 0
        s_cbranch_scc1 {l}
        {e}:""")

    def wait_init(self, vz, vd):
        srd(self.a, sPT, sDBGP, 256)
        self.a(f"s_lshl_b32 s{sT2}, s{sB}, 2")
        self.spin(f"buffer_load_dword v{vd}, v{vz}, {sr(sPT)}, s{sT2} offen offset:{128*bool(self.dbgst)} sc1", vd,
                  f"v_readfirstlane_b32 s{sT1}, v{vd}\ns_cmp_ge_u32 s{sT1}, 16")

    def decode(self):
        if self.wmap == 0:
            return f"s_lshr_b32 s{sTY}, s2, 3\ns_and_b32 s{sTY}, s{sTY}, 1\ns_lshr_b32 s{sB}, s2, 4"
        return f"s_lshr_b32 s{sTY}, s2, 7\ns_xor_b32 s{sTY}, s{sTY}, {self.wmap - 1}\ns_lshr_b32 s{sB}, s2, 3\ns_and_b32 s{sB}, s{sB}, 15"

    def prologue(self):
        a = self.a
        a("s_cmp_ge_u32 s2, 256\ns_cbranch_scc1 L_end")
        if self.probes or self.stamps:
            a("s_memtime s[96:97]" if self.probes else "s_memrealtime s[96:97]")
        a(f"""s_load_dwordx2 s[68:69], s[0:1], 96
        s_load_dwordx4 {sr(sOUTP)}, s[0:1], 80
        s_load_dwordx2 {sr(sBXP, 2)}, s[0:1], 40
        s_load_dwordx2 {sr(sBWP, 2)}, s[0:1], 64
        s_and_b32 s{sHG}, s2, 7
        {self.decode()}
        s_mul_i32 s{sT0}, s{sTY}, 40
        s_add_u32 s0, s0, s{sT0}
        s_addc_u32 s1, s1, 0
        s_load_dwordx8 s[56:63], s[0:1], 0
        s_load_dwordx2 s[70:71], s[0:1], 32""")
        if self.ipf:
            a(f"""s_getpc_b64 {sr(sT0, 2)}
            L_pc:
            s_sub_u32 s{sT0}, s{sT0}, L_pc-{KERNEL}
            s_subb_u32 s{sT0+1}, s{sT0+1}, 0
            s_and_b32 s{sT2}, s2, 0xf8
            v_lshrrev_b32 v1, 6, v0
            v_add_lshl_u32 v6, v1, s{sT2}, 7
            v_min_u32 v6, L_end-{KERNEL}, v6
            v_mov_b32 v7, s{sT0+1}
            v_add_co_u32 v6, vcc, s{sT0}, v6
            s_nop 1
            v_addc_co_u32 v7, vcc, 0, v7, vcc
            global_load_dword v{vFA+32}, v[6:7], off""")
        a(f"""v_lshrrev_b32 v1, 6, v0
        v_and_b32 v0, 63, v0
        v_readfirstlane_b32 s{sWAVE}, v1
        v_lshrrev_b32 v2, 4, v0
        v_and_b32 v3, 15, v0
        s_and_b32 s{sLW}, s{sWAVE}, 3
        v_lshrrev_b32 v4, 3, v0
        v_and_b32 v5, 7, v0
        v_mul_u32_u24 v7, 1152, v4""")
        for n in range(2):
            a(f"""v_add_u32 v6, {4*n}, v2
            v_xor_b32 v6, v6, v5
            v_lshl_add_u32 v6, v6, 4, v7
            v_add_u32 v{vXVO+n}, {n*(8*1152-1024)}, v6""")
        a(f"""v_and_b32 v1, 1, v2
        v_lshlrev_b32 v1, 1, v1
        v_xor_b32 v1, v1, v5
        v_lshlrev_b32 v1, 4, v1
        v_lshl_add_u32 v{vWVO}, v4, 13, v1
        v_xor_b32 v{vWVO+1}, 64, v{vWVO}
        s_lshl_b32 s{sWCOL}, s{sHG}, 10
        s_lshl_b32 s{sT0}, s{sLW}, 7
        s_add_u32 s{sWCOL}, s{sWCOL}, s{sT0}
        s_mov_b32 s{sWN}, 0
        s_mul_i32 s{sT0}, s{sHG}, {self.hrot}
        s_add_u32 s{sT0}, s{sT0}, s{sB}
        s_mul_i32 s{sT1}, s{sT0}, 57
        s_lshr_b32 s{sT1}, s{sT1}, 9
        s_mul_i32 s{sT1}, s{sT1}, 9
        s_sub_u32 s{sXCH}, s{sT0}, s{sT1}
        s_mov_b32 s{sWCH}, s{sXCH}
        s_mul_i32 s{sXBASE}, s{sB}, 73728
        s_mul_i32 s{sT0}, s{sLW}, 18432
        s_add_u32 s{sXBASE}, s{sXBASE}, s{sT0}
        s_lshl_b32 s{sT0}, s{sB}, 3
        s_add_u32 s{sT0}, s{sT0}, s{sHG}
        s_lshl_b32 s{sPADDR}, s{sT0}, 7
        s_add_u32 s{sPADDR}, s{sPADDR}, {FLAG_OFF + 32768}
        s_lshl_b32 s{sFADDR}, s{sB}, 10
        s_add_u32 s{sFADDR}, s{sFADDR}, {FLAG_OFF}
        s_waitcnt lgkmcnt(0)""")
        srd(a, sX, 56, SIZE['A_x'])
        srd(a, sWQ, 62, SIZE['A_wq'])
        if self.probes or self.stamps:
            self.late_srds()
        if self.probes or self.stamps:
            a(f"s_mov_b32 s{sSLOT}, -1")
            for k in range(8):
                a(f"v_mov_b32 v{248+k}, 0")
            a("v_writelane_b32 v255, s96, 0")
            self.early(1)

    def late_srds(self):
        a = self.a
        a(f"""s_mov_b32 s{sK}, s58
        s_and_b32 s{sK+1}, s59, 0xffff
        s_lshl_b32 s{sK+2}, {SIZE['A_k']}, s{sTY}
        s_mov_b32 s{sK+3}, 0x20000
        s_mov_b32 s{sV}, s60
        s_and_b32 s{sV+1}, s61, 0xffff
        s_mov_b32 s{sV+2}, s{sK+2}
        s_mov_b32 s{sV+3}, 0x20000""")
        srd(a, sWO, 70, SIZE['A_wo'])
        srd(a, sWS, 68, SIZE['ws'])
        srd(a, sBV, 60, 0)

    def late_common(self):
        a = self.a
        a(f"""s_lshl_b32 s{sBUFSZ}, 16384, s{sTY}
        s_lshl_b32 s{sT0}, 2048, s{sTY}
        s_mul_i32 s{sKVM0}, s{sT0}, s{sLW}
        s_add_u32 s{sRINGEND}, s{sKVM0}, 98304
        s_lshl_b32 s{sT0}, s{sB}, 3
        s_add_u32 s{sT0}, s{sT0}, s{sHG}
        s_lshl_b32 s{sTBASE}, s{sT0}, 19
        s_add_u32 s{sT1}, s{sTY}, 18
        s_lshl_b32 s{sKVOFF}, s{sT0}, s{sT1}
        s_lshr_b32 s{sT0}, s{sLW}, 1
        s_lshl_b32 s{sT0}, s{sT0}, 17
        s_and_b32 s{sT1}, s{sLW}, 1
        s_lshl_b32 s{sT2}, s{sT1}, 12
        s_add_u32 s{sT0}, s{sT0}, s{sT2}
        s_add_u32 s{sTBASE}, s{sTBASE}, s{sT0}
        s_cmp_eq_u32 s{sTY}, 1
        s_cselect_b32 s{sT0}, s{sT0}, s{sKVM0}
        s_add_u32 s{sKVOFF}, s{sKVOFF}, s{sT0}
        s_lshl_b32 s{sT1}, s{sT1}, 3
        s_cmp_eq_u32 s{sTY}, 1
        s_cselect_b32 s{sT1}, 0, s{sT1}
        s_mov_b32 s{sKVN}, 0
        v_lshlrev_b32 v6, 8, v2
        v_add_u32 v7, s{sT1}, v2""")
        for n in range(4):
            a(f"""v_add_u32 v1, {4*n}, v7
            v_xor_b32 v1, v1, v3
            v_and_b32 v1, 15, v1
            v_lshl_add_u32 v{vKVO+n}, v1, 4, v6""")
        a(f"""v_lshlrev_b32 v1, 1, v2
        v_xor_b32 v1, v1, v3
        v_lshl_add_u32 v{vVVO}, v1, 4, v6
        v_xor_b32 v{vVVO+1}, 128, v{vVVO}""")

    def late_wo(self):
        a = self.a
        for n in range(6):
            a(f"""v_add_u32 v1, {64*n}, v0
            v_mul_u32_u24 v6, 2731, v1
            v_lshrrev_b32 v6, 16, v6
            v_mul_u32_u24 v7, 24, v6
            v_sub_u32 v1, v1, v7
            v_and_b32 v7, 6, v6
            v_xor_b32 v1, v1, v7
            v_lshlrev_b32 v1, 4, v1
            v_mul_u32_u24 v6, 1152, v6
            v_add_u32 v1, v1, v6
            v_subrev_u32 v{vOVO+n}, {1024*(n&3)}, v1""")
        a(f"""s_lshl_b32 s{sT0}, s{sHG}, 9
        s_lshl_b32 s{sT1}, s{sLW}, 4
        s_add_u32 s{sT0}, s{sT0}, s{sT1}
        s_mul_i32 s{sOBASE}, s{sT0}, 1152
        s_and_b32 s{sROT}, s{sB}, 3
        s_mul_i32 s{sOLW}, s{sLW}, 6144
        s_cmp_eq_u32 s{sTY}, 1
        s_mov_b32 s{sRB}, {WR}
        s_mov_b32 s{sRB+1}, {R2}
        s_cselect_b32 s{sRB+2}, {R0}, {R1}
        s_cselect_b32 s{sRB+3}, {R1}, {R0}""")

    def x_adv(self):
        self.a(f"""s_add_u32 s{sXN}, s{sXN}, 1
        s_add_u32 s{sXCH}, s{sXCH}, 1
        s_cmp_eq_u32 s{sXCH}, 9
        s_cselect_b32 s{sXCH}, 0, s{sXCH}""")

    def kv_items_b(self):
        f = self.kvflag
        items = []
        for n in range(8):
            t = ""
            if n == 0:
                t += f"s_mov_b32 m0, s{sKVM0}\ns_cmp_eq_u32 s{sKVN}, 15\n"
            if n == 4:
                t += f"s_add_u32 m0, s{sKVM0}, 16384\ns_add_u32 s{sKVM0}, s{sKVM0}, 32768\n"
            if self.bthr < 63:
                t += f"s_waitcnt vmcnt({self.bthr - 1})\n"
            if n < 4:
                t += f"buffer_load_dwordx4 v{vKVO+n}, {sr(sK)}, s{sKVOFF} offen offset:{1024*n}{f} lds\n"
            else:
                t += f"buffer_load_dwordx4 v{vVVO+(n&1)}, {sr(sV)}, s{sKVOFF} offen offset:{1024*(n-4)}{f} lds\n"
            if n == 0:
                t += f"s_cselect_b32 s{sKVCNT}, 131072, 0\ns_add_u32 s{sKVCNT}, s{sKVCNT}, 8192\ns_add_u32 s{sKVN}, s{sKVN}, 1\n"
            if n == 7:
                t += f"""s_add_u32 s{sKVOFF}, s{sKVOFF}, s{sKVCNT}
                s_cmp_ge_u32 s{sKVM0}, s{sRINGEND}
                s_cselect_b32 s{sKVCNT}, 98304, 0
                s_sub_u32 s{sKVM0}, s{sKVM0}, s{sKVCNT}"""
            items.append(t)
        return items

    def kv_items_a(self):
        assert self.adist == 2 and self.help and self.ahead >= 0 and self.thr == 63
        f = self.kvflag
        ld = lambda n: (f"buffer_load_dwordx4 v{vKVO+n}, {sr(sK)}, s{sKVOFF} offen offset:{1024*n}{f} lds" if n < 2 else
                        f"buffer_load_dwordx4 v{vVVO+(n&1)}, {sr(sV)}, s{sKVOFF} offen offset:{1024*(n-2)}{f} lds")
        return [f"s_mov_b32 m0, s{sKVM0}\ns_add_u32 s{sKVN}, s{sKVN}, 1\n{ld(0)}",
                f"""{ld(1)}
                s_add_u32 s{sLAST}, s{sKVN}, {self.ahead}
                s_min_u32 s{sLAST}, s{sLAST}, 31
                s_max_u32 s{sLAST}, s{sLAST}, {self.from_}""",
                f"""s_add_u32 m0, s{sKVM0}, 8192
                s_add_u32 s{sKVM0}, s{sKVM0}, 16384
                {ld(2)}
                s_and_b32 s{sTN}, s{sLAST}, 15
                s_lshl_b32 s{sTN}, s{sTN}, 13
                s_lshr_b32 s{sLAST}, s{sLAST}, 4
                s_lshl_b32 s{sLAST}, s{sLAST}, 18""",
                f"""{ld(3)}
                s_add_u32 s{sKVOFF}, s{sKVOFF}, 8192
                s_add_u32 s{sTN}, s{sTN}, s{sLAST}
                s_add_u32 s{sTN}, s{sTN}, s{sTBASE}""",
                f"""s_mov_b64 exec, {(1 << self.help) - 1}
                buffer_load_dword v{vDUM}, v7, {sr(sBV)}, s{sTN} offen offset:{4096 - 128*self.help}
                s_mov_b64 exec, -1
                s_cmp_ge_u32 s{sKVM0}, s{sRINGEND}
                s_cselect_b32 s{sKVCNT}, 98304, 0
                s_sub_u32 s{sKVM0}, s{sKVM0}, s{sKVCNT}"""]

    def last_seq(self, c):
        if self.hyb and c >= 6:
            return 2 + (c - 6) % 2, (c - 6) // 2
        return c // 3, c % 3

    def wo_addr(self, buf):
        return f"""s_add_u32 s{sT0}, s{sOCI}, s{sROT}
                s_and_b32 s{sT0}, s{sT0}, 3
                s_lshr_b32 s{sT1}, s{sOCI}, 2
                s_lshl_b32 s{sT1}, s{sT1}, 2
                s_add_u32 s{sT0}, s{sT0}, s{sT1}
                s_mul_i32 s{sT0}, s{sT0}, 73728
                s_add_u32 s{sT0}, s{sT0}, s{sOG}
                s_add_u32 s{sT1}, s{buf}, s{sOLW}
                s_mov_b32 m0, s{sT1}
                s_add_u32 s{sT0}, s{sT0}, s{sOBASE}"""

    def wo_adv(self):
        if self.gmajor:
            l, e = self.lab("wa"), self.lab("we")
            return f"""s_cmp_ge_u32 s{sOCI}, 4
                s_cbranch_scc1 {l}
                s_add_u32 s{sOG}, s{sOG}, 384
                s_cmp_eq_u32 s{sOG}, 1152
                s_cselect_b32 s{sOG}, 0, s{sOG}
                s_addc_u32 s{sOCI}, s{sOCI}, 0
                s_branch {e}
                {l}:
                s_add_u32 s{sOCI}, s{sOCI}, 1
                s_cmp_eq_u32 s{sOCI}, 8
                s_cselect_b32 s{sOCI}, 4, s{sOCI}
                s_cselect_b32 s{sT0}, 384, 0
                s_add_u32 s{sOG}, s{sOG}, s{sT0}
                {e}:"""
        return f"""s_add_u32 s{sOG}, s{sOG}, 384
                s_cmp_eq_u32 s{sOG}, 1152
                s_cselect_b32 s{sOG}, 0, s{sOG}
                s_addc_u32 s{sOCI}, s{sOCI}, 0"""

    def wo_items(self):
        items = []
        for n in range(6):
            t = self.wo_addr(sOBUF) + "\n" if n == 0 else ""
            if n == 4:
                t += f"s_add_u32 m0, s{sT1}, 4096\ns_nop 0\n"
            t += f"buffer_load_dwordx4 v{vOVO+n}, {sr(sWO)}, s{sT0} offen offset:{1024*(n&3)}{self.wflag} lds\n"
            if n == 5:
                t += self.wo_adv()
            items.append(t)
        return items

    def w_items(self, back=False):
        items = []
        for n in range(8):
            if n == 0:
                t = f"s_lshl_b32 s{sT0}, s{sWCH}, 19\ns_add_u32 s{sT0}, s{sT0}, s{sWCOL}\ns_mov_b32 m0, s{sWBUF}\n"
                t += f"s_sub_u32 s{sWCH}, s{sWCH}, 1\ns_cselect_b32 s{sWCH}, 8, s{sWCH}\n" if back else f"s_add_u32 s{sWCH}, s{sWCH}, 1\n"
            elif n == 4:
                t = f"s_add_u32 m0, s{sWBUF}, 4096\ns_add_u32 s{sT0}, s{sT0}, {65536+3072}\n"
            else:
                t = f"s_add_u32 s{sT0}, s{sT0}, {65536-1024}\n"
            t += f"buffer_load_dwordx4 v{vWVO+(n&1)}, {sr(sWQ)}, s{sT0} offen offset:{1024*(n&3)}{self.wflag} lds\n"
            if n == 7 and not back:
                t += f"""s_cmp_eq_u32 s{sWCH}, 9
                s_cselect_b32 s{sWCH}, 0, s{sWCH}
                s_add_u32 s{sWN}, s{sWN}, 1
                s_cmp_eq_u32 s{sWN}, 9
                s_cselect_b32 s{sT1}, 512, 0
                s_add_u32 s{sWCOL}, s{sWCOL}, s{sT1}"""
            items.append(t)
        return items

    def x_body(self):
        a = self.a
        a(f"""s_lshl_b32 s{sT0}, s{sXCH}, 7
        s_add_u32 s{sT0}, s{sT0}, s{sXBASE}
        s_and_b32 s{sT1}, s{sXN}, 3
        s_lshl_b32 s{sT1}, s{sT1}, 2
        s_add_u32 s{sT1}, s{sT1}, s{sLW}
        s_lshl_b32 s{sT1}, s{sT1}, 11
        s_add_u32 m0, s{sT1}, {XR}""")
        self.x_adv()
        for n in range(2):
            a(f"buffer_load_dwordx4 v{vXVO+n}, {sr(sX)}, s{sT0} offen offset:{1024*n} lds")

    def subs(self):
        a = self.a
        f = self.kvflag
        a("F_x:")
        self.x_body()
        self.ret()
        a("F_w:")
        for t in self.w_items():
            a(t)
        self.ret()
        a(f"""F_kv:
        s_cmp_eq_u32 s{sTY}, 0
        s_cbranch_scc1 F_kv_a""")
        for t in self.kv_items_b():
            a(t)
        a(f"s_mov_b32 s{sKVCNT}, 8")
        self.ret()
        a(f"""F_kv_a:
        s_mov_b32 s{sKVCNT}, 0
        s_cmp_ge_u32 s{sKVN}, 32
        s_cbranch_scc1 F_kv_ret""")
        if self.follow:
            a(f"""s_cmp_eq_u32 s{sTHR}, 0
            s_cbranch_scc1 F_kv_go
            s_waitcnt vmcnt(0)
            v_readfirstlane_b32 s{sPROG}, v{vPR}""")
            if self.pace < 99:
                check = f"s_add_u32 s{sT1}, s{sPROG}, {self.pace}\ns_cmp_ge_u32 s{sT1}, s{sKVN}"
                a(check + "\ns_cbranch_scc1 F_kv_go")
                self.spin(f"buffer_load_dword v{vPR}, v{vZ}, {sr(sWS)}, s{sPADDR} offen sc1", vPR,
                          f"v_readfirstlane_b32 s{sPROG}, v{vPR}\n" + check)
            a("F_kv_go:")
        a(f"""s_mov_b32 m0, s{sKVM0}
        s_mov_b32 s{sKVCNT}, 4""")
        if self.thr < 63:
            a(f"s_lshr_b32 s{sT1}, {self.thrmask}, s{sKVN}\ns_and_b32 s{sT1}, s{sT1}, s{sTHR}")
        for n in range(4):
            if self.thr < 63:
                l = self.lab("thr")
                if self.thr2:
                    a(f"s_cmp_eq_u32 s{sTHR}, 0\ns_cbranch_scc1 {l}\ns_waitcnt vmcnt({self.thr2-1})")
                a(f"s_cmp_eq_u32 s{sT1}, 0\ns_cbranch_scc1 {l}\ns_waitcnt vmcnt({self.thr-1})\n{l}:")
            if n == 2:
                a(f"s_add_u32 m0, s{sKVM0}, 8192\ns_add_u32 s{sKVN}, s{sKVN}, 1")
            if n < 2:
                a(f"buffer_load_dwordx4 v{vKVO+n}, {sr(sK)}, s{sKVOFF} offen offset:{1024*n}{f} lds")
            else:
                a(f"buffer_load_dwordx4 v{vVVO+(n&1)}, {sr(sV)}, s{sKVOFF} offen offset:{1024*(n-2)}{f} lds")
        a(f"""s_add_u32 s{sKVOFF}, s{sKVOFF}, 8192
        s_add_u32 s{sKVM0}, s{sKVM0}, 16384
        s_cmp_ge_u32 s{sKVM0}, s{sRINGEND}
        s_cselect_b32 s{sT0}, 98304, 0
        s_sub_u32 s{sKVM0}, s{sKVM0}, s{sT0}""")
        if self.follow or self.help:
            a(f"s_cmp_eq_u32 s{sTHR}, 0\ns_cbranch_scc1 F_kv_ret")
        if self.help:
            if self.ahead < 0:
                a(f"""s_add_u32 s{sT1}, s{sPROG}, {self.lead0}
                s_max_u32 s{sTN}, s{sTN}, s{sT1}
                s_add_u32 s{sT1}, s{sPROG}, {self.lead1}
                s_min_u32 s{sT1}, s{sT1}, 31
                s_cmp_le_u32 s{sTN}, s{sT1}
                s_cselect_b32 s{sLAST}, s{sTN}, s{sLAST}
                s_addc_u32 s{sTN}, s{sTN}, 0""")
            else:
                a(f"""s_cmp_lt_u32 s{sKVN}, {self.early_n}
                s_cselect_b32 s{sLAST}, {self.ahead0}, {self.ahead}
                s_add_u32 s{sLAST}, s{sKVN}, s{sLAST}
                s_min_u32 s{sLAST}, s{sLAST}, 31
                s_max_u32 s{sLAST}, s{sLAST}, {self.from_}""")
            a(f"""s_and_b32 s{sT0}, s{sLAST}, 15
            s_lshl_b32 s{sT0}, s{sT0}, 13
            s_lshr_b32 s{sT1}, s{sLAST}, 4
            s_lshl_b32 s{sT1}, s{sT1}, 18
            s_add_u32 s{sT0}, s{sT0}, s{sT1}
            s_add_u32 s{sT0}, s{sT0}, s{sTBASE}
            v_lshlrev_b32 v1, 7, v0
            s_mov_b64 exec, {(1 << self.help) - 1}
            buffer_load_dword v{vDUM}, v1, {sr(sBV)}, s{sT0} offen offset:{4096 - 128*self.help}
            s_mov_b64 exec, -1""")
        if self.follow:
            a(f"buffer_load_dword v{vPR}, v{vZ}, {sr(sWS)}, s{sPADDR} offen sc1")
        a("F_kv_ret:")
        self.ret()
        a("F_wo:")
        for t in self.wo_items():
            a(t)
        self.ret()

    def kvwait(self, more=0):
        l = self.lab("kw")
        self.a(f"""s_waitcnt vmcnt({8 + more})
        s_cmp_eq_u32 s{sKVCNT}, 8
        s_cbranch_scc1 {l}
        s_waitcnt vmcnt({self.NA + more})
        s_cmp_eq_u32 s{sKVCNT}, 4
        s_cbranch_scc1 {l}
        s_waitcnt vmcnt({more})
        {l}:""")

    def pretouch_wq(self, dst):
        if not self.touch & 33:
            return
        a = self.a
        l = self.lab("pt")
        a(f"s_cmp_eq_u32 s{sTY}, 1\ns_cbranch_scc1 {l}")
        srd(a, sPT, sBWP, SIZE['B_wq'])
        a(f"""s_lshl_b32 s{sT0}, s{sB}, 2
        s_add_u32 s{sT0}, s{sT0}, s{sLW}
        s_mul_i32 s{sT0}, s{sT0}, {9*8192}
        s_lshl_b32 s{sT1}, s{sHG}, 10
        s_add_u32 s{sT0}, s{sT0}, s{sT1}
        v_lshrrev_b32 v1, 2, v0
        v_and_b32 v6, 3, v0
        v_lshlrev_b32 v6, 7, v6
        v_lshl_add_u32 v1, v1, 13, v6
        s_mov_b32 exec_hi, 15
        buffer_load_dword v{dst}, v1, {sr(sPT)}, s{sT0} offen offset:512""")
        if self.touch & 2:
            a(f"buffer_load_dword v{dst+1}, v1, {sr(sWQ)}, s{sT0} offen offset:512")
        a(f"s_mov_b64 exec, -1\n{l}:")

    def touch_own_last(self):
        l = self.lab("tl")
        if not self.touch & 16:
            self.a(f"s_cmp_eq_u32 s{sTY}, 1\ns_cbranch_scc1 {l}")
        self.a(f"""s_lshl_b32 s{sT0}, s{sB}, 2
        s_add_u32 s{sT0}, s{sT0}, s{sLW}
        s_mul_i32 s{sT0}, s{sT0}, 4608
        s_mul_i32 s{sT1}, s{sHG}, 589824
        s_add_u32 s{sT0}, s{sT0}, s{sT1}
        s_add_u32 s{sT0}, s{sT0}, 294912
        v_lshlrev_b32 v1, 7, v0
        s_mov_b32 exec_hi, 15
        buffer_load_dword v{vDUM}, v1, {sr(sWO)}, s{sT0} offen
        s_mov_b64 exec, -1
        {l}:""")

    def pretouch_wo(self, first):
        if not self.touch & 1:
            return
        a = self.a
        l = self.lab("pt")
        a(f"s_cmp_eq_u32 s{sTY}, 1\ns_cbranch_scc1 {l}")
        if first:
            self.other_srd(sPT, 72, SIZE['B_wo'])
            a(f"""s_lshl_b32 s{sT0}, s{sB}, 2
            s_add_u32 s{sT0}, s{sT0}, s{sLW}
            s_mul_i32 s{sT0}, s{sT0}, 9216
            s_mul_i32 s{sTN}, s{sHG}, 589824
            s_add_u32 s{sTN}, s{sTN}, s{sT0}""")
        else:
            a(f"v_lshlrev_b32 v1, 7, v0\ns_mov_b64 exec, 0xfff\nbuffer_load_dword v{vFA+32}, v1, {sr(sPT)}, s{sTN} offen")
            if self.touch & 2:
                a(f"buffer_load_dword v{vFA+33}, v1, {sr(sWO)}, s{sTN} offen")
            a(f"s_mov_b64 exec, -1\ns_add_u32 s{sTN}, s{sTN}, 1536")
        a(f"{l}:")

    def rdA(self, reg, areg, mt, off0, off1, tag):
        return [(f"ds_read_b64_tr_b16 {vr(reg + 2*j, 2)}, v{areg+mt} offset:{o}", tag + (j,)) for j, o in enumerate((off0, off1))]

    def rdB(self, ks, qt):
        return (f"ds_read_b128 {vr(vFB + (ks*4+qt)*4, 4)}, v{vXA+ks} offset:{2048*qt}", ("B", ks, qt))

    def mfma(self, acc, mt, qt, areg, ks):
        c = vr(acc + (mt*4+qt)*4, 4)
        return f"v_mfma_f32_16x16x32_bf16 {c}, {vr(areg, 4)}, {vr(vFB + (ks*4+qt)*4, 4)}, {c}"

    def qA(self, ks, mt):
        return vFA + (ks*4 + mt)*4

    def q_rdA(self, ks, mt):
        return self.rdA(self.qA(ks, mt), vWA, mt, 32*ks*128, (32*ks+4)*128, ("A", ks, mt))

    def q_finalize(self, acc, pending):
        a = self.a
        a(f"s_mov_b32 s{sT2}, {fbits(QSCALE)}")
        mul, cvt, put = [], [], []
        for mt in range(4):
            for qt in range(4):
                c = acc + (mt*4+qt)*4
                mul.append("\n".join(f"v_mul_f32 v{c+r}, s{sT2}, v{c+r}" for r in range(4)))
                cvt.append(f"v_cvt_pk_bf16_f32 v{c}, v{c}, v{c+1}\nv_cvt_pk_bf16_f32 v{c+1}, v{c+2}, v{c+3}")
                put.append((f"v_xor_b32 v1, {32*mt}, v{vQW}\n" if qt == 0 else "") + f"ds_write_b64 v1, {vr(c,2)} offset:{2048*qt}")
        work = ["\n".join(([put[k-2]] if 2 <= k < 18 else []) + ([cvt[k-1]] if 1 <= k < 17 else []) + ([mul[k]] if k < 16 else [])) for k in range(18)]
        lead = len(pending) - 16 + 5
        for k, t in enumerate(pending):
            a(t)
            if k + 1 == lead:
                a("s_nop 3")
            if k + 1 >= lead:
                a(work.pop(0))
        for t in work:
            a(t)
        a("s_waitcnt lgkmcnt(0)")

    ORDER4 = [(mt, qt) for mt in range(4) for qt in range(4)]
    ORDER3 = [(mt, qt) for mt in range(3) for qt in range(4)]
    NEXTX = [f"s_add_u32 s{sN}, s{sN}, 1\ns_and_b32 s{sT0}, s{sN}, 3\ns_lshl_b32 s{sT0}, s{sT0}, 13",
             f"v_add_u32 v{vXA}, s{sT0}, v{vXA0}", f"v_add_u32 v{vXA+1}, s{sT0}, v{vXA0+1}"]

    def pj_first(self):
        a = self.a
        ACC0 = vACC
        a("L_pj:")
        if not (self.probes or self.stamps):
            self.late_srds()
        a(f"""v_mov_b32 v{vZ}, 0
        s_cmp_lg_u32 s{sLW}, 0
        s_cbranch_scc1 L_pj_a
        s_lshl_b32 s{sT0}, s{sTY}, 14
        s_lshl_b32 s{sT1}, s{sHG}, 7
        s_add_u32 s{sT0}, s{sT0}, s{sT1}
        s_add_u32 s{sT0}, s{sT0}, s{sFADDR}
        v_lshlrev_b32 v1, 4, v0
        v_mov_b32 v{vFA}, 0
        v_mov_b32 v{vFA+1}, 0
        v_mov_b32 v{vFA+2}, 0
        v_mov_b32 v{vFA+3}, 0
        s_mov_b64 exec, 0xff
        buffer_store_dwordx4 {vr(vFA, 4)}, v1, {sr(sWS)}, s{sT0} offen sc1
        s_mov_b64 exec, -1
        L_pj_a:""")
        self.early(6)
        for i in ([] if self.setup0 else list(range(vKVO, vXVO)) + list(range(vOVO, vWVO))):
            a(f"v_mov_b32 v{i}, 0")
        a(f"""s_lshl_b32 s{sT2}, s{sLW}, 13
        s_mov_b32 s{sWB}, {R1}
        s_mov_b32 s{sWB+1}, {R2}
        s_mov_b32 s{sWB+2}, {WR}
        v_lshrrev_b32 v1, 2, v3
        v_lshl_add_u32 v6, v2, 3, v1
        v_lshrrev_b32 v1, 1, v1
        v_and_b32 v7, 1, v2
        v_lshl_or_b32 v1, v7, 1, v1
        v_and_b32 v7, 3, v0
        v_lshlrev_b32 v7, 3, v7
        v_lshl_add_u32 v6, v6, 7, v7
        v_lshl_add_u32 v6, v1, 5, v6
        v_add_u32 v{vWA0}, s{sT2}, v6
        v_add_u32 v{vWA}, {WR}, v{vWA0}""")
        for mt in range(1, 4):
            a(f"v_xor_b32 v{vWA+mt}, {32*mt}, v{vWA}")
        a(f"""v_lshrrev_b32 v1, 1, v3
        v_xor_b32 v6, v1, v2
        v_lshlrev_b32 v6, 4, v6
        v_lshl_add_u32 v6, v3, 7, v6
        v_add_u32 v{vXA0}, {XR}, v6
        v_xor_b32 v{vXA0+1}, 64, v{vXA0}
        v_mov_b32 v{vXA}, v{vXA0}
        v_mov_b32 v{vXA+1}, v{vXA0+1}
        v_lshrrev_b32 v6, 1, v2
        v_xor_b32 v6, v6, v1
        v_lshlrev_b32 v6, 4, v6
        v_lshl_add_u32 v6, v3, 7, v6
        v_and_b32 v7, 1, v2
        v_lshl_add_u32 v6, v7, 3, v6
        v_add_u32 v6, s{sT2}, v6
        v_add_u32 v{vQW}, {R2}, v6""")
        for i in range(64):
            a(f"v_mov_b32 v{ACC0+i}, 0")
        for i in range(16):
            a(f"v_mov_b32 v{vFA+16+i}, 0\nv_mov_b32 v{vFB+16+i}, 0")
        if self.setup0:
            self.pj_setup()
        self.early(4)
        srd(a, sPT, sDBGP, 256)
        a(f"""v_mov_b32 v1, 1
        s_lshl_b32 s{sT0}, s{sB}, 2
        s_mov_b32 s{sN}, 0
        s_waitcnt vmcnt(0)
        s_cmp_lg_u32 s{sLW}, 0
        s_cbranch_scc1 L_q0
        s_mov_b64 exec, 1
        buffer_atomic_add v1, v{vZ}, {sr(sPT)}, s{sT0} offen offset:{128*bool(self.dbgst)} sc1
        s_mov_b64 exec, -1""")
        nextbuf = [f"v_add_u32 v{vWA}, s{sWB}, v{vWA0}\ns_mov_b32 s{sT0}, s{sWB}", f"v_xor_b32 v{vWA+1}, 32, v{vWA}\ns_mov_b32 s{sWB}, s{sWB+1}",
                   f"v_xor_b32 v{vWA+2}, 64, v{vWA}\ns_mov_b32 s{sWB+1}, s{sWB+2}", f"v_xor_b32 v{vWA+3}, 96, v{vWA}\ns_mov_b32 s{sWB+2}, s{sT0}"]
        a("L_q0:\ns_barrier")
        self.probe(0, True)
        lg = Lg(a)
        rd = lambda ks: [self.rdB(ks, 0)] + self.q_rdA(ks, 0) + [self.rdB(ks, q) for q in (1, 2, 3)] + sum((self.q_rdA(ks, m) for m in (1, 2, 3)), [])
        r0 = rd(0)
        plan = {k: [] for k in range(-1, 32)}
        for i, x in enumerate(r0):
            plan[i // 2 - 1].append(x)
        for pos, m in ((6, 0), (8, 1), (12, 2), (16, 3)):
            for j, x in enumerate(self.q_rdA(1, m)):
                plan[pos + j].append(x)
        for q in range(4):
            plan[18 + q].append(self.rdB(1, q))
        tail = nextbuf + self.NEXTX
        for x in plan[-1]:
            lg.issue(*x)
        for k in range(32):
            mt, qt = self.ORDER4[k & 15]
            if k == 16:
                lg.wait(*[tag for _, tag in r0])
            a(self.mfma(ACC0, mt, qt, self.qA(1 - (k >> 4), mt), 1 - (k >> 4)))
            for x in plan[k]:
                lg.issue(*x)
            if k >= 22 and tail:
                a(tail.pop(0))
            if k == 30:
                lg.drain()
                a(f"s_cmp_lt_u32 s{sN}, 9" if self.setup0 else f"s_cmp_eq_u32 s{sN}, 1")
        self.probe(1)
        a("s_cbranch_scc1 L_q0" if self.setup0 else "s_cbranch_scc1 L_q0_setup")
        if self.wqat > 1 and not self.setup0:
            a(f"s_cmp_eq_u32 s{sN}, {self.wqat}\ns_cbranch_scc1 L_q0_touch")
        if not self.setup0:
            a(f"s_cmp_lt_u32 s{sN}, 9\ns_cbranch_scc1 L_q0")
        self.early(10)
        self.q_finalize(ACC0, [self.mfma(ACC0, mt, qt, self.qA(1, mt), 1) for mt, qt in self.ORDER4])
        self.early(12)
        a(f"v_xor_b32 v{vQW}, {R2 ^ WR}, v{vQW}")
        self.stamp(1)
        a("s_branch L_pj_rest")

    def pj_setup(self):
        a = self.a
        a("L_q0_setup:")
        self.late_common()
        self.late_wo()
        a(f"""s_cmp_eq_u32 s{sTY}, 1
        s_cselect_b32 s{sKVN}, 2, {self.adist}
        s_lshl_b32 s{sT0}, s{sKVN}, 13
        s_add_u32 s{sKVOFF}, s{sKVOFF}, s{sT0}
        s_mul_i32 s{sT0}, s{sKVN}, s{sBUFSZ}
        s_add_u32 s{sKVM0}, s{sKVM0}, s{sT0}
        s_mov_b32 s{sTHR}, 1
        s_add_u32 s{sWCOL}, s{sWCOL}, 512
        s_add_u32 s{sWCH}, s{sWCH}, 7
        s_sub_u32 s{sT0}, s{sWCH}, 9
        s_cselect_b32 s{sWCH}, s{sWCH}, s{sT0}
        s_lshl_b32 s{sT2}, s{sLW}, 13
        s_add_u32 s{sWBUF}, s{sT2}, {WR}
        s_mov_b32 s{sXN}, 4
        s_add_u32 s{sXCH}, s{sXCH}, 4
        s_sub_u32 s{sT0}, s{sXCH}, 9
        s_cselect_b32 s{sXCH}, s{sXCH}, s{sT0}
        s_mov_b32 s{sOCI}, 0
        s_mov_b32 s{sOG}, 0
        s_mov_b32 s{sOBUF}, {WR}
        s_mov_b32 s{sTN}, 0
        s_mov_b32 s{sLAST}, 2
        v_mov_b32 v{vPR}, 0""")
        for i in range(64):
            a(f"v_mov_b32 v{vACC+64+i}, 0")
        if self.setup0:
            assert not self.touch & 33
            return
        if self.wqat > 1:
            a("s_branch L_q0\nL_q0_touch:")
        self.pretouch_wq(vFA + 34)
        a("s_branch L_q0")

    def stream_slot(self, ty, rdA, MT, acc, aset, loads, after, readB=True):
        e = self.a
        e("s_barrier")
        self.probe(0, True)
        lg = Lg(e)
        for t, tag in rdA:
            lg.issue(t, tag)
        lg.drain()
        self.probe(1)
        e("s_barrier")
        self.probe(2)
        for ks in (0, 1):
            for q in range(4 if readB else 0):
                lg.issue(*self.rdB(ks, q))
        if loads is None:
            return
        def mk(ks, mt, qt):
            def f():
                lg.wait(("B", ks, qt))
                e(self.mfma(acc, mt, qt, aset(ks, mt), ks))
            return f
        mm = [mk(ks, mt, qt) for ks in (0, 1) for mt in range(MT) for qt in range(4)]
        self.spread(mm, loads + (self.kv_items_b() if ty else self.kv_items_a() if self.weavea else []))
        self.probe(6)
        if not ty and not self.weavea:
            if getattr(self, "extra", None):
                l = self.lab("tx")
                e(f"s_cmp_ge_u32 s{sN}, 15\ns_cbranch_scc1 {l}")
                self.pretouch_wo(False)
                e(f"{l}:")
                self.extra = None
            self.call("F_kv")
        for t in after:
            e(t)

    def store_items(self, G):
        acc = vACC + 48 * G
        items = []
        for qd in range(6):
            c = acc + 8*qd
            t = "\n".join(f"v_cvt_pk_bf16_f32 v{c+i}, v{c+2*i}, v{c+2*i+1}" for i in range(4))
            t += f"\nbuffer_store_dwordx4 {vr(c,4)}, v{vST}, {sr(sWS)}, s{sM} offen offset:{1024*(qd&3)} {('sc1', 'sc1 nt', 'sc0 sc1')[self.partop]}"
            if qd in (3, 5):
                t += f"\ns_add_u32 s{sM}, s{sM}, {4096 if qd == 3 else 24576-4096}"
            items.append(t)
        return items

    def pj_rest(self):
        a = self.a
        ACC1 = vACC + 64
        qrd = sum((self.q_rdA(ks, m) for ks in (0, 1) for m in range(4)), [])
        a(f"L_pj_rest:\nv_lshlrev_b32 v7, 7, v0\nv_mov_b32 v{vXA}, v{vXA0}\nv_mov_b32 v{vXA+1}, v{vXA0+1}")
        self.prio_set(1)
        prevx = [f"s_add_u32 s{sN}, s{sN}, 1\ns_sub_u32 s{sT0}, 9, s{sN}\ns_and_b32 s{sT0}, s{sT0}, 3\ns_lshl_b32 s{sT0}, s{sT0}, 13"] + self.NEXTX[1:]
        a(f"s_cmp_eq_u32 s{sTY}, 1\ns_cbranch_scc1 L_q1_1")
        if self.help:
            self.other_srd(sBV, 56, SIZE['B_v'])
        if self.follow:
            self.wait_init(vZ, vDUM)
        if self.aidle:
            self.pretouch_wo(True)
            a(f"s_mov_b32 s{sM}, 6\nL_idle_a:\ns_barrier")
            self.probe(0, True)
            a("s_barrier")
            if self.aidle == 1:
                self.pretouch_wo(False)
            self.call("F_kv")
            self.kvwait()
            a(f"s_sub_u32 s{sM}, s{sM}, 1\ns_cmp_lg_u32 s{sM}, 0\ns_cbranch_scc1 L_idle_a")
        for ty in (0, 1):
            nk = 8 if ty else self.NA
            a(f"L_q1_{ty}:")
            if self.aidle == 2 and not ty:
                self.extra = "touch"
            self.stream_slot(ty, qrd, 4, ACC1, self.qA, self.w_items(True), prevx)
            a(f"s_sub_u32 s{sT0}, s{sN}, 11\ns_cmp_ge_u32 s{sT0}, 5\ns_cbranch_scc1 L_q1_nox{ty}")
            self.call("F_x")
            a(f"""s_sub_u32 s{sXN}, s{sXN}, 2
            s_add_u32 s{sXCH}, s{sXCH}, 7
            s_sub_u32 s{sT0}, s{sXCH}, 9
            s_cselect_b32 s{sXCH}, s{sXCH}, s{sT0}""")
            self.probe(4)
            a(f"s_waitcnt vmcnt({nk + 2})")
            self.probe(5)
            a(f"s_branch L_q1_{ty}\nL_q1_nox{ty}:")
            self.probe(4)
            a(f"s_waitcnt vmcnt({nk})")
            self.probe(5)
            a(f"s_cmp_lt_u32 s{sN}, 17\ns_cbranch_scc1 L_q1_{ty}")
            if not ty:
                a("s_branch L_q1_last")
        a("L_q1_last:")
        self.stream_slot(0, qrd, 4, ACC1, self.qA, None, None)
        self.call("F_kv")
        a("s_waitcnt lgkmcnt(0)")
        self.q_finalize(ACC1, [self.mfma(ACC1, mt, qt, self.qA(ks, mt), ks) for ks in (0, 1) for mt, qt in self.ORDER4])
        self.kvwait()
        self.stamp(2)
        a("s_barrier")
        self.probe(0, True)
        a("s_barrier")
        if not self.aidle:
            self.pretouch_wo(True)
        self.call("F_kv")
        for i in range(144):
            a(f"v_mov_b32 v{vACC+i}, 0")
        a(f"""v_lshrrev_b32 v6, 2, v0
        v_bfe_u32 v1, v6, 1, 2
        v_and_b32 v7, 3, v0
        v_lshlrev_b32 v7, 3, v7
        v_mul_u32_u24 v6, 384, v6
        v_add_u32 v6, v6, v7
        s_mul_i32 s{sT0}, s{sLW}, 3""")
        for nt in range(3):
            a(f"""s_add_u32 s{sT1}, s{sT0}, {nt}
            v_xor_b32 v7, s{sT1}, v1
            v_lshl_add_u32 v{vOA0+nt}, v7, 5, v6
            v_add_u32 v{vOA+nt}, {WR}, v{vOA0+nt}""")
        a(f"""s_lshl_b32 s{sT0}, s{sTY}, 4
        s_add_u32 s{sT0}, s{sT0}, s{sB}
        s_lshl_b32 s{sT0}, s{sT0}, 3
        s_add_u32 s{sT0}, s{sT0}, s{sHG}
        s_mul_i32 s{sM}, s{sT0}, {PART}
        s_add_u32 s{sM}, s{sM}, s{sOLW}
        v_lshl_add_u32 v{vST}, v3, 2, v2
        v_lshlrev_b32 v{vST}, 4, v{vST}""")
        self.kvwait()
        if self.aidle:
            a(f"s_cmp_eq_u32 s{sTY}, 0\ns_cbranch_scc1 L_kvl_done")
        a(f"s_mov_b32 s{sN}, 6\nL_kvl:\ns_barrier")
        self.probe(0, True)
        a("s_barrier")
        self.probe(2)
        if not self.aidle:
            self.pretouch_wo(False)
        self.call("F_kv")
        self.probe(4)
        self.kvwait()
        self.probe(5)
        a(f"""s_sub_u32 s{sN}, s{sN}, 1
        s_cmp_lg_u32 s{sN}, 0
        s_cbranch_scc1 L_kvl
        L_kvl_done:
        s_barrier""")
        self.probe(0, True)
        a("s_barrier")
        self.call("F_wo")
        if self.touch & 8:
            self.touch_own_last()
        self.call("F_kv")
        self.kvwait()
        self.stamp(3)
        oA = lambda c, ks, mt: vFA + 4*mt + (0 if ks == 0 else 12 + 12*(c & 1))
        o_rdA = lambda c, ks, mt: self.rdA(oA(c, ks, mt), vOA, mt, 32*ks*384, (32*ks+16)*384, ("A", ks, mt))
        xa_step = [f"s_add_u32 s{sN}, s{sN}, 1\ns_add_u32 s{sT0}, s{sROT}, s{sN}\ns_and_b32 s{sT0}, s{sT0}, 3\ns_lshl_b32 s{sT0}, s{sT0}, 13",
                   f"v_add_u32 v{vXA}, s{sT0}, v{vXA0}", f"v_add_u32 v{vXA+1}, s{sT0}, v{vXA0+1}"]
        a(f"s_mov_b32 s{sN}, -1\nv_lshlrev_b32 v7, 7, v0")
        for t in xa_step:
            a(t)
        ord_ = sum((o_rdA(0, ks, m) for ks in (0, 1) for m in range(3)), [])
        a(f"s_cmp_eq_u32 s{sTY}, 1\ns_cbranch_scc1 L_o2_1")
        for ty in (0, 1):
            a(f"L_o2_{ty}:")
            for G in range(3):
                self.stream_slot(ty, ord_, 3, vACC + 48*G, lambda ks, mt: oA(0, ks, mt), self.wo_items(), xa_step if G == 0 else [], G == 0)
                self.probe(4)
                if ty or self.weavea:
                    a(f"s_waitcnt vmcnt({8 if ty else self.NA})")
                else:
                    self.kvwait()
                self.probe(5)
            a(f"s_cmp_lt_u32 s{sN}, 4\ns_cbranch_scc1 L_o2_{ty}")
            if not ty:
                a("s_branch L_o2_done")
        a("L_o2_done:")
        self.stamp(4)
        if self.probes or self.lite:
            a(f"s_add_u32 s{sSLOT}, s{sSLOT}, 3")
        a("s_barrier\ns_barrier")
        if self.touch & 4:
            self.touch_own_last()
        self.call("F_kv")
        if self.touch & 16:
            self.touch_own_last()
        a(f"""v_lshl_add_u32 v1, v0, 2, s{sRB}
        v_cmp_gt_u32 vcc, 6, v0
        s_and_saveexec_b64 {sr(sT0, 2)}, vcc
        s_cmp_lg_u32 s{sLW}, 0
        s_cbranch_scc1 L_nz
        ds_write_b32 v1, v{vZ} offset:{SYNC - WR}
        L_nz:
        s_mov_b64 exec, -1
        s_waitcnt lgkmcnt(0)""")
        self.kvwait(1 if self.touch & 16 else 0)
        srd(a, sPT, sDBGP, 256)
        a(f"""s_lshl_b32 s{sT2}, s{sB}, 2
        s_barrier
        s_barrier
        buffer_load_dword v{vDUM}, v{vZ}, {sr(sPT)}, s{sT2} offen offset:{128*bool(self.dbgst)} sc1
        s_mov_b32 s{sOBUF}, s{sRB+1}""")
        self.call("F_wo")
        a(f"""s_waitcnt vmcnt(6)
        v_readfirstlane_b32 s{sT1}, v{vDUM}
        s_cmp_ge_u32 s{sT1}, 16
        s_cbranch_scc1 L_init_ok""")
        self.wait_init(vZ, vDUM)
        a(f"L_init_ok:\ns_barrier\ns_barrier\ns_mov_b32 s{sOBUF}, s{sRB+2}")
        self.call("F_wo")
        if self.prio & 4:
            a("s_setprio 0")
        self.stamp(5)
        st = []
        def xa_to(c):
            if c > 11 or self.last_seq(c)[0] == self.last_seq(c - 1)[0]:
                return []
            return [f"s_add_u32 s{sT0}, s{sROT}, {self.last_seq(c)[0]}\ns_and_b32 s{sT0}, s{sT0}, 3\ns_lshl_b32 s{sT0}, s{sT0}, 13"] + xa_step[1:]
        done_at = {max(c for c in range(12) if self.last_seq(c)[1] == g) + 1: g for g in (0, 1)}
        for c in range(12):
            grp = (lambda c: c >> 2) if self.gmajor else (lambda c: self.last_seq(c)[1])
            acc, prev = vACC + 48 * grp(c), vACC + 48 * grp(max(c - 1, 0))
            newB = c == 0 or self.last_seq(c)[0] != self.last_seq(c - 1)[0] or self.gmajor
            lg = Lg(a)
            if c == 0:
                for ks in (0, 1):
                    for m in range(3):
                        for x in o_rdA(0, ks, m):
                            lg.issue(*x)
                lg.drain()
            a("s_barrier")
            self.probe(0, True)
            b0 = [self.rdB(0, q) for q in range(4)] if newB else []
            r0 = b0[:1] + o_rdA(c, 0, 0) + b0[1:] + o_rdA(c, 0, 1) + o_rdA(c, 0, 2)
            ra1 = sum((o_rdA(c, 1, m) for m in range(3)), [])
            if c == 0:
                r0, ra1 = b0 + [self.rdB(1, q) for q in range(4)], []
            plan = {k: [] for k in range(-1, 24)}
            for i, x in enumerate(r0):
                plan[(i // 2 - 1 if newB else i - 1) if c else -1].append(x)
            for i, x in enumerate(ra1):
                plan[5 + i if c else 12 + i // 2].append(x)
            for q in range(4 if newB and c else 0):
                plan[12 + q].append(self.rdB(1, q))
            fill = [f"v_add_u32 v{vOA+nt}, s{sRB + ((c+1)&3)}, v{vOA0+nt}" for nt in range(3)] + (xa_to(c + 1) if self.hyb else xa_step if newB else [])
            for x in plan[-1]:
                lg.issue(*x)
            for k in range(0 if c else 12, 24):
                mt, qt = self.ORDER3[k % 12]
                if k == 12 and c:
                    lg.wait(*[tag for _, tag in r0])
                elif not c:
                    lg.wait(("A", 0, mt, 0), ("A", 0, mt, 1), ("B", 0, qt))
                a(self.mfma(prev, mt, qt, oA(c - 1, 1, mt), 1) if k < 12 else self.mfma(acc, mt, qt, oA(c, 0, mt), 0))
                for x in plan[k]:
                    lg.issue(*x)
                if k >= (16 if c else 19) and fill:
                    a(fill.pop(0))
                    if not c and fill:
                        a(fill.pop(0))
                if self.gmajor:
                    if k == 11 and c in (self.store0, self.store1):
                        st += self.store_items(int(c == self.store1))
                    step = self.stp0 if c < self.store1 else self.stp
                else:
                    if c in done_at and k == 9:
                        st += self.store_items(done_at[c])
                    step = self.stp
                if st and k % step == step - 1:
                    a(st.pop(0))
                if k == 22:
                    lg.drain()
            assert not fill
            if c < 2:
                a(f"s_waitcnt vmcnt({6 - 6*c})")
            if c in (4, 8):
                self.stamp(6 + (c >> 3))
        for k, (mt, qt) in enumerate(self.ORDER3):
            a(self.mfma(vACC + 96, mt, qt, oA(11, 1, mt), 1))
            if k == 9:
                st += self.store_items(2)
            if st and k % 2 == 1:
                a(st.pop(0))
        for t in st:
            a(t)
        self.stamp(8)
        a(f"""v_mov_b32 v1, {SYNC}
        v_mov_b32 v6, 1
        v_lshlrev_b32 v5, 4, v0
        v_mov_b32 v{vFA}, 1
        v_mov_b32 v{vFA+1}, 1
        v_mov_b32 v{vFA+2}, 1
        v_mov_b32 v{vFA+3}, 1
        s_lshl_b32 s{sT0}, s{sTY}, 14
        s_lshl_b32 s{sT1}, s{sHG}, 7
        s_add_u32 s{sT0}, s{sT0}, s{sT1}
        s_add_u32 s{sT0}, s{sT0}, s{sFADDR}
        s_mov_b64 exec, 1""")
        for k in range(1):
            a(f"""s_waitcnt vmcnt(0)
            ds_add_rtn_u32 v7, v1, v6 offset:{4*k}
            s_waitcnt lgkmcnt(0)
            v_readfirstlane_b32 s{sT1}, v7
            s_cmp_lg_u32 s{sT1}, 3
            s_cbranch_scc1 L_nf{k}
            s_mov_b64 exec, 0xff
            buffer_store_dwordx4 {vr(vFA, 4)}, v5, {sr(sWS)}, s{sT0} offen sc1
            L_nf{k}:""")
            if k == 0:
                self.stamp(13)
        a("s_mov_b64 exec, -1")
        self.stamp(9)
        self.probe_dump()
        a("s_branch L_reduce")

    def at_first(self):
        a = self.a
        a("L_at:")
        self.prio_set(0)

        issued = []
        WBUFS = (WR, R1, R2)

        def ldx(n, direct):
            if n == 0 and self.inl:
                self.x_body()
            elif n <= 3 or n >= 9 or direct:
                self.call("F_x")
            else:
                a(f"s_lshl_b32 s{sT0}, s{sXCH}, 7\ns_add_u32 s{sT0}, s{sT0}, s{sXBASE}")
                self.x_adv()
                for i in range(2):
                    a(f"buffer_load_dwordx4 {vr(vO + (n-4)*8 + 4*i, 4)}, v{vXVO+i}, {sr(sX)}, s{sT0} offen offset:{1024*i}")
            issued.extend([("x", n)] * 2)

        def ldw(n):
            if n == 9:
                a(f"s_sub_u32 s{sWCH}, s{sWCH}, 1\ns_cselect_b32 s{sWCH}, 8, s{sWCH}")
            a(f"s_lshl_b32 s{sWBUF}, s{sLW}, 13\ns_add_u32 s{sWBUF}, s{sWBUF}, {WBUFS[n % 3]}")
            if n == 0 and self.inl:
                for t in self.w_items():
                    a(t)
            else:
                self.call("F_w")
            issued.extend([("w", n)] * 8)

        def prefill(k, ty):
            for _ in range(2 - ty):
                self.call("F_kv")
            issued.extend([("kv", k)] * 8)

        def wait(*tags):
            k = max(i for i, t in enumerate(issued) if t in tags) + 1
            a(f"s_waitcnt vmcnt({min(63, len(issued) - k)})")
        def first_stage(ty, head):
            del issued[:]
            direct = ty == 1 and self.xplan
            if head:
                ldx(0, direct); ldw(0)
                return
            issued.extend([("x", 0)] * 2 + [("w", 0)] * 8)
            self.early(2)
            self.call("F_atset")
            self.early(4)
            ldx(1, direct); ldw(1)
            wait(("x", 0), ("w", 0))
            self.early(5)
            for n in range(9):
                a("s_barrier")
                self.probe(0, True)
                if 1 <= n <= 5 and not direct:
                    wait(("x", n + 3))
                    for i in range(2):
                        a(f"ds_write_b128 v{vT}, {vr(vO + (n-1)*8 + 4*i, 4)} offset:{((n+3)&3)*8192 + 1024*i}")
                if n == 0:
                    for k in range(2, 4 if direct else 9):
                        ldx(k, direct)
                elif direct and n <= 5:
                    ldx(n + 3, direct)
                if n + 2 <= 9:
                    ldw(n + 2)
                if n == (self.prefill if ty else self.prefa):
                    prefill(0, ty)
                if n == 8 and (ty or self.adist == 4):
                    prefill(1, ty)
                self.probe(4)
                wait(*([("w", n + 1)] + [("kv", 0) if n == 8 else ("x", n + 1)]))
                a("s_waitcnt lgkmcnt(0)")
                self.probe(5)
        a(f"s_mov_b32 s{sXN}, 0\ns_cmp_eq_u32 s{sTY}, 0\ns_cbranch_scc1 L_at_a")
        first_stage(1, True)
        a("s_branch L_at_b\nL_at_a:")
        if self.xplan & 2:
            srd(a, sPT, sBWP, SIZE['B_wq'])
            a(f"""s_lshl_b32 s{sT0}, s{sB}, 2
            s_add_u32 s{sT0}, s{sT0}, s{sLW}
            s_mul_i32 s{sT0}, s{sT0}, {9*8192}
            s_lshl_b32 s{sT1}, s{sHG}, 10
            s_add_u32 s{sT0}, s{sT0}, s{sT1}
            v_lshrrev_b32 v1, 2, v0
            v_and_b32 v6, 3, v0
            v_lshlrev_b32 v6, 7, v6
            v_lshl_add_u32 v1, v1, 13, v6
            s_mov_b32 exec_hi, 15
            buffer_load_dword v{vP+3}, v1, {sr(sPT)}, s{sT0} offen""")
            if self.xplan & 4:
                a(f"buffer_load_dword v{vP+2}, v1, {sr(sWQ)}, s{sT0} offen")
            a("s_mov_b64 exec, -1")
        if self.xtouch:
            srd(a, sBV, sBXP, SIZE['B_x'])
            a(f"v_mul_u32_u24 v1, 1152, v0\ns_mul_i32 s{sT2}, s{sB}, 73728")
            for j in range(2):
                a(f"""s_add_u32 s{sT0}, s{sXCH}, s{sLW}
                s_add_u32 s{sT0}, s{sT0}, {self.xfrom + 4*j}
                s_mul_i32 s{sT1}, s{sT0}, 57
                s_lshr_b32 s{sT1}, s{sT1}, 9
                s_mul_i32 s{sT1}, s{sT1}, 9
                s_sub_u32 s{sT0}, s{sT0}, s{sT1}
                s_lshl_b32 s{sT0}, s{sT0}, 7
                s_add_u32 s{sT0}, s{sT0}, s{sT2}
                buffer_load_dword v{vP+j}, v1, {sr(sBV)}, s{sT0} offen""")
        first_stage(0, True)
        first_stage(0, False)
        a("s_branch L_at_done\nL_at_b:")
        first_stage(1, False)
        a("L_at_done:")
        if self.prio & 1:
            a("s_setprio 0")
        a("s_branch L_stage\nF_atset:")
        if not (self.probes or self.stamps):
            self.late_srds()
        self.late_common()
        a(f"""s_mov_b32 s{sTHR}, 0
        s_lshl_b32 s{sT0}, s{sLW}, 11
        s_add_u32 s{sT0}, s{sT0}, {XR}
        v_lshl_add_u32 v{vT}, v0, 4, s{sT0}""")
        self.at_setup()
        if self.xplan:
            a(f"s_cmp_eq_u32 s{sTY}, 0\ns_cbranch_scc1 F_atset_ret")
            for i in range(vO, vO + 40):
                a(f"v_mov_b32 v{i}, 0")
            a("F_atset_ret:")
        self.ret()

    def at_setup(self):
        a = self.a
        a(f"""s_lshr_b32 s{sT0}, s{sLW}, 1
        s_mul_i32 s{sT0}, s{sT0}, s{sTY}
        s_lshl_b32 s{sT0}, s{sT0}, 13
        v_xor_b32 v7, v2, v3
        v_lshlrev_b32 v7, 4, v7
        v_lshl_add_u32 v7, v3, 8, v7
        v_add_u32 v{vKA}, s{sT0}, v7""")
        for ks in range(1, 4):
            a(f"v_xor_b32 v{vKA+ks}, {64*ks}, v{vKA}")
        a(f"""s_lshr_b32 s{sT1}, s{sBUFSZ}, 1
        s_add_u32 s{sT0}, s{sT0}, s{sT1}
        v_lshrrev_b32 v1, 2, v0
        v_and_b32 v6, 7, v1
        v_lshlrev_b32 v7, 8, v1
        v_lshl_add_u32 v7, v6, 5, v7
        v_and_b32 v1, 3, v0
        v_lshl_add_u32 v7, v1, 3, v7
        v_add_u32 v{vVA}, s{sT0}, v7""")
        for dt in range(1, 8):
            a(f"v_xor_b32 v{vVA+dt}, {32*dt}, v{vVA}")
        a(f"""s_mov_b32 s{sRPOS}, 0
        s_mov_b32 s{sSTAGE}, 0
        s_mov_b32 s{sQBUF}, {R2 - XR}
        s_mov_b32 s{sM}, 3
        s_lshr_b32 s{sT0}, s{sLW}, 1
        s_lshl_b32 s{sT0}, s{sT0}, 14
        s_and_b32 s{sT1}, s{sLW}, 1
        s_lshl_b32 s{sT1}, s{sT1}, 12
        s_add_u32 s{sT0}, s{sT0}, s{sT1}
        s_add_u32 s{sT0}, s{sT0}, {XR}
        v_lshrrev_b32 v6, 1, v3
        v_xor_b32 v6, v6, v2
        v_lshlrev_b32 v6, 4, v6
        v_lshl_add_u32 v6, v3, 7, v6
        v_add_u32 v{vH}, s{sT0}, v6
        v_xor_b32 v{vH+1}, 64, v{vH}""")
        for i in list(range(vO + 40, vO + 64)) + list(range(vNM + 1, vNM + 8)) + [vL0, vL0 + 1, vL0 + 2, vL0 + 3, 4] + list(range(vOVO, vOVO + 6)):
            a(f"v_mov_b32 v{i}, 0")

    def at_rest(self):
        a = self.a
        publish = self.follow or self.gate
        a(f"""L_stage:
        s_mov_b32 s{sTH}, 0xff7fffff
        s_mov_b32 s{sFLOOR}, 0xff7fffff
        s_mov_b32 s{sFIRST}, 0
        s_cmp_lg_u32 s{sSTAGE}, 0
        s_cbranch_scc1 L_stage_a
        v_mov_b32 v{vNM}, 0
        L_stage_a:""")
        for i in range(2):
            a(f"v_add_u32 v{vT+i}, s{sQBUF}, v{vH+i}")
        a(f"s_mov_b32 s{sN}, 0\nL_tile:\ns_barrier")
        self.probe(0, True)
        a(f"s_cmp_lg_u32 s{sN}, 0\ns_cbranch_scc1 L_tile_k")
        for qt in range(2):
            for ks in range(4):
                a(f"ds_read_b128 {vr(vQ + (qt*4+ks)*4, 4)}, v{vT+(ks&1)} offset:{2048*qt + 8192*(ks>>1)}")
        a("s_waitcnt lgkmcnt(0)\nL_tile_k:")
        lg = Lg(a)
        for ks in range(4):
            for kt in range(2):
                lg.issue(f"ds_read_b128 {vr(vKF + (ks*2+kt)*4, 4)}, v{vKA+ks} offset:{4096*kt}", ("K", ks, kt))
        a("s_barrier")
        O = lambda dt, qt: vO + (((dt >> 1)*2 + qt)*2 + (dt & 1))*4
        pv = lambda dt, u: f"v_mfma_f32_16x16x32_bf16 {vr(O(dt, u), 4)}, {vr(vVF + dt*4, 4)}, {vr(vP+4*u, 4)}, {vr(O(dt, u), 4)}"
        if self.defer:
            a(f"s_cmp_eq_u32 s{sN}, 0\ns_cbranch_scc1 L_tile_q")
            late = [f"v_pk_add_f32 {vr(vL0+2*u, 2)}, {vr(vL0+2*u, 2)}, {vr(vS+8*u+2*i, 2)}" for u, i in ((1, 0), (0, 2), (1, 1), (0, 3), (1, 2), (1, 3))]
            late += [f"v_add_u32 v{vVA+i}, s{sPROG}, v{vVA+i}" for i in range(8)]
            def deferred():
                l = list(late)
                for dt in range(8):
                    a(pv(dt, 1))
                    for _ in range(2):
                        if l: a(l.pop(0))
            deferred()
            a("L_tile_q:")
        vreads = [(f"ds_read_b64_tr_b16 {vr(vVF + dt*4 + 2*j, 2)}, v{vVA+dt} offset:{4096*j}", ("V", dt, j)) for dt in range(8) for j in range(2)]
        S = lambda qt, kt: vS + (qt*2 + kt)*4
        O = lambda dt, qt: vO + (((dt >> 1)*2 + qt)*2 + (dt & 1))*4
        for ks in range(4):
            for kt in range(2):
                lg.wait(("K", ks, kt))
                for qt in range(2):
                    c = vr(vNM + 4*qt, 4) if ks == 0 else vr(S(qt, kt), 4)
                    a(f"v_mfma_f32_16x16x32_bf16 {vr(S(qt, kt), 4)}, {vr(vKF + (ks*2+kt)*4, 4)}, {vr(vQ + (qt*4+ks)*4, 4)}, {c}")
                    if len(lg.q) < 15:
                        lg.issue(*vreads.pop(0))
        for t, tag in vreads:
            lg.issue(t, tag)
        a(f"""s_add_u32 s{sRPOS}, s{sRPOS}, s{sBUFSZ}
        s_cmp_ge_u32 s{sRPOS}, 98304
        s_cselect_b32 s{sT0}, 98304, 0
        s_sub_u32 s{sRPOS}, s{sRPOS}, s{sT0}
        s_sub_u32 s{sPROG}, s{sBUFSZ}, s{sT0}""")
        adv = [f"v_add_u32 v{vKA+i}, s{sPROG}, v{vKA+i}" for i in range(12)]
        nadv = 4 if self.defer else 2
        for t in adv[:nadv]:
            a(t)
        adv = adv[nadv:]
        t0, t1 = vT, vT + 1
        a(f"""v_max3_f32 v{t0}, v{vS}, v{vS+1}, v{vS+2}
        v_max3_f32 v{t0}, v{t0}, v{vS+3}, v{vS+4}
        v_max3_f32 v{t1}, v{vS+8}, v{vS+9}, v{vS+10}
        v_max3_f32 v{t0}, v{t0}, v{vS+5}, v{vS+6}
        v_max3_f32 v{t1}, v{t1}, v{vS+11}, v{vS+12}
        v_max_f32 v{t0}, v{t0}, v{vS+7}
        v_max3_f32 v{t1}, v{t1}, v{vS+13}, v{vS+14}
        v_max_f32 v{t1}, v{t1}, v{vS+15}
        v_max_f32 v{vT+2}, v{t0}, v{t1}
        v_cmp_lt_f32 vcc, s{sTH}, v{vT+2}
        s_cbranch_vccnz L_rescale
        L_tile_exp:""")
        ex = lambda u: [f"v_exp_f32 v{vS+8*u+i}, v{vS+8*u+i}" for i in range(8)]
        cv = lambda u: [f"v_cvt_pk_bf16_f32 v{vP+4*u+i}, v{vS+8*u+2*i}, v{vS+8*u+2*i+1}" for i in range(4)]
        if self.pkl:
            ad = lambda u: [x for i in range(4) for x in (f"v_pk_add_f32 {vr(vL0+2*u, 2)}, {vr(vL0+2*u, 2)}, {vr(vS+8*u+2*i, 2)}", "")]
        else:
            ad = lambda u: [f"v_add_f32 v{vL0+2*u+(i&1)}, v{vL0+2*u+(i&1)}, v{vS+8*u+i}" for i in range(8)]
        pv = lambda dt, u: f"v_mfma_f32_16x16x32_bf16 {vr(O(dt, u), 4)}, {vr(vVF + dt*4, 4)}, {vr(vP+4*u, 4)}, {vr(O(dt, u), 4)}"
        e0, c0, a0 = ex(0), cv(0), ad(0)
        e1, c1, a1 = ex(1), cv(1), ad(1)
        for t in e0[:3] + [e0[3], c0[0], e0[4], e0[5], c0[1], e0[6], e0[7], c0[2], e1[0], c0[3], e1[1], a0[0]]:
            a(t)
        gaps = [[e1[2]], [e1[3], c1[0]], [e1[4]], [e1[5], c1[1]], [e1[6]], [e1[7]], [c1[2], a0[1]], [c1[3], a0[2], a0[3] or "s_nop 0"]]
        for dt in range(8):
            if dt % 2 == 0:
                lg.wait(("V", dt + 1, 0), ("V", dt + 1, 1))
            a(pv(dt, 0))
            for t in gaps[dt]:
                a(t)
        rest = [x for pair in zip(a1, a0[4:] + adv[:4]) for x in pair] + adv[4:]
        assert self.pkl and not self.defer and not publish
        a(f"s_cmp_eq_u32 s{sN}, 15\ns_cbranch_scc1 L_tile_last")
        if not self.defer:
            for dt in range(8):
                a(pv(dt, 1))
                for _ in range(3):
                    if rest: a(rest.pop(0))
            assert not rest
        self.probe(6)
        a(f"s_or_b32 s{sT0}, s{sSTAGE}, s{sN}\ns_cbranch_scc1 L_tile_nw\ns_waitcnt vmcnt(0)\nL_tile_nw:")
        if publish:
            a(f"""s_cmp_gt_u32 s{sTY}, s{sLW}
            s_cbranch_scc0 L_tile_np""")
            if not self.follow:
                a(f"s_add_u32 s{sM}, s{sM}, 1\ns_cmp_eq_u32 s{sM}, {self.gate + 1}\ns_cbranch_scc0 L_tile_np\ns_sub_u32 s{sM}, s{sM}, 1")
            a(f"""v_mov_b32 v5, s{sM}
            s_mov_b64 exec, 1
            buffer_store_dword v5, v4, {sr(sWS)}, s{sPADDR} offen sc1
            s_mov_b64 exec, -1
            s_add_u32 s{sM}, s{sM}, 1
            L_tile_np:""")
        a(f"s_add_u32 s{sN}, s{sN}, 1\ns_branch L_tile")
        R = vT + 2
        chain = [x for x in a0[4:] if x] + [x for x in a1 if x]
        chain = [chain[0], chain[2], chain[1], chain[3], chain[4], chain[5]]
        chain += f"""v_add_f32 v{vL0}, v{vL0}, v{vL0+1}
        v_add_f32 v{vL0+1}, v{vL0+2}, v{vL0+3}
        v_mov_b32 v{vL0+2}, v{vL0}
        v_mov_b32 v{vL0+3}, v{vL0+1}
        s_mov_b32 s{sQBUF}, {WR - XR}
        s_add_u32 s{sSTAGE}, s{sSTAGE}, 1
        v_permlane32_swap_b32 v{vL0}, v{vL0+2}
        v_permlane32_swap_b32 v{vL0+1}, v{vL0+3}
        v_add_f32 v{vL0}, v{vL0}, v{vL0+2}
        v_add_f32 v{vL0+1}, v{vL0+1}, v{vL0+3}
        v_mov_b32 v{vL0+2}, v{vL0}
        v_mov_b32 v{vL0+3}, v{vL0+1}
        s_nop 1
        v_permlane16_swap_b32 v{vL0}, v{vL0+2}
        v_permlane16_swap_b32 v{vL0+1}, v{vL0+3}
        v_add_f32 v{R}, v{vL0}, v{vL0+2}
        v_add_f32 v{R-2}, v{vL0+1}, v{vL0+3}
        v_rcp_f32 v{R}, v{R}
        v_rcp_f32 v{R-2}, v{R-2}
        s_nop 0""".split("\n")
        a("L_tile_last:")
        for dt in range(8):
            a(pv(dt, 1))
            for _ in range(3):
                a(chain.pop(0))
        for t in chain:
            a(t)
        mul, put = [], []
        for qt in range(2):
            for p in range(4):
                c = vO + (p*2 + qt)*8
                mul.append("\n".join(f"v_pk_mul_f32 {vr(c+i, 2)}, {vr(c+i, 2)}, {vr(R-2*qt, 2)} op_sel_hi:[1,0]" for i in range(0, 8, 2)))
                put.append("\n".join(f"v_cvt_pk_bf16_f32 v{c+i}, v{c+2*i}, v{c+2*i+1}" for i in range(4)) +
                           f"\nds_write_b128 v{vH + (p&1)}, {vr(c,4)} offset:{2048*qt + 8192*(p>>1)}")
        for k in range(9):
            if k < 8: a(mul[k])
            if k: a(put[k-1])
        self.probe(6)
        a(f"""s_cmp_lt_u32 s{sSTAGE}, 2
        s_cbranch_scc0 L_feed0""")
        for t in adv:
            a(t)
        self.late_wo()
        a(f"""s_mov_b32 s{sOCI}, {7 if self.gmajor else 5}
        s_mov_b32 s{sOG}, 0
        s_waitcnt lgkmcnt(0)
        s_branch L_stage""")
        a("L_feed0:")
        if self.hyb:
            seq = sum((kb | g << 2) << 4*i for i, (kb, g) in enumerate(self.last_seq(c) for c in range(3, 12)))
            a(f"s_mov_b32 s{sBV}, {seq & 0xffffffff}\ns_mov_b32 s{sBV+1}, {seq >> 32}")
        self.prio_set(2)
        a(f"""s_mov_b32 s{sN}, 0
        {self.wo_addr(sRB+3)}
        s_waitcnt lgkmcnt(0)
        L_feed:
        s_barrier""")
        self.probe(0, True)
        if self.probes or self.lite:
            a(f"s_mov_b32 m0, s{sT1}\ns_nop 0")
        nxt = self.wo_addr(sRB+3).replace(f"s{sT0}", f"s{sT2}").replace(f"s{sT1}", f"s{sM}").split("\n")
        nxt = [t for t in nxt if "m0" not in t]
        adv = self.wo_adv()
        if self.hyb:
            adv = f"""s_lshr_b64 {sr(sBV, 2)}, {sr(sBV, 2)}, 4
            s_and_b32 s{sOCI}, s{sBV}, 3
            s_or_b32 s{sOCI}, s{sOCI}, 4
            s_bfe_u32 s{sOG}, s{sBV}, 0x20002
            s_mul_i32 s{sOG}, s{sOG}, 384"""
        between = [adv,
                   f"s_mov_b32 s{sT2}, s{sRB+3}\ns_mov_b32 s{sRB+3}, s{sRB}\ns_mov_b32 s{sRB}, s{sRB+1}\ns_mov_b32 s{sRB+1}, s{sRB+2}\ns_mov_b32 s{sRB+2}, s{sT2}",
                   "\n".join(nxt[:5]), f"s_add_u32 m0, s{sT1}, 4096\n" + "\n".join(nxt[5:]),
                   f"s_add_u32 s{sN}, s{sN}, 1\ns_mov_b32 s{sT1}, s{sM}\ns_cmp_lt_u32 s{sN}, 9", f"s_mov_b32 m0, s{sM}\ns_mov_b32 s{sT0}, s{sT2}"]
        for n in range(6):
            a(f"buffer_load_dwordx4 v{vOVO+n}, {sr(sWO)}, s{sT0} offen offset:{1024*(n&3)}{self.wflag} lds")
            a(between[n])
        self.probe(4)
        a("s_waitcnt vmcnt(12)\ns_cbranch_scc1 L_feed")
        if self.gate:
            a(f"s_or_b32 s{sT0}, s{sTY}, s{sLW}\ns_cbranch_scc1 L_gate")
            self.wait_init(4, 5)
            self.spin(f"buffer_load_dword v5, v4, {sr(sWS)}, s{sPADDR} offen sc1", 5,
                      f"v_readfirstlane_b32 s{sT1}, v5\ns_cmp_ge_u32 s{sT1}, {self.gate}")
            a("L_gate:")
        a("""s_barrier
        s_waitcnt vmcnt(6)
        s_barrier
        s_waitcnt vmcnt(0)
        s_barrier""")
        self.probe_dump()

    def reduce(self):
        a = self.a
        vL, vO0, vD, vSum = 6, 14, 40, 104
        of = ("", " sc1", " nt", " sc0 sc1")[self.outf]
        a("L_reduce:")
        self.stamp(10)
        a(f"""s_setprio 0
        s_lshr_b32 s{sSTAGE}, s{sWAVE}, 2
        s_lshl_b32 s{sT1}, s{sSTAGE}, 2
        s_add_u32 s{sT1}, s{sT1}, {SYNC + 8}
        v_mov_b32 v9, s{sT1}
        s_mov_b32 s{sSPIN}, {SPIN}
        s_cmp_lg_u32 s{sLW}, 0
        s_cbranch_scc1 L_red_work
        s_lshl_b32 s{sT0}, s{sSTAGE}, 14
        s_add_u32 s{sFADDR}, s{sFADDR}, s{sT0}
        v_mov_b32 v4, 0
        v_and_b32 v8, 7, v0
        v_lshlrev_b32 v8, 7, v8
        s_cmp_eq_u32 s{sSTAGE}, 1
        s_cbranch_scc1 L_red_poll""")
        self.wait_init(4, 5)
        a(f"""s_mov_b32 s{sSPIN}, {SPIN}
        L_red_poll:""")
        NP = self.polls
        ld = lambda k: f"buffer_load_dword v{16+k}, v8, {sr(sWS)}, s{sFADDR} offen {('sc1', 'sc0 sc1')[self.flagop == 1]}"
        for k in range(NP - 1):
            a(ld(k) + f"\ns_sleep {self.nap}")
        a("L_red_again:")
        for k in range(NP):
            a(f"""{ld((k + NP - 1) % NP)}
            s_waitcnt vmcnt({NP - 1})
            v_cmp_eq_u32 vcc, 1, v{16+k}
            s_and_b32 s{sT2}, vcc_lo, 0xff
            s_sub_u32 s{sSPIN}, s{sSPIN}, 1
            s_cselect_b32 s{sT2}, 0xff, s{sT2}
            v_mov_b32 v10, s{sT2}
            ds_write_b32 v9, v10
            s_cmp_eq_u32 s{sT2}, 0xff
            s_cbranch_scc1 L_red_end
            s_sleep {self.nap}""")
        a(f"""s_branch L_red_again
        L_red_work:""")
        srd(a, sX, sOUTP, SIZE['out'])
        a(f"""s_lshl_b32 s{sN}, s{sTY}, 3
        s_add_u32 s{sN}, s{sN}, s{sHG}
        s_sub_u32 s{sT0}, s{sLW}, 1
        s_lshl_b32 s{sT0}, s{sT0}, 4
        s_add_u32 s{sN}, s{sN}, s{sT0}
        s_mul_i32 s{sN}, s{sN}, 3
        s_lshl_b32 s{sT0}, s{sSTAGE}, 4
        s_add_u32 s{sT0}, s{sT0}, s{sB}
        s_mul_i32 s{sM}, s{sT0}, {8*PART}
        s_mul_i32 s{sOBASE}, s{sB}, {64*2304}
        s_mul_i32 s{sT0}, s{sSTAGE}, 1152
        s_add_u32 s{sOBASE}, s{sOBASE}, s{sT0}""")
        a(f"""v_bfe_u32 v10, v0, 2, 2
        v_and_b32 v11, 3, v0
        v_bfe_u32 v12, v0, 4, 1""")
        for k in range(2):
            a(f"v_lshrrev_b32 v1, 5, v0\nv_add_u32 v1, s{sN}, v1" if k == 0 else f"s_add_u32 s{sN}, s{sN}, 2\nv_mov_b32 v1, s{sN}")
            a(f"""v_lshrrev_b32 v13, 4, v1
            v_bfe_u32 v16, v1, 3, 1
            v_and_b32 v1, 7, v1
            v_lshl_add_u32 v1, v1, 1, v12
            v_lshl_add_u32 v17, v13, 2, v10
            v_lshl_add_u32 v17, v17, 1, v16
            v_lshl_add_u32 v18, v1, 2, v11
            v_lshlrev_b32 v18, 4, v18
            v_lshl_add_u32 v{vL+k}, v17, 10, v18
            v_lshl_add_u32 v1, v16, 5, v1
            v_mul_u32_u24 v1, 2304, v1
            v_lshl_add_u32 v1, v13, 7, v1
            v_lshl_add_u32 v1, v10, 5, v1
            v_lshl_add_u32 v{vO0+k}, v11, 3, v1""")
            if self.wide:
                a(f"v_and_b32 v1, 1, v0\nv_mul_u32_u24 v1, {16*2304 - 8}, v1\nv_add_u32 v{vO0+k}, v{vO0+k}, v1")
        if self.wide:
            a("v_and_b32 v1, 1, v0\nv_cmp_eq_u32 vcc, 1, v1")
        for i in range(16):
            a(f"v_mov_b32 v{vSum+i}, 0")
        if self.dot:
            a("v_mov_b32 v16, 0x3f80\nv_mov_b32 v17, 0x3f800000")
        a(f"""s_mov_b32 s{sN}, 0
        s_mov_b32 s{sOG}, 0
        L_red_look:
        ds_read_b32 v5, v9
        s_waitcnt lgkmcnt(0)
        v_readfirstlane_b32 s{sT2}, v5
        s_sub_u32 s{sSPIN}, s{sSPIN}, 1
        s_cselect_b32 s{sT2}, 0xff, s{sT2}
        s_andn2_b32 s{sT2}, s{sT2}, s{sN}
        s_cbranch_scc1 L_red_new
        s_getreg_b32 s{sT0}, hwreg(HW_REG_IB_STS)
        s_and_b32 s{sT0}, s{sT0}, 0xc000000f
        s_cselect_b32 s{sT0}, 0, s{sOG}
        s_cmp_lg_u32 s{sT0}, 0
        s_cbranch_scc1 L_red_add
        s_sleep 1
        s_branch L_red_look
        L_red_new:
        s_or_b32 s{sN}, s{sN}, s{sT2}
        s_or_b32 s{sOG}, s{sOG}, s{sT2}""")
        for h in range(8):
            a(f"""s_bitcmp1_b32 s{sT2}, {h}
            s_cbranch_scc0 L_red_h{h}
            s_add_u32 s{sT0}, s{sM}, {h*PART}
            buffer_load_dwordx4 {vr(vD+4*h,4)}, v{vL}, {sr(sWS)}, s{sT0} offen {('sc1', 'sc1', 'sc0 sc1')[self.partop]}
            s_mov_b32 exec_hi, 0
            buffer_load_dwordx4 {vr(vD+32+4*h,4)}, v{vL+1}, {sr(sWS)}, s{sT0} offen {('sc1', 'sc1', 'sc0 sc1')[self.partop]}
            s_mov_b32 exec_hi, -1
            L_red_h{h}:""")
        self.stamp(14)
        if not self.blk:
            a(f"s_cmp_lg_u32 s{sN}, 0xff\ns_cbranch_scc1 L_red_look")
        a("L_red_add:\ns_waitcnt vmcnt(0)")
        for h in range(8):
            a(f"s_bitcmp1_b32 s{sOG}, {h}\ns_cbranch_scc0 L_red_a{h}")
            for k in range(2):
                for i in range(4):
                    r, t = vD + 32*k + 4*h + i, 10 + 2*(i & 1)
                    if self.dot:
                        c = vSum + 8*k + 2*i
                        a(f"v_dot2_f32_bf16 v{c}, v{r}, v16, v{c}\nv_dot2_f32_bf16 v{c+1}, v{r}, v17, v{c+1}")
                        continue
                    a(f"""v_lshlrev_b32 v{t}, 16, v{r}
                    v_and_b32 v{t+1}, 0xffff0000, v{r}
                    v_pk_add_f32 {vr(vSum+8*k+2*i, 2)}, {vr(vSum+8*k+2*i, 2)}, {vr(t, 2)}""")
            a(f"L_red_a{h}:")
        a(f"""s_mov_b32 s{sOG}, 0
        s_cmp_lg_u32 s{sN}, 0xff
        s_cbranch_scc1 L_red_look
        s_add_u32 s{sT0}, s{sOBASE}, {16*2304}""")
        if self.dot:
            a("s_nop 1")
        for k in range(2):
            if k:
                a("s_mov_b32 exec_hi, 0")
            for i in range(4):
                a(f"v_cvt_pk_bf16_f32 v{vSum+16+4*k+i}, v{vSum+8*k+2*i}, v{vSum+8*k+2*i+1}")
            c = vSum + 16 + 4*k
            if self.wide:
                a(f"""v_cndmask_b32 v10, v{c+2}, v{c}, vcc
                v_cndmask_b32 v11, v{c+3}, v{c+1}, vcc
                s_nop 1
                v_mov_b32_dpp v12, v10 quad_perm:[1,0,3,2] row_mask:0xf bank_mask:0xf
                v_mov_b32_dpp v13, v11 quad_perm:[1,0,3,2] row_mask:0xf bank_mask:0xf
                v_cndmask_b32 v{c}, v{c}, v12, vcc
                v_cndmask_b32 v{c+1}, v{c+1}, v13, vcc
                v_cndmask_b32 v{c+2}, v12, v{c+2}, vcc
                v_cndmask_b32 v{c+3}, v13, v{c+3}, vcc
                buffer_store_dwordx4 {vr(c,4)}, v{vO0+k}, {sr(sX)}, s{sOBASE} offen{of}""")
            else:
                a(f"""buffer_store_dwordx2 {vr(c,2)}, v{vO0+k}, {sr(sX)}, s{sOBASE} offen{of}
                buffer_store_dwordx2 {vr(c+2,2)}, v{vO0+k}, {sr(sX)}, s{sT0} offen{of}""")
        a("L_red_end:")
        if self.stamps:
            a("s_mov_b64 exec, -1\ns_waitcnt vmcnt(0)")
            self.stamp(12)
            self.stamp_dump(0)
            self.stamp_dump(1)
            if self.hold:
                a(f"""s_cmp_lg_u32 s2, {self.hwg}
                s_cbranch_scc1 L_end
                s_cmp_lg_u32 s{sWAVE}, 4
                s_cbranch_scc1 L_end
                v_readlane_b32 s{sT0}, v255, 0
                v_readlane_b32 s{sT1}, v255, {self.hi}
                v_readlane_b32 s{sT2}, v255, {self.hj}
                s_sub_u32 s{sT2}, s{sT2}, s{sT1}
                s_add_u32 s{sT2}, s{sT2}, {self.hold*100}
                s_mov_b32 s{sSPIN}, {SPIN}
                L_hold:
                s_memrealtime s[98:99]
                s_waitcnt lgkmcnt(0)
                s_sub_u32 s98, s98, s{sT0}
                s_cmp_ge_u32 s98, s{sT2}
                s_cbranch_scc1 L_end
                s_sub_u32 s{sSPIN}, s{sSPIN}, 1
                s_cbranch_scc0 L_hold""")
        a("s_endpgm")

    def at_rare(self):
        a = self.a
        t, u, al = vT, vP, vP + 2
        a(f"""L_rescale:
        v_mov_b32 v{u}, v{t}
        v_mov_b32 v{u+1}, v{t+1}
        s_nop 1
        v_permlane32_swap_b32 v{t}, v{u}
        v_permlane32_swap_b32 v{t+1}, v{u+1}
        v_max_f32 v{t}, v{t}, v{u}
        v_max_f32 v{t+1}, v{t+1}, v{u+1}
        v_mov_b32 v{u}, v{t}
        v_mov_b32 v{u+1}, v{t+1}
        s_nop 1
        v_permlane16_swap_b32 v{t}, v{u}
        v_permlane16_swap_b32 v{t+1}, v{u+1}
        v_max3_f32 v{t}, v{t}, v{u}, s{sFLOOR}
        v_max3_f32 v{t+1}, v{t+1}, v{u+1}, s{sFLOOR}
        v_max_f32 v{al}, 0, v{t}
        v_max_f32 v{al+2}, 0, v{t+1}
        v_exp_f32 v{al}, -v{al}
        v_exp_f32 v{al+2}, -v{al+2}
        s_mov_b32 s{sTH}, 0x41000000
        s_mov_b32 s{sFLOOR}, 0
        v_mul_f32 v{al}, s{sFIRST}, v{al}
        v_mul_f32 v{al+2}, s{sFIRST}, v{al+2}
        s_mov_b32 s{sFIRST}, 1.0""")
        for qt in range(2):
            for i in range(8):
                a(f"v_sub_f32 v{vS+8*qt+i}, v{vS+8*qt+i}, v{t+qt}")
            for i in range(4):
                a(f"v_sub_f32 v{vNM+4*qt+i}, v{vNM+4*qt+i}, v{t+qt}")
            a(f"v_pk_mul_f32 {vr(vL0+2*qt, 2)}, {vr(vL0+2*qt, 2)}, {vr(al+2*qt,2)} op_sel_hi:[1,0]")
            for p in range(4):
                for i in range(0, 8, 2):
                    c = vO + (p*2 + qt)*8 + i
                    a(f"v_pk_mul_f32 {vr(c,2)}, {vr(c,2)}, {vr(al+2*qt,2)} op_sel_hi:[1,0]")
        a("s_branch L_tile_exp")

    def main(self):
        a = self.a
        self.prologue()
        a(f"s_cmp_ge_u32 s{sWAVE}, 4\ns_cbranch_scc1 L_pj")
        if self.inl:
            self.at_first()
            self.subs()
        else:
            a("s_branch L_at")
            self.subs()
            self.at_first()
        self.pj_first()
        if not self.setup0:
            self.pj_setup()
        self.at_rest()
        self.reduce()
        self.at_rare()
        self.pj_rest()
        a("L_end:\ns_endpgm")
        return a.text()


HEADER = open("cdna_kernels/" + NAME + ".s.ref").read().split("; Override launch geometry")[0]


ABOUT = """; Fused two-branch attention block, one launch, one 512-thread workgroup per CU.
"""


def build(**kw):
    return HEADER + ABOUT + single(Gen(**kw).main(), 256, 512, LDS_BYTES, vgpr=256, accum=256, sgpr=102)


if __name__ == "__main__":
    kw = {}
    for x in sys.argv[2:]:
        k, v = x.split("=")
        kw[k] = int(v, 0)
    open(sys.argv[1], "w").write(build(**kw))
```
